```python
import torch

def _softmax(x, axis=-1):
    return torch.softmax(x, dim=axis)
def _gelu(x):
    return torch.nn.functional.gelu(x, approximate="tanh")
def _silu(x):
    return torch.nn.functional.silu(x)
def _sigmoid(x):
    return torch.sigmoid(x)
def _layernorm(x, axis=-1, eps=1e-5):
    m = x.mean(dim=axis, keepdim=True)
    v = x.var(dim=axis, keepdim=True, unbiased=False)
    return (x - m) / torch.sqrt(v + eps)
def _scatter_add(tgt, idx, src, axis=0):
    return tgt.clone().index_add_(axis, idx, src)
def _segment_sum(src, seg, n):
    out = torch.zeros((n,) + src.shape[1:], dtype=src.dtype)
    return out.index_add_(0, seg, src)
def _pad(x, pw):
    flat = tuple(v for pair in reversed(pw) for v in pair)
    return torch.nn.functional.pad(x, flat)

kernel_name = 'sequential_preLN__compressed_kv_cla__dense_activation_squared_relu__decode'

def setup_inputs():

    _w = (lambda a: (lambda t: t.to(torch.bfloat16) if t.is_floating_point() else t)(torch.as_tensor(a)))
    def _A_setup():
        B, H, Sq, Sk, D, M = 1, 32, 1, 16384, 128, 640
        Dc = 4 * D
        return {
            "x": _w((lambda *s: torch.randn(*s, dtype=torch.bfloat16) * 0.05)(B, Sq, M)),
            "c_kv": _w((lambda *s: torch.randn(*s, dtype=torch.bfloat16) * 0.4)(B, Sk, Dc)),
            "w_q": _w((lambda *s: torch.randn(*s, dtype=torch.bfloat16) * 3.2)(M, H, D) * (M ** -0.5)),
            "w_uk": _w((lambda *s: torch.randn(*s, dtype=torch.bfloat16) * 3.2)(Dc, H, D) * (Dc ** -0.5)),
            "w_uv": _w((lambda *s: torch.randn(*s, dtype=torch.bfloat16) * 0.4)(Dc, H, D) * (Dc ** -0.5)),
            "w_o": _w((lambda *s: torch.randn(*s, dtype=torch.bfloat16) * 0.4)(H, D, M) * ((H * D) ** -0.5)),
        }
    _A_in = _A_setup()

    def _B_setup():
        B, S, D, F = 1, 1, 640, 1728
        return {
            "x": _w((lambda *s: torch.randn(*s, dtype=torch.bfloat16) * 0.05)(B, S, D)),
            "w1": _w((lambda *s: torch.randn(*s, dtype=torch.bfloat16) * 0.05)(D, F)),
            "b1": _w((lambda *s: torch.randn(*s, dtype=torch.bfloat16) * 0.4)(F)),
            "w2": _w((lambda *s: torch.randn(*s, dtype=torch.bfloat16) * 0.05)(F, D)),
            "b2": _w((lambda *s: torch.randn(*s, dtype=torch.bfloat16) * 1.6)(D)),
        }
    _B_in = _B_setup()

    return {
        "A_x": _A_in["x"],
        "A_c_kv": _A_in["c_kv"],
        "A_w_q": _A_in["w_q"],
        "A_w_uk": _A_in["w_uk"],
        "A_w_uv": _A_in["w_uv"],
        "A_w_o": _A_in["w_o"],
        "B_x": _B_in["x"],
        "B_w1": _B_in["w1"],
        "B_b1": _B_in["b1"],
        "B_w2": _B_in["w2"],
        "B_b2": _B_in["b2"],
    }

def reference(A_x, A_c_kv, A_w_q, A_w_uk, A_w_uv, A_w_o, B_x, B_w1, B_b1, B_w2, B_b2):
    def _A_ref(x, c_kv, w_q, w_uk, w_uv, w_o):
        B, Sq, M = x.shape[0], x.shape[1], x.shape[2]
        Sk = c_kv.shape[1]
        H, D = w_q.shape[1], w_q.shape[2]
        q = torch.einsum("bqm,mhd->bhqd", x, w_q)
        k = torch.einsum("bkc,chd->bhkd", c_kv, w_uk)
        v = torch.einsum("bkc,chd->bhkd", c_kv, w_uv)
        scores = torch.einsum("bhqd,bhkd->bhqk", q, k) * (D ** -0.5)
        off = Sk - Sq
        qi = torch.arange(Sq)[:, None]
        kj = torch.arange(Sk)[None, :]
        cmask = kj <= (qi + off)
        scores = torch.where(cmask[None, None], scores, -1e9)
        p = _softmax(scores, axis=-1)
        ctx = torch.einsum("bhqk,bhkd->bhqd", p, v)
        return torch.einsum("bhqd,hdm->bqm", ctx, w_o)

    def _B_ref(x, w1, b1, w2, b2):
        h = torch.einsum("bsd,df->bsf", x, w1) + b1
        zero = torch.zeros_like(h)
        r = torch.where(h > zero, h, zero)
        h = r * r
        out = torch.einsum("bsf,fd->bsd", h, w2) + b2
        return out

    x = A_x
    h = x + _A_ref(_layernorm(x, axis=-1), A_c_kv, A_w_q, A_w_uk, A_w_uv, A_w_o)
    h2 = h + _B_ref(_layernorm(h, axis=-1), B_w1, B_b1, B_w2, B_b2)
    return h2
```

```python
import re
TRANS = ('v_exp_f32','v_log_f32','v_rcp_f32','v_rsq_f32','v_sqrt_f32','v_sin_f32','v_cos_f32')

def regs_of(tok):
    tok = tok.strip().lstrip('-')
    if tok.startswith('abs(') or tok.startswith('|'):
        tok = tok.replace('abs(','').replace(')','').replace('|','')
    m = re.fullmatch(r'([vas])(\d+)', tok)
    if m: return {(m.group(1), int(m.group(2)))}
    m = re.fullmatch(r'([vas])\[(\d+):(\d+)\]', tok)
    if m: return {(m.group(1), i) for i in range(int(m.group(2)), int(m.group(3))+1)}
    if tok in ('vcc','vcc_lo','vcc_hi'): return {('s','vcc')}
    if tok in ('exec','exec_lo','exec_hi'): return {('s','exec')}
    if tok == 'm0': return {('s','m0')}
    return set()

class Ins:
    def __init__(self, text):
        self.text = text
        t = text.split(';')[0].strip()
        parts = t.split(None, 1)
        self.op = parts[0]
        rest = parts[1] if len(parts) > 1 else ''
        ops = []; cur = ''; depth = 0
        for ch in rest:
            if ch == '[': depth += 1
            if ch == ']': depth -= 1
            if ch == ',' and depth == 0: ops.append(cur.strip()); cur = ''
            else: cur += ch
        if cur.strip(): ops.append(cur.strip())
        self.mods = ''
        if ops:
            sp = ops[-1].split(None, 1)
            ops[-1] = sp[0]
            if len(sp) > 1: self.mods = sp[1]
        self.ops = ops
        op = self.op
        self.is_mfma = op.startswith('v_mfma')
        self.is_valu = op.startswith('v_') and not self.is_mfma
        self.is_trans = any(op.startswith(x) for x in TRANS)
        self.is_dpp = '_dpp' in op
        self.is_perml = op.startswith('v_permlane')
        self.is_rl = op.startswith('v_readlane') or op.startswith('v_readfirstlane')
        self.is_ds = op.startswith('ds_')
        self.is_vmem = op.startswith('global_') or op.startswith('buffer_')
        self.is_salu = op.startswith('s_')
        self.is_dma = self.is_vmem and ('_lds_' in op or re.search(r'\blds\b', self.mods) is not None)
        self.is_store = (self.is_vmem and ('store' in op or 'atomic' in op))
        self.wide_store = self.is_store and ('x4' in op or 'x3' in op)
        R = [regs_of(o) for o in ops]
        w = set(); r = set()
        if self.is_mfma:
            w = R[0]; self.srcA = R[1]; self.srcB = R[2]; self.srcC = R[3]; r = R[1] | R[2] | R[3]
            self.passes = 8 if '32x32' in op else 4
        elif self.is_valu:
            if self.is_perml: w = R[0] | R[1]; r = R[0] | R[1]
            elif op.startswith('v_cmp'): w = R[0]; r = set().union(*R[1:])
            elif op.startswith(('v_add_co','v_sub_co','v_addc_co','v_subb_co')): w = R[0] | R[1]; r = set().union(*R[2:])
            else:
                w = R[0]; r = set().union(*R[1:]) if len(R) > 1 else set()
                if op.startswith(('v_fmac','v_dot2c','v_writelane')) or self.is_dpp: r |= R[0]
                if op.startswith('v_cndmask') and len(ops) == 3: r |= {('s','vcc')}
        elif self.is_ds:
            if op.startswith(('ds_read','ds_bpermute','ds_permute','ds_swizzle')): w = R[0]; r = set().union(*R[1:])
            else: r = set().union(*R)
        elif self.is_vmem and op.startswith(('buffer_wbl2','buffer_inv')):
            pass
        elif self.is_vmem:
            if self.is_dma: r = set().union(*R) | {('s','m0')}
            elif self.is_store:
                r = set().union(*R)
                self.data = R[0] if op.startswith('buffer_') else R[1]
            else: w = R[0]; r = set().union(*R[1:])
        elif self.is_salu:
            if op.startswith(('s_cmp','s_bitcmp','s_cbranch','s_branch','s_waitcnt','s_nop','s_barrier','s_sleep','s_endpgm','s_setprio')): r = set().union(*R) if R else set()
            else:
                w = R[0] if R else set(); r = set().union(*R[1:]) if len(R) > 1 else set()
                if 'saveexec' in op: w |= {('s','exec')}
        self.w = w; self.r = r
        self.states = 1
        if op == 's_nop': self.states = int(ops[0]) + 1

def vec(s): return {x for x in s if x[0] in 'va'}
def sca(s): return {x for x in s if x[0] == 's'}

def need(p, c):
    n = 0
    if p.is_valu:
        pw = vec(p.w)
        if pw:
            if c.is_mfma and pw & c.r: n = max(n, 2)
            if c.is_dpp and pw & c.r: n = max(n, 2)
            if c.is_perml and pw & c.r: n = max(n, 2)
            if c.is_rl and pw & c.r: n = max(n, 1)
            if p.is_trans and c.is_valu and not c.is_trans and pw & c.r: n = max(n, 1)
            if p.is_trans and (c.is_mfma or c.is_vmem or c.is_ds) and pw & c.r: n = max(n, 2 if c.is_mfma else 1)
            if ('sdwa' in p.op or 'op_sel' in p.mods) and c.is_valu and pw & (c.r | c.w): n = max(n, 1)
            if p.op.startswith('v_dot') and (c.is_valu or c.is_vmem or c.is_ds or c.is_mfma) and pw & (c.r | c.w):
                same = c.op == p.op and not (pw & (regs_of(c.ops[1]) | regs_of(c.ops[2])))
                if not same: n = max(n, 3)
        ps = sca(p.w)
        if ps:
            if c.is_vmem and ps & c.r: n = max(n, 5)
            if c.is_valu and ps & c.r: n = max(n, 4 if (c.is_rl or c.op.startswith('v_writelane')) else 2)
            if c.is_salu and ps & c.r: n = max(n, 1)
    if p.is_mfma:
        big = p.passes == 8
        if c.is_mfma:
            if p.w & (c.srcA | c.srcB): n = max(n, 12 if big else 8)
            if p.w & c.srcC:
                if not (p.w == c.srcC and p.passes == c.passes): n = max(n, 10 if big else 6)
            elif p.w & c.w: n = max(n, 10 if big else 6)
        elif (c.is_valu or c.is_vmem or c.is_ds) and p.w & (c.r | c.w): n = max(n, 12 if big else 8)
        if c.is_valu and p.srcC & c.w: n = max(n, 7 if big else 3)
    if p.is_salu and ('s','m0') in p.w and c.is_dma: n = max(n, 1)
    if p.is_store and p.wide_store and (c.is_valu or c.is_mfma) and p.data & c.w: n = max(n, 2)
    if p.is_store and p.wide_store and (c.is_ds or c.is_vmem) and p.data & c.w: n = max(n, 1)
    if p.is_ds and p.op.startswith('ds_write') and ('b128' in p.op or 'b96' in p.op) and c.is_valu and len(p.ops) > 1 and regs_of(p.ops[1]) & c.w: n = max(n, 2)
    return n

class Asm:
    def __init__(self):
        self.lines = []; self.hist = []; self.nops = 0; self.uid = 0
    def raw(self, t): self.lines.append(t)
    def label(self, name):
        self.lines.append(name + ':')
    def newlabel(self, base='L'):
        self.uid += 1; return f'{base}_{self.uid}'
    def __call__(self, text):
        for ln in text.split('\n'):
            s = ln.strip()
            if not s or s.startswith(';'):
                if s: self.lines.append('  ' + s)
                continue
            if s.endswith(':') or s.startswith('.'):
                self.lines.append(s); continue
            self.emit(s)
    def emit(self, s):
        c = Ins(s)
        dist = 0; pad = 0
        for p in reversed(self.hist):
            n = need(p, c)
            if n - dist > pad: pad = n - dist
            dist += p.states
            if dist >= 20: break
        while pad > 0:
            k = min(pad, 16)
            nop = Ins(f's_nop {k-1}'); self.hist.append(nop); self.lines.append(f'  s_nop {k-1}'); self.nops += 1
            pad -= k
        self.hist.append(c); self.lines.append('  ' + s)
        if len(self.hist) > 40: self.hist = self.hist[-40:]
    def text(self): return '\n'.join(self.lines)
```

```python
import sys
sys.path.insert(0,'work')
from dsl import Asm
NAME = 'sequential_preLN__compressed_kv_cla__dense_activation_squared_relu__decode'
KN = NAME + '_kernel'

EPOCH=0; RDY=0x1000; QP=0x8000; QL=0x28000; REC=0x30000; HC=0x70000; H3B=0x80000; H4=0x84000; PART=0x100000; STAMP=0x600000
WSSZ=0x700000
OOB=0x7ffffff0
pX,pCKV,pWQ,pWUK,pWUV,pWO,pBX,pW1,pB1,pW2,pB2,pOUT,pDBG,pWS = [8+2*i for i in range(14)]
sW,sX8,sR,sE,sT0,sT1,sTO,sC = 36,37,38,39,40,41,42,43
rWS=44; rA=48; rB=52; rC=56
sA0=60
sSTAMP=80
def srd(r): return f's[{r}:{r+3}]'
def v(n,c=1): return f'v{n}' if c==1 else f'v[{n}:{n+c-1}]'
def a(n,c=1): return f'a{n}' if c==1 else f'a[{n}:{n+c-1}]'
DPP='row_mask:0xf bank_mask:0xf'

class G:
    def __init__(self, stamps=False, opt=None):
        self.e = Asm(); self.stamps = stamps; self.o = opt or {}
    def stamp(self, k):
        if self.stamps: self.e(f's_memrealtime s[{sSTAMP+2*k}:{sSTAMP+2*k+1}]')
    def mk_srd(self, r, ptr, off_sgpr, size):
        e = self.e
        if off_sgpr is None:
            e(f's_mov_b32 s{r}, s{ptr}\ns_and_b32 s{r+1}, s{ptr+1}, 0xffff\ns_mov_b32 s{r+2}, {size}')
        else:
            e(f's_add_u32 s{r}, s{ptr}, s{off_sgpr}\ns_addc_u32 s{r+1}, s{ptr+1}, 0\ns_and_b32 s{r+1}, s{r+1}, 0xffff\ns_sub_u32 s{r+2}, {size}, s{off_sgpr}')
        e(f's_mov_b32 s{r+3}, 0x20000')
    def allred(self, op, x, t, steps16=4):
        e = self.e
        pats = ['quad_perm:[1,0,3,2]','quad_perm:[2,3,0,1]','row_half_mirror','row_mirror'][:steps16]
        for p in pats: e(f'{op}_dpp v{x}, v{x}, v{x} {p} {DPP}')
        e(f'v_mov_b32 v{t}, v{x}\nv_permlane16_swap_b32 v{x}, v{t}\n{op} v{x}, v{x}, v{t}')
        e(f'v_mov_b32 v{t}, v{x}\nv_permlane32_swap_b32 v{x}, v{t}\n{op} v{x}, v{x}, v{t}')
    def retry(self, label, cond='vccnz', sleep=1):
        e = self.e
        ok = e.newlabel('Lok')
        inv = {'vccnz':'vccz','vccz':'vccnz'}[cond]
        e(f's_cbranch_{inv} {ok}')
        e(f's_sub_u32 s{sTO}, s{sTO}, 1\ns_cmp_eq_u32 s{sTO}, 0\ns_cbranch_scc1 L_END')
        if sleep: e(f's_sleep {sleep}')
        e(f's_branch {label}')
        e(f'{ok}:')
    def maxchain(self, dst, regs):
        e = self.e
        regs = list(regs)
        e(f'v_max3_u32 v{dst}, v{regs[0]}, v{regs[1]}, v{regs[2]}'); regs = regs[3:]
        while len(regs) >= 2:
            e(f'v_max3_u32 v{dst}, v{dst}, v{regs[0]}, v{regs[1]}'); regs = regs[2:]
        if regs: e(f'v_max_u32 v{dst}, v{dst}, v{regs[0]}')
    def ident_masks(self, dst, val_lo, val_hi, rowhalf, t):
        e = self.e
        e(f'v_and_b32 v{t}, 1, v1\nv_cmp_eq_u32 vcc, 1, v{t}\nv_mov_b32 v{t}, {val_lo}\nv_mov_b32 v{t+1}, {val_hi}\nv_cndmask_b32 v{t}, v{t}, v{t+1}, vcc')
        e(f'v_lshrrev_b32 v{t+1}, 1, v1')
        for r in range(4):
            e(f'v_cmp_eq_u32 vcc, {r+4*rowhalf}, v{t+1}\nv_cndmask_b32 v{dst+r}, 0, v{t}, vcc')
    def red_final(self, RED, t, clamp):
        e = self.e
        e(f'v_and_b32 v{t+36}, 7, v0\nv_lshlrev_b32 v{t+36}, 5, v{t+36}')
        for w in range(4):
            e(f'ds_read_b128 {v(t+4+8*w,4)}, v{t+36} offset:{RED+256*w}')
            e(f'ds_read_b128 {v(t+8+8*w,4)}, v{t+36} offset:{RED+256*w+16}')
        e('s_waitcnt lgkmcnt(4)')
        for i in range(8): e(f'v_add_f32 v{t+4+i}, v{t+4+i}, v{t+12+i}')
        e('s_waitcnt lgkmcnt(0)')
        for i in range(8): e(f'v_add_f32 v{t+20+i}, v{t+20+i}, v{t+28+i}')
        for i in range(8): e(f'v_add_f32 v{t+4+i}, v{t+4+i}, v{t+20+i}')
        for i in range(4): e(f'v_cvt_pk_bf16_f32 v{t+i}, v{t+4+2*i}, v{t+5+2*i}')
        if clamp:
            for i in range(4): e(f'v_min_u32 v{t+i}, -2, v{t+i}')

    def prologue(self):
        e = self.e
        self.stamp(0)
        e(f'''
        s_cmp_ge_u32 s2, 256
        s_cbranch_scc1 L_EXIT
        s_load_dwordx16 s[8:23], s[0:1], 0
        s_load_dwordx8 s[24:31], s[0:1], 64
        s_load_dwordx4 s[32:35], s[0:1], 96
        v_lshrrev_b32 v1, 6, v0
        v_readfirstlane_b32 s{sW}, v1
        v_and_b32 v0, 63, v0
        v_and_b32 v1, 15, v0
        v_lshrrev_b32 v2, 4, v0
        v_lshlrev_b32 v3, 4, v0
        s_and_b32 s{sX8}, s2, 7
        s_lshr_b32 s{sR}, s2, 3
        s_mov_b32 s{sTO}, 400000
        s_waitcnt lgkmcnt(0)
        s_load_dword s{sE}, s[{pWS}:{pWS+1}], {EPOCH}
        ''')
        self.mk_srd(rWS, pWS, None, WSSZ)
        e(f's_cmp_ge_u32 s{sR}, 16\ns_cbranch_scc1 L_A')
    def tags(self):
        self.e(f's_add_u32 s{sT0}, s{sE}, 0x9e3779b9\ns_xor_b32 s{sT1}, s{sT0}, 0x5bd1e995')

    def role_T(self):
        e = self.e
        QB = 131072; MX = QB; LX = QB+512; PB = QB+1024
        sT, sF, sG, s0, s1, s2_ = 60, 61, 62, 63, 64, 65
        sH = 66
        vX = 4
        e(f's_lshl_b32 s{sT}, s{sX8}, 4\ns_add_u32 s{sT}, s{sT}, s{sR}')
        e(f's_lshl_b32 s{s0}, s{sT}, 17')
        self.mk_srd(rA, pCKV, s0, 16777216)
        e(f's_lshr_b32 s{sG}, s{sR}, 2\ns_lshl_b32 s{sG}, s{sG}, 3\ns_add_u32 s{sG}, s{sG}, s{sX8}')
        e(f's_and_b32 s{sF}, s{sR}, 3\ns_lshl_b32 s{s0}, s{sG}, 2\ns_add_u32 s{sF}, s{sF}, s{s0}')
        for k in range(8): e(f'v_xor_b32 v{vX+k}, {k<<5}, v3')
        e(f'''
        s_cmp_ge_u32 s{sG}, 27
        s_cbranch_scc1 L_T_NORESET
        s_cmp_ge_u32 s{sW}, 2
        s_cbranch_scc1 L_T_NORESET
        s_lshl_b32 s{s0}, s{sW}, 10
        v_add_u32 v12, s{s0}, v3
        v_mov_b32 v13, {OOB}
        v_cmp_gt_u32 vcc, 1280, v12
        v_cndmask_b32 v12, v13, v12, vcc
        s_mul_i32 s{s0}, s{sF}, 1280
        s_add_u32 s{s0}, s{s0}, {H4}
        v_mov_b32 v16, -1
        v_mov_b32 v17, -1
        v_mov_b32 v18, -1
        v_mov_b32 v19, -1
        buffer_store_dwordx4 v[16:19], v12, {srd(rWS)}, s{s0} offen sc1
        L_T_NORESET:
        ''')
        e(f's_lshl_b32 s{s1}, s{sW}, 12\ns_add_u32 s{s1}, s{s1}, {RDY}\nv_and_b32 v14, 31, v0\nv_lshlrev_b32 v14, 7, v14')
        e(f's_lshl_b32 s{s0}, s{sW}, 15')
        thr = self.o.get('t_throttle', [])
        for k in range(32):
            if k % 4 == 0: e(f's_add_u32 m0, s{s0}, {k*1024}')
            e(f'buffer_load_dwordx4 v{vX+(k&7)}, {srd(rA)}, m0 offen offset:{(k&3)*1024} nt lds')
            for (kk, n) in thr:
                if kk == k: e(f's_waitcnt vmcnt({n})')
            if k == 23: e(f'buffer_load_dwordx2 v[20:21], v14, {srd(rWS)}, s{s1} offen sc1')
        self.stamp(1)
        vKa, vQa, vVa = 24, 28, 32
        e(f'v_and_b32 v12, 7, v1\nv_lshlrev_b32 v12, 5, v12')
        e(f'v_lshlrev_b32 v13, 10, v1')
        for s3 in range(4):
            e(f'v_lshl_add_u32 v15, v2, 4, {s3*64}' if s3*64 <= 64 else f'v_lshlrev_b32 v15, 4, v2\nv_add_u32 v15, {s3*64}, v15')
            e(f'v_xor_b32 v15, v15, v12\nv_add_u32 v15, v15, v13')
            e(f'v_add_u32 v{vKa+s3}, s{s0}, v15\nv_add_u32 v{vQa+s3}, {QB}, v15')
        e(f'''
        v_lshrrev_b32 v12, 2, v1
        v_lshl_add_u32 v13, v2, 2, v12
        v_and_b32 v15, 7, v13
        v_lshlrev_b32 v13, 10, v13
        v_and_b32 v12, 3, v1
        v_lshl_add_u32 v13, v12, 3, v13
        s_lshl_b32 s{s2_}, s{sW}, 8
        v_add_u32 v13, s{s2_}, v13
        ''')
        for T in range(8): e(f'v_xor_b32 v12, {T}, v15\nv_lshl_add_u32 v{vVa+T}, v12, 5, v13')
        e(f's_lshl_b32 s{s2_}, s{sW}, 13\ns_add_u32 s{s2_}, s{s2_}, {QB}')
        for i in range(8): e(f'v_add_u32 v{vX+i}, s{s2_}, v{vX+i}')
        vPS, vRS, vMW, vMR, vPW = 40, 41, 42, 43, 44
        e(f'''
        v_lshlrev_b32 v12, 19, v2
        v_lshl_add_u32 v12, v1, 4, v12
        s_lshl_b32 s{s2_}, s{sW}, 15
        s_lshl_b32 s74, s{sT}, 8
        s_add_u32 s{s2_}, s{s2_}, s74
        v_add_u32 v{vPS}, s{s2_}, v12
        ''')
        for i in range(8): e(f's_mov_b32 s{sH+i}, {PART + (16*(i>>2) + (i&3))*131072}')
        e(f'''
        s_lshl_b32 s{s2_}, s{sT}, 11
        s_lshl_b32 s74, s{sW}, 9
        s_add_u32 s{s2_}, s{s2_}, s74
        s_add_u32 s{s2_}, s{s2_}, {REC}
        v_add_u32 v12, s{s2_}, v3
        v_mov_b32 v13, {OOB}
        v_cmp_gt_u32 vcc, 32, v0
        v_cndmask_b32 v{vRS}, v13, v12, vcc
        ''')
        e(f'''
        v_lshrrev_b32 v12, 1, v2
        v_lshl_add_u32 v12, v12, 4, v1
        v_lshlrev_b32 v12, 4, v12
        s_lshl_b32 s{s2_}, s{sW}, 2
        s_add_u32 s{s2_}, s{s2_}, {MX}
        v_add_u32 v{vMW}, s{s2_}, v12
        v_lshlrev_b32 v12, 4, v1
        v_add_u32 v{vMR}, {MX}, v12
        s_lshl_b32 s{s2_}, s{sW}, 11
        s_add_u32 s{s2_}, s{s2_}, {PB}
        v_add_u32 v{vPW}, s{s2_}, v3
        v_add_u32 v45, {PB}, v3
        s_mov_b32 s{sC}, 0x3e0293ee
        s_waitcnt lgkmcnt(0)
        ''')
        self.tags()
        e('s_waitcnt vmcnt(8)')
        e('L_T_RDY:')
        e(f'v_xor_b32 v20, s{sT0}, v20\nv_xor_b32 v21, s{sT1}, v21\nv_or_b32 v20, v20, v21\nv_cmp_ne_u32 vcc, 0, v20\ns_cbranch_vccz L_T_RDYOK')
        e(f's_sub_u32 s{sTO}, s{sTO}, 1\ns_cmp_eq_u32 s{sTO}, 0\ns_cbranch_scc1 L_END')
        e(f'buffer_load_dwordx2 v[20:21], v14, {srd(rWS)}, s{s1} offen sc1\ns_waitcnt vmcnt(0)\ns_branch L_T_RDY')
        e('L_T_RDYOK:')
        vQ = 128
        e(f's_lshl_b32 s{s1}, s{sW}, 13\ns_add_u32 s{s1}, s{s1}, {QL}\ns_add_u32 s{s2_}, s{s1}, 4096')
        def qloads():
            for i in range(8): e(f'buffer_load_dwordx4 {v(vQ+4*i,4)}, v3, {srd(rWS)}, s{s1 if i<4 else s2_} offen offset:{(i&3)*1024} sc1')
        qloads()
        e('s_waitcnt vmcnt(8)')
        self.stamp(2)
        for s in range(16):
            for kt in range(2):
                e(f'ds_read_b128 {a((s*2+kt)*4,4)}, v{vKa+(s&3)} offset:{(s>>2)*256+kt*16384}')
        e('L_T_Q:')
        e('s_waitcnt vmcnt(0)')
        self.maxchain(12, range(vQ, vQ+32))
        e('v_cmp_eq_u32 vcc, -1, v12\ns_cbranch_vccz L_T_QOK')
        e(f's_sub_u32 s{sTO}, s{sTO}, 1\ns_cmp_eq_u32 s{sTO}, 0\ns_cbranch_scc1 L_END\ns_sleep 1')
        qloads()
        e('s_branch L_T_Q')
        e('L_T_QOK:')
        for i in range(8): e(f'ds_write_b128 v{vX+i}, {v(vQ+4*i,4)} offset:{i*1024}')
        e('s_waitcnt lgkmcnt(0)\ns_barrier')
        self.stamp(3)
        vS = 48
        def qread(s, ht): e(f'ds_read_b128 {v(vQ+(s*2+ht)*4,4)}, v{vQa+(s&3)} offset:{(s>>2)*256+ht*16384}')
        vlist = [(ks,T,q) for ks in range(4) for T in range(8) for q in range(2)]
        def vread(i):
            ks,T,q = vlist[i]
            if i == 32:
                for TT in range(8): e(f'v_add_u32 v{vVa+TT}, 0x10000, v{vVa+TT}')
            e(f'ds_read_b64_tr_b16 {a(128+(ks*8+T)*4+2*q,2)}, v{vVa+T} offset:{(ks&1)*32768+q*16384}')
        D = 3
        for s in range(D): qread(s,0); qread(s,1)
        seq = [('q',s,h) for s in range(D) for h in range(2)]
        vi = 0
        for s in range(16):
            last = max(i for i,x in enumerate(seq) if x[0]=='q' and x[1]==s)
            e(f's_waitcnt lgkmcnt({len(seq)-1-last})')
            if s == 15: e('s_barrier')
            grp = []
            if s+D < 16: grp += [('q',s+D,0),('q',s+D,1)]
            if s < 15: grp += [('v',vi),('v',vi+1)]; vi += 2
            for m,(kt,ht) in enumerate([(0,0),(0,1),(1,0),(1,1)]):
                c = '0' if s == 0 else v(vS+(kt*2+ht)*4,4)
                e(f'v_mfma_f32_16x16x32_bf16 {v(vS+(kt*2+ht)*4,4)}, {a((s*2+kt)*4,4)}, {v(vQ+(s*2+ht)*4,4)}, {c}')
                if m < len(grp):
                    x = grp[m]; seq.append(x)
                    if x[0]=='q': qread(x[1],x[2])
                    else: vread(x[1])
        self.stamp(4)
        for ht in range(2):
            r0 = vS+ht*4; r1 = vS+8+ht*4
            e(f'v_max3_f32 v{64+ht}, v{r0}, v{r0+1}, v{r0+2}\nv_max3_f32 v{64+ht}, v{64+ht}, v{r0+3}, v{r1}')
        for ht in range(2):
            r1 = vS+8+ht*4
            e(f'v_max3_f32 v{64+ht}, v{64+ht}, v{r1+1}, v{r1+2}\nv_max_f32 v{64+ht}, v{64+ht}, v{r1+3}')
        e('v_permlane32_swap_b32 v64, v65\nv_max_f32 v64, v64, v65\nv_mov_b32 v65, v64\nv_permlane16_swap_b32 v64, v65\nv_max_f32 v64, v64, v65')
        e(f'ds_write_b32 v{vMW}, v64\ns_waitcnt lgkmcnt(0)\ns_barrier')
        e(f'ds_read_b128 v[68:71], v{vMR}\nds_read_b128 v[72:75], v{vMR} offset:256')
        n0 = 10
        for i in range(n0): vread(vi); vi += 1
        e(f's_waitcnt lgkmcnt({n0})')
        e('v_max3_f32 v66, v68, v69, v70\nv_max3_f32 v67, v72, v73, v74\nv_max_f32 v66, v66, v71\nv_max_f32 v67, v67, v75')
        e(f'v_mul_f32 v66, s{sC}, v66\nv_mul_f32 v67, s{sC}, v67')
        vP = 76
        for ht in range(2):
            for kt in range(2):
                b = vS+(kt*2+ht)*4
                for r in range(4): e(f'v_fma_f32 v{b+r}, v{b+r}, s{sC}, -v{66+ht}')
                for r in range(4):
                    e(f'v_exp_f32 v{b+r}, v{b+r}')
                    if vi < 64: vread(vi); vi += 1
                    if vi < 64 and r % 2 == 0: vread(vi); vi += 1
                e(f'v_cvt_pk_bf16_f32 v{vP+ht*4+kt*2}, v{b}, v{b+1}\nv_cvt_pk_bf16_f32 v{vP+ht*4+kt*2+1}, v{b+2}, v{b+3}')
            e(f'ds_write_b128 v{vPW}, {v(vP+ht*4,4)} offset:{ht*1024}')
        while vi < 64: vread(vi); vi += 1
        for ht in range(2):
            r0 = vS+ht*4; r1 = vS+8+ht*4
            e(f'v_add_f32 v{r0}, v{r0}, v{r0+1}\nv_add_f32 v{r0+2}, v{r0+2}, v{r0+3}\nv_add_f32 v{r1}, v{r1}, v{r1+1}\nv_add_f32 v{r1+2}, v{r1+2}, v{r1+3}')
            e(f'v_add_f32 v{r0}, v{r0}, v{r0+2}\nv_add_f32 v{r1}, v{r1}, v{r1+2}\nv_add_f32 v{64+ht}, v{r0}, v{r1}')
        e('v_permlane32_swap_b32 v64, v65\nv_add_f32 v64, v64, v65\nv_mov_b32 v65, v64\nv_permlane16_swap_b32 v64, v65\nv_add_f32 v64, v64, v65')
        e(f'ds_write_b32 v{vMW}, v64 offset:512\ns_waitcnt lgkmcnt(0)\ns_barrier')
        self.stamp(5)
        vPF = 88; vAcc = 128; vO = 192
        order = [(ks,0) for ks in range(4)] + [(ks,1) for ks in range(4)]
        for ks,ht in order: e(f'ds_read_b128 {v(vPF+(ks*2+ht)*4,4)}, v45 offset:{(ks*2+ht)*1024}')
        e(f'v_and_b32 v12, 31, v0\nv_lshlrev_b32 v12, 4, v12\nv_add_u32 v12, {LX}, v12\nds_read_b128 v[68:71], v12')
        def outops(ht):
            ops = []
            for r in range(4):
                o = vO + (ht*4+r)*4
                for k in range(4):
                    ops.append(f'v_cvt_pk_bf16_f32 v{o+k}, v{vAcc+(ht*8+2*k)*4+r}, v{vAcc+(ht*8+2*k+1)*4+r}')
                ops.append(f'buffer_store_dwordx4 {v(o,4)}, v{vPS}, {srd(rWS)}, s{sH+ht*4+r} offen sc1')
            return ops
        pend = []
        for n,(ks,ht) in enumerate(order):
            e(f's_waitcnt lgkmcnt({8-n})')
            for T in range(8):
                c = '0' if ks == 0 else v(vAcc+(ht*8+T)*4,4)
                e(f'v_mfma_f32_16x16x32_bf16 {v(vAcc+(ht*8+T)*4,4)}, {v(vPF+(ks*2+ht)*4,4)}, {a(128+(ks*8+T)*4,4)}, {c}')
                if ht == 1 and ks >= 1 and pend: e(pend.pop(0))
            if n == 3: pend = outops(0)
        for x in pend: e(x)
        e('s_waitcnt lgkmcnt(0)')
        e('v_add_f32 v68, v68, v69\nv_add_f32 v70, v70, v71\nv_add_f32 v85, v68, v70')
        e(f'v_cmp_gt_u32 vcc, 16, v0\nv_cndmask_b32 v84, v67, v66, vcc\nv_mov_b32 v86, s{sT0}\nv_mov_b32 v87, s{sT1}')
        for x in outops(1): e(x)
        self.stamp(6)
        e('s_waitcnt vmcnt(0)')
        e(f'buffer_store_dwordx4 v[84:87], v{vRS}, {srd(rWS)}, 0 offen sc1')
        self.stamp(7)
        e('s_barrier')
        e(f's_cmp_ge_u32 s{sG}, 27\ns_cbranch_scc1 L_FIN')
        self.role_F(sF)

    def h_consts(self, vAlo, vAhi, t):
        self.ident_masks(vAlo, 0x3f80, 0x3f800000, 0, t)
        if vAhi is not None: self.ident_masks(vAhi, 0x3f80, 0x3f800000, 1, t)

    def role_F(self, sF):
        e = self.e
        W1 = 0; W2 = 20480; HB = 40960; DUM = HB+1280; ST = HB+1536
        s0,s1,s2_,sB = 63,64,65,66
        e(f's_lshl_b32 s{s0}, s{sF}, 5')
        self.mk_srd(rA, pW1, s0, 2211840)
        e(f's_mul_i32 s{s0}, s{sF}, 20480')
        self.mk_srd(rB, pW2, s0, 2211840)
        e(f'''
        v_lshrrev_b32 v4, 3, v0
        v_and_b32 v4, 3, v4
        v_lshlrev_b32 v4, 3, v4
        v_lshrrev_b32 v5, 5, v0
        v_lshl_add_u32 v4, v5, 2, v4
        v_bfe_u32 v5, v0, 1, 2
        v_add_u32 v4, v4, v5
        v_mul_u32_u24 v4, 3456, v4
        v_and_b32 v5, 1, v0
        v_lshl_add_u32 v4, v5, 4, v4
        s_mul_i32 s{s0}, s{sW}, 110592
        s_lshl_b32 s{s1}, s{sW}, 10
        ''')
        for k in range(5):
            e(f's_add_u32 m0, s{s1}, {W1+k*4096}')
            e(f'buffer_load_dwordx4 v4, {srd(rA)}, s{s0} offen nt lds')
            if k < 4: e(f's_add_u32 s{s0}, s{s0}, {4*110592}')
        for k in range(5):
            e(f's_add_u32 m0, s{s1}, {W2+k*4096}\ns_add_u32 s{s0}, s{s1}, {k*4096}')
            e(f'buffer_load_dwordx4 v3, {srd(rB)}, s{s0} offen nt lds')
        self.mk_srd(rC, pX, None, 1280)
        e(f'''
        s_mul_i32 s{sB}, s{sW}, 3
        s_cmp_eq_u32 s{sW}, 3
        s_cselect_b32 s{sB}, 8, s{sB}
        s_lshl_b32 s{sB}, s{sB}, 7
        v_and_b32 v5, 7, v1
        v_lshlrev_b32 v5, 4, v5
        v_and_b32 v6, 1, v2
        v_lshl_add_u32 v6, v6, 3, v5
        v_lshrrev_b32 v7, 1, v2
        v_lshl_add_u32 v7, v7, 7, v6
        v_add_u32 v7, s{sB}, v7
        v_add_u32 v8, 256, v6
        v_add_u32 v8, s{sB}, v8
        v_mov_b32 v9, {OOB}
        s_cmp_lt_u32 s{sW}, 2
        s_cselect_b32 s{s0}, 32, 0
        v_cmp_gt_u32 vcc, s{s0}, v0
        v_mov_b32 v10, {DUM-HB}
        v_cndmask_b32 v11, v10, v8, vcc
        v_cndmask_b32 v8, v9, v8, vcc
        v_cmp_gt_u32 vcc, 8, v1
        v_cndmask_b32 v12, v9, v7, vcc
        v_cndmask_b32 v13, v9, v8, vcc
        buffer_load_dwordx2 v[16:17], v12, {srd(rC)}, 0 offen
        buffer_load_dwordx2 v[18:19], v13, {srd(rC)}, 0 offen
        ''')
        e(f's_lshl_b32 s{s0}, s{sF}, 5')
        self.mk_srd(rC, pB1, s0, 3456)
        e(f'v_lshlrev_b32 v12, 3, v2\nbuffer_load_dwordx2 v[20:21], v12, {srd(rC)}, 0 offen')
        e(f'''
        v_lshrrev_b32 v12, 3, v0
        v_mul_u32_u24 v12, 1280, v12
        v_add_u32 v12, v12, v5
        v_add_u32 v14, s{sB}, v12
        s_cmp_lt_u32 s{sW}, 2
        s_cselect_b32 s{s0}, 0, {OOB}
        v_max_u32 v15, s{s0}, v14
        s_mov_b32 s{s2_}, {H3B}
        ''')
        vAlo, vAhi, vC0, vC1 = 24, 28, 32, 36
        self.h_consts(vAlo, vAhi, 22)
        e(f'''
        v_lshl_add_u32 v22, v1, 2, v2
        v_lshlrev_b32 v22, 4, v22
        s_mul_i32 s{s0}, s{sW}, 320
        s_mul_i32 s{s1}, s{sF}, 1280
        s_add_u32 s{s0}, s{s0}, s{s1}
        s_add_u32 s{s0}, s{s0}, {H4}
        v_add_u32 v22, s{s0}, v22
        v_cmp_gt_u32 vcc, 5, v1
        v_cndmask_b32 v40, v9, v22, vcc
        v_lshlrev_b32 v41, 3, v0
        v_lshlrev_b32 v42, 4, v2
        v_add_u32 v42, {HB}, v42
        ''')
        e(f'''
        v_lshrrev_b32 v22, 2, v0
        v_mul_u32_u24 v22, 1280, v22
        v_and_b32 v23, 3, v1
        v_lshl_add_u32 v22, v23, 4, v22
        s_mul_i32 s{s0}, s{sW}, 320
        s_add_u32 s{s0}, s{s0}, {W2}
        v_add_u32 v43, s{s0}, v22
        s_lshl_b32 s{s0}, s{sW}, 2
        v_lshrrev_b32 v22, 5, v0
        v_lshlrev_b32 v22, 4, v22
        v_add_u32 v22, s{s0}, v22
        v_add_u32 v44, {ST}, v22
        v_mov_b32 v45, {ST}
        v_mov_b32 v48, 0x3f803f80
        v_mov_b32 v49, 0x3f803f80
        v_mov_b32 v50, 0x3f803f80
        v_mov_b32 v51, 0x3f803f80
        s_waitcnt vmcnt(0)
        s_barrier
        ''')
        for i,(dst,src) in enumerate([(vC0,16),(vC1,18),(52,20)]):
            e(f'v_lshlrev_b32 v{dst}, 16, v{src}\nv_and_b32 v{dst+1}, 0xffff0000, v{src}\nv_lshlrev_b32 v{dst+2}, 16, v{src+1}\nv_and_b32 v{dst+3}, 0xffff0000, v{src+1}')
        for s in range(20):
            for q in range(2): e(f'ds_read_b64_tr_b16 {a(s*4+2*q,2)}, v41 offset:{W1+s*1024+q*512}')
            if s % 6 == 5: e('s_waitcnt lgkmcnt(2)')
        e('s_waitcnt lgkmcnt(2)')
        for P in range(5):
            for hb in range(2): e(f'ds_read_b64_tr_b16 {a(80+P*4+2*hb,2)}, v43 offset:{P*64+hb*8}')
        e('s_waitcnt lgkmcnt(0)')
        for s in range(20):
            e(f'v_mfma_f32_16x16x32_bf16 v[56:59], {a(s*4,4)}, v[48:51], ' + ('0' if s == 0 else 'v[56:59]'))
        for P in range(5):
            e(f's_mov_b32 s{68+2*P}, {0x00010001<<P}\ns_mov_b32 s{69+2*P}, {0x00010001<<P}')
        self.stamp(8)
        vH = 64
        e('L_F_POLL:')
        e(f'buffer_load_dwordx4 {v(vH,4)}, v14, {srd(rWS)}, s{s2_} offen sc1')
        e(f'buffer_load_dwordx4 {v(vH+4,4)}, v14, {srd(rWS)}, s{s2_} offen offset:128 sc1')
        e(f'buffer_load_dwordx4 {v(vH+8,4)}, v15, {srd(rWS)}, s{s2_} offen offset:256 sc1')
        e('s_waitcnt vmcnt(0)')
        self.maxchain(22, range(vH, vH+12))
        e('v_cmp_eq_u32 vcc, -1, v22')
        self.retry('L_F_POLL')
        self.stamp(9)
        e(f'v_mfma_f32_16x16x32_bf16 v[76:79], {v(vAlo,4)}, {v(vH,4)}, {v(vC0,4)}')
        e(f'v_mfma_f32_16x16x32_bf16 v[80:83], {v(vAlo,4)}, {v(vH+8,4)}, {v(vC1,4)}')
        e(f'v_mfma_f32_16x16x32_bf16 v[76:79], {v(vAhi,4)}, {v(vH+4,4)}, v[76:79]')
        for r in range(4): e(f'v_add_f32_dpp v{80+r}, v{80+r}, v{80+r} row_ror:8 {DPP}')
        for r in range(4): e(f'v_add_f32_dpp v{76+r}, v{76+r}, v{76+r} row_ror:8 {DPP}')
        e('v_cvt_pk_bf16_f32 v86, v80, v81\nv_cvt_pk_bf16_f32 v87, v82, v83\nv_cvt_pk_bf16_f32 v84, v76, v77\nv_cvt_pk_bf16_f32 v85, v78, v79')
        e(f'ds_write_b64 v11, v[86:87] offset:{HB}\nds_write_b64 v7, v[84:85] offset:{HB}')
        e('s_waitcnt lgkmcnt(0)\ns_barrier')
        vB = 128
        NP = 12
        for s in range(NP): e(f'ds_read_b128 {v(vB+4*s,4)}, v42 offset:{s*64}')
        e('v_add_f32 v88, v76, v77\nv_add_f32 v89, v78, v79\nv_add_f32 v90, v80, v81\nv_add_f32 v91, v82, v83')
        e('v_mul_f32 v92, v76, v76\nv_mul_f32 v93, v80, v80')
        e('v_add_f32 v88, v88, v89\nv_add_f32 v90, v90, v91')
        for r in range(1,4): e(f'v_fmac_f32 v92, v{76+r}, v{76+r}\nv_fmac_f32 v93, v{80+r}, v{80+r}')
        e('v_add_f32 v88, v88, v90\nv_add_f32 v92, v92, v93')
        e('v_permlane32_swap_b32 v88, v92\nv_add_f32 v88, v88, v92\nv_mov_b32 v92, v88\nv_permlane16_swap_b32 v88, v92\nv_add_f32 v88, v88, v92')
        for p in ['quad_perm:[1,0,3,2]','quad_perm:[2,3,0,1]','row_half_mirror']: e(f'v_add_f32_dpp v88, v88, v88 {p} {DPP}')
        e('ds_write_b32 v44, v88')
        seq = [('b',s) for s in range(NP)] + [('w',0)]
        for s in range(20):
            last = seq.index(('b',s))
            e(f's_waitcnt lgkmcnt({len(seq)-1-last})')
            e(f'v_mfma_f32_16x16x32_bf16 v[96:99], {a(s*4,4)}, {v(vB+4*s,4)}, ' + ('0' if s == 0 else 'v[96:99]'))
            if s+NP < 20:
                e(f'ds_read_b128 {v(vB+4*(s+NP),4)}, v42 offset:{(s+NP)*64}'); seq.append(('b',s+NP))
            if s == 12:
                e('s_barrier\nds_read_b128 v[100:103], v45\nds_read_b128 v[104:107], v45 offset:16'); seq += [('s',0),('s',1)]
        e('s_waitcnt lgkmcnt(0)')
        e(f'''
        v_add_f32 v100, v100, v101
        v_add_f32 v102, v102, v103
        v_add_f32 v104, v104, v105
        v_add_f32 v106, v106, v107
        v_add_f32 v100, v100, v102
        v_add_f32 v104, v104, v106
        v_mul_f32 v100, 0x3acccccd, v100
        v_mul_f32 v104, 0x3acccccd, v104
        v_fma_f32 v104, -v100, v100, v104
        v_max_f32 v104, 0, v104
        v_add_f32 v104, 0x3727c5ac, v104
        v_rsq_f32 v104, v104
        ''')
        for r in range(4): e(f'v_fma_f32 v{96+r}, -v100, v{56+r}, v{96+r}')
        for r in range(4): e(f'v_fma_f32 v{96+r}, v{96+r}, v104, v{52+r}')
        for r in range(4): e(f'v_max_f32 v{96+r}, 0, v{96+r}')
        for r in range(4): e(f'v_mul_f32 v{96+r}, v{96+r}, v{96+r}')
        e('v_cvt_pk_bf16_f32 v108, v96, v97\nv_cvt_pk_bf16_f32 v109, v98, v99')
        for P in range(5):
            e(f'v_cndmask_b32 v{110+2*P}, 0, v108, s[{68+2*P}:{69+2*P}]\nv_cndmask_b32 v{111+2*P}, 0, v109, s[{68+2*P}:{69+2*P}]')
        for P in range(5):
            for hb in range(2):
                e(f'v_mfma_f32_16x16x16_bf16 {v(120+4*hb,4)}, {a(80+P*4+2*hb,2)}, {v(110+2*P,2)}, ' + ('0' if P == 0 else v(120+4*hb,4)))
        for i in range(4): e(f'v_cvt_pk_bf16_f32 v{64+i}, v{120+2*i}, v{121+2*i}')
        for i in range(4): e(f'v_min_u32 v{64+i}, -2, v{64+i}')
        e(f'buffer_store_dwordx4 v[64:67], v40, {srd(rWS)}, 0 offen sc1')
        self.stamp(10)
        e('s_branch L_END')

    def role_FIN(self):
        e = self.e
        RED = 0
        sK,s0,s1 = 63,64,65
        e('L_FIN:')
        e(f'''
        s_and_b32 s{s0}, s{sR}, 3
        s_cmp_ge_u32 s{s0}, 2
        s_cbranch_scc1 L_END
        s_sub_u32 s{sK}, s{sX8}, 3
        s_lshl_b32 s{sK}, s{sK}, 1
        s_add_u32 s{sK}, s{sK}, s{s0}
        s_lshl_b32 s{s0}, s{sK}, 7
        ''')
        self.mk_srd(rA, pX, s0, 1280)
        self.mk_srd(rB, pB2, s0, 1280)
        self.mk_srd(rC, pOUT, s0, 1280)
        e(f'''
        v_and_b32 v5, 7, v1
        v_lshlrev_b32 v5, 4, v5
        v_lshl_add_u32 v6, v2, 3, v5
        v_mov_b32 v9, {OOB}
        s_cmp_eq_u32 s{sW}, 0
        s_cselect_b32 s{s1}, 32, 0
        v_cmp_gt_u32 vcc, s{s1}, v0
        v_cndmask_b32 v6, v9, v6, vcc
        v_cmp_gt_u32 vcc, 8, v1
        v_cndmask_b32 v6, v9, v6, vcc
        buffer_load_dwordx2 v[16:17], v6, {srd(rA)}, 0 offen
        buffer_load_dwordx2 v[18:19], v6, {srd(rB)}, 0 offen
        v_lshrrev_b32 v12, 3, v0
        v_mul_u32_u24 v13, 1280, v12
        v_add_u32 v14, v13, v5
        v_cmp_gt_u32 vcc, 3, v12
        v_cndmask_b32 v15, v9, v14, vcc
        s_add_u32 s66, s{s0}, {H3B}
        s_mul_i32 s{s1}, s{sW}, {27*1280}
        s_add_u32 s67, s{s0}, s{s1}
        s_add_u32 s67, s67, {H4}
        s_add_u32 s68, s67, 10240
        s_add_u32 s69, s67, 20480
        s_add_u32 s70, s67, 30720
        ''')
        self.h_consts(24, None, 22)
        e(f's_cmp_eq_u32 s{sW}, 0\ns_cselect_b32 s{s1}, -1, 0')
        for r in range(4): e(f'v_and_b32 v{28+r}, s{s1}, v{24+r}')
        e(f'''
        v_lshlrev_b32 v20, 5, v1
        v_lshl_add_u32 v20, v2, 4, v20
        s_lshl_b32 s{s1}, s{sW}, 8
        v_add_u32 v20, s{s1}, v20
        v_mov_b32 v21, 1024
        v_cmp_gt_u32 vcc, 32, v0
        v_cndmask_b32 v20, v21, v20, vcc
        v_cmp_gt_u32 vcc, 8, v1
        v_cndmask_b32 v20, v21, v20, vcc
        v_cmp_gt_u32 vcc, 8, v0
        v_cndmask_b32 v21, v9, v3, vcc
        s_waitcnt vmcnt(0)
        ''')
        for i in range(2):
            e(f'v_lshlrev_b32 v22, 16, v{16+i}\nv_lshlrev_b32 v23, 16, v{18+i}\nv_add_f32 v{32+2*i}, v22, v23')
            e(f'v_and_b32 v22, 0xffff0000, v{16+i}\nv_and_b32 v23, 0xffff0000, v{18+i}\nv_add_f32 v{33+2*i}, v22, v23')
        self.stamp(8)
        e('L_R_P1:')
        e(f'buffer_load_dwordx4 v[40:43], v14, {srd(rWS)}, s66 offen sc1\ns_waitcnt vmcnt(0)')
        self.maxchain(22, range(40,44))
        e('v_cmp_eq_u32 vcc, -1, v22')
        self.retry('L_R_P1', sleep=2)
        e('v_mfma_f32_16x16x32_bf16 v[32:35], v[28:31], v[40:43], v[32:35]')
        e('L_R_P2:')
        for i in range(4): e(f'buffer_load_dwordx4 {v(44+4*i,4)}, v{14 if i<3 else 15}, {srd(rWS)}, s{67+i} offen sc1')
        e('s_waitcnt vmcnt(0)')
        self.maxchain(22, range(44,60))
        e('v_cmp_eq_u32 vcc, -1, v22')
        self.retry('L_R_P2')
        self.stamp(9)
        for i in range(4): e(f'v_mfma_f32_16x16x32_bf16 v[32:35], v[24:27], {v(44+4*i,4)}, v[32:35]')
        for r in range(4): e(f'v_add_f32_dpp v{32+r}, v{32+r}, v{32+r} row_ror:8 {DPP}')
        e(f'ds_write_b128 v20, v[32:35] offset:{RED}\ns_waitcnt lgkmcnt(0)\ns_barrier')
        e(f's_cmp_lg_u32 s{sW}, 0\ns_cbranch_scc1 L_END')
        self.red_final(RED, 64, False)
        e(f'buffer_store_dwordx4 v[64:67], v21, {srd(rC)}, 0 offen')
        e(f's_cmp_lg_u32 s{sK}, 0\ns_cbranch_scc1 L_END2')
        e(f'v_mov_b32 v68, s{sT0}\nv_cmp_eq_u32 vcc, 0, v0\nv_cndmask_b32 v69, v9, v0, vcc\nbuffer_store_dword v68, v69, {srd(rWS)}, 0 offen offset:{EPOCH} sc1')
        e('L_END2:')
        self.stamp(10)
        e('s_branch L_END')

    def role_A(self):
        e = self.e
        XN=0; QV=5120; CL=6144; RED=7680; DUM=8704; WQ=9216; WUK=50176; WO=82944; WUV=9216
        sAi,sHd,sJ,s0,s1,s2_,sHJ = 60,61,62,63,64,65,66
        e('L_A:')
        e(f'''
        s_sub_u32 s{sAi}, s{sR}, 16
        s_lshr_b32 s{sHd}, s{sAi}, 2
        s_lshl_b32 s{s0}, s{sX8}, 2
        s_add_u32 s{sHd}, s{sHd}, s{s0}
        s_and_b32 s{sJ}, s{sAi}, 3
        s_lshl_b32 s{sHJ}, s{sHd}, 2
        s_add_u32 s{sHJ}, s{sHJ}, s{sJ}
        v_mov_b32 v9, {OOB}
        ''')
        e(f'''
        s_cmp_lg_u32 s{sW}, 0
        s_cbranch_scc1 L_A_NORESET
        s_lshl_b32 s{s0}, s{sHJ}, 8
        s_add_u32 s{s0}, s{s0}, {QL}
        v_add_u32 v10, s{s0}, v3
        v_lshrrev_b32 v11, 2, v1
        v_lshlrev_b32 v11, 7, v11
        v_and_b32 v12, 3, v1
        v_lshl_add_u32 v11, v12, 4, v11
        s_lshl_b32 s{s0}, s{sHJ}, 9
        s_add_u32 s{s0}, s{s0}, {HC}
        v_add_u32 v11, s{s0}, v11
        v_cmp_eq_u32 vcc, 1, v2
        v_cndmask_b32 v10, v10, v11, vcc
        s_mul_i32 s{s0}, s{sX8}, 1280
        s_lshl_b32 s{s1}, s{sAi}, 7
        s_add_u32 s{s0}, s{s0}, s{s1}
        s_add_u32 s{s0}, s{s0}, {H3B-512}
        v_add_u32 v11, s{s0}, v3
        v_cmp_lt_u32 vcc, 31, v0
        v_cndmask_b32 v10, v10, v11, vcc
        s_cmp_lt_u32 s{sAi}, 10
        s_cselect_b32 s{s0}, 40, 32
        v_cmp_gt_u32 vcc, s{s0}, v0
        v_cndmask_b32 v10, v9, v10, vcc
        v_mov_b32 v16, -1
        v_mov_b32 v17, -1
        v_mov_b32 v18, -1
        v_mov_b32 v19, -1
        buffer_store_dwordx4 v[16:19], v10, {srd(rWS)}, 0 offen sc1
        L_A_NORESET:
        ''')
        self.mk_srd(rC, pX, None, 1280)
        e('v_lshlrev_b32 v4, 2, v0')
        for k in range(5): e(f'buffer_load_dword v{20+k}, v4, {srd(rC)}, 0 offen offset:{256*k}')
        e(f's_mul_i32 s{s0}, s{sJ}, {160*8192}\ns_lshl_b32 s{s1}, s{sHd}, 8\ns_add_u32 s{s0}, s{s0}, s{s1}')
        self.mk_srd(rA, pWQ, s0, 5242880)
        e(f's_lshl_b32 s{s0}, s{sJ}, 20\ns_add_u32 s{s0}, s{s0}, s{s1}')
        self.mk_srd(rB, pWUK, s0, 4194304)
        e(f'''
        v_lshlrev_b32 v5, 4, v1
        v_lshlrev_b32 v6, 5, v2
        v_xor_b32 v5, v5, v6
        v_lshl_add_u32 v6, v2, 13, v5
        v_xor_b32 v7, 0x80, v6
        s_lshr_b32 s{s0}, s{sW}, 1
        s_lshl_b32 s67, s{s0}, 7
        v_xor_b32 v8, s67, v6
        s_lshl_b32 s{s0}, s{sW}, 15
        s_lshl_b32 s{s1}, s{sW}, 10
        ''')
        for k in range(10):
            e(f's_add_u32 m0, s{s1}, {WQ+k*4096}')
            e(f'buffer_load_dwordx4 v8, {srd(rA)}, s{s0} offen nt lds')
            if k < 9: e(f's_add_u32 s{s0}, s{s0}, {4*32768}')
        NEARLY = self.o.get('wuk_early', 0)
        def wuk_dma(k):
            e(f's_add_u32 m0, s69, {WUK+k*1024}')
            e(f'buffer_load_dwordx4 v{6 if ((k>>1)&1)==0 else 7}, {srd(rB)}, s68 offen nt lds')
            if k < 7: e(f's_add_u32 s68, s68, 32768')
        e(f's_lshl_b32 s68, s{sW}, 18\ns_lshl_b32 s69, s{sW}, 13')
        for k in range(NEARLY): wuk_dma(k)
        e(f's_waitcnt vmcnt({10+NEARLY}) lgkmcnt(0)')
        self.stamp(1)
        self.tags()
        e(f'''
        s_cmp_lg_u32 s{sW}, 0
        s_cbranch_scc1 L_A_NORDY
        s_lshl_b32 s{s0}, s{sHJ}, 7
        s_add_u32 s{s0}, s{s0}, {RDY}
        v_mov_b32 v16, s{sT0}
        v_mov_b32 v17, s{sT1}
        v_cmp_eq_u32 vcc, 0, v0
        v_cndmask_b32 v10, v9, v0, vcc
        buffer_store_dwordx2 v[16:17], v10, {srd(rWS)}, s{s0} offen sc1
        L_A_NORDY:
        ''')
        for k in range(5): e(f'v_lshlrev_b32 v{26+2*k}, 16, v{20+k}\nv_and_b32 v{27+2*k}, 0xffff0000, v{20+k}')
        e('v_add_f32 v36, v26, v27')
        for k in range(28,36): e(f'v_add_f32 v36, v36, v{k}')
        self.allred('v_add_f32', 36, 37)
        e('v_mul_f32 v36, 0x3acccccd, v36')
        for k in range(26,36): e(f'v_sub_f32 v{k}, v{k}, v36')
        e('v_mul_f32 v36, v26, v26')
        for k in range(27,36): e(f'v_fmac_f32 v36, v{k}, v{k}')
        self.allred('v_add_f32', 36, 37)
        e('v_mul_f32 v36, 0x3acccccd, v36\nv_add_f32 v36, 0x3727c5ac, v36\nv_rsq_f32 v36, v36')
        for k in range(26,36): e(f'v_mul_f32 v{k}, v{k}, v36')
        e(f's_mul_i32 s{s0}, s{sW}, 1280\nv_add_u32 v10, s{s0}, v4')
        for k in range(5): e(f'v_cvt_pk_bf16_f32 v{20+k}, v{26+2*k}, v{27+2*k}\nds_write_b32 v10, v{20+k} offset:{XN+256*k}')
        e(f's_mul_i32 s{s1}, s{sJ}, 320\ns_add_u32 s{s0}, s{s0}, s{s1}\nv_lshlrev_b32 v11, 4, v2\nv_add_u32 v10, s{s0}, v11\ns_waitcnt lgkmcnt(0)')
        vXB = 40
        for s in range(5): e(f'ds_read_b128 {v(vXB+4*s,4)}, v10 offset:{XN+s*64}')
        for k in range(NEARLY, 8): wuk_dma(k)
        e(f'''
        v_lshrrev_b32 v12, 2, v1
        v_lshl_add_u32 v13, v2, 3, v12
        v_lshlrev_b32 v13, 8, v13
        v_and_b32 v14, 3, v1
        v_lshl_add_u32 v13, v14, 3, v13
        v_and_b32 v14, 1, v2
        v_lshl_or_b32 v12, v14, 2, v12
        s_lshl_b32 s{s0}, s{sW}, 1
        v_xor_b32 v12, s{s0}, v12
        v_lshl_add_u32 v60, v12, 5, v13
        v_xor_b32 v12, 1, v12
        v_lshl_add_u32 v61, v12, 5, v13
        ''')
        e(f'''
        v_lshrrev_b32 v12, 1, v1
        v_lshlrev_b32 v12, 3, v12
        v_lshl_add_u32 v12, v2, 1, v12
        v_and_b32 v13, 1, v1
        v_add_u32 v12, v12, v13
        v_lshlrev_b32 v12, 4, v12
        s_lshl_b32 s{s0}, s{sHJ}, 10
        s_lshl_b32 s{s1}, s{sW}, 8
        s_add_u32 s{s0}, s{s0}, s{s1}
        s_add_u32 s{s0}, s{s0}, {QP}
        v_add_u32 v12, s{s0}, v12
        v_cmp_gt_u32 vcc, 4, v1
        v_cndmask_b32 v62, v9, v12, vcc
        v_cmp_eq_u32 s[70:71], 1, v13
        v_and_b32 v13, 2, v1
        v_cmp_eq_u32 s[72:73], 2, v13
        v_mov_b32 v18, s{sT0}
        v_mov_b32 v19, s{sT1}
        ''')
        e(f's_waitcnt vmcnt({8-NEARLY if NEARLY else 8})' if NEARLY == 0 else f's_waitcnt vmcnt(8)')
        e('s_barrier')
        self.stamp(2)
        vW = 64
        for s in range(5):
            for T in range(2):
                for q in range(2): e(f'ds_read_b64_tr_b16 {v(vW+(s*2+T)*4+2*q,2)}, v{60+T} offset:{WQ+s*8192+q*1024}')
            if s == 2: e('s_waitcnt lgkmcnt(8)')
        for s in range(5):
            e(f's_waitcnt lgkmcnt({min(15,(4-s)*4)})')
            for T in range(2):
                e(f'v_mfma_f32_16x16x32_bf16 {v(104+4*T,4)}, {v(vW+(s*2+T)*4,4)}, {v(vXB+4*s,4)}, ' + ('0' if s==0 else v(104+4*T,4)))
        for r in range(4): e(f'v_cndmask_b32 v{104+r}, v{104+r}, v{108+r}, s[72:73]')
        e('v_cndmask_b32 v16, v104, v106, s[70:71]\nv_cndmask_b32 v17, v105, v107, s[70:71]')
        e(f'buffer_store_dwordx4 v[16:19], v62, {srd(rWS)}, 0 offen sc1')
        self.stamp(3)
        e(f's_lshl_b32 s{s2_}, s{sHd}, 12\ns_add_u32 s{s2_}, s{s2_}, {QP}')
        def h0loads():
            for i in range(4): e(f'buffer_load_dwordx4 {v(64+4*i,4)}, v3, {srd(rWS)}, s{s2_} offen offset:{i*1024} sc1')
        h0loads()
        e(f'''
        v_lshrrev_b32 v12, 2, v1
        v_and_b32 v13, 3, v1
        v_lshl_add_u32 v12, v12, 3, v13
        v_lshlrev_b32 v12, 8, v12
        s_lshl_b32 s{s0}, s{sW}, 13
        s_add_u32 s{s0}, s{s0}, {WUK}
        v_add_u32 v12, s{s0}, v12
        v_and_b32 v13, 7, v1
        v_lshlrev_b32 v13, 5, v13
        ''')
        for s in range(4):
            e(f'v_add_u32 v14, {s*64}, v11\nv_xor_b32 v14, v14, v13\nv_add_u32 v{20+s}, v14, v12')
        e(f'''
        s_lshl_b32 s{s0}, s{sW}, 8
        s_add_u32 s{s0}, s{s0}, {QV}
        v_add_u32 v24, s{s0}, v4
        v_add_u32 v25, s{s0}, v11
        s_lshl_b32 s{s0}, s{sHJ}, 8
        s_lshl_b32 s{s1}, s{sW}, 6
        s_add_u32 s{s0}, s{s0}, s{s1}
        s_add_u32 s{s0}, s{s0}, {QL}
        v_add_u32 v12, s{s0}, v11
        v_cmp_eq_u32 vcc, 0, v1
        v_cndmask_b32 v26, v9, v12, vcc
        s_waitcnt vmcnt(5)
        ''')
        vU = 112
        for s in range(4):
            for T in range(2): e(f'ds_read_b128 {v(vU+(s*2+T)*4,4)}, v{20+s} offset:{T*1024}')
        e('L_A_H0:')
        e('s_waitcnt vmcnt(0)')
        for i in range(4): e(f'v_xor_b32 v{66+4*i}, s{sT0}, v{66+4*i}\nv_xor_b32 v{67+4*i}, s{sT1}, v{67+4*i}')
        e('v_or3_b32 v12, v66, v67, v70\nv_or3_b32 v12, v12, v71, v74\nv_or3_b32 v12, v12, v75, v78\nv_or_b32 v12, v12, v79')
        e('v_cmp_ne_u32 vcc, 0, v12\ns_cbranch_vccz L_A_H0OK')
        e(f's_sub_u32 s{sTO}, s{sTO}, 1\ns_cmp_eq_u32 s{sTO}, 0\ns_cbranch_scc1 L_END')
        h0loads()
        e('s_branch L_A_H0')
        e('L_A_H0OK:')
        self.stamp(4)
        e('v_add_f32 v64, v64, v68\nv_add_f32 v65, v65, v69\nv_add_f32 v72, v72, v76\nv_add_f32 v73, v73, v77\nv_add_f32 v64, v64, v72\nv_add_f32 v65, v65, v73')
        e('v_cvt_pk_bf16_f32 v64, v64, v65\nds_write_b32 v24, v64\ns_waitcnt lgkmcnt(0)')
        for s in range(4): e(f'ds_read_b128 {v(80+4*s,4)}, v25 offset:{s*64}')
        for s in range(4):
            e(f's_waitcnt lgkmcnt({3-s})')
            for T in range(2):
                e(f'v_mfma_f32_16x16x32_bf16 {v(104+4*T,4)}, {v(vU+(s*2+T)*4,4)}, {v(80+4*s,4)}, ' + ('0' if s==0 else v(104+4*T,4)))
        for i in range(4): e(f'v_cvt_pk_bf16_f32 v{64+i}, v{104+2*i}, v{105+2*i}')
        for i in range(4): e(f'v_min_u32 v{64+i}, -2, v{64+i}')
        e(f'buffer_store_dwordx4 v[64:67], v26, {srd(rWS)}, 0 offen sc1')
        self.stamp(5)
        e(f's_lshl_b32 s{s0}, s{sJ}, 20\ns_lshl_b32 s{s1}, s{sHd}, 8\ns_add_u32 s{s0}, s{s0}, s{s1}')
        self.mk_srd(rA, pWUV, s0, 4194304)
        e(f'''
        v_lshl_add_u32 v6, v2, 17, v5
        v_xor_b32 v6, s67, v6
        s_and_b32 s{s0}, s{sW}, 1
        s_lshl_b32 s{s0}, s{s0}, 6
        s_lshr_b32 s{s1}, s{sW}, 1
        s_add_u32 s{s0}, s{s0}, s{s1}
        s_lshl_b32 s{s0}, s{s0}, 13
        s_lshl_b32 s{s1}, s{sW}, 10
        ''')
        a2thr = self.o.get('a2_depth', None)
        cnt = 0
        for k in range(8):
            e(f's_add_u32 m0, s{s1}, {WUV+k*4096}')
            e(f'buffer_load_dwordx4 v6, {srd(rA)}, s{s0} offen nt lds')
            if k < 7: e(f's_add_u32 s{s0}, s{s0}, 16384')
            if a2thr is not None and k < self.o.get('a2_nthr', 8): e(f's_waitcnt vmcnt({a2thr-1})')
        e(f's_cmp_ge_u32 s{sAi}, 10\ns_cbranch_scc1 L_A_NOWO')
        e(f's_lshl_b32 s{s0}, s{sX8}, 2\ns_add_u32 s{s0}, s{s0}, s{sW}\ns_mul_i32 s{s0}, s{s0}, 163840\ns_lshl_b32 s{s1}, s{sAi}, 7\ns_add_u32 s{s0}, s{s0}, s{s1}')
        self.mk_srd(rB, pWO, s0, 5242880)
        e(f'''
        v_lshrrev_b32 v12, 3, v0
        v_and_b32 v13, 3, v12
        v_lshrrev_b32 v14, 2, v12
        v_lshl_add_u32 v13, v14, 4, v13
        v_mul_u32_u24 v13, 1280, v13
        v_and_b32 v14, 7, v0
        v_lshlrev_b32 v14, 4, v14
        v_and_b32 v12, 1, v2
        v_lshlrev_b32 v12, 5, v12
        v_xor_b32 v14, v14, v12
        v_add_u32 v7, v13, v14
        v_xor_b32 v14, 64, v14
        v_add_u32 v8, v13, v14
        s_lshl_b32 s{s1}, s{sW}, 14
        ''')
        for i in range(16):
            e(f's_add_u32 m0, s{s1}, {WO+i*1024}\ns_mov_b32 s{s0}, {(32*(i>>2)+4*(i&3))*1280}')
            e(f'buffer_load_dwordx4 v{7+(i&1)}, {srd(rB)}, s{s0} offen nt lds')
        e('L_A_NOWO:')
        vMk = 28
        self.ident_masks(vMk, 0xffff, 0xffff0000, 0, 12)
        e(f'''
        v_lshrrev_b32 v12, 3, v1
        v_xor_b32 v12, s{sW}, v12
        v_lshlrev_b32 v12, 5, v12
        v_lshl_add_u32 v12, v2, 3, v12
        v_and_b32 v13, 7, v1
        v_add_u32 v12, v12, v13
        v_lshlrev_b32 v20, 11, v12
        v_xor_b32 v21, 0x20000, v20
        s_lshl_b32 s68, s{sJ}, 9
        s_lshl_b32 s{s0}, s{sHd}, 4
        s_add_u32 s68, s68, s{s0}
        s_add_u32 s68, s68, {REC}
        v_lshlrev_b32 v22, 11, v2
        v_lshl_add_u32 v22, v1, 4, v22
        s_lshl_b32 s69, s{sHJ}, 15
        s_lshl_b32 s{s0}, s{sW}, 13
        s_add_u32 s69, s69, s{s0}
        s_add_u32 s69, s69, {PART}
        ''')
        e(f'''
        v_lshlrev_b32 v12, 4, v1
        v_lshl_add_u32 v12, v2, 3, v12
        s_mul_i32 s{s0}, s{sW}, 320
        s_add_u32 s{s0}, s{s0}, {CL}
        v_add_u32 v12, s{s0}, v12
        v_mov_b32 v13, {DUM}
        v_cmp_gt_u32 vcc, 32, v0
        v_cndmask_b32 v23, v13, v12, vcc
        v_and_b32 v12, 3, v1
        v_mul_u32_u24 v12, 320, v12
        v_add_u32 v12, v12, v11
        v_add_u32 v24, {CL}, v12
        s_lshl_b32 s{s0}, s{sHJ}, 9
        s_lshl_b32 s{s1}, s{sW}, 7
        s_add_u32 s{s0}, s{s0}, s{s1}
        s_add_u32 s{s0}, s{s0}, {HC}
        v_add_u32 v12, s{s0}, v11
        v_cmp_eq_u32 vcc, 0, v1
        v_cndmask_b32 v25, v9, v12, vcc
        s_waitcnt vmcnt(0)
        s_barrier
        ''')
        for s in range(4):
            for T in range(2):
                for q in range(2): e(f'ds_read_b64_tr_b16 {a((s*2+T)*4+2*q,2)}, v{60+T} offset:{WUV+s*8192+q*1024}')
            if s == 2: e('s_waitcnt lgkmcnt(4)')
        e(f's_cmp_ge_u32 s{sAi}, 10\ns_cbranch_scc1 L_A_NOWO2')
        e(f'''
        v_lshrrev_b32 v12, 2, v1
        v_lshl_add_u32 v12, v2, 3, v12
        v_lshlrev_b32 v12, 7, v12
        v_and_b32 v13, 3, v1
        v_lshl_add_u32 v12, v13, 3, v12
        s_lshl_b32 s{s1}, s{sW}, 14
        s_add_u32 s{s1}, s{s1}, {WO}
        v_add_u32 v12, s{s1}, v12
        v_lshrrev_b32 v13, 3, v1
        v_and_b32 v14, 1, v2
        v_lshl_or_b32 v13, v14, 1, v13
        ''')
        for T in range(4): e(f'v_xor_b32 v14, {T}, v13\nv_lshl_add_u32 v{32+T}, v14, 5, v12')
        for s in range(4):
            e('s_waitcnt lgkmcnt(4)')
            for T in range(4):
                for q in range(2): e(f'ds_read_b64_tr_b16 {a(32+(s*4+T)*4+2*q,2)}, v{32+T} offset:{s*4096+q*512}')
        e('L_A_NOWO2:')
        e('s_waitcnt lgkmcnt(0)')
        self.stamp(6)
        e('L_A_REC:')
        e(f'buffer_load_dwordx4 v[64:67], v20, {srd(rWS)}, s68 offen sc1\nbuffer_load_dwordx4 v[68:71], v21, {srd(rWS)}, s68 offen sc1\ns_waitcnt vmcnt(0)')
        e(f'v_xor_b32 v66, s{sT0}, v66\nv_xor_b32 v67, s{sT1}, v67\nv_xor_b32 v70, s{sT0}, v70\nv_xor_b32 v71, s{sT1}, v71')
        e('v_or3_b32 v12, v66, v67, v70\nv_or_b32 v12, v12, v71\nv_cmp_ne_u32 vcc, 0, v12')
        self.retry('L_A_REC')
        self.stamp(7)
        vD = 128; vAF = 160
        for i in range(8): e(f'buffer_load_dwordx4 {v(vD+4*i,4)}, v22, {srd(rWS)}, s69 offen offset:{i*256} sc1')
        e('v_max_f32 v72, v64, v68')
        self.allred('v_max_f32', 72, 73)
        e('v_sub_f32 v64, v64, v72\nv_sub_f32 v68, v68, v72\nv_exp_f32 v64, v64\nv_exp_f32 v68, v68')
        e('v_mul_f32 v72, v64, v65\nv_fmac_f32 v72, v68, v69')
        self.allred('v_add_f32', 72, 73)
        e('v_rcp_f32 v72, v72\nv_mul_f32 v64, v64, v72\nv_cvt_pk_bf16_f32 v64, v64, v64')
        for i in range(8):
            for r in range(4): e(f'v_and_b32_dpp v{vAF+4*i+r}, v64, v{vMk+r} row_newbcast:{i} {DPP}')
        for i in range(8):
            e(f's_waitcnt vmcnt({7-i})')
            e(f'v_mfma_f32_16x16x32_bf16 v[76:79], {v(vAF+4*i,4)}, {v(vD+4*i,4)}, ' + ('0' if i==0 else 'v[76:79]'))
        self.stamp(8)
        e('v_cvt_pk_bf16_f32 v74, v76, v77\nv_cvt_pk_bf16_f32 v75, v78, v79\nds_write_b64 v23, v[74:75]\ns_waitcnt lgkmcnt(0)\ns_barrier')
        for s in range(4): e(f'ds_read_b128 {v(80+4*s,4)}, v24 offset:{s*64}')
        for s in range(4):
            e(f's_waitcnt lgkmcnt({3-s})')
            for T in range(2):
                e(f'v_mfma_f32_16x16x32_bf16 {v(104+4*T,4)}, {a((s*2+T)*4,4)}, {v(80+4*s,4)}, ' + ('0' if s==0 else v(104+4*T,4)))
        for p in ['quad_perm:[1,0,3,2]','quad_perm:[2,3,0,1]']:
            for r in range(8): e(f'v_add_f32_dpp v{104+r}, v{104+r}, v{104+r} {p} {DPP}')
        for i in range(4): e(f'v_cvt_pk_bf16_f32 v{64+i}, v{104+2*i}, v{105+2*i}')
        for i in range(4): e(f'v_min_u32 v{64+i}, -2, v{64+i}')
        e(f'buffer_store_dwordx4 v[64:67], v25, {srd(rWS)}, 0 offen sc1')
        self.stamp(9)
        e(f's_cmp_ge_u32 s{sAi}, 10\ns_cbranch_scc1 L_END')
        e(f'''
        v_and_b32 v12, 3, v1
        v_lshl_add_u32 v20, v12, 9, v11
        s_lshl_b32 s{s0}, s{sX8}, 2
        s_add_u32 s{s0}, s{s0}, s{sW}
        s_lshl_b32 s68, s{s0}, 11
        s_add_u32 s68, s68, {HC}
        ''')
        e('L_A_HC:')
        for s in range(4): e(f'buffer_load_dwordx4 {v(80+4*s,4)}, v20, {srd(rWS)}, s68 offen offset:{s*128} sc1')
        e(f'''
        v_lshrrev_b32 v12, 2, v1
        v_cmp_eq_u32 s[70:71], 1, v12
        v_cmp_eq_u32 s[72:73], 2, v12
        v_cmp_eq_u32 s[74:75], 3, v12
        v_lshl_add_u32 v21, v12, 6, v11
        s_lshl_b32 s{s0}, s{sW}, 8
        v_add_u32 v21, s{s0}, v21
        v_cmp_gt_u32 vcc, 8, v0
        v_cndmask_b32 v22, v9, v3, vcc
        s_mul_i32 s69, s{sX8}, 1280
        s_lshl_b32 s{s1}, s{sAi}, 7
        s_add_u32 s69, s69, s{s1}
        s_add_u32 s69, s69, {H3B}
        s_waitcnt vmcnt(0)
        ''')
        self.maxchain(12, range(80,96))
        e('v_cmp_eq_u32 vcc, -1, v12')
        self.retry('L_A_HC', sleep=0)
        for s in range(4):
            for T in range(4):
                e(f'v_mfma_f32_16x16x32_bf16 {v(104+4*T,4)}, {a(32+(s*4+T)*4,4)}, {v(80+4*s,4)}, ' + ('0' if s==0 else v(104+4*T,4)))
        for T in range(1,4):
            for r in range(4): e(f'v_cndmask_b32 v{104+r}, v{104+r}, v{104+4*T+r}, s[{68+2*T}:{69+2*T}]')
        for p in ['quad_perm:[1,0,3,2]','quad_perm:[2,3,0,1]']:
            for r in range(4): e(f'v_add_f32_dpp v{104+r}, v{104+r}, v{104+r} {p} {DPP}')
        e(f'ds_write_b128 v21, v[104:107] offset:{RED}\ns_waitcnt lgkmcnt(0)\ns_barrier')
        e(f's_cmp_lg_u32 s{sW}, 0\ns_cbranch_scc1 L_END')
        self.red_final(RED, 128, True)
        e(f'buffer_store_dwordx4 v[128:131], v22, {srd(rWS)}, s69 offen sc1')
        self.stamp(10)

    def epilogue(self):
        e = self.e
        e('L_END:')
        if self.stamps:
            e(f's_waitcnt lgkmcnt(0)\ns_lshl_b32 s60, s2, 2\ns_add_u32 s60, s60, s{sW}\ns_lshl_b32 s60, s60, 6\ns_add_u32 s60, s60, {STAMP}\nv_mov_b32 v4, 0')
            for k in range(11): e(f'v_mov_b32 v5, s{sSTAMP+2*k}\nbuffer_store_dword v5, v4, {srd(rWS)}, s60 offen offset:{4*k}')
            e(f'v_mov_b32 v5, s{sTO}\nbuffer_store_dword v5, v4, {srd(rWS)}, s60 offen offset:44')
        e('L_EXIT:')

    def build(self):
        if self.stamps:
            for k in range(1,11): self.e(f's_mov_b32 s{sSTAMP+2*k}, 0')
        self.prologue(); self.role_T(); self.role_FIN(); self.role_A(); self.epilogue()
        hdr = open('header.txt').read()
        return f'''{hdr}; @launch grid=(256,1,1) block=(256,1,1) lds=163840
.amdgcn_target "amdgcn-amd-amdhsa--gfx950"
.text
.globl {KN}
.p2align 8
.type {KN},@function
{KN}:
{self.e.text()}
s_endpgm
.section .rodata,"a"
.p2align 6
.amdhsa_kernel {KN}
  .amdhsa_next_free_vgpr 512
  .amdhsa_next_free_sgpr 102
  .amdhsa_accum_offset 256
  .amdhsa_group_segment_fixed_size 0
  .amdhsa_kernarg_size 112
  .amdhsa_user_sgpr_count 2
  .amdhsa_user_sgpr_kernarg_segment_ptr 1
  .amdhsa_system_sgpr_workgroup_id_x 1
.end_amdhsa_kernel
'''

if __name__ == '__main__':
    import json
    out = sys.argv[1]; stamps = len(sys.argv) > 2 and sys.argv[2] == '1'
    opt = json.loads(sys.argv[3]) if len(sys.argv) > 3 else {}
    open(out,'w').write(G(stamps, opt).build())
```

```python
import sys
sys.path.insert(0,'work')
from dsl import Asm
NAME = 'sequential_preLN__compressed_kv_cla__dense_activation_squared_relu__decode'
KN = NAME + '_kernel'

EPOCH=0; RDY=0x1000; QP=0x8000; QL=0x28000; REC=0x30000; HC=0x70000; H3B=0x80000; H4=0x84000; PART=0x100000; STAMP=0x600000
WSSZ=0x700000
OOB=0x7ffffff0
pX,pCKV,pWQ,pWUK,pWUV,pWO,pBX,pW1,pB1,pW2,pB2,pOUT,pDBG,pWS = [8+2*i for i in range(14)]
sW,sX8,sR,sE,sT0,sT1,sTO,sC = 36,37,38,39,40,41,42,43
rWS=44; rA=48; rB=52; rC=56
sA0=60
sSTAMP=80
def srd(r): return f's[{r}:{r+3}]'
def v(n,c=1): return f'v{n}' if c==1 else f'v[{n}:{n+c-1}]'
def a(n,c=1): return f'a{n}' if c==1 else f'a[{n}:{n+c-1}]'
DPP='row_mask:0xf bank_mask:0xf'

class G:
    def __init__(self, stamps=False, opt=None):
        self.e = Asm(); self.stamps = stamps; self.o = opt or {}
    def stamp(self, k):
        if self.stamps: self.e(f's_memrealtime s[{sSTAMP+2*k}:{sSTAMP+2*k+1}]')
    def mk_srd(self, r, ptr, off_sgpr, size):
        e = self.e
        if off_sgpr is None:
            e(f's_mov_b32 s{r}, s{ptr}\ns_and_b32 s{r+1}, s{ptr+1}, 0xffff\ns_mov_b32 s{r+2}, {size}')
        else:
            e(f's_add_u32 s{r}, s{ptr}, s{off_sgpr}\ns_addc_u32 s{r+1}, s{ptr+1}, 0\ns_and_b32 s{r+1}, s{r+1}, 0xffff\ns_sub_u32 s{r+2}, {size}, s{off_sgpr}')
        e(f's_mov_b32 s{r+3}, 0x20000')
    def allred(self, op, x, t, steps16=4):
        e = self.e
        pats = ['quad_perm:[1,0,3,2]','quad_perm:[2,3,0,1]','row_half_mirror','row_mirror'][:steps16]
        for p in pats: e(f'{op}_dpp v{x}, v{x}, v{x} {p} {DPP}')
        e(f'v_mov_b32 v{t}, v{x}\nv_permlane16_swap_b32 v{x}, v{t}\n{op} v{x}, v{x}, v{t}')
        e(f'v_mov_b32 v{t}, v{x}\nv_permlane32_swap_b32 v{x}, v{t}\n{op} v{x}, v{x}, v{t}')
    def retry(self, label, cond='vccnz', sleep=1):
        e = self.e
        ok = e.newlabel('Lok')
        inv = {'vccnz':'vccz','vccz':'vccnz'}[cond]
        e(f's_cbranch_{inv} {ok}')
        e(f's_sub_u32 s{sTO}, s{sTO}, 1\ns_cmp_eq_u32 s{sTO}, 0\ns_cbranch_scc1 L_END')
        if sleep: e(f's_sleep {sleep}')
        e(f's_branch {label}')
        e(f'{ok}:')
    def maxchain(self, dst, regs):
        e = self.e
        regs = list(regs)
        e(f'v_max3_u32 v{dst}, v{regs[0]}, v{regs[1]}, v{regs[2]}'); regs = regs[3:]
        while len(regs) >= 2:
            e(f'v_max3_u32 v{dst}, v{dst}, v{regs[0]}, v{regs[1]}'); regs = regs[2:]
        if regs: e(f'v_max_u32 v{dst}, v{dst}, v{regs[0]}')
    def ident_masks(self, dst, val_lo, val_hi, rowhalf, t):
        e = self.e
        e(f'v_and_b32 v{t}, 1, v1\nv_cmp_eq_u32 vcc, 1, v{t}\nv_mov_b32 v{t}, {val_lo}\nv_mov_b32 v{t+1}, {val_hi}\nv_cndmask_b32 v{t}, v{t}, v{t+1}, vcc')
        e(f'v_lshrrev_b32 v{t+1}, 1, v1')
        for r in range(4):
            e(f'v_cmp_eq_u32 vcc, {r+4*rowhalf}, v{t+1}\nv_cndmask_b32 v{dst+r}, 0, v{t}, vcc')
    def red_final(self, RED, t, clamp):
        e = self.e
        e(f'v_and_b32 v{t+36}, 7, v0\nv_lshlrev_b32 v{t+36}, 5, v{t+36}')
        for w in range(4):
            e(f'ds_read_b128 {v(t+4+8*w,4)}, v{t+36} offset:{RED+256*w}')
            e(f'ds_read_b128 {v(t+8+8*w,4)}, v{t+36} offset:{RED+256*w+16}')
        e('s_waitcnt lgkmcnt(4)')
        for i in range(8): e(f'v_add_f32 v{t+4+i}, v{t+4+i}, v{t+12+i}')
        e('s_waitcnt lgkmcnt(0)')
        for i in range(8): e(f'v_add_f32 v{t+20+i}, v{t+20+i}, v{t+28+i}')
        for i in range(8): e(f'v_add_f32 v{t+4+i}, v{t+4+i}, v{t+20+i}')
        for i in range(4): e(f'v_cvt_pk_bf16_f32 v{t+i}, v{t+4+2*i}, v{t+5+2*i}')
        if clamp:
            for i in range(4): e(f'v_min_u32 v{t+i}, -2, v{t+i}')

    def prologue(self):
        e = self.e
        self.stamp(0)
        e(f'''
        s_cmp_ge_u32 s2, 256
        s_cbranch_scc1 L_EXIT
        s_load_dwordx16 s[8:23], s[0:1], 0
        s_load_dwordx8 s[24:31], s[0:1], 64
        s_load_dwordx4 s[32:35], s[0:1], 96
        v_lshrrev_b32 v1, 6, v0
        v_readfirstlane_b32 s{sW}, v1
        v_and_b32 v0, 63, v0
        v_and_b32 v1, 15, v0
        v_lshrrev_b32 v2, 4, v0
        v_lshlrev_b32 v3, 4, v0
        s_and_b32 s{sX8}, s2, 7
        s_lshr_b32 s{sR}, s2, 3
        s_mov_b32 s{sTO}, 400000
        s_waitcnt lgkmcnt(0)
        s_load_dword s{sE}, s[{pWS}:{pWS+1}], {EPOCH}
        ''')
        self.mk_srd(rWS, pWS, None, WSSZ)
        e(f's_cmp_ge_u32 s{sR}, 16\ns_cbranch_scc1 L_A')
    def tags(self):
        self.e(f's_add_u32 s{sT0}, s{sE}, 0x9e3779b9\ns_xor_b32 s{sT1}, s{sT0}, 0x5bd1e995')

    def role_T(self):
        e = self.e
        QB = 131072; MX = QB; LX = QB+512; PB = QB+1024
        sT, sF, sG, s0, s1, s2_ = 60, 61, 62, 63, 64, 65
        sH = 66
        vX = 4
        e(f's_lshl_b32 s{sT}, s{sX8}, 4\ns_add_u32 s{sT}, s{sT}, s{sR}')
        e(f's_lshl_b32 s{s0}, s{sT}, 17')
        self.mk_srd(rA, pCKV, s0, 16777216)
        e(f's_lshr_b32 s{sG}, s{sR}, 2\ns_lshl_b32 s{sG}, s{sG}, 3\ns_add_u32 s{sG}, s{sG}, s{sX8}')
        e(f's_and_b32 s{sF}, s{sR}, 3\ns_lshl_b32 s{s0}, s{sG}, 2\ns_add_u32 s{sF}, s{sF}, s{s0}')
        for k in range(8): e(f'v_xor_b32 v{vX+k}, {k<<5}, v3')
        e(f'''
        s_cmp_ge_u32 s{sG}, 27
        s_cbranch_scc1 L_T_NORESET
        s_cmp_ge_u32 s{sW}, 2
        s_cbranch_scc1 L_T_NORESET
        s_lshl_b32 s{s0}, s{sW}, 10
        v_add_u32 v12, s{s0}, v3
        v_mov_b32 v13, {OOB}
        v_cmp_gt_u32 vcc, 1280, v12
        v_cndmask_b32 v12, v13, v12, vcc
        s_mul_i32 s{s0}, s{sF}, 1280
        s_add_u32 s{s0}, s{s0}, {H4}
        v_mov_b32 v16, -1
        v_mov_b32 v17, -1
        v_mov_b32 v18, -1
        v_mov_b32 v19, -1
        buffer_store_dwordx4 v[16:19], v12, {srd(rWS)}, s{s0} offen sc1
        L_T_NORESET:
        ''')
        e(f's_lshl_b32 s{s1}, s{sW}, 12\ns_add_u32 s{s1}, s{s1}, {RDY}\nv_and_b32 v14, 31, v0\nv_lshlrev_b32 v14, 7, v14')
        e(f's_lshl_b32 s{s0}, s{sW}, 15')
        thr = self.o.get('t_throttle', [])
        for k in range(32):
            if k % 4 == 0: e(f's_add_u32 m0, s{s0}, {k*1024}')
            e(f'buffer_load_dwordx4 v{vX+(k&7)}, {srd(rA)}, m0 offen offset:{(k&3)*1024} nt lds')
            for (kk, n) in thr:
                if kk == k: e(f's_waitcnt vmcnt({n})')
            if k == 23: e(f'buffer_load_dwordx2 v[20:21], v14, {srd(rWS)}, s{s1} offen sc1')
        self.stamp(1)
        vKa, vQa, vVa = 24, 28, 32
        e(f'v_and_b32 v12, 7, v1\nv_lshlrev_b32 v12, 5, v12')
        e(f'v_lshlrev_b32 v13, 10, v1')
        for s3 in range(4):
            e(f'v_lshl_add_u32 v15, v2, 4, {s3*64}' if s3*64 <= 64 else f'v_lshlrev_b32 v15, 4, v2\nv_add_u32 v15, {s3*64}, v15')
            e(f'v_xor_b32 v15, v15, v12\nv_add_u32 v15, v15, v13')
            e(f'v_add_u32 v{vKa+s3}, s{s0}, v15\nv_add_u32 v{vQa+s3}, {QB}, v15')
        e(f'''
        v_lshrrev_b32 v12, 2, v1
        v_lshl_add_u32 v13, v2, 2, v12
        v_and_b32 v15, 7, v13
        v_lshlrev_b32 v13, 10, v13
        v_and_b32 v12, 3, v1
        v_lshl_add_u32 v13, v12, 3, v13
        s_lshl_b32 s{s2_}, s{sW}, 8
        v_add_u32 v13, s{s2_}, v13
        ''')
        for T in range(8): e(f'v_xor_b32 v12, {T}, v15\nv_lshl_add_u32 v{vVa+T}, v12, 5, v13')
        e(f's_lshl_b32 s{s2_}, s{sW}, 13\ns_add_u32 s{s2_}, s{s2_}, {QB}')
        for i in range(8): e(f'v_add_u32 v{vX+i}, s{s2_}, v{vX+i}')
        vPS, vRS, vMW, vMR, vPW = 40, 41, 42, 43, 44
        e(f'''
        v_lshlrev_b32 v12, 19, v2
        v_lshl_add_u32 v12, v1, 4, v12
        s_lshl_b32 s{s2_}, s{sW}, 15
        s_lshl_b32 s74, s{sT}, 8
        s_add_u32 s{s2_}, s{s2_}, s74
        v_add_u32 v{vPS}, s{s2_}, v12
        ''')
        for i in range(8): e(f's_mov_b32 s{sH+i}, {PART + (16*(i>>2) + (i&3))*131072}')
        e(f'''
        s_lshl_b32 s{s2_}, s{sT}, 11
        s_lshl_b32 s74, s{sW}, 9
        s_add_u32 s{s2_}, s{s2_}, s74
        s_add_u32 s{s2_}, s{s2_}, {REC}
        v_add_u32 v12, s{s2_}, v3
        v_mov_b32 v13, {OOB}
        v_cmp_gt_u32 vcc, 32, v0
        v_cndmask_b32 v{vRS}, v13, v12, vcc
        ''')
        e(f'''
        v_lshrrev_b32 v12, 1, v2
        v_lshl_add_u32 v12, v12, 4, v1
        v_lshlrev_b32 v12, 4, v12
        s_lshl_b32 s{s2_}, s{sW}, 2
        s_add_u32 s{s2_}, s{s2_}, {MX}
        v_add_u32 v{vMW}, s{s2_}, v12
        v_lshlrev_b32 v12, 4, v1
        v_add_u32 v{vMR}, {MX}, v12
        s_lshl_b32 s{s2_}, s{sW}, 11
        s_add_u32 s{s2_}, s{s2_}, {PB}
        v_add_u32 v{vPW}, s{s2_}, v3
        v_add_u32 v45, {PB}, v3
        s_mov_b32 s{sC}, 0x3e0293ee
        s_waitcnt lgkmcnt(0)
        ''')
        self.tags()
        e('s_waitcnt vmcnt(8)')
        e('L_T_RDY:')
        e(f'v_xor_b32 v20, s{sT0}, v20\nv_xor_b32 v21, s{sT1}, v21\nv_or_b32 v20, v20, v21\nv_cmp_ne_u32 vcc, 0, v20\ns_cbranch_vccz L_T_RDYOK')
        e(f's_sub_u32 s{sTO}, s{sTO}, 1\ns_cmp_eq_u32 s{sTO}, 0\ns_cbranch_scc1 L_END')
        e(f'buffer_load_dwordx2 v[20:21], v14, {srd(rWS)}, s{s1} offen sc1\ns_waitcnt vmcnt(0)\ns_branch L_T_RDY')
        e('L_T_RDYOK:')
        vQ = 128
        e(f's_lshl_b32 s{s1}, s{sW}, 13\ns_add_u32 s{s1}, s{s1}, {QL}\ns_add_u32 s{s2_}, s{s1}, 4096')
        def qloads():
            for i in range(8): e(f'buffer_load_dwordx4 {v(vQ+4*i,4)}, v3, {srd(rWS)}, s{s1 if i<4 else s2_} offen offset:{(i&3)*1024} sc1')
        qloads()
        e('s_waitcnt vmcnt(8)')
        self.stamp(2)
        for s in range(16):
            for kt in range(2):
                e(f'ds_read_b128 {a((s*2+kt)*4,4)}, v{vKa+(s&3)} offset:{(s>>2)*256+kt*16384}')
        e('L_T_Q:')
        e('s_waitcnt vmcnt(0)')
        self.maxchain(12, range(vQ, vQ+32))
        e('v_cmp_eq_u32 vcc, -1, v12\ns_cbranch_vccz L_T_QOK')
        e(f's_sub_u32 s{sTO}, s{sTO}, 1\ns_cmp_eq_u32 s{sTO}, 0\ns_cbranch_scc1 L_END\ns_sleep 1')
        qloads()
        e('s_branch L_T_Q')
        e('L_T_QOK:')
        for i in range(8): e(f'ds_write_b128 v{vX+i}, {v(vQ+4*i,4)} offset:{i*1024}')
        e('s_waitcnt lgkmcnt(0)\ns_barrier')
        self.stamp(3)
        vS = 48
        def qread(s, ht): e(f'ds_read_b128 {v(vQ+(s*2+ht)*4,4)}, v{vQa+(s&3)} offset:{(s>>2)*256+ht*16384}')
        vlist = [(ks,T,q) for ks in range(4) for T in range(8) for q in range(2)]
        def vread(i):
            ks,T,q = vlist[i]
            if i == 32:
                for TT in range(8): e(f'v_add_u32 v{vVa+TT}, 0x10000, v{vVa+TT}')
            e(f'ds_read_b64_tr_b16 {a(128+(ks*8+T)*4+2*q,2)}, v{vVa+T} offset:{(ks&1)*32768+q*16384}')
        D = 3
        for s in range(D): qread(s,0); qread(s,1)
        seq = [('q',s,h) for s in range(D) for h in range(2)]
        vi = 0
        for s in range(16):
            last = max(i for i,x in enumerate(seq) if x[0]=='q' and x[1]==s)
            e(f's_waitcnt lgkmcnt({len(seq)-1-last})')
            if s == 15: e('s_barrier')
            grp = []
            if s+D < 16: grp += [('q',s+D,0),('q',s+D,1)]
            if s < 15: grp += [('v',vi),('v',vi+1)]; vi += 2
            for m,(kt,ht) in enumerate([(0,0),(0,1),(1,0),(1,1)]):
                c = '0' if s == 0 else v(vS+(kt*2+ht)*4,4)
                e(f'v_mfma_f32_16x16x32_bf16 {v(vS+(kt*2+ht)*4,4)}, {a((s*2+kt)*4,4)}, {v(vQ+(s*2+ht)*4,4)}, {c}')
                if m < len(grp):
                    x = grp[m]; seq.append(x)
                    if x[0]=='q': qread(x[1],x[2])
                    else: vread(x[1])
        self.stamp(4)
        for ht in range(2):
            r0 = vS+ht*4; r1 = vS+8+ht*4
            e(f'v_max3_f32 v{64+ht}, v{r0}, v{r0+1}, v{r0+2}\nv_max3_f32 v{64+ht}, v{64+ht}, v{r0+3}, v{r1}')
        for ht in range(2):
            r1 = vS+8+ht*4
            e(f'v_max3_f32 v{64+ht}, v{64+ht}, v{r1+1}, v{r1+2}\nv_max_f32 v{64+ht}, v{64+ht}, v{r1+3}')
        e('v_permlane32_swap_b32 v64, v65\nv_max_f32 v64, v64, v65\nv_mov_b32 v65, v64\nv_permlane16_swap_b32 v64, v65\nv_max_f32 v64, v64, v65')
        e(f'ds_write_b32 v{vMW}, v64\ns_waitcnt lgkmcnt(0)\ns_barrier')
        e(f'ds_read_b128 v[68:71], v{vMR}\nds_read_b128 v[72:75], v{vMR} offset:256')
        n0 = 10
        for i in range(n0): vread(vi); vi += 1
        e(f's_waitcnt lgkmcnt({n0})')
        e('v_max3_f32 v66, v68, v69, v70\nv_max3_f32 v67, v72, v73, v74\nv_max_f32 v66, v66, v71\nv_max_f32 v67, v67, v75')
        e(f'v_mul_f32 v66, s{sC}, v66\nv_mul_f32 v67, s{sC}, v67')
        vP = 76
        for ht in range(2):
            for kt in range(2):
                b = vS+(kt*2+ht)*4
                for r in range(4): e(f'v_fma_f32 v{b+r}, v{b+r}, s{sC}, -v{66+ht}')
                for r in range(4):
                    e(f'v_exp_f32 v{b+r}, v{b+r}')
                    if vi < 64: vread(vi); vi += 1
                    if vi < 64 and r % 2 == 0: vread(vi); vi += 1
                e(f'v_cvt_pk_bf16_f32 v{vP+ht*4+kt*2}, v{b}, v{b+1}\nv_cvt_pk_bf16_f32 v{vP+ht*4+kt*2+1}, v{b+2}, v{b+3}')
            e(f'ds_write_b128 v{vPW}, {v(vP+ht*4,4)} offset:{ht*1024}')
        while vi < 64: vread(vi); vi += 1
        for ht in range(2):
            r0 = vS+ht*4; r1 = vS+8+ht*4
            e(f'v_add_f32 v{r0}, v{r0}, v{r0+1}\nv_add_f32 v{r0+2}, v{r0+2}, v{r0+3}\nv_add_f32 v{r1}, v{r1}, v{r1+1}\nv_add_f32 v{r1+2}, v{r1+2}, v{r1+3}')
            e(f'v_add_f32 v{r0}, v{r0}, v{r0+2}\nv_add_f32 v{r1}, v{r1}, v{r1+2}\nv_add_f32 v{64+ht}, v{r0}, v{r1}')
        e('v_permlane32_swap_b32 v64, v65\nv_add_f32 v64, v64, v65\nv_mov_b32 v65, v64\nv_permlane16_swap_b32 v64, v65\nv_add_f32 v64, v64, v65')
        e(f'ds_write_b32 v{vMW}, v64 offset:512\ns_waitcnt lgkmcnt(0)\ns_barrier')
        self.stamp(5)
        vPF = 88; vAcc = 128; vO = 192
        order = [(ks,0) for ks in range(4)] + [(ks,1) for ks in range(4)]
        for ks,ht in order: e(f'ds_read_b128 {v(vPF+(ks*2+ht)*4,4)}, v45 offset:{(ks*2+ht)*1024}')
        e(f'v_and_b32 v12, 31, v0\nv_lshlrev_b32 v12, 4, v12\nv_add_u32 v12, {LX}, v12\nds_read_b128 v[68:71], v12')
        def outops(ht):
            ops = []
            for r in range(4):
                o = vO + (ht*4+r)*4
                for k in range(4):
                    ops.append(f'v_cvt_pk_bf16_f32 v{o+k}, v{vAcc+(ht*8+2*k)*4+r}, v{vAcc+(ht*8+2*k+1)*4+r}')
                ops.append(f'buffer_store_dwordx4 {v(o,4)}, v{vPS}, {srd(rWS)}, s{sH+ht*4+r} offen sc1')
            return ops
        pend = []
        for n,(ks,ht) in enumerate(order):
            e(f's_waitcnt lgkmcnt({8-n})')
            for T in range(8):
                c = '0' if ks == 0 else v(vAcc+(ht*8+T)*4,4)
                e(f'v_mfma_f32_16x16x32_bf16 {v(vAcc+(ht*8+T)*4,4)}, {v(vPF+(ks*2+ht)*4,4)}, {a(128+(ks*8+T)*4,4)}, {c}')
                if ht == 1 and ks >= 1 and pend: e(pend.pop(0))
            if n == 3: pend = outops(0)
        for x in pend: e(x)
        e('s_waitcnt lgkmcnt(0)')
        e('v_add_f32 v68, v68, v69\nv_add_f32 v70, v70, v71\nv_add_f32 v85, v68, v70')
        e(f'v_cmp_gt_u32 vcc, 16, v0\nv_cndmask_b32 v84, v67, v66, vcc\nv_mov_b32 v86, s{sT0}\nv_mov_b32 v87, s{sT1}')
        for x in outops(1): e(x)
        self.stamp(6)
        e('s_waitcnt vmcnt(0)')
        e(f'buffer_store_dwordx4 v[84:87], v{vRS}, {srd(rWS)}, 0 offen sc1')
        self.stamp(7)
        e('s_barrier')
        e(f's_cmp_ge_u32 s{sG}, 27\ns_cbranch_scc1 L_FIN')
        self.role_F(sF)

    def h_consts(self, vAlo, vAhi, t):
        self.ident_masks(vAlo, 0x3f80, 0x3f800000, 0, t)
        if vAhi is not None: self.ident_masks(vAhi, 0x3f80, 0x3f800000, 1, t)

    def role_F(self, sF):
        e = self.e
        W1 = 0; W2 = 20480; HB = 40960; DUM = HB+1280; ST = HB+1536
        s0,s1,s2_,sB = 63,64,65,66
        e(f's_lshl_b32 s{s0}, s{sF}, 5')
        self.mk_srd(rA, pW1, s0, 2211840)
        e(f's_mul_i32 s{s0}, s{sF}, 20480')
        self.mk_srd(rB, pW2, s0, 2211840)
        e(f'''
        v_lshrrev_b32 v4, 3, v0
        v_and_b32 v4, 3, v4
        v_lshlrev_b32 v4, 3, v4
        v_lshrrev_b32 v5, 5, v0
        v_lshl_add_u32 v4, v5, 2, v4
        v_bfe_u32 v5, v0, 1, 2
        v_add_u32 v4, v4, v5
        v_mul_u32_u24 v4, 3456, v4
        v_and_b32 v5, 1, v0
        v_lshl_add_u32 v4, v5, 4, v4
        s_mul_i32 s{s0}, s{sW}, 110592
        s_lshl_b32 s{s1}, s{sW}, 10
        ''')
        for k in range(5):
            e(f's_add_u32 m0, s{s1}, {W1+k*4096}')
            e(f'buffer_load_dwordx4 v4, {srd(rA)}, s{s0} offen nt lds')
            if k < 4: e(f's_add_u32 s{s0}, s{s0}, {4*110592}')
        for k in range(5):
            e(f's_add_u32 m0, s{s1}, {W2+k*4096}\ns_add_u32 s{s0}, s{s1}, {k*4096}')
            e(f'buffer_load_dwordx4 v3, {srd(rB)}, s{s0} offen nt lds')
        self.mk_srd(rC, pX, None, 1280)
        e(f'''
        s_mul_i32 s{sB}, s{sW}, 3
        s_cmp_eq_u32 s{sW}, 3
        s_cselect_b32 s{sB}, 8, s{sB}
        s_lshl_b32 s{sB}, s{sB}, 7
        v_and_b32 v5, 7, v1
        v_lshlrev_b32 v5, 4, v5
        v_and_b32 v6, 1, v2
        v_lshl_add_u32 v6, v6, 3, v5
        v_lshrrev_b32 v7, 1, v2
        v_lshl_add_u32 v7, v7, 7, v6
        v_add_u32 v7, s{sB}, v7
        v_add_u32 v8, 256, v6
        v_add_u32 v8, s{sB}, v8
        v_mov_b32 v9, {OOB}
        s_cmp_lt_u32 s{sW}, 2
        s_cselect_b32 s{s0}, 32, 0
        v_cmp_gt_u32 vcc, s{s0}, v0
        v_mov_b32 v10, {DUM-HB}
        v_cndmask_b32 v11, v10, v8, vcc
        v_cndmask_b32 v8, v9, v8, vcc
        v_cmp_gt_u32 vcc, 8, v1
        v_cndmask_b32 v12, v9, v7, vcc
        v_cndmask_b32 v13, v9, v8, vcc
        buffer_load_dwordx2 v[16:17], v12, {srd(rC)}, 0 offen
        buffer_load_dwordx2 v[18:19], v13, {srd(rC)}, 0 offen
        ''')
        e(f's_lshl_b32 s{s0}, s{sF}, 5')
        self.mk_srd(rC, pB1, s0, 3456)
        e(f'v_lshlrev_b32 v12, 3, v2\nbuffer_load_dwordx2 v[20:21], v12, {srd(rC)}, 0 offen')
        e(f'''
        v_lshrrev_b32 v12, 3, v0
        v_mul_u32_u24 v12, 1280, v12
        v_add_u32 v12, v12, v5
        v_add_u32 v14, s{sB}, v12
        s_cmp_lt_u32 s{sW}, 2
        s_cselect_b32 s{s0}, 0, {OOB}
        v_max_u32 v15, s{s0}, v14
        s_mov_b32 s{s2_}, {H3B}
        ''')
        vAlo, vAhi, vC0, vC1 = 24, 28, 32, 36
        self.h_consts(vAlo, vAhi, 22)
        e(f'''
        v_lshl_add_u32 v22, v1, 2, v2
        v_lshlrev_b32 v22, 4, v22
        s_mul_i32 s{s0}, s{sW}, 320
        s_mul_i32 s{s1}, s{sF}, 1280
        s_add_u32 s{s0}, s{s0}, s{s1}
        s_add_u32 s{s0}, s{s0}, {H4}
        v_add_u32 v22, s{s0}, v22
        v_cmp_gt_u32 vcc, 5, v1
        v_cndmask_b32 v40, v9, v22, vcc
        v_lshlrev_b32 v41, 3, v0
        v_lshlrev_b32 v42, 4, v2
        v_add_u32 v42, {HB}, v42
        ''')
        e(f'''
        v_lshrrev_b32 v22, 2, v0
        v_mul_u32_u24 v22, 1280, v22
        v_and_b32 v23, 3, v1
        v_lshl_add_u32 v22, v23, 4, v22
        s_mul_i32 s{s0}, s{sW}, 320
        s_add_u32 s{s0}, s{s0}, {W2}
        v_add_u32 v43, s{s0}, v22
        s_lshl_b32 s{s0}, s{sW}, 2
        v_lshrrev_b32 v22, 5, v0
        v_lshlrev_b32 v22, 4, v22
        v_add_u32 v22, s{s0}, v22
        v_add_u32 v44, {ST}, v22
        v_mov_b32 v45, {ST}
        v_mov_b32 v48, 0x3f803f80
        v_mov_b32 v49, 0x3f803f80
        v_mov_b32 v50, 0x3f803f80
        v_mov_b32 v51, 0x3f803f80
        s_waitcnt vmcnt(0)
        s_barrier
        ''')
        for i,(dst,src) in enumerate([(vC0,16),(vC1,18),(52,20)]):
            e(f'v_lshlrev_b32 v{dst}, 16, v{src}\nv_and_b32 v{dst+1}, 0xffff0000, v{src}\nv_lshlrev_b32 v{dst+2}, 16, v{src+1}\nv_and_b32 v{dst+3}, 0xffff0000, v{src+1}')
        for s in range(20):
            for q in range(2): e(f'ds_read_b64_tr_b16 {a(s*4+2*q,2)}, v41 offset:{W1+s*1024+q*512}')
            if s % 6 == 5: e('s_waitcnt lgkmcnt(2)')
        e('s_waitcnt lgkmcnt(2)')
        for P in range(5):
            for hb in range(2): e(f'ds_read_b64_tr_b16 {a(80+P*4+2*hb,2)}, v43 offset:{P*64+hb*8}')
        e('s_waitcnt lgkmcnt(0)')
        for s in range(20):
            e(f'v_mfma_f32_16x16x32_bf16 v[56:59], {a(s*4,4)}, v[48:51], ' + ('0' if s == 0 else 'v[56:59]'))
        for P in range(5):
            e(f's_mov_b32 s{68+2*P}, {0x00010001<<P}\ns_mov_b32 s{69+2*P}, {0x00010001<<P}')
        self.stamp(8)
        vH = 64
        e('L_F_POLL:')
        e(f'buffer_load_dwordx4 {v(vH,4)}, v14, {srd(rWS)}, s{s2_} offen sc1')
        e(f'buffer_load_dwordx4 {v(vH+4,4)}, v14, {srd(rWS)}, s{s2_} offen offset:128 sc1')
        e(f'buffer_load_dwordx4 {v(vH+8,4)}, v15, {srd(rWS)}, s{s2_} offen offset:256 sc1')
        e('s_waitcnt vmcnt(0)')
        self.maxchain(22, range(vH, vH+12))
        e('v_cmp_eq_u32 vcc, -1, v22')
        self.retry('L_F_POLL')
        self.stamp(9)
        e(f'v_mfma_f32_16x16x32_bf16 v[76:79], {v(vAlo,4)}, {v(vH,4)}, {v(vC0,4)}')
        e(f'v_mfma_f32_16x16x32_bf16 v[80:83], {v(vAlo,4)}, {v(vH+8,4)}, {v(vC1,4)}')
        e(f'v_mfma_f32_16x16x32_bf16 v[76:79], {v(vAhi,4)}, {v(vH+4,4)}, v[76:79]')
        for r in range(4): e(f'v_add_f32_dpp v{80+r}, v{80+r}, v{80+r} row_ror:8 {DPP}')
        for r in range(4): e(f'v_add_f32_dpp v{76+r}, v{76+r}, v{76+r} row_ror:8 {DPP}')
        e('v_cvt_pk_bf16_f32 v86, v80, v81\nv_cvt_pk_bf16_f32 v87, v82, v83\nv_cvt_pk_bf16_f32 v84, v76, v77\nv_cvt_pk_bf16_f32 v85, v78, v79')
        e(f'ds_write_b64 v11, v[86:87] offset:{HB}\nds_write_b64 v7, v[84:85] offset:{HB}')
        e('s_waitcnt lgkmcnt(0)\ns_barrier')
        vB = 128
        NP = 12
        for s in range(NP): e(f'ds_read_b128 {v(vB+4*s,4)}, v42 offset:{s*64}')
        e('v_add_f32 v88, v76, v77\nv_add_f32 v89, v78, v79\nv_add_f32 v90, v80, v81\nv_add_f32 v91, v82, v83')
        e('v_mul_f32 v92, v76, v76\nv_mul_f32 v93, v80, v80')
        e('v_add_f32 v88, v88, v89\nv_add_f32 v90, v90, v91')
        for r in range(1,4): e(f'v_fmac_f32 v92, v{76+r}, v{76+r}\nv_fmac_f32 v93, v{80+r}, v{80+r}')
        e('v_add_f32 v88, v88, v90\nv_add_f32 v92, v92, v93')
        e('v_permlane32_swap_b32 v88, v92\nv_add_f32 v88, v88, v92\nv_mov_b32 v92, v88\nv_permlane16_swap_b32 v88, v92\nv_add_f32 v88, v88, v92')
        for p in ['quad_perm:[1,0,3,2]','quad_perm:[2,3,0,1]','row_half_mirror']: e(f'v_add_f32_dpp v88, v88, v88 {p} {DPP}')
        e('ds_write_b32 v44, v88')
        seq = [('b',s) for s in range(NP)] + [('w',0)]
        for s in range(20):
            last = seq.index(('b',s))
            e(f's_waitcnt lgkmcnt({len(seq)-1-last})')
            e(f'v_mfma_f32_16x16x32_bf16 v[96:99], {a(s*4,4)}, {v(vB+4*s,4)}, ' + ('0' if s == 0 else 'v[96:99]'))
            if s+NP < 20:
                e(f'ds_read_b128 {v(vB+4*(s+NP),4)}, v42 offset:{(s+NP)*64}'); seq.append(('b',s+NP))
            if s == 12:
                e('s_barrier\nds_read_b128 v[100:103], v45\nds_read_b128 v[104:107], v45 offset:16'); seq += [('s',0),('s',1)]
        e('s_waitcnt lgkmcnt(0)')
        e(f'''
        v_add_f32 v100, v100, v101
        v_add_f32 v102, v102, v103
        v_add_f32 v104, v104, v105
        v_add_f32 v106, v106, v107
        v_add_f32 v100, v100, v102
        v_add_f32 v104, v104, v106
        v_mul_f32 v100, 0x3acccccd, v100
        v_mul_f32 v104, 0x3acccccd, v104
        v_fma_f32 v104, -v100, v100, v104
        v_max_f32 v104, 0, v104
        v_add_f32 v104, 0x3727c5ac, v104
        v_rsq_f32 v104, v104
        ''')
        for r in range(4): e(f'v_fma_f32 v{96+r}, -v100, v{56+r}, v{96+r}')
        for r in range(4): e(f'v_fma_f32 v{96+r}, v{96+r}, v104, v{52+r}')
        for r in range(4): e(f'v_max_f32 v{96+r}, 0, v{96+r}')
        for r in range(4): e(f'v_mul_f32 v{96+r}, v{96+r}, v{96+r}')
        e('v_cvt_pk_bf16_f32 v108, v96, v97\nv_cvt_pk_bf16_f32 v109, v98, v99')
        for P in range(5):
            e(f'v_cndmask_b32 v{110+2*P}, 0, v108, s[{68+2*P}:{69+2*P}]\nv_cndmask_b32 v{111+2*P}, 0, v109, s[{68+2*P}:{69+2*P}]')
        for P in range(5):
            for hb in range(2):
                e(f'v_mfma_f32_16x16x16_bf16 {v(120+4*hb,4)}, {a(80+P*4+2*hb,2)}, {v(110+2*P,2)}, ' + ('0' if P == 0 else v(120+4*hb,4)))
        for i in range(4): e(f'v_cvt_pk_bf16_f32 v{64+i}, v{120+2*i}, v{121+2*i}')
        for i in range(4): e(f'v_min_u32 v{64+i}, -2, v{64+i}')
        e(f'buffer_store_dwordx4 v[64:67], v40, {srd(rWS)}, 0 offen sc1')
        self.stamp(10)
        e('s_branch L_END')

    def role_FIN(self):
        e = self.e
        RED = 0
        sK,s0,s1 = 63,64,65
        e('L_FIN:')
        e(f'''
        s_and_b32 s{s0}, s{sR}, 3
        s_cmp_ge_u32 s{s0}, 2
        s_cbranch_scc1 L_END
        s_sub_u32 s{sK}, s{sX8}, 3
        s_lshl_b32 s{sK}, s{sK}, 1
        s_add_u32 s{sK}, s{sK}, s{s0}
        s_lshl_b32 s{s0}, s{sK}, 7
        ''')
        self.mk_srd(rA, pX, s0, 1280)
        self.mk_srd(rB, pB2, s0, 1280)
        self.mk_srd(rC, pOUT, s0, 1280)
        e(f'''
        v_and_b32 v5, 7, v1
        v_lshlrev_b32 v5, 4, v5
        v_lshl_add_u32 v6, v2, 3, v5
        v_mov_b32 v9, {OOB}
        s_cmp_eq_u32 s{sW}, 0
        s_cselect_b32 s{s1}, 32, 0
        v_cmp_gt_u32 vcc, s{s1}, v0
        v_cndmask_b32 v6, v9, v6, vcc
        v_cmp_gt_u32 vcc, 8, v1
        v_cndmask_b32 v6, v9, v6, vcc
        buffer_load_dwordx2 v[16:17], v6, {srd(rA)}, 0 offen
        buffer_load_dwordx2 v[18:19], v6, {srd(rB)}, 0 offen
        v_lshrrev_b32 v12, 3, v0
        v_mul_u32_u24 v13, 1280, v12
        v_add_u32 v14, v13, v5
        v_cmp_gt_u32 vcc, 3, v12
        v_cndmask_b32 v15, v9, v14, vcc
        s_add_u32 s66, s{s0}, {H3B}
        s_mul_i32 s{s1}, s{sW}, {27*1280}
        s_add_u32 s67, s{s0}, s{s1}
        s_add_u32 s67, s67, {H4}
        s_add_u32 s68, s67, 10240
        s_add_u32 s69, s67, 20480
        s_add_u32 s70, s67, 30720
        ''')
        self.h_consts(24, None, 22)
        e(f's_cmp_eq_u32 s{sW}, 0\ns_cselect_b32 s{s1}, -1, 0')
        for r in range(4): e(f'v_and_b32 v{28+r}, s{s1}, v{24+r}')
        e(f'''
        v_lshlrev_b32 v20, 5, v1
        v_lshl_add_u32 v20, v2, 4, v20
        s_lshl_b32 s{s1}, s{sW}, 8
        v_add_u32 v20, s{s1}, v20
        v_mov_b32 v21, 1024
        v_cmp_gt_u32 vcc, 32, v0
        v_cndmask_b32 v20, v21, v20, vcc
        v_cmp_gt_u32 vcc, 8, v1
        v_cndmask_b32 v20, v21, v20, vcc
        v_cmp_gt_u32 vcc, 8, v0
        v_cndmask_b32 v21, v9, v3, vcc
        s_waitcnt vmcnt(0)
        ''')
        for i in range(2):
            e(f'v_lshlrev_b32 v22, 16, v{16+i}\nv_lshlrev_b32 v23, 16, v{18+i}\nv_add_f32 v{32+2*i}, v22, v23')
            e(f'v_and_b32 v22, 0xffff0000, v{16+i}\nv_and_b32 v23, 0xffff0000, v{18+i}\nv_add_f32 v{33+2*i}, v22, v23')
        self.stamp(8)
        e('L_R_P1:')
        e(f'buffer_load_dwordx4 v[40:43], v14, {srd(rWS)}, s66 offen sc1\ns_waitcnt vmcnt(0)')
        self.maxchain(22, range(40,44))
        e('v_cmp_eq_u32 vcc, -1, v22')
        self.retry('L_R_P1', sleep=2)
        e('v_mfma_f32_16x16x32_bf16 v[32:35], v[28:31], v[40:43], v[32:35]')
        e('L_R_P2:')
        for i in range(4): e(f'buffer_load_dwordx4 {v(44+4*i,4)}, v{14 if i<3 else 15}, {srd(rWS)}, s{67+i} offen sc1')
        e('s_waitcnt vmcnt(0)')
        self.maxchain(22, range(44,60))
        e('v_cmp_eq_u32 vcc, -1, v22')
        self.retry('L_R_P2')
        self.stamp(9)
        for i in range(4): e(f'v_mfma_f32_16x16x32_bf16 v[32:35], v[24:27], {v(44+4*i,4)}, v[32:35]')
        for r in range(4): e(f'v_add_f32_dpp v{32+r}, v{32+r}, v{32+r} row_ror:8 {DPP}')
        e(f'ds_write_b128 v20, v[32:35] offset:{RED}\ns_waitcnt lgkmcnt(0)\ns_barrier')
        e(f's_cmp_lg_u32 s{sW}, 0\ns_cbranch_scc1 L_END')
        self.red_final(RED, 64, False)
        e(f'buffer_store_dwordx4 v[64:67], v21, {srd(rC)}, 0 offen')
        e(f's_cmp_lg_u32 s{sK}, 0\ns_cbranch_scc1 L_END2')
        e(f'v_mov_b32 v68, s{sT0}\nv_cmp_eq_u32 vcc, 0, v0\nv_cndmask_b32 v69, v9, v0, vcc\nbuffer_store_dword v68, v69, {srd(rWS)}, 0 offen offset:{EPOCH} sc1')
        if 'amp' in self.o:
            k = self.o['amp']
            self.stamp(10)
            e(f's_waitcnt lgkmcnt(0)\ns_sub_u32 s60, s{sSTAMP+2*k}, s{sSTAMP}\ns_lshl_b32 s60, s60, 2\ns_add_u32 s60, s60, s{sSTAMP+20}')
            e('L_AMP:\ns_memrealtime s[62:63]\ns_waitcnt lgkmcnt(0)\ns_sub_u32 s61, s62, s60\ns_cmp_lt_i32 s61, 0\ns_cbranch_scc1 L_AMP')
        e('L_END2:')
        self.stamp(10)
        e('s_branch L_END')

    def role_A(self):
        e = self.e
        XN=0; QV=5120; CL=6144; RED=7680; DUM=8704; WQ=9216; WUK=50176; WO=82944; WUV=9216
        sAi,sHd,sJ,s0,s1,s2_,sHJ = 60,61,62,63,64,65,66
        e('L_A:')
        e(f'''
        s_sub_u32 s{sAi}, s{sR}, 16
        s_lshr_b32 s{sHd}, s{sAi}, 2
        s_lshl_b32 s{s0}, s{sX8}, 2
        s_add_u32 s{sHd}, s{sHd}, s{s0}
        s_and_b32 s{sJ}, s{sAi}, 3
        s_lshl_b32 s{sHJ}, s{sHd}, 2
        s_add_u32 s{sHJ}, s{sHJ}, s{sJ}
        v_mov_b32 v9, {OOB}
        ''')
        e(f'''
        s_cmp_lg_u32 s{sW}, 0
        s_cbranch_scc1 L_A_NORESET
        s_lshl_b32 s{s0}, s{sHJ}, 8
        s_add_u32 s{s0}, s{s0}, {QL}
        v_add_u32 v10, s{s0}, v3
        v_lshrrev_b32 v11, 2, v1
        v_lshlrev_b32 v11, 7, v11
        v_and_b32 v12, 3, v1
        v_lshl_add_u32 v11, v12, 4, v11
        s_lshl_b32 s{s0}, s{sHJ}, 9
        s_add_u32 s{s0}, s{s0}, {HC}
        v_add_u32 v11, s{s0}, v11
        v_cmp_eq_u32 vcc, 1, v2
        v_cndmask_b32 v10, v10, v11, vcc
        s_mul_i32 s{s0}, s{sX8}, 1280
        s_lshl_b32 s{s1}, s{sAi}, 7
        s_add_u32 s{s0}, s{s0}, s{s1}
        s_add_u32 s{s0}, s{s0}, {H3B-512}
        v_add_u32 v11, s{s0}, v3
        v_cmp_lt_u32 vcc, 31, v0
        v_cndmask_b32 v10, v10, v11, vcc
        s_cmp_lt_u32 s{sAi}, 10
        s_cselect_b32 s{s0}, 40, 32
        v_cmp_gt_u32 vcc, s{s0}, v0
        v_cndmask_b32 v10, v9, v10, vcc
        v_mov_b32 v16, -1
        v_mov_b32 v17, -1
        v_mov_b32 v18, -1
        v_mov_b32 v19, -1
        buffer_store_dwordx4 v[16:19], v10, {srd(rWS)}, 0 offen sc1
        L_A_NORESET:
        ''')
        self.mk_srd(rC, pX, None, 1280)
        e('v_lshlrev_b32 v4, 2, v0')
        for k in range(5): e(f'buffer_load_dword v{20+k}, v4, {srd(rC)}, 0 offen offset:{256*k}')
        e(f's_mul_i32 s{s0}, s{sJ}, {160*8192}\ns_lshl_b32 s{s1}, s{sHd}, 8\ns_add_u32 s{s0}, s{s0}, s{s1}')
        self.mk_srd(rA, pWQ, s0, 5242880)
        e(f's_lshl_b32 s{s0}, s{sJ}, 20\ns_add_u32 s{s0}, s{s0}, s{s1}')
        self.mk_srd(rB, pWUK, s0, 4194304)
        e(f'''
        v_lshlrev_b32 v5, 4, v1
        v_lshlrev_b32 v6, 5, v2
        v_xor_b32 v5, v5, v6
        v_lshl_add_u32 v6, v2, 13, v5
        v_xor_b32 v7, 0x80, v6
        s_lshr_b32 s{s0}, s{sW}, 1
        s_lshl_b32 s67, s{s0}, 7
        v_xor_b32 v8, s67, v6
        s_lshl_b32 s{s0}, s{sW}, 15
        s_lshl_b32 s{s1}, s{sW}, 10
        ''')
        for k in range(10):
            e(f's_add_u32 m0, s{s1}, {WQ+k*4096}')
            e(f'buffer_load_dwordx4 v8, {srd(rA)}, s{s0} offen nt lds')
            if k < 9: e(f's_add_u32 s{s0}, s{s0}, {4*32768}')
        NEARLY = self.o.get('wuk_early', 0)
        def wuk_dma(k):
            e(f's_add_u32 m0, s69, {WUK+k*1024}')
            e(f'buffer_load_dwordx4 v{6 if ((k>>1)&1)==0 else 7}, {srd(rB)}, s68 offen nt lds')
            if k < 7: e(f's_add_u32 s68, s68, 32768')
        e(f's_lshl_b32 s68, s{sW}, 18\ns_lshl_b32 s69, s{sW}, 13')
        for k in range(NEARLY): wuk_dma(k)
        e(f's_waitcnt vmcnt({10+NEARLY}) lgkmcnt(0)')
        self.stamp(1)
        self.tags()
        e(f'''
        s_cmp_lg_u32 s{sW}, 0
        s_cbranch_scc1 L_A_NORDY
        s_lshl_b32 s{s0}, s{sHJ}, 7
        s_add_u32 s{s0}, s{s0}, {RDY}
        v_mov_b32 v16, s{sT0}
        v_mov_b32 v17, s{sT1}
        v_cmp_eq_u32 vcc, 0, v0
        v_cndmask_b32 v10, v9, v0, vcc
        buffer_store_dwordx2 v[16:17], v10, {srd(rWS)}, s{s0} offen sc1
        L_A_NORDY:
        ''')
        for k in range(5): e(f'v_lshlrev_b32 v{26+2*k}, 16, v{20+k}\nv_and_b32 v{27+2*k}, 0xffff0000, v{20+k}')
        e('v_add_f32 v36, v26, v27')
        for k in range(28,36): e(f'v_add_f32 v36, v36, v{k}')
        self.allred('v_add_f32', 36, 37)
        e('v_mul_f32 v36, 0x3acccccd, v36')
        for k in range(26,36): e(f'v_sub_f32 v{k}, v{k}, v36')
        e('v_mul_f32 v36, v26, v26')
        for k in range(27,36): e(f'v_fmac_f32 v36, v{k}, v{k}')
        self.allred('v_add_f32', 36, 37)
        e('v_mul_f32 v36, 0x3acccccd, v36\nv_add_f32 v36, 0x3727c5ac, v36\nv_rsq_f32 v36, v36')
        for k in range(26,36): e(f'v_mul_f32 v{k}, v{k}, v36')
        e(f's_mul_i32 s{s0}, s{sW}, 1280\nv_add_u32 v10, s{s0}, v4')
        for k in range(5): e(f'v_cvt_pk_bf16_f32 v{20+k}, v{26+2*k}, v{27+2*k}\nds_write_b32 v10, v{20+k} offset:{XN+256*k}')
        e(f's_mul_i32 s{s1}, s{sJ}, 320\ns_add_u32 s{s0}, s{s0}, s{s1}\nv_lshlrev_b32 v11, 4, v2\nv_add_u32 v10, s{s0}, v11\ns_waitcnt lgkmcnt(0)')
        vXB = 40
        for s in range(5): e(f'ds_read_b128 {v(vXB+4*s,4)}, v10 offset:{XN+s*64}')
        for k in range(NEARLY, 8): wuk_dma(k)
        e(f'''
        v_lshrrev_b32 v12, 2, v1
        v_lshl_add_u32 v13, v2, 3, v12
        v_lshlrev_b32 v13, 8, v13
        v_and_b32 v14, 3, v1
        v_lshl_add_u32 v13, v14, 3, v13
        v_and_b32 v14, 1, v2
        v_lshl_or_b32 v12, v14, 2, v12
        s_lshl_b32 s{s0}, s{sW}, 1
        v_xor_b32 v12, s{s0}, v12
        v_lshl_add_u32 v60, v12, 5, v13
        v_xor_b32 v12, 1, v12
        v_lshl_add_u32 v61, v12, 5, v13
        ''')
        e(f'''
        v_lshrrev_b32 v12, 1, v1
        v_lshlrev_b32 v12, 3, v12
        v_lshl_add_u32 v12, v2, 1, v12
        v_and_b32 v13, 1, v1
        v_add_u32 v12, v12, v13
        v_lshlrev_b32 v12, 4, v12
        s_lshl_b32 s{s0}, s{sHJ}, 10
        s_lshl_b32 s{s1}, s{sW}, 8
        s_add_u32 s{s0}, s{s0}, s{s1}
        s_add_u32 s{s0}, s{s0}, {QP}
        v_add_u32 v12, s{s0}, v12
        v_cmp_gt_u32 vcc, 4, v1
        v_cndmask_b32 v62, v9, v12, vcc
        v_cmp_eq_u32 s[70:71], 1, v13
        v_and_b32 v13, 2, v1
        v_cmp_eq_u32 s[72:73], 2, v13
        v_mov_b32 v18, s{sT0}
        v_mov_b32 v19, s{sT1}
        ''')
        e(f's_waitcnt vmcnt({8-NEARLY if NEARLY else 8})' if NEARLY == 0 else f's_waitcnt vmcnt(8)')
        e('s_barrier')
        self.stamp(2)
        vW = 64
        for s in range(5):
            for T in range(2):
                for q in range(2): e(f'ds_read_b64_tr_b16 {v(vW+(s*2+T)*4+2*q,2)}, v{60+T} offset:{WQ+s*8192+q*1024}')
            if s == 2: e('s_waitcnt lgkmcnt(8)')
        for s in range(5):
            e(f's_waitcnt lgkmcnt({min(15,(4-s)*4)})')
            for T in range(2):
                e(f'v_mfma_f32_16x16x32_bf16 {v(104+4*T,4)}, {v(vW+(s*2+T)*4,4)}, {v(vXB+4*s,4)}, ' + ('0' if s==0 else v(104+4*T,4)))
        for r in range(4): e(f'v_cndmask_b32 v{104+r}, v{104+r}, v{108+r}, s[72:73]')
        e('v_cndmask_b32 v16, v104, v106, s[70:71]\nv_cndmask_b32 v17, v105, v107, s[70:71]')
        e(f'buffer_store_dwordx4 v[16:19], v62, {srd(rWS)}, 0 offen sc1')
        self.stamp(3)
        e(f's_lshl_b32 s{s2_}, s{sHd}, 12\ns_add_u32 s{s2_}, s{s2_}, {QP}')
        def h0loads():
            for i in range(4): e(f'buffer_load_dwordx4 {v(64+4*i,4)}, v3, {srd(rWS)}, s{s2_} offen offset:{i*1024} sc1')
        h0loads()
        e(f'''
        v_lshrrev_b32 v12, 2, v1
        v_and_b32 v13, 3, v1
        v_lshl_add_u32 v12, v12, 3, v13
        v_lshlrev_b32 v12, 8, v12
        s_lshl_b32 s{s0}, s{sW}, 13
        s_add_u32 s{s0}, s{s0}, {WUK}
        v_add_u32 v12, s{s0}, v12
        v_and_b32 v13, 7, v1
        v_lshlrev_b32 v13, 5, v13
        ''')
        for s in range(4):
            e(f'v_add_u32 v14, {s*64}, v11\nv_xor_b32 v14, v14, v13\nv_add_u32 v{20+s}, v14, v12')
        e(f'''
        s_lshl_b32 s{s0}, s{sW}, 8
        s_add_u32 s{s0}, s{s0}, {QV}
        v_add_u32 v24, s{s0}, v4
        v_add_u32 v25, s{s0}, v11
        s_lshl_b32 s{s0}, s{sHJ}, 8
        s_lshl_b32 s{s1}, s{sW}, 6
        s_add_u32 s{s0}, s{s0}, s{s1}
        s_add_u32 s{s0}, s{s0}, {QL}
        v_add_u32 v12, s{s0}, v11
        v_cmp_eq_u32 vcc, 0, v1
        v_cndmask_b32 v26, v9, v12, vcc
        s_waitcnt vmcnt(5)
        ''')
        vU = 112
        for s in range(4):
            for T in range(2): e(f'ds_read_b128 {v(vU+(s*2+T)*4,4)}, v{20+s} offset:{T*1024}')
        e('L_A_H0:')
        e('s_waitcnt vmcnt(0)')
        for i in range(4): e(f'v_xor_b32 v{66+4*i}, s{sT0}, v{66+4*i}\nv_xor_b32 v{67+4*i}, s{sT1}, v{67+4*i}')
        e('v_or3_b32 v12, v66, v67, v70\nv_or3_b32 v12, v12, v71, v74\nv_or3_b32 v12, v12, v75, v78\nv_or_b32 v12, v12, v79')
        e('v_cmp_ne_u32 vcc, 0, v12\ns_cbranch_vccz L_A_H0OK')
        e(f's_sub_u32 s{sTO}, s{sTO}, 1\ns_cmp_eq_u32 s{sTO}, 0\ns_cbranch_scc1 L_END')
        h0loads()
        e('s_branch L_A_H0')
        e('L_A_H0OK:')
        self.stamp(4)
        e('v_add_f32 v64, v64, v68\nv_add_f32 v65, v65, v69\nv_add_f32 v72, v72, v76\nv_add_f32 v73, v73, v77\nv_add_f32 v64, v64, v72\nv_add_f32 v65, v65, v73')
        e('v_cvt_pk_bf16_f32 v64, v64, v65\nds_write_b32 v24, v64\ns_waitcnt lgkmcnt(0)')
        for s in range(4): e(f'ds_read_b128 {v(80+4*s,4)}, v25 offset:{s*64}')
        for s in range(4):
            e(f's_waitcnt lgkmcnt({3-s})')
            for T in range(2):
                e(f'v_mfma_f32_16x16x32_bf16 {v(104+4*T,4)}, {v(vU+(s*2+T)*4,4)}, {v(80+4*s,4)}, ' + ('0' if s==0 else v(104+4*T,4)))
        for i in range(4): e(f'v_cvt_pk_bf16_f32 v{64+i}, v{104+2*i}, v{105+2*i}')
        for i in range(4): e(f'v_min_u32 v{64+i}, -2, v{64+i}')
        e(f'buffer_store_dwordx4 v[64:67], v26, {srd(rWS)}, 0 offen sc1')
        self.stamp(5)
        e(f's_lshl_b32 s{s0}, s{sJ}, 20\ns_lshl_b32 s{s1}, s{sHd}, 8\ns_add_u32 s{s0}, s{s0}, s{s1}')
        self.mk_srd(rA, pWUV, s0, 4194304)
        e(f'''
        v_lshl_add_u32 v6, v2, 17, v5
        v_xor_b32 v6, s67, v6
        s_and_b32 s{s0}, s{sW}, 1
        s_lshl_b32 s{s0}, s{s0}, 6
        s_lshr_b32 s{s1}, s{sW}, 1
        s_add_u32 s{s0}, s{s0}, s{s1}
        s_lshl_b32 s{s0}, s{s0}, 13
        s_lshl_b32 s{s1}, s{sW}, 10
        ''')
        a2thr = self.o.get('a2_depth', None)
        cnt = 0
        for k in range(8):
            e(f's_add_u32 m0, s{s1}, {WUV+k*4096}')
            e(f'buffer_load_dwordx4 v6, {srd(rA)}, s{s0} offen nt lds')
            if k < 7: e(f's_add_u32 s{s0}, s{s0}, 16384')
            if a2thr is not None and k < self.o.get('a2_nthr', 8): e(f's_waitcnt vmcnt({a2thr-1})')
        e(f's_cmp_ge_u32 s{sAi}, 10\ns_cbranch_scc1 L_A_NOWO')
        e(f's_lshl_b32 s{s0}, s{sX8}, 2\ns_add_u32 s{s0}, s{s0}, s{sW}\ns_mul_i32 s{s0}, s{s0}, 163840\ns_lshl_b32 s{s1}, s{sAi}, 7\ns_add_u32 s{s0}, s{s0}, s{s1}')
        self.mk_srd(rB, pWO, s0, 5242880)
        e(f'''
        v_lshrrev_b32 v12, 3, v0
        v_and_b32 v13, 3, v12
        v_lshrrev_b32 v14, 2, v12
        v_lshl_add_u32 v13, v14, 4, v13
        v_mul_u32_u24 v13, 1280, v13
        v_and_b32 v14, 7, v0
        v_lshlrev_b32 v14, 4, v14
        v_and_b32 v12, 1, v2
        v_lshlrev_b32 v12, 5, v12
        v_xor_b32 v14, v14, v12
        v_add_u32 v7, v13, v14
        v_xor_b32 v14, 64, v14
        v_add_u32 v8, v13, v14
        s_lshl_b32 s{s1}, s{sW}, 14
        ''')
        for i in range(16):
            e(f's_add_u32 m0, s{s1}, {WO+i*1024}\ns_mov_b32 s{s0}, {(32*(i>>2)+4*(i&3))*1280}')
            e(f'buffer_load_dwordx4 v{7+(i&1)}, {srd(rB)}, s{s0} offen nt lds')
        e('L_A_NOWO:')
        vMk = 28
        self.ident_masks(vMk, 0xffff, 0xffff0000, 0, 12)
        e(f'''
        v_lshrrev_b32 v12, 3, v1
        v_xor_b32 v12, s{sW}, v12
        v_lshlrev_b32 v12, 5, v12
        v_lshl_add_u32 v12, v2, 3, v12
        v_and_b32 v13, 7, v1
        v_add_u32 v12, v12, v13
        v_lshlrev_b32 v20, 11, v12
        v_xor_b32 v21, 0x20000, v20
        s_lshl_b32 s68, s{sJ}, 9
        s_lshl_b32 s{s0}, s{sHd}, 4
        s_add_u32 s68, s68, s{s0}
        s_add_u32 s68, s68, {REC}
        v_lshlrev_b32 v22, 11, v2
        v_lshl_add_u32 v22, v1, 4, v22
        s_lshl_b32 s69, s{sHJ}, 15
        s_lshl_b32 s{s0}, s{sW}, 13
        s_add_u32 s69, s69, s{s0}
        s_add_u32 s69, s69, {PART}
        ''')
        e(f'''
        v_lshlrev_b32 v12, 4, v1
        v_lshl_add_u32 v12, v2, 3, v12
        s_mul_i32 s{s0}, s{sW}, 320
        s_add_u32 s{s0}, s{s0}, {CL}
        v_add_u32 v12, s{s0}, v12
        v_mov_b32 v13, {DUM}
        v_cmp_gt_u32 vcc, 32, v0
        v_cndmask_b32 v23, v13, v12, vcc
        v_and_b32 v12, 3, v1
        v_mul_u32_u24 v12, 320, v12
        v_add_u32 v12, v12, v11
        v_add_u32 v24, {CL}, v12
        s_lshl_b32 s{s0}, s{sHJ}, 9
        s_lshl_b32 s{s1}, s{sW}, 7
        s_add_u32 s{s0}, s{s0}, s{s1}
        s_add_u32 s{s0}, s{s0}, {HC}
        v_add_u32 v12, s{s0}, v11
        v_cmp_eq_u32 vcc, 0, v1
        v_cndmask_b32 v25, v9, v12, vcc
        s_waitcnt vmcnt(0)
        s_barrier
        ''')
        for s in range(4):
            for T in range(2):
                for q in range(2): e(f'ds_read_b64_tr_b16 {a((s*2+T)*4+2*q,2)}, v{60+T} offset:{WUV+s*8192+q*1024}')
            if s == 2: e('s_waitcnt lgkmcnt(4)')
        e(f's_cmp_ge_u32 s{sAi}, 10\ns_cbranch_scc1 L_A_NOWO2')
        e(f'''
        v_lshrrev_b32 v12, 2, v1
        v_lshl_add_u32 v12, v2, 3, v12
        v_lshlrev_b32 v12, 7, v12
        v_and_b32 v13, 3, v1
        v_lshl_add_u32 v12, v13, 3, v12
        s_lshl_b32 s{s1}, s{sW}, 14
        s_add_u32 s{s1}, s{s1}, {WO}
        v_add_u32 v12, s{s1}, v12
        v_lshrrev_b32 v13, 3, v1
        v_and_b32 v14, 1, v2
        v_lshl_or_b32 v13, v14, 1, v13
        ''')
        for T in range(4): e(f'v_xor_b32 v14, {T}, v13\nv_lshl_add_u32 v{32+T}, v14, 5, v12')
        for s in range(4):
            e('s_waitcnt lgkmcnt(4)')
            for T in range(4):
                for q in range(2): e(f'ds_read_b64_tr_b16 {a(32+(s*4+T)*4+2*q,2)}, v{32+T} offset:{s*4096+q*512}')
        e('L_A_NOWO2:')
        e('s_waitcnt lgkmcnt(0)')
        self.stamp(6)
        e('L_A_REC:')
        e(f'buffer_load_dwordx4 v[64:67], v20, {srd(rWS)}, s68 offen sc1\nbuffer_load_dwordx4 v[68:71], v21, {srd(rWS)}, s68 offen sc1\ns_waitcnt vmcnt(0)')
        e(f'v_xor_b32 v66, s{sT0}, v66\nv_xor_b32 v67, s{sT1}, v67\nv_xor_b32 v70, s{sT0}, v70\nv_xor_b32 v71, s{sT1}, v71')
        e('v_or3_b32 v12, v66, v67, v70\nv_or_b32 v12, v12, v71\nv_cmp_ne_u32 vcc, 0, v12')
        self.retry('L_A_REC')
        self.stamp(7)
        vD = 128; vAF = 160
        for i in range(8): e(f'buffer_load_dwordx4 {v(vD+4*i,4)}, v22, {srd(rWS)}, s69 offen offset:{i*256} sc1')
        e('v_max_f32 v72, v64, v68')
        self.allred('v_max_f32', 72, 73)
        e('v_sub_f32 v64, v64, v72\nv_sub_f32 v68, v68, v72\nv_exp_f32 v64, v64\nv_exp_f32 v68, v68')
        e('v_mul_f32 v72, v64, v65\nv_fmac_f32 v72, v68, v69')
        self.allred('v_add_f32', 72, 73)
        e('v_rcp_f32 v72, v72\nv_mul_f32 v64, v64, v72\nv_cvt_pk_bf16_f32 v64, v64, v64')
        for i in range(8):
            for r in range(4): e(f'v_and_b32_dpp v{vAF+4*i+r}, v64, v{vMk+r} row_newbcast:{i} {DPP}')
        for i in range(8):
            e(f's_waitcnt vmcnt({7-i})')
            e(f'v_mfma_f32_16x16x32_bf16 v[76:79], {v(vAF+4*i,4)}, {v(vD+4*i,4)}, ' + ('0' if i==0 else 'v[76:79]'))
        self.stamp(8)
        e('v_cvt_pk_bf16_f32 v74, v76, v77\nv_cvt_pk_bf16_f32 v75, v78, v79\nds_write_b64 v23, v[74:75]\ns_waitcnt lgkmcnt(0)\ns_barrier')
        for s in range(4): e(f'ds_read_b128 {v(80+4*s,4)}, v24 offset:{s*64}')
        for s in range(4):
            e(f's_waitcnt lgkmcnt({3-s})')
            for T in range(2):
                e(f'v_mfma_f32_16x16x32_bf16 {v(104+4*T,4)}, {a((s*2+T)*4,4)}, {v(80+4*s,4)}, ' + ('0' if s==0 else v(104+4*T,4)))
        for p in ['quad_perm:[1,0,3,2]','quad_perm:[2,3,0,1]']:
            for r in range(8): e(f'v_add_f32_dpp v{104+r}, v{104+r}, v{104+r} {p} {DPP}')
        for i in range(4): e(f'v_cvt_pk_bf16_f32 v{64+i}, v{104+2*i}, v{105+2*i}')
        for i in range(4): e(f'v_min_u32 v{64+i}, -2, v{64+i}')
        e(f'buffer_store_dwordx4 v[64:67], v25, {srd(rWS)}, 0 offen sc1')
        self.stamp(9)
        e(f's_cmp_ge_u32 s{sAi}, 10\ns_cbranch_scc1 L_END')
        e(f'''
        v_and_b32 v12, 3, v1
        v_lshl_add_u32 v20, v12, 9, v11
        s_lshl_b32 s{s0}, s{sX8}, 2
        s_add_u32 s{s0}, s{s0}, s{sW}
        s_lshl_b32 s68, s{s0}, 11
        s_add_u32 s68, s68, {HC}
        ''')
        e('L_A_HC:')
        for s in range(4): e(f'buffer_load_dwordx4 {v(80+4*s,4)}, v20, {srd(rWS)}, s68 offen offset:{s*128} sc1')
        e(f'''
        v_lshrrev_b32 v12, 2, v1
        v_cmp_eq_u32 s[70:71], 1, v12
        v_cmp_eq_u32 s[72:73], 2, v12
        v_cmp_eq_u32 s[74:75], 3, v12
        v_lshl_add_u32 v21, v12, 6, v11
        s_lshl_b32 s{s0}, s{sW}, 8
        v_add_u32 v21, s{s0}, v21
        v_cmp_gt_u32 vcc, 8, v0
        v_cndmask_b32 v22, v9, v3, vcc
        s_mul_i32 s69, s{sX8}, 1280
        s_lshl_b32 s{s1}, s{sAi}, 7
        s_add_u32 s69, s69, s{s1}
        s_add_u32 s69, s69, {H3B}
        s_waitcnt vmcnt(0)
        ''')
        self.maxchain(12, range(80,96))
        e('v_cmp_eq_u32 vcc, -1, v12')
        self.retry('L_A_HC', sleep=0)
        for s in range(4):
            for T in range(4):
                e(f'v_mfma_f32_16x16x32_bf16 {v(104+4*T,4)}, {a(32+(s*4+T)*4,4)}, {v(80+4*s,4)}, ' + ('0' if s==0 else v(104+4*T,4)))
        for T in range(1,4):
            for r in range(4): e(f'v_cndmask_b32 v{104+r}, v{104+r}, v{104+4*T+r}, s[{68+2*T}:{69+2*T}]')
        for p in ['quad_perm:[1,0,3,2]','quad_perm:[2,3,0,1]']:
            for r in range(4): e(f'v_add_f32_dpp v{104+r}, v{104+r}, v{104+r} {p} {DPP}')
        e(f'ds_write_b128 v21, v[104:107] offset:{RED}\ns_waitcnt lgkmcnt(0)\ns_barrier')
        e(f's_cmp_lg_u32 s{sW}, 0\ns_cbranch_scc1 L_END')
        self.red_final(RED, 128, True)
        e(f'buffer_store_dwordx4 v[128:131], v22, {srd(rWS)}, s69 offen sc1')
        self.stamp(10)

    def epilogue(self):
        e = self.e
        e('L_END:')
        if self.stamps and 'amp' not in self.o:
            e(f's_waitcnt lgkmcnt(0)\ns_lshl_b32 s60, s2, 2\ns_add_u32 s60, s60, s{sW}\ns_lshl_b32 s60, s60, 6\ns_add_u32 s60, s60, {STAMP}\nv_mov_b32 v4, 0')
            for k in range(11): e(f'v_mov_b32 v5, s{sSTAMP+2*k}\nbuffer_store_dword v5, v4, {srd(rWS)}, s60 offen offset:{4*k}')
            e(f'v_mov_b32 v5, s{sTO}\nbuffer_store_dword v5, v4, {srd(rWS)}, s60 offen offset:44')
        e('L_EXIT:')

    def build(self):
        if self.stamps:
            for k in range(1,11): self.e(f's_mov_b32 s{sSTAMP+2*k}, 0')
        self.prologue(); self.role_T(); self.role_FIN(); self.role_A(); self.epilogue()
        hdr = open('header.txt').read()
        return f'''{hdr}; @launch grid=(256,1,1) block=(256,1,1) lds=163840
.amdgcn_target "amdgcn-amd-amdhsa--gfx950"
.text
.globl {KN}
.p2align 8
.type {KN},@function
{KN}:
{self.e.text()}
s_endpgm
.section .rodata,"a"
.p2align 6
.amdhsa_kernel {KN}
  .amdhsa_next_free_vgpr 512
  .amdhsa_next_free_sgpr 102
  .amdhsa_accum_offset 256
  .amdhsa_group_segment_fixed_size 0
  .amdhsa_kernarg_size 112
  .amdhsa_user_sgpr_count 2
  .amdhsa_user_sgpr_kernarg_segment_ptr 1
  .amdhsa_system_sgpr_workgroup_id_x 1
.end_amdhsa_kernel
'''

if __name__ == '__main__':
    import json
    out = sys.argv[1]; stamps = len(sys.argv) > 2 and sys.argv[2] == '1'
    opt = json.loads(sys.argv[3]) if len(sys.argv) > 3 else {}
    open(out,'w').write(G(stamps, opt).build())
```

```python
import sys
sys.path.insert(0,'work')
import gen
base = gen.G(False, {}).build()
KN = gen.KN
def mk(order, egrid=1, eblock=64, elds=0, evg=8):
    s = base
    lines = []
    for o in order:
        if o == 'M': lines.append(f'; @launch kernel={KN} grid=(256,1,1) block=(256,1,1) lds=163840')
        else: lines.append(f'; @launch kernel=empty_kernel grid=({egrid},1,1) block=({eblock},1,1) lds={elds}')
    s = s.replace('; @launch grid=(256,1,1) block=(256,1,1) lds=163840', '\n'.join(lines))
    s = s.replace('.section .rodata,"a"', '.globl empty_kernel\n.p2align 8\n.type empty_kernel,@function\nempty_kernel:\ns_endpgm\n.section .rodata,"a"')
    s += f'''.p2align 6
.amdhsa_kernel empty_kernel
  .amdhsa_next_free_vgpr {evg}
  .amdhsa_next_free_sgpr 16
  .amdhsa_accum_offset {min(evg,256)}
  .amdhsa_group_segment_fixed_size 0
  .amdhsa_kernarg_size 112
  .amdhsa_user_sgpr_count 2
  .amdhsa_user_sgpr_kernarg_segment_ptr 1
  .amdhsa_system_sgpr_workgroup_id_x 1
.end_amdhsa_kernel
'''
    return s
open('l_m.s','w').write(mk('M'))
open('l_me.s','w').write(mk('ME'))
open('l_em.s','w').write(mk('EM'))
open('l_em256.s','w').write(mk('EM',256,256,163840,512))
open('l_meeee.s','w').write(mk('MEEEE',256,256))
open('l_mm.s','w').write(mk('MM'))
```

```python
import sys
sys.path.insert(0,'work')
from dsl import Asm
NAME = 'sequential_preLN__compressed_kv_cla__dense_activation_squared_relu__decode'
KN = NAME + '_kernel'

EPOCH=0; RDY=0x1000; QP=0x8000; SL=0x40000; REC=0x80000; LOC=0x100000; PART=0x200000; STAMP=0x600000
S_QL=0; S_HC=256; S_H4=512; H3B = SL + 108*2048 + S_H4
WSSZ=0x700000
OOB=0x7ffffff0
NLOC=96
sLM,sLC,sLOC,sTMP = 3,4,5,6
pX,pCKV,pWQ,pWUK,pWUV,pWO,pBX,pW1,pB1,pW2,pB2,pOUT,pDBG,pWS = [8+2*i for i in range(14)]
sW,sX8,sR,sE,sT0,sT1,sTO,sC = 36,37,38,39,40,41,42,43
rWS=44; rA=48; rB=52; rC=56
sSTAMP=80
def srd(r): return f's[{r}:{r+3}]'
def v(n,c=1): return f'v{n}' if c==1 else f'v[{n}:{n+c-1}]'
def a(n,c=1): return f'a{n}' if c==1 else f'a[{n}:{n+c-1}]'
DPP='row_mask:0xf bank_mask:0xf'
QB = 131072
WQ = 69632; XN = 110592

class G:
    def __init__(self, stamps=False, opt=None):
        self.e = Asm(); self.stamps = stamps; self.o = opt or {}
        self.slots = {'A':['start'],'T':['start'],'R':[]}; self.idx = {}; self.tbase = 1
    def stamp(self, name):
        if not self.stamps: return
        role = name.split('.')[0]
        lst = self.slots['A' if role == 'A' else 'T']
        want = self.o.get('want')
        if name == 'start': k = 0
        else:
            if want is not None and name not in want: return
            if role == 'R':
                k = self.tbase + len(self.slots['R']); self.slots['R'].append(name)
            else:
                k = len(lst); lst.append(name)
                if role == 'T': self.tbase = len(lst)
            if k > 10: raise Exception('too many stamps '+name)
        self.idx[name] = k
        op = 's_memtime' if self.o.get('cyc') else 's_memrealtime'
        self.e(f'{op} s[{sSTAMP+2*k}:{sSTAMP+2*k+1}]')
        if name in self.o.get('cut', []): self.e('s_branch L_END')
    def mk_srd(self, r, ptr, off_sgpr, size):
        e = self.e
        if off_sgpr is None:
            e(f's_mov_b32 s{r}, s{ptr}\ns_and_b32 s{r+1}, s{ptr+1}, 0xffff\ns_mov_b32 s{r+2}, {size}')
        else:
            e(f's_add_u32 s{r}, s{ptr}, s{off_sgpr}\ns_addc_u32 s{r+1}, s{ptr+1}, 0\ns_and_b32 s{r+1}, s{r+1}, 0xffff\ns_sub_u32 s{r+2}, {size}, s{off_sgpr}')
        e(f's_mov_b32 s{r+3}, 0x20000')
    def allred(self, op, x, t, steps16=4):
        e = self.e
        pats = ['quad_perm:[1,0,3,2]','quad_perm:[2,3,0,1]','row_half_mirror','row_mirror'][:steps16]
        for p in pats: e(f'{op}_dpp v{x}, v{x}, v{x} {p} {DPP}')
        e(f'v_mov_b32 v{t}, v{x}\nv_permlane16_swap_b32 v{x}, v{t}\n{op} v{x}, v{x}, v{t}')
        e(f'v_mov_b32 v{t}, v{x}\nv_permlane32_swap_b32 v{x}, v{t}\n{op} v{x}, v{x}, v{t}')
    def timeout(self):
        self.e(f's_sub_u32 s{sTO}, s{sTO}, 1\ns_cmp_eq_u32 s{sTO}, 0\ns_cbranch_scc1 L_END')
    def fb(self, vregs=(), sregs=()):
        e = self.e
        self.timeout()
        e(f's_add_u32 s{sLC}, s{sLC}, 1\ns_cmp_ge_u32 s{sLC}, {NLOC}\ns_cselect_b32 s{sLM}, {(~LOC)&0xffffffff}, s{sLM}')
        self.lmask(vregs, sregs)
    def lmask(self, vregs=(), sregs=()):
        for r in vregs: self.e(f'v_and_b32 v{r}, s{sLM}, v{r}')
        for r in sregs: self.e(f's_and_b32 s{r}, s{r}, s{sLM}')
    def stop(self, data):
        if '[' not in data: return 'buffer_store_dword'
        lo, hi = data[2:-1].split(':'); return f'buffer_store_dwordx{int(hi)-int(lo)+1}'
    def publ(self, data, voff): self.e(f'{self.stop(data)} {data}, v{voff}, {srd(rWS)}, s{sLOC} offen')
    def pubg(self, data, voff): self.e(f'{self.stop(data)} {data}, v{voff}, {srd(rWS)}, 0 offen sc1')
    def pub(self, data, voff): self.pubg(data, voff); self.publ(data, voff)
    def late_pubg(self, data, voff):
        e = self.e; l = e.newlabel('Lnp')
        e(f's_cmp_eq_u32 s{sLM}, -1\ns_cbranch_scc1 {l}'); self.pubg(data, voff); e(f'{l}:')
    def retry(self, label, sleep=1, vregs=(), sregs=(), late=None):
        e = self.e
        ok = e.newlabel('Lok')
        e(f's_cbranch_vccz {ok}')
        self.fb(vregs, sregs)
        if late: self.late_pubg(*late)
        if sleep: e(f's_sleep {sleep}')
        e(f's_branch {label}')
        e(f'{ok}:')
    def maxchain(self, dst, regs):
        e = self.e
        regs = list(regs)
        e(f'v_max3_u32 v{dst}, v{regs[0]}, v{regs[1]}, v{regs[2]}'); regs = regs[3:]
        while len(regs) >= 2:
            e(f'v_max3_u32 v{dst}, v{dst}, v{regs[0]}, v{regs[1]}'); regs = regs[2:]
        if regs: e(f'v_max_u32 v{dst}, v{dst}, v{regs[0]}')
    def tagcheck(self, dst, pairs):
        e = self.e; rs = []
        for r in pairs:
            e(f'v_xor_b32 v{r}, s{sT0}, v{r}\nv_xor_b32 v{r+1}, s{sT1}, v{r+1}'); rs += [r, r+1]
        if len(rs) == 2: e(f'v_or_b32 v{dst}, v{rs[0]}, v{rs[1]}')
        else:
            e(f'v_or3_b32 v{dst}, v{rs[0]}, v{rs[1]}, v{rs[2]}'); rs = rs[3:]
            while len(rs) >= 2: e(f'v_or3_b32 v{dst}, v{dst}, v{rs[0]}, v{rs[1]}'); rs = rs[2:]
            if rs: e(f'v_or_b32 v{dst}, v{dst}, v{rs[0]}')
        e(f'v_cmp_ne_u32 vcc, 0, v{dst}')
    def ident_masks(self, dst, val_lo, val_hi, first, n, t):
        e = self.e
        e(f'v_and_b32 v{t}, 1, v1\nv_cmp_eq_u32 vcc, 1, v{t}\nv_mov_b32 v{t}, {val_lo}\nv_mov_b32 v{t+1}, {val_hi}\nv_cndmask_b32 v{t}, v{t}, v{t+1}, vcc')
        e(f'v_lshrrev_b32 v{t+1}, 1, v1')
        for r in range(n):
            e(f'v_cmp_eq_u32 vcc, {first+r}, v{t+1}\nv_cndmask_b32 v{dst+r}, 0, v{t}, vcc')
    def red_final(self, RED, t, va, clamp):
        e = self.e
        for w in range(4): e(f'ds_read_b128 {v(t+4+4*w,4)}, v{va} offset:{RED+256*w}')
        e('s_waitcnt lgkmcnt(2)')
        for i in range(2): e(f'v_pk_add_f32 {v(t+4+2*i,2)}, {v(t+4+2*i,2)}, {v(t+8+2*i,2)}')
        e('s_waitcnt lgkmcnt(0)')
        for i in range(2): e(f'v_pk_add_f32 {v(t+12+2*i,2)}, {v(t+12+2*i,2)}, {v(t+16+2*i,2)}')
        for i in range(2): e(f'v_pk_add_f32 {v(t+4+2*i,2)}, {v(t+4+2*i,2)}, {v(t+12+2*i,2)}')
        for i in range(2): e(f'v_cvt_pk_bf16_f32 v{t+i}, v{t+4+2*i}, v{t+5+2*i}')
        if clamp:
            for i in range(2): e(f'v_min_u32 v{t+i}, -2, v{t+i}')
    def tags(self):
        self.e(f's_add_u32 s{sT0}, s{sE}, 0x9e3779b9\ns_xor_b32 s{sT1}, s{sT0}, 0x5bd1e995')

    def prologue(self):
        e = self.e
        self.stamp('start')
        e(f'''
        s_cmp_ge_u32 s2, 256
        s_cbranch_scc1 L_EXIT
        s_load_dwordx16 s[8:23], s[0:1], 0
        s_load_dwordx4 s[32:35], s[0:1], 96
        s_load_dwordx8 s[24:31], s[0:1], 64
        v_lshrrev_b32 v1, 6, v0
        v_and_b32 v0, 63, v0
        v_readfirstlane_b32 s{sW}, v1
        v_and_b32 v1, 15, v0
        v_lshrrev_b32 v2, 4, v0
        v_lshlrev_b32 v3, 4, v0
        v_lshlrev_b32 v4, 2, v0
        s_and_b32 s{sX8}, s2, 7
        s_lshr_b32 s{sR}, s2, 3
        v_lshlrev_b32 v5, 4, v1
        v_lshlrev_b32 v6, 5, v2
        v_xor_b32 v5, v5, v6
        v_lshl_add_u32 v6, v2, 13, v5
        s_lshr_b32 s67, s{sW}, 1
        s_lshl_b32 s67, s67, 7
        v_xor_b32 v8, s67, v6
        v_mov_b32 v9, {OOB}
        v_lshlrev_b32 v11, 4, v2
        s_bfe_u32 s60, s{sR}, 0x20002
        s_mul_i32 s60, s60, {160*8192}
        s_and_b32 s63, s{sR}, 3
        s_lshl_b32 s64, s{sX8}, 2
        s_add_u32 s63, s63, s64
        s_lshl_b32 s63, s63, 8
        s_add_u32 s60, s60, s63
        s_lshl_b32 s61, s{sW}, 15
        s_lshl_b32 s62, s{sW}, 10
        s_add_u32 s62, s62, {WQ}
        s_mov_b32 s{rA+3}, 0x20000
        s_mov_b32 s{rC+3}, 0x20000
        s_mov_b32 s{rC+2}, 1280
        s_sub_u32 s{rA+2}, 5242880, s60
        s_mov_b32 s{sTO}, 400000
        s_mov_b32 s{sLM}, -1
        s_mov_b32 s{sLC}, 0
        s_mov_b32 s{sLOC}, {LOC}
        s_mov_b32 s{rWS+2}, {WSSZ}
        s_mov_b32 s{rWS+3}, 0x20000
        s_waitcnt lgkmcnt(0)
        s_add_u32 s{rA}, s{pWQ}, s60
        s_addc_u32 s{rA+1}, s{pWQ+1}, 0
        s_and_b32 s{rA+1}, s{rA+1}, 0xffff
        s_mov_b32 s{rC}, s{pX}
        s_and_b32 s{rC+1}, s{pX+1}, 0xffff
        s_mov_b32 s{rWS}, s{pWS}
        s_and_b32 s{rWS+1}, s{pWS+1}, 0xffff
        s_cmp_lt_u32 s{sR}, 16
        s_cbranch_scc1 L_T
        ''')
    def x_issue(self):
        for kk in range(5): self.e(f'buffer_load_dword v{20+kk}, v4, {srd(rC)}, 0 offen offset:{256*kk} {self.o.get("xflag","")}')
    def wq_dma(self, k):
        e = self.e
        e(f's_add_u32 m0, s62, {k*4096}')
        e(f'buffer_load_dwordx4 v8, {srd(rA)}, s61 offen nt lds')
        if k < 9: e(f's_add_u32 s61, s61, {4*32768}')
    def wuk_setup(self, sAi, srdreg):
        e = self.e
        e(f'''
        s_lshl_b32 s63, s{sX8}, 2
        s_add_u32 s64, s63, s{sW}
        s_lshl_b32 s64, s64, 8
        s_lshl_b32 s65, s{sAi}, 18
        s_add_u32 s64, s64, s65
        ''')
        self.mk_srd(srdreg, pWUK, 64, 4194304)
        e(f'v_xor_b32 v7, 0x80, v6\ns_mov_b32 s68, 0\ns_lshl_b32 s69, s{sW}, 13')
    def wuk_dma(self, k, srdreg, base):
        e = self.e
        e(f's_add_u32 m0, s69, {base+k*1024}')
        e(f'buffer_load_dwordx4 v{6 if ((k>>1)&1)==0 else 7}, {srd(srdreg)}, s68 offen nt lds')
        if k < 7: e(f's_add_u32 s68, s68, 32768')
    def a1(self, role, y_x, y_wq, mid):
        e = self.e
        s0, s1 = 63, 64
        e(f'''
        v_lshrrev_b32 v12, 2, v1
        v_lshl_add_u32 v13, v2, 3, v12
        v_lshlrev_b32 v13, 8, v13
        v_and_b32 v14, 3, v1
        v_lshl_add_u32 v13, v14, 3, v13
        v_and_b32 v15, 1, v2
        v_lshl_or_b32 v15, v15, 2, v12
        s_lshl_b32 s{s0}, s{sW}, 1
        v_xor_b32 v15, s{s0}, v15
        v_lshl_add_u32 v60, v15, 5, v13
        v_xor_b32 v15, 1, v15
        v_lshl_add_u32 v61, v15, 5, v13
        v_add_u32 v56, {WQ}, v60
        v_add_u32 v57, {WQ}, v61
        ''')
        e(f'''
        v_lshl_add_u32 v12, v1, 6, v11
        s_and_b32 s{s0}, s{sR}, 3
        s_lshl_b32 s{s1}, s{sX8}, 2
        s_add_u32 s{s0}, s{s0}, s{s1}
        s_lshl_b32 s{s0}, s{s0}, 2
        s_bfe_u32 s{s1}, s{sR}, 0x20002
        s_add_u32 s{s0}, s{s0}, s{s1}
        s_lshl_b32 s{s0}, s{s0}, 9
        s_lshl_b32 s{s1}, s{sW}, 7
        s_add_u32 s{s0}, s{s0}, s{s1}
        s_add_u32 s{s0}, s{s0}, {QP}
        v_add_u32 v12, s{s0}, v12
        v_cmp_gt_u32 vcc, 2, v1
        v_cndmask_b32 v62, v9, v12, vcc
        v_cmp_eq_u32 s[70:71], 1, v1
        s_mul_i32 s{s0}, s{sW}, 1280
        s_add_u32 s{s0}, s{s0}, {XN}
        v_add_u32 v10, s{s0}, v4
        s_bfe_u32 s{s1}, s{sR}, 0x20002
        s_mul_i32 s{s1}, s{s1}, 320
        s_add_u32 s{s0}, s{s0}, s{s1}
        v_add_u32 v12, s{s0}, v11
        s_waitcnt vmcnt({y_x}) lgkmcnt(0)
        ''')
        self.stamp(role+'.x')
        for k in range(5): e(f'v_lshlrev_b32 v{26+2*k}, 16, v{20+k}\nv_and_b32 v{27+2*k}, 0xffff0000, v{20+k}')
        e('v_pk_add_f32 v[36:37], v[26:27], v[28:29]\nv_pk_add_f32 v[38:39], v[30:31], v[32:33]\nv_pk_add_f32 v[36:37], v[36:37], v[34:35]\nv_pk_add_f32 v[36:37], v[36:37], v[38:39]\nv_add_f32 v36, v36, v37')
        self.allred('v_add_f32', 36, 37)
        e('v_mul_f32 v36, 0xbacccccd, v36\nv_mov_b32 v37, v36')
        for k in range(26,36,2): e(f'v_pk_add_f32 {v(k,2)}, {v(k,2)}, v[36:37]')
        e('v_pk_mul_f32 v[36:37], v[26:27], v[26:27]')
        for k in range(28,36,2): e(f'v_pk_fma_f32 v[36:37], {v(k,2)}, {v(k,2)}, v[36:37]')
        e('v_add_f32 v36, v36, v37')
        self.allred('v_add_f32', 36, 37)
        e('v_mul_f32 v36, 0x3acccccd, v36\nv_add_f32 v36, 0x3727c5ac, v36\nv_rsq_f32 v36, v36\nv_mov_b32 v37, v36')
        for k in range(26,36,2): e(f'v_pk_mul_f32 {v(k,2)}, {v(k,2)}, v[36:37]')
        for k in range(5): e(f'v_cvt_pk_bf16_f32 v{20+k}, v{26+2*k}, v{27+2*k}\nds_write_b32 v10, v{20+k} offset:{256*k}')
        e('s_waitcnt lgkmcnt(0)')
        for s in range(5): e(f'ds_read_b128 {v(36+4*s,4)}, v12 offset:{s*64}')
        e(f's_load_dword s{sE}, s[{pWS}:{pWS+1}], {EPOCH}')
        self.stamp(role+'.ln')
        mid()
        e('s_waitcnt lgkmcnt(0)')
        self.tags()
        e(f'v_mov_b32 v18, s{sT0}\nv_mov_b32 v19, s{sT1}')
        e(f's_waitcnt vmcnt({y_wq})\ns_barrier')
        self.stamp(role+'.wq')
        vW = 128
        for s in range(5):
            for T in range(2):
                for q in range(2): e(f'ds_read_b64_tr_b16 {v(vW+(s*2+T)*4+2*q,2)}, v{56+T} offset:{s*8192+q*1024}')
        for s in range(5):
            for T in range(2):
                e(f's_waitcnt lgkmcnt({min(15,18-(s*2+T)*2)})')
                e(f'v_mfma_f32_16x16x32_bf16 {v(84+4*T,4)}, {v(vW+(s*2+T)*4,4)}, {v(36+4*s,4)}, ' + ('0' if s==0 else v(84+4*T,4)))
        for i in range(4): e(f'v_cvt_pk_bf16_f32 v{92+i}, v{84+2*i}, v{85+2*i}')
        e('v_cndmask_b32 v16, v92, v94, s[70:71]\nv_cndmask_b32 v17, v93, v95, s[70:71]')
        self.publ('v[16:19]', 62)
        self.stamp(role+'.qp')

    def role_A(self):
        e = self.e
        QV=0; CL=1024; ML=2304; RED=2560; DUM=3584; WUK=4096; HB=4096; WUV=36864; WO=69632
        WO = 4096+32768+32768
        sAi,sHd,sJ,s0,s1,s2_,sSL = 72,73,74,63,64,65,66
        if self.o.get('noA'): e('s_branch L_END')
        order = self.o.get('a_order', 'qqqqqqqqqq|uuuuuuuu')
        cnt = {'q':0,'u':0}
        def issue(ch):
            if ch == 'q': self.wq_dma(cnt['q'])
            else:
                if cnt['u'] == 0: self.wuk_setup(sAi, rB)
                self.wuk_dma(cnt['u'], rB, WUK)
            cnt[ch] += 1
        e(f's_sub_u32 s{sAi}, s{sR}, 16')
        self.x_issue()
        o1, o2 = order.split('|')
        for ch in o1: issue(ch)
        e(f's_lshl_b32 s63, s{sX8}, 2')
        e(f'''
        s_and_b32 s{sHd}, s{sAi}, 3
        s_add_u32 s{sHd}, s{sHd}, s63
        s_lshr_b32 s{sJ}, s{sAi}, 2
        s_lshl_b32 s{sSL}, s{sX8}, 4
        s_add_u32 s{sSL}, s{sSL}, s{sAi}
        ''')
        def mid():
            for ch in o2: issue(ch)
        full = o1 + o2
        self.a1('A', len(o1), len(full)-1-full.rindex('q'), mid)
        e(f'''
        s_lshl_b32 s75, s{sX8}, 5
        s_and_b32 s{s1}, s{sAi}, 12
        s_add_u32 s75, s75, s{s1}
        s_add_u32 s75, s75, s{sW}
        s_lshl_b32 s75, s75, 2
        s_add_u32 s75, s75, {RDY}
        s_load_dword s76, s[{pWS}:{pWS+1}], s75
        ''')
        e(f'''
        v_lshlrev_b32 v27, 9, v2
        v_lshl_add_u32 v27, v1, 4, v27
        s_lshl_b32 s{s2_}, s{sX8}, 2
        s_add_u32 s{s2_}, s{s2_}, s{sW}
        s_lshl_b32 s{s2_}, s{s2_}, 11
        s_add_u32 s{s2_}, s{s2_}, {QP+LOC}
        ''')
        def h0loads():
            for i in range(2): e(f'buffer_load_dwordx4 {v(64+4*i,4)}, v27, {srd(rWS)}, s{s2_} offen offset:{i*256} sc1')
        e(f'''
        v_lshlrev_b32 v12, 9, v1
        s_lshl_b32 s{s0}, s{sW}, 13
        s_add_u32 s{s0}, s{s0}, {WUK}
        v_add_u32 v12, s{s0}, v12
        v_and_b32 v13, 1, v1
        v_and_b32 v14, 4, v1
        v_lshl_or_b32 v13, v13, 1, v14
        v_lshlrev_b32 v13, 5, v13
        ''')
        for s in range(4):
            e(f'v_add_u32 v14, {s*64}, v11\nv_xor_b32 v14, v14, v13\nv_add_u32 v{40+2*s}, v14, v12\nv_xor_b32 v14, 32, v14\nv_add_u32 v{41+2*s}, v14, v12')
        self.ident_masks(28, 0x3f80, 0x3f800000, 0, 4, 12)
        e(f'''
        s_lshl_b32 s{s0}, s{sW}, 8
        v_lshlrev_b32 v12, 3, v0
        v_add_u32 v12, s{s0}, v12
        v_mov_b32 v13, {DUM}
        v_cmp_gt_u32 vcc, 32, v0
        v_cndmask_b32 v24, v13, v12, vcc
        v_add_u32 v25, s{s0}, v11
        s_lshl_b32 s{s0}, s{sX8}, 4
        s_and_b32 s{s1}, s{sAi}, 12
        s_add_u32 s{s0}, s{s0}, s{s1}
        s_add_u32 s{s0}, s{s0}, s{sW}
        s_lshl_b32 s{s0}, s{s0}, 11
        s_and_b32 s{s1}, s{sAi}, 3
        s_lshl_b32 s{s1}, s{s1}, 6
        s_add_u32 s{s0}, s{s0}, s{s1}
        s_add_u32 s{s0}, s{s0}, {SL+S_QL}
        v_add_u32 v12, s{s0}, v4
        v_cmp_gt_u32 vcc, 16, v0
        v_cndmask_b32 v26, v9, v12, vcc
        s_waitcnt lgkmcnt(0)
        s_cmp_eq_u32 s76, s{sT0}
        s_cbranch_scc1 L_A_RDYOK
        L_A_RDY:
        ''')
        self.timeout()
        e(f's_sleep 8\ns_load_dword s76, s[{pWS}:{pWS+1}], s75 glc\ns_waitcnt lgkmcnt(0)\ns_cmp_eq_u32 s76, s{sT0}\ns_cbranch_scc0 L_A_RDY\nL_A_RDYOK:\ns_waitcnt vmcnt({1+self.o.get("h0lead",2)})')
        h0loads()
        e('s_waitcnt vmcnt(3)')
        self.stamp('A.wuk')
        vU = 112
        for s in range(4):
            for T in range(2): e(f'ds_read_b128 {v(vU+(s*2+T)*4,4)}, v{40+2*s+T} offset:{T*256}')
        e('L_A_H0:')
        e('s_waitcnt vmcnt(0)')
        for i in range(2):
            e(f'v_mfma_f32_16x16x16_bf16 v[80:83], {v(28+2*(i&1),2)}, {v(64+4*i,2)}, ' + ('0' if i==0 else 'v[80:83]'))
        self.tagcheck(12, [66,70])
        e('s_cbranch_vccz L_A_H0OK')
        self.fb((), (s2_,)); self.late_pubg('v[16:19]', 62)
        h0loads()
        e('s_branch L_A_H0')
        e('L_A_H0OK:')
        self.stamp('A.h0')
        e(f'v_cvt_pk_bf16_f32 v84, v80, v81\nv_cvt_pk_bf16_f32 v85, v82, v83\nds_write_b64 v24, v[84:85] offset:{QV}\ns_waitcnt lgkmcnt(0)')
        for s in range(4): e(f'ds_read_b128 {v(88+4*s,4)}, v25 offset:{QV+s*64}')
        for s in range(4):
            e(f's_waitcnt lgkmcnt({3-s})')
            for T in range(2):
                e(f'v_mfma_f32_16x16x32_bf16 {v(104+4*T,4)}, {v(88+4*s,4)}, {v(vU+(s*2+T)*4,4)}, ' + ('0' if s==0 else v(104+4*T,4)))
        e('v_cvt_pk_bf16_f32 v64, v104, v108\nv_min_u32 v64, -2, v64')
        self.pub('v64', 26)
        self.stamp('A.ql')
        self.pubg('v[16:19]', 62)
        nh = self.o.get('a_help', 0)
        if nh:
            e('s_barrier')
            e(f's_lshl_b32 s{s0}, s{sSL}, 17')
            self.mk_srd(rA, pCKV, s0, 16777216)
            e(f'v_lshlrev_b32 v12, 10, v2\nv_lshl_add_u32 v12, v1, 4, v12\ns_lshl_b32 s68, s{sW}, 15\ns_lshl_b32 s69, s{sW}, 12\ns_add_u32 m0, s69, 135168')
            for n in range(32-nh, 32):
                c, i = n >> 3, n & 7
                e(f's_add_u32 s{sTMP}, s68, {i*4096+c*256}')
                e(f'buffer_load_dwordx4 v12, {srd(rA)}, s{sTMP} offen nt lds')
        e(f's_lshl_b32 s{s0}, s{sJ}, 18\ns_lshl_b32 s{s1}, s{sHd}, 8\ns_add_u32 s{s0}, s{s0}, s{s1}')
        self.mk_srd(rA, pWUV, s0, 4194304)
        e(f'''
        v_lshrrev_b32 v12, 1, v2
        v_lshl_add_u32 v6, v12, 20, v5
        v_and_b32 v12, 1, v2
        v_lshl_add_u32 v6, v12, 17, v6
        v_xor_b32 v6, s67, v6
        s_and_b32 s{s0}, s{sW}, 1
        s_lshl_b32 s{s0}, s{s0}, 8
        s_lshr_b32 s{s1}, s{sW}, 1
        s_add_u32 s{s0}, s{s0}, s{s1}
        s_lshl_b32 s{s0}, s{s0}, 13
        s_lshl_b32 s{s1}, s{sW}, 10
        s_barrier
        ''')
        npace = self.o.get('a2_pace', 0)
        for k in range(8):
            if k < npace: e('s_waitcnt vmcnt(0)')
            e(f's_add_u32 m0, s{s1}, {WUV+k*4096}')
            e(f'buffer_load_dwordx4 v6, {srd(rA)}, s{s0} offen nt lds')
            if k < 7: e(f's_add_u32 s{s0}, s{s0}, 16384')
        e(f's_cmp_ge_u32 s{sAi}, 10\ns_cbranch_scc1 L_A_NOWO')
        e(f's_lshl_b32 s{s0}, s{sX8}, 2\ns_add_u32 s{s0}, s{s0}, s{sW}\ns_mul_i32 s{s0}, s{s0}, 163840\ns_lshl_b32 s{s1}, s{sAi}, 7\ns_add_u32 s{s0}, s{s0}, s{s1}')
        self.mk_srd(rB, pWO, s0, 5242880)
        e(f'''
        v_lshrrev_b32 v12, 3, v0
        v_lshrrev_b32 v13, 1, v12
        v_and_b32 v14, 1, v12
        v_lshl_add_u32 v13, v14, 4, v13
        v_mul_u32_u24 v13, 1280, v13
        v_and_b32 v14, 7, v0
        v_lshlrev_b32 v14, 4, v14
        v_and_b32 v12, 1, v2
        v_lshlrev_b32 v12, 5, v12
        v_xor_b32 v14, v14, v12
        v_add_u32 v7, v13, v14
        v_xor_b32 v14, 64, v14
        v_add_u32 v8, v13, v14
        s_lshl_b32 s{s1}, s{sW}, 14
        ''')
        for i in range(16):
            e(f's_add_u32 m0, s{s1}, {WO+i*1024}\ns_mov_b32 s{s0}, {(32*(i>>2)+4*(i&3))*1280}')
            e(f'buffer_load_dwordx4 v{7+(i&1)}, {srd(rB)}, s{s0} offen nt lds')
        e('s_branch L_A_WODONE')
        e('L_A_NOWO:')
        if self.o.get('w1pre', 0):
            self.mk_srd(rB, pW1, None, 2211840)
            e(f'''
            v_lshrrev_b32 v12, 3, v0
            v_mul_u32_u24 v12, 3456, v12
            v_and_b32 v13, 7, v0
            v_lshl_add_u32 v12, v13, 4, v12
            s_sub_u32 s{s0}, s{sAi}, 10
            s_mul_i32 s{s0}, s{s0}, {8*3456}
            s_lshl_b32 s{s1}, s{sW}, 3
            s_add_u32 s{s1}, s{s1}, s{sX8}
            s_cmp_ge_u32 s{s1}, 27
            s_cbranch_scc1 L_A_WODONE
            s_lshl_b32 s{s1}, s{s1}, 7
            s_add_u32 s{s0}, s{s0}, s{s1}
            s_lshl_b32 s69, s{sW}, 12
            s_add_u32 m0, s69, 135168
            ''')
            for k in range(14):
                e(f'buffer_load_dwordx4 v12, {srd(rB)}, s{s0} offen {self.o.get("w1preflag","nt")} lds')
                if k < 13: e(f's_add_u32 s{s0}, s{s0}, {48*3456}')
        e('L_A_WODONE:')
        vMk = 28
        self.ident_masks(vMk, 0xffff, 0xffff0000, 0, 4, 12)
        e(f'''
        v_and_b32 v13, 7, v1
        v_lshl_add_u32 v12, v2, 3, v13
        s_lshl_b32 s{s0}, s{sW}, 5
        v_add_u32 v12, s{s0}, v12
        v_lshlrev_b32 v20, 11, v12
        v_lshrrev_b32 v13, 4, v12
        v_cmp_eq_u32 vcc, s{sX8}, v13
        v_or_b32 v12, s{sLOC}, v20
        v_cndmask_b32 v20, v20, v12, vcc
        v_and_b32 v20, s{sLM}, v20
        v_cmp_gt_u32 vcc, 8, v1
        v_cndmask_b32 v20, v9, v20, vcc
        s_mov_b32 s70, 0x00ff00ff
        s_mov_b32 s71, 0x00ff00ff
        s_lshl_b32 s68, s{sJ}, 9
        s_lshl_b32 s{s0}, s{sHd}, 4
        s_add_u32 s68, s68, s{s0}
        s_add_u32 s68, s68, {REC}
        v_lshlrev_b32 v22, 11, v2
        v_lshl_add_u32 v22, v1, 4, v22
        s_lshl_b32 s69, s{sHd}, 2
        s_add_u32 s69, s69, s{sJ}
        s_lshl_b32 s69, s69, 15
        s_lshl_b32 s{s0}, s{sW}, 13
        s_add_u32 s69, s69, s{s0}
        s_add_u32 s69, s69, {PART}
        ''')
        e(f'''
        v_lshlrev_b32 v12, 4, v1
        v_lshl_add_u32 v12, v2, 3, v12
        s_mul_i32 s{s0}, s{sW}, 320
        s_add_u32 s{s0}, s{s0}, {CL}
        v_add_u32 v12, s{s0}, v12
        v_mov_b32 v13, {DUM}
        v_cmp_gt_u32 vcc, 32, v0
        v_cndmask_b32 v23, v13, v12, vcc
        v_and_b32 v12, 3, v1
        v_mul_u32_u24 v12, 320, v12
        v_add_u32 v12, v12, v11
        v_add_u32 v24, {CL}, v12
        s_mul_i32 s{s0}, s{sW}, 1280
        s_add_u32 s{s0}, s{s0}, {HB}
        v_add_u32 v41, s{s0}, v12
        v_mul_u32_u24 v12, 320, v2
        v_lshl_add_u32 v12, v1, 4, v12
        v_add_u32 v40, s{s0}, v12
        s_lshl_b32 s{s0}, s{sSL}, 11
        s_lshl_b32 s{s1}, s{sW}, 6
        s_add_u32 s{s0}, s{s0}, s{s1}
        s_add_u32 s{s0}, s{s0}, {SL+S_HC}
        v_add_u32 v12, s{s0}, v4
        v_cmp_gt_u32 vcc, 16, v0
        v_cndmask_b32 v25, v9, v12, vcc
        s_lshl_b32 s{s0}, s{sW}, 2
        s_add_u32 s{s0}, s{s0}, {ML}
        v_mov_b32 v12, s{s0}
        v_cmp_gt_u32 vcc, 8, v1
        v_cndmask_b32 v21, v13, v12, vcc
        v_mov_b32 v27, {ML}
        v_add_u32 v56, {WUV}, v60
        v_add_u32 v57, {WUV}, v61
        v_lshlrev_b32 v39, 4, v1
        v_lshl_add_u32 v36, v2, 13, v39
        s_lshl_b32 s75, s{sX8}, 4
        s_add_u32 s75, s75, s{sW}
        s_lshl_b32 s75, s75, 11
        s_add_u32 s75, s75, {SL+S_HC+LOC}
        s_lshl_b32 s{s0}, s{sW}, 8
        s_add_u32 s{s0}, s{s0}, {RED}
        v_lshlrev_b32 v12, 2, v1
        v_add_u32 v37, s{s0}, v12
        s_lshl_b32 s{s0}, s{sX8}, 11
        s_lshl_b32 s{s1}, s{sAi}, 7
        s_add_u32 s{s0}, s{s0}, s{s1}
        s_add_u32 s{s0}, s{s0}, {H3B}
        v_lshlrev_b32 v12, 3, v0
        v_add_u32 v12, s{s0}, v12
        v_cmp_gt_u32 vcc, 16, v0
        v_cndmask_b32 v38, v9, v12, vcc
        s_waitcnt vmcnt(0)
        s_barrier
        ''')
        for s in range(4):
            for T in range(2):
                for q in range(2): e(f'ds_read_b64_tr_b16 {a((s*2+T)*4+2*q,2)}, v{56+T} offset:{s*8192+q*1024}')
        e(f's_cmp_ge_u32 s{sAi}, 10\ns_cbranch_scc1 L_A_NOWO2')
        e(f'''
        v_lshrrev_b32 v12, 2, v1
        v_lshl_add_u32 v12, v2, 3, v12
        v_lshlrev_b32 v12, 7, v12
        v_and_b32 v13, 3, v1
        v_lshl_add_u32 v12, v13, 3, v12
        s_lshl_b32 s{s1}, s{sW}, 14
        s_add_u32 s{s1}, s{s1}, {WO}
        v_add_u32 v12, s{s1}, v12
        v_lshrrev_b32 v13, 3, v1
        v_and_b32 v14, 1, v2
        v_lshl_or_b32 v13, v14, 1, v13
        ''')
        for T in range(4): e(f'v_xor_b32 v14, {T}, v13\nv_lshl_add_u32 v{32+T}, v14, 5, v12')
        for s in range(4):
            for T in range(4):
                for q in range(2): e(f'ds_read_b64_tr_b16 {a(32+(s*4+T)*4+2*q,2)}, v{32+T} offset:{s*4096+q*512}')
        e('L_A_NOWO2:')
        e('s_waitcnt lgkmcnt(0)')
        self.stamp('A.w2rdy')
        e('L_A_REC:')
        e(f'buffer_load_dwordx4 v[64:67], v20, {srd(rWS)}, s68 offen sc1\ns_waitcnt vmcnt(0)')
        self.tagcheck(12, [66])
        e('s_and_b64 vcc, vcc, s[70:71]')
        self.retry('L_A_REC', vregs=(20,), sleep=self.o.get('recsleep',0))
        vD = 128; vAF = 160
        for i in range(8): e(f'buffer_load_dwordx4 {v(vD+4*i,4)}, v22, {srd(rWS)}, s69 offen offset:{i*256} sc1')
        self.stamp('A.rec')
        e('v_mov_b32 v72, v64')
        self.allred('v_max_f32', 72, 74, 3)
        e('v_sub_f32 v64, v64, v72\nv_exp_f32 v64, v64\nv_cvt_pk_bf16_f32 v64, v64, v64\nv_and_b32 v73, 0xffff0000, v64\nv_mul_f32 v73, v73, v65')
        for i in range(8):
            for r in range(4): e(f'v_and_b32_dpp v{vAF+4*i+r}, v64, v{vMk+r} row_newbcast:{i} {DPP}')
        self.allred('v_add_f32', 73, 74, 3)
        e('ds_write2_b32 v21, v72, v73 offset0:0 offset1:4')
        for i in range(8):
            e(f's_waitcnt vmcnt({7-i})')
            e(f'v_mfma_f32_16x16x32_bf16 v[76:79], {v(vAF+4*i,4)}, {v(vD+4*i,4)}, ' + ('0' if i==0 else 'v[76:79]'))
        self.stamp('A.data')
        e('v_cvt_pk_bf16_f32 v74, v76, v77\nv_cvt_pk_bf16_f32 v75, v78, v79\nds_write_b64 v23, v[74:75]\ns_waitcnt lgkmcnt(0)\ns_barrier')
        self.stamp('A.clbar')
        e('ds_read_b128 v[64:67], v27\nds_read_b128 v[68:71], v27 offset:16')
        for s in range(4): e(f'ds_read_b128 {v(80+4*s,4)}, v24 offset:{s*64}')
        fac = ['v_max3_f32 v72, v64, v65, v66', 'v_max_f32 v72, v72, v67'] + [f'v_sub_f32 v{64+r}, v{64+r}, v72' for r in range(4)] + [f'v_exp_f32 v{64+r}, v{64+r}' for r in range(4)]
        fac += ['v_mul_f32 v72, v64, v68'] + [f'v_fmac_f32 v72, v{64+r}, v{68+r}' for r in range(1,4)] + ['v_rcp_f32 v72, v72']
        e('s_waitcnt lgkmcnt(4)')
        for _ in range(4): e(fac.pop(0))
        for s in range(4):
            e(f's_waitcnt lgkmcnt({3-s})')
            for T in range(2):
                e(f'v_mfma_f32_16x16x32_bf16 {v(104+4*T,4)}, {v(80+4*s,4)}, {a((s*2+T)*4,4)}, ' + ('0' if s==0 else v(104+4*T,4)))
                if fac: e(fac.pop(0))
        for x in fac: e(x)
        e('v_pk_mul_f32 v[104:105], v[104:105], v[64:65]\nv_pk_mul_f32 v[108:109], v[108:109], v[64:65]')
        e('v_pk_fma_f32 v[104:105], v[106:107], v[66:67], v[104:105]\nv_pk_fma_f32 v[108:109], v[110:111], v[66:67], v[108:109]')
        e('v_add_f32 v104, v104, v105\nv_add_f32 v108, v108, v109\nv_mul_f32 v104, v104, v72\nv_mul_f32 v108, v108, v72')
        e('v_cvt_pk_bf16_f32 v63, v104, v108\nv_min_u32 v63, -2, v63')
        self.publ('v63', 25)
        self.stamp('A.hc')
        e(f's_cmp_lt_u32 s{sAi}, 10\ns_cbranch_scc1 L_A_C2')
        self.pubg('v63', 25)
        e('s_branch L_END\nL_A_C2:')
        e(f's_and_b32 s75, s75, s{sLM}')
        e('L_A_HC:')
        e(f'buffer_load_dwordx4 v[76:79], v36, {srd(rWS)}, s75 offen sc1')
        e('s_waitcnt vmcnt(0)')
        e('ds_write_b128 v40, v[76:79]')
        self.maxchain(12, range(76,80))
        e('v_cmp_eq_u32 vcc, -1, v12')
        self.retry('L_A_HC', sleep=0, sregs=(75,), late=('v63', 25))
        self.stamp('A.hcin')
        for s in range(4): e(f'ds_read_b128 {v(80+4*s,4)}, v41 offset:{s*64}')
        self.pubg('v63', 25)
        for s in range(4):
            e(f's_waitcnt lgkmcnt({3-s})')
            for T in range(4):
                e(f'v_mfma_f32_16x16x32_bf16 {v(104+4*T,4)}, {v(80+4*s,4)}, {a(32+(s*4+T)*4,4)}, ' + ('0' if s==0 else v(104+4*T,4)))
        for T in range(4): e(f'v_pk_add_f32 {v(104+4*T,2)}, {v(104+4*T,2)}, {v(106+4*T,2)}')
        for T in range(4): e(f'v_add_f32 v{104+4*T}, v{104+4*T}, v{105+4*T}')
        e('ds_write2_b32 v37, v104, v108 offset0:0 offset1:16\nds_write2_b32 v37, v112, v116 offset0:32 offset1:48\ns_waitcnt lgkmcnt(0)\ns_barrier')
        e(f's_cmp_lg_u32 s{sW}, 0\ns_cbranch_scc1 L_END')
        self.red_final(RED, 128, 39, True)
        self.pub('v[128:129]', 38)
        self.stamp('A.h3')
        e('s_branch L_END')

    def role_T(self):
        e = self.e
        MX = QB; LX = QB+512; PB = QB+1024
        sT, sF, sG, s0, s1, s2_ = 72, 73, 74, 63, 64, 65
        e('L_T:')
        if self.o.get('noT'): e('s_branch L_END')
        e(f's_load_dword s{sE}, s[{pWS}:{pWS+1}], {EPOCH}')
        e(f'''
        s_lshl_b32 s{sT}, s{sX8}, 4
        s_add_u32 s{sT}, s{sT}, s{sR}
        s_lshl_b32 s66, s{sT}, 11
        s_add_u32 s66, s66, {SL}
        s_add_u32 s71, s66, 256
        s_cmp_eq_u32 s{sW}, 0
        s_cselect_b32 s66, s66, {WSSZ}
        s_add_u32 s70, s66, {LOC}
        v_mov_b32 v16, -1
        v_mov_b32 v17, -1
        v_mov_b32 v18, -1
        v_mov_b32 v19, -1
        v_lshlrev_b32 v12, 4, v1
        v_lshl_add_u32 v12, v2, 20, v12
        v_cmp_gt_u32 vcc, 32, v0
        v_cndmask_b32 v12, v9, v12, vcc
        buffer_store_dwordx4 v[16:19], v12, {srd(rWS)}, s66 offen sc1
        s_sub_u32 s{s0}, s{sT}, 108
        s_cmp_ge_u32 s{s0}, 8
        s_cbranch_scc1 L_T_NOH3
        buffer_store_dwordx4 v[16:19], v3, {srd(rWS)}, s66 offen offset:512 sc1
        buffer_store_dwordx4 v[16:19], v3, {srd(rWS)}, s70 offen offset:512 sc1
        buffer_store_dwordx4 v[16:19], v12, {srd(rWS)}, s66 offen offset:1536 sc1
        L_T_NOH3:
        s_lshl_b32 s{s0}, s{sT}, 9
        s_add_u32 s{s0}, s{s0}, {QP+LOC}
        s_cmp_eq_u32 s{sW}, 1
        s_cselect_b32 s{s0}, s{s0}, {WSSZ}
        v_cmp_gt_u32 vcc, 32, v0
        v_cndmask_b32 v12, v9, v3, vcc
        buffer_load_dwordx4 v[200:203], v12, {srd(rWS)}, s{s0} offen nt
        ''')
        nwq = self.o.get('t_wq', 5)
        e(f's_add_u32 s61, s61, {(10-nwq)*4*32768}\ns_lshl_b32 s62, s{sW}, 13\ns_add_u32 m0, s62, {QB}')
        for k in range(nwq):
            e(f'buffer_load_dwordx4 v8, {srd(rA)}, s61 offen nt lds')
            if k < nwq-1: e(f's_add_u32 s61, s61, {4*32768}')
        nuk = self.o.get('t_wuk', 0)
        if nuk: self.wuk_setup(sR, rA)
        if 0 < nuk < 8: e(f's_mov_b32 s68, {(8-nuk)*32768}')
        for k in range(8-nuk, 8): self.wuk_dma(k, rA, QB)
        e(f's_lshl_b32 s{s0}, s{sT}, 17')
        self.mk_srd(rB, pCKV, s0, 16777216)
        e(f'v_lshl_add_u32 v52, v2, 10, v5\nv_xor_b32 v53, 0x80, v52\ns_lshl_b32 s68, s{sW}, 15\ns_lshl_b32 s69, s{sW}, 13')
        def dma(n):
            c, i = n >> 3, n & 7
            if self.o.get('rowmajor'):
                e(f's_add_u32 m0, s69, {c*32768+i*1024}\ns_add_u32 s{sTMP}, s68, {n*1024}')
                e(f'buffer_load_dwordx4 v3, {srd(rB)}, s{sTMP} offen nt lds')
                return
            e(f's_add_u32 m0, s69, {c*32768+i*1024}\ns_add_u32 s{sTMP}, s68, {i*4096+c*256}')
            e(f'buffer_load_dwordx4 v{52+(i&1)}, {srd(rB)}, s{sTMP} offen nt lds')
        n0 = self.o.get('n0', 2)
        thr = dict(self.o.get('t_throttle', []))
        for n in range(n0):
            dma(n)
            if n in thr: e(f's_waitcnt vmcnt({thr[n]})')
        e(f'''
        s_cmp_lg_u32 s{sW}, 0
        s_cbranch_scc1 L_T_NOCNT
        s_waitcnt vmcnt({1+nuk+nwq+n0}) lgkmcnt(0)
        ''')
        self.tags()
        self.stamp('T.rst')
        e(f'''
        s_lshl_b32 s79, s{sX8}, 5
        s_add_u32 s79, s79, s{sR}
        s_lshl_b32 s79, s79, 2
        s_add_u32 s79, s79, {RDY}
        s_mov_b32 s78, s{sT0}
        s_atomic_swap s78, s[{pWS}:{pWS+1}], s79
        L_T_NOCNT:
        v_cmp_gt_u32 vcc, 16, v0
        v_cndmask_b32 v12, v9, v3, vcc
        buffer_load_dwordx4 v[204:207], v12, {srd(rWS)}, s70 offen sc1
        ''')
        vm = [('d',n) for n in range(n0)] + ['pt']
        vKa, vQa, vVa = 24, 28, 32
        vQW = 36
        vPS, vRS, vMW, vMR, vPW, vPR, vQL, vLR = 40, 41, 42, 43, 44, 45, 46, 47
        pre = []
        pre.append(f'v_and_b32 v12, 7, v1\nv_lshlrev_b32 v12, 5, v12\nv_lshlrev_b32 v13, 10, v1\nv_lshlrev_b32 v14, 8, v1\nv_add_u32 v14, s69, v14\nv_add_u32 v13, {QB}, v13')
        for s3 in range(4):
            pre.append(f'v_add_u32 v15, {s3*64}, v11\nv_xor_b32 v15, v15, v12\nv_add_u32 v{vKa+s3}, v14, v15\nv_add_u32 v{vQa+s3}, v13, v15')
        pre.append(f'''
        v_lshrrev_b32 v13, 2, v0
        v_and_b32 v15, 7, v13
        v_lshlrev_b32 v13, 8, v13
        v_and_b32 v12, 3, v1
        v_lshl_add_u32 v13, v12, 3, v13
        s_lshl_b32 s{s2_}, s{sW}, 1
        v_xor_b32 v15, s{s2_}, v15
        v_lshl_add_u32 v{vVa}, v15, 5, v13
        v_xor_b32 v15, 1, v15
        v_lshl_add_u32 v{vVa+1}, v15, 5, v13
        v_add_u32 v{vVa+2}, 0x10000, v{vVa}
        v_add_u32 v{vVa+3}, 0x10000, v{vVa+1}
        ''')
        pre.append(f'''
        v_lshlrev_b32 v{vQL}, 11, v2
        v_lshl_add_u32 v{vQL}, v1, 4, v{vQL}
        s_lshl_b32 s{s2_}, s{sW}, 13
        s_add_u32 s{s2_}, s{s2_}, {QB}
        v_add_u32 v{vQW}, s{s2_}, v52
        v_add_u32 v{vQW+1}, s{s2_}, v53
        s_lshl_b32 s76, s{sW}, 16
        s_add_u32 s76, s76, {SL+S_QL}
        s_add_u32 s77, s76, 32768
        s_lshl_b32 s{s0}, s{sW}, 1
        s_cmp_eq_u32 s{s0}, s{sX8}
        s_cselect_b32 s{s1}, {LOC}, 0
        s_add_u32 s76, s76, s{s1}
        s_add_u32 s{s0}, s{s0}, 1
        s_cmp_eq_u32 s{s0}, s{sX8}
        s_cselect_b32 s{s1}, {LOC}, 0
        s_add_u32 s77, s77, s{s1}
        ''')
        pre.append(f'''
        v_lshlrev_b32 v12, 19, v2
        v_lshl_add_u32 v12, v1, 4, v12
        s_lshl_b32 s{s2_}, s{sT}, 8
        s_add_u32 s{s2_}, s{s2_}, s68
        s_add_u32 s{s2_}, s{s2_}, {PART}
        v_add_u32 v{vPS}, s{s2_}, v12
        s_lshl_b32 s{s2_}, s{sT}, 11
        s_lshl_b32 s{s0}, s{sW}, 9
        s_add_u32 s{s2_}, s{s2_}, s{s0}
        s_add_u32 s{s2_}, s{s2_}, {REC}
        v_add_u32 v12, s{s2_}, v3
        v_cmp_gt_u32 vcc, 32, v0
        v_cndmask_b32 v{vRS}, v9, v12, vcc
        ''')
        pre.append(f'''
        v_lshrrev_b32 v12, 1, v2
        v_lshl_add_u32 v12, v12, 4, v1
        v_lshlrev_b32 v12, 4, v12
        s_lshl_b32 s{s2_}, s{sW}, 2
        s_add_u32 s{s2_}, s{s2_}, {MX}
        v_add_u32 v{vMW}, s{s2_}, v12
        v_lshlrev_b32 v12, 4, v1
        v_add_u32 v{vMR}, {MX}, v12
        s_lshl_b32 s{s2_}, s{sW}, 11
        s_add_u32 s{s2_}, s{s2_}, {PB}
        v_add_u32 v{vPW}, s{s2_}, v3
        v_add_u32 v{vPR}, {PB}, v3
        v_and_b32 v12, 31, v0
        v_lshlrev_b32 v12, 4, v12
        v_add_u32 v{vLR}, {LX}, v12
        s_mov_b32 s{sC}, 0x3e0293ee
        s_and_b32 s{s0}, s{sW}, 1
        s_mul_i32 s{s0}, s{s0}, 768
        v_add_u32 v12, s{s0}, v3
        s_cmp_lt_u32 s{sT}, 108
        s_cselect_b32 s{s1}, 6, 1
        s_lshl_b32 s{s1}, s{s1}, 8
        s_add_u32 s{s0}, s{s0}, 768
        s_min_u32 s{s1}, s{s1}, s{s0}
        v_cmp_gt_u32 vcc, s{s1}, v12
        v_cndmask_b32 v20, v9, v12, vcc
        s_lshr_b32 s{s0}, s{sW}, 1
        s_lshl_b32 s{s0}, s{s0}, 20
        s_add_u32 s71, s71, s{s0}
        s_cmp_eq_u32 s{sW}, 2
        s_cselect_b32 s{s0}, 16, 0
        v_cmp_gt_u32 vcc, s{s0}, v0
        v_cndmask_b32 v21, v9, v3, vcc
        s_lshr_b32 s{sG}, s{sR}, 2
        s_lshl_b32 s{sG}, s{sG}, 3
        s_add_u32 s{sG}, s{sG}, s{sX8}
        s_and_b32 s{sF}, s{sR}, 3
        s_lshl_b32 s{s0}, s{sG}, 2
        s_add_u32 s{sF}, s{sF}, s{s0}
        ''')
        vQ = 128
        def qloads():
            for i in range(8):
                e(f's_add_u32 s{sTMP}, s{76+(i>>2)}, {(i&3)*8192}')
                e(f'buffer_load_dwordx4 {v(vQ+4*i,4)}, v{vQL}, {srd(rWS)}, s{sTMP} offen sc1')
        kdone = set()
        def kreads(c):
            if c == 2:
                for s3 in range(4): e(f'v_add_u32 v{vKa+s3}, 0x10000, v{vKa+s3}')
            for s3 in range(4):
                for kt in range(2):
                    e(f'ds_read_b128 {a(((4*c+s3)*2+kt)*4,4)}, v{vKa+s3} offset:{(c&1)*32768+kt*4096}')
            kdone.add(c)
        def younger(item): return len(vm) - 1 - vm.index(item)
        qpos = self.o.get('qpos', 24); npre = self.o.get('npre', 4)
        klag = self.o.get('klag', 12)
        for n in range(n0, 33):
            if n == npre:
                for x in pre: e(x)
            if n == qpos - self.o.get('rdylead', 8):
                e(f's_lshl_b32 s75, s{sW}, 8\ns_add_u32 s75, s75, {RDY}')
                e(f's_load_dwordx16 s[8:23], s[{pWS}:{pWS+1}], s75\ns_load_dwordx8 s[24:31], s[{pWS}:{pWS+1}], s75 offset:128\ns_load_dwordx4 s[48:51], s[{pWS}:{pWS+1}], s75 offset:160\ns_load_dwordx4 s[56:59], s[{pWS}:{pWS+1}], s75 offset:176')
            if n == qpos:
                e('s_waitcnt lgkmcnt(0)')
                self.tags()
                prs = list(range(12,32,2)) + [48,50,56,58]
                e('s_and_b64 s[60:61], s[8:9], s[10:11]\ns_or_b64 s[66:67], s[8:9], s[10:11]')
                for p in prs: e(f's_and_b64 s[60:61], s[60:61], s[{p}:{p+1}]\ns_or_b64 s[66:67], s[66:67], s[{p}:{p+1}]')
                e('s_load_dwordx16 s[8:23], s[0:1], 0\ns_load_dwordx8 s[24:31], s[0:1], 64')
                e(f's_and_b32 s60, s60, s61\ns_or_b32 s66, s66, s67\ns_xor_b32 s60, s60, s{sT0}\ns_xor_b32 s66, s66, s{sT0}\ns_or_b32 s60, s60, s66')
                e('s_cbranch_scc0 L_T_RDYOK')
                e('v_and_b32 v12, 1, v2\nv_lshlrev_b32 v12, 7, v12\nv_lshl_add_u32 v12, v1, 2, v12')
                e('L_T_RDY:')
                self.timeout()
                e(f'buffer_load_dword v13, v12, {srd(rWS)}, s75 offen sc1\ns_waitcnt vmcnt(0)\nv_cmp_ne_u32 vcc, s{sT0}, v13\ns_cbranch_vccnz L_T_RDY')
                e('L_T_RDYOK:')
                self.stamp('T.qiss')
                qloads(); vm += [('q',i) for i in range(8)]
            if n < 32:
                dma(n); vm.append(('d',n))
                if n in thr: e(f's_waitcnt vmcnt({thr[n]})')
            for c in range(3):
                if c not in kdone and n >= npre and ('d',8*c+7) in vm and younger(('d',8*c+7)) >= klag and (c == 0 or c-1 in kdone):
                    e(f's_waitcnt vmcnt({younger(("d",8*c+7))})'); kreads(c)
        self.stamp('T.issued')
        if self.o.get('tonly'):
            e('s_waitcnt vmcnt(0)'); self.stamp('T.ckv0'); e('s_branch L_END')
        for c in range(4):
            if c not in kdone and vm.index(('d',8*c+7)) < vm.index(('q',0)):
                e(f's_waitcnt vmcnt({younger(("d",8*c+7))})'); kreads(c)
        cpre = max(c for c in range(4) if vm.index(('d',8*c+7)) < vm.index(('q',0)))
        e(f's_waitcnt vmcnt({younger(("q",7))})')
        e('L_T_Q:')
        self.maxchain(12, range(vQ, vQ+32))
        e('v_cmp_eq_u32 vcc, -1, v12\ns_cbranch_vccz L_T_QOK')
        self.fb((), (76, 77)); e(f's_sleep {self.o.get("qsleep",1)}')
        qloads()
        e('s_waitcnt vmcnt(0)\ns_branch L_T_Q')
        e('L_T_QOK:')
        self.stamp('T.qin')
        for i in range(8): e(f'ds_write_b128 v{vQW+(i>>2)}, {v(vQ+4*i,4)} offset:{(i>>2)*4096+(i&3)*256}')
        e('s_waitcnt lgkmcnt(0)\ns_barrier')
        self.stamp('T.Qbar')
        vm.append('lr')
        e(f'buffer_store_dwordx4 v[16:19], v20, {srd(rWS)}, s71 offen sc1')
        vS = 48
        def qread(s, ht): e(f'ds_read_b128 {v(vQ+(s*2+ht)*4,4)}, v{vQa+(s&3)} offset:{(s>>2)*256+ht*16384}')
        vlist = [(c,T2,ks,q) for c in range(4) for ks in range(4) for T2 in range(2) for q in range(2)]
        def vread(i):
            c,T2,ks,q = vlist[i]
            e(f'ds_read_b64_tr_b16 {a(128+(ks*8+2*c+T2)*4+2*q,2)}, v{vVa+T2+2*(c>>1)} offset:{(c&1)*32768+ks*8192+q*4096}')
        nvpre = 16*(cpre+1)
        D = 3
        for s in range(D): qread(s,0); qread(s,1)
        seq = [('q',s,h) for s in range(D) for h in range(2)]
        vi = 0
        vper = self.o.get('vper', 3)
        for s in range(16):
            c = s >> 2
            if s % 4 == 2 and c+1 < 4 and c+1 not in kdone:
                e(f's_waitcnt vmcnt({younger(("d",8*(c+1)+7))})')
                if c+1 == 3: self.stamp('T.ckv')
                kreads(c+1); seq += [('k',c+1,i) for i in range(8)]
            need = [i for i,x in enumerate(seq) if (x[0]=='q' and x[1]==s) or (x[0]=='k' and x[1]==c and x[2] <= 2*(s&3)+1)]
            e(f's_waitcnt lgkmcnt({min(15,len(seq)-1-max(need))})')
            if s == 15: e('s_barrier')
            grp = []
            if s+D < 16: grp += [('q',s+D,0),('q',s+D,1)]
            for _ in range(vper if s+D < 16 else 4):
                if vi < (nvpre if s < 15 else 64): grp.append(('v',vi)); vi += 1
            for m,(kt,ht) in enumerate([(0,0),(0,1),(1,0),(1,1)]):
                cc = '0' if s == 0 else v(vS+(kt*2+ht)*4,4)
                e(f'v_mfma_f32_16x16x32_bf16 {v(vS+(kt*2+ht)*4,4)}, {a((s*2+kt)*4,4)}, {v(vQ+(s*2+ht)*4,4)}, {cc}')
                take = grp[m::4]
                for x in take:
                    seq.append(x)
                    if x[0]=='q': qread(x[1],x[2])
                    else: vread(x[1])
        self.stamp('T.QK')
        for _ in range(4):
            if vi < 64: vread(vi); vi += 1
        for ht in range(2):
            r0 = vS+ht*4; r1 = vS+8+ht*4
            e(f'v_max3_f32 v{64+ht}, v{r0}, v{r0+1}, v{r0+2}\nv_max3_f32 v{64+ht}, v{64+ht}, v{r0+3}, v{r1}')
        for ht in range(2):
            r1 = vS+8+ht*4
            e(f'v_max3_f32 v{64+ht}, v{64+ht}, v{r1+1}, v{r1+2}\nv_max_f32 v{64+ht}, v{64+ht}, v{r1+3}')
        e('v_permlane32_swap_b32 v64, v65\nv_max_f32 v64, v64, v65\nv_mov_b32 v65, v64\nv_permlane16_swap_b32 v64, v65\nv_max_f32 v64, v64, v65')
        e(f'ds_write_b32 v{vMW}, v64\ns_waitcnt lgkmcnt(0)\ns_barrier')
        e(f'ds_read_b128 v[68:71], v{vMR}\nds_read_b128 v[72:75], v{vMR} offset:256')
        k0 = 0
        while vi < 64 and k0 < 12: vread(vi); vi += 1; k0 += 1
        e(f's_waitcnt lgkmcnt({k0})')
        e('v_max3_f32 v66, v68, v69, v70\nv_max3_f32 v67, v72, v73, v74\nv_max_f32 v66, v66, v71\nv_max_f32 v67, v67, v75')
        e(f'v_mul_f32 v66, s{sC}, v66\nv_mul_f32 v67, s{sC}, v67')
        vP = 76
        for ht in range(2):
            for kt in range(2):
                b = vS+(kt*2+ht)*4
                for r in range(4): e(f'v_fma_f32 v{b+r}, v{b+r}, s{sC}, -v{66+ht}')
                for r in range(4):
                    e(f'v_exp_f32 v{b+r}, v{b+r}')
                    if vi < 64: vread(vi); vi += 1
            for kt in range(2):
                b = vS+(kt*2+ht)*4
                e(f'v_cvt_pk_bf16_f32 v{vP+ht*4+kt*2}, v{b}, v{b+1}\nv_cvt_pk_bf16_f32 v{vP+ht*4+kt*2+1}, v{b+2}, v{b+3}')
            e(f'ds_write_b128 v{vPW}, {v(vP+ht*4,4)} offset:{ht*1024}')
        while vi < 64: vread(vi); vi += 1
        e('s_waitcnt lgkmcnt(0)\ns_barrier')
        self.stamp('T.Pbar')
        vPF = 88; vAcc = 128; vO = 192
        order = [(ks,0) for ks in range(4)] + [(ks,1) for ks in range(4)]
        for ks,ht in order: e(f'ds_read_b128 {v(vPF+(ks*2+ht)*4,4)}, v{vPR} offset:{(ks*2+ht)*1024}')
        lsum = []
        for ht in range(2):
            r0 = vS+ht*4; r1 = vS+8+ht*4
            lsum += [f'v_pk_add_f32 {v(r0,2)}, {v(r0,2)}, {v(r0+2,2)}', f'v_pk_add_f32 {v(r1,2)}, {v(r1,2)}, {v(r1+2,2)}']
        for ht in range(2):
            r0 = vS+ht*4; r1 = vS+8+ht*4
            lsum += [f'v_pk_add_f32 {v(r0,2)}, {v(r0,2)}, {v(r1,2)}']
        lsum += [f'v_add_f32 v64, v{vS}, v{vS+1}', f'v_add_f32 v65, v{vS+4}, v{vS+5}']
        for x in lsum: e(x)
        tail = ['v_permlane32_swap_b32 v64, v65','v_add_f32 v64, v64, v65','v_mov_b32 v65, v64','s_nop 0','v_permlane16_swap_b32 v64, v65','v_add_f32 v64, v64, v65',
                f'ds_write_b32 v{vMW}, v64 offset:512', f'v_cmp_gt_u32 vcc, 16, v0', f'v_mov_b32 v86, s{sT0}', f'v_mov_b32 v87, s{sT1}', 'v_cndmask_b32 v84, v67, v66, vcc']
        def outops(ht):
            ops = []
            for r in range(4):
                o = vO + (ht*4+r)*4
                for k in range(4):
                    ops.append(f'v_cvt_pk_bf16_f32 v{o+k}, v{vAcc+(ht*8+2*k)*4+r}, v{vAcc+(ht*8+2*k+1)*4+r}')
                ops.append(f's_mov_b32 s{sTMP}, {(16*ht+r)*131072}\nbuffer_store_dwordx4 {v(o,4)}, v{vPS}, {srd(rWS)}, s{sTMP} offen sc1')
            return ops
        pend = list(tail)
        for n,(ks,ht) in enumerate(order):
            if n <= 1: e(f's_waitcnt lgkmcnt({7-n})')
            if n == 2: e('s_waitcnt lgkmcnt(0)\ns_barrier'); e(f'ds_read_b128 v[68:71], v{vLR}')
            if n == 4: e('s_waitcnt lgkmcnt(0)'); pend = ['v_pk_add_f32 v[68:69], v[68:69], v[70:71]', 'v_add_f32 v85, v68, v69'] + [None]*4 + outops(0)
            for T in range(8):
                c = '0' if ks == 0 else v(vAcc+(ht*8+T)*4,4)
                e(f'v_mfma_f32_16x16x32_bf16 {v(vAcc+(ht*8+T)*4,4)}, {v(vPF+(ks*2+ht)*4,4)}, {a(128+(ks*8+T)*4,4)}, {c}')
                if pend:
                    x = pend.pop(0)
                    if x: e(x)
            assert not (n == 1 and pend)
        for x in pend:
            if x: e(x)
        for x in outops(1): e(x)
        self.stamp('T.PVst')
        e('s_waitcnt vmcnt(0)')
        self.pub('v[84:87]', vRS)
        self.stamp('T.rec')
        e(f'buffer_load_dwordx4 v[204:207], v21, {srd(rWS)}, s71 offen sc1')
        self.mk_srd(rC, pX, None, 1280)
        e(f's_cmp_ge_u32 s{sG}, 27\ns_cbranch_scc1 L_FIN')
        self.role_F(sF)

    def role_F(self, sF):
        e = self.e
        W1 = 0; W2 = 20480; HB = 40960; DUM = HB+1280; ST = HB+1536
        s0,s1,s2_,sB = 63,64,65,66
        e(f's_lshl_b32 s{s0}, s{sF}, 5')
        self.mk_srd(rA, pW1, s0, 2211840)
        e(f's_mul_i32 s{s0}, s{sF}, 20480')
        self.mk_srd(rB, pW2, s0, 2211840)
        e(f'''
        v_lshrrev_b32 v4, 3, v0
        v_and_b32 v4, 3, v4
        v_lshlrev_b32 v4, 3, v4
        v_lshrrev_b32 v5, 5, v0
        v_lshl_add_u32 v4, v5, 2, v4
        v_bfe_u32 v5, v0, 1, 2
        v_add_u32 v4, v4, v5
        v_mul_u32_u24 v4, 3456, v4
        v_and_b32 v5, 1, v0
        v_lshl_add_u32 v4, v5, 4, v4
        s_and_b32 s{s2_}, s{sF}, 3
        s_mul_i32 s{s2_}, s{s2_}, {5 if self.o.get('rot',1) else 0}
        s_add_u32 s{s2_}, s{s2_}, s{sW}
        s_lshl_b32 s{s1}, s{sW}, 10
        ''')
        w1f = self.o.get('w1flag','nt')
        def w1dma(k):
            e(f's_lshl_b32 s{s0}, s{s2_}, 10\ns_add_u32 m0, s{s0}, {W1}\ns_mul_i32 s{s0}, s{s2_}, 110592')
            e(f'buffer_load_dwordx4 v4, {srd(rA)}, s{s0} offen {w1f} lds')
            if k < 4: e(f's_add_u32 s{s2_}, s{s2_}, 4\ns_cmp_ge_u32 s{s2_}, 20\ns_cselect_b32 s{s0}, 20, 0\ns_sub_u32 s{s2_}, s{s2_}, s{s0}')
        def w2dma(k):
            e(f's_add_u32 m0, s{s1}, {W2+k*4096}\ns_add_u32 s{s0}, s{s1}, {k*4096}')
            e(f'buffer_load_dwordx4 v3, {srd(rB)}, s{s0} offen nt lds')
        w1dma(0)
        for k in range(5): w2dma(k)
        for k in range(1,5): w1dma(k)
        e(f'''
        s_mul_i32 s{sB}, s{sW}, 3
        s_cmp_eq_u32 s{sW}, 3
        s_cselect_b32 s{sB}, 8, s{sB}
        s_lshl_b32 s{sB}, s{sB}, 7
        v_and_b32 v5, 7, v1
        v_lshlrev_b32 v5, 4, v5
        v_and_b32 v6, 1, v2
        v_lshl_add_u32 v6, v6, 3, v5
        v_lshrrev_b32 v7, 1, v2
        v_lshl_add_u32 v7, v7, 7, v6
        v_add_u32 v7, s{sB}, v7
        v_add_u32 v8, 256, v6
        v_add_u32 v8, s{sB}, v8
        s_cmp_lt_u32 s{sW}, 2
        s_cselect_b32 s{s0}, 32, 0
        v_cmp_gt_u32 vcc, s{s0}, v0
        v_mov_b32 v10, {DUM-HB}
        v_cndmask_b32 v10, v10, v8, vcc
        v_cndmask_b32 v8, v9, v8, vcc
        v_cmp_gt_u32 vcc, 8, v1
        v_cndmask_b32 v12, v9, v7, vcc
        v_cndmask_b32 v13, v9, v8, vcc
        buffer_load_dwordx2 v[16:17], v12, {srd(rC)}, 0 offen
        buffer_load_dwordx2 v[18:19], v13, {srd(rC)}, 0 offen
        ''')
        e(f's_lshl_b32 s{s0}, s{sF}, 5')
        self.mk_srd(rC, pB1, s0, 3456)
        e(f'v_lshlrev_b32 v12, 3, v2\nbuffer_load_dwordx2 v[20:21], v12, {srd(rC)}, 0 offen')
        e(f'''
        v_lshrrev_b32 v12, 3, v0
        v_lshl_add_u32 v14, v12, 11, v5
        v_add_u32 v14, s{sB}, v14
        v_cmp_eq_u32 vcc, s{sX8}, v12
        v_or_b32 v12, s{sLOC}, v14
        v_cndmask_b32 v14, v14, v12, vcc
        v_and_b32 v14, s{sLM}, v14
        s_cmp_lt_u32 s{sW}, 2
        s_cselect_b32 s{s0}, 0, {OOB}
        v_max_u32 v15, s{s0}, v14
        s_mov_b32 s{s2_}, {H3B}
        ''')
        vAlo, vAhi, vC0, vC1 = 24, 28, 32, 36
        self.ident_masks(vAlo, 0x3f80, 0x3f800000, 0, 8, 22)
        e(f'''
        v_lshl_add_u32 v22, v1, 6, v11
        s_mul_i32 s{s0}, s{sW}, 320
        s_lshl_b32 s{s1}, s{sF}, 11
        s_add_u32 s{s1}, s{s0}, s{s1}
        s_add_u32 s{s1}, s{s1}, {SL+S_H4}
        v_add_u32 v22, s{s1}, v22
        v_cmp_gt_u32 vcc, 5, v1
        v_cndmask_b32 v40, v9, v22, vcc
        v_lshlrev_b32 v41, 3, v0
        v_add_u32 v42, {HB}, v11
        v_lshrrev_b32 v22, 2, v0
        v_mul_u32_u24 v22, 1280, v22
        v_and_b32 v23, 3, v1
        v_lshl_add_u32 v22, v23, 4, v22
        s_add_u32 s{s0}, s{s0}, {W2}
        v_add_u32 v43, s{s0}, v22
        s_lshl_b32 s{s0}, s{sW}, 2
        v_lshrrev_b32 v22, 5, v0
        v_lshlrev_b32 v22, 4, v22
        v_add_u32 v22, s{s0}, v22
        v_add_u32 v44, {ST}, v22
        v_mov_b32 v45, {ST}
        v_mov_b32 v48, 0x3f803f80
        v_mov_b32 v49, 0x3f803f80
        v_mov_b32 v50, 0x3f803f80
        v_mov_b32 v51, 0x3f803f80
        s_waitcnt vmcnt(0)
        s_barrier
        ''')
        self.stamp('F.land')
        for s in range(20):
            for q in range(2): e(f'ds_read_b64_tr_b16 {a(s*4+2*q,2)}, v41 offset:{W1+s*1024+q*512}')
        for P in range(5):
            for hb in range(2): e(f'ds_read_b64_tr_b16 {a(80+P*4+2*hb,2)}, v43 offset:{P*64+hb*8}')
        for i,(dst,src) in enumerate([(vC0,16),(vC1,18),(52,20)]):
            e(f'v_lshlrev_b32 v{dst}, 16, v{src}\nv_and_b32 v{dst+1}, 0xffff0000, v{src}\nv_lshlrev_b32 v{dst+2}, 16, v{src+1}\nv_and_b32 v{dst+3}, 0xffff0000, v{src+1}')
        for P in range(5):
            e(f's_mov_b32 s{68+2*P}, {0x00010001<<P}\ns_mov_b32 s{69+2*P}, {0x00010001<<P}')
        e('s_waitcnt lgkmcnt(10)')
        for s in range(20):
            e(f'v_mfma_f32_16x16x32_bf16 v[56:59], {a(s*4,4)}, v[48:51], ' + ('0' if s == 0 else 'v[56:59]'))
        e('s_waitcnt lgkmcnt(0)')
        self.stamp('F.prep')
        vH = 64
        e('L_F_POLL:')
        e(f'buffer_load_dwordx4 {v(vH,4)}, v14, {srd(rWS)}, s{s2_} offen sc1')
        e(f'buffer_load_dwordx4 {v(vH+4,4)}, v14, {srd(rWS)}, s{s2_} offen offset:128 sc1')
        e(f'buffer_load_dwordx4 {v(vH+8,4)}, v15, {srd(rWS)}, s{s2_} offen offset:256 sc1')
        e('s_waitcnt vmcnt(0)')
        e(f'v_mfma_f32_16x16x32_bf16 v[76:79], {v(vAlo,4)}, {v(vH,4)}, {v(vC0,4)}')
        e(f'v_mfma_f32_16x16x32_bf16 v[80:83], {v(vAlo,4)}, {v(vH+8,4)}, {v(vC1,4)}')
        e(f'v_mfma_f32_16x16x32_bf16 v[76:79], {v(vAhi,4)}, {v(vH+4,4)}, v[76:79]')
        self.maxchain(22, range(vH, vH+12))
        e('v_cmp_eq_u32 vcc, -1, v22')
        self.retry('L_F_POLL', vregs=(14,15), sleep=self.o.get('fsleep',0))
        self.stamp('F.h3b')
        for r in range(4): e(f'v_add_f32_dpp v{80+r}, v{80+r}, v{80+r} row_ror:8 {DPP}')
        for r in range(4): e(f'v_add_f32_dpp v{76+r}, v{76+r}, v{76+r} row_ror:8 {DPP}')
        e('v_cvt_pk_bf16_f32 v86, v80, v81\nv_cvt_pk_bf16_f32 v87, v82, v83')
        e(f'ds_write_b64 v10, v[86:87] offset:{HB}')
        e('v_cvt_pk_bf16_f32 v84, v76, v77\nv_cvt_pk_bf16_f32 v85, v78, v79')
        e(f'ds_write_b64 v7, v[84:85] offset:{HB}')
        e('v_pk_add_f32 v[88:89], v[76:77], v[78:79]\nv_pk_add_f32 v[90:91], v[80:81], v[82:83]\nv_pk_mul_f32 v[92:93], v[76:77], v[76:77]')
        e('v_pk_fma_f32 v[92:93], v[78:79], v[78:79], v[92:93]\nv_pk_add_f32 v[88:89], v[88:89], v[90:91]')
        e('s_waitcnt lgkmcnt(0)\ns_barrier')
        self.stamp('F.hbar')
        vB = 128
        NP = 12
        for s in range(NP): e(f'ds_read_b128 {v(vB+4*s,4)}, v42 offset:{s*64}')
        st = ['v_pk_fma_f32 v[92:93], v[80:81], v[80:81], v[92:93]', 'v_add_f32 v88, v88, v89', 'v_pk_fma_f32 v[92:93], v[82:83], v[82:83], v[92:93]', 'v_add_f32 v92, v92, v93',
              None, 'v_permlane32_swap_b32 v88, v92', 'v_add_f32 v88, v88, v92', 'v_mov_b32 v92, v88', None, 'v_permlane16_swap_b32 v88, v92', 'v_add_f32 v88, v88, v92', None]
        for p in ['quad_perm:[1,0,3,2]','quad_perm:[2,3,0,1]','row_half_mirror']: st += [f'v_add_f32_dpp v88, v88, v88 {p} {DPP}', None]
        st[-1] = 'W'
        seq = [('b',s) for s in range(NP)]
        wpos = None
        fin = ['v_pk_add_f32 v[100:101], v[100:101], v[102:103]', 'v_pk_add_f32 v[104:105], v[104:105], v[106:107]', 'v_add_f32 v100, v100, v101', 'v_add_f32 v104, v104, v105',
               'v_mul_f32 v100, 0x3acccccd, v100', 'v_mul_f32 v104, 0x3acccccd, v104', 'v_fma_f32 v104, -v100, v100, v104', 'v_max_f32 v104, 0, v104',
               'v_add_f32 v104, 0x3727c5ac, v104', 'v_rsq_f32 v104, v104', 'v_mul_f32 v100, v100, v104'] + [f'v_fma_f32 v{52+r}, -v100, v{56+r}, v{52+r}' for r in range(4)]
        for s in range(20):
            last = seq.index(('b',s))
            e(f's_waitcnt lgkmcnt({len(seq)-1-last})')
            acc = 96 if s % 2 == 0 else 112
            e(f'v_mfma_f32_16x16x32_bf16 {v(acc,4)}, {a(s*4,4)}, {v(vB+4*s,4)}, ' + ('0' if s < 2 else v(acc,4)))
            if s+NP < 20:
                e(f'ds_read_b128 {v(vB+4*(s+NP),4)}, v42 offset:{(s+NP)*64}'); seq.append(('b',s+NP))
            for _ in range(2):
                if st:
                    x = st.pop(0)
                    if x == 'W': e('ds_write_b32 v44, v88'); seq.append(('w',0)); wpos = s
                    elif x: e(x)
            if wpos is not None and s == wpos + 3:
                e('s_waitcnt lgkmcnt(0)\ns_barrier\nds_read_b128 v[100:103], v45\nds_read_b128 v[104:107], v45 offset:16'); seq += [('s',0),('s',1)]
            if wpos is not None and s == wpos + 7: e('s_waitcnt lgkmcnt(0)')
            if wpos is not None and s >= wpos + 7:
                for _ in range(2):
                    if fin: e(fin.pop(0))
        assert wpos + 7 <= 19
        for x in fin: e(x)
        self.stamp('F.f1')
        e('v_pk_add_f32 v[96:97], v[96:97], v[112:113]\nv_pk_add_f32 v[98:99], v[98:99], v[114:115]')
        for r in range(4): e(f'v_fma_f32 v{96+r}, v{96+r}, v104, v{52+r}')
        for r in range(4): e(f'v_max_f32 v{96+r}, 0, v{96+r}')
        e('v_pk_mul_f32 v[96:97], v[96:97], v[96:97]\nv_pk_mul_f32 v[98:99], v[98:99], v[98:99]')
        e('v_cvt_pk_bf16_f32 v108, v96, v97\nv_cvt_pk_bf16_f32 v109, v98, v99')
        def cm(P): e(f'v_cndmask_b32 v{210+2*P}, 0, v108, s[{68+2*P}:{69+2*P}]\nv_cndmask_b32 v{211+2*P}, 0, v109, s[{68+2*P}:{69+2*P}]')
        cm(0); cm(1)
        for P in range(5):
            for hb in range(2):
                e(f'v_mfma_f32_16x16x16_bf16 {v(120+4*hb,4)}, {a(80+P*4+2*hb,2)}, {v(210+2*P,2)}, ' + ('0' if P == 0 else v(120+4*hb,4)))
            if P+2 < 5: cm(P+2)
        for i in range(4): e(f'v_cvt_pk_bf16_f32 v{64+i}, v{120+2*i}, v{121+2*i}')
        for i in range(4): e(f'v_min_u32 v{64+i}, -2, v{64+i}')
        self.pub('v[64:67]', 40)
        self.stamp('F.end')
        e('s_branch L_END')

    def role_FIN(self):
        e = self.e
        RED = 0
        sK,s0,s1 = 63,64,65
        e('L_FIN:')
        e(f'''
        s_and_b32 s{s0}, s{sR}, 3
        s_cmp_ge_u32 s{s0}, 2
        s_cbranch_scc1 L_END
        s_sub_u32 s{sK}, s{sX8}, 3
        s_lshl_b32 s{sK}, s{sK}, 1
        s_add_u32 s{sK}, s{sK}, s{s0}
        s_lshl_b32 s{s0}, s{sK}, 7
        ''')
        self.mk_srd(rB, pB2, None, 1280)
        self.mk_srd(rA, pOUT, None, 1280)
        e(f'''
        v_and_b32 v5, 7, v1
        v_lshlrev_b32 v5, 4, v5
        v_lshl_add_u32 v6, v2, 3, v5
        s_cmp_eq_u32 s{sW}, 0
        s_cselect_b32 s{s1}, 32, 0
        v_cmp_gt_u32 vcc, s{s1}, v0
        v_cndmask_b32 v6, v9, v6, vcc
        v_cmp_gt_u32 vcc, 8, v1
        v_cndmask_b32 v6, v9, v6, vcc
        buffer_load_dwordx2 v[16:17], v6, {srd(rC)}, s{s0} offen
        buffer_load_dwordx2 v[18:19], v6, {srd(rB)}, s{s0} offen
        v_lshrrev_b32 v12, 3, v0
        v_lshl_add_u32 v14, v12, 11, v5
        s_mul_i32 s71, s{sW}, 27
        v_add_u32 v15, s71, v12
        v_or_b32 v13, s{sLOC}, v14
        ''')
        for i in range(4):
            e(f'v_bfe_u32 v10, v15, 2, 3\nv_cmp_eq_u32 vcc, s{sX8}, v10\nv_cndmask_b32 v{60+i}, v14, v13, vcc')
            if i < 3: e('v_add_u32 v15, 8, v15')
        e(f'''
        v_cmp_gt_u32 vcc, 3, v12
        v_cndmask_b32 v63, v9, v63, vcc
        v_cmp_eq_u32 vcc, s{sX8}, v12
        v_cndmask_b32 v14, v14, v13, vcc
        v_and_b32 v14, s{sLM}, v14
        s_add_u32 s66, s{s0}, {H3B}
        s_lshl_b32 s{s1}, s71, 11
        s_add_u32 s67, s{s0}, s{s1}
        s_add_u32 s67, s67, {SL+S_H4}
        s_add_u32 s68, s67, 16384
        s_add_u32 s69, s67, 32768
        s_add_u32 s70, s67, 49152
        ''')
        self.ident_masks(24, 0x3f80, 0x3f800000, 0, 4, 22)
        e(f's_cmp_eq_u32 s{sW}, 0\ns_cselect_b32 s{s1}, -1, 0')
        for r in range(4): e(f'v_and_b32 v{28+r}, s{s1}, v{24+r}')
        e(f'''
        v_lshlrev_b32 v20, 5, v1
        v_lshl_add_u32 v20, v2, 4, v20
        s_lshl_b32 s{s1}, s{sW}, 8
        v_add_u32 v20, s{s1}, v20
        v_mov_b32 v21, 1024
        v_cmp_gt_u32 vcc, 32, v0
        v_cndmask_b32 v20, v21, v20, vcc
        v_cmp_gt_u32 vcc, 8, v1
        v_cndmask_b32 v20, v21, v20, vcc
        v_cmp_gt_u32 vcc, 16, v0
        v_lshlrev_b32 v39, 3, v0
        v_cndmask_b32 v21, v9, v39, vcc
        v_lshlrev_b32 v39, 4, v1
        v_mov_b32 v38, s{sT0}
        v_cmp_eq_u32 vcc, 0, v0
        v_cndmask_b32 v37, v9, v0, vcc
        s_waitcnt vmcnt(0)
        ''')
        for i in range(2):
            e(f'v_lshlrev_b32 v22, 16, v{16+i}\nv_lshlrev_b32 v23, 16, v{18+i}\nv_add_f32 v{32+2*i}, v22, v23')
            e(f'v_and_b32 v22, 0xffff0000, v{16+i}\nv_and_b32 v23, 0xffff0000, v{18+i}\nv_add_f32 v{33+2*i}, v22, v23')
        self.stamp('R.prep')
        e('L_R_P1:')
        e(f'buffer_load_dwordx4 v[40:43], v14, {srd(rWS)}, s66 offen sc1\ns_waitcnt vmcnt(0)')
        self.maxchain(22, range(40,44))
        e('v_cmp_eq_u32 vcc, -1, v22')
        self.retry('L_R_P1', sleep=2, vregs=(14,))
        self.lmask((60,61,62,63))
        e('v_mfma_f32_16x16x32_bf16 v[32:35], v[28:31], v[40:43], v[32:35]')
        if self.o.get('rdelay'): e(f's_sleep {self.o["rdelay"]}')
        e('L_R_P2:')
        for i in range(4): e(f'buffer_load_dwordx4 {v(44+4*i,4)}, v{60+i}, {srd(rWS)}, s{67+i} offen sc1')
        e('s_waitcnt vmcnt(0)')
        for i in range(4): e(f'v_mfma_f32_16x16x32_bf16 v[104:107], v[24:27], {v(44+4*i,4)}, ' + ('v[32:35]' if i == 0 else 'v[104:107]'))
        self.maxchain(22, range(44,60))
        e('v_cmp_eq_u32 vcc, -1, v22')
        self.retry('L_R_P2', vregs=(60,61,62,63), sleep=0)
        self.stamp('R.h4')
        for r in range(4): e(f'v_add_f32_dpp v{104+r}, v{104+r}, v{104+r} row_ror:8 {DPP}')
        e(f'ds_write_b128 v20, v[104:107] offset:{RED}\ns_waitcnt lgkmcnt(0)\ns_barrier')
        e(f's_cmp_lg_u32 s{sW}, 0\ns_cbranch_scc1 L_END')
        self.red_final(RED, 64, 39, False)
        e(f'buffer_store_dwordx2 v[64:65], v21, {srd(rA)}, s{s0} offen')
        e(f's_cmp_lg_u32 s{sK}, 0\ns_cbranch_scc1 L_END2')
        e(f'buffer_store_dword v38, v37, {srd(rWS)}, 0 offen offset:{EPOCH} sc1')
        e('L_END2:')
        self.stamp('R.end')

    def epilogue(self):
        e = self.e
        e('L_END:')
        if self.stamps:
            e(f's_waitcnt lgkmcnt(0)\ns_lshl_b32 s60, s2, 2\ns_add_u32 s60, s60, s{sW}\ns_lshl_b32 s60, s60, 6\ns_add_u32 s60, s60, {STAMP}\nv_mov_b32 v4, 0')
            for k in range(11): e(f'v_mov_b32 v5, s{sSTAMP+2*k}\nbuffer_store_dword v5, v4, {srd(rWS)}, s60 offen offset:{4*k}')
            e(f'v_mov_b32 v5, s{sTO}\nbuffer_store_dword v5, v4, {srd(rWS)}, s60 offen offset:44')
        e('L_EXIT:')

    def build(self):
        if self.stamps:
            for k in range(1,11): self.e(f's_mov_b32 s{sSTAMP+2*k}, 0')
        self.prologue(); self.role_A(); self.role_T(); self.role_FIN(); self.epilogue()
        hdr = open('header.txt').read()
        return f'''{hdr}; @launch grid=(256,1,1) block=(256,1,1) lds=163840
.amdgcn_target "amdgcn-amd-amdhsa--gfx950"
.text
.globl {KN}
.p2align 8
.type {KN},@function
{KN}:
{self.e.text()}
s_endpgm
.section .rodata,"a"
.p2align 6
.amdhsa_kernel {KN}
  .amdhsa_next_free_vgpr 512
  .amdhsa_next_free_sgpr 102
  .amdhsa_accum_offset 256
  .amdhsa_group_segment_fixed_size 0
  .amdhsa_kernarg_size 112
  .amdhsa_user_sgpr_count 2
  .amdhsa_user_sgpr_kernarg_segment_ptr 1
  .amdhsa_system_sgpr_workgroup_id_x 1
.end_amdhsa_kernel
'''

if __name__ == '__main__':
    import json
    out = sys.argv[1]; stamps = len(sys.argv) > 2 and sys.argv[2] == '1'
    opt = json.loads(sys.argv[3]) if len(sys.argv) > 3 else {}
    open(out,'w').write(G(stamps, opt).build())
```

```python
import sys
sys.path.insert(0,'work')
from dsl import Asm
NAME = 'sequential_preLN__compressed_kv_cla__dense_activation_squared_relu__decode'
KN = NAME + '_kernel'

EPOCH=0; RDY=0x1000; GATE=0x2000; QP=0x8000; SL=0x40000; REC=0x80000; LOC=0x100000; PART=0x200000; STAMP=0x600000
S_QL=0; S_HC=256; S_H4=512; H3B = SL + 108*2048 + S_H4
WSSZ=0x700000
OOB=0x7ffffff0
NLOC=96
sLM,sLC,sLOC,sTMP = 3,4,5,6
pX,pCKV,pWQ,pWUK,pWUV,pWO,pBX,pW1,pB1,pW2,pB2,pOUT,pDBG,pWS = [8+2*i for i in range(14)]
sW,sX8,sR,sE,sT0,sT1,sTO,sC = 36,37,38,39,40,41,42,43
rWS=44; rA=48; rB=52; rC=56
sSTAMP=80
def srd(r): return f's[{r}:{r+3}]'
def v(n,c=1): return f'v{n}' if c==1 else f'v[{n}:{n+c-1}]'
def a(n,c=1): return f'a{n}' if c==1 else f'a[{n}:{n+c-1}]'
DPP='row_mask:0xf bank_mask:0xf'
QB = 131072
WQ = 69632; XN = 110592

class G:
    def __init__(self, stamps=False, opt=None):
        self.e = Asm(); self.stamps = stamps; self.o = opt or {}
        self.slots = {'A':['start'],'T':['start'],'R':[]}; self.idx = {}; self.tbase = 1
    def stamp(self, name):
        if not self.stamps: return
        role = name.split('.')[0]
        lst = self.slots['A' if role in 'AFR' else 'T']
        want = self.o.get('want')
        if name == 'start': k = 0
        else:
            if want is not None and name not in want: return
            if role == 'R':
                k = self.tbase + len(self.slots['R']); self.slots['R'].append(name)
            else:
                k = len(lst); lst.append(name)
                if role == 'A': self.tbase = len(lst)
            if k > 10: raise Exception('too many stamps '+name)
        self.idx[name] = k
        op = 's_memtime' if self.o.get('cyc') else 's_memrealtime'
        self.e(f'{op} s[{sSTAMP+2*k}:{sSTAMP+2*k+1}]')
        if name in self.o.get('cut', []): self.e('s_branch L_END')
    def mk_srd(self, r, ptr, off_sgpr, size):
        e = self.e
        if off_sgpr is None:
            e(f's_mov_b32 s{r}, s{ptr}\ns_and_b32 s{r+1}, s{ptr+1}, 0xffff\ns_mov_b32 s{r+2}, {size}')
        else:
            e(f's_add_u32 s{r}, s{ptr}, s{off_sgpr}\ns_addc_u32 s{r+1}, s{ptr+1}, 0\ns_and_b32 s{r+1}, s{r+1}, 0xffff\ns_sub_u32 s{r+2}, {size}, s{off_sgpr}')
        e(f's_mov_b32 s{r+3}, 0x20000')
    def allred(self, op, x, t, steps16=4):
        e = self.e
        pats = ['quad_perm:[1,0,3,2]','quad_perm:[2,3,0,1]','row_half_mirror','row_mirror'][:steps16]
        for p in pats: e(f'{op}_dpp v{x}, v{x}, v{x} {p} {DPP}')
        e(f'v_mov_b32 v{t}, v{x}\nv_permlane16_swap_b32 v{x}, v{t}\n{op} v{x}, v{x}, v{t}')
        e(f'v_mov_b32 v{t}, v{x}\nv_permlane32_swap_b32 v{x}, v{t}\n{op} v{x}, v{x}, v{t}')
    def timeout(self):
        self.e(f's_sub_u32 s{sTO}, s{sTO}, 1\ns_cmp_eq_u32 s{sTO}, 0\ns_cbranch_scc1 L_END')
    def fb(self, vregs=(), sregs=()):
        e = self.e
        self.timeout()
        e(f's_add_u32 s{sLC}, s{sLC}, 1\ns_cmp_ge_u32 s{sLC}, {NLOC}\ns_cselect_b32 s{sLM}, {(~LOC)&0xffffffff}, s{sLM}')
        self.lmask(vregs, sregs)
    def lmask(self, vregs=(), sregs=()):
        for r in vregs: self.e(f'v_and_b32 v{r}, s{sLM}, v{r}')
        for r in sregs: self.e(f's_and_b32 s{r}, s{r}, s{sLM}')
    def stop(self, data):
        if '[' not in data: return 'buffer_store_dword'
        lo, hi = data[2:-1].split(':'); return f'buffer_store_dwordx{int(hi)-int(lo)+1}'
    def publ(self, data, voff): self.e(f'{self.stop(data)} {data}, v{voff}, {srd(rWS)}, s{sLOC} offen')
    def pubg(self, data, voff): self.e(f'{self.stop(data)} {data}, v{voff}, {srd(rWS)}, 0 offen sc1')
    def pub(self, data, voff): self.pubg(data, voff); self.publ(data, voff)
    def late_pubg(self, data, voff):
        e = self.e; l = e.newlabel('Lnp')
        e(f's_cmp_eq_u32 s{sLM}, -1\ns_cbranch_scc1 {l}'); self.pubg(data, voff); e(f'{l}:')
    def retry(self, label, sleep=1, vregs=(), sregs=(), late=None):
        e = self.e
        ok = e.newlabel('Lok')
        e(f's_cbranch_vccz {ok}')
        self.fb(vregs, sregs)
        if late: self.late_pubg(*late)
        if sleep: e(f's_sleep {sleep}')
        e(f's_branch {label}')
        e(f'{ok}:')
    def maxchain(self, dst, regs):
        e = self.e
        regs = list(regs)
        e(f'v_max3_u32 v{dst}, v{regs[0]}, v{regs[1]}, v{regs[2]}'); regs = regs[3:]
        while len(regs) >= 2:
            e(f'v_max3_u32 v{dst}, v{dst}, v{regs[0]}, v{regs[1]}'); regs = regs[2:]
        if regs: e(f'v_max_u32 v{dst}, v{dst}, v{regs[0]}')
    def tagcheck(self, dst, pairs):
        e = self.e; rs = []
        for r in pairs:
            e(f'v_xor_b32 v{r}, s{sT0}, v{r}\nv_xor_b32 v{r+1}, s{sT1}, v{r+1}'); rs += [r, r+1]
        if len(rs) == 2: e(f'v_or_b32 v{dst}, v{rs[0]}, v{rs[1]}')
        else:
            e(f'v_or3_b32 v{dst}, v{rs[0]}, v{rs[1]}, v{rs[2]}'); rs = rs[3:]
            while len(rs) >= 2: e(f'v_or3_b32 v{dst}, v{dst}, v{rs[0]}, v{rs[1]}'); rs = rs[2:]
            if rs: e(f'v_or_b32 v{dst}, v{dst}, v{rs[0]}')
        e(f'v_cmp_ne_u32 vcc, 0, v{dst}')
    def ident_masks(self, dst, val_lo, val_hi, first, n, t):
        e = self.e
        e(f'v_and_b32 v{t}, 1, v1\nv_cmp_eq_u32 vcc, 1, v{t}\nv_mov_b32 v{t}, {val_lo}\nv_mov_b32 v{t+1}, {val_hi}\nv_cndmask_b32 v{t}, v{t}, v{t+1}, vcc')
        e(f'v_lshrrev_b32 v{t+1}, 1, v1')
        for r in range(n):
            e(f'v_cmp_eq_u32 vcc, {first+r}, v{t+1}\nv_cndmask_b32 v{dst+r}, 0, v{t}, vcc')
    def red_final(self, RED, t, va, clamp):
        e = self.e
        for w in range(4): e(f'ds_read_b128 {v(t+4+4*w,4)}, v{va} offset:{RED+256*w}')
        e('s_waitcnt lgkmcnt(2)')
        for i in range(2): e(f'v_pk_add_f32 {v(t+4+2*i,2)}, {v(t+4+2*i,2)}, {v(t+8+2*i,2)}')
        e('s_waitcnt lgkmcnt(0)')
        for i in range(2): e(f'v_pk_add_f32 {v(t+12+2*i,2)}, {v(t+12+2*i,2)}, {v(t+16+2*i,2)}')
        for i in range(2): e(f'v_pk_add_f32 {v(t+4+2*i,2)}, {v(t+4+2*i,2)}, {v(t+12+2*i,2)}')
        for i in range(2): e(f'v_cvt_pk_bf16_f32 v{t+i}, v{t+4+2*i}, v{t+5+2*i}')
        if clamp:
            for i in range(2): e(f'v_min_u32 v{t+i}, -2, v{t+i}')
    def tags(self):
        self.e(f's_add_u32 s{sT0}, s{sE}, 0x9e3779b9\ns_xor_b32 s{sT1}, s{sT0}, 0x5bd1e995')

    def prologue(self):
        e = self.e
        self.stamp('start')
        e(f'''
        s_cmp_ge_u32 s2, 256
        s_cbranch_scc1 L_EXIT
        s_load_dwordx16 s[8:23], s[0:1], 0
        s_load_dwordx4 s[32:35], s[0:1], 96
        s_load_dwordx8 s[24:31], s[0:1], 64
        v_lshrrev_b32 v1, 6, v0
        v_and_b32 v0, 63, v0
        v_readfirstlane_b32 s{sW}, v1
        v_and_b32 v1, 15, v0
        v_lshrrev_b32 v2, 4, v0
        v_lshlrev_b32 v3, 4, v0
        v_lshlrev_b32 v4, 2, v0
        s_and_b32 s{sX8}, s2, 7
        s_lshr_b32 s{sR}, s2, 3
        v_lshlrev_b32 v5, 4, v1
        v_lshlrev_b32 v6, 5, v2
        v_xor_b32 v5, v5, v6
        v_lshl_add_u32 v6, v2, 13, v5
        s_lshr_b32 s67, s{sW}, 1
        s_lshl_b32 s67, s67, 7
        v_xor_b32 v8, s67, v6
        v_mov_b32 v9, {OOB}
        v_lshlrev_b32 v11, 4, v2
        s_bfe_u32 s60, s{sR}, 0x20002
        s_mul_i32 s60, s60, {160*8192}
        s_and_b32 s63, s{sR}, 3
        s_lshl_b32 s64, s{sX8}, 2
        s_add_u32 s63, s63, s64
        s_lshl_b32 s63, s63, 8
        s_add_u32 s60, s60, s63
        s_lshl_b32 s61, s{sW}, 15
        s_lshl_b32 s62, s{sW}, 10
        s_add_u32 s62, s62, {WQ}
        s_mov_b32 s{rA+3}, 0x20000
        s_mov_b32 s{rC+3}, 0x20000
        s_mov_b32 s{rC+2}, 1280
        s_sub_u32 s{rA+2}, 5242880, s60
        s_mov_b32 s{sTO}, 400000
        s_mov_b32 s{sLM}, -1
        s_mov_b32 s{sLC}, 0
        s_mov_b32 s{sLOC}, {LOC}
        s_mov_b32 s{rWS+2}, {WSSZ}
        s_mov_b32 s{rWS+3}, 0x20000
        s_waitcnt lgkmcnt(0)
        s_add_u32 s{rA}, s{pWQ}, s60
        s_addc_u32 s{rA+1}, s{pWQ+1}, 0
        s_and_b32 s{rA+1}, s{rA+1}, 0xffff
        s_mov_b32 s{rC}, s{pX}
        s_and_b32 s{rC+1}, s{pX+1}, 0xffff
        s_mov_b32 s{rWS}, s{pWS}
        s_and_b32 s{rWS+1}, s{pWS+1}, 0xffff
        s_cmp_lt_u32 s{sR}, 16
        s_cbranch_scc1 L_T
        ''')
    def x_issue(self):
        for kk in range(5): self.e(f'buffer_load_dword v{20+kk}, v4, {srd(rC)}, 0 offen offset:{256*kk} {self.o.get("xflag","")}')
    def wq_dma(self, k):
        e = self.e
        e(f's_add_u32 m0, s62, {k*4096}')
        e(f'buffer_load_dwordx4 v8, {srd(rA)}, s61 offen nt lds')
        if k < 9: e(f's_add_u32 s61, s61, {4*32768}')
    def wuk_setup(self, sAi, srdreg):
        e = self.e
        e(f'''
        s_lshl_b32 s63, s{sX8}, 2
        s_add_u32 s64, s63, s{sW}
        s_lshl_b32 s64, s64, 8
        s_lshl_b32 s65, s{sAi}, 18
        s_add_u32 s64, s64, s65
        ''')
        self.mk_srd(srdreg, pWUK, 64, 4194304)
        e(f'v_xor_b32 v7, 0x80, v6\ns_mov_b32 s68, 0\ns_lshl_b32 s69, s{sW}, 13')
    def wuk_dma(self, k, srdreg, base):
        e = self.e
        e(f's_add_u32 m0, s69, {base+k*1024}')
        e(f'buffer_load_dwordx4 v{6 if ((k>>1)&1)==0 else 7}, {srd(srdreg)}, s68 offen nt lds')
        if k < 7: e(f's_add_u32 s68, s68, 32768')
    def a1(self, role, y_x, y_wq, mid):
        e = self.e
        s0, s1 = 63, 64
        e(f'''
        v_lshrrev_b32 v12, 2, v1
        v_lshl_add_u32 v13, v2, 3, v12
        v_lshlrev_b32 v13, 8, v13
        v_and_b32 v14, 3, v1
        v_lshl_add_u32 v13, v14, 3, v13
        v_and_b32 v15, 1, v2
        v_lshl_or_b32 v15, v15, 2, v12
        s_lshl_b32 s{s0}, s{sW}, 1
        v_xor_b32 v15, s{s0}, v15
        v_lshl_add_u32 v60, v15, 5, v13
        v_xor_b32 v15, 1, v15
        v_lshl_add_u32 v61, v15, 5, v13
        v_add_u32 v56, {WQ}, v60
        v_add_u32 v57, {WQ}, v61
        ''')
        e(f'''
        v_lshl_add_u32 v12, v1, 6, v11
        s_and_b32 s{s0}, s{sR}, 3
        s_lshl_b32 s{s1}, s{sX8}, 2
        s_add_u32 s{s0}, s{s0}, s{s1}
        s_lshl_b32 s{s0}, s{s0}, 2
        s_bfe_u32 s{s1}, s{sR}, 0x20002
        s_add_u32 s{s0}, s{s0}, s{s1}
        s_lshl_b32 s{s0}, s{s0}, 9
        s_lshl_b32 s{s1}, s{sW}, 7
        s_add_u32 s{s0}, s{s0}, s{s1}
        s_add_u32 s{s0}, s{s0}, {QP}
        v_add_u32 v12, s{s0}, v12
        v_cmp_gt_u32 vcc, 2, v1
        v_cndmask_b32 v62, v9, v12, vcc
        v_cmp_eq_u32 s[70:71], 1, v1
        s_mul_i32 s{s0}, s{sW}, 1280
        s_add_u32 s{s0}, s{s0}, {XN}
        v_add_u32 v10, s{s0}, v4
        s_bfe_u32 s{s1}, s{sR}, 0x20002
        s_mul_i32 s{s1}, s{s1}, 320
        s_add_u32 s{s0}, s{s0}, s{s1}
        v_add_u32 v12, s{s0}, v11
        s_waitcnt vmcnt({y_x}) lgkmcnt(0)
        ''')
        self.stamp(role+'.x')
        for k in range(5): e(f'v_lshlrev_b32 v{26+2*k}, 16, v{20+k}\nv_and_b32 v{27+2*k}, 0xffff0000, v{20+k}')
        e('v_pk_add_f32 v[36:37], v[26:27], v[28:29]\nv_pk_add_f32 v[38:39], v[30:31], v[32:33]\nv_pk_add_f32 v[36:37], v[36:37], v[34:35]\nv_pk_add_f32 v[36:37], v[36:37], v[38:39]\nv_add_f32 v36, v36, v37')
        self.allred('v_add_f32', 36, 37)
        e('v_mul_f32 v36, 0xbacccccd, v36\nv_mov_b32 v37, v36')
        for k in range(26,36,2): e(f'v_pk_add_f32 {v(k,2)}, {v(k,2)}, v[36:37]')
        e('v_pk_mul_f32 v[36:37], v[26:27], v[26:27]')
        for k in range(28,36,2): e(f'v_pk_fma_f32 v[36:37], {v(k,2)}, {v(k,2)}, v[36:37]')
        e('v_add_f32 v36, v36, v37')
        self.allred('v_add_f32', 36, 37)
        e('v_mul_f32 v36, 0x3acccccd, v36\nv_add_f32 v36, 0x3727c5ac, v36\nv_rsq_f32 v36, v36\nv_mov_b32 v37, v36')
        for k in range(26,36,2): e(f'v_pk_mul_f32 {v(k,2)}, {v(k,2)}, v[36:37]')
        for k in range(5): e(f'v_cvt_pk_bf16_f32 v{20+k}, v{26+2*k}, v{27+2*k}\nds_write_b32 v10, v{20+k} offset:{256*k}')
        e('s_waitcnt lgkmcnt(0)')
        for s in range(5): e(f'ds_read_b128 {v(36+4*s,4)}, v12 offset:{s*64}')
        e(f's_load_dword s{sE}, s[{pWS}:{pWS+1}], {EPOCH}')
        self.stamp(role+'.ln')
        mid()
        e('s_waitcnt lgkmcnt(0)')
        self.tags()
        e(f'v_mov_b32 v18, s{sT0}\nv_mov_b32 v19, s{sT1}')
        e(f's_waitcnt vmcnt({y_wq})\ns_barrier')
        self.stamp(role+'.wq')
        vW = 128
        for s in range(5):
            for T in range(2):
                for q in range(2): e(f'ds_read_b64_tr_b16 {v(vW+(s*2+T)*4+2*q,2)}, v{56+T} offset:{s*8192+q*1024}')
        for s in range(5):
            for T in range(2):
                e(f's_waitcnt lgkmcnt({min(15,18-(s*2+T)*2)})')
                e(f'v_mfma_f32_16x16x32_bf16 {v(84+4*T,4)}, {v(vW+(s*2+T)*4,4)}, {v(36+4*s,4)}, ' + ('0' if s==0 else v(84+4*T,4)))
        for i in range(4): e(f'v_cvt_pk_bf16_f32 v{92+i}, v{84+2*i}, v{85+2*i}')
        e('v_cndmask_b32 v16, v92, v94, s[70:71]\nv_cndmask_b32 v17, v93, v95, s[70:71]')
        self.publ('v[16:19]', 62)
        self.stamp(role+'.qp')


    def role_A(self):
        e = self.e
        QV=0; CL=1024; ML=2304; RED=2560; DUM=3584; WUK=4096; WUV=36864
        W1=69632; W2=W1+20480; HB=4096; AP=HB+2048; ST=AP+256; HELP=135168
        sAi,sHd,sJ,s0,s1,s2_,sSL = 72,73,74,63,64,65,66
        sF,sG = 60,61
        if self.o.get('noA'): e('s_branch L_END')
        order = self.o.get('a_order', 'qqqqqqqqqq|uuuuuuuu')
        cnt = {'q':0,'u':0}
        def issue(ch):
            if ch == 'q': self.wq_dma(cnt['q'])
            else:
                if cnt['u'] == 0: self.wuk_setup(sAi, rB)
                self.wuk_dma(cnt['u'], rB, WUK)
            cnt[ch] += 1
        e(f's_sub_u32 s{sAi}, s{sR}, 16')
        self.x_issue()
        o1, o2 = order.split('|')
        for ch in o1: issue(ch)
        e(f"""
        s_lshl_b32 s63, s{sX8}, 2
        s_and_b32 s{sHd}, s{sAi}, 3
        s_add_u32 s{sHd}, s{sHd}, s63
        s_lshr_b32 s{sJ}, s{sAi}, 2
        s_lshl_b32 s{sSL}, s{sX8}, 4
        s_add_u32 s{sSL}, s{sSL}, s{sAi}
        """)
        def mid():
            for ch in o2: issue(ch)
        full = o1 + o2
        self.a1('A', len(o1), len(full)-1-full.rindex('q'), mid)
        e(f"""
        s_lshl_b32 s75, s{sX8}, 5
        s_and_b32 s{s1}, s{sAi}, 12
        s_add_u32 s75, s75, s{s1}
        s_add_u32 s75, s75, s{sW}
        s_lshl_b32 s75, s75, 2
        s_add_u32 s75, s75, {RDY}
        s_load_dword s76, s[{pWS}:{pWS+1}], s75
        v_lshlrev_b32 v27, 9, v2
        v_lshl_add_u32 v27, v1, 4, v27
        s_lshl_b32 s{s2_}, s{sX8}, 2
        s_add_u32 s{s2_}, s{s2_}, s{sW}
        s_lshl_b32 s{s2_}, s{s2_}, 11
        s_add_u32 s{s2_}, s{s2_}, {QP+LOC}
        v_lshlrev_b32 v12, 9, v1
        s_lshl_b32 s{s0}, s{sW}, 13
        s_add_u32 s{s0}, s{s0}, {WUK}
        v_add_u32 v12, s{s0}, v12
        v_and_b32 v13, 1, v1
        v_and_b32 v14, 4, v1
        v_lshl_or_b32 v13, v13, 1, v14
        v_lshlrev_b32 v13, 5, v13
        """)
        def h0loads():
            for i in range(2): e(f'buffer_load_dwordx4 {v(64+4*i,4)}, v27, {srd(rWS)}, s{s2_} offen offset:{i*256} sc1')
        for s in range(4):
            e(f'v_add_u32 v14, {s*64}, v11\nv_xor_b32 v14, v14, v13\nv_add_u32 v{40+2*s}, v14, v12\nv_xor_b32 v14, 32, v14\nv_add_u32 v{41+2*s}, v14, v12')
        vI = 28
        self.ident_masks(vI, 0x3f80, 0x3f800000, 0, 8, 12)
        e(f"""
        s_lshl_b32 s{s0}, s{sW}, 8
        v_lshlrev_b32 v12, 3, v0
        v_add_u32 v12, s{s0}, v12
        v_mov_b32 v13, {DUM}
        v_cmp_gt_u32 vcc, 32, v0
        v_cndmask_b32 v24, v13, v12, vcc
        v_add_u32 v25, s{s0}, v11
        s_lshl_b32 s{s0}, s{sX8}, 4
        s_and_b32 s{s1}, s{sAi}, 12
        s_add_u32 s{s0}, s{s0}, s{s1}
        s_add_u32 s{s0}, s{s0}, s{sW}
        s_lshl_b32 s{s0}, s{s0}, 11
        s_and_b32 s{s1}, s{sAi}, 3
        s_lshl_b32 s{s1}, s{s1}, 6
        s_add_u32 s{s0}, s{s0}, s{s1}
        s_add_u32 s{s0}, s{s0}, {SL+S_QL}
        v_add_u32 v12, s{s0}, v4
        v_cmp_gt_u32 vcc, 16, v0
        v_cndmask_b32 v26, v9, v12, vcc
        s_waitcnt lgkmcnt(0)
        s_cmp_eq_u32 s76, s{sT0}
        s_cbranch_scc1 L_A_RDYOK
        L_A_RDY:
        """)
        self.timeout()
        e(f's_sleep 8\ns_load_dword s76, s[{pWS}:{pWS+1}], s75 glc\ns_waitcnt lgkmcnt(0)\ns_cmp_eq_u32 s76, s{sT0}\ns_cbranch_scc0 L_A_RDY\nL_A_RDYOK:\ns_waitcnt vmcnt({1+self.o.get("h0lead",3)})')
        h0loads()
        e('s_waitcnt vmcnt(3)')
        self.stamp('A.wuk')
        vU = 112
        for s in range(4):
            for T in range(2): e(f'ds_read_b128 {v(vU+(s*2+T)*4,4)}, v{40+2*s+T} offset:{T*256}')
        e('L_A_H0:')
        e('s_waitcnt vmcnt(0)')
        for i in range(2):
            e(f'v_mfma_f32_16x16x16_bf16 v[80:83], {v(vI+2*i,2)}, {v(64+4*i,2)}, ' + ('0' if i==0 else 'v[80:83]'))
        self.tagcheck(12, [66,70])
        e('s_cbranch_vccz L_A_H0OK')
        self.fb((), (s2_,)); self.late_pubg('v[16:19]', 62)
        h0loads()
        e('s_branch L_A_H0')
        e('L_A_H0OK:')
        self.stamp('A.h0')
        e(f'v_cvt_pk_bf16_f32 v84, v80, v81\nv_cvt_pk_bf16_f32 v85, v82, v83\nds_write_b64 v24, v[84:85] offset:{QV}')
        for s in range(4): e(f'ds_read_b128 {v(88+4*s,4)}, v25 offset:{QV+s*64}')
        for s in range(4):
            e(f's_waitcnt lgkmcnt({3-s})')
            for T in range(2):
                e(f'v_mfma_f32_16x16x32_bf16 {v(104+4*T,4)}, {v(88+4*s,4)}, {v(vU+(s*2+T)*4,4)}, ' + ('0' if s==0 else v(104+4*T,4)))
        e('v_cvt_pk_bf16_f32 v64, v104, v108\nv_min_u32 v64, -2, v64')
        self.pub('v64', 26)
        self.stamp('A.ql')
        self.pubg('v[16:19]', 62)
        e('s_barrier')
        nh = self.o.get('a_help', 0)
        if nh:
            e(f's_lshl_b32 s{s0}, s{sSL}, 17')
            self.mk_srd(rA, pCKV, s0, 16777216)
            e(f'v_lshlrev_b32 v12, 10, v2\nv_lshl_add_u32 v12, v1, 4, v12\ns_lshl_b32 s68, s{sW}, 15\ns_lshl_b32 s69, s{sW}, 12\ns_add_u32 m0, s69, {HELP}')
            for n in range(32-nh, 32):
                c, i = n >> 3, n & 7
                e(f's_add_u32 s{sTMP}, s68, {i*4096+c*256}')
                e(f'buffer_load_dwordx4 v12, {srd(rA)}, s{sTMP} offen nt lds')
        e(f"""
        v_lshrrev_b32 v12, 1, v2
        v_lshl_add_u32 v62, v12, 20, v5
        v_and_b32 v12, 1, v2
        v_lshl_add_u32 v62, v12, 17, v62
        v_xor_b32 v62, s67, v62
        s_lshl_b32 s{sG}, s{sJ}, 3
        s_add_u32 s{sG}, s{sG}, s{sX8}
        s_and_b32 s{sF}, s{sAi}, 3
        s_lshl_b32 s{s2_}, s{sG}, 2
        s_add_u32 s{sF}, s{sF}, s{s2_}
        """)
        sB = 62
        e(f"""
        v_and_b32 v5, 7, v1
        v_lshlrev_b32 v5, 4, v5
        v_and_b32 v6, 1, v2
        v_lshl_add_u32 v6, v6, 3, v5
        v_lshrrev_b32 v12, 3, v0
        v_lshl_add_u32 v14, v12, 11, v5
        v_cmp_eq_u32 vcc, s{sX8}, v12
        v_or_b32 v13, s{sLOC}, v14
        v_cndmask_b32 v46, v14, v13, vcc
        s_cmp_ge_u32 s{sG}, 27
        s_cbranch_scc1 L_A_NOF
        s_lshl_b32 s{s0}, s{sF}, 5
        """)
        self.mk_srd(rA, pW1, s0, 2211840)
        e(f's_mul_i32 s{s0}, s{sF}, 20480')
        self.mk_srd(rB, pW2, s0, 2211840)
        e(f"""
        v_and_b32 v7, 3, v12
        v_lshlrev_b32 v7, 3, v7
        v_lshrrev_b32 v8, 5, v0
        v_lshl_add_u32 v7, v8, 2, v7
        v_bfe_u32 v8, v0, 1, 2
        v_add_u32 v7, v7, v8
        v_mul_u32_u24 v7, 3456, v7
        v_and_b32 v8, 1, v0
        v_lshl_add_u32 v7, v8, 4, v7
        s_mul_i32 s{s0}, s{sW}, 110592
        s_lshl_b32 s{s1}, s{sW}, 10
        """)
        w1f = self.o.get('w1flag', 'nt')
        for k in range(5):
            if k and k <= self.o.get('w1pace', 0): e('s_waitcnt vmcnt(0)')
            e(f's_add_u32 m0, s{s1}, {W1+k*4096}')
            e(f'buffer_load_dwordx4 v7, {srd(rA)}, s{s0} offen {w1f} lds')
            if k < 4: e(f's_add_u32 s{s0}, s{s0}, {4*110592}')
        e(f"""
        s_mul_i32 s{sB}, s{sW}, 3
        s_cmp_eq_u32 s{sW}, 3
        s_cselect_b32 s{sB}, 8, s{sB}
        s_lshl_b32 s{sB}, s{sB}, 7
        v_lshrrev_b32 v8, 1, v2
        v_lshl_add_u32 v8, v8, 7, v6
        s_cmp_lt_u32 s{sW}, 2
        s_cselect_b32 s{s0}, 32, 0
        v_cmp_gt_u32 vcc, s{s0}, v0
        v_cndmask_b32 v13, v9, v6, vcc
        v_cmp_gt_u32 vcc, 8, v1
        v_cndmask_b32 v12, v9, v8, vcc
        v_cndmask_b32 v13, v9, v13, vcc
        buffer_load_dwordx2 v[16:17], v12, {srd(rC)}, s{sB} offen
        buffer_load_dwordx2 v[18:19], v13, {srd(rC)}, s{sB} offen offset:256
        s_lshl_b32 s{s0}, s{sF}, 5
        """)
        self.mk_srd(rC, pB1, s0, 3456)
        e(f'v_lshlrev_b32 v12, 3, v2\nbuffer_load_dwordx2 v[58:59], v12, {srd(rC)}, 0 offen')
        e(f"""
        s_lshl_b32 s{s0}, s{sW}, 9
        s_add_u32 s{s0}, s{s0}, {HB}
        v_add_u32 v48, s{s0}, v8
        v_add_u32 v12, 256, v48
        v_mov_b32 v13, {DUM}
        v_cmp_gt_u32 vcc, 32, v0
        v_cndmask_b32 v49, v13, v12, vcc
        v_add_u32 v50, s{s0}, v11
        s_cmp_lt_u32 s{sW}, 2
        s_cselect_b32 s{s0}, 0, {OOB}
        v_max_u32 v47, s{s0}, v46
        s_add_u32 s79, s{sB}, {H3B}
        v_lshl_add_u32 v12, v1, 6, v11
        s_mul_i32 s{s0}, s{sW}, 320
        s_lshl_b32 s{s2_}, s{sF}, 11
        s_add_u32 s{s2_}, s{s0}, s{s2_}
        s_add_u32 s{s2_}, s{s2_}, {SL+S_H4}
        v_add_u32 v12, s{s2_}, v12
        v_cmp_gt_u32 vcc, 5, v1
        v_cndmask_b32 v51, v9, v12, vcc
        s_lshl_b32 s{s2_}, s{sB}, 4
        s_add_u32 s{s2_}, s{s2_}, {W1}
        v_lshlrev_b32 v52, 3, v0
        v_add_u32 v52, s{s2_}, v52
        v_lshrrev_b32 v12, 2, v0
        v_mul_u32_u24 v12, 1280, v12
        v_and_b32 v13, 3, v1
        v_lshl_add_u32 v12, v13, 4, v12
        s_add_u32 s{s0}, s{s0}, {W2}
        v_add_u32 v53, s{s0}, v12
        s_lshl_b32 s{s0}, s{sW}, 2
        v_lshrrev_b32 v12, 5, v0
        v_lshlrev_b32 v12, 4, v12
        v_add_u32 v12, s{s0}, v12
        v_add_u32 v54, {ST}, v12
        s_lshl_b32 s{s0}, s{sW}, 6
        v_add_u32 v55, {AP}, v11
        v_add_u32 v45, s{s0}, v55
        v_mov_b32 v44, {ST}
        s_branch L_A_FDONE
        L_A_NOF:
        """)
        sK = sF
        e(f"""
        s_sub_u32 s{sK}, s{sX8}, 3
        s_lshl_b32 s{sK}, s{sK}, 1
        s_and_b32 s{s0}, s{sAi}, 1
        s_add_u32 s{sK}, s{sK}, s{s0}
        s_lshl_b32 s{sB}, s{sK}, 7
        """)
        self.mk_srd(rB, pB2, None, 1280)
        e(f"""
        s_cmp_eq_u32 s{sW}, 0
        s_cselect_b32 s{s1}, 32, 0
        v_cmp_gt_u32 vcc, s{s1}, v0
        v_cndmask_b32 v6, v9, v6, vcc
        v_cmp_gt_u32 vcc, 8, v1
        v_cndmask_b32 v6, v9, v6, vcc
        buffer_load_dwordx2 v[16:17], v6, {srd(rC)}, s{sB} offen
        buffer_load_dwordx2 v[18:19], v6, {srd(rB)}, s{sB} offen
        s_mul_i32 s{s0}, s{sW}, 27
        v_add_u32 v15, s{s0}, v12
        """)
        for i in range(4):
            e(f'v_bfe_u32 v10, v15, 2, 3\nv_cmp_eq_u32 vcc, s{sX8}, v10\nv_cndmask_b32 v{48+i}, v14, v13, vcc')
            if i < 3: e('v_add_u32 v15, 8, v15')
            if i > 0: e(f'v_add_u32 v{48+i}, {16384*i}, v{48+i}')
        e(f"""
        v_cmp_gt_u32 vcc, 3, v12
        v_cndmask_b32 v51, v9, v51, vcc
        s_add_u32 s79, s{sB}, {H3B}
        s_lshl_b32 s{s0}, s{s0}, 11
        s_add_u32 s78, s{sB}, s{s0}
        s_add_u32 s78, s78, {SL+S_H4}
        v_lshlrev_b32 v52, 5, v1
        v_lshl_add_u32 v52, v2, 4, v52
        s_lshl_b32 s{s1}, s{sW}, 8
        s_add_u32 s{s1}, s{s1}, {RED}
        v_add_u32 v52, s{s1}, v52
        v_mov_b32 v13, {DUM}
        v_cmp_gt_u32 vcc, 32, v0
        v_cndmask_b32 v52, v13, v52, vcc
        v_cmp_gt_u32 vcc, 8, v1
        v_cndmask_b32 v52, v13, v52, vcc
        v_cmp_gt_u32 vcc, 16, v0
        v_lshlrev_b32 v12, 3, v0
        v_cndmask_b32 v53, v9, v12, vcc
        v_lshlrev_b32 v54, 4, v1
        v_cmp_eq_u32 vcc, 0, v0
        v_cndmask_b32 v55, v9, v0, vcc
        L_A_FDONE:
        """)
        vMk = 36
        self.ident_masks(vMk, 0xffff, 0xffff0000, 0, 4, 12)
        e(f"""
        v_and_b32 v13, 7, v1
        v_lshl_add_u32 v12, v2, 3, v13
        s_lshl_b32 s{s0}, s{sW}, 5
        v_add_u32 v12, s{s0}, v12
        v_lshlrev_b32 v20, 11, v12
        v_lshrrev_b32 v13, 4, v12
        v_cmp_eq_u32 vcc, s{sX8}, v13
        v_or_b32 v12, s{sLOC}, v20
        v_cndmask_b32 v20, v20, v12, vcc
        v_and_b32 v20, s{sLM}, v20
        v_cmp_gt_u32 vcc, 8, v1
        v_cndmask_b32 v20, v9, v20, vcc
        s_mov_b32 s70, 0x00ff00ff
        s_mov_b32 s71, 0x00ff00ff
        s_lshl_b32 s68, s{sJ}, 9
        s_lshl_b32 s{s0}, s{sHd}, 4
        s_add_u32 s68, s68, s{s0}
        s_add_u32 s68, s68, {REC}
        v_lshlrev_b32 v22, 11, v2
        v_lshl_add_u32 v22, v1, 4, v22
        s_lshl_b32 s69, s{sHd}, 2
        s_add_u32 s69, s69, s{sJ}
        s_lshl_b32 s69, s69, 15
        s_lshl_b32 s{s0}, s{sW}, 13
        s_add_u32 s69, s69, s{s0}
        s_add_u32 s69, s69, {PART}
        v_lshlrev_b32 v12, 4, v1
        v_lshl_add_u32 v12, v2, 3, v12
        s_mul_i32 s{s0}, s{sW}, 320
        s_add_u32 s{s0}, s{s0}, {CL}
        v_add_u32 v12, s{s0}, v12
        v_mov_b32 v13, {DUM}
        v_cmp_gt_u32 vcc, 32, v0
        v_cndmask_b32 v23, v13, v12, vcc
        v_and_b32 v12, 3, v1
        v_mul_u32_u24 v12, 320, v12
        v_add_u32 v12, v12, v11
        v_add_u32 v24, {CL}, v12
        s_lshl_b32 s{s0}, s{sSL}, 11
        s_lshl_b32 s{s1}, s{sW}, 6
        s_add_u32 s{s0}, s{s0}, s{s1}
        s_add_u32 s{s0}, s{s0}, {SL+S_HC}
        v_add_u32 v12, s{s0}, v4
        v_cmp_gt_u32 vcc, 16, v0
        v_cndmask_b32 v25, v9, v12, vcc
        s_lshl_b32 s{s0}, s{sW}, 2
        s_add_u32 s{s0}, s{s0}, {ML}
        v_mov_b32 v12, s{s0}
        v_cmp_gt_u32 vcc, 8, v1
        v_cndmask_b32 v21, v13, v12, vcc
        v_mov_b32 v27, {ML}
        v_add_u32 v56, {WUV}, v60
        v_add_u32 v57, {WUV}, v61
        """)
        e(f's_lshl_b32 s{s0}, s{sJ}, 18\ns_lshl_b32 s{s1}, s{sHd}, 8\ns_add_u32 s{s0}, s{s0}, s{s1}')
        self.mk_srd(rA, pWUV, s0, 4194304)
        e(f"""
        s_and_b32 s{s0}, s{sW}, 1
        s_lshl_b32 s{s0}, s{s0}, 8
        s_lshr_b32 s{s1}, s{sW}, 1
        s_add_u32 s{s0}, s{s0}, s{s1}
        s_lshl_b32 s{s0}, s{s0}, 13
        s_lshl_b32 s{s1}, s{sW}, 10
        """)
        npace = self.o.get('a2_pace', 0)
        gate = self.o.get('gate', 0)
        ntr = self.o.get('trickle', 0)
        def gwait():
            e(f's_lshl_b32 s75, s{sSL}, 7\ns_add_u32 s75, s75, {GATE}\nv_mov_b32 v12, 0\ns_mov_b32 s77, 40')
            e(f'L_A_G:\nbuffer_load_dword v13, v12, {srd(rWS)}, s75 offen sc1\ns_waitcnt vmcnt(0)\nv_readfirstlane_b32 s76, v13\ns_cmp_eq_u32 s76, s{sT1}\ns_cbranch_scc1 L_A_GOK\ns_sub_u32 s77, s77, 1\ns_cbranch_scc0 L_A_G\nL_A_GOK:')
            self.stamp('A.gate')
        for k in range(8):
            if k < npace: e('s_waitcnt vmcnt(0)')
            if gate and k == ntr: gwait()
            e(f's_add_u32 m0, s{s1}, {WUV+k*4096}')
            e(f'buffer_load_dwordx4 v62, {srd(rA)}, s{s0} offen nt lds')
            if k < 7: e(f's_add_u32 s{s0}, s{s0}, 16384')
        e(f's_cmp_ge_u32 s{sG}, 27\ns_cbranch_scc1 L_A_NOW2')
        for k in range(5):
            e(f's_add_u32 m0, s{s1}, {W2+k*4096}\ns_add_u32 s{s0}, s{s1}, {k*4096}')
            e(f'buffer_load_dwordx4 v3, {srd(rB)}, s{s0} offen nt lds')
        e('L_A_NOW2:')
        e('s_waitcnt vmcnt(0)\ns_barrier')
        self.stamp('A.land')
        for s in range(4):
            for T in range(2):
                for q in range(2): e(f'ds_read_b64_tr_b16 {a((s*2+T)*4+2*q,2)}, v{56+T} offset:{s*8192+q*1024}')
        e(f'buffer_load_dwordx4 v[64:67], v20, {srd(rWS)}, s68 offen sc1')
        vC0, vC1, vB1, vS1 = 192, 196, 200, 204
        for dst,src in [(vC0,16),(vC1,18)]:
            e(f'v_lshlrev_b32 v{dst}, 16, v{src}\nv_and_b32 v{dst+1}, 0xffff0000, v{src}\nv_lshlrev_b32 v{dst+2}, 16, v{src+1}\nv_and_b32 v{dst+3}, 0xffff0000, v{src+1}')
        e('s_waitcnt lgkmcnt(0)')
        self.stamp('A.w2rdy')
        e('L_A_REC:')
        e('s_waitcnt vmcnt(0)')
        cs = self.o.get('cs', 1)
        if cs: e(f'v_cmp_ne_u32 vcc, s{sT0}, v67')
        else: self.tagcheck(12, [66])
        e('s_and_b64 vcc, vcc, s[70:71]\ns_cbranch_vccz L_A_RECOK')
        e('L_A_RETRY:')
        self.fb((20,), ())
        e(f'buffer_load_dwordx4 v[64:67], v20, {srd(rWS)}, s68 offen sc1\ns_branch L_A_REC\nL_A_RECOK:')
        vD = 128; vAF = 160
        if self.o.get('ddelay'): e(f's_sleep {self.o["ddelay"]}')
        for i in range(8): e(f'buffer_load_dwordx4 {v(vD+4*i,4)}, v22, {srd(rWS)}, s69 offen offset:{i*256} sc1')
        self.stamp('A.rec')
        e('v_mov_b32 v72, v64')
        self.allred('v_max_f32', 72, 74, 3)
        e('v_sub_f32 v64, v64, v72\nv_exp_f32 v64, v64\nv_cvt_pk_bf16_f32 v64, v64, v64\nv_and_b32 v73, 0xffff0000, v64\nv_mul_f32 v73, v73, v65')
        for i in range(8):
            for r in range(4): e(f'v_and_b32_dpp v{vAF+4*i+r}, v64, v{vMk+r} row_newbcast:{i} {DPP}')
        self.allred('v_add_f32', 73, 74, 3)
        e('ds_write2_b32 v21, v72, v73 offset0:0 offset1:4')
        for i in range(8):
            e(f's_waitcnt vmcnt({7-i})')
            e(f'v_mfma_f32_16x16x32_bf16 v[76:79], {v(vAF+4*i,4)}, {v(vD+4*i,4)}, ' + ('0' if i==0 else 'v[76:79]'))
            if cs: e(f'v_add3_u32 v66, v66, v{vD+4*i}, v{vD+4*i+1}\nv_add3_u32 v66, v66, v{vD+4*i+2}, v{vD+4*i+3}')
        self.stamp('A.data')
        if cs:
            for p in ['quad_perm:[1,0,3,2]','quad_perm:[2,3,0,1]']: e(f'v_add_u32_dpp v66, v66, v66 {p} {DPP}')
            e(f'v_cvt_pk_bf16_f32 v74, v76, v77\nv_cvt_pk_bf16_f32 v75, v78, v79\nv_add_u32_dpp v66, v66, v66 row_half_mirror {DPP}\nds_write_b64 v23, v[74:75]')
            e(f'v_add_u32_dpp v66, v66, v66 row_mirror {DPP}\nv_cmp_ne_u32 vcc, 0, v66\ns_cbranch_vccnz L_A_RETRY\ns_waitcnt lgkmcnt(0)\ns_barrier')
        else:
            e('v_cvt_pk_bf16_f32 v74, v76, v77\nv_cvt_pk_bf16_f32 v75, v78, v79\nds_write_b64 v23, v[74:75]\ns_waitcnt lgkmcnt(0)\ns_barrier')
        self.stamp('A.clbar')
        e(f'ds_read_b128 v[80:83], v24\nds_read_b128 v[64:67], v27\nds_read_b128 v[84:87], v24 offset:64\nds_read_b128 v[68:71], v27 offset:16\nds_read_b128 v[88:91], v24 offset:128\nds_read_b128 v[92:95], v24 offset:192')
        fac = [[], ['s_waitcnt lgkmcnt(4)', 'v_max3_f32 v72, v64, v65, v66', 'v_max_f32 v72, v72, v67'], ['v_sub_f32 v64, v64, v72', 'v_sub_f32 v65, v65, v72'], ['v_sub_f32 v66, v66, v72', 'v_sub_f32 v67, v67, v72'],
               ['v_exp_f32 v64, v64'], ['v_exp_f32 v65, v65'], ['v_exp_f32 v66, v66'],
               ['v_exp_f32 v67, v67', 'v_mul_f32 v72, v64, v68', 'v_fmac_f32 v72, v65, v69', 'v_fmac_f32 v72, v66, v70', 'v_fmac_f32 v72, v67, v71', 'v_rcp_f32 v72, v72']]
        for s in range(4):
            e(f's_waitcnt lgkmcnt({[5,3,1,0][s]})')
            for T in range(2):
                e(f'v_mfma_f32_16x16x32_bf16 {v(104+4*T,4)}, {v(80+4*s,4)}, {a((s*2+T)*4,4)}, ' + ('0' if s==0 else v(104+4*T,4)))
                for x in fac[2*s+T]: e(x)
        e('v_pk_mul_f32 v[104:105], v[104:105], v[64:65]\nv_pk_mul_f32 v[108:109], v[108:109], v[64:65]')
        e('v_pk_fma_f32 v[104:105], v[106:107], v[66:67], v[104:105]\nv_pk_fma_f32 v[108:109], v[110:111], v[66:67], v[108:109]')
        e('v_add_f32 v104, v104, v105\nv_add_f32 v108, v108, v109\nv_mul_f32 v104, v104, v72\nv_mul_f32 v108, v108, v72')
        e('v_cvt_pk_bf16_f32 v63, v104, v108\nv_min_u32 v63, -2, v63')
        self.publ('v63', 25); self.pubg('v63', 25)
        self.stamp('A.hc')
        e(f's_cmp_ge_u32 s{sG}, 27\ns_cbranch_scc1 L_FIN')
        for s in range(6):
            for q in range(2): e(f'ds_read_b64_tr_b16 {a(32+s*4+2*q,2)}, v52 offset:{s*1024+q*512}')
        for P in range(5):
            for hb in range(2): e(f'ds_read_b64_tr_b16 {a(56+P*4+2*hb,2)}, v53 offset:{P*64+hb*8}')
        e(f'v_lshlrev_b32 v{vB1}, 16, v58\nv_and_b32 v{vB1+1}, 0xffff0000, v58\nv_lshlrev_b32 v{vB1+2}, 16, v59\nv_and_b32 v{vB1+3}, 0xffff0000, v59')
        e(f's_cmp_lt_u32 s{sW}, 2\ns_cselect_b32 s{s0}, 0x3f803f80, 0')
        for r in range(4): e(f'v_mov_b32 v{208+r}, 0x3f803f80\nv_mov_b32 v{212+r}, s{s0}')
        e('s_waitcnt lgkmcnt(10)')
        for s in range(6):
            e(f'v_mfma_f32_16x16x32_bf16 {v(vS1,4)}, {a(32+s*4,4)}, {v(208 if s < 4 else 212,4)}, ' + ('0' if s == 0 else v(vS1,4)))
        e(f'ds_write_b128 v45, {v(vS1,4)}\ns_waitcnt lgkmcnt(0)\ns_barrier')
        for w in range(4): e(f'ds_read_b128 {v(208+4*w,4)}, v55 offset:{64*w}')
        e('s_waitcnt lgkmcnt(0)')
        for i in range(2): e(f'v_pk_add_f32 {v(208+2*i,2)}, {v(208+2*i,2)}, {v(212+2*i,2)}\nv_pk_add_f32 {v(216+2*i,2)}, {v(216+2*i,2)}, {v(220+2*i,2)}')
        for i in range(2): e(f'v_pk_add_f32 {v(vS1+2*i,2)}, {v(208+2*i,2)}, {v(216+2*i,2)}')
        e('s_barrier')
        self.stamp('F.prep')
        for P in range(5):
            e(f's_mov_b32 s{68+2*P}, {0x00010001<<P}\ns_mov_b32 s{69+2*P}, {0x00010001<<P}')
        self.lmask((46,47))
        if self.o.get('fdelay'): e(f's_sleep {self.o["fdelay"]}')
        vH = 64
        e('L_F_POLL:')
        e(f'buffer_load_dwordx4 {v(vH,4)}, v46, {srd(rWS)}, s79 offen sc1')
        e(f'buffer_load_dwordx4 {v(vH+4,4)}, v46, {srd(rWS)}, s79 offen offset:128 sc1')
        e(f'buffer_load_dwordx4 {v(vH+8,4)}, v47, {srd(rWS)}, s79 offen offset:256 sc1')
        e('s_waitcnt vmcnt(0)')
        e(f'v_mfma_f32_16x16x32_bf16 v[76:79], {v(vI,4)}, {v(vH,4)}, {v(vC0,4)}')
        e(f'v_mfma_f32_16x16x32_bf16 v[76:79], {v(vI+4,4)}, {v(vH+4,4)}, v[76:79]')
        e(f'v_mfma_f32_16x16x32_bf16 v[80:83], {v(vI,4)}, {v(vH+8,4)}, {v(vC1,4)}')
        self.maxchain(12, range(vH, vH+12))
        e('v_cmp_eq_u32 vcc, -1, v12')
        self.retry('L_F_POLL', vregs=(46,47), sleep=self.o.get('fsleep',0))
        self.stamp('F.h3b')
        vB = 128
        for r in range(4): e(f'v_add_f32_dpp v{76+r}, v{76+r}, v{76+r} row_ror:8 {DPP}')
        e('v_cvt_pk_bf16_f32 v84, v76, v77\nv_cvt_pk_bf16_f32 v85, v78, v79\nds_write_b64 v48, v[84:85]')
        for s in range(4): e(f'ds_read_b128 {v(vB+4*s,4)}, v50 offset:{s*64}')
        for r in range(4): e(f'v_add_f32_dpp v{80+r}, v{80+r}, v{80+r} row_ror:8 {DPP}')
        e('v_cvt_pk_bf16_f32 v86, v80, v81\nv_cvt_pk_bf16_f32 v87, v82, v83\nds_write_b64 v49, v[86:87]')
        for s in range(4,6): e(f'ds_read_b128 {v(vB+4*s,4)}, v50 offset:{s*64}')
        e('v_pk_add_f32 v[88:89], v[76:77], v[78:79]\nv_pk_mul_f32 v[92:93], v[76:77], v[76:77]\nv_pk_add_f32 v[90:91], v[80:81], v[82:83]\nv_pk_fma_f32 v[92:93], v[78:79], v[78:79], v[92:93]')
        e('v_pk_add_f32 v[88:89], v[88:89], v[90:91]\nv_pk_fma_f32 v[92:93], v[80:81], v[80:81], v[92:93]\nv_pk_fma_f32 v[92:93], v[82:83], v[82:83], v[92:93]')
        st = [['v_add_f32 v88, v88, v89', 'v_add_f32 v92, v92, v93'], ['s_nop 0', 'v_permlane32_swap_b32 v88, v92', 'v_add_f32 v88, v88, v92'], ['v_mov_b32 v92, v88'],
              ['s_nop 0', 'v_permlane16_swap_b32 v88, v92', 'v_add_f32 v88, v88, v92'], ['s_nop 0', f'v_add_f32_dpp v88, v88, v88 quad_perm:[1,0,3,2] {DPP}'],
              [f'v_add_f32_dpp v88, v88, v88 quad_perm:[2,3,0,1] {DPP}', f'v_add_f32_dpp v88, v88, v88 row_half_mirror {DPP}', 'v_mul_f32 v88, 0x3acccccd, v88', 'ds_write_b32 v54, v88']]
        for s in range(6):
            e(f's_waitcnt lgkmcnt({[6,5,4,3,1,0][s]})')
            e(f'v_mfma_f32_16x16x32_bf16 v[96:99], {a(32+s*4,4)}, {v(vB+4*s,4)}, ' + ('0' if s == 0 else 'v[96:99]'))
            for x in st[s]: e(x)
        e('ds_write_b128 v45, v[96:99]\ns_waitcnt lgkmcnt(0)\ns_barrier')
        self.stamp('F.abar')
        e('ds_read_b128 v[100:103], v44\nds_read_b128 v[104:107], v44 offset:16')
        for w in range(4): e(f'ds_read_b128 {v(128+4*w,4)}, v55 offset:{64*w}')
        e(f"""
        s_waitcnt lgkmcnt(4)
        v_pk_add_f32 v[100:101], v[100:101], v[102:103]
        v_pk_add_f32 v[104:105], v[104:105], v[106:107]
        v_add_f32 v100, v100, v101
        v_add_f32 v104, v104, v105
        v_fma_f32 v104, -v100, v100, v104
        v_max_f32 v104, 0, v104
        v_add_f32 v104, 0x3727c5ac, v104
        v_rsq_f32 v104, v104
        s_waitcnt lgkmcnt(0)
        v_pk_fma_f32 v[128:129], {v(vS1,2)}, v[100:101], v[128:129] op_sel_hi:[1,0,1] neg_lo:[0,1,0] neg_hi:[0,1,0]
        v_pk_fma_f32 v[130:131], {v(vS1+2,2)}, v[100:101], v[130:131] op_sel_hi:[1,0,1] neg_lo:[0,1,0] neg_hi:[0,1,0]
        v_pk_add_f32 v[136:137], v[136:137], v[140:141]
        v_pk_add_f32 v[138:139], v[138:139], v[142:143]
        v_pk_add_f32 v[128:129], v[128:129], v[132:133]
        v_pk_add_f32 v[130:131], v[130:131], v[134:135]
        v_pk_add_f32 v[128:129], v[128:129], v[136:137]
        v_pk_add_f32 v[130:131], v[130:131], v[138:139]
        v_pk_fma_f32 v[128:129], v[128:129], v[104:105], {v(vB1,2)} op_sel_hi:[1,0,1]
        v_pk_fma_f32 v[130:131], v[130:131], v[104:105], {v(vB1+2,2)} op_sel_hi:[1,0,1]
        """)
        for r in range(4): e(f'v_max_f32 v{128+r}, 0, v{128+r}')
        e('v_pk_mul_f32 v[128:129], v[128:129], v[128:129]\nv_pk_mul_f32 v[130:131], v[130:131], v[130:131]')
        e('v_cvt_pk_bf16_f32 v108, v128, v129\nv_cvt_pk_bf16_f32 v109, v130, v131')
        self.stamp('F.f1')
        def cm(P): e(f'v_cndmask_b32 v{110+2*P}, 0, v108, s[{68+2*P}:{69+2*P}]\nv_cndmask_b32 v{111+2*P}, 0, v109, s[{68+2*P}:{69+2*P}]')
        cm(0); cm(1)
        for P in range(5):
            for hb in range(2):
                e(f'v_mfma_f32_16x16x16_bf16 {v(120+4*hb,4)}, {a(56+P*4+2*hb,2)}, {v(110+2*P,2)}, ' + ('0' if P == 0 else v(120+4*hb,4)))
                if hb == 0 and P+2 < 5: cm(P+2)
        for i in range(4): e(f'v_cvt_pk_bf16_f32 v{64+i}, v{120+2*i}, v{121+2*i}')
        for i in range(4): e(f'v_min_u32 v{64+i}, -2, v{64+i}')
        self.pub('v[64:67]', 51)
        self.stamp('F.end')
        e('s_branch L_END')
        e('L_FIN:')
        e(f's_and_b32 s{s0}, s{sAi}, 2\ns_cbranch_scc1 L_END')
        self.mk_srd(rA, pOUT, None, 1280)
        e(f's_cmp_eq_u32 s{sW}, 0\ns_cselect_b32 s{s1}, -1, 0')
        for r in range(4): e(f'v_and_b32 v{32+r}, s{s1}, v{vI+r}')
        e(f'v_pk_add_f32 {v(vC0,2)}, {v(vC0,2)}, {v(vC1,2)}\nv_pk_add_f32 {v(vC0+2,2)}, {v(vC0+2,2)}, {v(vC1+2,2)}\nv_mov_b32 v45, s{sT0}')
        self.lmask((46,))
        e('L_R_P1:')
        e(f'buffer_load_dwordx4 v[64:67], v46, {srd(rWS)}, s79 offen sc1\ns_waitcnt vmcnt(0)')
        self.maxchain(12, range(64,68))
        e('v_cmp_eq_u32 vcc, -1, v12')
        self.retry('L_R_P1', sleep=1, vregs=(46,))
        self.stamp('R.h3b')
        self.lmask((48,49,50,51))
        e(f'v_mfma_f32_16x16x32_bf16 {v(vC0,4)}, v[32:35], v[64:67], {v(vC0,4)}')
        if self.o.get('rdelay'): e(f's_sleep {self.o["rdelay"]}')
        e('L_R_P2:')
        for i in range(4): e(f'buffer_load_dwordx4 {v(68+4*i,4)}, v{48+i}, {srd(rWS)}, s78 offen sc1')
        e('s_waitcnt vmcnt(0)')
        for i in range(4): e(f'v_mfma_f32_16x16x32_bf16 v[104:107], {v(vI,4)}, {v(68+4*i,4)}, ' + (v(vC0,4) if i == 0 else 'v[104:107]'))
        self.maxchain(12, range(68,84))
        e('v_cmp_eq_u32 vcc, -1, v12')
        self.retry('L_R_P2', vregs=(48,49,50,51), sleep=0)
        self.stamp('R.h4')
        for r in range(4): e(f'v_add_f32_dpp v{104+r}, v{104+r}, v{104+r} row_ror:8 {DPP}')
        e(f'ds_write_b128 v52, v[104:107]\ns_waitcnt lgkmcnt(0)\ns_barrier')
        e(f's_cmp_lg_u32 s{sW}, 0\ns_cbranch_scc1 L_END')
        self.red_final(RED, 128, 54, False)
        e(f'buffer_store_dwordx2 v[128:129], v53, {srd(rA)}, s{sB} offen')
        e(f's_cmp_lg_u32 s{sK}, 0\ns_cbranch_scc1 L_END2')
        e(f'buffer_store_dword v45, v55, {srd(rWS)}, 0 offen offset:{EPOCH} sc1')
        e('L_END2:')
        self.stamp('R.end')
        e('s_branch L_END')

    def role_T(self):
        e = self.e
        MX = QB; LX = QB+512; PB = QB+1024
        WO = 0; HB = 65536
        sT, s0, s1, s2_ = 72, 63, 64, 65
        e('L_T:')
        if self.o.get('noT'): e('s_branch L_END')
        e(f"""
        s_load_dword s{sE}, s[{pWS}:{pWS+1}], {EPOCH}
        s_lshl_b32 s{sT}, s{sX8}, 4
        s_add_u32 s{sT}, s{sT}, s{sR}
        s_lshl_b32 s66, s{sT}, 11
        s_add_u32 s66, s66, {SL}
        s_add_u32 s71, s66, {S_H4}
        s_cmp_eq_u32 s{sW}, 0
        s_cselect_b32 s66, s66, {WSSZ}
        s_add_u32 s70, s66, {LOC}
        v_mov_b32 v16, -1
        v_mov_b32 v17, -1
        v_mov_b32 v18, -1
        v_mov_b32 v19, -1
        v_and_b32 v12, 0x1ff, v3
        v_lshrrev_b32 v13, 5, v0
        v_lshl_add_u32 v12, v13, 20, v12
        buffer_store_dwordx4 v[16:19], v12, {srd(rWS)}, s66 offen sc1
        s_lshl_b32 s{s0}, s{sT}, 9
        s_add_u32 s{s0}, s{s0}, {QP+LOC}
        s_cmp_eq_u32 s{sW}, 1
        s_cselect_b32 s{s0}, s{s0}, {WSSZ}
        v_cmp_gt_u32 vcc, 32, v0
        v_cndmask_b32 v12, v9, v3, vcc
        buffer_load_dwordx4 v[200:203], v12, {srd(rWS)}, s{s0} offen nt
        """)
        nwq = self.o.get('t_wq', 5)
        e(f's_add_u32 s61, s61, {(10-nwq)*4*32768}\ns_lshl_b32 s62, s{sW}, 13\ns_add_u32 s62, s62, {QB}\ns_mov_b32 m0, s62')
        for k in range(nwq):
            e(f'buffer_load_dwordx4 v8, {srd(rA)}, s61 offen nt lds')
            if k < nwq-1: e(f's_add_u32 s61, s61, {4*32768}')
        e(f's_lshl_b32 s{s0}, s{sT}, 17')
        self.mk_srd(rB, pCKV, s0, 16777216)
        e(f'v_lshl_add_u32 v52, v2, 10, v5\nv_xor_b32 v53, 0x80, v52\ns_lshl_b32 s68, s{sW}, 15\ns_lshl_b32 s69, s{sW}, 13')
        def dma(n):
            c, i = n >> 3, n & 7
            e(f's_add_u32 m0, s69, {c*32768+i*1024}\ns_add_u32 s{sTMP}, s68, {i*4096+c*256}')
            e(f'buffer_load_dwordx4 v{52+(i&1)}, {srd(rB)}, s{sTMP} offen nt lds')
        n0 = self.o.get('n0', 2)
        thr = dict(self.o.get('t_throttle', []))
        for n in range(n0): dma(n)
        e(f's_cmp_lg_u32 s{sW}, 0\ns_cbranch_scc1 L_T_NOCNT\ns_waitcnt vmcnt({1+nwq+n0}) lgkmcnt(0)')
        self.tags()
        self.stamp('T.rst')
        e(f"""
        s_lshl_b32 s79, s{sX8}, 5
        s_add_u32 s79, s79, s{sR}
        s_lshl_b32 s79, s79, 2
        s_add_u32 s79, s79, {RDY}
        s_mov_b32 s78, s{sT0}
        s_atomic_swap s78, s[{pWS}:{pWS+1}], s79
        L_T_NOCNT:
        v_cmp_gt_u32 vcc, 16, v0
        v_cndmask_b32 v12, v9, v3, vcc
        buffer_load_dwordx4 v[204:207], v12, {srd(rWS)}, s70 offen sc1
        """)
        vm = [('d',n) for n in range(n0)] + ['pt']
        vKa, vQa, vVa = 24, 28, 32
        vPS, vRS, vMW, vMR, vPW, vPR, vQC, vLR = 40, 41, 42, 43, 44, 45, 46, 47
        vQS = 120
        pre = []
        pre.append(f'v_and_b32 v12, 7, v1\nv_lshlrev_b32 v12, 5, v12\nv_lshlrev_b32 v13, 10, v1\nv_lshlrev_b32 v14, 8, v1\nv_add_u32 v14, s69, v14\nv_add_u32 v13, {QB}, v13')
        for s3 in range(4):
            pre.append(f'v_add_u32 v15, {s3*64}, v11\nv_xor_b32 v15, v15, v12\nv_add_u32 v{vKa+s3}, v14, v15\nv_add_u32 v{vQa+s3}, v13, v15')
        pre.append(f"""
        v_lshrrev_b32 v13, 2, v0
        v_and_b32 v15, 7, v13
        v_lshlrev_b32 v13, 8, v13
        v_and_b32 v12, 3, v1
        v_lshl_add_u32 v13, v12, 3, v13
        s_lshl_b32 s{s2_}, s{sW}, 1
        v_xor_b32 v15, s{s2_}, v15
        v_lshl_add_u32 v{vVa}, v15, 5, v13
        v_xor_b32 v15, 1, v15
        v_lshl_add_u32 v{vVa+1}, v15, 5, v13
        v_add_u32 v{vVa+2}, 0x10000, v{vVa}
        v_add_u32 v{vVa+3}, 0x10000, v{vVa+1}
        v_lshlrev_b32 v12, 13, v2
        v_lshl_add_u32 v12, v1, 4, v12
        """)
        for i in range(8): pre.append(f'v_xor_b32 v{vQS+i}, {(i<<5) + (i&3)*2048}, v12')
        pre.append(f"""
        v_lshlrev_b32 v12, 6, v0
        v_lshl_add_u32 v12, v1, 2, v12
        v_add_u32 v{vQC}, s62, v12
        s_lshl_b32 s76, s{sW}, 16
        s_add_u32 s76, s76, {SL+S_QL}
        s_add_u32 s77, s76, 32768
        s_lshl_b32 s{s0}, s{sW}, 1
        s_cmp_eq_u32 s{s0}, s{sX8}
        s_cselect_b32 s{s1}, {LOC}, 0
        s_add_u32 s76, s76, s{s1}
        s_add_u32 s{s0}, s{s0}, 1
        s_cmp_eq_u32 s{s0}, s{sX8}
        s_cselect_b32 s{s1}, {LOC}, 0
        s_add_u32 s77, s77, s{s1}
        v_lshlrev_b32 v12, 19, v2
        v_lshl_add_u32 v12, v1, 4, v12
        s_lshl_b32 s{s2_}, s{sT}, 8
        s_add_u32 s{s2_}, s{s2_}, s68
        s_add_u32 s{s2_}, s{s2_}, {PART}
        v_add_u32 v{vPS}, s{s2_}, v12
        s_lshl_b32 s{s2_}, s{sT}, 11
        s_lshl_b32 s{s0}, s{sW}, 9
        s_add_u32 s{s2_}, s{s2_}, s{s0}
        s_add_u32 s{s2_}, s{s2_}, {REC}
        v_and_b32 v13, 1, v1
        v_lshrrev_b32 v12, 2, v0
        v_lshl_add_u32 v12, v13, 4, v12
        v_lshlrev_b32 v12, 4, v12
        v_add_u32 v{vLR}, {MX}, v12
        v_add_u32 v12, s{s2_}, v12
        v_and_b32 v13, 2, v1
        v_cmp_eq_u32 vcc, 0, v13
        v_cndmask_b32 v{vRS}, v9, v12, vcc
        v_lshrrev_b32 v12, 1, v2
        v_lshl_add_u32 v12, v12, 4, v1
        v_lshlrev_b32 v12, 4, v12
        s_lshl_b32 s{s2_}, s{sW}, 2
        s_add_u32 s{s2_}, s{s2_}, {MX}
        v_add_u32 v{vMW}, s{s2_}, v12
        v_lshlrev_b32 v12, 4, v1
        v_add_u32 v{vMR}, {MX}, v12
        v_add_u32 v22, s{s2_}, v12
        v_mov_b32 v38, 0x3e0293ee
        s_lshl_b32 s{s2_}, s{sW}, 11
        s_add_u32 s{s2_}, s{s2_}, {PB}
        v_add_u32 v{vPW}, s{s2_}, v3
        v_add_u32 v{vPR}, {PB}, v3
        s_and_b32 s{s0}, s{sW}, 1
        s_mul_i32 s{s0}, s{s0}, 640
        s_add_u32 s71, s71, s{s0}
        s_lshr_b32 s{s0}, s{sW}, 1
        s_lshl_b32 s{s0}, s{s0}, 20
        s_add_u32 s71, s71, s{s0}
        s_cmp_lt_u32 s{sT}, 116
        s_cselect_b32 s{s0}, 40, 0
        v_cmp_gt_u32 vcc, s{s0}, v0
        v_cndmask_b32 v20, v9, v3, vcc
        v_lshrrev_b32 v12, 3, v0
        v_lshrrev_b32 v13, 1, v12
        v_and_b32 v14, 1, v12
        v_lshl_add_u32 v13, v14, 4, v13
        v_mul_u32_u24 v13, 1280, v13
        v_and_b32 v14, 7, v0
        v_lshlrev_b32 v14, 4, v14
        v_and_b32 v12, 1, v2
        v_lshlrev_b32 v12, 5, v12
        v_xor_b32 v14, v14, v12
        v_add_u32 v36, v13, v14
        v_xor_b32 v14, 64, v14
        v_add_u32 v37, v13, v14
        s_lshl_b32 s73, s{sX8}, 2
        s_add_u32 s73, s73, s{sW}
        s_mul_i32 s73, s73, 163840
        s_lshl_b32 s{s1}, s{sR}, 7
        s_add_u32 s73, s73, s{s1}
        s_lshl_b32 s74, s{sW}, 14
        """)
        def qloads():
            for i in range(8):
                e(f's_add_u32 m0, s62, {i*1024}')
                e(f'buffer_load_dwordx4 v{vQS+i}, {srd(rWS)}, s{76+(i>>2)} offen sc1 lds')
        kdone = set()
        def younger(item): return len(vm) - 1 - vm.index(item)
        def kv(c):
            e(f's_waitcnt vmcnt({younger(("d",8*c+7))})')
            if c == 3: self.stamp('T.ckv')
            if c == 2:
                for s3 in range(4): e(f'v_add_u32 v{vKa+s3}, 0x10000, v{vKa+s3}')
            for s3 in range(4):
                for kt in range(2):
                    e(f'ds_read_b128 {a(((4*c+s3)*2+kt)*4,4)}, v{vKa+s3} offset:{(c&1)*32768+kt*4096}')
            kdone.add(c)
            e('s_barrier')
            for ks in range(4):
                for T2 in range(2):
                    for q in range(2):
                        e(f'ds_read_b64_tr_b16 {a(128+(ks*8+2*c+T2)*4+2*q,2)}, v{vVa+T2+2*(c>>1)} offset:{(c&1)*32768+ks*8192+q*4096}')
        qpos = self.o.get('qpos', 32); npre = self.o.get('npre', 4)
        klag = self.o.get('klag', 12)
        for n in range(n0, 33):
            if n == npre:
                for x in pre: e(x)
            if n == qpos - self.o.get('rdylead', 8):
                e(f's_lshl_b32 s75, s{sW}, 8\ns_add_u32 s75, s75, {RDY}')
                e(f's_load_dwordx8 s[8:15], s[{pWS}:{pWS+1}], s75\ns_load_dwordx4 s[20:23], s[{pWS}:{pWS+1}], s75 offset:32\ns_load_dwordx4 s[48:51], s[{pWS}:{pWS+1}], s75 offset:48')
                e(f's_load_dwordx8 s[24:31], s[{pWS}:{pWS+1}], s75 offset:128\ns_load_dwordx4 s[56:59], s[{pWS}:{pWS+1}], s75 offset:160\ns_load_dwordx2 s[16:17], s[{pWS}:{pWS+1}], s75 offset:176\ns_load_dwordx2 s[32:33], s[{pWS}:{pWS+1}], s75 offset:184')
            if n == qpos:
                e('s_waitcnt lgkmcnt(0)')
                self.tags()
                prs = [12,14,16] + list(range(20,34,2)) + [48,50,56,58]
                e('s_and_b64 s[60:61], s[8:9], s[10:11]\ns_or_b64 s[66:67], s[8:9], s[10:11]')
                for p in prs: e(f's_and_b64 s[60:61], s[60:61], s[{p}:{p+1}]\ns_or_b64 s[66:67], s[66:67], s[{p}:{p+1}]')
                e(f's_and_b32 s60, s60, s61\ns_or_b32 s66, s66, s67\ns_xor_b32 s60, s60, s{sT0}\ns_xor_b32 s66, s66, s{sT0}\ns_or_b32 s60, s60, s66')
                e('s_cbranch_scc0 L_T_RDYOK')
                e('v_and_b32 v12, 1, v2\nv_lshlrev_b32 v12, 7, v12\nv_lshl_add_u32 v12, v1, 2, v12')
                e('L_T_RDY:')
                self.timeout()
                e(f'buffer_load_dword v13, v12, {srd(rWS)}, s75 offen sc1\ns_waitcnt vmcnt(0)\nv_cmp_ne_u32 vcc, s{sT0}, v13\ns_cbranch_vccnz L_T_RDY')
                e('L_T_RDYOK:')
                self.stamp('T.qiss')
                e(f's_lshl_b32 s79, s{sT}, 7\ns_add_u32 s79, s79, {GATE}\ns_cmp_eq_u32 s{sW}, 0\ns_cselect_b32 s79, s79, {OOB}\nv_mov_b32 v39, s79\nv_mov_b32 v21, s{sT1}')
                qloads(); vm += [('q',i) for i in range(8)]
                self.mk_srd(rA, pWO, 73, 5242880)
                e(f's_cmp_lt_u32 s{sR}, 10\ns_cselect_b32 s{rA+2}, s{rA+2}, 0')
            if n < 32:
                dma(n); vm.append(('d',n))
                if n in thr: e(f's_waitcnt vmcnt({thr[n]})')
            for c in range(3):
                if c not in kdone and n >= npre and ('d',8*c+7) in vm and younger(('d',8*c+7)) >= klag and (c == 0 or c-1 in kdone): kv(c)
        self.stamp('T.issued')
        if self.o.get('gate') == 1:
            e(f'buffer_store_dword v21, v39, {srd(rWS)}, 0 offen'); vm.append('gate')
        if self.o.get('tonly'):
            e('s_waitcnt vmcnt(0)'); self.stamp('T.ckv0'); e('s_branch L_END')
        for c in range(4):
            if c not in kdone: kv(c)
        if self.o.get('gate') == 2:
            e(f'buffer_store_dword v21, v39, {srd(rWS)}, 0 offen'); vm.append('gate')
        e('s_branch L_T_Q1')
        e('L_T_Q0:')
        self.fb((), (76, 77)); e(f's_sleep {self.o.get("qsleep",1)}')
        qloads()
        e('L_T_Q1:')
        e(f's_waitcnt vmcnt(0)\nds_read_b32 v12, v{vQC}\nds_read_b32 v13, v{vQC} offset:4096\ns_waitcnt lgkmcnt(0)\nv_max_u32 v12, v12, v13\nv_cmp_eq_u32 vcc, -1, v12\ns_cbranch_vccnz L_T_Q0')
        self.stamp('T.qin')
        if self.o.get('gate') == 3:
            e(f'buffer_store_dword v21, v39, {srd(rWS)}, 0 offen'); vm.append('gate')
        e('s_barrier')
        self.stamp('T.Qbar')
        def wo_ops(i): return [f's_add_u32 m0, s74, {WO+i*1024}', f's_mov_b32 s{sTMP}, {(32*(i>>2)+4*(i&3))*1280}', f'buffer_load_dwordx4 v{36+(i&1)}, {srd(rA)}, s{sTMP} offen nt lds']
        nwe = self.o.get('wo_early', 10)
        vS = 48; vP = 76; vPF = 88; vAcc = 128; vO = 192
        def qreg(s, ht): return 128 + ht*64 + s*4
        def qread(s, ht): return f'ds_read_b128 {v(qreg(s,ht),4)}, v{vQa+(s&3)} offset:{(s>>2)*256+ht*16384}'
        def qk(s, kt, ht):
            d = v(vS+(kt*2+ht)*4,4)
            return f'v_mfma_f32_16x16x32_bf16 {d}, {a((s*2+kt)*4,4)}, {v(qreg(s,ht),4)}, ' + ('0' if s == 0 else d)
        def pv(ks, T, ht):
            d = v(vAcc+(ht*8+T)*4,4)
            return f'v_mfma_f32_16x16x32_bf16 {d}, {v(vPF+(ks*2+ht)*4,4)}, {a(128+(ks*8+T)*4,4)}, ' + ('0' if ks == 0 else d)
        def ver(s, ht): return f'v_max3_u32 v23, v23, v{qreg(s,ht)}, v{qreg(s,ht)+2}'
        def cost(x): return 2 if x.startswith('v_exp') else (0 if x.startswith('s_') else 1)
        def stream(mf, toks, bg):
            skip = 0
            for m in mf:
                e(m)
                b = 2
                if skip: skip -= 1
                else:
                    while toks:
                        t = toks[0]
                        if isinstance(t, tuple): skip = t[1]; toks.pop(0); break
                        if cost(t) > b: break
                        e(t); b -= cost(t); toks.pop(0)
                while bg and cost(bg[0]) <= b:
                    b -= cost(bg[0]); e(bg.pop(0))
            return toks
        def flush(toks):
            for t in toks:
                if not isinstance(t, tuple): e(t)
        D = 4
        for s in range(D): e(qread(s,0))
        e(f'v_mov_b32 v23, 0\nbuffer_store_dwordx4 v[16:19], v20, {srd(rWS)}, s71 offen sc1')
        rd = [(s,0) for s in range(D,16)] + [(s,1) for s in range(16)]
        issued = D
        wo = [wo_ops(i) for i in range(nwe)]
        for s in range(16):
            e(f's_waitcnt lgkmcnt({min(15, issued-1-s)})')
            if s == 15: e('s_barrier')
            for kt in range(2):
                e(qk(s,kt,0))
                if rd: e(qread(*rd.pop(0))); issued += 1
                if kt == 0: e(ver(s,0))
                elif wo: flush(wo.pop(0))
        self.stamp('T.QK0')
        def sm(ht):
            r0 = vS+ht*4; r1 = vS+8+ht*4; m = 64; t = 65; M = 66+ht; rb = 72
            a_ = [f'v_max3_f32 v{m}, v{r0}, v{r0+1}, v{r0+2}', f'v_max3_f32 v{t}, v{r1}, v{r1+1}, v{r1+2}', f'v_max3_f32 v{m}, v{m}, v{r0+3}, v{r1+3}', f'v_max_f32 v{m}, v{m}, v{t}',
                  f'v_mov_b32 v{t}, v{m}', ('gap',0), f'v_permlane32_swap_b32 v{m}, v{t}', f'v_max_f32 v{m}, v{m}, v{t}', f'v_mov_b32 v{t}, v{m}', ('gap',0),
                  f'v_permlane16_swap_b32 v{m}, v{t}', f'v_max_f32 v{m}, v{m}, v{t}', f'ds_write_b32 v22, v{m} offset:{ht*256}']
            b_ = ['s_waitcnt lgkmcnt(0)', 's_barrier', f'ds_read_b128 {v(rb,4)}, v{vMR} offset:{ht*256}']
            c_ = ['s_waitcnt lgkmcnt(0)', f'v_max3_f32 v{M}, v{rb}, v{rb+1}, v{rb+2}', f'v_max_f32 v{M}, v{M}, v{rb+3}', f'v_mul_f32 v{M}, v38, v{M}']
            for b in (r0, r1):
                for r in range(4): c_.append(f'v_fma_f32 v{b+r}, v{b+r}, v38, -v{M}')
            for b in (r0, r1):
                for r in range(4): c_.append(f'v_exp_f32 v{b+r}, v{b+r}')
            for k,b in enumerate((r0, r1)):
                c_ += [f'v_cvt_pk_bf16_f32 v{vP+ht*4+k*2}, v{b}, v{b+1}', f'v_cvt_pk_bf16_f32 v{vP+ht*4+k*2+1}, v{b+2}, v{b+3}']
            c_.append(f'ds_write_b128 v{vPW}, {v(vP+ht*4,4)} offset:{ht*1024}')
            d_ = ['s_waitcnt lgkmcnt(0)', 's_barrier'] + [f'ds_read_b128 {v(vPF+(ks*2+ht)*4,4)}, v{vPR} offset:{(ks*2+ht)*1024}' for ks in range(4)]
            return a_, b_, c_, d_
        g1 = self.o.get('g1', 2); g2 = self.o.get('g2', 2)
        a0,b0,c0,d0 = sm(0); a1_,b1,c1,d1 = sm(1)
        e('s_waitcnt lgkmcnt(0)')
        mf = [qk(s,kt,1) for s in range(16) for kt in range(2)]
        bg = [ver(s,1) for s in range(16)]
        left = stream(mf, [('gap',1)] + a0 + [('gap',g1)] + b0 + [('gap',g2)] + c0, bg)
        flush(left)
        self.stamp('T.QK')
        flush(bg)
        flush(a1_)
        e('v_cmp_eq_u32 vcc, -1, v23')
        flush(d0[:2])
        e('s_cbranch_vccnz L_T_Q0')
        flush(d0[2:] + b1[2:])
        self.stamp('T.Pbar')
        def lsum(ht, dst):
            r0 = vS+ht*4; r1 = vS+8+ht*4
            return [f'v_add_f32 v{r0}, v{r0}, v{r0+1}', f'v_add_f32 v{r0+2}, v{r0+2}, v{r0+3}', f'v_add_f32 v{r1}, v{r1}, v{r1+1}', f'v_add_f32 v{r1+2}, v{r1+2}, v{r1+3}',
                    f'v_add_f32 v{r0}, v{r0}, v{r0+2}', f'v_add_f32 v{r1}, v{r1}, v{r1+2}', f'v_add_f32 v{dst}, v{r0}, v{r1}']
        flush(lsum(0, 70))
        e('s_waitcnt lgkmcnt(4)')
        mf = [pv(ks,T,0) for ks in range(4) for T in range(8)]
        left = stream(mf, [('gap',0)] + c1 + lsum(1, 71) + [('gap',self.o.get('g3',0))] + d1, [])
        flush(left)
        self.stamp('T.pv4')
        def outops(ht):
            ops = []
            for r in range(4):
                o = vO + (ht*4+r)*4
                for k in range(4):
                    ops.append(f'v_cvt_pk_bf16_f32 v{o+k}, v{vAcc+(ht*8+2*k)*4+r}, v{vAcc+(ht*8+2*k+1)*4+r}')
                ops.append(f's_mov_b32 s{sTMP}, {(16*ht+r)*131072}')
                ops.append(f'buffer_store_dwordx4 {v(o,4)}, v{vPS}, {srd(rWS)}, s{sTMP} offen sc1')
            return ops
        e('s_waitcnt lgkmcnt(0)')
        mf = [pv(ks,T,1) for ks in range(4) for T in range(8)]
        cs = self.o.get('cs', 1)
        def csum(ht):
            c = 48 + 4*ht; y = 56 + 2*ht; z = 60 + ht
            ops = []
            for r in range(4):
                o = vO + (ht*4+r)*4
                ops.append([f'v_add3_u32 v{c+r}, v{o}, v{o+1}, v{o+2}', f'v_add_u32 v{c+r}, v{c+r}, v{o+3}'])
            red = [f'v_add_u32_dpp v{y}, v{c}, v{c} row_ror:8 row_mask:0xf bank_mask:0x3', f'v_add_u32_dpp v{y+1}, v{c+1}, v{c+1} row_ror:8 row_mask:0xf bank_mask:0x3',
                   f'v_add_u32_dpp v{y}, v{c+2}, v{c+2} row_ror:8 row_mask:0xf bank_mask:0xc', f'v_add_u32_dpp v{y+1}, v{c+3}, v{c+3} row_ror:8 row_mask:0xf bank_mask:0xc',
                   f'v_add_u32_dpp v{z}, v{y}, v{y} row_shl:4 row_mask:0xf bank_mask:0x5', f'v_add_u32_dpp v{z}, v{y+1}, v{y+1} row_shr:4 row_mask:0xf bank_mask:0xa',
                   f'v_add_u32_dpp v{z}, v{z}, v{z} quad_perm:[1,0,3,2] {DPP}', f'v_add_u32_dpp v{z}, v{z}, v{z} quad_perm:[2,3,0,1] {DPP}']
            return ops, red
        def out_cs(ht):
            if not cs: return outops(ht)
            o = outops(ht); l, red = csum(ht); res = []
            for r in range(4): res += o[6*r:6*r+6] + l[r]
            return res + red
        ltail = ['v_permlane32_swap_b32 v70, v71','v_add_f32 v70, v70, v71','v_mov_b32 v71, v70', f'ds_read_b128 v[76:79], v{vLR}', 'v_permlane16_swap_b32 v70, v71','v_add_f32 v70, v70, v71',
                 f'ds_write_b32 v{vMW}, v70 offset:512', 'v_and_b32 v71, 1, v1']
        recops = ['s_waitcnt lgkmcnt(0)', 's_barrier', f'ds_read_b128 v[72:75], v{vLR} offset:512', 'v_max3_f32 v84, v76, v77, v78', 'v_max_f32 v84, v84, v79', 'v_mul_f32 v84, v38, v84',
                  f'v_mov_b32 v86, s{sT0}', f'v_mov_b32 v87, s{sT0 if cs else sT1}', 'v_cmp_eq_u32 vcc, 1, v71', ('gap',1), 's_waitcnt lgkmcnt(0)', 'v_add_f32 v72, v72, v73', 'v_add_f32 v74, v74, v75', 'v_add_f32 v85, v72, v74']
        left = stream(mf, ltail + out_cs(0) + recops, [])
        flush(left)
        self.stamp('T.pv8')
        flush(out_cs(1))
        if cs: e('v_cndmask_b32 v86, v60, v61, vcc\nv_sub_u32 v86, 0, v86')
        self.stamp('T.PVst')
        rw = self.o.get('recwait', None if cs else 0)
        e(f's_waitcnt vmcnt({nwe+8 if rw is None else rw})')
        self.pub('v[84:87]', vRS)
        self.stamp('T.rec')
        e(f's_cmp_ge_u32 s{sR}, 10\ns_cbranch_scc1 L_END')
        for i in range(nwe, 16): flush(wo_ops(i))
        e(f"""
        v_lshrrev_b32 v12, 2, v1
        v_lshl_add_u32 v12, v2, 3, v12
        v_lshlrev_b32 v12, 7, v12
        v_and_b32 v13, 3, v1
        v_lshl_add_u32 v12, v13, 3, v12
        v_lshrrev_b32 v14, 3, v1
        v_and_b32 v15, 1, v2
        v_lshl_or_b32 v14, v15, 1, v14
        v_xor_b32 v14, s{sW}, v14
        v_lshl_add_u32 v24, v14, 5, v12
        v_mul_u32_u24 v13, 320, v13
        v_add_u32 v13, v13, v11
        v_add_u32 v25, {HB}, v13
        v_mul_u32_u24 v12, 320, v2
        v_lshl_add_u32 v12, v1, 4, v12
        s_mul_i32 s{s0}, s{sW}, 1280
        s_add_u32 s{s0}, s{s0}, {HB}
        v_add_u32 v26, s{s0}, v12
        v_lshlrev_b32 v12, 4, v1
        v_lshl_add_u32 v27, v2, 13, v12
        s_lshl_b32 s75, s{sX8}, 4
        s_add_u32 s75, s75, s{sW}
        s_lshl_b32 s75, s75, 11
        s_add_u32 s75, s75, {SL+S_HC+LOC}
        s_and_b32 s75, s75, s{sLM}
        s_lshl_b32 s{s0}, s{sX8}, 11
        s_lshl_b32 s{s1}, s{sR}, 7
        s_add_u32 s{s0}, s{s0}, s{s1}
        s_lshl_b32 s{s1}, s{sW}, 5
        s_add_u32 s{s0}, s{s0}, s{s1}
        s_add_u32 s{s0}, s{s0}, {H3B}
        v_lshlrev_b32 v12, 1, v0
        v_add_u32 v12, s{s0}, v12
        v_cmp_gt_u32 vcc, 16, v0
        v_cndmask_b32 v28, v9, v12, vcc
        s_waitcnt vmcnt(0)
        s_barrier
        """)
        self.stamp('C.land')
        for st_ in range(16):
            for q in range(2): e(f'ds_read_b64_tr_b16 {a(st_*4+2*q,2)}, v24 offset:{WO+st_*4096+q*512}')
        e('L_C_HC:')
        e(f'buffer_load_dwordx4 v[76:79], v27, {srd(rWS)}, s75 offen sc1')
        e('s_waitcnt vmcnt(0)')
        e('ds_write_b128 v26, v[76:79]')
        self.maxchain(12, range(76,80))
        e('v_cmp_eq_u32 vcc, -1, v12')
        self.retry('L_C_HC', sleep=0, sregs=(75,))
        self.stamp('C.hcin')
        e('s_waitcnt lgkmcnt(0)\ns_barrier')
        self.stamp('C.bar')
        NP = 8
        def ar(st_): return f'ds_read_b128 {v(128+4*st_,4)}, v25 offset:{(st_>>2)*1280+(st_&3)*64}'
        for st_ in range(NP): e(ar(st_))
        for st_ in range(16):
            e(f's_waitcnt lgkmcnt({min(NP-1, 15-st_)})')
            e(f'v_mfma_f32_16x16x32_bf16 v[104:107], {v(128+4*st_,4)}, {a(st_*4,4)}, ' + ('0' if st_ == 0 else 'v[104:107]'))
            if st_+NP < 16: e(ar(st_+NP))
        e('v_pk_add_f32 v[104:105], v[104:105], v[106:107]\nv_add_f32 v104, v104, v105\nv_cvt_pk_bf16_f32 v104, v104, v104\nv_min_u32 v104, -2, v104')
        e(f'buffer_store_short v104, v28, {srd(rWS)}, 0 offen sc1\nbuffer_store_short v104, v28, {srd(rWS)}, s{sLOC} offen')
        self.stamp('C.h3')

    def epilogue(self):
        e = self.e
        e('L_END:')
        if self.stamps:
            e(f's_waitcnt lgkmcnt(0)\ns_lshl_b32 s60, s2, 2\ns_add_u32 s60, s60, s{sW}\ns_lshl_b32 s60, s60, 6\ns_add_u32 s60, s60, {STAMP}\nv_mov_b32 v4, 0')
            for k in range(11): e(f'v_mov_b32 v5, s{sSTAMP+2*k}\nbuffer_store_dword v5, v4, {srd(rWS)}, s60 offen offset:{4*k}')
            e(f'v_mov_b32 v5, s{sTO}\nbuffer_store_dword v5, v4, {srd(rWS)}, s60 offen offset:44')
        e('L_EXIT:')

    def build(self):
        if self.stamps:
            for k in range(1,11): self.e(f's_mov_b32 s{sSTAMP+2*k}, 0')
        self.prologue(); self.role_A(); self.role_T(); self.epilogue()
        hdr = open('header.txt').read()
        return f'''{hdr}; @launch grid=(256,1,1) block=(256,1,1) lds=163840
.amdgcn_target "amdgcn-amd-amdhsa--gfx950"
.text
.globl {KN}
.p2align 8
.type {KN},@function
{KN}:
{self.e.text()}
s_endpgm
.section .rodata,"a"
.p2align 6
.amdhsa_kernel {KN}
  .amdhsa_next_free_vgpr 512
  .amdhsa_next_free_sgpr 102
  .amdhsa_accum_offset 256
  .amdhsa_group_segment_fixed_size 0
  .amdhsa_kernarg_size 112
  .amdhsa_user_sgpr_count 2
  .amdhsa_user_sgpr_kernarg_segment_ptr 1
  .amdhsa_system_sgpr_workgroup_id_x 1
.end_amdhsa_kernel
'''

if __name__ == '__main__':
    import json
    out = sys.argv[1]; stamps = len(sys.argv) > 2 and sys.argv[2] == '1'
    opt = json.loads(sys.argv[3]) if len(sys.argv) > 3 else {}
    open(out,'w').write(G(stamps, opt).build())
```

```python
import sys
sys.path.insert(0,'work')
from dsl import Asm
NAME = 'sequential_preLN__compressed_kv_cla__dense_activation_squared_relu__decode'
KN = NAME + '_kernel'

EPOCH=0; RDY=0x1000; GATE=0x2000; QP=0x8000; SL=0x40000; REC=0x80000; LOC=0x100000; PART=0x200000; STAMP=0x600000
S_QL=0; S_HC=256; S_H4=512; H3B = SL + 108*2048 + S_H4
WSSZ=0x700000
OOB=0x7ffffff0
NLOC=96
sLM,sLC,sLOC,sTMP = 3,4,5,6
pX,pCKV,pWQ,pWUK,pWUV,pWO,pBX,pW1,pB1,pW2,pB2,pOUT,pDBG,pWS = [8+2*i for i in range(14)]
sW,sX8,sR,sE,sT0,sT1,sTO,sC = 36,37,38,39,40,41,42,43
rWS=44; rA=48; rB=52; rC=56
sSTAMP=80
def srd(r): return f's[{r}:{r+3}]'
def v(n,c=1): return f'v{n}' if c==1 else f'v[{n}:{n+c-1}]'
def a(n,c=1): return f'a{n}' if c==1 else f'a[{n}:{n+c-1}]'
DPP='row_mask:0xf bank_mask:0xf'
QB = 131072
WQ = 69632; XN = 110592

class G:
    def __init__(self, stamps=False, opt=None):
        self.e = Asm(); self.stamps = stamps; self.o = opt or {}
        self.slots = {'A':['start'],'T':['start'],'R':[]}; self.idx = {}; self.tbase = 1
    def stamp(self, name):
        if not self.stamps: return
        role = name.split('.')[0]
        lst = self.slots['A' if role in 'AFR' else 'T']
        want = self.o.get('want')
        if name == 'start': k = 0
        else:
            if want is not None and name not in want: return
            if role == 'R':
                k = self.tbase + len(self.slots['R']); self.slots['R'].append(name)
            else:
                k = len(lst); lst.append(name)
                if role == 'A': self.tbase = len(lst)
            if k > 10: raise Exception('too many stamps '+name)
        self.idx[name] = k
        op = 's_memtime' if self.o.get('cyc') else 's_memrealtime'
        self.e(f'{op} s[{sSTAMP+2*k}:{sSTAMP+2*k+1}]')
        if name in self.o.get('cut', []): self.e('s_branch L_END')
    def mk_srd(self, r, ptr, off_sgpr, size):
        e = self.e
        if off_sgpr is None:
            e(f's_mov_b32 s{r}, s{ptr}\ns_and_b32 s{r+1}, s{ptr+1}, 0xffff\ns_mov_b32 s{r+2}, {size}')
        else:
            e(f's_add_u32 s{r}, s{ptr}, s{off_sgpr}\ns_addc_u32 s{r+1}, s{ptr+1}, 0\ns_and_b32 s{r+1}, s{r+1}, 0xffff\ns_sub_u32 s{r+2}, {size}, s{off_sgpr}')
        e(f's_mov_b32 s{r+3}, 0x20000')
    def allred(self, op, x, t, steps16=4):
        e = self.e
        pats = ['quad_perm:[1,0,3,2]','quad_perm:[2,3,0,1]','row_half_mirror','row_mirror'][:steps16]
        for p in pats: e(f'{op}_dpp v{x}, v{x}, v{x} {p} {DPP}')
        e(f'v_mov_b32 v{t}, v{x}\nv_permlane16_swap_b32 v{x}, v{t}\n{op} v{x}, v{x}, v{t}')
        e(f'v_mov_b32 v{t}, v{x}\nv_permlane32_swap_b32 v{x}, v{t}\n{op} v{x}, v{x}, v{t}')
    def timeout(self):
        self.e(f's_sub_u32 s{sTO}, s{sTO}, 1\ns_cmp_eq_u32 s{sTO}, 0\ns_cbranch_scc1 L_END')
    def fb(self, vregs=(), sregs=()):
        e = self.e
        self.timeout()
        e(f's_add_u32 s{sLC}, s{sLC}, 1\ns_cmp_ge_u32 s{sLC}, {NLOC}\ns_cselect_b32 s{sLM}, {(~LOC)&0xffffffff}, s{sLM}')
        self.lmask(vregs, sregs)
    def lmask(self, vregs=(), sregs=()):
        for r in vregs: self.e(f'v_and_b32 v{r}, s{sLM}, v{r}')
        for r in sregs: self.e(f's_and_b32 s{r}, s{r}, s{sLM}')
    def stop(self, data):
        if '[' not in data: return 'buffer_store_dword'
        lo, hi = data[2:-1].split(':'); return f'buffer_store_dwordx{int(hi)-int(lo)+1}'
    def publ(self, data, voff): self.e(f'{self.stop(data)} {data}, v{voff}, {srd(rWS)}, s{sLOC} offen')
    def pubg(self, data, voff): self.e(f'{self.stop(data)} {data}, v{voff}, {srd(rWS)}, 0 offen sc1')
    def pub(self, data, voff): self.pubg(data, voff); self.publ(data, voff)
    def late_pubg(self, data, voff):
        e = self.e; l = e.newlabel('Lnp')
        e(f's_cmp_eq_u32 s{sLM}, -1\ns_cbranch_scc1 {l}'); self.pubg(data, voff); e(f'{l}:')
    def retry(self, label, sleep=1, vregs=(), sregs=(), late=None):
        e = self.e
        ok = e.newlabel('Lok')
        e(f's_cbranch_vccz {ok}')
        self.fb(vregs, sregs)
        if late: self.late_pubg(*late)
        if sleep: e(f's_sleep {sleep}')
        e(f's_branch {label}')
        e(f'{ok}:')
    def maxchain(self, dst, regs):
        e = self.e
        regs = list(regs)
        e(f'v_max3_u32 v{dst}, v{regs[0]}, v{regs[1]}, v{regs[2]}'); regs = regs[3:]
        while len(regs) >= 2:
            e(f'v_max3_u32 v{dst}, v{dst}, v{regs[0]}, v{regs[1]}'); regs = regs[2:]
        if regs: e(f'v_max_u32 v{dst}, v{dst}, v{regs[0]}')
    def tagcheck(self, dst, pairs):
        e = self.e; rs = []
        for r in pairs:
            e(f'v_xor_b32 v{r}, s{sT0}, v{r}\nv_xor_b32 v{r+1}, s{sT1}, v{r+1}'); rs += [r, r+1]
        if len(rs) == 2: e(f'v_or_b32 v{dst}, v{rs[0]}, v{rs[1]}')
        else:
            e(f'v_or3_b32 v{dst}, v{rs[0]}, v{rs[1]}, v{rs[2]}'); rs = rs[3:]
            while len(rs) >= 2: e(f'v_or3_b32 v{dst}, v{dst}, v{rs[0]}, v{rs[1]}'); rs = rs[2:]
            if rs: e(f'v_or_b32 v{dst}, v{dst}, v{rs[0]}')
        e(f'v_cmp_ne_u32 vcc, 0, v{dst}')
    def ident_masks(self, dst, val_lo, val_hi, first, n, t):
        e = self.e
        e(f'v_and_b32 v{t}, 1, v1\nv_cmp_eq_u32 vcc, 1, v{t}\nv_mov_b32 v{t}, {val_lo}\nv_mov_b32 v{t+1}, {val_hi}\nv_cndmask_b32 v{t}, v{t}, v{t+1}, vcc')
        e(f'v_lshrrev_b32 v{t+1}, 1, v1')
        for r in range(n):
            e(f'v_cmp_eq_u32 vcc, {first+r}, v{t+1}\nv_cndmask_b32 v{dst+r}, 0, v{t}, vcc')
    def red_final(self, RED, t, va, clamp):
        e = self.e
        for w in range(4): e(f'ds_read_b128 {v(t+4+4*w,4)}, v{va} offset:{RED+256*w}')
        e('s_waitcnt lgkmcnt(2)')
        for i in range(2): e(f'v_pk_add_f32 {v(t+4+2*i,2)}, {v(t+4+2*i,2)}, {v(t+8+2*i,2)}')
        e('s_waitcnt lgkmcnt(0)')
        for i in range(2): e(f'v_pk_add_f32 {v(t+12+2*i,2)}, {v(t+12+2*i,2)}, {v(t+16+2*i,2)}')
        for i in range(2): e(f'v_pk_add_f32 {v(t+4+2*i,2)}, {v(t+4+2*i,2)}, {v(t+12+2*i,2)}')
        for i in range(2): e(f'v_cvt_pk_bf16_f32 v{t+i}, v{t+4+2*i}, v{t+5+2*i}')
        if clamp:
            for i in range(2): e(f'v_min_u32 v{t+i}, -2, v{t+i}')
    def tags(self):
        self.e(f's_add_u32 s{sT0}, s{sE}, 0x9e3779b9\ns_xor_b32 s{sT1}, s{sT0}, 0x5bd1e995')

    def prologue(self):
        e = self.e
        self.stamp('start')
        e(f'''
        s_cmp_ge_u32 s2, 256
        s_cbranch_scc1 L_EXIT
        s_load_dwordx16 s[8:23], s[0:1], 0
        s_load_dwordx4 s[32:35], s[0:1], 96
        s_load_dwordx8 s[24:31], s[0:1], 64
        v_lshrrev_b32 v1, 6, v0
        v_and_b32 v0, 63, v0
        v_readfirstlane_b32 s{sW}, v1
        v_and_b32 v1, 15, v0
        v_lshrrev_b32 v2, 4, v0
        v_lshlrev_b32 v3, 4, v0
        v_lshlrev_b32 v4, 2, v0
        s_and_b32 s{sX8}, s2, 7
        s_lshr_b32 s{sR}, s2, 3
        v_lshlrev_b32 v5, 4, v1
        v_lshlrev_b32 v6, 5, v2
        v_xor_b32 v5, v5, v6
        v_lshl_add_u32 v6, v2, 13, v5
        s_lshr_b32 s67, s{sW}, 1
        s_lshl_b32 s67, s67, 7
        v_xor_b32 v8, s67, v6
        v_mov_b32 v9, {OOB}
        v_lshlrev_b32 v11, 4, v2
        s_bfe_u32 s60, s{sR}, 0x20002
        s_mul_i32 s60, s60, {160*8192}
        s_and_b32 s63, s{sR}, 3
        s_lshl_b32 s64, s{sX8}, 2
        s_add_u32 s63, s63, s64
        s_lshl_b32 s63, s63, 8
        s_add_u32 s60, s60, s63
        s_lshl_b32 s61, s{sW}, 15
        s_lshl_b32 s62, s{sW}, 10
        s_add_u32 s62, s62, {WQ}
        s_mov_b32 s{rA+3}, 0x20000
        s_mov_b32 s{rC+3}, 0x20000
        s_mov_b32 s{rC+2}, 1280
        s_sub_u32 s{rA+2}, 5242880, s60
        s_mov_b32 s{sTO}, 400000
        s_mov_b32 s{sLM}, -1
        s_mov_b32 s{sLC}, 0
        s_mov_b32 s{sLOC}, {LOC}
        s_mov_b32 s{rWS+2}, {WSSZ}
        s_mov_b32 s{rWS+3}, 0x20000
        s_waitcnt lgkmcnt(0)
        s_add_u32 s{rA}, s{pWQ}, s60
        s_addc_u32 s{rA+1}, s{pWQ+1}, 0
        s_and_b32 s{rA+1}, s{rA+1}, 0xffff
        s_mov_b32 s{rC}, s{pX}
        s_and_b32 s{rC+1}, s{pX+1}, 0xffff
        s_mov_b32 s{rWS}, s{pWS}
        s_and_b32 s{rWS+1}, s{pWS+1}, 0xffff
        s_cmp_lt_u32 s{sR}, 16
        s_cbranch_scc1 L_T
        ''')
    def x_issue(self):
        for kk in range(5): self.e(f'buffer_load_dword v{20+kk}, v4, {srd(rC)}, 0 offen offset:{256*kk} {self.o.get("xflag","")}')
    def wq_dma(self, k):
        e = self.e
        e(f's_add_u32 m0, s62, {k*4096}')
        e(f'buffer_load_dwordx4 v8, {srd(rA)}, s61 offen nt lds')
        if k < 9: e(f's_add_u32 s61, s61, {4*32768}')
    def wuk_setup(self, sAi, srdreg):
        e = self.e
        e(f'''
        s_lshl_b32 s63, s{sX8}, 2
        s_add_u32 s64, s63, s{sW}
        s_lshl_b32 s64, s64, 8
        s_lshl_b32 s65, s{sAi}, 18
        s_add_u32 s64, s64, s65
        ''')
        self.mk_srd(srdreg, pWUK, 64, 4194304)
        e(f'v_xor_b32 v7, 0x80, v6\ns_mov_b32 s68, 0\ns_lshl_b32 s69, s{sW}, 13')
    def wuk_dma(self, k, srdreg, base):
        e = self.e
        e(f's_add_u32 m0, s69, {base+k*1024}')
        e(f'buffer_load_dwordx4 v{6 if ((k>>1)&1)==0 else 7}, {srd(srdreg)}, s68 offen nt lds')
        if k < 7: e(f's_add_u32 s68, s68, 32768')
    def a1(self, role, y_x, y_wq, mid):
        e = self.e
        s0, s1 = 63, 64
        e(f'''
        v_lshrrev_b32 v12, 2, v1
        v_lshl_add_u32 v13, v2, 3, v12
        v_lshlrev_b32 v13, 8, v13
        v_and_b32 v14, 3, v1
        v_lshl_add_u32 v13, v14, 3, v13
        v_and_b32 v15, 1, v2
        v_lshl_or_b32 v15, v15, 2, v12
        s_lshl_b32 s{s0}, s{sW}, 1
        v_xor_b32 v15, s{s0}, v15
        v_lshl_add_u32 v60, v15, 5, v13
        v_xor_b32 v15, 1, v15
        v_lshl_add_u32 v61, v15, 5, v13
        v_add_u32 v56, {WQ}, v60
        v_add_u32 v57, {WQ}, v61
        ''')
        e(f'''
        v_lshl_add_u32 v12, v1, 6, v11
        s_and_b32 s{s0}, s{sR}, 3
        s_lshl_b32 s{s1}, s{sX8}, 2
        s_add_u32 s{s0}, s{s0}, s{s1}
        s_lshl_b32 s{s0}, s{s0}, 2
        s_bfe_u32 s{s1}, s{sR}, 0x20002
        s_add_u32 s{s0}, s{s0}, s{s1}
        s_lshl_b32 s{s0}, s{s0}, 9
        s_lshl_b32 s{s1}, s{sW}, 7
        s_add_u32 s{s0}, s{s0}, s{s1}
        s_add_u32 s{s0}, s{s0}, {QP}
        v_add_u32 v12, s{s0}, v12
        v_cmp_gt_u32 vcc, 2, v1
        v_cndmask_b32 v62, v9, v12, vcc
        v_cmp_eq_u32 s[70:71], 1, v1
        s_mul_i32 s{s0}, s{sW}, 1280
        s_add_u32 s{s0}, s{s0}, {XN}
        v_add_u32 v10, s{s0}, v4
        s_bfe_u32 s{s1}, s{sR}, 0x20002
        s_mul_i32 s{s1}, s{s1}, 320
        s_add_u32 s{s0}, s{s0}, s{s1}
        v_add_u32 v12, s{s0}, v11
        s_waitcnt vmcnt({y_x}) lgkmcnt(0)
        ''')
        self.stamp(role+'.x')
        for k in range(5): e(f'v_lshlrev_b32 v{26+2*k}, 16, v{20+k}\nv_and_b32 v{27+2*k}, 0xffff0000, v{20+k}')
        e('v_pk_add_f32 v[36:37], v[26:27], v[28:29]\nv_pk_add_f32 v[38:39], v[30:31], v[32:33]\nv_pk_add_f32 v[36:37], v[36:37], v[34:35]\nv_pk_add_f32 v[36:37], v[36:37], v[38:39]\nv_add_f32 v36, v36, v37')
        self.allred('v_add_f32', 36, 37)
        e('v_mul_f32 v36, 0xbacccccd, v36\nv_mov_b32 v37, v36')
        for k in range(26,36,2): e(f'v_pk_add_f32 {v(k,2)}, {v(k,2)}, v[36:37]')
        e('v_pk_mul_f32 v[36:37], v[26:27], v[26:27]')
        for k in range(28,36,2): e(f'v_pk_fma_f32 v[36:37], {v(k,2)}, {v(k,2)}, v[36:37]')
        e('v_add_f32 v36, v36, v37')
        self.allred('v_add_f32', 36, 37)
        e('v_mul_f32 v36, 0x3acccccd, v36\nv_add_f32 v36, 0x3727c5ac, v36\nv_rsq_f32 v36, v36\nv_mov_b32 v37, v36')
        for k in range(26,36,2): e(f'v_pk_mul_f32 {v(k,2)}, {v(k,2)}, v[36:37]')
        for k in range(5): e(f'v_cvt_pk_bf16_f32 v{20+k}, v{26+2*k}, v{27+2*k}\nds_write_b32 v10, v{20+k} offset:{256*k}')
        e('s_waitcnt lgkmcnt(0)')
        for s in range(5): e(f'ds_read_b128 {v(36+4*s,4)}, v12 offset:{s*64}')
        e(f's_load_dword s{sE}, s[{pWS}:{pWS+1}], {EPOCH}')
        self.stamp(role+'.ln')
        mid()
        e('s_waitcnt lgkmcnt(0)')
        self.tags()
        e(f'v_mov_b32 v18, s{sT0}\nv_mov_b32 v19, s{sT1}')
        e(f's_waitcnt vmcnt({y_wq})\ns_barrier')
        self.stamp(role+'.wq')
        vW = 128
        for s in range(5):
            for T in range(2):
                for q in range(2): e(f'ds_read_b64_tr_b16 {v(vW+(s*2+T)*4+2*q,2)}, v{56+T} offset:{s*8192+q*1024}')
        for s in range(5):
            for T in range(2):
                e(f's_waitcnt lgkmcnt({min(15,18-(s*2+T)*2)})')
                e(f'v_mfma_f32_16x16x32_bf16 {v(84+4*T,4)}, {v(vW+(s*2+T)*4,4)}, {v(36+4*s,4)}, ' + ('0' if s==0 else v(84+4*T,4)))
        for i in range(4): e(f'v_cvt_pk_bf16_f32 v{92+i}, v{84+2*i}, v{85+2*i}')
        e('v_cndmask_b32 v16, v92, v94, s[70:71]\nv_cndmask_b32 v17, v93, v95, s[70:71]')
        self.publ('v[16:19]', 62)
        self.stamp(role+'.qp')


    def role_A(self):
        e = self.e
        QV=0; CL=1024; ML=2304; RED=2560; DUM=3584; WUK=4096; WUV=36864
        W1=69632; W2=W1+20480; HB=4096; AP=HB+2048; ST=AP+256; HELP=135168
        sAi,sHd,sJ,s0,s1,s2_,sSL = 72,73,74,63,64,65,66
        sF,sG = 60,61
        if self.o.get('noA'): e('s_branch L_END')
        order = self.o.get('a_order', 'qqqqqqqqqq|uuuuuuuu')
        cnt = {'q':0,'u':0}
        def issue(ch):
            if ch == 'q': self.wq_dma(cnt['q'])
            else:
                if cnt['u'] == 0: self.wuk_setup(sAi, rB)
                self.wuk_dma(cnt['u'], rB, WUK)
            cnt[ch] += 1
        e(f's_sub_u32 s{sAi}, s{sR}, 16')
        self.x_issue()
        o1, o2 = order.split('|')
        for ch in o1: issue(ch)
        e(f"""
        s_lshl_b32 s63, s{sX8}, 2
        s_and_b32 s{sHd}, s{sAi}, 3
        s_add_u32 s{sHd}, s{sHd}, s63
        s_lshr_b32 s{sJ}, s{sAi}, 2
        s_lshl_b32 s{sSL}, s{sX8}, 4
        s_add_u32 s{sSL}, s{sSL}, s{sAi}
        """)
        def mid():
            for ch in o2: issue(ch)
        full = o1 + o2
        self.a1('A', len(o1), len(full)-1-full.rindex('q'), mid)
        e(f"""
        s_lshl_b32 s75, s{sX8}, 5
        s_and_b32 s{s1}, s{sAi}, 12
        s_add_u32 s75, s75, s{s1}
        s_add_u32 s75, s75, s{sW}
        s_lshl_b32 s75, s75, 2
        s_add_u32 s75, s75, {RDY}
        s_load_dword s76, s[{pWS}:{pWS+1}], s75
        v_lshlrev_b32 v27, 9, v2
        v_lshl_add_u32 v27, v1, 4, v27
        s_lshl_b32 s{s2_}, s{sX8}, 2
        s_add_u32 s{s2_}, s{s2_}, s{sW}
        s_lshl_b32 s{s2_}, s{s2_}, 11
        s_add_u32 s{s2_}, s{s2_}, {QP+LOC}
        v_lshlrev_b32 v12, 9, v1
        s_lshl_b32 s{s0}, s{sW}, 13
        s_add_u32 s{s0}, s{s0}, {WUK}
        v_add_u32 v12, s{s0}, v12
        v_and_b32 v13, 1, v1
        v_and_b32 v14, 4, v1
        v_lshl_or_b32 v13, v13, 1, v14
        v_lshlrev_b32 v13, 5, v13
        """)
        def h0loads():
            for i in range(2): e(f'buffer_load_dwordx4 {v(64+4*i,4)}, v27, {srd(rWS)}, s{s2_} offen offset:{i*256} sc1')
        for s in range(4):
            e(f'v_add_u32 v14, {s*64}, v11\nv_xor_b32 v14, v14, v13\nv_add_u32 v{40+2*s}, v14, v12\nv_xor_b32 v14, 32, v14\nv_add_u32 v{41+2*s}, v14, v12')
        vI = 28
        self.ident_masks(vI, 0x3f80, 0x3f800000, 0, 8, 12)
        e(f"""
        s_lshl_b32 s{s0}, s{sW}, 8
        v_lshlrev_b32 v12, 3, v0
        v_add_u32 v12, s{s0}, v12
        v_mov_b32 v13, {DUM}
        v_cmp_gt_u32 vcc, 32, v0
        v_cndmask_b32 v24, v13, v12, vcc
        v_add_u32 v25, s{s0}, v11
        s_lshl_b32 s{s0}, s{sX8}, 4
        s_and_b32 s{s1}, s{sAi}, 12
        s_add_u32 s{s0}, s{s0}, s{s1}
        s_add_u32 s{s0}, s{s0}, s{sW}
        s_lshl_b32 s{s0}, s{s0}, 11
        s_and_b32 s{s1}, s{sAi}, 3
        s_lshl_b32 s{s1}, s{s1}, 6
        s_add_u32 s{s0}, s{s0}, s{s1}
        s_add_u32 s{s0}, s{s0}, {SL+S_QL}
        v_add_u32 v12, s{s0}, v4
        v_cmp_gt_u32 vcc, 16, v0
        v_cndmask_b32 v26, v9, v12, vcc
        s_waitcnt lgkmcnt(0)
        s_cmp_eq_u32 s76, s{sT0}
        s_cbranch_scc1 L_A_RDYOK
        L_A_RDY:
        """)
        self.timeout()
        e(f's_sleep 8\ns_load_dword s76, s[{pWS}:{pWS+1}], s75 glc\ns_waitcnt lgkmcnt(0)\ns_cmp_eq_u32 s76, s{sT0}\ns_cbranch_scc0 L_A_RDY\nL_A_RDYOK:\ns_waitcnt vmcnt({1+self.o.get("h0lead",3)})')
        h0loads()
        e('s_waitcnt vmcnt(3)')
        self.stamp('A.wuk')
        vU = 112
        for s in range(4):
            for T in range(2): e(f'ds_read_b128 {v(vU+(s*2+T)*4,4)}, v{40+2*s+T} offset:{T*256}')
        e('L_A_H0:')
        e('s_waitcnt vmcnt(0)')
        for i in range(2):
            e(f'v_mfma_f32_16x16x16_bf16 v[80:83], {v(vI+2*i,2)}, {v(64+4*i,2)}, ' + ('0' if i==0 else 'v[80:83]'))
        self.tagcheck(12, [66,70])
        e('s_cbranch_vccz L_A_H0OK')
        self.fb((), (s2_,)); self.late_pubg('v[16:19]', 62)
        h0loads()
        e('s_branch L_A_H0')
        e('L_A_H0OK:')
        self.stamp('A.h0')
        e(f'v_cvt_pk_bf16_f32 v84, v80, v81\nv_cvt_pk_bf16_f32 v85, v82, v83\nds_write_b64 v24, v[84:85] offset:{QV}')
        for s in range(4): e(f'ds_read_b128 {v(88+4*s,4)}, v25 offset:{QV+s*64}')
        for s in range(4):
            e(f's_waitcnt lgkmcnt({3-s})')
            for T in range(2):
                e(f'v_mfma_f32_16x16x32_bf16 {v(104+4*T,4)}, {v(88+4*s,4)}, {v(vU+(s*2+T)*4,4)}, ' + ('0' if s==0 else v(104+4*T,4)))
        e('v_cvt_pk_bf16_f32 v64, v104, v108\nv_min_u32 v64, -2, v64')
        self.pub('v64', 26)
        self.stamp('A.ql')
        self.pubg('v[16:19]', 62)
        e('s_barrier')
        nh = self.o.get('a_help', 0)
        if nh:
            e(f's_lshl_b32 s{s0}, s{sSL}, 17')
            self.mk_srd(rA, pCKV, s0, 16777216)
            e(f'v_lshlrev_b32 v12, 10, v2\nv_lshl_add_u32 v12, v1, 4, v12\ns_lshl_b32 s68, s{sW}, 15\ns_lshl_b32 s69, s{sW}, 12\ns_add_u32 m0, s69, {HELP}')
            for n in range(32-nh, 32):
                c, i = n >> 3, n & 7
                e(f's_add_u32 s{sTMP}, s68, {i*4096+c*256}')
                e(f'buffer_load_dwordx4 v12, {srd(rA)}, s{sTMP} offen nt lds')
        e(f"""
        v_lshrrev_b32 v12, 1, v2
        v_lshl_add_u32 v62, v12, 20, v5
        v_and_b32 v12, 1, v2
        v_lshl_add_u32 v62, v12, 17, v62
        v_xor_b32 v62, s67, v62
        s_lshl_b32 s{sG}, s{sJ}, 3
        s_add_u32 s{sG}, s{sG}, s{sX8}
        s_and_b32 s{sF}, s{sAi}, 3
        s_lshl_b32 s{s2_}, s{sG}, 2
        s_add_u32 s{sF}, s{sF}, s{s2_}
        """)
        sB = 62
        e(f"""
        v_and_b32 v5, 7, v1
        v_lshlrev_b32 v5, 4, v5
        v_and_b32 v6, 1, v2
        v_lshl_add_u32 v6, v6, 3, v5
        v_lshrrev_b32 v12, 3, v0
        v_lshl_add_u32 v14, v12, 11, v5
        v_cmp_eq_u32 vcc, s{sX8}, v12
        v_or_b32 v13, s{sLOC}, v14
        v_cndmask_b32 v46, v14, v13, vcc
        s_cmp_ge_u32 s{sG}, 27
        s_cbranch_scc1 L_A_NOF
        s_lshl_b32 s{s0}, s{sF}, 5
        """)
        self.mk_srd(rA, pW1, s0, 2211840)
        e(f's_mul_i32 s{s0}, s{sF}, 20480')
        self.mk_srd(rB, pW2, s0, 2211840)
        e(f"""
        v_and_b32 v7, 3, v12
        v_lshlrev_b32 v7, 3, v7
        v_lshrrev_b32 v8, 5, v0
        v_lshl_add_u32 v7, v8, 2, v7
        v_bfe_u32 v8, v0, 1, 2
        v_add_u32 v7, v7, v8
        v_mul_u32_u24 v7, 3456, v7
        v_and_b32 v8, 1, v0
        v_lshl_add_u32 v7, v8, 4, v7
        s_mul_i32 s{s0}, s{sW}, 110592
        s_lshl_b32 s{s1}, s{sW}, 10
        """)
        w1f = self.o.get('w1flag', 'nt')
        for k in range(5):
            if k and k <= self.o.get('w1pace', 0): e('s_waitcnt vmcnt(0)')
            e(f's_add_u32 m0, s{s1}, {W1+k*4096}')
            e(f'buffer_load_dwordx4 v7, {srd(rA)}, s{s0} offen {w1f} lds')
            if k < 4: e(f's_add_u32 s{s0}, s{s0}, {4*110592}')
        e(f"""
        s_mul_i32 s{sB}, s{sW}, 3
        s_cmp_eq_u32 s{sW}, 3
        s_cselect_b32 s{sB}, 8, s{sB}
        s_lshl_b32 s{sB}, s{sB}, 7
        v_lshrrev_b32 v8, 1, v2
        v_lshl_add_u32 v8, v8, 7, v6
        s_cmp_lt_u32 s{sW}, 2
        s_cselect_b32 s{s0}, 32, 0
        v_cmp_gt_u32 vcc, s{s0}, v0
        v_cndmask_b32 v13, v9, v6, vcc
        v_cmp_gt_u32 vcc, 8, v1
        v_cndmask_b32 v12, v9, v8, vcc
        v_cndmask_b32 v13, v9, v13, vcc
        buffer_load_dwordx2 v[16:17], v12, {srd(rC)}, s{sB} offen
        buffer_load_dwordx2 v[18:19], v13, {srd(rC)}, s{sB} offen offset:256
        s_lshl_b32 s{s0}, s{sF}, 5
        """)
        self.mk_srd(rC, pB1, s0, 3456)
        e(f'v_lshlrev_b32 v12, 3, v2\nbuffer_load_dwordx2 v[58:59], v12, {srd(rC)}, 0 offen')
        e(f"""
        s_lshl_b32 s{s0}, s{sW}, 9
        s_add_u32 s{s0}, s{s0}, {HB}
        v_add_u32 v48, s{s0}, v8
        v_add_u32 v12, 256, v48
        v_mov_b32 v13, {DUM}
        v_cmp_gt_u32 vcc, 32, v0
        v_cndmask_b32 v49, v13, v12, vcc
        v_add_u32 v50, s{s0}, v11
        s_cmp_lt_u32 s{sW}, 2
        s_cselect_b32 s{s0}, 0, {OOB}
        v_max_u32 v47, s{s0}, v46
        s_add_u32 s79, s{sB}, {H3B}
        v_lshl_add_u32 v12, v1, 6, v11
        s_mul_i32 s{s0}, s{sW}, 320
        s_lshl_b32 s{s2_}, s{sF}, 11
        s_add_u32 s{s2_}, s{s0}, s{s2_}
        s_add_u32 s{s2_}, s{s2_}, {SL+S_H4}
        v_add_u32 v12, s{s2_}, v12
        v_cmp_gt_u32 vcc, 5, v1
        v_cndmask_b32 v51, v9, v12, vcc
        s_lshl_b32 s{s2_}, s{sB}, 4
        s_add_u32 s{s2_}, s{s2_}, {W1}
        v_lshlrev_b32 v52, 3, v0
        v_add_u32 v52, s{s2_}, v52
        v_lshrrev_b32 v12, 2, v0
        v_mul_u32_u24 v12, 1280, v12
        v_and_b32 v13, 3, v1
        v_lshl_add_u32 v12, v13, 4, v12
        s_add_u32 s{s0}, s{s0}, {W2}
        v_add_u32 v53, s{s0}, v12
        s_lshl_b32 s{s0}, s{sW}, 2
        v_lshrrev_b32 v12, 5, v0
        v_lshlrev_b32 v12, 4, v12
        v_add_u32 v12, s{s0}, v12
        v_add_u32 v54, {ST}, v12
        s_lshl_b32 s{s0}, s{sW}, 6
        v_add_u32 v55, {AP}, v11
        v_add_u32 v45, s{s0}, v55
        v_mov_b32 v44, {ST}
        s_branch L_A_FDONE
        L_A_NOF:
        """)
        sK = sF
        e(f"""
        s_sub_u32 s{sK}, s{sX8}, 3
        s_lshl_b32 s{sK}, s{sK}, 1
        s_and_b32 s{s0}, s{sAi}, 1
        s_add_u32 s{sK}, s{sK}, s{s0}
        s_lshl_b32 s{sB}, s{sK}, 7
        """)
        self.mk_srd(rB, pB2, None, 1280)
        e(f"""
        s_cmp_eq_u32 s{sW}, 0
        s_cselect_b32 s{s1}, 32, 0
        v_cmp_gt_u32 vcc, s{s1}, v0
        v_cndmask_b32 v6, v9, v6, vcc
        v_cmp_gt_u32 vcc, 8, v1
        v_cndmask_b32 v6, v9, v6, vcc
        buffer_load_dwordx2 v[16:17], v6, {srd(rC)}, s{sB} offen
        buffer_load_dwordx2 v[18:19], v6, {srd(rB)}, s{sB} offen
        s_mul_i32 s{s0}, s{sW}, 27
        v_add_u32 v15, s{s0}, v12
        """)
        for i in range(4):
            e(f'v_bfe_u32 v10, v15, 2, 3\nv_cmp_eq_u32 vcc, s{sX8}, v10\nv_cndmask_b32 v{48+i}, v14, v13, vcc')
            if i < 3: e('v_add_u32 v15, 8, v15')
            if i > 0: e(f'v_add_u32 v{48+i}, {16384*i}, v{48+i}')
        e(f"""
        v_cmp_gt_u32 vcc, 3, v12
        v_cndmask_b32 v51, v9, v51, vcc
        s_add_u32 s79, s{sB}, {H3B}
        s_lshl_b32 s{s0}, s{s0}, 11
        s_add_u32 s78, s{sB}, s{s0}
        s_add_u32 s78, s78, {SL+S_H4}
        v_lshlrev_b32 v52, 5, v1
        v_lshl_add_u32 v52, v2, 4, v52
        s_lshl_b32 s{s1}, s{sW}, 8
        s_add_u32 s{s1}, s{s1}, {RED}
        v_add_u32 v52, s{s1}, v52
        v_mov_b32 v13, {DUM}
        v_cmp_gt_u32 vcc, 32, v0
        v_cndmask_b32 v52, v13, v52, vcc
        v_cmp_gt_u32 vcc, 8, v1
        v_cndmask_b32 v52, v13, v52, vcc
        v_cmp_gt_u32 vcc, 16, v0
        v_lshlrev_b32 v12, 3, v0
        v_cndmask_b32 v53, v9, v12, vcc
        v_lshlrev_b32 v54, 4, v1
        v_cmp_eq_u32 vcc, 0, v0
        v_cndmask_b32 v55, v9, v0, vcc
        L_A_FDONE:
        """)
        vMk = 36
        self.ident_masks(vMk, 0xffff, 0xffff0000, 0, 4, 12)
        e(f"""
        v_and_b32 v13, 7, v1
        v_lshl_add_u32 v12, v2, 3, v13
        s_lshl_b32 s{s0}, s{sW}, 5
        v_add_u32 v12, s{s0}, v12
        v_lshlrev_b32 v20, 11, v12
        v_lshrrev_b32 v13, 4, v12
        v_cmp_eq_u32 vcc, s{sX8}, v13
        v_or_b32 v12, s{sLOC}, v20
        v_cndmask_b32 v20, v20, v12, vcc
        v_and_b32 v20, s{sLM}, v20
        v_cmp_gt_u32 vcc, 8, v1
        v_cndmask_b32 v20, v9, v20, vcc
        s_mov_b32 s70, 0x00ff00ff
        s_mov_b32 s71, 0x00ff00ff
        s_lshl_b32 s68, s{sJ}, 9
        s_lshl_b32 s{s0}, s{sHd}, 4
        s_add_u32 s68, s68, s{s0}
        s_add_u32 s68, s68, {REC}
        v_lshlrev_b32 v22, 11, v2
        v_lshl_add_u32 v22, v1, 4, v22
        s_lshl_b32 s69, s{sHd}, 2
        s_add_u32 s69, s69, s{sJ}
        s_lshl_b32 s69, s69, 15
        s_lshl_b32 s{s0}, s{sW}, 13
        s_add_u32 s69, s69, s{s0}
        s_add_u32 s69, s69, {PART}
        v_lshlrev_b32 v12, 4, v1
        v_lshl_add_u32 v12, v2, 3, v12
        s_mul_i32 s{s0}, s{sW}, 320
        s_add_u32 s{s0}, s{s0}, {CL}
        v_add_u32 v12, s{s0}, v12
        v_mov_b32 v13, {DUM}
        v_cmp_gt_u32 vcc, 32, v0
        v_cndmask_b32 v23, v13, v12, vcc
        v_and_b32 v12, 3, v1
        v_mul_u32_u24 v12, 320, v12
        v_add_u32 v12, v12, v11
        v_add_u32 v24, {CL}, v12
        s_lshl_b32 s{s0}, s{sSL}, 11
        s_lshl_b32 s{s1}, s{sW}, 6
        s_add_u32 s{s0}, s{s0}, s{s1}
        s_add_u32 s{s0}, s{s0}, {SL+S_HC}
        v_add_u32 v12, s{s0}, v4
        v_cmp_gt_u32 vcc, 16, v0
        v_cndmask_b32 v25, v9, v12, vcc
        s_lshl_b32 s{s0}, s{sW}, 2
        s_add_u32 s{s0}, s{s0}, {ML}
        v_mov_b32 v12, s{s0}
        v_cmp_gt_u32 vcc, 8, v1
        v_cndmask_b32 v21, v13, v12, vcc
        v_mov_b32 v27, {ML}
        v_add_u32 v56, {WUV}, v60
        v_add_u32 v57, {WUV}, v61
        """)
        e(f's_lshl_b32 s{s0}, s{sJ}, 18\ns_lshl_b32 s{s1}, s{sHd}, 8\ns_add_u32 s{s0}, s{s0}, s{s1}')
        self.mk_srd(rA, pWUV, s0, 4194304)
        e(f"""
        s_and_b32 s{s0}, s{sW}, 1
        s_lshl_b32 s{s0}, s{s0}, 8
        s_lshr_b32 s{s1}, s{sW}, 1
        s_add_u32 s{s0}, s{s0}, s{s1}
        s_lshl_b32 s{s0}, s{s0}, 13
        s_lshl_b32 s{s1}, s{sW}, 10
        """)
        npace = self.o.get('a2_pace', 0)
        gate = self.o.get('gate', 0)
        ntr = self.o.get('trickle', 0)
        def gwait():
            e(f's_lshl_b32 s75, s{sSL}, 7\ns_add_u32 s75, s75, {GATE}\nv_mov_b32 v12, 0\ns_mov_b32 s77, 40')
            e(f'L_A_G:\nbuffer_load_dword v13, v12, {srd(rWS)}, s75 offen sc1\ns_waitcnt vmcnt(0)\nv_readfirstlane_b32 s76, v13\ns_cmp_eq_u32 s76, s{sT1}\ns_cbranch_scc1 L_A_GOK\ns_sub_u32 s77, s77, 1\ns_cbranch_scc0 L_A_G\nL_A_GOK:')
            self.stamp('A.gate')
        for k in range(8):
            if k < npace: e('s_waitcnt vmcnt(0)')
            if gate and k == ntr: gwait()
            e(f's_add_u32 m0, s{s1}, {WUV+k*4096}')
            e(f'buffer_load_dwordx4 v62, {srd(rA)}, s{s0} offen nt lds')
            if k < 7: e(f's_add_u32 s{s0}, s{s0}, 16384')
        e(f's_cmp_ge_u32 s{sG}, 27\ns_cbranch_scc1 L_A_NOW2')
        for k in range(5):
            e(f's_add_u32 m0, s{s1}, {W2+k*4096}\ns_add_u32 s{s0}, s{s1}, {k*4096}')
            e(f'buffer_load_dwordx4 v3, {srd(rB)}, s{s0} offen nt lds')
        e('L_A_NOW2:')
        e('s_waitcnt vmcnt(0)\ns_barrier')
        self.stamp('A.land')
        for s in range(4):
            for T in range(2):
                for q in range(2): e(f'ds_read_b64_tr_b16 {a((s*2+T)*4+2*q,2)}, v{56+T} offset:{s*8192+q*1024}')
        e(f'buffer_load_dwordx4 v[64:67], v20, {srd(rWS)}, s68 offen sc1')
        vC0, vC1, vB1, vS1 = 192, 196, 200, 204
        for dst,src in [(vC0,16),(vC1,18)]:
            e(f'v_lshlrev_b32 v{dst}, 16, v{src}\nv_and_b32 v{dst+1}, 0xffff0000, v{src}\nv_lshlrev_b32 v{dst+2}, 16, v{src+1}\nv_and_b32 v{dst+3}, 0xffff0000, v{src+1}')
        e('s_waitcnt lgkmcnt(0)')
        self.stamp('A.w2rdy')
        e('L_A_REC:')
        e('s_waitcnt vmcnt(0)')
        cs = self.o.get('cs', 1)
        if cs: e(f'v_cmp_ne_u32 vcc, s{sT0}, v67')
        else: self.tagcheck(12, [66])
        e('s_and_b64 vcc, vcc, s[70:71]\ns_cbranch_vccz L_A_RECOK')
        e('L_A_RETRY:')
        self.fb((20,), ())
        e(f'buffer_load_dwordx4 v[64:67], v20, {srd(rWS)}, s68 offen sc1\ns_branch L_A_REC\nL_A_RECOK:')
        vD = 128; vAF = 160
        if self.o.get('ddelay'): e(f's_sleep {self.o["ddelay"]}')
        for i in range(8): e(f'buffer_load_dwordx4 {v(vD+4*i,4)}, v22, {srd(rWS)}, s69 offen offset:{i*256} sc1')
        self.stamp('A.rec')
        e('v_mov_b32 v72, v64')
        self.allred('v_max_f32', 72, 74, 3)
        e('v_sub_f32 v64, v64, v72\nv_exp_f32 v64, v64\nv_cvt_pk_bf16_f32 v64, v64, v64\nv_and_b32 v73, 0xffff0000, v64\nv_mul_f32 v73, v73, v65')
        for i in range(8):
            for r in range(4): e(f'v_and_b32_dpp v{vAF+4*i+r}, v64, v{vMk+r} row_newbcast:{i} {DPP}')
        self.allred('v_add_f32', 73, 74, 3)
        e('ds_write2_b32 v21, v72, v73 offset0:0 offset1:4')
        for i in range(8):
            e(f's_waitcnt vmcnt({7-i})')
            e(f'v_mfma_f32_16x16x32_bf16 v[76:79], {v(vAF+4*i,4)}, {v(vD+4*i,4)}, ' + ('0' if i==0 else 'v[76:79]'))
            if cs: e(f'v_add3_u32 v66, v66, v{vD+4*i}, v{vD+4*i+1}\nv_add3_u32 v66, v66, v{vD+4*i+2}, v{vD+4*i+3}')
        self.stamp('A.data')
        if cs:
            for p in ['quad_perm:[1,0,3,2]','quad_perm:[2,3,0,1]']: e(f'v_add_u32_dpp v66, v66, v66 {p} {DPP}')
            e(f'v_cvt_pk_bf16_f32 v74, v76, v77\nv_cvt_pk_bf16_f32 v75, v78, v79\nv_add_u32_dpp v66, v66, v66 row_half_mirror {DPP}\nds_write_b64 v23, v[74:75]')
            e(f'v_add_u32_dpp v66, v66, v66 row_mirror {DPP}\nv_cmp_ne_u32 vcc, 0, v66\ns_cbranch_vccnz L_A_RETRY\ns_waitcnt lgkmcnt(0)\ns_barrier')
        else:
            e('v_cvt_pk_bf16_f32 v74, v76, v77\nv_cvt_pk_bf16_f32 v75, v78, v79\nds_write_b64 v23, v[74:75]\ns_waitcnt lgkmcnt(0)\ns_barrier')
        self.stamp('A.clbar')
        e(f'ds_read_b128 v[80:83], v24\nds_read_b128 v[64:67], v27\nds_read_b128 v[84:87], v24 offset:64\nds_read_b128 v[68:71], v27 offset:16\nds_read_b128 v[88:91], v24 offset:128\nds_read_b128 v[92:95], v24 offset:192')
        fac = [[], ['s_waitcnt lgkmcnt(4)', 'v_max3_f32 v72, v64, v65, v66', 'v_max_f32 v72, v72, v67'], ['v_sub_f32 v64, v64, v72', 'v_sub_f32 v65, v65, v72'], ['v_sub_f32 v66, v66, v72', 'v_sub_f32 v67, v67, v72'],
               ['v_exp_f32 v64, v64'], ['v_exp_f32 v65, v65'], ['v_exp_f32 v66, v66'],
               ['v_exp_f32 v67, v67', 'v_mul_f32 v72, v64, v68', 'v_fmac_f32 v72, v65, v69', 'v_fmac_f32 v72, v66, v70', 'v_fmac_f32 v72, v67, v71', 'v_rcp_f32 v72, v72']]
        for s in range(4):
            e(f's_waitcnt lgkmcnt({[5,3,1,0][s]})')
            for T in range(2):
                e(f'v_mfma_f32_16x16x32_bf16 {v(104+4*T,4)}, {v(80+4*s,4)}, {a((s*2+T)*4,4)}, ' + ('0' if s==0 else v(104+4*T,4)))
                for x in fac[2*s+T]: e(x)
        e('v_pk_mul_f32 v[104:105], v[104:105], v[64:65]\nv_pk_mul_f32 v[108:109], v[108:109], v[64:65]')
        e('v_pk_fma_f32 v[104:105], v[106:107], v[66:67], v[104:105]\nv_pk_fma_f32 v[108:109], v[110:111], v[66:67], v[108:109]')
        e('v_add_f32 v104, v104, v105\nv_add_f32 v108, v108, v109\nv_mul_f32 v104, v104, v72\nv_mul_f32 v108, v108, v72')
        e('v_cvt_pk_bf16_f32 v63, v104, v108\nv_min_u32 v63, -2, v63')
        self.publ('v63', 25); self.pubg('v63', 25)
        self.stamp('A.hc')
        e(f's_cmp_ge_u32 s{sG}, 27\ns_cbranch_scc1 L_FIN')
        for s in range(6):
            for q in range(2): e(f'ds_read_b64_tr_b16 {a(32+s*4+2*q,2)}, v52 offset:{s*1024+q*512}')
        for P in range(5):
            for hb in range(2): e(f'ds_read_b64_tr_b16 {a(56+P*4+2*hb,2)}, v53 offset:{P*64+hb*8}')
        e(f'v_lshlrev_b32 v{vB1}, 16, v58\nv_and_b32 v{vB1+1}, 0xffff0000, v58\nv_lshlrev_b32 v{vB1+2}, 16, v59\nv_and_b32 v{vB1+3}, 0xffff0000, v59')
        e(f's_cmp_lt_u32 s{sW}, 2\ns_cselect_b32 s{s0}, 0x3f803f80, 0')
        for r in range(4): e(f'v_mov_b32 v{208+r}, 0x3f803f80\nv_mov_b32 v{212+r}, s{s0}')
        e('s_waitcnt lgkmcnt(10)')
        for s in range(6):
            e(f'v_mfma_f32_16x16x32_bf16 {v(vS1,4)}, {a(32+s*4,4)}, {v(208 if s < 4 else 212,4)}, ' + ('0' if s == 0 else v(vS1,4)))
        e(f'ds_write_b128 v45, {v(vS1,4)}\ns_waitcnt lgkmcnt(0)\ns_barrier')
        for w in range(4): e(f'ds_read_b128 {v(208+4*w,4)}, v55 offset:{64*w}')
        e('s_waitcnt lgkmcnt(0)')
        for i in range(2): e(f'v_pk_add_f32 {v(208+2*i,2)}, {v(208+2*i,2)}, {v(212+2*i,2)}\nv_pk_add_f32 {v(216+2*i,2)}, {v(216+2*i,2)}, {v(220+2*i,2)}')
        for i in range(2): e(f'v_pk_add_f32 {v(vS1+2*i,2)}, {v(208+2*i,2)}, {v(216+2*i,2)}')
        e('s_barrier')
        self.stamp('F.prep')
        for P in range(5):
            e(f's_mov_b32 s{68+2*P}, {0x00010001<<P}\ns_mov_b32 s{69+2*P}, {0x00010001<<P}')
        self.lmask((46,47))
        if self.o.get('fdelay'): e(f's_sleep {self.o["fdelay"]}')
        vH = 64
        e('L_F_POLL:')
        e(f'buffer_load_dwordx4 {v(vH,4)}, v46, {srd(rWS)}, s79 offen sc1')
        e(f'buffer_load_dwordx4 {v(vH+4,4)}, v46, {srd(rWS)}, s79 offen offset:128 sc1')
        e(f'buffer_load_dwordx4 {v(vH+8,4)}, v47, {srd(rWS)}, s79 offen offset:256 sc1')
        e('s_waitcnt vmcnt(0)')
        e(f'v_mfma_f32_16x16x32_bf16 v[76:79], {v(vI,4)}, {v(vH,4)}, {v(vC0,4)}')
        e(f'v_mfma_f32_16x16x32_bf16 v[76:79], {v(vI+4,4)}, {v(vH+4,4)}, v[76:79]')
        e(f'v_mfma_f32_16x16x32_bf16 v[80:83], {v(vI,4)}, {v(vH+8,4)}, {v(vC1,4)}')
        self.maxchain(12, range(vH, vH+12))
        e('v_cmp_eq_u32 vcc, -1, v12')
        self.retry('L_F_POLL', vregs=(46,47), sleep=self.o.get('fsleep',0))
        self.stamp('F.h3b')
        vB = 128
        for r in range(4): e(f'v_add_f32_dpp v{76+r}, v{76+r}, v{76+r} row_ror:8 {DPP}')
        e('v_cvt_pk_bf16_f32 v84, v76, v77\nv_cvt_pk_bf16_f32 v85, v78, v79\nds_write_b64 v48, v[84:85]')
        for s in range(4): e(f'ds_read_b128 {v(vB+4*s,4)}, v50 offset:{s*64}')
        for r in range(4): e(f'v_add_f32_dpp v{80+r}, v{80+r}, v{80+r} row_ror:8 {DPP}')
        e('v_cvt_pk_bf16_f32 v86, v80, v81\nv_cvt_pk_bf16_f32 v87, v82, v83\nds_write_b64 v49, v[86:87]')
        for s in range(4,6): e(f'ds_read_b128 {v(vB+4*s,4)}, v50 offset:{s*64}')
        e('v_pk_add_f32 v[88:89], v[76:77], v[78:79]\nv_pk_mul_f32 v[92:93], v[76:77], v[76:77]\nv_pk_add_f32 v[90:91], v[80:81], v[82:83]\nv_pk_fma_f32 v[92:93], v[78:79], v[78:79], v[92:93]')
        e('v_pk_add_f32 v[88:89], v[88:89], v[90:91]\nv_pk_fma_f32 v[92:93], v[80:81], v[80:81], v[92:93]\nv_pk_fma_f32 v[92:93], v[82:83], v[82:83], v[92:93]')
        st = [['v_add_f32 v88, v88, v89', 'v_add_f32 v92, v92, v93'], ['s_nop 0', 'v_permlane32_swap_b32 v88, v92', 'v_add_f32 v88, v88, v92'], ['v_mov_b32 v92, v88'],
              ['s_nop 0', 'v_permlane16_swap_b32 v88, v92', 'v_add_f32 v88, v88, v92'], ['s_nop 0', f'v_add_f32_dpp v88, v88, v88 quad_perm:[1,0,3,2] {DPP}'],
              [f'v_add_f32_dpp v88, v88, v88 quad_perm:[2,3,0,1] {DPP}', f'v_add_f32_dpp v88, v88, v88 row_half_mirror {DPP}', 'v_mul_f32 v88, 0x3acccccd, v88', 'ds_write_b32 v54, v88']]
        for s in range(6):
            e(f's_waitcnt lgkmcnt({[6,5,4,3,1,0][s]})')
            e(f'v_mfma_f32_16x16x32_bf16 v[96:99], {a(32+s*4,4)}, {v(vB+4*s,4)}, ' + ('0' if s == 0 else 'v[96:99]'))
            for x in st[s]: e(x)
        e('ds_write_b128 v45, v[96:99]\ns_waitcnt lgkmcnt(0)\ns_barrier')
        self.stamp('F.abar')
        e('ds_read_b128 v[100:103], v44\nds_read_b128 v[104:107], v44 offset:16')
        for w in range(4): e(f'ds_read_b128 {v(128+4*w,4)}, v55 offset:{64*w}')
        e(f"""
        s_waitcnt lgkmcnt(4)
        v_pk_add_f32 v[100:101], v[100:101], v[102:103]
        v_pk_add_f32 v[104:105], v[104:105], v[106:107]
        v_add_f32 v100, v100, v101
        v_add_f32 v104, v104, v105
        v_fma_f32 v104, -v100, v100, v104
        v_max_f32 v104, 0, v104
        v_add_f32 v104, 0x3727c5ac, v104
        v_rsq_f32 v104, v104
        s_waitcnt lgkmcnt(0)
        v_pk_fma_f32 v[128:129], {v(vS1,2)}, v[100:101], v[128:129] op_sel_hi:[1,0,1] neg_lo:[0,1,0] neg_hi:[0,1,0]
        v_pk_fma_f32 v[130:131], {v(vS1+2,2)}, v[100:101], v[130:131] op_sel_hi:[1,0,1] neg_lo:[0,1,0] neg_hi:[0,1,0]
        v_pk_add_f32 v[136:137], v[136:137], v[140:141]
        v_pk_add_f32 v[138:139], v[138:139], v[142:143]
        v_pk_add_f32 v[128:129], v[128:129], v[132:133]
        v_pk_add_f32 v[130:131], v[130:131], v[134:135]
        v_pk_add_f32 v[128:129], v[128:129], v[136:137]
        v_pk_add_f32 v[130:131], v[130:131], v[138:139]
        v_pk_fma_f32 v[128:129], v[128:129], v[104:105], {v(vB1,2)} op_sel_hi:[1,0,1]
        v_pk_fma_f32 v[130:131], v[130:131], v[104:105], {v(vB1+2,2)} op_sel_hi:[1,0,1]
        """)
        for r in range(4): e(f'v_max_f32 v{128+r}, 0, v{128+r}')
        e('v_pk_mul_f32 v[128:129], v[128:129], v[128:129]\nv_pk_mul_f32 v[130:131], v[130:131], v[130:131]')
        e('v_cvt_pk_bf16_f32 v108, v128, v129\nv_cvt_pk_bf16_f32 v109, v130, v131')
        self.stamp('F.f1')
        def cm(P): e(f'v_cndmask_b32 v{110+2*P}, 0, v108, s[{68+2*P}:{69+2*P}]\nv_cndmask_b32 v{111+2*P}, 0, v109, s[{68+2*P}:{69+2*P}]')
        cm(0); cm(1)
        for P in range(5):
            for hb in range(2):
                e(f'v_mfma_f32_16x16x16_bf16 {v(120+4*hb,4)}, {a(56+P*4+2*hb,2)}, {v(110+2*P,2)}, ' + ('0' if P == 0 else v(120+4*hb,4)))
                if hb == 0 and P+2 < 5: cm(P+2)
        for i in range(4): e(f'v_cvt_pk_bf16_f32 v{64+i}, v{120+2*i}, v{121+2*i}')
        for i in range(4): e(f'v_min_u32 v{64+i}, -2, v{64+i}')
        self.pub('v[64:67]', 51)
        self.stamp('F.end')
        e('s_branch L_END')
        e('L_FIN:')
        e(f's_and_b32 s{s0}, s{sAi}, 2\ns_cbranch_scc1 L_END')
        self.mk_srd(rA, pOUT, None, 1280)
        e(f's_cmp_eq_u32 s{sW}, 0\ns_cselect_b32 s{s1}, -1, 0')
        for r in range(4): e(f'v_and_b32 v{32+r}, s{s1}, v{vI+r}')
        e(f'v_pk_add_f32 {v(vC0,2)}, {v(vC0,2)}, {v(vC1,2)}\nv_pk_add_f32 {v(vC0+2,2)}, {v(vC0+2,2)}, {v(vC1+2,2)}\nv_mov_b32 v45, s{sT0}')
        self.lmask((46,))
        e('L_R_P1:')
        e(f'buffer_load_dwordx4 v[64:67], v46, {srd(rWS)}, s79 offen sc1\ns_waitcnt vmcnt(0)')
        self.maxchain(12, range(64,68))
        e('v_cmp_eq_u32 vcc, -1, v12')
        self.retry('L_R_P1', sleep=1, vregs=(46,))
        self.stamp('R.h3b')
        self.lmask((48,49,50,51))
        e(f'v_mfma_f32_16x16x32_bf16 {v(vC0,4)}, v[32:35], v[64:67], {v(vC0,4)}')
        if self.o.get('rdelay'): e(f's_sleep {self.o["rdelay"]}')
        e('L_R_P2:')
        for i in range(4): e(f'buffer_load_dwordx4 {v(68+4*i,4)}, v{48+i}, {srd(rWS)}, s78 offen sc1')
        e('s_waitcnt vmcnt(0)')
        for i in range(4): e(f'v_mfma_f32_16x16x32_bf16 v[104:107], {v(vI,4)}, {v(68+4*i,4)}, ' + (v(vC0,4) if i == 0 else 'v[104:107]'))
        self.maxchain(12, range(68,84))
        e('v_cmp_eq_u32 vcc, -1, v12')
        self.retry('L_R_P2', vregs=(48,49,50,51), sleep=0)
        self.stamp('R.h4')
        for r in range(4): e(f'v_add_f32_dpp v{104+r}, v{104+r}, v{104+r} row_ror:8 {DPP}')
        e(f'ds_write_b128 v52, v[104:107]\ns_waitcnt lgkmcnt(0)\ns_barrier')
        e(f's_cmp_lg_u32 s{sW}, 0\ns_cbranch_scc1 L_END')
        self.red_final(RED, 128, 54, False)
        e(f'buffer_store_dwordx2 v[128:129], v53, {srd(rA)}, s{sB} offen')
        e(f's_cmp_lg_u32 s{sK}, 0\ns_cbranch_scc1 L_END2')
        e(f'buffer_store_dword v45, v55, {srd(rWS)}, 0 offen offset:{EPOCH} sc1')
        if 'amp' in self.o:
            self.stamp('R.end')
            k = self.idx[self.o['amp']]; ke = self.idx['R.end']
            e(f's_waitcnt lgkmcnt(0)\ns_sub_u32 s60, s{sSTAMP+2*k}, s{sSTAMP}\ns_lshl_b32 s60, s60, 2\ns_add_u32 s60, s60, s{sSTAMP+2*ke}')
            e('L_AMP:\ns_memrealtime s[62:63]\ns_waitcnt lgkmcnt(0)\ns_sub_u32 s61, s62, s60\ns_cmp_lt_i32 s61, 0\ns_cbranch_scc1 L_AMP')
        e('L_END2:')
        if 'amp' not in self.o: self.stamp('R.end')
        e('s_branch L_END')

    def role_T(self):
        e = self.e
        MX = QB; LX = QB+512; PB = QB+1024
        WO = 0; HB = 65536
        sT, s0, s1, s2_ = 72, 63, 64, 65
        e('L_T:')
        if self.o.get('noT'): e('s_branch L_END')
        e(f"""
        s_load_dword s{sE}, s[{pWS}:{pWS+1}], {EPOCH}
        s_lshl_b32 s{sT}, s{sX8}, 4
        s_add_u32 s{sT}, s{sT}, s{sR}
        s_lshl_b32 s66, s{sT}, 11
        s_add_u32 s66, s66, {SL}
        s_add_u32 s71, s66, {S_H4}
        s_cmp_eq_u32 s{sW}, 0
        s_cselect_b32 s66, s66, {WSSZ}
        s_add_u32 s70, s66, {LOC}
        v_mov_b32 v16, -1
        v_mov_b32 v17, -1
        v_mov_b32 v18, -1
        v_mov_b32 v19, -1
        v_and_b32 v12, 0x1ff, v3
        v_lshrrev_b32 v13, 5, v0
        v_lshl_add_u32 v12, v13, 20, v12
        buffer_store_dwordx4 v[16:19], v12, {srd(rWS)}, s66 offen sc1
        s_lshl_b32 s{s0}, s{sT}, 9
        s_add_u32 s{s0}, s{s0}, {QP+LOC}
        s_cmp_eq_u32 s{sW}, 1
        s_cselect_b32 s{s0}, s{s0}, {WSSZ}
        v_cmp_gt_u32 vcc, 32, v0
        v_cndmask_b32 v12, v9, v3, vcc
        buffer_load_dwordx4 v[200:203], v12, {srd(rWS)}, s{s0} offen nt
        """)
        nwq = self.o.get('t_wq', 5)
        e(f's_add_u32 s61, s61, {(10-nwq)*4*32768}\ns_lshl_b32 s62, s{sW}, 13\ns_add_u32 s62, s62, {QB}\ns_mov_b32 m0, s62')
        for k in range(nwq):
            e(f'buffer_load_dwordx4 v8, {srd(rA)}, s61 offen nt lds')
            if k < nwq-1: e(f's_add_u32 s61, s61, {4*32768}')
        e(f's_lshl_b32 s{s0}, s{sT}, 17')
        self.mk_srd(rB, pCKV, s0, 16777216)
        e(f'v_lshl_add_u32 v52, v2, 10, v5\nv_xor_b32 v53, 0x80, v52\ns_lshl_b32 s68, s{sW}, 15\ns_lshl_b32 s69, s{sW}, 13')
        def dma(n):
            c, i = n >> 3, n & 7
            e(f's_add_u32 m0, s69, {c*32768+i*1024}\ns_add_u32 s{sTMP}, s68, {i*4096+c*256}')
            e(f'buffer_load_dwordx4 v{52+(i&1)}, {srd(rB)}, s{sTMP} offen nt lds')
        n0 = self.o.get('n0', 2)
        thr = dict(self.o.get('t_throttle', []))
        for n in range(n0): dma(n)
        e(f's_cmp_lg_u32 s{sW}, 0\ns_cbranch_scc1 L_T_NOCNT\ns_waitcnt vmcnt({1+nwq+n0}) lgkmcnt(0)')
        self.tags()
        self.stamp('T.rst')
        e(f"""
        s_lshl_b32 s79, s{sX8}, 5
        s_add_u32 s79, s79, s{sR}
        s_lshl_b32 s79, s79, 2
        s_add_u32 s79, s79, {RDY}
        s_mov_b32 s78, s{sT0}
        s_atomic_swap s78, s[{pWS}:{pWS+1}], s79
        L_T_NOCNT:
        v_cmp_gt_u32 vcc, 16, v0
        v_cndmask_b32 v12, v9, v3, vcc
        buffer_load_dwordx4 v[204:207], v12, {srd(rWS)}, s70 offen sc1
        """)
        vm = [('d',n) for n in range(n0)] + ['pt']
        vKa, vQa, vVa = 24, 28, 32
        vPS, vRS, vMW, vMR, vPW, vPR, vQC, vLR = 40, 41, 42, 43, 44, 45, 46, 47
        vQS = 120
        pre = []
        pre.append(f'v_and_b32 v12, 7, v1\nv_lshlrev_b32 v12, 5, v12\nv_lshlrev_b32 v13, 10, v1\nv_lshlrev_b32 v14, 8, v1\nv_add_u32 v14, s69, v14\nv_add_u32 v13, {QB}, v13')
        for s3 in range(4):
            pre.append(f'v_add_u32 v15, {s3*64}, v11\nv_xor_b32 v15, v15, v12\nv_add_u32 v{vKa+s3}, v14, v15\nv_add_u32 v{vQa+s3}, v13, v15')
        pre.append(f"""
        v_lshrrev_b32 v13, 2, v0
        v_and_b32 v15, 7, v13
        v_lshlrev_b32 v13, 8, v13
        v_and_b32 v12, 3, v1
        v_lshl_add_u32 v13, v12, 3, v13
        s_lshl_b32 s{s2_}, s{sW}, 1
        v_xor_b32 v15, s{s2_}, v15
        v_lshl_add_u32 v{vVa}, v15, 5, v13
        v_xor_b32 v15, 1, v15
        v_lshl_add_u32 v{vVa+1}, v15, 5, v13
        v_add_u32 v{vVa+2}, 0x10000, v{vVa}
        v_add_u32 v{vVa+3}, 0x10000, v{vVa+1}
        v_lshlrev_b32 v12, 13, v2
        v_lshl_add_u32 v12, v1, 4, v12
        """)
        for i in range(8): pre.append(f'v_xor_b32 v{vQS+i}, {(i<<5) + (i&3)*2048}, v12')
        pre.append(f"""
        v_lshlrev_b32 v12, 6, v0
        v_lshl_add_u32 v12, v1, 2, v12
        v_add_u32 v{vQC}, s62, v12
        s_lshl_b32 s76, s{sW}, 16
        s_add_u32 s76, s76, {SL+S_QL}
        s_add_u32 s77, s76, 32768
        s_lshl_b32 s{s0}, s{sW}, 1
        s_cmp_eq_u32 s{s0}, s{sX8}
        s_cselect_b32 s{s1}, {LOC}, 0
        s_add_u32 s76, s76, s{s1}
        s_add_u32 s{s0}, s{s0}, 1
        s_cmp_eq_u32 s{s0}, s{sX8}
        s_cselect_b32 s{s1}, {LOC}, 0
        s_add_u32 s77, s77, s{s1}
        v_lshlrev_b32 v12, 19, v2
        v_lshl_add_u32 v12, v1, 4, v12
        s_lshl_b32 s{s2_}, s{sT}, 8
        s_add_u32 s{s2_}, s{s2_}, s68
        s_add_u32 s{s2_}, s{s2_}, {PART}
        v_add_u32 v{vPS}, s{s2_}, v12
        s_lshl_b32 s{s2_}, s{sT}, 11
        s_lshl_b32 s{s0}, s{sW}, 9
        s_add_u32 s{s2_}, s{s2_}, s{s0}
        s_add_u32 s{s2_}, s{s2_}, {REC}
        v_and_b32 v13, 1, v1
        v_lshrrev_b32 v12, 2, v0
        v_lshl_add_u32 v12, v13, 4, v12
        v_lshlrev_b32 v12, 4, v12
        v_add_u32 v{vLR}, {MX}, v12
        v_add_u32 v12, s{s2_}, v12
        v_and_b32 v13, 2, v1
        v_cmp_eq_u32 vcc, 0, v13
        v_cndmask_b32 v{vRS}, v9, v12, vcc
        v_lshrrev_b32 v12, 1, v2
        v_lshl_add_u32 v12, v12, 4, v1
        v_lshlrev_b32 v12, 4, v12
        s_lshl_b32 s{s2_}, s{sW}, 2
        s_add_u32 s{s2_}, s{s2_}, {MX}
        v_add_u32 v{vMW}, s{s2_}, v12
        v_lshlrev_b32 v12, 4, v1
        v_add_u32 v{vMR}, {MX}, v12
        v_add_u32 v22, s{s2_}, v12
        v_mov_b32 v38, 0x3e0293ee
        s_lshl_b32 s{s2_}, s{sW}, 11
        s_add_u32 s{s2_}, s{s2_}, {PB}
        v_add_u32 v{vPW}, s{s2_}, v3
        v_add_u32 v{vPR}, {PB}, v3
        s_and_b32 s{s0}, s{sW}, 1
        s_mul_i32 s{s0}, s{s0}, 640
        s_add_u32 s71, s71, s{s0}
        s_lshr_b32 s{s0}, s{sW}, 1
        s_lshl_b32 s{s0}, s{s0}, 20
        s_add_u32 s71, s71, s{s0}
        s_cmp_lt_u32 s{sT}, 116
        s_cselect_b32 s{s0}, 40, 0
        v_cmp_gt_u32 vcc, s{s0}, v0
        v_cndmask_b32 v20, v9, v3, vcc
        v_lshrrev_b32 v12, 3, v0
        v_lshrrev_b32 v13, 1, v12
        v_and_b32 v14, 1, v12
        v_lshl_add_u32 v13, v14, 4, v13
        v_mul_u32_u24 v13, 1280, v13
        v_and_b32 v14, 7, v0
        v_lshlrev_b32 v14, 4, v14
        v_and_b32 v12, 1, v2
        v_lshlrev_b32 v12, 5, v12
        v_xor_b32 v14, v14, v12
        v_add_u32 v36, v13, v14
        v_xor_b32 v14, 64, v14
        v_add_u32 v37, v13, v14
        s_lshl_b32 s73, s{sX8}, 2
        s_add_u32 s73, s73, s{sW}
        s_mul_i32 s73, s73, 163840
        s_lshl_b32 s{s1}, s{sR}, 7
        s_add_u32 s73, s73, s{s1}
        s_lshl_b32 s74, s{sW}, 14
        """)
        def qloads():
            for i in range(8):
                e(f's_add_u32 m0, s62, {i*1024}')
                e(f'buffer_load_dwordx4 v{vQS+i}, {srd(rWS)}, s{76+(i>>2)} offen sc1 lds')
        kdone = set()
        def younger(item): return len(vm) - 1 - vm.index(item)
        def kv(c):
            e(f's_waitcnt vmcnt({younger(("d",8*c+7))})')
            if c == 3: self.stamp('T.ckv')
            if c == 2:
                for s3 in range(4): e(f'v_add_u32 v{vKa+s3}, 0x10000, v{vKa+s3}')
            for s3 in range(4):
                for kt in range(2):
                    e(f'ds_read_b128 {a(((4*c+s3)*2+kt)*4,4)}, v{vKa+s3} offset:{(c&1)*32768+kt*4096}')
            kdone.add(c)
            e('s_barrier')
            for ks in range(4):
                for T2 in range(2):
                    for q in range(2):
                        e(f'ds_read_b64_tr_b16 {a(128+(ks*8+2*c+T2)*4+2*q,2)}, v{vVa+T2+2*(c>>1)} offset:{(c&1)*32768+ks*8192+q*4096}')
        qpos = self.o.get('qpos', 32); npre = self.o.get('npre', 4)
        klag = self.o.get('klag', 12)
        for n in range(n0, 33):
            if n == npre:
                for x in pre: e(x)
            if n == qpos - self.o.get('rdylead', 8):
                e(f's_lshl_b32 s75, s{sW}, 8\ns_add_u32 s75, s75, {RDY}')
                e(f's_load_dwordx8 s[8:15], s[{pWS}:{pWS+1}], s75\ns_load_dwordx4 s[20:23], s[{pWS}:{pWS+1}], s75 offset:32\ns_load_dwordx4 s[48:51], s[{pWS}:{pWS+1}], s75 offset:48')
                e(f's_load_dwordx8 s[24:31], s[{pWS}:{pWS+1}], s75 offset:128\ns_load_dwordx4 s[56:59], s[{pWS}:{pWS+1}], s75 offset:160\ns_load_dwordx2 s[16:17], s[{pWS}:{pWS+1}], s75 offset:176\ns_load_dwordx2 s[32:33], s[{pWS}:{pWS+1}], s75 offset:184')
            if n == qpos:
                e('s_waitcnt lgkmcnt(0)')
                self.tags()
                prs = [12,14,16] + list(range(20,34,2)) + [48,50,56,58]
                e('s_and_b64 s[60:61], s[8:9], s[10:11]\ns_or_b64 s[66:67], s[8:9], s[10:11]')
                for p in prs: e(f's_and_b64 s[60:61], s[60:61], s[{p}:{p+1}]\ns_or_b64 s[66:67], s[66:67], s[{p}:{p+1}]')
                e(f's_and_b32 s60, s60, s61\ns_or_b32 s66, s66, s67\ns_xor_b32 s60, s60, s{sT0}\ns_xor_b32 s66, s66, s{sT0}\ns_or_b32 s60, s60, s66')
                e('s_cbranch_scc0 L_T_RDYOK')
                e('v_and_b32 v12, 1, v2\nv_lshlrev_b32 v12, 7, v12\nv_lshl_add_u32 v12, v1, 2, v12')
                e('L_T_RDY:')
                self.timeout()
                e(f'buffer_load_dword v13, v12, {srd(rWS)}, s75 offen sc1\ns_waitcnt vmcnt(0)\nv_cmp_ne_u32 vcc, s{sT0}, v13\ns_cbranch_vccnz L_T_RDY')
                e('L_T_RDYOK:')
                self.stamp('T.qiss')
                e(f's_lshl_b32 s79, s{sT}, 7\ns_add_u32 s79, s79, {GATE}\ns_cmp_eq_u32 s{sW}, 0\ns_cselect_b32 s79, s79, {OOB}\nv_mov_b32 v39, s79\nv_mov_b32 v21, s{sT1}')
                qloads(); vm += [('q',i) for i in range(8)]
                self.mk_srd(rA, pWO, 73, 5242880)
                e(f's_cmp_lt_u32 s{sR}, 10\ns_cselect_b32 s{rA+2}, s{rA+2}, 0')
            if n < 32:
                dma(n); vm.append(('d',n))
                if n in thr: e(f's_waitcnt vmcnt({thr[n]})')
            for c in range(3):
                if c not in kdone and n >= npre and ('d',8*c+7) in vm and younger(('d',8*c+7)) >= klag and (c == 0 or c-1 in kdone): kv(c)
        self.stamp('T.issued')
        if self.o.get('gate') == 1:
            e(f'buffer_store_dword v21, v39, {srd(rWS)}, 0 offen'); vm.append('gate')
        if self.o.get('tonly'):
            e('s_waitcnt vmcnt(0)'); self.stamp('T.ckv0'); e('s_branch L_END')
        for c in range(4):
            if c not in kdone: kv(c)
        if self.o.get('gate') == 2:
            e(f'buffer_store_dword v21, v39, {srd(rWS)}, 0 offen'); vm.append('gate')
        e('s_branch L_T_Q1')
        e('L_T_Q0:')
        self.fb((), (76, 77)); e(f's_sleep {self.o.get("qsleep",1)}')
        qloads()
        e('L_T_Q1:')
        e(f's_waitcnt vmcnt(0)\nds_read_b32 v12, v{vQC}\nds_read_b32 v13, v{vQC} offset:4096\ns_waitcnt lgkmcnt(0)\nv_max_u32 v12, v12, v13\nv_cmp_eq_u32 vcc, -1, v12\ns_cbranch_vccnz L_T_Q0')
        self.stamp('T.qin')
        if self.o.get('gate') == 3:
            e(f'buffer_store_dword v21, v39, {srd(rWS)}, 0 offen'); vm.append('gate')
        e('s_barrier')
        self.stamp('T.Qbar')
        def wo_ops(i): return [f's_add_u32 m0, s74, {WO+i*1024}', f's_mov_b32 s{sTMP}, {(32*(i>>2)+4*(i&3))*1280}', f'buffer_load_dwordx4 v{36+(i&1)}, {srd(rA)}, s{sTMP} offen nt lds']
        nwe = self.o.get('wo_early', 10)
        vS = 48; vP = 76; vPF = 88; vAcc = 128; vO = 192
        def qreg(s, ht): return 128 + ht*64 + s*4
        def qread(s, ht): return f'ds_read_b128 {v(qreg(s,ht),4)}, v{vQa+(s&3)} offset:{(s>>2)*256+ht*16384}'
        def qk(s, kt, ht):
            d = v(vS+(kt*2+ht)*4,4)
            return f'v_mfma_f32_16x16x32_bf16 {d}, {a((s*2+kt)*4,4)}, {v(qreg(s,ht),4)}, ' + ('0' if s == 0 else d)
        def pv(ks, T, ht):
            d = v(vAcc+(ht*8+T)*4,4)
            return f'v_mfma_f32_16x16x32_bf16 {d}, {v(vPF+(ks*2+ht)*4,4)}, {a(128+(ks*8+T)*4,4)}, ' + ('0' if ks == 0 else d)
        def ver(s, ht): return f'v_max3_u32 v23, v23, v{qreg(s,ht)}, v{qreg(s,ht)+2}'
        def cost(x): return 2 if x.startswith('v_exp') else (0 if x.startswith('s_') else 1)
        def stream(mf, toks, bg):
            skip = 0
            for m in mf:
                e(m)
                b = 2
                if skip: skip -= 1
                else:
                    while toks:
                        t = toks[0]
                        if isinstance(t, tuple): skip = t[1]; toks.pop(0); break
                        if cost(t) > b: break
                        e(t); b -= cost(t); toks.pop(0)
                while bg and cost(bg[0]) <= b:
                    b -= cost(bg[0]); e(bg.pop(0))
            return toks
        def flush(toks):
            for t in toks:
                if not isinstance(t, tuple): e(t)
        D = 4
        for s in range(D): e(qread(s,0))
        e(f'v_mov_b32 v23, 0\nbuffer_store_dwordx4 v[16:19], v20, {srd(rWS)}, s71 offen sc1')
        rd = [(s,0) for s in range(D,16)] + [(s,1) for s in range(16)]
        issued = D
        wo = [wo_ops(i) for i in range(nwe)]
        for s in range(16):
            e(f's_waitcnt lgkmcnt({min(15, issued-1-s)})')
            if s == 15: e('s_barrier')
            for kt in range(2):
                e(qk(s,kt,0))
                if rd: e(qread(*rd.pop(0))); issued += 1
                if kt == 0: e(ver(s,0))
                elif wo: flush(wo.pop(0))
        self.stamp('T.QK0')
        def sm(ht):
            r0 = vS+ht*4; r1 = vS+8+ht*4; m = 64; t = 65; M = 66+ht; rb = 72
            a_ = [f'v_max3_f32 v{m}, v{r0}, v{r0+1}, v{r0+2}', f'v_max3_f32 v{t}, v{r1}, v{r1+1}, v{r1+2}', f'v_max3_f32 v{m}, v{m}, v{r0+3}, v{r1+3}', f'v_max_f32 v{m}, v{m}, v{t}',
                  f'v_mov_b32 v{t}, v{m}', ('gap',0), f'v_permlane32_swap_b32 v{m}, v{t}', f'v_max_f32 v{m}, v{m}, v{t}', f'v_mov_b32 v{t}, v{m}', ('gap',0),
                  f'v_permlane16_swap_b32 v{m}, v{t}', f'v_max_f32 v{m}, v{m}, v{t}', f'ds_write_b32 v22, v{m} offset:{ht*256}']
            b_ = ['s_waitcnt lgkmcnt(0)', 's_barrier', f'ds_read_b128 {v(rb,4)}, v{vMR} offset:{ht*256}']
            c_ = ['s_waitcnt lgkmcnt(0)', f'v_max3_f32 v{M}, v{rb}, v{rb+1}, v{rb+2}', f'v_max_f32 v{M}, v{M}, v{rb+3}', f'v_mul_f32 v{M}, v38, v{M}']
            for b in (r0, r1):
                for r in range(4): c_.append(f'v_fma_f32 v{b+r}, v{b+r}, v38, -v{M}')
            for b in (r0, r1):
                for r in range(4): c_.append(f'v_exp_f32 v{b+r}, v{b+r}')
            for k,b in enumerate((r0, r1)):
                c_ += [f'v_cvt_pk_bf16_f32 v{vP+ht*4+k*2}, v{b}, v{b+1}', f'v_cvt_pk_bf16_f32 v{vP+ht*4+k*2+1}, v{b+2}, v{b+3}']
            c_.append(f'ds_write_b128 v{vPW}, {v(vP+ht*4,4)} offset:{ht*1024}')
            d_ = ['s_waitcnt lgkmcnt(0)', 's_barrier'] + [f'ds_read_b128 {v(vPF+(ks*2+ht)*4,4)}, v{vPR} offset:{(ks*2+ht)*1024}' for ks in range(4)]
            return a_, b_, c_, d_
        g1 = self.o.get('g1', 2); g2 = self.o.get('g2', 2)
        a0,b0,c0,d0 = sm(0); a1_,b1,c1,d1 = sm(1)
        e('s_waitcnt lgkmcnt(0)')
        mf = [qk(s,kt,1) for s in range(16) for kt in range(2)]
        bg = [ver(s,1) for s in range(16)]
        left = stream(mf, [('gap',1)] + a0 + [('gap',g1)] + b0 + [('gap',g2)] + c0, bg)
        flush(left)
        self.stamp('T.QK')
        flush(bg)
        flush(a1_)
        e('v_cmp_eq_u32 vcc, -1, v23')
        flush(d0[:2])
        e('s_cbranch_vccnz L_T_Q0')
        flush(d0[2:] + b1[2:])
        self.stamp('T.Pbar')
        def lsum(ht, dst):
            r0 = vS+ht*4; r1 = vS+8+ht*4
            return [f'v_add_f32 v{r0}, v{r0}, v{r0+1}', f'v_add_f32 v{r0+2}, v{r0+2}, v{r0+3}', f'v_add_f32 v{r1}, v{r1}, v{r1+1}', f'v_add_f32 v{r1+2}, v{r1+2}, v{r1+3}',
                    f'v_add_f32 v{r0}, v{r0}, v{r0+2}', f'v_add_f32 v{r1}, v{r1}, v{r1+2}', f'v_add_f32 v{dst}, v{r0}, v{r1}']
        flush(lsum(0, 70))
        e('s_waitcnt lgkmcnt(4)')
        mf = [pv(ks,T,0) for ks in range(4) for T in range(8)]
        left = stream(mf, [('gap',0)] + c1 + lsum(1, 71) + [('gap',self.o.get('g3',0))] + d1, [])
        flush(left)
        self.stamp('T.pv4')
        def outops(ht):
            ops = []
            for r in range(4):
                o = vO + (ht*4+r)*4
                for k in range(4):
                    ops.append(f'v_cvt_pk_bf16_f32 v{o+k}, v{vAcc+(ht*8+2*k)*4+r}, v{vAcc+(ht*8+2*k+1)*4+r}')
                ops.append(f's_mov_b32 s{sTMP}, {(16*ht+r)*131072}')
                ops.append(f'buffer_store_dwordx4 {v(o,4)}, v{vPS}, {srd(rWS)}, s{sTMP} offen sc1')
            return ops
        e('s_waitcnt lgkmcnt(0)')
        mf = [pv(ks,T,1) for ks in range(4) for T in range(8)]
        cs = self.o.get('cs', 1)
        def csum(ht):
            c = 48 + 4*ht; y = 56 + 2*ht; z = 60 + ht
            ops = []
            for r in range(4):
                o = vO + (ht*4+r)*4
                ops.append([f'v_add3_u32 v{c+r}, v{o}, v{o+1}, v{o+2}', f'v_add_u32 v{c+r}, v{c+r}, v{o+3}'])
            red = [f'v_add_u32_dpp v{y}, v{c}, v{c} row_ror:8 row_mask:0xf bank_mask:0x3', f'v_add_u32_dpp v{y+1}, v{c+1}, v{c+1} row_ror:8 row_mask:0xf bank_mask:0x3',
                   f'v_add_u32_dpp v{y}, v{c+2}, v{c+2} row_ror:8 row_mask:0xf bank_mask:0xc', f'v_add_u32_dpp v{y+1}, v{c+3}, v{c+3} row_ror:8 row_mask:0xf bank_mask:0xc',
                   f'v_add_u32_dpp v{z}, v{y}, v{y} row_shl:4 row_mask:0xf bank_mask:0x5', f'v_add_u32_dpp v{z}, v{y+1}, v{y+1} row_shr:4 row_mask:0xf bank_mask:0xa',
                   f'v_add_u32_dpp v{z}, v{z}, v{z} quad_perm:[1,0,3,2] {DPP}', f'v_add_u32_dpp v{z}, v{z}, v{z} quad_perm:[2,3,0,1] {DPP}']
            return ops, red
        def out_cs(ht):
            if not cs: return outops(ht)
            o = outops(ht); l, red = csum(ht); res = []
            for r in range(4): res += o[6*r:6*r+6] + l[r]
            return res + red
        ltail = ['v_permlane32_swap_b32 v70, v71','v_add_f32 v70, v70, v71','v_mov_b32 v71, v70', f'ds_read_b128 v[76:79], v{vLR}', 'v_permlane16_swap_b32 v70, v71','v_add_f32 v70, v70, v71',
                 f'ds_write_b32 v{vMW}, v70 offset:512', 'v_and_b32 v71, 1, v1']
        recops = ['s_waitcnt lgkmcnt(0)', 's_barrier', f'ds_read_b128 v[72:75], v{vLR} offset:512', 'v_max3_f32 v84, v76, v77, v78', 'v_max_f32 v84, v84, v79', 'v_mul_f32 v84, v38, v84',
                  f'v_mov_b32 v86, s{sT0}', f'v_mov_b32 v87, s{sT0 if cs else sT1}', 'v_cmp_eq_u32 vcc, 1, v71', ('gap',1), 's_waitcnt lgkmcnt(0)', 'v_add_f32 v72, v72, v73', 'v_add_f32 v74, v74, v75', 'v_add_f32 v85, v72, v74']
        left = stream(mf, ltail + out_cs(0) + recops, [])
        flush(left)
        self.stamp('T.pv8')
        flush(out_cs(1))
        if cs: e('v_cndmask_b32 v86, v60, v61, vcc\nv_sub_u32 v86, 0, v86')
        self.stamp('T.PVst')
        rw = self.o.get('recwait', None if cs else 0)
        e(f's_waitcnt vmcnt({nwe+8 if rw is None else rw})')
        self.pub('v[84:87]', vRS)
        self.stamp('T.rec')
        e(f's_cmp_ge_u32 s{sR}, 10\ns_cbranch_scc1 L_END')
        for i in range(nwe, 16): flush(wo_ops(i))
        e(f"""
        v_lshrrev_b32 v12, 2, v1
        v_lshl_add_u32 v12, v2, 3, v12
        v_lshlrev_b32 v12, 7, v12
        v_and_b32 v13, 3, v1
        v_lshl_add_u32 v12, v13, 3, v12
        v_lshrrev_b32 v14, 3, v1
        v_and_b32 v15, 1, v2
        v_lshl_or_b32 v14, v15, 1, v14
        v_xor_b32 v14, s{sW}, v14
        v_lshl_add_u32 v24, v14, 5, v12
        v_mul_u32_u24 v13, 320, v13
        v_add_u32 v13, v13, v11
        v_add_u32 v25, {HB}, v13
        v_mul_u32_u24 v12, 320, v2
        v_lshl_add_u32 v12, v1, 4, v12
        s_mul_i32 s{s0}, s{sW}, 1280
        s_add_u32 s{s0}, s{s0}, {HB}
        v_add_u32 v26, s{s0}, v12
        v_lshlrev_b32 v12, 4, v1
        v_lshl_add_u32 v27, v2, 13, v12
        s_lshl_b32 s75, s{sX8}, 4
        s_add_u32 s75, s75, s{sW}
        s_lshl_b32 s75, s75, 11
        s_add_u32 s75, s75, {SL+S_HC+LOC}
        s_and_b32 s75, s75, s{sLM}
        s_lshl_b32 s{s0}, s{sX8}, 11
        s_lshl_b32 s{s1}, s{sR}, 7
        s_add_u32 s{s0}, s{s0}, s{s1}
        s_lshl_b32 s{s1}, s{sW}, 5
        s_add_u32 s{s0}, s{s0}, s{s1}
        s_add_u32 s{s0}, s{s0}, {H3B}
        v_lshlrev_b32 v12, 1, v0
        v_add_u32 v12, s{s0}, v12
        v_cmp_gt_u32 vcc, 16, v0
        v_cndmask_b32 v28, v9, v12, vcc
        s_waitcnt vmcnt(0)
        s_barrier
        """)
        self.stamp('C.land')
        for st_ in range(16):
            for q in range(2): e(f'ds_read_b64_tr_b16 {a(st_*4+2*q,2)}, v24 offset:{WO+st_*4096+q*512}')
        e('L_C_HC:')
        e(f'buffer_load_dwordx4 v[76:79], v27, {srd(rWS)}, s75 offen sc1')
        e('s_waitcnt vmcnt(0)')
        e('ds_write_b128 v26, v[76:79]')
        self.maxchain(12, range(76,80))
        e('v_cmp_eq_u32 vcc, -1, v12')
        self.retry('L_C_HC', sleep=0, sregs=(75,))
        self.stamp('C.hcin')
        e('s_waitcnt lgkmcnt(0)\ns_barrier')
        self.stamp('C.bar')
        NP = 8
        def ar(st_): return f'ds_read_b128 {v(128+4*st_,4)}, v25 offset:{(st_>>2)*1280+(st_&3)*64}'
        for st_ in range(NP): e(ar(st_))
        for st_ in range(16):
            e(f's_waitcnt lgkmcnt({min(NP-1, 15-st_)})')
            e(f'v_mfma_f32_16x16x32_bf16 v[104:107], {v(128+4*st_,4)}, {a(st_*4,4)}, ' + ('0' if st_ == 0 else 'v[104:107]'))
            if st_+NP < 16: e(ar(st_+NP))
        e('v_pk_add_f32 v[104:105], v[104:105], v[106:107]\nv_add_f32 v104, v104, v105\nv_cvt_pk_bf16_f32 v104, v104, v104\nv_min_u32 v104, -2, v104')
        e(f'buffer_store_short v104, v28, {srd(rWS)}, 0 offen sc1\nbuffer_store_short v104, v28, {srd(rWS)}, s{sLOC} offen')
        self.stamp('C.h3')

    def epilogue(self):
        e = self.e
        e('L_END:')
        if self.stamps and 'amp' not in self.o:
            e(f's_waitcnt lgkmcnt(0)\ns_lshl_b32 s60, s2, 2\ns_add_u32 s60, s60, s{sW}\ns_lshl_b32 s60, s60, 6\ns_add_u32 s60, s60, {STAMP}\nv_mov_b32 v4, 0')
            for k in range(11): e(f'v_mov_b32 v5, s{sSTAMP+2*k}\nbuffer_store_dword v5, v4, {srd(rWS)}, s60 offen offset:{4*k}')
            e(f'v_mov_b32 v5, s{sTO}\nbuffer_store_dword v5, v4, {srd(rWS)}, s60 offen offset:44')
        e('L_EXIT:')

    def build(self):
        if self.stamps:
            for k in range(1,11): self.e(f's_mov_b32 s{sSTAMP+2*k}, 0')
        self.prologue(); self.role_A(); self.role_T(); self.epilogue()
        hdr = open('header.txt').read()
        return f'''{hdr}; @launch grid=(256,1,1) block=(256,1,1) lds=163840
.amdgcn_target "amdgcn-amd-amdhsa--gfx950"
.text
.globl {KN}
.p2align 8
.type {KN},@function
{KN}:
{self.e.text()}
s_endpgm
.section .rodata,"a"
.p2align 6
.amdhsa_kernel {KN}
  .amdhsa_next_free_vgpr 512
  .amdhsa_next_free_sgpr 102
  .amdhsa_accum_offset 256
  .amdhsa_group_segment_fixed_size 0
  .amdhsa_kernarg_size 112
  .amdhsa_user_sgpr_count 2
  .amdhsa_user_sgpr_kernarg_segment_ptr 1
  .amdhsa_system_sgpr_workgroup_id_x 1
.end_amdhsa_kernel
'''

if __name__ == '__main__':
    import json
    out = sys.argv[1]; stamps = len(sys.argv) > 2 and sys.argv[2] == '1'
    opt = json.loads(sys.argv[3]) if len(sys.argv) > 3 else {}
    open(out,'w').write(G(stamps, opt).build())
```

```python
import sys
sys.path.insert(0,'work')
from dsl import Asm
NAME = 'sequential_preLN__compressed_kv_cla__dense_activation_squared_relu__decode'
KN = NAME + '_kernel'

EPOCH=0; RDY=0x1000; GATE=0x2000; QP=0x8000; SL=0x40000; REC=0x80000; LOC=0x100000; PART=0x200000; STAMP=0x600000
S_QL=0; S_HC=256; S_H4=512; H3B = SL + 108*2048 + S_H4
WSSZ=0x700000
OOB=0x7ffffff0
NLOC=96
sLM,sLC,sLOC,sTMP = 3,4,5,6
pX,pCKV,pWQ,pWUK,pWUV,pWO,pBX,pW1,pB1,pW2,pB2,pOUT,pDBG,pWS = [8+2*i for i in range(14)]
sW,sX8,sR,sE,sT0,sT1,sTO,sC = 36,37,38,39,40,41,42,43
rWS=44; rA=48; rB=52; rC=56
sSTAMP=80
def srd(r): return f's[{r}:{r+3}]'
def v(n,c=1): return f'v{n}' if c==1 else f'v[{n}:{n+c-1}]'
def a(n,c=1): return f'a{n}' if c==1 else f'a[{n}:{n+c-1}]'
DPP='row_mask:0xf bank_mask:0xf'
QB = 131072
WQ = 69632; XN = 110592

class G:
    def __init__(self, stamps=False, opt=None):
        self.e = Asm(); self.stamps = stamps; self.o = opt or {}
        self.slots = {'A':['start'],'T':['start'],'R':[]}; self.idx = {}; self.tbase = 1
    def stamp(self, name):
        if not self.stamps: return
        role = name.split('.')[0]
        lst = self.slots['A' if role in 'AFR' else 'T']
        want = self.o.get('want')
        if name == 'start': k = 0
        else:
            if want is not None and name not in want: return
            if role == 'R':
                k = self.tbase + len(self.slots['R']); self.slots['R'].append(name)
            else:
                k = len(lst); lst.append(name)
                if role == 'A': self.tbase = len(lst)
            if k > 10: raise Exception('too many stamps '+name)
        self.idx[name] = k
        op = 's_memtime' if self.o.get('cyc') else 's_memrealtime'
        self.e(f'{op} s[{sSTAMP+2*k}:{sSTAMP+2*k+1}]')
        if name in self.o.get('cut', []): self.e('s_branch L_END')
    def mk_srd(self, r, ptr, off_sgpr, size):
        e = self.e
        if off_sgpr is None:
            e(f's_mov_b32 s{r}, s{ptr}\ns_and_b32 s{r+1}, s{ptr+1}, 0xffff\ns_mov_b32 s{r+2}, {size}')
        else:
            e(f's_add_u32 s{r}, s{ptr}, s{off_sgpr}\ns_addc_u32 s{r+1}, s{ptr+1}, 0\ns_and_b32 s{r+1}, s{r+1}, 0xffff\ns_sub_u32 s{r+2}, {size}, s{off_sgpr}')
        e(f's_mov_b32 s{r+3}, 0x20000')
    def allred(self, op, x, t, steps16=4):
        e = self.e
        pats = ['quad_perm:[1,0,3,2]','quad_perm:[2,3,0,1]','row_half_mirror','row_mirror'][:steps16]
        for p in pats: e(f'{op}_dpp v{x}, v{x}, v{x} {p} {DPP}')
        e(f'v_mov_b32 v{t}, v{x}\nv_permlane16_swap_b32 v{x}, v{t}\n{op} v{x}, v{x}, v{t}')
        e(f'v_mov_b32 v{t}, v{x}\nv_permlane32_swap_b32 v{x}, v{t}\n{op} v{x}, v{x}, v{t}')
    def timeout(self):
        self.e(f's_sub_u32 s{sTO}, s{sTO}, 1\ns_cmp_eq_u32 s{sTO}, 0\ns_cbranch_scc1 L_END')
    def fb(self, vregs=(), sregs=()):
        e = self.e
        self.timeout()
        e(f's_add_u32 s{sLC}, s{sLC}, 1\ns_cmp_ge_u32 s{sLC}, {NLOC}\ns_cselect_b32 s{sLM}, {(~LOC)&0xffffffff}, s{sLM}')
        self.lmask(vregs, sregs)
    def lmask(self, vregs=(), sregs=()):
        for r in vregs: self.e(f'v_and_b32 v{r}, s{sLM}, v{r}')
        for r in sregs: self.e(f's_and_b32 s{r}, s{r}, s{sLM}')
    def stop(self, data):
        if '[' not in data: return 'buffer_store_dword'
        lo, hi = data[2:-1].split(':'); return f'buffer_store_dwordx{int(hi)-int(lo)+1}'
    def publ(self, data, voff): self.e(f'{self.stop(data)} {data}, v{voff}, {srd(rWS)}, s{sLOC} offen')
    def pubg(self, data, voff): self.e(f'{self.stop(data)} {data}, v{voff}, {srd(rWS)}, 0 offen sc1')
    def pub(self, data, voff): self.pubg(data, voff); self.publ(data, voff)
    def late_pubg(self, data, voff):
        e = self.e; l = e.newlabel('Lnp')
        e(f's_cmp_eq_u32 s{sLM}, -1\ns_cbranch_scc1 {l}'); self.pubg(data, voff); e(f'{l}:')
    def retry(self, label, sleep=1, vregs=(), sregs=(), late=None):
        e = self.e
        ok = e.newlabel('Lok')
        e(f's_cbranch_vccz {ok}')
        self.fb(vregs, sregs)
        if late: self.late_pubg(*late)
        if sleep: e(f's_sleep {sleep}')
        e(f's_branch {label}')
        e(f'{ok}:')
    def maxchain(self, dst, regs):
        e = self.e
        regs = list(regs)
        e(f'v_max3_u32 v{dst}, v{regs[0]}, v{regs[1]}, v{regs[2]}'); regs = regs[3:]
        while len(regs) >= 2:
            e(f'v_max3_u32 v{dst}, v{dst}, v{regs[0]}, v{regs[1]}'); regs = regs[2:]
        if regs: e(f'v_max_u32 v{dst}, v{dst}, v{regs[0]}')
    def tagcheck(self, dst, pairs):
        e = self.e; rs = []
        for r in pairs:
            e(f'v_xor_b32 v{r}, s{sT0}, v{r}\nv_xor_b32 v{r+1}, s{sT1}, v{r+1}'); rs += [r, r+1]
        if len(rs) == 2: e(f'v_or_b32 v{dst}, v{rs[0]}, v{rs[1]}')
        else:
            e(f'v_or3_b32 v{dst}, v{rs[0]}, v{rs[1]}, v{rs[2]}'); rs = rs[3:]
            while len(rs) >= 2: e(f'v_or3_b32 v{dst}, v{dst}, v{rs[0]}, v{rs[1]}'); rs = rs[2:]
            if rs: e(f'v_or_b32 v{dst}, v{dst}, v{rs[0]}')
        e(f'v_cmp_ne_u32 vcc, 0, v{dst}')
    def ident_masks(self, dst, val_lo, val_hi, first, n, t):
        e = self.e
        e(f'v_and_b32 v{t}, 1, v1\nv_cmp_eq_u32 vcc, 1, v{t}\nv_mov_b32 v{t}, {val_lo}\nv_mov_b32 v{t+1}, {val_hi}\nv_cndmask_b32 v{t}, v{t}, v{t+1}, vcc')
        e(f'v_lshrrev_b32 v{t+1}, 1, v1')
        for r in range(n):
            e(f'v_cmp_eq_u32 vcc, {first+r}, v{t+1}\nv_cndmask_b32 v{dst+r}, 0, v{t}, vcc')
    def red_final(self, RED, t, va, clamp):
        e = self.e
        for w in range(4): e(f'ds_read_b128 {v(t+4+4*w,4)}, v{va} offset:{RED+256*w}')
        e('s_waitcnt lgkmcnt(2)')
        for i in range(2): e(f'v_pk_add_f32 {v(t+4+2*i,2)}, {v(t+4+2*i,2)}, {v(t+8+2*i,2)}')
        e('s_waitcnt lgkmcnt(0)')
        for i in range(2): e(f'v_pk_add_f32 {v(t+12+2*i,2)}, {v(t+12+2*i,2)}, {v(t+16+2*i,2)}')
        for i in range(2): e(f'v_pk_add_f32 {v(t+4+2*i,2)}, {v(t+4+2*i,2)}, {v(t+12+2*i,2)}')
        for i in range(2): e(f'v_cvt_pk_bf16_f32 v{t+i}, v{t+4+2*i}, v{t+5+2*i}')
        if clamp:
            for i in range(2): e(f'v_min_u32 v{t+i}, -2, v{t+i}')
    def code_prefetch(self):
        e = self.e
        npl = self.o.get('npl', 3)
        e(f's_getpc_b64 s[20:21]\nL_PC:\ns_sub_u32 s20, s20, L_PC-{KN}\ns_subb_u32 s21, s21, 0')
        e(f's_and_b32 s22, s{sR}, 15\ns_lshl_b32 s22, s22, 2\ns_add_u32 s22, s22, s{sW}\ns_lshl_b32 s22, s22, 7')
        for i in range(npl):
            e(f's_min_u32 s23, s22, L_EXIT-{KN}\ns_load_dword s7, s[20:21], s23')
            if i < npl-1: e(f's_add_u32 s22, s22, 8192')
    def tags(self):
        self.e(f's_add_u32 s{sT0}, s{sE}, 0x9e3779b9\ns_xor_b32 s{sT1}, s{sT0}, 0x5bd1e995')

    def prologue(self):
        e = self.e
        self.stamp('start')
        e(f'''
        s_cmp_ge_u32 s2, 256
        s_cbranch_scc1 L_EXIT
        s_load_dwordx16 s[8:23], s[0:1], 0
        s_load_dwordx4 s[32:35], s[0:1], 96
        s_load_dwordx8 s[24:31], s[0:1], 64
        v_lshrrev_b32 v1, 6, v0
        v_and_b32 v0, 63, v0
        v_readfirstlane_b32 s{sW}, v1
        v_and_b32 v1, 15, v0
        v_lshrrev_b32 v2, 4, v0
        v_lshlrev_b32 v3, 4, v0
        v_lshlrev_b32 v4, 2, v0
        s_and_b32 s{sX8}, s2, 7
        s_lshr_b32 s{sR}, s2, 3
        v_lshlrev_b32 v5, 4, v1
        v_lshlrev_b32 v6, 5, v2
        v_xor_b32 v5, v5, v6
        v_lshl_add_u32 v6, v2, 13, v5
        s_lshr_b32 s67, s{sW}, 1
        s_lshl_b32 s67, s67, 7
        v_xor_b32 v8, s67, v6
        v_mov_b32 v9, {OOB}
        v_lshlrev_b32 v11, 4, v2
        s_bfe_u32 s60, s{sR}, 0x20002
        s_mul_i32 s60, s60, {160*8192}
        s_and_b32 s63, s{sR}, 3
        s_lshl_b32 s64, s{sX8}, 2
        s_add_u32 s63, s63, s64
        s_lshl_b32 s63, s63, 8
        s_add_u32 s60, s60, s63
        s_lshl_b32 s61, s{sW}, 15
        s_lshl_b32 s62, s{sW}, 10
        s_add_u32 s62, s62, {WQ}
        s_mov_b32 s{rA+3}, 0x20000
        s_mov_b32 s{rC+3}, 0x20000
        s_mov_b32 s{rC+2}, 1280
        s_sub_u32 s{rA+2}, 5242880, s60
        s_mov_b32 s{sTO}, 400000
        s_mov_b32 s{sLM}, -1
        s_mov_b32 s{sLC}, 0
        s_mov_b32 s{sLOC}, {LOC}
        s_mov_b32 s{rWS+2}, {WSSZ}
        s_mov_b32 s{rWS+3}, 0x20000
        s_waitcnt lgkmcnt(0)
        s_add_u32 s{rA}, s{pWQ}, s60
        s_addc_u32 s{rA+1}, s{pWQ+1}, 0
        s_and_b32 s{rA+1}, s{rA+1}, 0xffff
        s_mov_b32 s{rC}, s{pX}
        s_and_b32 s{rC+1}, s{pX+1}, 0xffff
        s_mov_b32 s{rWS}, s{pWS}
        s_and_b32 s{rWS+1}, s{pWS+1}, 0xffff
        s_cmp_lt_u32 s{sR}, 16
        s_cbranch_scc1 L_T
        ''')
    def x_issue(self):
        for kk in range(5): self.e(f'buffer_load_dword v{20+kk}, v4, {srd(rC)}, 0 offen offset:{256*kk} {self.o.get("xflag","")}')
    def wq_dma(self, k):
        e = self.e
        e(f's_add_u32 m0, s62, {k*4096}')
        e(f'buffer_load_dwordx4 v8, {srd(rA)}, s61 offen nt lds')
        if k < 9: e(f's_add_u32 s61, s61, {4*32768}')
    def wuk_setup(self, sAi, srdreg):
        e = self.e
        e(f'''
        s_lshl_b32 s63, s{sX8}, 2
        s_add_u32 s64, s63, s{sW}
        s_lshl_b32 s64, s64, 8
        s_lshl_b32 s65, s{sAi}, 18
        s_add_u32 s64, s64, s65
        ''')
        self.mk_srd(srdreg, pWUK, 64, 4194304)
        e(f'v_xor_b32 v7, 0x80, v6\ns_mov_b32 s68, 0\ns_lshl_b32 s69, s{sW}, 13')
    def wuk_dma(self, k, srdreg, base):
        e = self.e
        e(f's_add_u32 m0, s69, {base+k*1024}')
        e(f'buffer_load_dwordx4 v{6 if ((k>>1)&1)==0 else 7}, {srd(srdreg)}, s68 offen nt lds')
        if k < 7: e(f's_add_u32 s68, s68, 32768')
    def a1(self, role, y_x, y_wq, mid):
        e = self.e
        s0, s1 = 63, 64
        e(f'''
        v_lshrrev_b32 v12, 2, v1
        v_lshl_add_u32 v13, v2, 3, v12
        v_lshlrev_b32 v13, 8, v13
        v_and_b32 v14, 3, v1
        v_lshl_add_u32 v13, v14, 3, v13
        v_and_b32 v15, 1, v2
        v_lshl_or_b32 v15, v15, 2, v12
        s_lshl_b32 s{s0}, s{sW}, 1
        v_xor_b32 v15, s{s0}, v15
        v_lshl_add_u32 v60, v15, 5, v13
        v_xor_b32 v15, 1, v15
        v_lshl_add_u32 v61, v15, 5, v13
        v_add_u32 v56, {WQ}, v60
        v_add_u32 v57, {WQ}, v61
        ''')
        e(f'''
        v_lshl_add_u32 v12, v1, 6, v11
        s_and_b32 s{s0}, s{sR}, 3
        s_lshl_b32 s{s1}, s{sX8}, 2
        s_add_u32 s{s0}, s{s0}, s{s1}
        s_lshl_b32 s{s0}, s{s0}, 2
        s_bfe_u32 s{s1}, s{sR}, 0x20002
        s_add_u32 s{s0}, s{s0}, s{s1}
        s_lshl_b32 s{s0}, s{s0}, 9
        s_lshl_b32 s{s1}, s{sW}, 7
        s_add_u32 s{s0}, s{s0}, s{s1}
        s_add_u32 s{s0}, s{s0}, {QP}
        v_add_u32 v12, s{s0}, v12
        v_cmp_gt_u32 vcc, 2, v1
        v_cndmask_b32 v62, v9, v12, vcc
        v_cmp_eq_u32 s[70:71], 1, v1
        s_mul_i32 s{s0}, s{sW}, 1280
        s_add_u32 s{s0}, s{s0}, {XN}
        v_add_u32 v10, s{s0}, v4
        s_bfe_u32 s{s1}, s{sR}, 0x20002
        s_mul_i32 s{s1}, s{s1}, 320
        s_add_u32 s{s0}, s{s0}, s{s1}
        v_add_u32 v12, s{s0}, v11
        s_waitcnt vmcnt({y_x}) lgkmcnt(0)
        ''')
        self.stamp(role+'.x')
        for k in range(5): e(f'v_lshlrev_b32 v{26+2*k}, 16, v{20+k}\nv_and_b32 v{27+2*k}, 0xffff0000, v{20+k}')
        e('v_pk_add_f32 v[36:37], v[26:27], v[28:29]\nv_pk_add_f32 v[38:39], v[30:31], v[32:33]\nv_pk_add_f32 v[36:37], v[36:37], v[34:35]\nv_pk_add_f32 v[36:37], v[36:37], v[38:39]\nv_add_f32 v36, v36, v37')
        self.allred('v_add_f32', 36, 37)
        e('v_mul_f32 v36, 0xbacccccd, v36\nv_mov_b32 v37, v36')
        for k in range(26,36,2): e(f'v_pk_add_f32 {v(k,2)}, {v(k,2)}, v[36:37]')
        e('v_pk_mul_f32 v[36:37], v[26:27], v[26:27]')
        for k in range(28,36,2): e(f'v_pk_fma_f32 v[36:37], {v(k,2)}, {v(k,2)}, v[36:37]')
        e('v_add_f32 v36, v36, v37')
        self.allred('v_add_f32', 36, 37)
        e('v_mul_f32 v36, 0x3acccccd, v36\nv_add_f32 v36, 0x3727c5ac, v36\nv_rsq_f32 v36, v36\nv_mov_b32 v37, v36')
        for k in range(26,36,2): e(f'v_pk_mul_f32 {v(k,2)}, {v(k,2)}, v[36:37]')
        for k in range(5): e(f'v_cvt_pk_bf16_f32 v{20+k}, v{26+2*k}, v{27+2*k}\nds_write_b32 v10, v{20+k} offset:{256*k}')
        e('s_waitcnt lgkmcnt(0)')
        for s in range(5): e(f'ds_read_b128 {v(36+4*s,4)}, v12 offset:{s*64}')
        e(f's_load_dword s{sE}, s[{pWS}:{pWS+1}], {EPOCH}')
        self.stamp(role+'.ln')
        mid()
        e('s_waitcnt lgkmcnt(0)')
        self.tags()
        e(f'v_mov_b32 v18, s{sT0}\nv_mov_b32 v19, s{sT1}')
        e(f's_waitcnt vmcnt({y_wq})\ns_barrier')
        self.stamp(role+'.wq')
        vW = 128
        for s in range(5):
            for T in range(2):
                for q in range(2): e(f'ds_read_b64_tr_b16 {v(vW+(s*2+T)*4+2*q,2)}, v{56+T} offset:{s*8192+q*1024}')
        for s in range(5):
            for T in range(2):
                e(f's_waitcnt lgkmcnt({min(15,18-(s*2+T)*2)})')
                e(f'v_mfma_f32_16x16x32_bf16 {v(84+4*T,4)}, {v(vW+(s*2+T)*4,4)}, {v(36+4*s,4)}, ' + ('0' if s==0 else v(84+4*T,4)))
        for i in range(4): e(f'v_cvt_pk_bf16_f32 v{92+i}, v{84+2*i}, v{85+2*i}')
        e('v_cndmask_b32 v16, v92, v94, s[70:71]\nv_cndmask_b32 v17, v93, v95, s[70:71]')
        self.publ('v[16:19]', 62)
        self.stamp(role+'.qp')


    def role_A(self):
        e = self.e
        QV=0; CL=1024; ML=2304; RED=2560; DUM=3584; WUK=4096; WUV=36864
        W1=69632; W2=W1+20480; HB=4096; AP=HB+2048; ST=AP+256; HELP=135168
        sAi,sHd,sJ,s0,s1,s2_,sSL = 72,73,74,63,64,65,66
        sF,sG = 60,61
        if self.o.get('noA'): e('s_branch L_END')
        order = self.o.get('a_order', 'qqqqqqqqqq|uuuuuuuu')
        cnt = {'q':0,'u':0}
        def issue(ch):
            if ch == 'q': self.wq_dma(cnt['q'])
            else:
                if cnt['u'] == 0: self.wuk_setup(sAi, rB)
                self.wuk_dma(cnt['u'], rB, WUK)
            cnt[ch] += 1
        e(f's_sub_u32 s{sAi}, s{sR}, 16')
        self.x_issue()
        o1, o2 = order.split('|')
        for ch in o1: issue(ch)
        e(f"""
        s_lshl_b32 s63, s{sX8}, 2
        s_and_b32 s{sHd}, s{sAi}, 3
        s_add_u32 s{sHd}, s{sHd}, s63
        s_lshr_b32 s{sJ}, s{sAi}, 2
        s_lshl_b32 s{sSL}, s{sX8}, 4
        s_add_u32 s{sSL}, s{sSL}, s{sAi}
        """)
        def mid():
            for ch in o2: issue(ch)
        full = o1 + o2
        self.a1('A', len(o1), len(full)-1-full.rindex('q'), mid)
        e(f"""
        s_lshl_b32 s75, s{sX8}, 5
        s_and_b32 s{s1}, s{sAi}, 12
        s_add_u32 s75, s75, s{s1}
        s_add_u32 s75, s75, s{sW}
        s_lshl_b32 s75, s75, 2
        s_add_u32 s75, s75, {RDY}
        s_load_dword s76, s[{pWS}:{pWS+1}], s75
        v_lshlrev_b32 v27, 9, v2
        v_lshl_add_u32 v27, v1, 4, v27
        s_lshl_b32 s{s2_}, s{sX8}, 2
        s_add_u32 s{s2_}, s{s2_}, s{sW}
        s_lshl_b32 s{s2_}, s{s2_}, 11
        s_add_u32 s{s2_}, s{s2_}, {QP+LOC}
        v_lshlrev_b32 v12, 9, v1
        s_lshl_b32 s{s0}, s{sW}, 13
        s_add_u32 s{s0}, s{s0}, {WUK}
        v_add_u32 v12, s{s0}, v12
        v_and_b32 v13, 1, v1
        v_and_b32 v14, 4, v1
        v_lshl_or_b32 v13, v13, 1, v14
        v_lshlrev_b32 v13, 5, v13
        """)
        def h0loads():
            for i in range(2): e(f'buffer_load_dwordx4 {v(64+4*i,4)}, v27, {srd(rWS)}, s{s2_} offen offset:{i*256} sc1')
        for s in range(4):
            e(f'v_add_u32 v14, {s*64}, v11\nv_xor_b32 v14, v14, v13\nv_add_u32 v{40+2*s}, v14, v12\nv_xor_b32 v14, 32, v14\nv_add_u32 v{41+2*s}, v14, v12')
        vI = 28
        self.ident_masks(vI, 0x3f80, 0x3f800000, 0, 8, 12)
        e(f"""
        s_lshl_b32 s{s0}, s{sW}, 8
        v_lshlrev_b32 v12, 3, v0
        v_add_u32 v12, s{s0}, v12
        v_mov_b32 v13, {DUM}
        v_cmp_gt_u32 vcc, 32, v0
        v_cndmask_b32 v24, v13, v12, vcc
        v_add_u32 v25, s{s0}, v11
        s_lshl_b32 s{s0}, s{sX8}, 4
        s_and_b32 s{s1}, s{sAi}, 12
        s_add_u32 s{s0}, s{s0}, s{s1}
        s_add_u32 s{s0}, s{s0}, s{sW}
        s_lshl_b32 s{s0}, s{s0}, 11
        s_and_b32 s{s1}, s{sAi}, 3
        s_lshl_b32 s{s1}, s{s1}, 6
        s_add_u32 s{s0}, s{s0}, s{s1}
        s_add_u32 s{s0}, s{s0}, {SL+S_QL}
        v_add_u32 v12, s{s0}, v4
        v_cmp_gt_u32 vcc, 16, v0
        v_cndmask_b32 v26, v9, v12, vcc
        s_waitcnt lgkmcnt(0)
        s_cmp_eq_u32 s76, s{sT0}
        s_cbranch_scc1 L_A_RDYOK
        L_A_RDY:
        """)
        self.timeout()
        e(f's_sleep 8\ns_load_dword s76, s[{pWS}:{pWS+1}], s75 glc\ns_waitcnt lgkmcnt(0)\ns_cmp_eq_u32 s76, s{sT0}\ns_cbranch_scc0 L_A_RDY\nL_A_RDYOK:\ns_waitcnt vmcnt({1+self.o.get("h0lead",3)})')
        h0loads()
        e('s_waitcnt vmcnt(3)')
        self.stamp('A.wuk')
        vU = 112
        for s in range(4):
            for T in range(2): e(f'ds_read_b128 {v(vU+(s*2+T)*4,4)}, v{40+2*s+T} offset:{T*256}')
        e('L_A_H0:')
        e('s_waitcnt vmcnt(0)')
        for i in range(2):
            e(f'v_mfma_f32_16x16x16_bf16 v[80:83], {v(vI+2*i,2)}, {v(64+4*i,2)}, ' + ('0' if i==0 else 'v[80:83]'))
        self.tagcheck(12, [66,70])
        e('s_cbranch_vccz L_A_H0OK')
        self.fb((), (s2_,)); self.late_pubg('v[16:19]', 62)
        h0loads()
        e('s_branch L_A_H0')
        e('L_A_H0OK:')
        self.stamp('A.h0')
        e(f'v_cvt_pk_bf16_f32 v84, v80, v81\nv_cvt_pk_bf16_f32 v85, v82, v83\nds_write_b64 v24, v[84:85] offset:{QV}')
        for s in range(4): e(f'ds_read_b128 {v(88+4*s,4)}, v25 offset:{QV+s*64}')
        for s in range(4):
            e(f's_waitcnt lgkmcnt({3-s})')
            for T in range(2):
                e(f'v_mfma_f32_16x16x32_bf16 {v(104+4*T,4)}, {v(88+4*s,4)}, {v(vU+(s*2+T)*4,4)}, ' + ('0' if s==0 else v(104+4*T,4)))
        e('v_cvt_pk_bf16_f32 v64, v104, v108\nv_min_u32 v64, -2, v64')
        self.pub('v64', 26)
        self.stamp('A.ql')
        self.pubg('v[16:19]', 62)
        e('s_barrier')
        nh = self.o.get('a_help', 0)
        if nh:
            e(f's_lshl_b32 s{s0}, s{sSL}, 17')
            self.mk_srd(rA, pCKV, s0, 16777216)
            e(f'v_lshlrev_b32 v12, 10, v2\nv_lshl_add_u32 v12, v1, 4, v12\ns_lshl_b32 s68, s{sW}, 15\ns_lshl_b32 s69, s{sW}, 12\ns_add_u32 m0, s69, {HELP}')
            for n in range(32-nh, 32):
                c, i = n >> 3, n & 7
                e(f's_add_u32 s{sTMP}, s68, {i*4096+c*256}')
                e(f'buffer_load_dwordx4 v12, {srd(rA)}, s{sTMP} offen nt lds')
        e(f"""
        v_lshrrev_b32 v12, 1, v2
        v_lshl_add_u32 v62, v12, 20, v5
        v_and_b32 v12, 1, v2
        v_lshl_add_u32 v62, v12, 17, v62
        v_xor_b32 v62, s67, v62
        s_lshl_b32 s{sG}, s{sJ}, 3
        s_add_u32 s{sG}, s{sG}, s{sX8}
        s_and_b32 s{sF}, s{sAi}, 3
        s_lshl_b32 s{s2_}, s{sG}, 2
        s_add_u32 s{sF}, s{sF}, s{s2_}
        """)
        sB = 62
        e(f"""
        v_and_b32 v5, 7, v1
        v_lshlrev_b32 v5, 4, v5
        v_and_b32 v6, 1, v2
        v_lshl_add_u32 v6, v6, 3, v5
        v_lshrrev_b32 v12, 3, v0
        v_lshl_add_u32 v14, v12, 11, v5
        v_cmp_eq_u32 vcc, s{sX8}, v12
        v_or_b32 v13, s{sLOC}, v14
        v_cndmask_b32 v46, v14, v13, vcc
        s_cmp_ge_u32 s{sG}, 27
        s_cbranch_scc1 L_A_NOF
        s_lshl_b32 s{s0}, s{sF}, 5
        """)
        self.mk_srd(rA, pW1, s0, 2211840)
        e(f's_mul_i32 s{s0}, s{sF}, 20480')
        self.mk_srd(rB, pW2, s0, 2211840)
        e(f"""
        v_and_b32 v7, 3, v12
        v_lshlrev_b32 v7, 3, v7
        v_lshrrev_b32 v8, 5, v0
        v_lshl_add_u32 v7, v8, 2, v7
        v_bfe_u32 v8, v0, 1, 2
        v_add_u32 v7, v7, v8
        v_mul_u32_u24 v7, 3456, v7
        v_and_b32 v8, 1, v0
        v_lshl_add_u32 v7, v8, 4, v7
        s_mul_i32 s{s0}, s{sW}, 110592
        s_lshl_b32 s{s1}, s{sW}, 10
        """)
        w1f = self.o.get('w1flag', 'nt')
        for k in range(5):
            if k and k <= self.o.get('w1pace', 0): e('s_waitcnt vmcnt(0)')
            e(f's_add_u32 m0, s{s1}, {W1+k*4096}')
            e(f'buffer_load_dwordx4 v7, {srd(rA)}, s{s0} offen {w1f} lds')
            if k < 4: e(f's_add_u32 s{s0}, s{s0}, {4*110592}')
        e(f"""
        s_mul_i32 s{sB}, s{sW}, 3
        s_cmp_eq_u32 s{sW}, 3
        s_cselect_b32 s{sB}, 8, s{sB}
        s_lshl_b32 s{sB}, s{sB}, 7
        v_lshrrev_b32 v8, 1, v2
        v_lshl_add_u32 v8, v8, 7, v6
        s_cmp_lt_u32 s{sW}, 2
        s_cselect_b32 s{s0}, 32, 0
        v_cmp_gt_u32 vcc, s{s0}, v0
        v_cndmask_b32 v13, v9, v6, vcc
        v_cmp_gt_u32 vcc, 8, v1
        v_cndmask_b32 v12, v9, v8, vcc
        v_cndmask_b32 v13, v9, v13, vcc
        buffer_load_dwordx2 v[16:17], v12, {srd(rC)}, s{sB} offen
        buffer_load_dwordx2 v[18:19], v13, {srd(rC)}, s{sB} offen offset:256
        s_lshl_b32 s{s0}, s{sF}, 5
        """)
        self.mk_srd(rC, pB1, s0, 3456)
        e(f'v_lshlrev_b32 v12, 3, v2\nbuffer_load_dwordx2 v[58:59], v12, {srd(rC)}, 0 offen')
        e(f"""
        s_lshl_b32 s{s0}, s{sW}, 9
        s_add_u32 s{s0}, s{s0}, {HB}
        v_add_u32 v48, s{s0}, v8
        v_add_u32 v12, 256, v48
        v_mov_b32 v13, {DUM}
        v_cmp_gt_u32 vcc, 32, v0
        v_cndmask_b32 v49, v13, v12, vcc
        v_add_u32 v50, s{s0}, v11
        s_cmp_lt_u32 s{sW}, 2
        s_cselect_b32 s{s0}, 0, {OOB}
        v_max_u32 v47, s{s0}, v46
        s_add_u32 s79, s{sB}, {H3B}
        v_lshl_add_u32 v12, v1, 6, v11
        s_mul_i32 s{s0}, s{sW}, 320
        s_lshl_b32 s{s2_}, s{sF}, 11
        s_add_u32 s{s2_}, s{s0}, s{s2_}
        s_add_u32 s{s2_}, s{s2_}, {SL+S_H4}
        v_add_u32 v12, s{s2_}, v12
        v_cmp_gt_u32 vcc, 5, v1
        v_cndmask_b32 v51, v9, v12, vcc
        s_lshl_b32 s{s2_}, s{sB}, 4
        s_add_u32 s{s2_}, s{s2_}, {W1}
        v_lshlrev_b32 v52, 3, v0
        v_add_u32 v52, s{s2_}, v52
        v_lshrrev_b32 v12, 2, v0
        v_mul_u32_u24 v12, 1280, v12
        v_and_b32 v13, 3, v1
        v_lshl_add_u32 v12, v13, 4, v12
        s_add_u32 s{s0}, s{s0}, {W2}
        v_add_u32 v53, s{s0}, v12
        s_lshl_b32 s{s0}, s{sW}, 2
        v_lshrrev_b32 v12, 5, v0
        v_lshlrev_b32 v12, 4, v12
        v_add_u32 v12, s{s0}, v12
        v_add_u32 v54, {ST}, v12
        s_lshl_b32 s{s0}, s{sW}, 6
        v_add_u32 v55, {AP}, v11
        v_add_u32 v45, s{s0}, v55
        v_mov_b32 v44, {ST}
        s_branch L_A_FDONE
        L_A_NOF:
        """)
        sK = sF
        e(f"""
        s_sub_u32 s{sK}, s{sX8}, 3
        s_lshl_b32 s{sK}, s{sK}, 1
        s_and_b32 s{s0}, s{sAi}, 1
        s_add_u32 s{sK}, s{sK}, s{s0}
        s_lshl_b32 s{sB}, s{sK}, 7
        """)
        self.mk_srd(rB, pB2, None, 1280)
        e(f"""
        s_cmp_eq_u32 s{sW}, 0
        s_cselect_b32 s{s1}, 32, 0
        v_cmp_gt_u32 vcc, s{s1}, v0
        v_cndmask_b32 v6, v9, v6, vcc
        v_cmp_gt_u32 vcc, 8, v1
        v_cndmask_b32 v6, v9, v6, vcc
        buffer_load_dwordx2 v[16:17], v6, {srd(rC)}, s{sB} offen
        buffer_load_dwordx2 v[18:19], v6, {srd(rB)}, s{sB} offen
        s_mul_i32 s{s0}, s{sW}, 27
        v_add_u32 v15, s{s0}, v12
        """)
        for i in range(4):
            e(f'v_bfe_u32 v10, v15, 2, 3\nv_cmp_eq_u32 vcc, s{sX8}, v10\nv_cndmask_b32 v{48+i}, v14, v13, vcc')
            if i < 3: e('v_add_u32 v15, 8, v15')
            if i > 0: e(f'v_add_u32 v{48+i}, {16384*i}, v{48+i}')
        e(f"""
        v_cmp_gt_u32 vcc, 3, v12
        v_cndmask_b32 v51, v9, v51, vcc
        s_add_u32 s79, s{sB}, {H3B}
        s_lshl_b32 s{s0}, s{s0}, 11
        s_add_u32 s78, s{sB}, s{s0}
        s_add_u32 s78, s78, {SL+S_H4}
        v_lshlrev_b32 v52, 5, v1
        v_lshl_add_u32 v52, v2, 4, v52
        s_lshl_b32 s{s1}, s{sW}, 8
        s_add_u32 s{s1}, s{s1}, {RED}
        v_add_u32 v52, s{s1}, v52
        v_mov_b32 v13, {DUM}
        v_cmp_gt_u32 vcc, 32, v0
        v_cndmask_b32 v52, v13, v52, vcc
        v_cmp_gt_u32 vcc, 8, v1
        v_cndmask_b32 v52, v13, v52, vcc
        v_cmp_gt_u32 vcc, 16, v0
        v_lshlrev_b32 v12, 3, v0
        v_cndmask_b32 v53, v9, v12, vcc
        v_lshlrev_b32 v54, 4, v1
        v_cmp_eq_u32 vcc, 0, v0
        v_cndmask_b32 v55, v9, v0, vcc
        L_A_FDONE:
        """)
        vMk = 36
        self.ident_masks(vMk, 0xffff, 0xffff0000, 0, 4, 12)
        e(f"""
        v_and_b32 v13, 7, v1
        v_lshl_add_u32 v12, v2, 3, v13
        s_lshl_b32 s{s0}, s{sW}, 5
        v_add_u32 v12, s{s0}, v12
        v_lshlrev_b32 v20, 11, v12
        v_lshrrev_b32 v13, 4, v12
        v_cmp_eq_u32 vcc, s{sX8}, v13
        v_or_b32 v12, s{sLOC}, v20
        v_cndmask_b32 v20, v20, v12, vcc
        v_and_b32 v20, s{sLM}, v20
        v_cmp_gt_u32 vcc, 8, v1
        v_cndmask_b32 v20, v9, v20, vcc
        s_mov_b32 s70, 0x00ff00ff
        s_mov_b32 s71, 0x00ff00ff
        s_lshl_b32 s68, s{sJ}, 9
        s_lshl_b32 s{s0}, s{sHd}, 4
        s_add_u32 s68, s68, s{s0}
        s_add_u32 s68, s68, {REC}
        v_lshlrev_b32 v22, 11, v2
        v_lshl_add_u32 v22, v1, 4, v22
        s_lshl_b32 s69, s{sHd}, 2
        s_add_u32 s69, s69, s{sJ}
        s_lshl_b32 s69, s69, 15
        s_lshl_b32 s{s0}, s{sW}, 13
        s_add_u32 s69, s69, s{s0}
        s_add_u32 s69, s69, {PART}
        v_lshlrev_b32 v12, 4, v1
        v_lshl_add_u32 v12, v2, 3, v12
        s_mul_i32 s{s0}, s{sW}, 320
        s_add_u32 s{s0}, s{s0}, {CL}
        v_add_u32 v12, s{s0}, v12
        v_mov_b32 v13, {DUM}
        v_cmp_gt_u32 vcc, 32, v0
        v_cndmask_b32 v23, v13, v12, vcc
        v_and_b32 v12, 3, v1
        v_mul_u32_u24 v12, 320, v12
        v_add_u32 v12, v12, v11
        v_add_u32 v24, {CL}, v12
        s_lshl_b32 s{s0}, s{sSL}, 11
        s_lshl_b32 s{s1}, s{sW}, 6
        s_add_u32 s{s0}, s{s0}, s{s1}
        s_add_u32 s{s0}, s{s0}, {SL+S_HC}
        v_add_u32 v12, s{s0}, v4
        v_cmp_gt_u32 vcc, 16, v0
        v_cndmask_b32 v25, v9, v12, vcc
        s_lshl_b32 s{s0}, s{sW}, 2
        s_add_u32 s{s0}, s{s0}, {ML}
        v_mov_b32 v12, s{s0}
        v_cmp_gt_u32 vcc, 8, v1
        v_cndmask_b32 v21, v13, v12, vcc
        v_mov_b32 v27, {ML}
        v_add_u32 v56, {WUV}, v60
        v_add_u32 v57, {WUV}, v61
        """)
        e(f's_lshl_b32 s{s0}, s{sJ}, 18\ns_lshl_b32 s{s1}, s{sHd}, 8\ns_add_u32 s{s0}, s{s0}, s{s1}')
        self.mk_srd(rA, pWUV, s0, 4194304)
        e(f"""
        s_and_b32 s{s0}, s{sW}, 1
        s_lshl_b32 s{s0}, s{s0}, 8
        s_lshr_b32 s{s1}, s{sW}, 1
        s_add_u32 s{s0}, s{s0}, s{s1}
        s_lshl_b32 s{s0}, s{s0}, 13
        s_lshl_b32 s{s1}, s{sW}, 10
        """)
        npace = self.o.get('a2_pace', 0)
        gate = self.o.get('gate', 0)
        ntr = self.o.get('trickle', 0)
        def gwait():
            e(f's_lshl_b32 s75, s{sSL}, 7\ns_add_u32 s75, s75, {GATE}\nv_mov_b32 v12, 0\ns_mov_b32 s77, 40')
            e(f'L_A_G:\nbuffer_load_dword v13, v12, {srd(rWS)}, s75 offen sc1\ns_waitcnt vmcnt(0)\nv_readfirstlane_b32 s76, v13\ns_cmp_eq_u32 s76, s{sT1}\ns_cbranch_scc1 L_A_GOK\ns_sub_u32 s77, s77, 1\ns_cbranch_scc0 L_A_G\nL_A_GOK:')
            self.stamp('A.gate')
        for k in range(8):
            if k < npace: e('s_waitcnt vmcnt(0)')
            if gate and k == ntr: gwait()
            e(f's_add_u32 m0, s{s1}, {WUV+k*4096}')
            e(f'buffer_load_dwordx4 v62, {srd(rA)}, s{s0} offen nt lds')
            if k < 7: e(f's_add_u32 s{s0}, s{s0}, 16384')
        e(f's_cmp_ge_u32 s{sG}, 27\ns_cbranch_scc1 L_A_NOW2')
        for k in range(5):
            e(f's_add_u32 m0, s{s1}, {W2+k*4096}\ns_add_u32 s{s0}, s{s1}, {k*4096}')
            e(f'buffer_load_dwordx4 v3, {srd(rB)}, s{s0} offen nt lds')
        e('L_A_NOW2:')
        e('s_waitcnt vmcnt(0)\ns_barrier')
        self.stamp('A.land')
        for s in range(4):
            for T in range(2):
                for q in range(2): e(f'ds_read_b64_tr_b16 {a((s*2+T)*4+2*q,2)}, v{56+T} offset:{s*8192+q*1024}')
        e(f'buffer_load_dwordx4 v[64:67], v20, {srd(rWS)}, s68 offen sc1')
        vC0, vC1, vB1, vS1 = 192, 196, 200, 204
        for dst,src in [(vC0,16),(vC1,18)]:
            e(f'v_lshlrev_b32 v{dst}, 16, v{src}\nv_and_b32 v{dst+1}, 0xffff0000, v{src}\nv_lshlrev_b32 v{dst+2}, 16, v{src+1}\nv_and_b32 v{dst+3}, 0xffff0000, v{src+1}')
        e('s_waitcnt lgkmcnt(0)')
        self.stamp('A.w2rdy')
        e('L_A_REC:')
        e('s_waitcnt vmcnt(0)')
        cs = self.o.get('cs', 1)
        if cs: e(f'v_cmp_ne_u32 vcc, s{sT0}, v67')
        else: self.tagcheck(12, [66])
        e('s_and_b64 vcc, vcc, s[70:71]\ns_cbranch_vccz L_A_RECOK')
        e('L_A_RETRY:')
        self.fb((20,), ())
        e(f'buffer_load_dwordx4 v[64:67], v20, {srd(rWS)}, s68 offen sc1\ns_branch L_A_REC\nL_A_RECOK:')
        vD = 128; vAF = 160
        if self.o.get('ddelay'): e(f's_sleep {self.o["ddelay"]}')
        for i in range(8): e(f'buffer_load_dwordx4 {v(vD+4*i,4)}, v22, {srd(rWS)}, s69 offen offset:{i*256} sc1')
        self.stamp('A.rec')
        e('v_mov_b32 v72, v64')
        self.allred('v_max_f32', 72, 74, 3)
        e('v_sub_f32 v64, v64, v72\nv_exp_f32 v64, v64\nv_cvt_pk_bf16_f32 v64, v64, v64\nv_and_b32 v73, 0xffff0000, v64\nv_mul_f32 v73, v73, v65')
        for i in range(8):
            for r in range(4): e(f'v_and_b32_dpp v{vAF+4*i+r}, v64, v{vMk+r} row_newbcast:{i} {DPP}')
        self.allred('v_add_f32', 73, 74, 3)
        e('ds_write2_b32 v21, v72, v73 offset0:0 offset1:4')
        for i in range(8):
            e(f's_waitcnt vmcnt({7-i})')
            e(f'v_mfma_f32_16x16x32_bf16 v[76:79], {v(vAF+4*i,4)}, {v(vD+4*i,4)}, ' + ('0' if i==0 else 'v[76:79]'))
            if cs: e(f'v_add3_u32 v66, v66, v{vD+4*i}, v{vD+4*i+1}\nv_add3_u32 v66, v66, v{vD+4*i+2}, v{vD+4*i+3}')
        self.stamp('A.data')
        if cs:
            for p in ['quad_perm:[1,0,3,2]','quad_perm:[2,3,0,1]']: e(f'v_add_u32_dpp v66, v66, v66 {p} {DPP}')
            e(f'v_cvt_pk_bf16_f32 v74, v76, v77\nv_cvt_pk_bf16_f32 v75, v78, v79\nv_add_u32_dpp v66, v66, v66 row_half_mirror {DPP}\nds_write_b64 v23, v[74:75]')
            e(f'v_add_u32_dpp v66, v66, v66 row_mirror {DPP}\nv_cmp_ne_u32 vcc, 0, v66\ns_cbranch_vccnz L_A_RETRY\ns_waitcnt lgkmcnt(0)\ns_barrier')
        else:
            e('v_cvt_pk_bf16_f32 v74, v76, v77\nv_cvt_pk_bf16_f32 v75, v78, v79\nds_write_b64 v23, v[74:75]\ns_waitcnt lgkmcnt(0)\ns_barrier')
        self.stamp('A.clbar')
        e(f'ds_read_b128 v[80:83], v24\nds_read_b128 v[64:67], v27\nds_read_b128 v[84:87], v24 offset:64\nds_read_b128 v[68:71], v27 offset:16\nds_read_b128 v[88:91], v24 offset:128\nds_read_b128 v[92:95], v24 offset:192')
        fac = [[], ['s_waitcnt lgkmcnt(4)', 'v_max3_f32 v72, v64, v65, v66', 'v_max_f32 v72, v72, v67'], ['v_sub_f32 v64, v64, v72', 'v_sub_f32 v65, v65, v72'], ['v_sub_f32 v66, v66, v72', 'v_sub_f32 v67, v67, v72'],
               ['v_exp_f32 v64, v64'], ['v_exp_f32 v65, v65'], ['v_exp_f32 v66, v66'],
               ['v_exp_f32 v67, v67', 'v_mul_f32 v72, v64, v68', 'v_fmac_f32 v72, v65, v69', 'v_fmac_f32 v72, v66, v70', 'v_fmac_f32 v72, v67, v71', 'v_rcp_f32 v72, v72']]
        for s in range(4):
            e(f's_waitcnt lgkmcnt({[5,3,1,0][s]})')
            for T in range(2):
                e(f'v_mfma_f32_16x16x32_bf16 {v(104+4*T,4)}, {v(80+4*s,4)}, {a((s*2+T)*4,4)}, ' + ('0' if s==0 else v(104+4*T,4)))
                for x in fac[2*s+T]: e(x)
        e('v_pk_mul_f32 v[104:105], v[104:105], v[64:65]\nv_pk_mul_f32 v[108:109], v[108:109], v[64:65]')
        e('v_pk_fma_f32 v[104:105], v[106:107], v[66:67], v[104:105]\nv_pk_fma_f32 v[108:109], v[110:111], v[66:67], v[108:109]')
        e('v_add_f32 v104, v104, v105\nv_add_f32 v108, v108, v109\nv_mul_f32 v104, v104, v72\nv_mul_f32 v108, v108, v72')
        e('v_cvt_pk_bf16_f32 v63, v104, v108\nv_min_u32 v63, -2, v63')
        self.publ('v63', 25); self.pubg('v63', 25)
        self.stamp('A.hc')
        e(f's_cmp_ge_u32 s{sG}, 27\ns_cbranch_scc1 L_FIN')
        for s in range(6):
            for q in range(2): e(f'ds_read_b64_tr_b16 {a(32+s*4+2*q,2)}, v52 offset:{s*1024+q*512}')
        for P in range(5):
            for hb in range(2): e(f'ds_read_b64_tr_b16 {a(56+P*4+2*hb,2)}, v53 offset:{P*64+hb*8}')
        e(f'v_lshlrev_b32 v{vB1}, 16, v58\nv_and_b32 v{vB1+1}, 0xffff0000, v58\nv_lshlrev_b32 v{vB1+2}, 16, v59\nv_and_b32 v{vB1+3}, 0xffff0000, v59')
        e(f's_cmp_lt_u32 s{sW}, 2\ns_cselect_b32 s{s0}, 0x3f803f80, 0')
        for r in range(4): e(f'v_mov_b32 v{208+r}, 0x3f803f80\nv_mov_b32 v{212+r}, s{s0}')
        e('s_waitcnt lgkmcnt(10)')
        for s in range(6):
            e(f'v_mfma_f32_16x16x32_bf16 {v(vS1,4)}, {a(32+s*4,4)}, {v(208 if s < 4 else 212,4)}, ' + ('0' if s == 0 else v(vS1,4)))
        e(f'ds_write_b128 v45, {v(vS1,4)}\ns_waitcnt lgkmcnt(0)\ns_barrier')
        for w in range(4): e(f'ds_read_b128 {v(208+4*w,4)}, v55 offset:{64*w}')
        e('s_waitcnt lgkmcnt(0)')
        for i in range(2): e(f'v_pk_add_f32 {v(208+2*i,2)}, {v(208+2*i,2)}, {v(212+2*i,2)}\nv_pk_add_f32 {v(216+2*i,2)}, {v(216+2*i,2)}, {v(220+2*i,2)}')
        for i in range(2): e(f'v_pk_add_f32 {v(vS1+2*i,2)}, {v(208+2*i,2)}, {v(216+2*i,2)}')
        e('s_barrier')
        self.stamp('F.prep')
        for P in range(5):
            e(f's_mov_b32 s{68+2*P}, {0x00010001<<P}\ns_mov_b32 s{69+2*P}, {0x00010001<<P}')
        self.lmask((46,47))
        if self.o.get('fdelay'): e(f's_sleep {self.o["fdelay"]}')
        vH = 64
        e('L_F_POLL:')
        e(f'buffer_load_dwordx4 {v(vH,4)}, v46, {srd(rWS)}, s79 offen sc1')
        e(f'buffer_load_dwordx4 {v(vH+4,4)}, v46, {srd(rWS)}, s79 offen offset:128 sc1')
        e(f'buffer_load_dwordx4 {v(vH+8,4)}, v47, {srd(rWS)}, s79 offen offset:256 sc1')
        e('s_waitcnt vmcnt(0)')
        e(f'v_mfma_f32_16x16x32_bf16 v[76:79], {v(vI,4)}, {v(vH,4)}, {v(vC0,4)}')
        e(f'v_mfma_f32_16x16x32_bf16 v[76:79], {v(vI+4,4)}, {v(vH+4,4)}, v[76:79]')
        e(f'v_mfma_f32_16x16x32_bf16 v[80:83], {v(vI,4)}, {v(vH+8,4)}, {v(vC1,4)}')
        self.maxchain(12, range(vH, vH+12))
        e('v_cmp_eq_u32 vcc, -1, v12')
        self.retry('L_F_POLL', vregs=(46,47), sleep=self.o.get('fsleep',0))
        self.stamp('F.h3b')
        vB = 128
        for r in range(4): e(f'v_add_f32_dpp v{76+r}, v{76+r}, v{76+r} row_ror:8 {DPP}')
        e('v_cvt_pk_bf16_f32 v84, v76, v77\nv_cvt_pk_bf16_f32 v85, v78, v79\nds_write_b64 v48, v[84:85]')
        for s in range(4): e(f'ds_read_b128 {v(vB+4*s,4)}, v50 offset:{s*64}')
        for r in range(4): e(f'v_add_f32_dpp v{80+r}, v{80+r}, v{80+r} row_ror:8 {DPP}')
        e('v_cvt_pk_bf16_f32 v86, v80, v81\nv_cvt_pk_bf16_f32 v87, v82, v83\nds_write_b64 v49, v[86:87]')
        for s in range(4,6): e(f'ds_read_b128 {v(vB+4*s,4)}, v50 offset:{s*64}')
        e('v_pk_add_f32 v[88:89], v[76:77], v[78:79]\nv_pk_mul_f32 v[92:93], v[76:77], v[76:77]\nv_pk_add_f32 v[90:91], v[80:81], v[82:83]\nv_pk_fma_f32 v[92:93], v[78:79], v[78:79], v[92:93]')
        e('v_pk_add_f32 v[88:89], v[88:89], v[90:91]\nv_pk_fma_f32 v[92:93], v[80:81], v[80:81], v[92:93]\nv_pk_fma_f32 v[92:93], v[82:83], v[82:83], v[92:93]')
        st = [['v_add_f32 v88, v88, v89', 'v_add_f32 v92, v92, v93'], ['s_nop 0', 'v_permlane32_swap_b32 v88, v92', 'v_add_f32 v88, v88, v92'], ['v_mov_b32 v92, v88'],
              ['s_nop 0', 'v_permlane16_swap_b32 v88, v92', 'v_add_f32 v88, v88, v92'], ['s_nop 0', f'v_add_f32_dpp v88, v88, v88 quad_perm:[1,0,3,2] {DPP}'],
              [f'v_add_f32_dpp v88, v88, v88 quad_perm:[2,3,0,1] {DPP}', f'v_add_f32_dpp v88, v88, v88 row_half_mirror {DPP}', 'v_mul_f32 v88, 0x3acccccd, v88', 'ds_write_b32 v54, v88']]
        for s in range(6):
            e(f's_waitcnt lgkmcnt({[6,5,4,3,1,0][s]})')
            e(f'v_mfma_f32_16x16x32_bf16 v[96:99], {a(32+s*4,4)}, {v(vB+4*s,4)}, ' + ('0' if s == 0 else 'v[96:99]'))
            for x in st[s]: e(x)
        e('ds_write_b128 v45, v[96:99]\ns_waitcnt lgkmcnt(0)\ns_barrier')
        self.stamp('F.abar')
        e('ds_read_b128 v[100:103], v44\nds_read_b128 v[104:107], v44 offset:16')
        for w in range(4): e(f'ds_read_b128 {v(128+4*w,4)}, v55 offset:{64*w}')
        e(f"""
        s_waitcnt lgkmcnt(4)
        v_pk_add_f32 v[100:101], v[100:101], v[102:103]
        v_pk_add_f32 v[104:105], v[104:105], v[106:107]
        v_add_f32 v100, v100, v101
        v_add_f32 v104, v104, v105
        v_fma_f32 v104, -v100, v100, v104
        v_max_f32 v104, 0, v104
        v_add_f32 v104, 0x3727c5ac, v104
        v_rsq_f32 v104, v104
        s_waitcnt lgkmcnt(0)
        v_pk_fma_f32 v[128:129], {v(vS1,2)}, v[100:101], v[128:129] op_sel_hi:[1,0,1] neg_lo:[0,1,0] neg_hi:[0,1,0]
        v_pk_fma_f32 v[130:131], {v(vS1+2,2)}, v[100:101], v[130:131] op_sel_hi:[1,0,1] neg_lo:[0,1,0] neg_hi:[0,1,0]
        v_pk_add_f32 v[136:137], v[136:137], v[140:141]
        v_pk_add_f32 v[138:139], v[138:139], v[142:143]
        v_pk_add_f32 v[128:129], v[128:129], v[132:133]
        v_pk_add_f32 v[130:131], v[130:131], v[134:135]
        v_pk_add_f32 v[128:129], v[128:129], v[136:137]
        v_pk_add_f32 v[130:131], v[130:131], v[138:139]
        v_pk_fma_f32 v[128:129], v[128:129], v[104:105], {v(vB1,2)} op_sel_hi:[1,0,1]
        v_pk_fma_f32 v[130:131], v[130:131], v[104:105], {v(vB1+2,2)} op_sel_hi:[1,0,1]
        """)
        for r in range(4): e(f'v_max_f32 v{128+r}, 0, v{128+r}')
        e('v_pk_mul_f32 v[128:129], v[128:129], v[128:129]\nv_pk_mul_f32 v[130:131], v[130:131], v[130:131]')
        e('v_cvt_pk_bf16_f32 v108, v128, v129\nv_cvt_pk_bf16_f32 v109, v130, v131')
        self.stamp('F.f1')
        def cm(P): e(f'v_cndmask_b32 v{110+2*P}, 0, v108, s[{68+2*P}:{69+2*P}]\nv_cndmask_b32 v{111+2*P}, 0, v109, s[{68+2*P}:{69+2*P}]')
        cm(0); cm(1)
        for P in range(5):
            for hb in range(2):
                e(f'v_mfma_f32_16x16x16_bf16 {v(120+4*hb,4)}, {a(56+P*4+2*hb,2)}, {v(110+2*P,2)}, ' + ('0' if P == 0 else v(120+4*hb,4)))
                if hb == 0 and P+2 < 5: cm(P+2)
        for i in range(4): e(f'v_cvt_pk_bf16_f32 v{64+i}, v{120+2*i}, v{121+2*i}')
        for i in range(4): e(f'v_min_u32 v{64+i}, -2, v{64+i}')
        self.pub('v[64:67]', 51)
        self.stamp('F.end')
        e('s_branch L_END')
        e('L_FIN:')
        e(f's_and_b32 s{s0}, s{sAi}, 2\ns_cbranch_scc1 L_END')
        self.mk_srd(rA, pOUT, None, 1280)
        e(f's_cmp_eq_u32 s{sW}, 0\ns_cselect_b32 s{s1}, -1, 0')
        for r in range(4): e(f'v_and_b32 v{32+r}, s{s1}, v{vI+r}')
        e(f'v_pk_add_f32 {v(vC0,2)}, {v(vC0,2)}, {v(vC1,2)}\nv_pk_add_f32 {v(vC0+2,2)}, {v(vC0+2,2)}, {v(vC1+2,2)}\nv_mov_b32 v45, s{sT0}')
        self.lmask((46,))
        e('L_R_P1:')
        e(f'buffer_load_dwordx4 v[64:67], v46, {srd(rWS)}, s79 offen sc1\ns_waitcnt vmcnt(0)')
        self.maxchain(12, range(64,68))
        e('v_cmp_eq_u32 vcc, -1, v12')
        self.retry('L_R_P1', sleep=1, vregs=(46,))
        self.stamp('R.h3b')
        self.lmask((48,49,50,51))
        e(f'v_mfma_f32_16x16x32_bf16 {v(vC0,4)}, v[32:35], v[64:67], {v(vC0,4)}')
        if self.o.get('rdelay'): e(f's_sleep {self.o["rdelay"]}')
        e('L_R_P2:')
        for i in range(4): e(f'buffer_load_dwordx4 {v(68+4*i,4)}, v{48+i}, {srd(rWS)}, s78 offen sc1')
        e('s_waitcnt vmcnt(0)')
        for i in range(4): e(f'v_mfma_f32_16x16x32_bf16 v[104:107], {v(vI,4)}, {v(68+4*i,4)}, ' + (v(vC0,4) if i == 0 else 'v[104:107]'))
        self.maxchain(12, range(68,84))
        e('v_cmp_eq_u32 vcc, -1, v12')
        self.retry('L_R_P2', vregs=(48,49,50,51), sleep=0)
        self.stamp('R.h4')
        for r in range(4): e(f'v_add_f32_dpp v{104+r}, v{104+r}, v{104+r} row_ror:8 {DPP}')
        e(f'ds_write_b128 v52, v[104:107]\ns_waitcnt lgkmcnt(0)\ns_barrier')
        e(f's_cmp_lg_u32 s{sW}, 0\ns_cbranch_scc1 L_END')
        self.red_final(RED, 128, 54, False)
        e(f'buffer_store_dwordx2 v[128:129], v53, {srd(rA)}, s{sB} offen')
        e(f's_cmp_lg_u32 s{sK}, 0\ns_cbranch_scc1 L_END2')
        e(f'buffer_store_dword v45, v55, {srd(rWS)}, 0 offen offset:{EPOCH} sc1')
        if 'amp' in self.o:
            self.stamp('R.end')
            k = self.idx[self.o['amp']]; ke = self.idx['R.end']
            e(f's_waitcnt lgkmcnt(0)\ns_sub_u32 s60, s{sSTAMP+2*k}, s{sSTAMP}\ns_lshl_b32 s60, s60, 2\ns_add_u32 s60, s60, s{sSTAMP+2*ke}')
            e('L_AMP:\ns_memrealtime s[62:63]\ns_waitcnt lgkmcnt(0)\ns_sub_u32 s61, s62, s60\ns_cmp_lt_i32 s61, 0\ns_cbranch_scc1 L_AMP')
        e('L_END2:')
        if 'amp' not in self.o: self.stamp('R.end')
        e('s_branch L_END')

    def role_T(self):
        e = self.e
        MX = QB; LX = QB+512; PB = QB+1024
        WO = 0; HB = 65536
        sT, s0, s1, s2_ = 72, 63, 64, 65
        e('L_T:')
        if self.o.get('noT'): e('s_branch L_END')
        e(f"""
        s_load_dword s{sE}, s[{pWS}:{pWS+1}], {EPOCH}
        s_lshl_b32 s{sT}, s{sX8}, 4
        s_add_u32 s{sT}, s{sT}, s{sR}
        s_lshl_b32 s66, s{sT}, 11
        s_add_u32 s66, s66, {SL}
        s_add_u32 s71, s66, {S_H4}
        s_cmp_eq_u32 s{sW}, 0
        s_cselect_b32 s66, s66, {WSSZ}
        s_add_u32 s70, s66, {LOC}
        v_mov_b32 v16, -1
        v_mov_b32 v17, -1
        v_mov_b32 v18, -1
        v_mov_b32 v19, -1
        v_and_b32 v12, 0x1ff, v3
        v_lshrrev_b32 v13, 5, v0
        v_lshl_add_u32 v12, v13, 20, v12
        buffer_store_dwordx4 v[16:19], v12, {srd(rWS)}, s66 offen sc1
        s_lshl_b32 s{s0}, s{sT}, 9
        s_add_u32 s{s0}, s{s0}, {QP+LOC}
        s_cmp_eq_u32 s{sW}, 1
        s_cselect_b32 s{s0}, s{s0}, {WSSZ}
        v_cmp_gt_u32 vcc, 32, v0
        v_cndmask_b32 v12, v9, v3, vcc
        buffer_load_dwordx4 v[200:203], v12, {srd(rWS)}, s{s0} offen nt
        """)
        if self.o.get('pf', 0) == 1: self.code_prefetch()
        nwq = self.o.get('t_wq', 5)
        e(f's_add_u32 s61, s61, {(10-nwq)*4*32768}\ns_lshl_b32 s62, s{sW}, 13\ns_add_u32 s62, s62, {QB}\ns_mov_b32 m0, s62')
        for k in range(nwq):
            e(f'buffer_load_dwordx4 v8, {srd(rA)}, s61 offen nt lds')
            if k < nwq-1: e(f's_add_u32 s61, s61, {4*32768}')
        e(f's_lshl_b32 s{s0}, s{sT}, 17')
        self.mk_srd(rB, pCKV, s0, 16777216)
        e(f'v_lshl_add_u32 v52, v2, 10, v5\nv_xor_b32 v53, 0x80, v52\ns_lshl_b32 s68, s{sW}, 15\ns_lshl_b32 s69, s{sW}, 13')
        def dma(n):
            c, i = n >> 3, n & 7
            e(f's_add_u32 m0, s69, {c*32768+i*1024}\ns_add_u32 s{sTMP}, s68, {i*4096+c*256}')
            e(f'buffer_load_dwordx4 v{52+(i&1)}, {srd(rB)}, s{sTMP} offen nt lds')
        n0 = self.o.get('n0', 2)
        thr = dict(self.o.get('t_throttle', []))
        for n in range(n0): dma(n)
        e(f's_cmp_lg_u32 s{sW}, 0\ns_cbranch_scc1 L_T_NOCNT\ns_waitcnt vmcnt({1+nwq+n0}) lgkmcnt(0)')
        self.tags()
        self.stamp('T.rst')
        e(f"""
        s_lshl_b32 s79, s{sX8}, 5
        s_add_u32 s79, s79, s{sR}
        s_lshl_b32 s79, s79, 2
        s_add_u32 s79, s79, {RDY}
        s_mov_b32 s78, s{sT0}
        s_atomic_swap s78, s[{pWS}:{pWS+1}], s79
        L_T_NOCNT:
        v_cmp_gt_u32 vcc, 16, v0
        v_cndmask_b32 v12, v9, v3, vcc
        buffer_load_dwordx4 v[204:207], v12, {srd(rWS)}, s70 offen sc1
        """)
        vm = [('d',n) for n in range(n0)] + ['pt']
        vKa, vQa, vVa = 24, 28, 32
        vPS, vRS, vMW, vMR, vPW, vPR, vQC, vLR = 40, 41, 42, 43, 44, 45, 46, 47
        vQS = 120
        pre = []
        pre.append(f'v_and_b32 v12, 7, v1\nv_lshlrev_b32 v12, 5, v12\nv_lshlrev_b32 v13, 10, v1\nv_lshlrev_b32 v14, 8, v1\nv_add_u32 v14, s69, v14\nv_add_u32 v13, {QB}, v13')
        for s3 in range(4):
            pre.append(f'v_add_u32 v15, {s3*64}, v11\nv_xor_b32 v15, v15, v12\nv_add_u32 v{vKa+s3}, v14, v15\nv_add_u32 v{vQa+s3}, v13, v15')
        pre.append(f"""
        v_lshrrev_b32 v13, 2, v0
        v_and_b32 v15, 7, v13
        v_lshlrev_b32 v13, 8, v13
        v_and_b32 v12, 3, v1
        v_lshl_add_u32 v13, v12, 3, v13
        s_lshl_b32 s{s2_}, s{sW}, 1
        v_xor_b32 v15, s{s2_}, v15
        v_lshl_add_u32 v{vVa}, v15, 5, v13
        v_xor_b32 v15, 1, v15
        v_lshl_add_u32 v{vVa+1}, v15, 5, v13
        v_add_u32 v{vVa+2}, 0x10000, v{vVa}
        v_add_u32 v{vVa+3}, 0x10000, v{vVa+1}
        v_lshlrev_b32 v12, 13, v2
        v_lshl_add_u32 v12, v1, 4, v12
        """)
        for i in range(8): pre.append(f'v_xor_b32 v{vQS+i}, {(i<<5) + (i&3)*2048}, v12')
        pre.append(f"""
        v_lshlrev_b32 v12, 6, v0
        v_lshl_add_u32 v12, v1, 2, v12
        v_add_u32 v{vQC}, s62, v12
        s_lshl_b32 s76, s{sW}, 16
        s_add_u32 s76, s76, {SL+S_QL}
        s_add_u32 s77, s76, 32768
        s_lshl_b32 s{s0}, s{sW}, 1
        s_cmp_eq_u32 s{s0}, s{sX8}
        s_cselect_b32 s{s1}, {LOC}, 0
        s_add_u32 s76, s76, s{s1}
        s_add_u32 s{s0}, s{s0}, 1
        s_cmp_eq_u32 s{s0}, s{sX8}
        s_cselect_b32 s{s1}, {LOC}, 0
        s_add_u32 s77, s77, s{s1}
        v_lshlrev_b32 v12, 19, v2
        v_lshl_add_u32 v12, v1, 4, v12
        s_lshl_b32 s{s2_}, s{sT}, 8
        s_add_u32 s{s2_}, s{s2_}, s68
        s_add_u32 s{s2_}, s{s2_}, {PART}
        v_add_u32 v{vPS}, s{s2_}, v12
        s_lshl_b32 s{s2_}, s{sT}, 11
        s_lshl_b32 s{s0}, s{sW}, 9
        s_add_u32 s{s2_}, s{s2_}, s{s0}
        s_add_u32 s{s2_}, s{s2_}, {REC}
        v_and_b32 v13, 1, v1
        v_lshrrev_b32 v12, 2, v0
        v_lshl_add_u32 v12, v13, 4, v12
        v_lshlrev_b32 v12, 4, v12
        v_add_u32 v{vLR}, {MX}, v12
        v_add_u32 v12, s{s2_}, v12
        v_and_b32 v13, 2, v1
        v_cmp_eq_u32 vcc, 0, v13
        v_cndmask_b32 v{vRS}, v9, v12, vcc
        v_lshrrev_b32 v12, 1, v2
        v_lshl_add_u32 v12, v12, 4, v1
        v_lshlrev_b32 v12, 4, v12
        s_lshl_b32 s{s2_}, s{sW}, 2
        s_add_u32 s{s2_}, s{s2_}, {MX}
        v_add_u32 v{vMW}, s{s2_}, v12
        v_lshlrev_b32 v12, 4, v1
        v_add_u32 v{vMR}, {MX}, v12
        v_add_u32 v22, s{s2_}, v12
        v_mov_b32 v38, 0x3e0293ee
        s_lshl_b32 s{s2_}, s{sW}, 11
        s_add_u32 s{s2_}, s{s2_}, {PB}
        v_add_u32 v{vPW}, s{s2_}, v3
        v_add_u32 v{vPR}, {PB}, v3
        s_and_b32 s{s0}, s{sW}, 1
        s_mul_i32 s{s0}, s{s0}, 640
        s_add_u32 s71, s71, s{s0}
        s_lshr_b32 s{s0}, s{sW}, 1
        s_lshl_b32 s{s0}, s{s0}, 20
        s_add_u32 s71, s71, s{s0}
        s_cmp_lt_u32 s{sT}, 116
        s_cselect_b32 s{s0}, 40, 0
        v_cmp_gt_u32 vcc, s{s0}, v0
        v_cndmask_b32 v20, v9, v3, vcc
        v_lshrrev_b32 v12, 3, v0
        v_lshrrev_b32 v13, 1, v12
        v_and_b32 v14, 1, v12
        v_lshl_add_u32 v13, v14, 4, v13
        v_mul_u32_u24 v13, 1280, v13
        v_and_b32 v14, 7, v0
        v_lshlrev_b32 v14, 4, v14
        v_and_b32 v12, 1, v2
        v_lshlrev_b32 v12, 5, v12
        v_xor_b32 v14, v14, v12
        v_add_u32 v36, v13, v14
        v_xor_b32 v14, 64, v14
        v_add_u32 v37, v13, v14
        s_lshl_b32 s73, s{sX8}, 2
        s_add_u32 s73, s73, s{sW}
        s_mul_i32 s73, s73, 163840
        s_lshl_b32 s{s1}, s{sR}, 7
        s_add_u32 s73, s73, s{s1}
        s_lshl_b32 s74, s{sW}, 14
        """)
        def qloads():
            for i in range(8):
                e(f's_add_u32 m0, s62, {i*1024}')
                e(f'buffer_load_dwordx4 v{vQS+i}, {srd(rWS)}, s{76+(i>>2)} offen sc1 lds')
        kdone = set()
        def younger(item): return len(vm) - 1 - vm.index(item)
        def kv(c):
            e(f's_waitcnt vmcnt({younger(("d",8*c+7))})')
            if c == 3: self.stamp('T.ckv')
            if c == 2:
                for s3 in range(4): e(f'v_add_u32 v{vKa+s3}, 0x10000, v{vKa+s3}')
            for s3 in range(4):
                for kt in range(2):
                    e(f'ds_read_b128 {a(((4*c+s3)*2+kt)*4,4)}, v{vKa+s3} offset:{(c&1)*32768+kt*4096}')
            kdone.add(c)
            e('s_barrier')
            for ks in range(4):
                for T2 in range(2):
                    for q in range(2):
                        e(f'ds_read_b64_tr_b16 {a(128+(ks*8+2*c+T2)*4+2*q,2)}, v{vVa+T2+2*(c>>1)} offset:{(c&1)*32768+ks*8192+q*4096}')
        qpos = self.o.get('qpos', 32); npre = self.o.get('npre', 4)
        klag = self.o.get('klag', 12)
        for n in range(n0, 33):
            if n == npre:
                for x in pre: e(x)
            if n == qpos - self.o.get('rdylead', 8):
                e(f's_lshl_b32 s75, s{sW}, 8\ns_add_u32 s75, s75, {RDY}')
                e(f's_load_dwordx8 s[8:15], s[{pWS}:{pWS+1}], s75\ns_load_dwordx4 s[20:23], s[{pWS}:{pWS+1}], s75 offset:32\ns_load_dwordx4 s[48:51], s[{pWS}:{pWS+1}], s75 offset:48')
                e(f's_load_dwordx8 s[24:31], s[{pWS}:{pWS+1}], s75 offset:128\ns_load_dwordx4 s[56:59], s[{pWS}:{pWS+1}], s75 offset:160\ns_load_dwordx2 s[16:17], s[{pWS}:{pWS+1}], s75 offset:176\ns_load_dwordx2 s[32:33], s[{pWS}:{pWS+1}], s75 offset:184')
            if n == qpos:
                e('s_waitcnt lgkmcnt(0)')
                self.tags()
                prs = [12,14,16] + list(range(20,34,2)) + [48,50,56,58]
                e('s_and_b64 s[60:61], s[8:9], s[10:11]\ns_or_b64 s[66:67], s[8:9], s[10:11]')
                for p in prs: e(f's_and_b64 s[60:61], s[60:61], s[{p}:{p+1}]\ns_or_b64 s[66:67], s[66:67], s[{p}:{p+1}]')
                e(f's_and_b32 s60, s60, s61\ns_or_b32 s66, s66, s67\ns_xor_b32 s60, s60, s{sT0}\ns_xor_b32 s66, s66, s{sT0}\ns_or_b32 s60, s60, s66')
                e('s_cbranch_scc0 L_T_RDYOK')
                e('v_and_b32 v12, 1, v2\nv_lshlrev_b32 v12, 7, v12\nv_lshl_add_u32 v12, v1, 2, v12')
                e('L_T_RDY:')
                self.timeout()
                e(f'buffer_load_dword v13, v12, {srd(rWS)}, s75 offen sc1\ns_waitcnt vmcnt(0)\nv_cmp_ne_u32 vcc, s{sT0}, v13\ns_cbranch_vccnz L_T_RDY')
                e('L_T_RDYOK:')
                self.stamp('T.qiss')
                e(f's_lshl_b32 s79, s{sT}, 7\ns_add_u32 s79, s79, {GATE}\ns_cmp_eq_u32 s{sW}, 0\ns_cselect_b32 s79, s79, {OOB}\nv_mov_b32 v39, s79\nv_mov_b32 v21, s{sT1}')
                qloads(); vm += [('q',i) for i in range(8)]
                self.mk_srd(rA, pWO, 73, 5242880)
                e(f's_cmp_lt_u32 s{sR}, 10\ns_cselect_b32 s{rA+2}, s{rA+2}, 0')
            if n < 32:
                dma(n); vm.append(('d',n))
                if n in thr: e(f's_waitcnt vmcnt({thr[n]})')
            for c in range(3):
                if c not in kdone and n >= npre and ('d',8*c+7) in vm and younger(('d',8*c+7)) >= klag and (c == 0 or c-1 in kdone): kv(c)
        self.stamp('T.issued')
        if self.o.get('gate') == 1:
            e(f'buffer_store_dword v21, v39, {srd(rWS)}, 0 offen'); vm.append('gate')
        if self.o.get('tonly'):
            e('s_waitcnt vmcnt(0)'); self.stamp('T.ckv0'); e('s_branch L_END')
        for c in range(4):
            if c not in kdone: kv(c)
        if self.o.get('gate') == 2:
            e(f'buffer_store_dword v21, v39, {srd(rWS)}, 0 offen'); vm.append('gate')
        e('s_branch L_T_Q1')
        e('L_T_Q0:')
        self.fb((), (76, 77)); e(f's_sleep {self.o.get("qsleep",1)}')
        qloads()
        e('L_T_Q1:')
        e(f's_waitcnt vmcnt(0)\nds_read_b32 v12, v{vQC}\nds_read_b32 v13, v{vQC} offset:4096\ns_waitcnt lgkmcnt(0)\nv_max_u32 v12, v12, v13\nv_cmp_eq_u32 vcc, -1, v12\ns_cbranch_vccnz L_T_Q0')
        self.stamp('T.qin')
        if self.o.get('gate') == 3:
            e(f'buffer_store_dword v21, v39, {srd(rWS)}, 0 offen'); vm.append('gate')
        e('s_barrier')
        self.stamp('T.Qbar')
        def wo_ops(i): return [f's_add_u32 m0, s74, {WO+i*1024}', f's_mov_b32 s{sTMP}, {(32*(i>>2)+4*(i&3))*1280}', f'buffer_load_dwordx4 v{36+(i&1)}, {srd(rA)}, s{sTMP} offen nt lds']
        nwe = self.o.get('wo_early', 10)
        vS = 48; vP = 76; vPF = 88; vAcc = 128; vO = 192
        def qreg(s, ht): return 128 + ht*64 + s*4
        def qread(s, ht): return f'ds_read_b128 {v(qreg(s,ht),4)}, v{vQa+(s&3)} offset:{(s>>2)*256+ht*16384}'
        def qk(s, kt, ht):
            d = v(vS+(kt*2+ht)*4,4)
            return f'v_mfma_f32_16x16x32_bf16 {d}, {a((s*2+kt)*4,4)}, {v(qreg(s,ht),4)}, ' + ('0' if s == 0 else d)
        def pv(ks, T, ht):
            d = v(vAcc+(ht*8+T)*4,4)
            return f'v_mfma_f32_16x16x32_bf16 {d}, {v(vPF+(ks*2+ht)*4,4)}, {a(128+(ks*8+T)*4,4)}, ' + ('0' if ks == 0 else d)
        def ver(s, ht): return f'v_max3_u32 v23, v23, v{qreg(s,ht)}, v{qreg(s,ht)+2}'
        def cost(x): return 2 if x.startswith('v_exp') else (0 if x.startswith('s_') else 1)
        def stream(mf, toks, bg):
            skip = 0
            for m in mf:
                e(m)
                b = 2
                if skip: skip -= 1
                else:
                    while toks:
                        t = toks[0]
                        if isinstance(t, tuple): skip = t[1]; toks.pop(0); break
                        if cost(t) > b: break
                        e(t); b -= cost(t); toks.pop(0)
                while bg and cost(bg[0]) <= b:
                    b -= cost(bg[0]); e(bg.pop(0))
            return toks
        def flush(toks):
            for t in toks:
                if not isinstance(t, tuple): e(t)
        D = 4
        for s in range(D): e(qread(s,0))
        e(f'v_mov_b32 v23, 0\nbuffer_store_dwordx4 v[16:19], v20, {srd(rWS)}, s71 offen sc1')
        rd = [(s,0) for s in range(D,16)] + [(s,1) for s in range(16)]
        issued = D
        wo = [wo_ops(i) for i in range(nwe)]
        for s in range(16):
            e(f's_waitcnt lgkmcnt({min(15, issued-1-s)})')
            if s == 15: e('s_barrier')
            for kt in range(2):
                e(qk(s,kt,0))
                if rd: e(qread(*rd.pop(0))); issued += 1
                if kt == 0: e(ver(s,0))
                elif wo: flush(wo.pop(0))
        self.stamp('T.QK0')
        def sm(ht):
            r0 = vS+ht*4; r1 = vS+8+ht*4; m = 64; t = 65; M = 66+ht; rb = 72
            a_ = [f'v_max3_f32 v{m}, v{r0}, v{r0+1}, v{r0+2}', f'v_max3_f32 v{t}, v{r1}, v{r1+1}, v{r1+2}', f'v_max3_f32 v{m}, v{m}, v{r0+3}, v{r1+3}', f'v_max_f32 v{m}, v{m}, v{t}',
                  f'v_mov_b32 v{t}, v{m}', ('gap',0), f'v_permlane32_swap_b32 v{m}, v{t}', f'v_max_f32 v{m}, v{m}, v{t}', f'v_mov_b32 v{t}, v{m}', ('gap',0),
                  f'v_permlane16_swap_b32 v{m}, v{t}', f'v_max_f32 v{m}, v{m}, v{t}', f'ds_write_b32 v22, v{m} offset:{ht*256}']
            b_ = ['s_waitcnt lgkmcnt(0)', 's_barrier', f'ds_read_b128 {v(rb,4)}, v{vMR} offset:{ht*256}']
            c_ = ['s_waitcnt lgkmcnt(0)', f'v_max3_f32 v{M}, v{rb}, v{rb+1}, v{rb+2}', f'v_max_f32 v{M}, v{M}, v{rb+3}', f'v_mul_f32 v{M}, v38, v{M}']
            for b in (r0, r1):
                for r in range(4): c_.append(f'v_fma_f32 v{b+r}, v{b+r}, v38, -v{M}')
            for b in (r0, r1):
                for r in range(4): c_.append(f'v_exp_f32 v{b+r}, v{b+r}')
            for k,b in enumerate((r0, r1)):
                c_ += [f'v_cvt_pk_bf16_f32 v{vP+ht*4+k*2}, v{b}, v{b+1}', f'v_cvt_pk_bf16_f32 v{vP+ht*4+k*2+1}, v{b+2}, v{b+3}']
            c_.append(f'ds_write_b128 v{vPW}, {v(vP+ht*4,4)} offset:{ht*1024}')
            d_ = ['s_waitcnt lgkmcnt(0)', 's_barrier'] + [f'ds_read_b128 {v(vPF+(ks*2+ht)*4,4)}, v{vPR} offset:{(ks*2+ht)*1024}' for ks in range(4)]
            return a_, b_, c_, d_
        g1 = self.o.get('g1', 2); g2 = self.o.get('g2', 2)
        a0,b0,c0,d0 = sm(0); a1_,b1,c1,d1 = sm(1)
        e('s_waitcnt lgkmcnt(0)')
        mf = [qk(s,kt,1) for s in range(16) for kt in range(2)]
        bg = [ver(s,1) for s in range(16)]
        left = stream(mf, [('gap',1)] + a0 + [('gap',g1)] + b0 + [('gap',g2)] + c0, bg)
        flush(left)
        self.stamp('T.QK')
        flush(bg)
        flush(a1_)
        e('v_cmp_eq_u32 vcc, -1, v23')
        flush(d0[:2])
        e('s_cbranch_vccnz L_T_Q0')
        flush(d0[2:] + b1[2:])
        self.stamp('T.Pbar')
        def lsum(ht, dst):
            r0 = vS+ht*4; r1 = vS+8+ht*4
            return [f'v_add_f32 v{r0}, v{r0}, v{r0+1}', f'v_add_f32 v{r0+2}, v{r0+2}, v{r0+3}', f'v_add_f32 v{r1}, v{r1}, v{r1+1}', f'v_add_f32 v{r1+2}, v{r1+2}, v{r1+3}',
                    f'v_add_f32 v{r0}, v{r0}, v{r0+2}', f'v_add_f32 v{r1}, v{r1}, v{r1+2}', f'v_add_f32 v{dst}, v{r0}, v{r1}']
        flush(lsum(0, 70))
        e('s_waitcnt lgkmcnt(4)')
        mf = [pv(ks,T,0) for ks in range(4) for T in range(8)]
        left = stream(mf, [('gap',0)] + c1 + lsum(1, 71) + [('gap',self.o.get('g3',0))] + d1, [])
        flush(left)
        self.stamp('T.pv4')
        def outops(ht):
            ops = []
            for r in range(4):
                o = vO + (ht*4+r)*4
                for k in range(4):
                    ops.append(f'v_cvt_pk_bf16_f32 v{o+k}, v{vAcc+(ht*8+2*k)*4+r}, v{vAcc+(ht*8+2*k+1)*4+r}')
                ops.append(f's_mov_b32 s{sTMP}, {(16*ht+r)*131072}')
                ops.append(f'buffer_store_dwordx4 {v(o,4)}, v{vPS}, {srd(rWS)}, s{sTMP} offen sc1')
            return ops
        e('s_waitcnt lgkmcnt(0)')
        mf = [pv(ks,T,1) for ks in range(4) for T in range(8)]
        cs = self.o.get('cs', 1)
        def csum(ht):
            c = 48 + 4*ht; y = 56 + 2*ht; z = 60 + ht
            ops = []
            for r in range(4):
                o = vO + (ht*4+r)*4
                ops.append([f'v_add3_u32 v{c+r}, v{o}, v{o+1}, v{o+2}', f'v_add_u32 v{c+r}, v{c+r}, v{o+3}'])
            red = [f'v_add_u32_dpp v{y}, v{c}, v{c} row_ror:8 row_mask:0xf bank_mask:0x3', f'v_add_u32_dpp v{y+1}, v{c+1}, v{c+1} row_ror:8 row_mask:0xf bank_mask:0x3',
                   f'v_add_u32_dpp v{y}, v{c+2}, v{c+2} row_ror:8 row_mask:0xf bank_mask:0xc', f'v_add_u32_dpp v{y+1}, v{c+3}, v{c+3} row_ror:8 row_mask:0xf bank_mask:0xc',
                   f'v_add_u32_dpp v{z}, v{y}, v{y} row_shl:4 row_mask:0xf bank_mask:0x5', f'v_add_u32_dpp v{z}, v{y+1}, v{y+1} row_shr:4 row_mask:0xf bank_mask:0xa',
                   f'v_add_u32_dpp v{z}, v{z}, v{z} quad_perm:[1,0,3,2] {DPP}', f'v_add_u32_dpp v{z}, v{z}, v{z} quad_perm:[2,3,0,1] {DPP}']
            return ops, red
        def out_cs(ht):
            if not cs: return outops(ht)
            o = outops(ht); l, red = csum(ht); res = []
            for r in range(4): res += o[6*r:6*r+6] + l[r]
            return res + red
        ltail = ['v_permlane32_swap_b32 v70, v71','v_add_f32 v70, v70, v71','v_mov_b32 v71, v70', f'ds_read_b128 v[76:79], v{vLR}', 'v_permlane16_swap_b32 v70, v71','v_add_f32 v70, v70, v71',
                 f'ds_write_b32 v{vMW}, v70 offset:512', 'v_and_b32 v71, 1, v1']
        recops = ['s_waitcnt lgkmcnt(0)', 's_barrier', f'ds_read_b128 v[72:75], v{vLR} offset:512', 'v_max3_f32 v84, v76, v77, v78', 'v_max_f32 v84, v84, v79', 'v_mul_f32 v84, v38, v84',
                  f'v_mov_b32 v86, s{sT0}', f'v_mov_b32 v87, s{sT0 if cs else sT1}', 'v_cmp_eq_u32 vcc, 1, v71', ('gap',1), 's_waitcnt lgkmcnt(0)', 'v_add_f32 v72, v72, v73', 'v_add_f32 v74, v74, v75', 'v_add_f32 v85, v72, v74']
        left = stream(mf, ltail + out_cs(0) + recops, [])
        flush(left)
        self.stamp('T.pv8')
        flush(out_cs(1))
        if cs: e('v_cndmask_b32 v86, v60, v61, vcc\nv_sub_u32 v86, 0, v86')
        self.stamp('T.PVst')
        rw = self.o.get('recwait', None if cs else 0)
        e(f's_waitcnt vmcnt({nwe+8 if rw is None else rw})')
        self.pub('v[84:87]', vRS)
        self.stamp('T.rec')
        e(f's_cmp_ge_u32 s{sR}, 10\ns_cbranch_scc1 L_END')
        for i in range(nwe, 16): flush(wo_ops(i))
        e(f"""
        v_lshrrev_b32 v12, 2, v1
        v_lshl_add_u32 v12, v2, 3, v12
        v_lshlrev_b32 v12, 7, v12
        v_and_b32 v13, 3, v1
        v_lshl_add_u32 v12, v13, 3, v12
        v_lshrrev_b32 v14, 3, v1
        v_and_b32 v15, 1, v2
        v_lshl_or_b32 v14, v15, 1, v14
        v_xor_b32 v14, s{sW}, v14
        v_lshl_add_u32 v24, v14, 5, v12
        v_mul_u32_u24 v13, 320, v13
        v_add_u32 v13, v13, v11
        v_add_u32 v25, {HB}, v13
        v_mul_u32_u24 v12, 320, v2
        v_lshl_add_u32 v12, v1, 4, v12
        s_mul_i32 s{s0}, s{sW}, 1280
        s_add_u32 s{s0}, s{s0}, {HB}
        v_add_u32 v26, s{s0}, v12
        v_lshlrev_b32 v12, 4, v1
        v_lshl_add_u32 v27, v2, 13, v12
        s_lshl_b32 s75, s{sX8}, 4
        s_add_u32 s75, s75, s{sW}
        s_lshl_b32 s75, s75, 11
        s_add_u32 s75, s75, {SL+S_HC+LOC}
        s_and_b32 s75, s75, s{sLM}
        s_lshl_b32 s{s0}, s{sX8}, 11
        s_lshl_b32 s{s1}, s{sR}, 7
        s_add_u32 s{s0}, s{s0}, s{s1}
        s_lshl_b32 s{s1}, s{sW}, 5
        s_add_u32 s{s0}, s{s0}, s{s1}
        s_add_u32 s{s0}, s{s0}, {H3B}
        v_lshlrev_b32 v12, 1, v0
        v_add_u32 v12, s{s0}, v12
        v_cmp_gt_u32 vcc, 16, v0
        v_cndmask_b32 v28, v9, v12, vcc
        s_waitcnt vmcnt(0)
        s_barrier
        """)
        self.stamp('C.land')
        for st_ in range(16):
            for q in range(2): e(f'ds_read_b64_tr_b16 {a(st_*4+2*q,2)}, v24 offset:{WO+st_*4096+q*512}')
        e('L_C_HC:')
        e(f'buffer_load_dwordx4 v[76:79], v27, {srd(rWS)}, s75 offen sc1')
        e('s_waitcnt vmcnt(0)')
        e('ds_write_b128 v26, v[76:79]')
        self.maxchain(12, range(76,80))
        e('v_cmp_eq_u32 vcc, -1, v12')
        self.retry('L_C_HC', sleep=0, sregs=(75,))
        self.stamp('C.hcin')
        e('s_waitcnt lgkmcnt(0)\ns_barrier')
        self.stamp('C.bar')
        NP = 8
        def ar(st_): return f'ds_read_b128 {v(128+4*st_,4)}, v25 offset:{(st_>>2)*1280+(st_&3)*64}'
        for st_ in range(NP): e(ar(st_))
        for st_ in range(16):
            e(f's_waitcnt lgkmcnt({min(NP-1, 15-st_)})')
            e(f'v_mfma_f32_16x16x32_bf16 v[104:107], {v(128+4*st_,4)}, {a(st_*4,4)}, ' + ('0' if st_ == 0 else 'v[104:107]'))
            if st_+NP < 16: e(ar(st_+NP))
        e('v_pk_add_f32 v[104:105], v[104:105], v[106:107]\nv_add_f32 v104, v104, v105\nv_cvt_pk_bf16_f32 v104, v104, v104\nv_min_u32 v104, -2, v104')
        e(f'buffer_store_short v104, v28, {srd(rWS)}, 0 offen sc1\nbuffer_store_short v104, v28, {srd(rWS)}, s{sLOC} offen')
        self.stamp('C.h3')

    def epilogue(self):
        e = self.e
        e('L_END:')
        if 'amp2' in self.o:
            k = self.idx[self.o['amp2']]
            e(f's_waitcnt lgkmcnt(0)\ns_cmp_eq_u32 s{sSTAMP+2*k}, 0\ns_cbranch_scc1 L_EXIT')
            if 'ampwg' in self.o: e(f's_cmp_lg_u32 s2, {self.o["ampwg"]}\ns_cbranch_scc1 L_EXIT')
            e(f's_sub_u32 s60, s{sSTAMP+2*k}, s{sSTAMP}\ns_lshl_b32 s60, s60, 3\ns_add_u32 s60, s60, s{sSTAMP}')
            e('L_AMP2:\ns_sleep 4\ns_memrealtime s[62:63]\ns_waitcnt lgkmcnt(0)\ns_sub_u32 s61, s62, s60\ns_cmp_lt_i32 s61, 0\ns_cbranch_scc1 L_AMP2')
        if self.stamps and 'amp' not in self.o and 'amp2' not in self.o:
            e(f's_waitcnt lgkmcnt(0)\ns_lshl_b32 s60, s2, 2\ns_add_u32 s60, s60, s{sW}\ns_lshl_b32 s60, s60, 6\ns_add_u32 s60, s60, {STAMP}\nv_mov_b32 v4, 0')
            for k in range(11): e(f'v_mov_b32 v5, s{sSTAMP+2*k}\nbuffer_store_dword v5, v4, {srd(rWS)}, s60 offen offset:{4*k}')
            e(f'v_mov_b32 v5, s{sTO}\nbuffer_store_dword v5, v4, {srd(rWS)}, s60 offen offset:44')
        e('L_EXIT:')

    def build(self):
        if self.stamps:
            for k in range(1,11): self.e(f's_mov_b32 s{sSTAMP+2*k}, 0')
        self.prologue(); self.role_A(); self.role_T(); self.epilogue()
        hdr = open('header.txt').read()
        return f'''{hdr}; @launch grid=(256,1,1) block=(256,1,1) lds=163840
.amdgcn_target "amdgcn-amd-amdhsa--gfx950"
.text
.globl {KN}
.p2align 8
.type {KN},@function
{KN}:
{self.e.text()}
s_endpgm
.section .rodata,"a"
.p2align 6
.amdhsa_kernel {KN}
  .amdhsa_next_free_vgpr 512
  .amdhsa_next_free_sgpr 102
  .amdhsa_accum_offset 256
  .amdhsa_group_segment_fixed_size 0
  .amdhsa_kernarg_size 112
  .amdhsa_user_sgpr_count 2
  .amdhsa_user_sgpr_kernarg_segment_ptr 1
  .amdhsa_system_sgpr_workgroup_id_x 1
.end_amdhsa_kernel
'''

if __name__ == '__main__':
    import json
    out = sys.argv[1]; stamps = len(sys.argv) > 2 and sys.argv[2] == '1'
    opt = json.loads(sys.argv[3]) if len(sys.argv) > 3 else {}
    open(out,'w').write(G(stamps, opt).build())
```

```python
import sys
sys.path.insert(0,'work')
from dsl import Asm
NAME = 'sequential_preLN__compressed_kv_cla__dense_activation_squared_relu__decode'
KN = NAME + '_kernel'

EPOCH=0; RDY=0x1000; GATE=0x2000; QP=0x8000; SL=0x40000; REC=0x80000; LOC=0x100000; PART=0x200000; STAMP=0x600000
S_QL=0; S_HC=256; S_H4=512; H3B = SL + 108*2048 + S_H4
WSSZ=0x700000
OOB=0x7ffffff0
NLOC=96
sLM,sLC,sLOC,sTMP = 3,4,5,6
pX,pCKV,pWQ,pWUK,pWUV,pWO,pBX,pW1,pB1,pW2,pB2,pOUT,pDBG,pWS = [8+2*i for i in range(14)]
sW,sX8,sR,sE,sT0,sT1,sTO,sC = 36,37,38,39,40,41,42,43
rWS=44; rA=48; rB=52; rC=56
sSTAMP=80
def srd(r): return f's[{r}:{r+3}]'
def v(n,c=1): return f'v{n}' if c==1 else f'v[{n}:{n+c-1}]'
def a(n,c=1): return f'a{n}' if c==1 else f'a[{n}:{n+c-1}]'
DPP='row_mask:0xf bank_mask:0xf'
QB = 131072
WQ = 69632; XN = 110592

class G:
    def __init__(self, stamps=False, opt=None):
        self.e = Asm(); self.stamps = stamps; self.o = opt or {}
        self.slots = {'A':['start'],'T':['start'],'R':[]}; self.idx = {}; self.tbase = 1
    def stamp(self, name):
        if not self.stamps: return
        role = name.split('.')[0]
        lst = self.slots['A' if role in 'AFR' else 'T']
        want = self.o.get('want')
        if name == 'start': k = 0
        else:
            if want is not None and name not in want: return
            if role == 'R':
                k = self.tbase + len(self.slots['R']); self.slots['R'].append(name)
            else:
                k = len(lst); lst.append(name)
                if role == 'A': self.tbase = len(lst)
            if k > 10: raise Exception('too many stamps '+name)
        self.idx[name] = k
        op = 's_memtime' if self.o.get('cyc') else 's_memrealtime'
        self.e(f'{op} s[{sSTAMP+2*k}:{sSTAMP+2*k+1}]')
        if name in self.o.get('cut', []): self.e('s_branch L_END')
    def mk_srd(self, r, ptr, off_sgpr, size):
        e = self.e
        if off_sgpr is None:
            e(f's_mov_b32 s{r}, s{ptr}\ns_and_b32 s{r+1}, s{ptr+1}, 0xffff\ns_mov_b32 s{r+2}, {size}')
        else:
            e(f's_add_u32 s{r}, s{ptr}, s{off_sgpr}\ns_addc_u32 s{r+1}, s{ptr+1}, 0\ns_and_b32 s{r+1}, s{r+1}, 0xffff\ns_sub_u32 s{r+2}, {size}, s{off_sgpr}')
        e(f's_mov_b32 s{r+3}, 0x20000')
    def allred(self, op, x, t, steps16=4):
        e = self.e
        pats = ['quad_perm:[1,0,3,2]','quad_perm:[2,3,0,1]','row_half_mirror','row_mirror'][:steps16]
        for p in pats: e(f'{op}_dpp v{x}, v{x}, v{x} {p} {DPP}')
        e(f'v_mov_b32 v{t}, v{x}\nv_permlane16_swap_b32 v{x}, v{t}\n{op} v{x}, v{x}, v{t}')
        e(f'v_mov_b32 v{t}, v{x}\nv_permlane32_swap_b32 v{x}, v{t}\n{op} v{x}, v{x}, v{t}')
    def timeout(self):
        self.e(f's_sub_u32 s{sTO}, s{sTO}, 1\ns_cmp_eq_u32 s{sTO}, 0\ns_cbranch_scc1 L_END')
    def fb(self, vregs=(), sregs=()):
        e = self.e
        self.timeout()
        e(f's_add_u32 s{sLC}, s{sLC}, 1\ns_cmp_ge_u32 s{sLC}, {NLOC}\ns_cselect_b32 s{sLM}, {(~LOC)&0xffffffff}, s{sLM}')
        self.lmask(vregs, sregs)
    def lmask(self, vregs=(), sregs=()):
        for r in vregs: self.e(f'v_and_b32 v{r}, s{sLM}, v{r}')
        for r in sregs: self.e(f's_and_b32 s{r}, s{r}, s{sLM}')
    def stop(self, data):
        if '[' not in data: return 'buffer_store_dword'
        lo, hi = data[2:-1].split(':'); return f'buffer_store_dwordx{int(hi)-int(lo)+1}'
    def publ(self, data, voff): self.e(f'{self.stop(data)} {data}, v{voff}, {srd(rWS)}, s{sLOC} offen')
    def pubg(self, data, voff): self.e(f'{self.stop(data)} {data}, v{voff}, {srd(rWS)}, 0 offen sc1')
    def pub(self, data, voff): self.pubg(data, voff); self.publ(data, voff)
    def late_pubg(self, data, voff):
        e = self.e; l = e.newlabel('Lnp')
        e(f's_cmp_eq_u32 s{sLM}, -1\ns_cbranch_scc1 {l}'); self.pubg(data, voff); e(f'{l}:')
    def retry(self, label, sleep=1, vregs=(), sregs=(), late=None):
        e = self.e
        ok = e.newlabel('Lok')
        e(f's_cbranch_vccz {ok}')
        self.fb(vregs, sregs)
        if late: self.late_pubg(*late)
        if sleep: e(f's_sleep {sleep}')
        e(f's_branch {label}')
        e(f'{ok}:')
    def maxchain(self, dst, regs):
        e = self.e
        regs = list(regs)
        e(f'v_max3_u32 v{dst}, v{regs[0]}, v{regs[1]}, v{regs[2]}'); regs = regs[3:]
        while len(regs) >= 2:
            e(f'v_max3_u32 v{dst}, v{dst}, v{regs[0]}, v{regs[1]}'); regs = regs[2:]
        if regs: e(f'v_max_u32 v{dst}, v{dst}, v{regs[0]}')
    def tagcheck(self, dst, pairs):
        e = self.e; rs = []
        for r in pairs:
            e(f'v_xor_b32 v{r}, s{sT0}, v{r}\nv_xor_b32 v{r+1}, s{sT1}, v{r+1}'); rs += [r, r+1]
        if len(rs) == 2: e(f'v_or_b32 v{dst}, v{rs[0]}, v{rs[1]}')
        else:
            e(f'v_or3_b32 v{dst}, v{rs[0]}, v{rs[1]}, v{rs[2]}'); rs = rs[3:]
            while len(rs) >= 2: e(f'v_or3_b32 v{dst}, v{dst}, v{rs[0]}, v{rs[1]}'); rs = rs[2:]
            if rs: e(f'v_or_b32 v{dst}, v{dst}, v{rs[0]}')
        e(f'v_cmp_ne_u32 vcc, 0, v{dst}')
    def ident_masks(self, dst, val_lo, val_hi, first, n, t):
        e = self.e
        e(f'v_and_b32 v{t}, 1, v1\nv_cmp_eq_u32 vcc, 1, v{t}\nv_mov_b32 v{t}, {val_lo}\nv_mov_b32 v{t+1}, {val_hi}\nv_cndmask_b32 v{t}, v{t}, v{t+1}, vcc')
        e(f'v_lshrrev_b32 v{t+1}, 1, v1')
        for r in range(n):
            e(f'v_cmp_eq_u32 vcc, {first+r}, v{t+1}\nv_cndmask_b32 v{dst+r}, 0, v{t}, vcc')
    def red_final(self, RED, t, va, clamp):
        e = self.e
        for w in range(4): e(f'ds_read_b128 {v(t+4+4*w,4)}, v{va} offset:{RED+256*w}')
        e('s_waitcnt lgkmcnt(2)')
        for i in range(2): e(f'v_pk_add_f32 {v(t+4+2*i,2)}, {v(t+4+2*i,2)}, {v(t+8+2*i,2)}')
        e('s_waitcnt lgkmcnt(0)')
        for i in range(2): e(f'v_pk_add_f32 {v(t+12+2*i,2)}, {v(t+12+2*i,2)}, {v(t+16+2*i,2)}')
        for i in range(2): e(f'v_pk_add_f32 {v(t+4+2*i,2)}, {v(t+4+2*i,2)}, {v(t+12+2*i,2)}')
        for i in range(2): e(f'v_cvt_pk_bf16_f32 v{t+i}, v{t+4+2*i}, v{t+5+2*i}')
        if clamp:
            for i in range(2): e(f'v_min_u32 v{t+i}, -2, v{t+i}')
    def code_prefetch(self):
        e = self.e
        npl = self.o.get('npl', 3)
        e(f's_getpc_b64 s[20:21]\nL_PC:\ns_sub_u32 s20, s20, L_PC-{KN}\ns_subb_u32 s21, s21, 0')
        e(f's_and_b32 s22, s{sR}, 15\ns_lshl_b32 s22, s22, 2\ns_add_u32 s22, s22, s{sW}\ns_lshl_b32 s22, s22, 7')
        for i in range(npl):
            e(f's_min_u32 s23, s22, L_EXIT-{KN}\ns_load_dword s7, s[20:21], s23')
            if i < npl-1: e(f's_add_u32 s22, s22, 8192')
    def kmap(self):
        k = self.o.get('kil', 0)
        if k == 0: return 17, 15, 4096
        if k == 1: return 12, 22, 1 << 19
        if k == 2: return 12, 19, 1 << 21
        if k == 3: return 14, 12, 1 << 21
        if k == 4: return 15, 22, 4096
    def tags(self):
        self.e(f's_add_u32 s{sT0}, s{sE}, 0x9e3779b9\ns_xor_b32 s{sT1}, s{sT0}, 0x5bd1e995')

    def prologue(self):
        e = self.e
        self.stamp('start')
        e(f'''
        s_cmp_ge_u32 s2, 256
        s_cbranch_scc1 L_EXIT
        s_load_dwordx16 s[8:23], s[0:1], 0
        s_load_dwordx4 s[32:35], s[0:1], 96
        s_load_dwordx8 s[24:31], s[0:1], 64
        v_lshrrev_b32 v1, 6, v0
        v_and_b32 v0, 63, v0
        v_readfirstlane_b32 s{sW}, v1
        v_and_b32 v1, 15, v0
        v_lshrrev_b32 v2, 4, v0
        v_lshlrev_b32 v3, 4, v0
        v_lshlrev_b32 v4, 2, v0
        s_and_b32 s{sX8}, s2, 7
        s_lshr_b32 s{sR}, s2, 3
        v_lshlrev_b32 v5, 4, v1
        v_lshlrev_b32 v6, 5, v2
        v_xor_b32 v5, v5, v6
        v_lshl_add_u32 v6, v2, 13, v5
        s_lshr_b32 s67, s{sW}, 1
        s_lshl_b32 s67, s67, 7
        v_xor_b32 v8, s67, v6
        v_mov_b32 v9, {OOB}
        v_lshlrev_b32 v11, 4, v2
        s_bfe_u32 s60, s{sR}, 0x20002
        s_mul_i32 s60, s60, {160*8192}
        s_and_b32 s63, s{sR}, 3
        s_lshl_b32 s64, s{sX8}, 2
        s_add_u32 s63, s63, s64
        s_lshl_b32 s63, s63, 8
        s_add_u32 s60, s60, s63
        s_lshl_b32 s61, s{sW}, 15
        s_lshl_b32 s62, s{sW}, 10
        s_add_u32 s62, s62, {WQ}
        s_mov_b32 s{rA+3}, 0x20000
        s_mov_b32 s{rC+3}, 0x20000
        s_mov_b32 s{rC+2}, 1280
        s_sub_u32 s{rA+2}, 5242880, s60
        s_mov_b32 s{sTO}, 400000
        s_mov_b32 s{sLM}, -1
        s_mov_b32 s{sLC}, 0
        s_mov_b32 s{sLOC}, {LOC}
        s_mov_b32 s{rWS+2}, {WSSZ}
        s_mov_b32 s{rWS+3}, 0x20000
        s_waitcnt lgkmcnt(0)
        s_add_u32 s{rA}, s{pWQ}, s60
        s_addc_u32 s{rA+1}, s{pWQ+1}, 0
        s_and_b32 s{rA+1}, s{rA+1}, 0xffff
        s_mov_b32 s{rC}, s{pX}
        s_and_b32 s{rC+1}, s{pX+1}, 0xffff
        s_mov_b32 s{rWS}, s{pWS}
        s_and_b32 s{rWS+1}, s{pWS+1}, 0xffff
        s_cmp_lt_u32 s{sR}, 16
        s_cbranch_scc1 L_T
        ''')
    def x_issue(self):
        for kk in range(5): self.e(f'buffer_load_dword v{20+kk}, v4, {srd(rC)}, 0 offen offset:{256*kk} {self.o.get("xflag","")}')
    def wq_dma(self, k):
        e = self.e
        e(f's_add_u32 m0, s62, {k*4096}')
        e(f'buffer_load_dwordx4 v8, {srd(rA)}, s61 offen nt lds')
        if k < 9: e(f's_add_u32 s61, s61, {4*32768}')
    def wuk_setup(self, sAi, srdreg):
        e = self.e
        e(f'''
        s_lshl_b32 s63, s{sX8}, 2
        s_add_u32 s64, s63, s{sW}
        s_lshl_b32 s64, s64, 8
        s_lshl_b32 s65, s{sAi}, 18
        s_add_u32 s64, s64, s65
        ''')
        self.mk_srd(srdreg, pWUK, 64, 4194304)
        e(f'v_xor_b32 v7, 0x80, v6\ns_mov_b32 s68, 0\ns_lshl_b32 s69, s{sW}, 13')
    def wuk_dma(self, k, srdreg, base):
        e = self.e
        e(f's_add_u32 m0, s69, {base+k*1024}')
        e(f'buffer_load_dwordx4 v{6 if ((k>>1)&1)==0 else 7}, {srd(srdreg)}, s68 offen nt lds')
        if k < 7: e(f's_add_u32 s68, s68, 32768')
    def a1(self, role, y_x, y_wq, mid):
        e = self.e
        s0, s1 = 63, 64
        e(f'''
        v_lshrrev_b32 v12, 2, v1
        v_lshl_add_u32 v13, v2, 3, v12
        v_lshlrev_b32 v13, 8, v13
        v_and_b32 v14, 3, v1
        v_lshl_add_u32 v13, v14, 3, v13
        v_and_b32 v15, 1, v2
        v_lshl_or_b32 v15, v15, 2, v12
        s_lshl_b32 s{s0}, s{sW}, 1
        v_xor_b32 v15, s{s0}, v15
        v_lshl_add_u32 v60, v15, 5, v13
        v_xor_b32 v15, 1, v15
        v_lshl_add_u32 v61, v15, 5, v13
        v_add_u32 v56, {WQ}, v60
        v_add_u32 v57, {WQ}, v61
        ''')
        e(f'''
        v_lshl_add_u32 v12, v1, 6, v11
        s_and_b32 s{s0}, s{sR}, 3
        s_lshl_b32 s{s1}, s{sX8}, 2
        s_add_u32 s{s0}, s{s0}, s{s1}
        s_lshl_b32 s{s0}, s{s0}, 2
        s_bfe_u32 s{s1}, s{sR}, 0x20002
        s_add_u32 s{s0}, s{s0}, s{s1}
        s_lshl_b32 s{s0}, s{s0}, 9
        s_lshl_b32 s{s1}, s{sW}, 7
        s_add_u32 s{s0}, s{s0}, s{s1}
        s_add_u32 s{s0}, s{s0}, {QP}
        v_add_u32 v12, s{s0}, v12
        v_cmp_gt_u32 vcc, 2, v1
        v_cndmask_b32 v62, v9, v12, vcc
        v_cmp_eq_u32 s[70:71], 1, v1
        s_mul_i32 s{s0}, s{sW}, 1280
        s_add_u32 s{s0}, s{s0}, {XN}
        v_add_u32 v10, s{s0}, v4
        s_bfe_u32 s{s1}, s{sR}, 0x20002
        s_mul_i32 s{s1}, s{s1}, 320
        s_add_u32 s{s0}, s{s0}, s{s1}
        v_add_u32 v12, s{s0}, v11
        s_waitcnt vmcnt({y_x}) lgkmcnt(0)
        ''')
        self.stamp(role+'.x')
        for k in range(5): e(f'v_lshlrev_b32 v{26+2*k}, 16, v{20+k}\nv_and_b32 v{27+2*k}, 0xffff0000, v{20+k}')
        e('v_pk_add_f32 v[36:37], v[26:27], v[28:29]\nv_pk_add_f32 v[38:39], v[30:31], v[32:33]\nv_pk_add_f32 v[36:37], v[36:37], v[34:35]\nv_pk_add_f32 v[36:37], v[36:37], v[38:39]\nv_add_f32 v36, v36, v37')
        self.allred('v_add_f32', 36, 37)
        e('v_mul_f32 v36, 0xbacccccd, v36\nv_mov_b32 v37, v36')
        for k in range(26,36,2): e(f'v_pk_add_f32 {v(k,2)}, {v(k,2)}, v[36:37]')
        e('v_pk_mul_f32 v[36:37], v[26:27], v[26:27]')
        for k in range(28,36,2): e(f'v_pk_fma_f32 v[36:37], {v(k,2)}, {v(k,2)}, v[36:37]')
        e('v_add_f32 v36, v36, v37')
        self.allred('v_add_f32', 36, 37)
        e('v_mul_f32 v36, 0x3acccccd, v36\nv_add_f32 v36, 0x3727c5ac, v36\nv_rsq_f32 v36, v36\nv_mov_b32 v37, v36')
        for k in range(26,36,2): e(f'v_pk_mul_f32 {v(k,2)}, {v(k,2)}, v[36:37]')
        for k in range(5): e(f'v_cvt_pk_bf16_f32 v{20+k}, v{26+2*k}, v{27+2*k}\nds_write_b32 v10, v{20+k} offset:{256*k}')
        e('s_waitcnt lgkmcnt(0)')
        for s in range(5): e(f'ds_read_b128 {v(36+4*s,4)}, v12 offset:{s*64}')
        e(f's_load_dword s{sE}, s[{pWS}:{pWS+1}], {EPOCH}')
        self.stamp(role+'.ln')
        mid()
        e('s_waitcnt lgkmcnt(0)')
        self.tags()
        e(f'v_mov_b32 v18, s{sT0}\nv_mov_b32 v19, s{sT1}')
        e(f's_waitcnt vmcnt({y_wq})\ns_barrier')
        self.stamp(role+'.wq')
        vW = 128
        for s in range(5):
            for T in range(2):
                for q in range(2): e(f'ds_read_b64_tr_b16 {v(vW+(s*2+T)*4+2*q,2)}, v{56+T} offset:{s*8192+q*1024}')
        for s in range(5):
            for T in range(2):
                e(f's_waitcnt lgkmcnt({min(15,18-(s*2+T)*2)})')
                e(f'v_mfma_f32_16x16x32_bf16 {v(84+4*T,4)}, {v(vW+(s*2+T)*4,4)}, {v(36+4*s,4)}, ' + ('0' if s==0 else v(84+4*T,4)))
        for i in range(4): e(f'v_cvt_pk_bf16_f32 v{92+i}, v{84+2*i}, v{85+2*i}')
        e('v_cndmask_b32 v16, v92, v94, s[70:71]\nv_cndmask_b32 v17, v93, v95, s[70:71]')
        self.publ('v[16:19]', 62)
        self.stamp(role+'.qp')


    def role_A(self):
        e = self.e
        QV=0; CL=1024; ML=2304; RED=2560; DUM=3584; WUK=4096; WUV=36864
        W1=69632; W2=W1+20480; HB=4096; AP=HB+2048; ST=AP+256; HELP=135168
        sAi,sHd,sJ,s0,s1,s2_,sSL = 72,73,74,63,64,65,66
        sF,sG = 60,61
        if self.o.get('noA'): e('s_branch L_END')
        order = self.o.get('a_order', 'qqqqqqqqqq|uuuuuuuu')
        cnt = {'q':0,'u':0}
        def issue(ch):
            if ch == 'q': self.wq_dma(cnt['q'])
            else:
                if cnt['u'] == 0: self.wuk_setup(sAi, rB)
                self.wuk_dma(cnt['u'], rB, WUK)
            cnt[ch] += 1
        e(f's_sub_u32 s{sAi}, s{sR}, 16')
        self.x_issue()
        o1, o2 = order.split('|')
        for ch in o1: issue(ch)
        e(f"""
        s_lshl_b32 s63, s{sX8}, 2
        s_and_b32 s{sHd}, s{sAi}, 3
        s_add_u32 s{sHd}, s{sHd}, s63
        s_lshr_b32 s{sJ}, s{sAi}, 2
        s_lshl_b32 s{sSL}, s{sX8}, 4
        s_add_u32 s{sSL}, s{sSL}, s{sAi}
        """)
        def mid():
            for ch in o2: issue(ch)
        full = o1 + o2
        self.a1('A', len(o1), len(full)-1-full.rindex('q'), mid)
        e(f"""
        s_lshl_b32 s75, s{sX8}, 5
        s_and_b32 s{s1}, s{sAi}, 12
        s_add_u32 s75, s75, s{s1}
        s_add_u32 s75, s75, s{sW}
        s_lshl_b32 s75, s75, 2
        s_add_u32 s75, s75, {RDY}
        s_load_dword s76, s[{pWS}:{pWS+1}], s75
        v_lshlrev_b32 v27, 9, v2
        v_lshl_add_u32 v27, v1, 4, v27
        s_lshl_b32 s{s2_}, s{sX8}, 2
        s_add_u32 s{s2_}, s{s2_}, s{sW}
        s_lshl_b32 s{s2_}, s{s2_}, 11
        s_add_u32 s{s2_}, s{s2_}, {QP+LOC}
        v_lshlrev_b32 v12, 9, v1
        s_lshl_b32 s{s0}, s{sW}, 13
        s_add_u32 s{s0}, s{s0}, {WUK}
        v_add_u32 v12, s{s0}, v12
        v_and_b32 v13, 1, v1
        v_and_b32 v14, 4, v1
        v_lshl_or_b32 v13, v13, 1, v14
        v_lshlrev_b32 v13, 5, v13
        """)
        def h0loads():
            for i in range(2): e(f'buffer_load_dwordx4 {v(64+4*i,4)}, v27, {srd(rWS)}, s{s2_} offen offset:{i*256} sc1')
        for s in range(4):
            e(f'v_add_u32 v14, {s*64}, v11\nv_xor_b32 v14, v14, v13\nv_add_u32 v{40+2*s}, v14, v12\nv_xor_b32 v14, 32, v14\nv_add_u32 v{41+2*s}, v14, v12')
        vI = 28
        self.ident_masks(vI, 0x3f80, 0x3f800000, 0, 8, 12)
        e(f"""
        s_lshl_b32 s{s0}, s{sW}, 8
        v_lshlrev_b32 v12, 3, v0
        v_add_u32 v12, s{s0}, v12
        v_mov_b32 v13, {DUM}
        v_cmp_gt_u32 vcc, 32, v0
        v_cndmask_b32 v24, v13, v12, vcc
        v_add_u32 v25, s{s0}, v11
        s_lshl_b32 s{s0}, s{sX8}, 4
        s_and_b32 s{s1}, s{sAi}, 12
        s_add_u32 s{s0}, s{s0}, s{s1}
        s_add_u32 s{s0}, s{s0}, s{sW}
        s_lshl_b32 s{s0}, s{s0}, 11
        s_and_b32 s{s1}, s{sAi}, 3
        s_lshl_b32 s{s1}, s{s1}, 6
        s_add_u32 s{s0}, s{s0}, s{s1}
        s_add_u32 s{s0}, s{s0}, {SL+S_QL}
        v_add_u32 v12, s{s0}, v4
        v_cmp_gt_u32 vcc, 16, v0
        v_cndmask_b32 v26, v9, v12, vcc
        s_waitcnt lgkmcnt(0)
        s_cmp_eq_u32 s76, s{sT0}
        s_cbranch_scc1 L_A_RDYOK
        L_A_RDY:
        """)
        self.timeout()
        e(f's_sleep 8\ns_load_dword s76, s[{pWS}:{pWS+1}], s75 glc\ns_waitcnt lgkmcnt(0)\ns_cmp_eq_u32 s76, s{sT0}\ns_cbranch_scc0 L_A_RDY\nL_A_RDYOK:\ns_waitcnt vmcnt({1+self.o.get("h0lead",3)})')
        h0loads()
        e('s_waitcnt vmcnt(3)')
        self.stamp('A.wuk')
        vU = 112
        for s in range(4):
            for T in range(2): e(f'ds_read_b128 {v(vU+(s*2+T)*4,4)}, v{40+2*s+T} offset:{T*256}')
        e('L_A_H0:')
        e('s_waitcnt vmcnt(0)')
        for i in range(2):
            e(f'v_mfma_f32_16x16x16_bf16 v[80:83], {v(vI+2*i,2)}, {v(64+4*i,2)}, ' + ('0' if i==0 else 'v[80:83]'))
        self.tagcheck(12, [66,70])
        e('s_cbranch_vccz L_A_H0OK')
        self.fb((), (s2_,)); self.late_pubg('v[16:19]', 62)
        h0loads()
        e('s_branch L_A_H0')
        e('L_A_H0OK:')
        self.stamp('A.h0')
        e(f'v_cvt_pk_bf16_f32 v84, v80, v81\nv_cvt_pk_bf16_f32 v85, v82, v83\nds_write_b64 v24, v[84:85] offset:{QV}')
        for s in range(4): e(f'ds_read_b128 {v(88+4*s,4)}, v25 offset:{QV+s*64}')
        for s in range(4):
            e(f's_waitcnt lgkmcnt({3-s})')
            for T in range(2):
                e(f'v_mfma_f32_16x16x32_bf16 {v(104+4*T,4)}, {v(88+4*s,4)}, {v(vU+(s*2+T)*4,4)}, ' + ('0' if s==0 else v(104+4*T,4)))
        e('v_cvt_pk_bf16_f32 v64, v104, v108\nv_min_u32 v64, -2, v64')
        self.pub('v64', 26)
        self.stamp('A.ql')
        self.pubg('v[16:19]', 62)
        e('s_barrier')
        nh = self.o.get('a_help', 0)
        if nh:
            tsh, wsh, istr = self.kmap()
            e(f's_lshl_b32 s{s0}, s{sSL}, {tsh}')
            self.mk_srd(rA, pCKV, s0, 16777216)
            e(f'v_lshlrev_b32 v12, 10, v2\nv_lshl_add_u32 v12, v1, 4, v12\ns_lshl_b32 s68, s{sW}, {wsh}\ns_lshl_b32 s69, s{sW}, 12\ns_add_u32 m0, s69, {HELP}')
            for n in range(32-nh, 32):
                c, i = n >> 3, n & 7
                e(f's_add_u32 s{sTMP}, s68, {i*istr+c*256}')
                e(f'buffer_load_dwordx4 v12, {srd(rA)}, s{sTMP} offen nt lds')
        e(f"""
        v_lshrrev_b32 v12, 1, v2
        v_lshl_add_u32 v62, v12, 20, v5
        v_and_b32 v12, 1, v2
        v_lshl_add_u32 v62, v12, 17, v62
        v_xor_b32 v62, s67, v62
        s_lshl_b32 s{sG}, s{sJ}, 3
        s_add_u32 s{sG}, s{sG}, s{sX8}
        s_and_b32 s{sF}, s{sAi}, 3
        s_lshl_b32 s{s2_}, s{sG}, 2
        s_add_u32 s{sF}, s{sF}, s{s2_}
        """)
        sB = 62
        e(f"""
        v_and_b32 v5, 7, v1
        v_lshlrev_b32 v5, 4, v5
        v_and_b32 v6, 1, v2
        v_lshl_add_u32 v6, v6, 3, v5
        v_lshrrev_b32 v12, 3, v0
        v_lshl_add_u32 v14, v12, 11, v5
        v_cmp_eq_u32 vcc, s{sX8}, v12
        v_or_b32 v13, s{sLOC}, v14
        v_cndmask_b32 v46, v14, v13, vcc
        s_cmp_ge_u32 s{sG}, 27
        s_cbranch_scc1 L_A_NOF
        s_lshl_b32 s{s0}, s{sF}, 5
        """)
        self.mk_srd(rA, pW1, s0, 2211840)
        e(f's_mul_i32 s{s0}, s{sF}, 20480')
        self.mk_srd(rB, pW2, s0, 2211840)
        e(f"""
        v_and_b32 v7, 3, v12
        v_lshlrev_b32 v7, 3, v7
        v_lshrrev_b32 v8, 5, v0
        v_lshl_add_u32 v7, v8, 2, v7
        v_bfe_u32 v8, v0, 1, 2
        v_add_u32 v7, v7, v8
        v_mul_u32_u24 v7, 3456, v7
        v_and_b32 v8, 1, v0
        v_lshl_add_u32 v7, v8, 4, v7
        s_mul_i32 s{s0}, s{sW}, 110592
        s_lshl_b32 s{s1}, s{sW}, 10
        """)
        w1f = self.o.get('w1flag', 'nt')
        for k in range(5):
            if k and k <= self.o.get('w1pace', 0): e('s_waitcnt vmcnt(0)')
            e(f's_add_u32 m0, s{s1}, {W1+k*4096}')
            e(f'buffer_load_dwordx4 v7, {srd(rA)}, s{s0} offen {w1f} lds')
            if k < 4: e(f's_add_u32 s{s0}, s{s0}, {4*110592}')
        e(f"""
        s_mul_i32 s{sB}, s{sW}, 3
        s_cmp_eq_u32 s{sW}, 3
        s_cselect_b32 s{sB}, 8, s{sB}
        s_lshl_b32 s{sB}, s{sB}, 7
        v_lshrrev_b32 v8, 1, v2
        v_lshl_add_u32 v8, v8, 7, v6
        s_cmp_lt_u32 s{sW}, 2
        s_cselect_b32 s{s0}, 32, 0
        v_cmp_gt_u32 vcc, s{s0}, v0
        v_cndmask_b32 v13, v9, v6, vcc
        v_cmp_gt_u32 vcc, 8, v1
        v_cndmask_b32 v12, v9, v8, vcc
        v_cndmask_b32 v13, v9, v13, vcc
        buffer_load_dwordx2 v[16:17], v12, {srd(rC)}, s{sB} offen
        buffer_load_dwordx2 v[18:19], v13, {srd(rC)}, s{sB} offen offset:256
        s_lshl_b32 s{s0}, s{sF}, 5
        """)
        self.mk_srd(rC, pB1, s0, 3456)
        e(f'v_lshlrev_b32 v12, 3, v2\nbuffer_load_dwordx2 v[58:59], v12, {srd(rC)}, 0 offen')
        e(f"""
        s_lshl_b32 s{s0}, s{sW}, 9
        s_add_u32 s{s0}, s{s0}, {HB}
        v_add_u32 v48, s{s0}, v8
        v_add_u32 v12, 256, v48
        v_mov_b32 v13, {DUM}
        v_cmp_gt_u32 vcc, 32, v0
        v_cndmask_b32 v49, v13, v12, vcc
        v_add_u32 v50, s{s0}, v11
        s_cmp_lt_u32 s{sW}, 2
        s_cselect_b32 s{s0}, 0, {OOB}
        v_max_u32 v47, s{s0}, v46
        s_add_u32 s79, s{sB}, {H3B}
        v_lshl_add_u32 v12, v1, 6, v11
        s_mul_i32 s{s0}, s{sW}, 320
        s_lshl_b32 s{s2_}, s{sF}, 11
        s_add_u32 s{s2_}, s{s0}, s{s2_}
        s_add_u32 s{s2_}, s{s2_}, {SL+S_H4}
        v_add_u32 v12, s{s2_}, v12
        v_cmp_gt_u32 vcc, 5, v1
        v_cndmask_b32 v51, v9, v12, vcc
        s_lshl_b32 s{s2_}, s{sB}, 4
        s_add_u32 s{s2_}, s{s2_}, {W1}
        v_lshlrev_b32 v52, 3, v0
        v_add_u32 v52, s{s2_}, v52
        v_lshrrev_b32 v12, 2, v0
        v_mul_u32_u24 v12, 1280, v12
        v_and_b32 v13, 3, v1
        v_lshl_add_u32 v12, v13, 4, v12
        s_add_u32 s{s0}, s{s0}, {W2}
        v_add_u32 v53, s{s0}, v12
        s_lshl_b32 s{s0}, s{sW}, 2
        v_lshrrev_b32 v12, 5, v0
        v_lshlrev_b32 v12, 4, v12
        v_add_u32 v12, s{s0}, v12
        v_add_u32 v54, {ST}, v12
        s_lshl_b32 s{s0}, s{sW}, 6
        v_add_u32 v55, {AP}, v11
        v_add_u32 v45, s{s0}, v55
        v_mov_b32 v44, {ST}
        s_branch L_A_FDONE
        L_A_NOF:
        """)
        sK = sF
        e(f"""
        s_sub_u32 s{sK}, s{sX8}, 3
        s_lshl_b32 s{sK}, s{sK}, 1
        s_and_b32 s{s0}, s{sAi}, 1
        s_add_u32 s{sK}, s{sK}, s{s0}
        s_lshl_b32 s{sB}, s{sK}, 7
        """)
        self.mk_srd(rB, pB2, None, 1280)
        e(f"""
        s_cmp_eq_u32 s{sW}, 0
        s_cselect_b32 s{s1}, 32, 0
        v_cmp_gt_u32 vcc, s{s1}, v0
        v_cndmask_b32 v6, v9, v6, vcc
        v_cmp_gt_u32 vcc, 8, v1
        v_cndmask_b32 v6, v9, v6, vcc
        buffer_load_dwordx2 v[16:17], v6, {srd(rC)}, s{sB} offen
        buffer_load_dwordx2 v[18:19], v6, {srd(rB)}, s{sB} offen
        s_mul_i32 s{s0}, s{sW}, 27
        v_add_u32 v15, s{s0}, v12
        """)
        for i in range(4):
            e(f'v_bfe_u32 v10, v15, 2, 3\nv_cmp_eq_u32 vcc, s{sX8}, v10\nv_cndmask_b32 v{48+i}, v14, v13, vcc')
            if i < 3: e('v_add_u32 v15, 8, v15')
            if i > 0: e(f'v_add_u32 v{48+i}, {16384*i}, v{48+i}')
        e(f"""
        v_cmp_gt_u32 vcc, 3, v12
        v_cndmask_b32 v51, v9, v51, vcc
        s_add_u32 s79, s{sB}, {H3B}
        s_lshl_b32 s{s0}, s{s0}, 11
        s_add_u32 s78, s{sB}, s{s0}
        s_add_u32 s78, s78, {SL+S_H4}
        v_lshlrev_b32 v52, 5, v1
        v_lshl_add_u32 v52, v2, 4, v52
        s_lshl_b32 s{s1}, s{sW}, 8
        s_add_u32 s{s1}, s{s1}, {RED}
        v_add_u32 v52, s{s1}, v52
        v_mov_b32 v13, {DUM}
        v_cmp_gt_u32 vcc, 32, v0
        v_cndmask_b32 v52, v13, v52, vcc
        v_cmp_gt_u32 vcc, 8, v1
        v_cndmask_b32 v52, v13, v52, vcc
        v_cmp_gt_u32 vcc, 16, v0
        v_lshlrev_b32 v12, 3, v0
        v_cndmask_b32 v53, v9, v12, vcc
        v_lshlrev_b32 v54, 4, v1
        v_cmp_eq_u32 vcc, 0, v0
        v_cndmask_b32 v55, v9, v0, vcc
        L_A_FDONE:
        """)
        vMk = 36
        self.ident_masks(vMk, 0xffff, 0xffff0000, 0, 4, 12)
        e(f"""
        v_and_b32 v13, 7, v1
        v_lshl_add_u32 v12, v2, 3, v13
        s_lshl_b32 s{s0}, s{sW}, 5
        v_add_u32 v12, s{s0}, v12
        v_lshlrev_b32 v20, 11, v12
        v_lshrrev_b32 v13, 4, v12
        v_cmp_eq_u32 vcc, s{sX8}, v13
        v_or_b32 v12, s{sLOC}, v20
        v_cndmask_b32 v20, v20, v12, vcc
        v_and_b32 v20, s{sLM}, v20
        v_cmp_gt_u32 vcc, 8, v1
        v_cndmask_b32 v20, v9, v20, vcc
        s_mov_b32 s70, 0x00ff00ff
        s_mov_b32 s71, 0x00ff00ff
        s_lshl_b32 s68, s{sJ}, 9
        s_lshl_b32 s{s0}, s{sHd}, 4
        s_add_u32 s68, s68, s{s0}
        s_add_u32 s68, s68, {REC}
        v_lshlrev_b32 v22, 11, v2
        v_lshl_add_u32 v22, v1, 4, v22
        s_lshl_b32 s69, s{sHd}, 2
        s_add_u32 s69, s69, s{sJ}
        s_lshl_b32 s69, s69, 15
        s_lshl_b32 s{s0}, s{sW}, 13
        s_add_u32 s69, s69, s{s0}
        s_add_u32 s69, s69, {PART}
        v_lshlrev_b32 v12, 4, v1
        v_lshl_add_u32 v12, v2, 3, v12
        s_mul_i32 s{s0}, s{sW}, 320
        s_add_u32 s{s0}, s{s0}, {CL}
        v_add_u32 v12, s{s0}, v12
        v_mov_b32 v13, {DUM}
        v_cmp_gt_u32 vcc, 32, v0
        v_cndmask_b32 v23, v13, v12, vcc
        v_and_b32 v12, 3, v1
        v_mul_u32_u24 v12, 320, v12
        v_add_u32 v12, v12, v11
        v_add_u32 v24, {CL}, v12
        s_lshl_b32 s{s0}, s{sSL}, 11
        s_lshl_b32 s{s1}, s{sW}, 6
        s_add_u32 s{s0}, s{s0}, s{s1}
        s_add_u32 s{s0}, s{s0}, {SL+S_HC}
        v_add_u32 v12, s{s0}, v4
        v_cmp_gt_u32 vcc, 16, v0
        v_cndmask_b32 v25, v9, v12, vcc
        s_lshl_b32 s{s0}, s{sW}, 2
        s_add_u32 s{s0}, s{s0}, {ML}
        v_mov_b32 v12, s{s0}
        v_cmp_gt_u32 vcc, 8, v1
        v_cndmask_b32 v21, v13, v12, vcc
        v_mov_b32 v27, {ML}
        v_add_u32 v56, {WUV}, v60
        v_add_u32 v57, {WUV}, v61
        """)
        e(f's_lshl_b32 s{s0}, s{sJ}, 18\ns_lshl_b32 s{s1}, s{sHd}, 8\ns_add_u32 s{s0}, s{s0}, s{s1}')
        self.mk_srd(rA, pWUV, s0, 4194304)
        e(f"""
        s_and_b32 s{s0}, s{sW}, 1
        s_lshl_b32 s{s0}, s{s0}, 8
        s_lshr_b32 s{s1}, s{sW}, 1
        s_add_u32 s{s0}, s{s0}, s{s1}
        s_lshl_b32 s{s0}, s{s0}, 13
        s_lshl_b32 s{s1}, s{sW}, 10
        """)
        npace = self.o.get('a2_pace', 0)
        gate = self.o.get('gate', 0)
        ntr = self.o.get('trickle', 0)
        def gwait():
            e(f's_lshl_b32 s75, s{sSL}, 7\ns_add_u32 s75, s75, {GATE}\nv_mov_b32 v12, 0\ns_mov_b32 s77, 40')
            e(f'L_A_G:\nbuffer_load_dword v13, v12, {srd(rWS)}, s75 offen sc1\ns_waitcnt vmcnt(0)\nv_readfirstlane_b32 s76, v13\ns_cmp_eq_u32 s76, s{sT1}\ns_cbranch_scc1 L_A_GOK\ns_sub_u32 s77, s77, 1\ns_cbranch_scc0 L_A_G\nL_A_GOK:')
            self.stamp('A.gate')
        for k in range(8):
            if k < npace: e('s_waitcnt vmcnt(0)')
            if gate and k == ntr: gwait()
            e(f's_add_u32 m0, s{s1}, {WUV+k*4096}')
            e(f'buffer_load_dwordx4 v62, {srd(rA)}, s{s0} offen nt lds')
            if k < 7: e(f's_add_u32 s{s0}, s{s0}, 16384')
        e(f's_cmp_ge_u32 s{sG}, 27\ns_cbranch_scc1 L_A_NOW2')
        for k in range(5):
            e(f's_add_u32 m0, s{s1}, {W2+k*4096}\ns_add_u32 s{s0}, s{s1}, {k*4096}')
            e(f'buffer_load_dwordx4 v3, {srd(rB)}, s{s0} offen nt lds')
        e('L_A_NOW2:')
        e('s_waitcnt vmcnt(0)\ns_barrier')
        self.stamp('A.land')
        for s in range(4):
            for T in range(2):
                for q in range(2): e(f'ds_read_b64_tr_b16 {a((s*2+T)*4+2*q,2)}, v{56+T} offset:{s*8192+q*1024}')
        e(f'buffer_load_dwordx4 v[64:67], v20, {srd(rWS)}, s68 offen sc1')
        vC0, vC1, vB1, vS1 = 192, 196, 200, 204
        for dst,src in [(vC0,16),(vC1,18)]:
            e(f'v_lshlrev_b32 v{dst}, 16, v{src}\nv_and_b32 v{dst+1}, 0xffff0000, v{src}\nv_lshlrev_b32 v{dst+2}, 16, v{src+1}\nv_and_b32 v{dst+3}, 0xffff0000, v{src+1}')
        e('s_waitcnt lgkmcnt(0)')
        self.stamp('A.w2rdy')
        e('L_A_REC:')
        e('s_waitcnt vmcnt(0)')
        cs = self.o.get('cs', 1)
        if cs: e(f'v_cmp_ne_u32 vcc, s{sT0}, v67')
        else: self.tagcheck(12, [66])
        e('s_and_b64 vcc, vcc, s[70:71]\ns_cbranch_vccz L_A_RECOK')
        e('L_A_RETRY:')
        self.fb((20,), ())
        e(f'buffer_load_dwordx4 v[64:67], v20, {srd(rWS)}, s68 offen sc1\ns_branch L_A_REC\nL_A_RECOK:')
        vD = 128; vAF = 160
        if self.o.get('ddelay'): e(f's_sleep {self.o["ddelay"]}')
        for i in range(8): e(f'buffer_load_dwordx4 {v(vD+4*i,4)}, v22, {srd(rWS)}, s69 offen offset:{i*256} sc1')
        self.stamp('A.rec')
        e('v_mov_b32 v72, v64')
        self.allred('v_max_f32', 72, 74, 3)
        e('v_sub_f32 v64, v64, v72\nv_exp_f32 v64, v64\nv_cvt_pk_bf16_f32 v64, v64, v64\nv_and_b32 v73, 0xffff0000, v64\nv_mul_f32 v73, v73, v65')
        for i in range(8):
            for r in range(4): e(f'v_and_b32_dpp v{vAF+4*i+r}, v64, v{vMk+r} row_newbcast:{i} {DPP}')
        self.allred('v_add_f32', 73, 74, 3)
        e('ds_write2_b32 v21, v72, v73 offset0:0 offset1:4')
        for i in range(8):
            e(f's_waitcnt vmcnt({7-i})')
            e(f'v_mfma_f32_16x16x32_bf16 v[76:79], {v(vAF+4*i,4)}, {v(vD+4*i,4)}, ' + ('0' if i==0 else 'v[76:79]'))
            if cs: e(f'v_add3_u32 v66, v66, v{vD+4*i}, v{vD+4*i+1}\nv_add3_u32 v66, v66, v{vD+4*i+2}, v{vD+4*i+3}')
        self.stamp('A.data')
        if cs:
            for p in ['quad_perm:[1,0,3,2]','quad_perm:[2,3,0,1]']: e(f'v_add_u32_dpp v66, v66, v66 {p} {DPP}')
            e(f'v_cvt_pk_bf16_f32 v74, v76, v77\nv_cvt_pk_bf16_f32 v75, v78, v79\nv_add_u32_dpp v66, v66, v66 row_half_mirror {DPP}\nds_write_b64 v23, v[74:75]')
            e(f'v_add_u32_dpp v66, v66, v66 row_mirror {DPP}\nv_cmp_ne_u32 vcc, 0, v66\ns_cbranch_vccnz L_A_RETRY\ns_waitcnt lgkmcnt(0)\ns_barrier')
        else:
            e('v_cvt_pk_bf16_f32 v74, v76, v77\nv_cvt_pk_bf16_f32 v75, v78, v79\nds_write_b64 v23, v[74:75]\ns_waitcnt lgkmcnt(0)\ns_barrier')
        self.stamp('A.clbar')
        e(f'ds_read_b128 v[80:83], v24\nds_read_b128 v[64:67], v27\nds_read_b128 v[84:87], v24 offset:64\nds_read_b128 v[68:71], v27 offset:16\nds_read_b128 v[88:91], v24 offset:128\nds_read_b128 v[92:95], v24 offset:192')
        fac = [[], ['s_waitcnt lgkmcnt(4)', 'v_max3_f32 v72, v64, v65, v66', 'v_max_f32 v72, v72, v67'], ['v_sub_f32 v64, v64, v72', 'v_sub_f32 v65, v65, v72'], ['v_sub_f32 v66, v66, v72', 'v_sub_f32 v67, v67, v72'],
               ['v_exp_f32 v64, v64'], ['v_exp_f32 v65, v65'], ['v_exp_f32 v66, v66'],
               ['v_exp_f32 v67, v67', 'v_mul_f32 v72, v64, v68', 'v_fmac_f32 v72, v65, v69', 'v_fmac_f32 v72, v66, v70', 'v_fmac_f32 v72, v67, v71', 'v_rcp_f32 v72, v72']]
        for s in range(4):
            e(f's_waitcnt lgkmcnt({[5,3,1,0][s]})')
            for T in range(2):
                e(f'v_mfma_f32_16x16x32_bf16 {v(104+4*T,4)}, {v(80+4*s,4)}, {a((s*2+T)*4,4)}, ' + ('0' if s==0 else v(104+4*T,4)))
                for x in fac[2*s+T]: e(x)
        e('v_pk_mul_f32 v[104:105], v[104:105], v[64:65]\nv_pk_mul_f32 v[108:109], v[108:109], v[64:65]')
        e('v_pk_fma_f32 v[104:105], v[106:107], v[66:67], v[104:105]\nv_pk_fma_f32 v[108:109], v[110:111], v[66:67], v[108:109]')
        e('v_add_f32 v104, v104, v105\nv_add_f32 v108, v108, v109\nv_mul_f32 v104, v104, v72\nv_mul_f32 v108, v108, v72')
        e('v_cvt_pk_bf16_f32 v63, v104, v108\nv_min_u32 v63, -2, v63')
        self.publ('v63', 25); self.pubg('v63', 25)
        self.stamp('A.hc')
        e(f's_cmp_ge_u32 s{sG}, 27\ns_cbranch_scc1 L_FIN')
        for s in range(6):
            for q in range(2): e(f'ds_read_b64_tr_b16 {a(32+s*4+2*q,2)}, v52 offset:{s*1024+q*512}')
        for P in range(5):
            for hb in range(2): e(f'ds_read_b64_tr_b16 {a(56+P*4+2*hb,2)}, v53 offset:{P*64+hb*8}')
        e(f'v_lshlrev_b32 v{vB1}, 16, v58\nv_and_b32 v{vB1+1}, 0xffff0000, v58\nv_lshlrev_b32 v{vB1+2}, 16, v59\nv_and_b32 v{vB1+3}, 0xffff0000, v59')
        e(f's_cmp_lt_u32 s{sW}, 2\ns_cselect_b32 s{s0}, 0x3f803f80, 0')
        for r in range(4): e(f'v_mov_b32 v{208+r}, 0x3f803f80\nv_mov_b32 v{212+r}, s{s0}')
        e('s_waitcnt lgkmcnt(10)')
        for s in range(6):
            e(f'v_mfma_f32_16x16x32_bf16 {v(vS1,4)}, {a(32+s*4,4)}, {v(208 if s < 4 else 212,4)}, ' + ('0' if s == 0 else v(vS1,4)))
        e(f'ds_write_b128 v45, {v(vS1,4)}\ns_waitcnt lgkmcnt(0)\ns_barrier')
        for w in range(4): e(f'ds_read_b128 {v(208+4*w,4)}, v55 offset:{64*w}')
        e('s_waitcnt lgkmcnt(0)')
        for i in range(2): e(f'v_pk_add_f32 {v(208+2*i,2)}, {v(208+2*i,2)}, {v(212+2*i,2)}\nv_pk_add_f32 {v(216+2*i,2)}, {v(216+2*i,2)}, {v(220+2*i,2)}')
        for i in range(2): e(f'v_pk_add_f32 {v(vS1+2*i,2)}, {v(208+2*i,2)}, {v(216+2*i,2)}')
        e('s_barrier')
        self.stamp('F.prep')
        for P in range(5):
            e(f's_mov_b32 s{68+2*P}, {0x00010001<<P}\ns_mov_b32 s{69+2*P}, {0x00010001<<P}')
        self.lmask((46,47))
        if self.o.get('fdelay'): e(f's_sleep {self.o["fdelay"]}')
        vH = 64
        e('L_F_POLL:')
        e(f'buffer_load_dwordx4 {v(vH,4)}, v46, {srd(rWS)}, s79 offen sc1')
        e(f'buffer_load_dwordx4 {v(vH+4,4)}, v46, {srd(rWS)}, s79 offen offset:128 sc1')
        e(f'buffer_load_dwordx4 {v(vH+8,4)}, v47, {srd(rWS)}, s79 offen offset:256 sc1')
        e('s_waitcnt vmcnt(0)')
        e(f'v_mfma_f32_16x16x32_bf16 v[76:79], {v(vI,4)}, {v(vH,4)}, {v(vC0,4)}')
        e(f'v_mfma_f32_16x16x32_bf16 v[76:79], {v(vI+4,4)}, {v(vH+4,4)}, v[76:79]')
        e(f'v_mfma_f32_16x16x32_bf16 v[80:83], {v(vI,4)}, {v(vH+8,4)}, {v(vC1,4)}')
        self.maxchain(12, range(vH, vH+12))
        e('v_cmp_eq_u32 vcc, -1, v12')
        self.retry('L_F_POLL', vregs=(46,47), sleep=self.o.get('fsleep',0))
        self.stamp('F.h3b')
        vB = 128
        for r in range(4): e(f'v_add_f32_dpp v{76+r}, v{76+r}, v{76+r} row_ror:8 {DPP}')
        e('v_cvt_pk_bf16_f32 v84, v76, v77\nv_cvt_pk_bf16_f32 v85, v78, v79\nds_write_b64 v48, v[84:85]')
        for s in range(4): e(f'ds_read_b128 {v(vB+4*s,4)}, v50 offset:{s*64}')
        for r in range(4): e(f'v_add_f32_dpp v{80+r}, v{80+r}, v{80+r} row_ror:8 {DPP}')
        e('v_cvt_pk_bf16_f32 v86, v80, v81\nv_cvt_pk_bf16_f32 v87, v82, v83\nds_write_b64 v49, v[86:87]')
        for s in range(4,6): e(f'ds_read_b128 {v(vB+4*s,4)}, v50 offset:{s*64}')
        e('v_pk_add_f32 v[88:89], v[76:77], v[78:79]\nv_pk_mul_f32 v[92:93], v[76:77], v[76:77]\nv_pk_add_f32 v[90:91], v[80:81], v[82:83]\nv_pk_fma_f32 v[92:93], v[78:79], v[78:79], v[92:93]')
        e('v_pk_add_f32 v[88:89], v[88:89], v[90:91]\nv_pk_fma_f32 v[92:93], v[80:81], v[80:81], v[92:93]\nv_pk_fma_f32 v[92:93], v[82:83], v[82:83], v[92:93]')
        st = [['v_add_f32 v88, v88, v89', 'v_add_f32 v92, v92, v93'], ['s_nop 0', 'v_permlane32_swap_b32 v88, v92', 'v_add_f32 v88, v88, v92'], ['v_mov_b32 v92, v88'],
              ['s_nop 0', 'v_permlane16_swap_b32 v88, v92', 'v_add_f32 v88, v88, v92'], ['s_nop 0', f'v_add_f32_dpp v88, v88, v88 quad_perm:[1,0,3,2] {DPP}'],
              [f'v_add_f32_dpp v88, v88, v88 quad_perm:[2,3,0,1] {DPP}', f'v_add_f32_dpp v88, v88, v88 row_half_mirror {DPP}', 'v_mul_f32 v88, 0x3acccccd, v88', 'ds_write_b32 v54, v88']]
        for s in range(6):
            e(f's_waitcnt lgkmcnt({[6,5,4,3,1,0][s]})')
            e(f'v_mfma_f32_16x16x32_bf16 v[96:99], {a(32+s*4,4)}, {v(vB+4*s,4)}, ' + ('0' if s == 0 else 'v[96:99]'))
            for x in st[s]: e(x)
        e('ds_write_b128 v45, v[96:99]\ns_waitcnt lgkmcnt(0)\ns_barrier')
        self.stamp('F.abar')
        e('ds_read_b128 v[100:103], v44\nds_read_b128 v[104:107], v44 offset:16')
        for w in range(4): e(f'ds_read_b128 {v(128+4*w,4)}, v55 offset:{64*w}')
        e(f"""
        s_waitcnt lgkmcnt(4)
        v_pk_add_f32 v[100:101], v[100:101], v[102:103]
        v_pk_add_f32 v[104:105], v[104:105], v[106:107]
        v_add_f32 v100, v100, v101
        v_add_f32 v104, v104, v105
        v_fma_f32 v104, -v100, v100, v104
        v_max_f32 v104, 0, v104
        v_add_f32 v104, 0x3727c5ac, v104
        v_rsq_f32 v104, v104
        s_waitcnt lgkmcnt(0)
        v_pk_fma_f32 v[128:129], {v(vS1,2)}, v[100:101], v[128:129] op_sel_hi:[1,0,1] neg_lo:[0,1,0] neg_hi:[0,1,0]
        v_pk_fma_f32 v[130:131], {v(vS1+2,2)}, v[100:101], v[130:131] op_sel_hi:[1,0,1] neg_lo:[0,1,0] neg_hi:[0,1,0]
        v_pk_add_f32 v[136:137], v[136:137], v[140:141]
        v_pk_add_f32 v[138:139], v[138:139], v[142:143]
        v_pk_add_f32 v[128:129], v[128:129], v[132:133]
        v_pk_add_f32 v[130:131], v[130:131], v[134:135]
        v_pk_add_f32 v[128:129], v[128:129], v[136:137]
        v_pk_add_f32 v[130:131], v[130:131], v[138:139]
        v_pk_fma_f32 v[128:129], v[128:129], v[104:105], {v(vB1,2)} op_sel_hi:[1,0,1]
        v_pk_fma_f32 v[130:131], v[130:131], v[104:105], {v(vB1+2,2)} op_sel_hi:[1,0,1]
        """)
        for r in range(4): e(f'v_max_f32 v{128+r}, 0, v{128+r}')
        e('v_pk_mul_f32 v[128:129], v[128:129], v[128:129]\nv_pk_mul_f32 v[130:131], v[130:131], v[130:131]')
        e('v_cvt_pk_bf16_f32 v108, v128, v129\nv_cvt_pk_bf16_f32 v109, v130, v131')
        self.stamp('F.f1')
        def cm(P): e(f'v_cndmask_b32 v{110+2*P}, 0, v108, s[{68+2*P}:{69+2*P}]\nv_cndmask_b32 v{111+2*P}, 0, v109, s[{68+2*P}:{69+2*P}]')
        cm(0); cm(1)
        for P in range(5):
            for hb in range(2):
                e(f'v_mfma_f32_16x16x16_bf16 {v(120+4*hb,4)}, {a(56+P*4+2*hb,2)}, {v(110+2*P,2)}, ' + ('0' if P == 0 else v(120+4*hb,4)))
                if hb == 0 and P+2 < 5: cm(P+2)
        for i in range(4): e(f'v_cvt_pk_bf16_f32 v{64+i}, v{120+2*i}, v{121+2*i}')
        for i in range(4): e(f'v_min_u32 v{64+i}, -2, v{64+i}')
        self.pub('v[64:67]', 51)
        self.stamp('F.end')
        e('s_branch L_END')
        e('L_FIN:')
        e(f's_and_b32 s{s0}, s{sAi}, 2\ns_cbranch_scc1 L_END')
        self.mk_srd(rA, pOUT, None, 1280)
        e(f's_cmp_eq_u32 s{sW}, 0\ns_cselect_b32 s{s1}, -1, 0')
        for r in range(4): e(f'v_and_b32 v{32+r}, s{s1}, v{vI+r}')
        e(f'v_pk_add_f32 {v(vC0,2)}, {v(vC0,2)}, {v(vC1,2)}\nv_pk_add_f32 {v(vC0+2,2)}, {v(vC0+2,2)}, {v(vC1+2,2)}\nv_mov_b32 v45, s{sT0}')
        self.lmask((46,))
        e('L_R_P1:')
        e(f'buffer_load_dwordx4 v[64:67], v46, {srd(rWS)}, s79 offen sc1\ns_waitcnt vmcnt(0)')
        self.maxchain(12, range(64,68))
        e('v_cmp_eq_u32 vcc, -1, v12')
        self.retry('L_R_P1', sleep=1, vregs=(46,))
        self.stamp('R.h3b')
        self.lmask((48,49,50,51))
        e(f'v_mfma_f32_16x16x32_bf16 {v(vC0,4)}, v[32:35], v[64:67], {v(vC0,4)}')
        if self.o.get('rdelay'): e(f's_sleep {self.o["rdelay"]}')
        e('L_R_P2:')
        for i in range(4): e(f'buffer_load_dwordx4 {v(68+4*i,4)}, v{48+i}, {srd(rWS)}, s78 offen sc1')
        e('s_waitcnt vmcnt(0)')
        for i in range(4): e(f'v_mfma_f32_16x16x32_bf16 v[104:107], {v(vI,4)}, {v(68+4*i,4)}, ' + (v(vC0,4) if i == 0 else 'v[104:107]'))
        self.maxchain(12, range(68,84))
        e('v_cmp_eq_u32 vcc, -1, v12')
        self.retry('L_R_P2', vregs=(48,49,50,51), sleep=0)
        self.stamp('R.h4')
        for r in range(4): e(f'v_add_f32_dpp v{104+r}, v{104+r}, v{104+r} row_ror:8 {DPP}')
        e(f'ds_write_b128 v52, v[104:107]\ns_waitcnt lgkmcnt(0)\ns_barrier')
        e(f's_cmp_lg_u32 s{sW}, 0\ns_cbranch_scc1 L_END')
        self.red_final(RED, 128, 54, False)
        e(f'buffer_store_dwordx2 v[128:129], v53, {srd(rA)}, s{sB} offen')
        e(f's_cmp_lg_u32 s{sK}, 0\ns_cbranch_scc1 L_END2')
        e(f'buffer_store_dword v45, v55, {srd(rWS)}, 0 offen offset:{EPOCH} sc1')
        if 'amp' in self.o:
            self.stamp('R.end')
            k = self.idx[self.o['amp']]; ke = self.idx['R.end']
            e(f's_waitcnt lgkmcnt(0)\ns_sub_u32 s60, s{sSTAMP+2*k}, s{sSTAMP}\ns_lshl_b32 s60, s60, 2\ns_add_u32 s60, s60, s{sSTAMP+2*ke}')
            e('L_AMP:\ns_memrealtime s[62:63]\ns_waitcnt lgkmcnt(0)\ns_sub_u32 s61, s62, s60\ns_cmp_lt_i32 s61, 0\ns_cbranch_scc1 L_AMP')
        e('L_END2:')
        if 'amp' not in self.o: self.stamp('R.end')
        e('s_branch L_END')

    def role_T(self):
        e = self.e
        MX = QB; LX = QB+512; PB = QB+1024
        WO = 0; HB = 65536
        sT, s0, s1, s2_ = 72, 63, 64, 65
        e('L_T:')
        if self.o.get('noT'): e('s_branch L_END')
        e(f"""
        s_load_dword s{sE}, s[{pWS}:{pWS+1}], {EPOCH}
        s_lshl_b32 s{sT}, s{sX8}, 4
        s_add_u32 s{sT}, s{sT}, s{sR}
        s_lshl_b32 s66, s{sT}, 11
        s_add_u32 s66, s66, {SL}
        s_add_u32 s71, s66, {S_H4}
        s_cmp_eq_u32 s{sW}, 0
        s_cselect_b32 s66, s66, {WSSZ}
        s_add_u32 s70, s66, {LOC}
        v_mov_b32 v16, -1
        v_mov_b32 v17, -1
        v_mov_b32 v18, -1
        v_mov_b32 v19, -1
        v_and_b32 v12, 0x1ff, v3
        v_lshrrev_b32 v13, 5, v0
        v_lshl_add_u32 v12, v13, 20, v12
        buffer_store_dwordx4 v[16:19], v12, {srd(rWS)}, s66 offen sc1
        s_lshl_b32 s{s0}, s{sT}, 9
        s_add_u32 s{s0}, s{s0}, {QP+LOC}
        s_cmp_eq_u32 s{sW}, 1
        s_cselect_b32 s{s0}, s{s0}, {WSSZ}
        v_cmp_gt_u32 vcc, 32, v0
        v_cndmask_b32 v12, v9, v3, vcc
        buffer_load_dwordx4 v[200:203], v12, {srd(rWS)}, s{s0} offen nt
        """)
        if self.o.get('pf', 0) == 1: self.code_prefetch()
        nwq = self.o.get('t_wq', 5)
        e(f's_add_u32 s61, s61, {(10-nwq)*4*32768}\ns_lshl_b32 s62, s{sW}, 13\ns_add_u32 s62, s62, {QB}\ns_mov_b32 m0, s62')
        for k in range(nwq):
            e(f'buffer_load_dwordx4 v8, {srd(rA)}, s61 offen nt lds')
            if k < nwq-1: e(f's_add_u32 s61, s61, {4*32768}')
        tsh, wsh, istr = self.kmap()
        e(f's_lshl_b32 s{s0}, s{sT}, {tsh}')
        self.mk_srd(rB, pCKV, s0, 16777216)
        e(f'v_lshl_add_u32 v52, v2, 10, v5\nv_xor_b32 v53, 0x80, v52\ns_lshl_b32 s68, s{sW}, {wsh}\ns_lshl_b32 s69, s{sW}, 13')
        def dma(n):
            c, i = n >> 3, n & 7
            e(f's_add_u32 m0, s69, {c*32768+i*1024}\ns_add_u32 s{sTMP}, s68, {i*istr+c*256}')
            e(f'buffer_load_dwordx4 v{52+(i&1)}, {srd(rB)}, s{sTMP} offen nt lds')
        n0 = self.o.get('n0', 2)
        thr = dict(self.o.get('t_throttle', []))
        for n in range(n0): dma(n)
        e(f's_cmp_lg_u32 s{sW}, 0\ns_cbranch_scc1 L_T_NOCNT\ns_waitcnt vmcnt({1+nwq+n0}) lgkmcnt(0)')
        self.tags()
        self.stamp('T.rst')
        e(f"""
        s_lshl_b32 s79, s{sX8}, 5
        s_add_u32 s79, s79, s{sR}
        s_lshl_b32 s79, s79, 2
        s_add_u32 s79, s79, {RDY}
        s_mov_b32 s78, s{sT0}
        s_atomic_swap s78, s[{pWS}:{pWS+1}], s79
        L_T_NOCNT:
        v_cmp_gt_u32 vcc, 16, v0
        v_cndmask_b32 v12, v9, v3, vcc
        buffer_load_dwordx4 v[204:207], v12, {srd(rWS)}, s70 offen sc1
        """)
        vm = [('d',n) for n in range(n0)] + ['pt']
        vKa, vQa, vVa = 24, 28, 32
        vPS, vRS, vMW, vMR, vPW, vPR, vQC, vLR = 40, 41, 42, 43, 44, 45, 46, 47
        vQS = 120
        pre = []
        pre.append(f'v_and_b32 v12, 7, v1\nv_lshlrev_b32 v12, 5, v12\nv_lshlrev_b32 v13, 10, v1\nv_lshlrev_b32 v14, 8, v1\nv_add_u32 v14, s69, v14\nv_add_u32 v13, {QB}, v13')
        for s3 in range(4):
            pre.append(f'v_add_u32 v15, {s3*64}, v11\nv_xor_b32 v15, v15, v12\nv_add_u32 v{vKa+s3}, v14, v15\nv_add_u32 v{vQa+s3}, v13, v15')
        pre.append(f"""
        v_lshrrev_b32 v13, 2, v0
        v_and_b32 v15, 7, v13
        v_lshlrev_b32 v13, 8, v13
        v_and_b32 v12, 3, v1
        v_lshl_add_u32 v13, v12, 3, v13
        s_lshl_b32 s{s2_}, s{sW}, 1
        v_xor_b32 v15, s{s2_}, v15
        v_lshl_add_u32 v{vVa}, v15, 5, v13
        v_xor_b32 v15, 1, v15
        v_lshl_add_u32 v{vVa+1}, v15, 5, v13
        v_add_u32 v{vVa+2}, 0x10000, v{vVa}
        v_add_u32 v{vVa+3}, 0x10000, v{vVa+1}
        v_lshlrev_b32 v12, 13, v2
        v_lshl_add_u32 v12, v1, 4, v12
        """)
        for i in range(8): pre.append(f'v_xor_b32 v{vQS+i}, {(i<<5) + (i&3)*2048}, v12')
        pre.append(f"""
        v_lshlrev_b32 v12, 6, v0
        v_lshl_add_u32 v12, v1, 2, v12
        v_add_u32 v{vQC}, s62, v12
        s_lshl_b32 s76, s{sW}, 16
        s_add_u32 s76, s76, {SL+S_QL}
        s_add_u32 s77, s76, 32768
        s_lshl_b32 s{s0}, s{sW}, 1
        s_cmp_eq_u32 s{s0}, s{sX8}
        s_cselect_b32 s{s1}, {LOC}, 0
        s_add_u32 s76, s76, s{s1}
        s_add_u32 s{s0}, s{s0}, 1
        s_cmp_eq_u32 s{s0}, s{sX8}
        s_cselect_b32 s{s1}, {LOC}, 0
        s_add_u32 s77, s77, s{s1}
        v_lshlrev_b32 v12, 19, v2
        v_lshl_add_u32 v12, v1, 4, v12
        s_lshl_b32 s{s2_}, s{sT}, 8
        s_lshl_b32 s{s0}, s{sW}, 15
        s_add_u32 s{s2_}, s{s2_}, s{s0}
        s_add_u32 s{s2_}, s{s2_}, {PART}
        v_add_u32 v{vPS}, s{s2_}, v12
        s_lshl_b32 s{s2_}, s{sT}, 11
        s_lshl_b32 s{s0}, s{sW}, 9
        s_add_u32 s{s2_}, s{s2_}, s{s0}
        s_add_u32 s{s2_}, s{s2_}, {REC}
        v_and_b32 v13, 1, v1
        v_lshrrev_b32 v12, 2, v0
        v_lshl_add_u32 v12, v13, 4, v12
        v_lshlrev_b32 v12, 4, v12
        v_add_u32 v{vLR}, {MX}, v12
        v_add_u32 v12, s{s2_}, v12
        v_and_b32 v13, 2, v1
        v_cmp_eq_u32 vcc, 0, v13
        v_cndmask_b32 v{vRS}, v9, v12, vcc
        v_lshrrev_b32 v12, 1, v2
        v_lshl_add_u32 v12, v12, 4, v1
        v_lshlrev_b32 v12, 4, v12
        s_lshl_b32 s{s2_}, s{sW}, 2
        s_add_u32 s{s2_}, s{s2_}, {MX}
        v_add_u32 v{vMW}, s{s2_}, v12
        v_lshlrev_b32 v12, 4, v1
        v_add_u32 v{vMR}, {MX}, v12
        v_add_u32 v22, s{s2_}, v12
        v_mov_b32 v38, 0x3e0293ee
        s_lshl_b32 s{s2_}, s{sW}, 11
        s_add_u32 s{s2_}, s{s2_}, {PB}
        v_add_u32 v{vPW}, s{s2_}, v3
        v_add_u32 v{vPR}, {PB}, v3
        s_and_b32 s{s0}, s{sW}, 1
        s_mul_i32 s{s0}, s{s0}, 640
        s_add_u32 s71, s71, s{s0}
        s_lshr_b32 s{s0}, s{sW}, 1
        s_lshl_b32 s{s0}, s{s0}, 20
        s_add_u32 s71, s71, s{s0}
        s_cmp_lt_u32 s{sT}, 116
        s_cselect_b32 s{s0}, 40, 0
        v_cmp_gt_u32 vcc, s{s0}, v0
        v_cndmask_b32 v20, v9, v3, vcc
        v_lshrrev_b32 v12, 3, v0
        v_lshrrev_b32 v13, 1, v12
        v_and_b32 v14, 1, v12
        v_lshl_add_u32 v13, v14, 4, v13
        v_mul_u32_u24 v13, 1280, v13
        v_and_b32 v14, 7, v0
        v_lshlrev_b32 v14, 4, v14
        v_and_b32 v12, 1, v2
        v_lshlrev_b32 v12, 5, v12
        v_xor_b32 v14, v14, v12
        v_add_u32 v36, v13, v14
        v_xor_b32 v14, 64, v14
        v_add_u32 v37, v13, v14
        s_lshl_b32 s73, s{sX8}, 2
        s_add_u32 s73, s73, s{sW}
        s_mul_i32 s73, s73, 163840
        s_lshl_b32 s{s1}, s{sR}, 7
        s_add_u32 s73, s73, s{s1}
        s_lshl_b32 s74, s{sW}, 14
        """)
        def qloads():
            for i in range(8):
                e(f's_add_u32 m0, s62, {i*1024}')
                e(f'buffer_load_dwordx4 v{vQS+i}, {srd(rWS)}, s{76+(i>>2)} offen sc1 lds')
        kdone = set()
        def younger(item): return len(vm) - 1 - vm.index(item)
        def kv(c):
            e(f's_waitcnt vmcnt({younger(("d",8*c+7))})')
            if c == 3: self.stamp('T.ckv')
            if c == 2:
                for s3 in range(4): e(f'v_add_u32 v{vKa+s3}, 0x10000, v{vKa+s3}')
            for s3 in range(4):
                for kt in range(2):
                    e(f'ds_read_b128 {a(((4*c+s3)*2+kt)*4,4)}, v{vKa+s3} offset:{(c&1)*32768+kt*4096}')
            kdone.add(c)
            e('s_barrier')
            for ks in range(4):
                for T2 in range(2):
                    for q in range(2):
                        e(f'ds_read_b64_tr_b16 {a(128+(ks*8+2*c+T2)*4+2*q,2)}, v{vVa+T2+2*(c>>1)} offset:{(c&1)*32768+ks*8192+q*4096}')
        qpos = self.o.get('qpos', 32); npre = self.o.get('npre', 4)
        klag = self.o.get('klag', 12)
        for n in range(n0, 33):
            if n == npre:
                for x in pre: e(x)
            if n == qpos - self.o.get('rdylead', 8):
                e(f's_lshl_b32 s75, s{sW}, 8\ns_add_u32 s75, s75, {RDY}')
                e(f's_load_dwordx8 s[8:15], s[{pWS}:{pWS+1}], s75\ns_load_dwordx4 s[20:23], s[{pWS}:{pWS+1}], s75 offset:32\ns_load_dwordx4 s[48:51], s[{pWS}:{pWS+1}], s75 offset:48')
                e(f's_load_dwordx8 s[24:31], s[{pWS}:{pWS+1}], s75 offset:128\ns_load_dwordx4 s[56:59], s[{pWS}:{pWS+1}], s75 offset:160\ns_load_dwordx2 s[16:17], s[{pWS}:{pWS+1}], s75 offset:176\ns_load_dwordx2 s[32:33], s[{pWS}:{pWS+1}], s75 offset:184')
            if n == qpos:
                e('s_waitcnt lgkmcnt(0)')
                self.tags()
                prs = [12,14,16] + list(range(20,34,2)) + [48,50,56,58]
                e('s_and_b64 s[60:61], s[8:9], s[10:11]\ns_or_b64 s[66:67], s[8:9], s[10:11]')
                for p in prs: e(f's_and_b64 s[60:61], s[60:61], s[{p}:{p+1}]\ns_or_b64 s[66:67], s[66:67], s[{p}:{p+1}]')
                e(f's_and_b32 s60, s60, s61\ns_or_b32 s66, s66, s67\ns_xor_b32 s60, s60, s{sT0}\ns_xor_b32 s66, s66, s{sT0}\ns_or_b32 s60, s60, s66')
                e('s_cbranch_scc0 L_T_RDYOK')
                e('v_and_b32 v12, 1, v2\nv_lshlrev_b32 v12, 7, v12\nv_lshl_add_u32 v12, v1, 2, v12')
                e('L_T_RDY:')
                self.timeout()
                e(f'buffer_load_dword v13, v12, {srd(rWS)}, s75 offen sc1\ns_waitcnt vmcnt(0)\nv_cmp_ne_u32 vcc, s{sT0}, v13\ns_cbranch_vccnz L_T_RDY')
                e('L_T_RDYOK:')
                self.stamp('T.qiss')
                e(f's_lshl_b32 s79, s{sT}, 7\ns_add_u32 s79, s79, {GATE}\ns_cmp_eq_u32 s{sW}, 0\ns_cselect_b32 s79, s79, {OOB}\nv_mov_b32 v39, s79\nv_mov_b32 v21, s{sT1}')
                qloads(); vm += [('q',i) for i in range(8)]
                self.mk_srd(rA, pWO, 73, 5242880)
                e(f's_cmp_lt_u32 s{sR}, 10\ns_cselect_b32 s{rA+2}, s{rA+2}, 0')
            if n < 32:
                dma(n); vm.append(('d',n))
                if n in thr: e(f's_waitcnt vmcnt({thr[n]})')
            for c in range(3):
                if c not in kdone and n >= npre and ('d',8*c+7) in vm and younger(('d',8*c+7)) >= klag and (c == 0 or c-1 in kdone): kv(c)
        self.stamp('T.issued')
        if self.o.get('gate') == 1:
            e(f'buffer_store_dword v21, v39, {srd(rWS)}, 0 offen'); vm.append('gate')
        if self.o.get('tonly'):
            e('s_waitcnt vmcnt(0)'); self.stamp('T.ckv0'); e('s_branch L_END')
        for c in range(4):
            if c not in kdone: kv(c)
        if self.o.get('gate') == 2:
            e(f'buffer_store_dword v21, v39, {srd(rWS)}, 0 offen'); vm.append('gate')
        e('s_branch L_T_Q1')
        e('L_T_Q0:')
        self.fb((), (76, 77)); e(f's_sleep {self.o.get("qsleep",1)}')
        qloads()
        e('L_T_Q1:')
        e(f's_waitcnt vmcnt(0)\nds_read_b32 v12, v{vQC}\nds_read_b32 v13, v{vQC} offset:4096\ns_waitcnt lgkmcnt(0)\nv_max_u32 v12, v12, v13\nv_cmp_eq_u32 vcc, -1, v12\ns_cbranch_vccnz L_T_Q0')
        self.stamp('T.qin')
        if self.o.get('gate') == 3:
            e(f'buffer_store_dword v21, v39, {srd(rWS)}, 0 offen'); vm.append('gate')
        e('s_barrier')
        self.stamp('T.Qbar')
        def wo_ops(i): return [f's_add_u32 m0, s74, {WO+i*1024}', f's_mov_b32 s{sTMP}, {(32*(i>>2)+4*(i&3))*1280}', f'buffer_load_dwordx4 v{36+(i&1)}, {srd(rA)}, s{sTMP} offen nt lds']
        nwe = self.o.get('wo_early', 10)
        vS = 48; vP = 76; vPF = 88; vAcc = 128; vO = 192
        def qreg(s, ht): return 128 + ht*64 + s*4
        def qread(s, ht): return f'ds_read_b128 {v(qreg(s,ht),4)}, v{vQa+(s&3)} offset:{(s>>2)*256+ht*16384}'
        def qk(s, kt, ht):
            d = v(vS+(kt*2+ht)*4,4)
            return f'v_mfma_f32_16x16x32_bf16 {d}, {a((s*2+kt)*4,4)}, {v(qreg(s,ht),4)}, ' + ('0' if s == 0 else d)
        def pv(ks, T, ht):
            d = v(vAcc+(ht*8+T)*4,4)
            return f'v_mfma_f32_16x16x32_bf16 {d}, {v(vPF+(ks*2+ht)*4,4)}, {a(128+(ks*8+T)*4,4)}, ' + ('0' if ks == 0 else d)
        def ver(s, ht): return f'v_max3_u32 v23, v23, v{qreg(s,ht)}, v{qreg(s,ht)+2}'
        def cost(x): return 2 if x.startswith('v_exp') else (0 if x.startswith('s_') else 1)
        def stream(mf, toks, bg):
            skip = 0
            for m in mf:
                e(m)
                b = 2
                if skip: skip -= 1
                else:
                    while toks:
                        t = toks[0]
                        if isinstance(t, tuple): skip = t[1]; toks.pop(0); break
                        if cost(t) > b: break
                        e(t); b -= cost(t); toks.pop(0)
                while bg and cost(bg[0]) <= b:
                    b -= cost(bg[0]); e(bg.pop(0))
            return toks
        def flush(toks):
            for t in toks:
                if not isinstance(t, tuple): e(t)
        D = 4
        for s in range(D): e(qread(s,0))
        e(f'v_mov_b32 v23, 0\nbuffer_store_dwordx4 v[16:19], v20, {srd(rWS)}, s71 offen sc1')
        rd = [(s,0) for s in range(D,16)] + [(s,1) for s in range(16)]
        issued = D
        wo = [wo_ops(i) for i in range(nwe)]
        for s in range(16):
            e(f's_waitcnt lgkmcnt({min(15, issued-1-s)})')
            if s == 15: e('s_barrier')
            for kt in range(2):
                e(qk(s,kt,0))
                if rd: e(qread(*rd.pop(0))); issued += 1
                if kt == 0: e(ver(s,0))
                elif wo: flush(wo.pop(0))
        self.stamp('T.QK0')
        def sm(ht):
            r0 = vS+ht*4; r1 = vS+8+ht*4; m = 64; t = 65; M = 66+ht; rb = 72
            a_ = [f'v_max3_f32 v{m}, v{r0}, v{r0+1}, v{r0+2}', f'v_max3_f32 v{t}, v{r1}, v{r1+1}, v{r1+2}', f'v_max3_f32 v{m}, v{m}, v{r0+3}, v{r1+3}', f'v_max_f32 v{m}, v{m}, v{t}',
                  f'v_mov_b32 v{t}, v{m}', ('gap',0), f'v_permlane32_swap_b32 v{m}, v{t}', f'v_max_f32 v{m}, v{m}, v{t}', f'v_mov_b32 v{t}, v{m}', ('gap',0),
                  f'v_permlane16_swap_b32 v{m}, v{t}', f'v_max_f32 v{m}, v{m}, v{t}', f'ds_write_b32 v22, v{m} offset:{ht*256}']
            b_ = ['s_waitcnt lgkmcnt(0)', 's_barrier', f'ds_read_b128 {v(rb,4)}, v{vMR} offset:{ht*256}']
            c_ = ['s_waitcnt lgkmcnt(0)', f'v_max3_f32 v{M}, v{rb}, v{rb+1}, v{rb+2}', f'v_max_f32 v{M}, v{M}, v{rb+3}', f'v_mul_f32 v{M}, v38, v{M}']
            for b in (r0, r1):
                for r in range(4): c_.append(f'v_fma_f32 v{b+r}, v{b+r}, v38, -v{M}')
            for b in (r0, r1):
                for r in range(4): c_.append(f'v_exp_f32 v{b+r}, v{b+r}')
            for k,b in enumerate((r0, r1)):
                c_ += [f'v_cvt_pk_bf16_f32 v{vP+ht*4+k*2}, v{b}, v{b+1}', f'v_cvt_pk_bf16_f32 v{vP+ht*4+k*2+1}, v{b+2}, v{b+3}']
            c_.append(f'ds_write_b128 v{vPW}, {v(vP+ht*4,4)} offset:{ht*1024}')
            d_ = ['s_waitcnt lgkmcnt(0)', 's_barrier'] + [f'ds_read_b128 {v(vPF+(ks*2+ht)*4,4)}, v{vPR} offset:{(ks*2+ht)*1024}' for ks in range(4)]
            return a_, b_, c_, d_
        g1 = self.o.get('g1', 2); g2 = self.o.get('g2', 2)
        a0,b0,c0,d0 = sm(0); a1_,b1,c1,d1 = sm(1)
        e('s_waitcnt lgkmcnt(0)')
        mf = [qk(s,kt,1) for s in range(16) for kt in range(2)]
        bg = [ver(s,1) for s in range(16)]
        left = stream(mf, [('gap',1)] + a0 + [('gap',g1)] + b0 + [('gap',g2)] + c0, bg)
        flush(left)
        self.stamp('T.QK')
        flush(bg)
        flush(a1_)
        e('v_cmp_eq_u32 vcc, -1, v23')
        flush(d0[:2])
        e('s_cbranch_vccnz L_T_Q0')
        flush(d0[2:] + b1[2:])
        self.stamp('T.Pbar')
        def lsum(ht, dst):
            r0 = vS+ht*4; r1 = vS+8+ht*4
            return [f'v_add_f32 v{r0}, v{r0}, v{r0+1}', f'v_add_f32 v{r0+2}, v{r0+2}, v{r0+3}', f'v_add_f32 v{r1}, v{r1}, v{r1+1}', f'v_add_f32 v{r1+2}, v{r1+2}, v{r1+3}',
                    f'v_add_f32 v{r0}, v{r0}, v{r0+2}', f'v_add_f32 v{r1}, v{r1}, v{r1+2}', f'v_add_f32 v{dst}, v{r0}, v{r1}']
        flush(lsum(0, 70))
        e('s_waitcnt lgkmcnt(4)')
        mf = [pv(ks,T,0) for ks in range(4) for T in range(8)]
        left = stream(mf, [('gap',0)] + c1 + lsum(1, 71) + [('gap',self.o.get('g3',0))] + d1, [])
        flush(left)
        self.stamp('T.pv4')
        def outops(ht):
            ops = []
            for r in range(4):
                o = vO + (ht*4+r)*4
                for k in range(4):
                    ops.append(f'v_cvt_pk_bf16_f32 v{o+k}, v{vAcc+(ht*8+2*k)*4+r}, v{vAcc+(ht*8+2*k+1)*4+r}')
                ops.append(f's_mov_b32 s{sTMP}, {(16*ht+r)*131072}')
                ops.append(f'buffer_store_dwordx4 {v(o,4)}, v{vPS}, {srd(rWS)}, s{sTMP} offen sc1')
            return ops
        e('s_waitcnt lgkmcnt(0)')
        mf = [pv(ks,T,1) for ks in range(4) for T in range(8)]
        cs = self.o.get('cs', 1)
        def csum(ht):
            c = 48 + 4*ht; y = 56 + 2*ht; z = 60 + ht
            ops = []
            for r in range(4):
                o = vO + (ht*4+r)*4
                ops.append([f'v_add3_u32 v{c+r}, v{o}, v{o+1}, v{o+2}', f'v_add_u32 v{c+r}, v{c+r}, v{o+3}'])
            red = [f'v_add_u32_dpp v{y}, v{c}, v{c} row_ror:8 row_mask:0xf bank_mask:0x3', f'v_add_u32_dpp v{y+1}, v{c+1}, v{c+1} row_ror:8 row_mask:0xf bank_mask:0x3',
                   f'v_add_u32_dpp v{y}, v{c+2}, v{c+2} row_ror:8 row_mask:0xf bank_mask:0xc', f'v_add_u32_dpp v{y+1}, v{c+3}, v{c+3} row_ror:8 row_mask:0xf bank_mask:0xc',
                   f'v_add_u32_dpp v{z}, v{y}, v{y} row_shl:4 row_mask:0xf bank_mask:0x5', f'v_add_u32_dpp v{z}, v{y+1}, v{y+1} row_shr:4 row_mask:0xf bank_mask:0xa',
                   f'v_add_u32_dpp v{z}, v{z}, v{z} quad_perm:[1,0,3,2] {DPP}', f'v_add_u32_dpp v{z}, v{z}, v{z} quad_perm:[2,3,0,1] {DPP}']
            return ops, red
        def out_cs(ht):
            if not cs: return outops(ht)
            o = outops(ht); l, red = csum(ht); res = []
            for r in range(4): res += o[6*r:6*r+6] + l[r]
            return res + red
        ltail = ['v_permlane32_swap_b32 v70, v71','v_add_f32 v70, v70, v71','v_mov_b32 v71, v70', f'ds_read_b128 v[76:79], v{vLR}', 'v_permlane16_swap_b32 v70, v71','v_add_f32 v70, v70, v71',
                 f'ds_write_b32 v{vMW}, v70 offset:512', 'v_and_b32 v71, 1, v1']
        recops = ['s_waitcnt lgkmcnt(0)', 's_barrier', f'ds_read_b128 v[72:75], v{vLR} offset:512', 'v_max3_f32 v84, v76, v77, v78', 'v_max_f32 v84, v84, v79', 'v_mul_f32 v84, v38, v84',
                  f'v_mov_b32 v86, s{sT0}', f'v_mov_b32 v87, s{sT0 if cs else sT1}', 'v_cmp_eq_u32 vcc, 1, v71', ('gap',1), 's_waitcnt lgkmcnt(0)', 'v_add_f32 v72, v72, v73', 'v_add_f32 v74, v74, v75', 'v_add_f32 v85, v72, v74']
        left = stream(mf, ltail + out_cs(0) + recops, [])
        flush(left)
        self.stamp('T.pv8')
        flush(out_cs(1))
        if cs: e('v_cndmask_b32 v86, v60, v61, vcc\nv_sub_u32 v86, 0, v86')
        self.stamp('T.PVst')
        rw = self.o.get('recwait', None if cs else 0)
        e(f's_waitcnt vmcnt({nwe+8 if rw is None else rw})')
        self.pub('v[84:87]', vRS)
        self.stamp('T.rec')
        e(f's_cmp_ge_u32 s{sR}, 10\ns_cbranch_scc1 L_END')
        for i in range(nwe, 16): flush(wo_ops(i))
        e(f"""
        v_lshrrev_b32 v12, 2, v1
        v_lshl_add_u32 v12, v2, 3, v12
        v_lshlrev_b32 v12, 7, v12
        v_and_b32 v13, 3, v1
        v_lshl_add_u32 v12, v13, 3, v12
        v_lshrrev_b32 v14, 3, v1
        v_and_b32 v15, 1, v2
        v_lshl_or_b32 v14, v15, 1, v14
        v_xor_b32 v14, s{sW}, v14
        v_lshl_add_u32 v24, v14, 5, v12
        v_mul_u32_u24 v13, 320, v13
        v_add_u32 v13, v13, v11
        v_add_u32 v25, {HB}, v13
        v_mul_u32_u24 v12, 320, v2
        v_lshl_add_u32 v12, v1, 4, v12
        s_mul_i32 s{s0}, s{sW}, 1280
        s_add_u32 s{s0}, s{s0}, {HB}
        v_add_u32 v26, s{s0}, v12
        v_lshlrev_b32 v12, 4, v1
        v_lshl_add_u32 v27, v2, 13, v12
        s_lshl_b32 s75, s{sX8}, 4
        s_add_u32 s75, s75, s{sW}
        s_lshl_b32 s75, s75, 11
        s_add_u32 s75, s75, {SL+S_HC+LOC}
        s_and_b32 s75, s75, s{sLM}
        s_lshl_b32 s{s0}, s{sX8}, 11
        s_lshl_b32 s{s1}, s{sR}, 7
        s_add_u32 s{s0}, s{s0}, s{s1}
        s_lshl_b32 s{s1}, s{sW}, 5
        s_add_u32 s{s0}, s{s0}, s{s1}
        s_add_u32 s{s0}, s{s0}, {H3B}
        v_lshlrev_b32 v12, 1, v0
        v_add_u32 v12, s{s0}, v12
        v_cmp_gt_u32 vcc, 16, v0
        v_cndmask_b32 v28, v9, v12, vcc
        s_waitcnt vmcnt(0)
        s_barrier
        """)
        self.stamp('C.land')
        for st_ in range(16):
            for q in range(2): e(f'ds_read_b64_tr_b16 {a(st_*4+2*q,2)}, v24 offset:{WO+st_*4096+q*512}')
        e('L_C_HC:')
        e(f'buffer_load_dwordx4 v[76:79], v27, {srd(rWS)}, s75 offen sc1')
        e('s_waitcnt vmcnt(0)')
        e('ds_write_b128 v26, v[76:79]')
        self.maxchain(12, range(76,80))
        e('v_cmp_eq_u32 vcc, -1, v12')
        self.retry('L_C_HC', sleep=0, sregs=(75,))
        self.stamp('C.hcin')
        e('s_waitcnt lgkmcnt(0)\ns_barrier')
        self.stamp('C.bar')
        NP = 8
        def ar(st_): return f'ds_read_b128 {v(128+4*st_,4)}, v25 offset:{(st_>>2)*1280+(st_&3)*64}'
        for st_ in range(NP): e(ar(st_))
        for st_ in range(16):
            e(f's_waitcnt lgkmcnt({min(NP-1, 15-st_)})')
            e(f'v_mfma_f32_16x16x32_bf16 v[104:107], {v(128+4*st_,4)}, {a(st_*4,4)}, ' + ('0' if st_ == 0 else 'v[104:107]'))
            if st_+NP < 16: e(ar(st_+NP))
        e('v_pk_add_f32 v[104:105], v[104:105], v[106:107]\nv_add_f32 v104, v104, v105\nv_cvt_pk_bf16_f32 v104, v104, v104\nv_min_u32 v104, -2, v104')
        e(f'buffer_store_short v104, v28, {srd(rWS)}, 0 offen sc1\nbuffer_store_short v104, v28, {srd(rWS)}, s{sLOC} offen')
        self.stamp('C.h3')

    def epilogue(self):
        e = self.e
        e('L_END:')
        if 'amp2' in self.o:
            k = self.idx[self.o['amp2']]
            e(f's_waitcnt lgkmcnt(0)\ns_cmp_eq_u32 s{sSTAMP+2*k}, 0\ns_cbranch_scc1 L_EXIT')
            if 'ampwg' in self.o: e(f's_cmp_lg_u32 s2, {self.o["ampwg"]}\ns_cbranch_scc1 L_EXIT')
            e(f's_sub_u32 s60, s{sSTAMP+2*k}, s{sSTAMP}\ns_lshl_b32 s60, s60, 3\ns_add_u32 s60, s60, s{sSTAMP}')
            e('L_AMP2:\ns_sleep 4\ns_memrealtime s[62:63]\ns_waitcnt lgkmcnt(0)\ns_sub_u32 s61, s62, s60\ns_cmp_lt_i32 s61, 0\ns_cbranch_scc1 L_AMP2')
        if self.stamps and 'amp' not in self.o and 'amp2' not in self.o:
            e(f's_waitcnt lgkmcnt(0)\ns_lshl_b32 s60, s2, 2\ns_add_u32 s60, s60, s{sW}\ns_lshl_b32 s60, s60, 6\ns_add_u32 s60, s60, {STAMP}\nv_mov_b32 v4, 0')
            for k in range(11): e(f'v_mov_b32 v5, s{sSTAMP+2*k}\nbuffer_store_dword v5, v4, {srd(rWS)}, s60 offen offset:{4*k}')
            e(f'v_mov_b32 v5, s{sTO}\nbuffer_store_dword v5, v4, {srd(rWS)}, s60 offen offset:44')
        e('L_EXIT:')

    def build(self):
        if self.stamps:
            for k in range(1,11): self.e(f's_mov_b32 s{sSTAMP+2*k}, 0')
        self.prologue(); self.role_A(); self.role_T(); self.epilogue()
        hdr = open('header.txt').read()
        return f'''{hdr}; @launch grid=(256,1,1) block=(256,1,1) lds=163840
.amdgcn_target "amdgcn-amd-amdhsa--gfx950"
.text
.globl {KN}
.p2align 8
.type {KN},@function
{KN}:
{self.e.text()}
s_endpgm
.section .rodata,"a"
.p2align 6
.amdhsa_kernel {KN}
  .amdhsa_next_free_vgpr 512
  .amdhsa_next_free_sgpr 102
  .amdhsa_accum_offset 256
  .amdhsa_group_segment_fixed_size 0
  .amdhsa_kernarg_size 112
  .amdhsa_user_sgpr_count 2
  .amdhsa_user_sgpr_kernarg_segment_ptr 1
  .amdhsa_system_sgpr_workgroup_id_x 1
.end_amdhsa_kernel
'''

if __name__ == '__main__':
    import json
    out = sys.argv[1]; stamps = len(sys.argv) > 2 and sys.argv[2] == '1'
    opt = json.loads(sys.argv[3]) if len(sys.argv) > 3 else {}
    open(out,'w').write(G(stamps, opt).build())
```

```python
import sys
sys.path.insert(0,'work')
from dsl import Asm
NAME = 'sequential_preLN__compressed_kv_cla__dense_activation_squared_relu__decode'
KN = NAME + '_kernel'

EPOCH=0; RDY=0x1000; GATE=0x2000; QP=0x8000; SL=0x40000; REC=0x80000; LOC=0x100000; PART=0x200000; STAMP=0x600000
S_QL=0; S_HC=256; S_H4=512; H3B = SL + 108*2048 + S_H4
WSSZ=0x700000
OOB=0x7ffffff0
NLOC=96
sLM,sLC,sLOC,sTMP = 3,4,5,6
pX,pCKV,pWQ,pWUK,pWUV,pWO,pBX,pW1,pB1,pW2,pB2,pOUT,pDBG,pWS = [8+2*i for i in range(14)]
sW,sX8,sR,sE,sT0,sT1,sTO,sC = 36,37,38,39,40,41,42,43
rWS=44; rA=48; rB=52; rC=56
sSTAMP=80
def srd(r): return f's[{r}:{r+3}]'
def v(n,c=1): return f'v{n}' if c==1 else f'v[{n}:{n+c-1}]'
def a(n,c=1): return f'a{n}' if c==1 else f'a[{n}:{n+c-1}]'
DPP='row_mask:0xf bank_mask:0xf'
QB = 131072
WQ = 69632; XN = 110592

class G:
    def __init__(self, stamps=False, opt=None):
        self.e = Asm(); self.stamps = stamps; self.o = opt or {}
        self.slots = {'A':['start'],'T':['start'],'R':[]}; self.idx = {}; self.tbase = 1
    def stamp(self, name):
        if not self.stamps: return
        role = name.split('.')[0]
        lst = self.slots['A' if role in 'AFR' else 'T']
        want = self.o.get('want')
        if name == 'start': k = 0
        else:
            if want is not None and name not in want: return
            if role == 'R':
                k = self.tbase + len(self.slots['R']); self.slots['R'].append(name)
            else:
                k = len(lst); lst.append(name)
                if role == 'A': self.tbase = len(lst)
            if k > 10: raise Exception('too many stamps '+name)
        self.idx[name] = k
        op = 's_memtime' if self.o.get('cyc') else 's_memrealtime'
        self.e(f'{op} s[{sSTAMP+2*k}:{sSTAMP+2*k+1}]')
        if name in self.o.get('cut', []): self.e('s_branch L_END')
    def mk_srd(self, r, ptr, off_sgpr, size):
        e = self.e
        if off_sgpr is None:
            e(f's_mov_b32 s{r}, s{ptr}\ns_and_b32 s{r+1}, s{ptr+1}, 0xffff\ns_mov_b32 s{r+2}, {size}')
        else:
            e(f's_add_u32 s{r}, s{ptr}, s{off_sgpr}\ns_addc_u32 s{r+1}, s{ptr+1}, 0\ns_and_b32 s{r+1}, s{r+1}, 0xffff\ns_sub_u32 s{r+2}, {size}, s{off_sgpr}')
        e(f's_mov_b32 s{r+3}, 0x20000')
    def allred(self, op, x, t, steps16=4):
        e = self.e
        pats = ['quad_perm:[1,0,3,2]','quad_perm:[2,3,0,1]','row_half_mirror','row_mirror'][:steps16]
        for p in pats: e(f'{op}_dpp v{x}, v{x}, v{x} {p} {DPP}')
        e(f'v_mov_b32 v{t}, v{x}\nv_permlane16_swap_b32 v{x}, v{t}\n{op} v{x}, v{x}, v{t}')
        e(f'v_mov_b32 v{t}, v{x}\nv_permlane32_swap_b32 v{x}, v{t}\n{op} v{x}, v{x}, v{t}')
    def timeout(self):
        self.e(f's_sub_u32 s{sTO}, s{sTO}, 1\ns_cmp_eq_u32 s{sTO}, 0\ns_cbranch_scc1 L_END')
    def fb(self, vregs=(), sregs=()):
        e = self.e
        self.timeout()
        e(f's_add_u32 s{sLC}, s{sLC}, 1\ns_cmp_ge_u32 s{sLC}, {NLOC}\ns_cselect_b32 s{sLM}, {(~LOC)&0xffffffff}, s{sLM}')
        self.lmask(vregs, sregs)
    def lmask(self, vregs=(), sregs=()):
        for r in vregs: self.e(f'v_and_b32 v{r}, s{sLM}, v{r}')
        for r in sregs: self.e(f's_and_b32 s{r}, s{r}, s{sLM}')
    def stop(self, data):
        if '[' not in data: return 'buffer_store_dword'
        lo, hi = data[2:-1].split(':'); return f'buffer_store_dwordx{int(hi)-int(lo)+1}'
    def publ(self, data, voff): self.e(f'{self.stop(data)} {data}, v{voff}, {srd(rWS)}, s{sLOC} offen')
    def pubg(self, data, voff): self.e(f'{self.stop(data)} {data}, v{voff}, {srd(rWS)}, 0 offen sc1')
    def pub(self, data, voff): self.pubg(data, voff); self.publ(data, voff)
    def late_pubg(self, data, voff):
        e = self.e; l = e.newlabel('Lnp')
        e(f's_cmp_eq_u32 s{sLM}, -1\ns_cbranch_scc1 {l}'); self.pubg(data, voff); e(f'{l}:')
    def retry(self, label, sleep=1, vregs=(), sregs=(), late=None):
        e = self.e
        ok = e.newlabel('Lok')
        e(f's_cbranch_vccz {ok}')
        self.fb(vregs, sregs)
        if late: self.late_pubg(*late)
        if sleep: e(f's_sleep {sleep}')
        e(f's_branch {label}')
        e(f'{ok}:')
    def maxchain(self, dst, regs):
        e = self.e
        regs = list(regs)
        e(f'v_max3_u32 v{dst}, v{regs[0]}, v{regs[1]}, v{regs[2]}'); regs = regs[3:]
        while len(regs) >= 2:
            e(f'v_max3_u32 v{dst}, v{dst}, v{regs[0]}, v{regs[1]}'); regs = regs[2:]
        if regs: e(f'v_max_u32 v{dst}, v{dst}, v{regs[0]}')
    def tagcheck(self, dst, pairs):
        e = self.e; rs = []
        for r in pairs:
            e(f'v_xor_b32 v{r}, s{sT0}, v{r}\nv_xor_b32 v{r+1}, s{sT1}, v{r+1}'); rs += [r, r+1]
        if len(rs) == 2: e(f'v_or_b32 v{dst}, v{rs[0]}, v{rs[1]}')
        else:
            e(f'v_or3_b32 v{dst}, v{rs[0]}, v{rs[1]}, v{rs[2]}'); rs = rs[3:]
            while len(rs) >= 2: e(f'v_or3_b32 v{dst}, v{dst}, v{rs[0]}, v{rs[1]}'); rs = rs[2:]
            if rs: e(f'v_or_b32 v{dst}, v{dst}, v{rs[0]}')
        e(f'v_cmp_ne_u32 vcc, 0, v{dst}')
    def ident_masks(self, dst, val_lo, val_hi, first, n, t):
        e = self.e
        e(f'v_and_b32 v{t}, 1, v1\nv_cmp_eq_u32 vcc, 1, v{t}\nv_mov_b32 v{t}, {val_lo}\nv_mov_b32 v{t+1}, {val_hi}\nv_cndmask_b32 v{t}, v{t}, v{t+1}, vcc')
        e(f'v_lshrrev_b32 v{t+1}, 1, v1')
        for r in range(n):
            e(f'v_cmp_eq_u32 vcc, {first+r}, v{t+1}\nv_cndmask_b32 v{dst+r}, 0, v{t}, vcc')
    def red_final(self, RED, t, va, clamp):
        e = self.e
        for w in range(4): e(f'ds_read_b128 {v(t+4+4*w,4)}, v{va} offset:{RED+256*w}')
        e('s_waitcnt lgkmcnt(2)')
        for i in range(2): e(f'v_pk_add_f32 {v(t+4+2*i,2)}, {v(t+4+2*i,2)}, {v(t+8+2*i,2)}')
        e('s_waitcnt lgkmcnt(0)')
        for i in range(2): e(f'v_pk_add_f32 {v(t+12+2*i,2)}, {v(t+12+2*i,2)}, {v(t+16+2*i,2)}')
        for i in range(2): e(f'v_pk_add_f32 {v(t+4+2*i,2)}, {v(t+4+2*i,2)}, {v(t+12+2*i,2)}')
        for i in range(2): e(f'v_cvt_pk_bf16_f32 v{t+i}, v{t+4+2*i}, v{t+5+2*i}')
        if clamp:
            for i in range(2): e(f'v_min_u32 v{t+i}, -2, v{t+i}')
    def code_prefetch(self):
        e = self.e
        npl = self.o.get('npl', 3)
        e(f's_getpc_b64 s[20:21]\nL_PC:\ns_sub_u32 s20, s20, L_PC-{KN}\ns_subb_u32 s21, s21, 0')
        e(f's_and_b32 s22, s{sR}, 15\ns_lshl_b32 s22, s22, 2\ns_add_u32 s22, s22, s{sW}\ns_lshl_b32 s22, s22, 7')
        for i in range(npl):
            e(f's_min_u32 s23, s22, L_EXIT-{KN}\ns_load_dword s7, s[20:21], s23')
            if i < npl-1: e(f's_add_u32 s22, s22, 8192')
    def kmap(self):
        k = self.o.get('kil', 0)
        if k == 0: return 17, 15, 4096
        if k == 1: return 12, 22, 1 << 19
        if k == 2: return 12, 19, 1 << 21
        if k == 3: return 14, 12, 1 << 21
        if k == 4: return 15, 22, 4096
    def tlb_warm(self):
        e = self.e
        M = 1 << 21
        lists = {1: [(pWUK,0),(pWUK,M),(pWS,PART),(pWS,PART+M),(pWUV,0),(pWUV,M)],
                 2: [(pW1,0),(pW1,M),(pW2,0),(pW2,M),(pB1,0),(pB2,0)],
                 3: [(pWO,0),(pWO,M),(pWO,2*M),(pOUT,0)]}
        for w,l in lists.items():
            e(f's_cmp_lg_u32 s{sW}, {w}\ns_cbranch_scc1 L_TW{w}')
            for p,off in l:
                if off: e(f's_mov_b32 s60, {off}\ns_load_dword s7, s[{p}:{p+1}], s60')
                else: e(f's_load_dword s7, s[{p}:{p+1}], 0')
            e(f'L_TW{w}:')
    def tags(self):
        self.e(f's_add_u32 s{sT0}, s{sE}, 0x9e3779b9\ns_xor_b32 s{sT1}, s{sT0}, 0x5bd1e995')

    def prologue(self):
        e = self.e
        self.stamp('start')
        e(f'''
        s_cmp_ge_u32 s2, 256
        s_cbranch_scc1 L_EXIT
        s_load_dwordx16 s[8:23], s[0:1], 0
        s_load_dwordx4 s[32:35], s[0:1], 96
        s_load_dwordx8 s[24:31], s[0:1], 64
        v_lshrrev_b32 v1, 6, v0
        v_and_b32 v0, 63, v0
        v_readfirstlane_b32 s{sW}, v1
        v_and_b32 v1, 15, v0
        v_lshrrev_b32 v2, 4, v0
        v_lshlrev_b32 v3, 4, v0
        v_lshlrev_b32 v4, 2, v0
        s_and_b32 s{sX8}, s2, 7
        s_lshr_b32 s{sR}, s2, 3
        v_lshlrev_b32 v5, 4, v1
        v_lshlrev_b32 v6, 5, v2
        v_xor_b32 v5, v5, v6
        v_lshl_add_u32 v6, v2, 13, v5
        s_lshr_b32 s67, s{sW}, 1
        s_lshl_b32 s67, s67, 7
        v_xor_b32 v8, s67, v6
        v_mov_b32 v9, {OOB}
        v_lshlrev_b32 v11, 4, v2
        s_bfe_u32 s60, s{sR}, 0x20002
        s_mul_i32 s60, s60, {160*8192}
        s_and_b32 s63, s{sR}, 3
        s_lshl_b32 s64, s{sX8}, 2
        s_add_u32 s63, s63, s64
        s_lshl_b32 s63, s63, 8
        s_add_u32 s60, s60, s63
        s_lshl_b32 s61, s{sW}, 15
        s_lshl_b32 s62, s{sW}, 10
        s_add_u32 s62, s62, {WQ}
        s_mov_b32 s{rA+3}, 0x20000
        s_mov_b32 s{rC+3}, 0x20000
        s_mov_b32 s{rC+2}, 1280
        s_sub_u32 s{rA+2}, 5242880, s60
        s_mov_b32 s{sTO}, 400000
        s_mov_b32 s{sLM}, -1
        s_mov_b32 s{sLC}, 0
        s_mov_b32 s{sLOC}, {LOC}
        s_mov_b32 s{rWS+2}, {WSSZ}
        s_mov_b32 s{rWS+3}, 0x20000
        s_waitcnt lgkmcnt(0)
        s_add_u32 s{rA}, s{pWQ}, s60
        s_addc_u32 s{rA+1}, s{pWQ+1}, 0
        s_and_b32 s{rA+1}, s{rA+1}, 0xffff
        s_mov_b32 s{rC}, s{pX}
        s_and_b32 s{rC+1}, s{pX+1}, 0xffff
        s_mov_b32 s{rWS}, s{pWS}
        s_and_b32 s{rWS+1}, s{pWS+1}, 0xffff
        s_cmp_lt_u32 s{sR}, 16
        s_cbranch_scc1 L_T
        ''')
    def x_issue(self):
        for kk in range(5): self.e(f'buffer_load_dword v{20+kk}, v4, {srd(rC)}, 0 offen offset:{256*kk} {self.o.get("xflag","")}')
    def wq_dma(self, k):
        e = self.e
        e(f's_add_u32 m0, s62, {k*4096}')
        e(f'buffer_load_dwordx4 v8, {srd(rA)}, s61 offen nt lds')
        if k < 9: e(f's_add_u32 s61, s61, {4*32768}')
    def wuk_setup(self, sAi, srdreg):
        e = self.e
        e(f'''
        s_lshl_b32 s63, s{sX8}, 2
        s_add_u32 s64, s63, s{sW}
        s_lshl_b32 s64, s64, 8
        s_lshl_b32 s65, s{sAi}, 18
        s_add_u32 s64, s64, s65
        ''')
        self.mk_srd(srdreg, pWUK, 64, 4194304)
        e(f'v_xor_b32 v7, 0x80, v6\ns_mov_b32 s68, 0\ns_lshl_b32 s69, s{sW}, 13')
    def wuk_dma(self, k, srdreg, base):
        e = self.e
        e(f's_add_u32 m0, s69, {base+k*1024}')
        e(f'buffer_load_dwordx4 v{6 if ((k>>1)&1)==0 else 7}, {srd(srdreg)}, s68 offen nt lds')
        if k < 7: e(f's_add_u32 s68, s68, 32768')
    def a1(self, role, y_x, y_wq, mid):
        e = self.e
        s0, s1 = 63, 64
        e(f'''
        v_lshrrev_b32 v12, 2, v1
        v_lshl_add_u32 v13, v2, 3, v12
        v_lshlrev_b32 v13, 8, v13
        v_and_b32 v14, 3, v1
        v_lshl_add_u32 v13, v14, 3, v13
        v_and_b32 v15, 1, v2
        v_lshl_or_b32 v15, v15, 2, v12
        s_lshl_b32 s{s0}, s{sW}, 1
        v_xor_b32 v15, s{s0}, v15
        v_lshl_add_u32 v60, v15, 5, v13
        v_xor_b32 v15, 1, v15
        v_lshl_add_u32 v61, v15, 5, v13
        v_add_u32 v56, {WQ}, v60
        v_add_u32 v57, {WQ}, v61
        ''')
        e(f'''
        v_lshl_add_u32 v12, v1, 6, v11
        s_and_b32 s{s0}, s{sR}, 3
        s_lshl_b32 s{s1}, s{sX8}, 2
        s_add_u32 s{s0}, s{s0}, s{s1}
        s_lshl_b32 s{s0}, s{s0}, 2
        s_bfe_u32 s{s1}, s{sR}, 0x20002
        s_add_u32 s{s0}, s{s0}, s{s1}
        s_lshl_b32 s{s0}, s{s0}, 9
        s_lshl_b32 s{s1}, s{sW}, 7
        s_add_u32 s{s0}, s{s0}, s{s1}
        s_add_u32 s{s0}, s{s0}, {QP}
        v_add_u32 v12, s{s0}, v12
        v_cmp_gt_u32 vcc, 2, v1
        v_cndmask_b32 v62, v9, v12, vcc
        v_cmp_eq_u32 s[70:71], 1, v1
        s_mul_i32 s{s0}, s{sW}, 1280
        s_add_u32 s{s0}, s{s0}, {XN}
        v_add_u32 v10, s{s0}, v4
        s_bfe_u32 s{s1}, s{sR}, 0x20002
        s_mul_i32 s{s1}, s{s1}, 320
        s_add_u32 s{s0}, s{s0}, s{s1}
        v_add_u32 v12, s{s0}, v11
        s_waitcnt vmcnt({y_x}) lgkmcnt(0)
        ''')
        self.stamp(role+'.x')
        for k in range(5): e(f'v_lshlrev_b32 v{26+2*k}, 16, v{20+k}\nv_and_b32 v{27+2*k}, 0xffff0000, v{20+k}')
        e('v_pk_add_f32 v[36:37], v[26:27], v[28:29]\nv_pk_add_f32 v[38:39], v[30:31], v[32:33]\nv_pk_add_f32 v[36:37], v[36:37], v[34:35]\nv_pk_add_f32 v[36:37], v[36:37], v[38:39]\nv_add_f32 v36, v36, v37')
        self.allred('v_add_f32', 36, 37)
        e('v_mul_f32 v36, 0xbacccccd, v36\nv_mov_b32 v37, v36')
        for k in range(26,36,2): e(f'v_pk_add_f32 {v(k,2)}, {v(k,2)}, v[36:37]')
        e('v_pk_mul_f32 v[36:37], v[26:27], v[26:27]')
        for k in range(28,36,2): e(f'v_pk_fma_f32 v[36:37], {v(k,2)}, {v(k,2)}, v[36:37]')
        e('v_add_f32 v36, v36, v37')
        self.allred('v_add_f32', 36, 37)
        e('v_mul_f32 v36, 0x3acccccd, v36\nv_add_f32 v36, 0x3727c5ac, v36\nv_rsq_f32 v36, v36\nv_mov_b32 v37, v36')
        for k in range(26,36,2): e(f'v_pk_mul_f32 {v(k,2)}, {v(k,2)}, v[36:37]')
        for k in range(5): e(f'v_cvt_pk_bf16_f32 v{20+k}, v{26+2*k}, v{27+2*k}\nds_write_b32 v10, v{20+k} offset:{256*k}')
        e('s_waitcnt lgkmcnt(0)')
        for s in range(5): e(f'ds_read_b128 {v(36+4*s,4)}, v12 offset:{s*64}')
        e(f's_load_dword s{sE}, s[{pWS}:{pWS+1}], {EPOCH}')
        self.stamp(role+'.ln')
        mid()
        e('s_waitcnt lgkmcnt(0)')
        self.tags()
        e(f'v_mov_b32 v18, s{sT0}\nv_mov_b32 v19, s{sT1}')
        e(f's_waitcnt vmcnt({y_wq})\ns_barrier')
        self.stamp(role+'.wq')
        vW = 128
        for s in range(5):
            for T in range(2):
                for q in range(2): e(f'ds_read_b64_tr_b16 {v(vW+(s*2+T)*4+2*q,2)}, v{56+T} offset:{s*8192+q*1024}')
        for s in range(5):
            for T in range(2):
                e(f's_waitcnt lgkmcnt({min(15,18-(s*2+T)*2)})')
                e(f'v_mfma_f32_16x16x32_bf16 {v(84+4*T,4)}, {v(vW+(s*2+T)*4,4)}, {v(36+4*s,4)}, ' + ('0' if s==0 else v(84+4*T,4)))
        for i in range(4): e(f'v_cvt_pk_bf16_f32 v{92+i}, v{84+2*i}, v{85+2*i}')
        e('v_cndmask_b32 v16, v92, v94, s[70:71]\nv_cndmask_b32 v17, v93, v95, s[70:71]')
        self.publ('v[16:19]', 62)
        self.stamp(role+'.qp')


    def role_A(self):
        e = self.e
        QV=0; CL=1024; ML=2304; RED=2560; DUM=3584; WUK=4096; WUV=36864
        W1=69632; W2=W1+20480; HB=4096; AP=HB+2048; ST=AP+256; HELP=135168
        sAi,sHd,sJ,s0,s1,s2_,sSL = 72,73,74,63,64,65,66
        sF,sG = 60,61
        if self.o.get('noA'): e('s_branch L_END')
        order = self.o.get('a_order', 'qqqqqqqqqq|uuuuuuuu')
        cnt = {'q':0,'u':0}
        def issue(ch):
            if ch == 'q': self.wq_dma(cnt['q'])
            else:
                if cnt['u'] == 0: self.wuk_setup(sAi, rB)
                self.wuk_dma(cnt['u'], rB, WUK)
            cnt[ch] += 1
        e(f's_sub_u32 s{sAi}, s{sR}, 16')
        self.x_issue()
        o1, o2 = order.split('|')
        for ch in o1: issue(ch)
        e(f"""
        s_lshl_b32 s63, s{sX8}, 2
        s_and_b32 s{sHd}, s{sAi}, 3
        s_add_u32 s{sHd}, s{sHd}, s63
        s_lshr_b32 s{sJ}, s{sAi}, 2
        s_lshl_b32 s{sSL}, s{sX8}, 4
        s_add_u32 s{sSL}, s{sSL}, s{sAi}
        """)
        def mid():
            for ch in o2: issue(ch)
        full = o1 + o2
        self.a1('A', len(o1), len(full)-1-full.rindex('q'), mid)
        e(f"""
        s_lshl_b32 s75, s{sX8}, 5
        s_and_b32 s{s1}, s{sAi}, 12
        s_add_u32 s75, s75, s{s1}
        s_add_u32 s75, s75, s{sW}
        s_lshl_b32 s75, s75, 2
        s_add_u32 s75, s75, {RDY}
        s_load_dword s76, s[{pWS}:{pWS+1}], s75
        v_lshlrev_b32 v27, 9, v2
        v_lshl_add_u32 v27, v1, 4, v27
        s_lshl_b32 s{s2_}, s{sX8}, 2
        s_add_u32 s{s2_}, s{s2_}, s{sW}
        s_lshl_b32 s{s2_}, s{s2_}, 11
        s_add_u32 s{s2_}, s{s2_}, {QP+LOC}
        v_lshlrev_b32 v12, 9, v1
        s_lshl_b32 s{s0}, s{sW}, 13
        s_add_u32 s{s0}, s{s0}, {WUK}
        v_add_u32 v12, s{s0}, v12
        v_and_b32 v13, 1, v1
        v_and_b32 v14, 4, v1
        v_lshl_or_b32 v13, v13, 1, v14
        v_lshlrev_b32 v13, 5, v13
        """)
        def h0loads():
            for i in range(2): e(f'buffer_load_dwordx4 {v(64+4*i,4)}, v27, {srd(rWS)}, s{s2_} offen offset:{i*256} sc1')
        for s in range(4):
            e(f'v_add_u32 v14, {s*64}, v11\nv_xor_b32 v14, v14, v13\nv_add_u32 v{40+2*s}, v14, v12\nv_xor_b32 v14, 32, v14\nv_add_u32 v{41+2*s}, v14, v12')
        vI = 28
        self.ident_masks(vI, 0x3f80, 0x3f800000, 0, 8, 12)
        e(f"""
        s_lshl_b32 s{s0}, s{sW}, 8
        v_lshlrev_b32 v12, 3, v0
        v_add_u32 v12, s{s0}, v12
        v_mov_b32 v13, {DUM}
        v_cmp_gt_u32 vcc, 32, v0
        v_cndmask_b32 v24, v13, v12, vcc
        v_add_u32 v25, s{s0}, v11
        s_lshl_b32 s{s0}, s{sX8}, 4
        s_and_b32 s{s1}, s{sAi}, 12
        s_add_u32 s{s0}, s{s0}, s{s1}
        s_add_u32 s{s0}, s{s0}, s{sW}
        s_lshl_b32 s{s0}, s{s0}, 11
        s_and_b32 s{s1}, s{sAi}, 3
        s_lshl_b32 s{s1}, s{s1}, 6
        s_add_u32 s{s0}, s{s0}, s{s1}
        s_add_u32 s{s0}, s{s0}, {SL+S_QL}
        v_add_u32 v12, s{s0}, v4
        v_cmp_gt_u32 vcc, 16, v0
        v_cndmask_b32 v26, v9, v12, vcc
        s_waitcnt lgkmcnt(0)
        s_cmp_eq_u32 s76, s{sT0}
        s_cbranch_scc1 L_A_RDYOK
        L_A_RDY:
        """)
        self.timeout()
        e(f's_sleep 8\ns_load_dword s76, s[{pWS}:{pWS+1}], s75 glc\ns_waitcnt lgkmcnt(0)\ns_cmp_eq_u32 s76, s{sT0}\ns_cbranch_scc0 L_A_RDY\nL_A_RDYOK:\ns_waitcnt vmcnt({1+self.o.get("h0lead",3)})')
        h0loads()
        e('s_waitcnt vmcnt(3)')
        self.stamp('A.wuk')
        vU = 112
        for s in range(4):
            for T in range(2): e(f'ds_read_b128 {v(vU+(s*2+T)*4,4)}, v{40+2*s+T} offset:{T*256}')
        e('L_A_H0:')
        e('s_waitcnt vmcnt(0)')
        for i in range(2):
            e(f'v_mfma_f32_16x16x16_bf16 v[80:83], {v(vI+2*i,2)}, {v(64+4*i,2)}, ' + ('0' if i==0 else 'v[80:83]'))
        self.tagcheck(12, [66,70])
        e('s_cbranch_vccz L_A_H0OK')
        self.fb((), (s2_,)); self.late_pubg('v[16:19]', 62)
        h0loads()
        e('s_branch L_A_H0')
        e('L_A_H0OK:')
        self.stamp('A.h0')
        e(f'v_cvt_pk_bf16_f32 v84, v80, v81\nv_cvt_pk_bf16_f32 v85, v82, v83\nds_write_b64 v24, v[84:85] offset:{QV}')
        for s in range(4): e(f'ds_read_b128 {v(88+4*s,4)}, v25 offset:{QV+s*64}')
        for s in range(4):
            e(f's_waitcnt lgkmcnt({3-s})')
            for T in range(2):
                e(f'v_mfma_f32_16x16x32_bf16 {v(104+4*T,4)}, {v(88+4*s,4)}, {v(vU+(s*2+T)*4,4)}, ' + ('0' if s==0 else v(104+4*T,4)))
        e('v_cvt_pk_bf16_f32 v64, v104, v108\nv_min_u32 v64, -2, v64')
        self.pub('v64', 26)
        self.stamp('A.ql')
        self.pubg('v[16:19]', 62)
        e('s_barrier')
        nh = self.o.get('a_help', 0)
        if nh:
            tsh, wsh, istr = self.kmap()
            e(f's_lshl_b32 s{s0}, s{sSL}, {tsh}')
            self.mk_srd(rA, pCKV, s0, 16777216)
            e(f'v_lshlrev_b32 v12, 10, v2\nv_lshl_add_u32 v12, v1, 4, v12\ns_lshl_b32 s68, s{sW}, {wsh}\ns_lshl_b32 s69, s{sW}, 12\ns_add_u32 m0, s69, {HELP}')
            for n in range(32-nh, 32):
                c, i = n >> 3, n & 7
                e(f's_add_u32 s{sTMP}, s68, {i*istr+c*256}')
                e(f'buffer_load_dwordx4 v12, {srd(rA)}, s{sTMP} offen nt lds')
        e(f"""
        v_lshrrev_b32 v12, 1, v2
        v_lshl_add_u32 v62, v12, 20, v5
        v_and_b32 v12, 1, v2
        v_lshl_add_u32 v62, v12, 17, v62
        v_xor_b32 v62, s67, v62
        s_lshl_b32 s{sG}, s{sJ}, 3
        s_add_u32 s{sG}, s{sG}, s{sX8}
        s_and_b32 s{sF}, s{sAi}, 3
        s_lshl_b32 s{s2_}, s{sG}, 2
        s_add_u32 s{sF}, s{sF}, s{s2_}
        """)
        sB = 62
        e(f"""
        v_and_b32 v5, 7, v1
        v_lshlrev_b32 v5, 4, v5
        v_and_b32 v6, 1, v2
        v_lshl_add_u32 v6, v6, 3, v5
        v_lshrrev_b32 v12, 3, v0
        v_lshl_add_u32 v14, v12, 11, v5
        v_cmp_eq_u32 vcc, s{sX8}, v12
        v_or_b32 v13, s{sLOC}, v14
        v_cndmask_b32 v46, v14, v13, vcc
        s_cmp_ge_u32 s{sG}, 27
        s_cbranch_scc1 L_A_NOF
        s_lshl_b32 s{s0}, s{sF}, 5
        """)
        self.mk_srd(rA, pW1, s0, 2211840)
        e(f's_mul_i32 s{s0}, s{sF}, 20480')
        self.mk_srd(rB, pW2, s0, 2211840)
        e(f"""
        v_and_b32 v7, 3, v12
        v_lshlrev_b32 v7, 3, v7
        v_lshrrev_b32 v8, 5, v0
        v_lshl_add_u32 v7, v8, 2, v7
        v_bfe_u32 v8, v0, 1, 2
        v_add_u32 v7, v7, v8
        v_mul_u32_u24 v7, 3456, v7
        v_and_b32 v8, 1, v0
        v_lshl_add_u32 v7, v8, 4, v7
        s_mul_i32 s{s0}, s{sW}, 110592
        s_lshl_b32 s{s1}, s{sW}, 10
        """)
        w1f = self.o.get('w1flag', 'nt')
        for k in range(5):
            if k and k <= self.o.get('w1pace', 0): e('s_waitcnt vmcnt(0)')
            e(f's_add_u32 m0, s{s1}, {W1+k*4096}')
            e(f'buffer_load_dwordx4 v7, {srd(rA)}, s{s0} offen {w1f} lds')
            if k < 4: e(f's_add_u32 s{s0}, s{s0}, {4*110592}')
        e(f"""
        s_mul_i32 s{sB}, s{sW}, 3
        s_cmp_eq_u32 s{sW}, 3
        s_cselect_b32 s{sB}, 8, s{sB}
        s_lshl_b32 s{sB}, s{sB}, 7
        v_lshrrev_b32 v8, 1, v2
        v_lshl_add_u32 v8, v8, 7, v6
        s_cmp_lt_u32 s{sW}, 2
        s_cselect_b32 s{s0}, 32, 0
        v_cmp_gt_u32 vcc, s{s0}, v0
        v_cndmask_b32 v13, v9, v6, vcc
        v_cmp_gt_u32 vcc, 8, v1
        v_cndmask_b32 v12, v9, v8, vcc
        v_cndmask_b32 v13, v9, v13, vcc
        buffer_load_dwordx2 v[16:17], v12, {srd(rC)}, s{sB} offen
        buffer_load_dwordx2 v[18:19], v13, {srd(rC)}, s{sB} offen offset:256
        s_lshl_b32 s{s0}, s{sF}, 5
        """)
        self.mk_srd(rC, pB1, s0, 3456)
        e(f'v_lshlrev_b32 v12, 3, v2\nbuffer_load_dwordx2 v[58:59], v12, {srd(rC)}, 0 offen')
        e(f"""
        s_lshl_b32 s{s0}, s{sW}, 9
        s_add_u32 s{s0}, s{s0}, {HB}
        v_add_u32 v48, s{s0}, v8
        v_add_u32 v12, 256, v48
        v_mov_b32 v13, {DUM}
        v_cmp_gt_u32 vcc, 32, v0
        v_cndmask_b32 v49, v13, v12, vcc
        v_add_u32 v50, s{s0}, v11
        s_cmp_lt_u32 s{sW}, 2
        s_cselect_b32 s{s0}, 0, {OOB}
        v_max_u32 v47, s{s0}, v46
        s_add_u32 s79, s{sB}, {H3B}
        v_lshl_add_u32 v12, v1, 6, v11
        s_mul_i32 s{s0}, s{sW}, 320
        s_lshl_b32 s{s2_}, s{sF}, 11
        s_add_u32 s{s2_}, s{s0}, s{s2_}
        s_add_u32 s{s2_}, s{s2_}, {SL+S_H4}
        v_add_u32 v12, s{s2_}, v12
        v_cmp_gt_u32 vcc, 5, v1
        v_cndmask_b32 v51, v9, v12, vcc
        s_lshl_b32 s{s2_}, s{sB}, 4
        s_add_u32 s{s2_}, s{s2_}, {W1}
        v_lshlrev_b32 v52, 3, v0
        v_add_u32 v52, s{s2_}, v52
        v_lshrrev_b32 v12, 2, v0
        v_mul_u32_u24 v12, 1280, v12
        v_and_b32 v13, 3, v1
        v_lshl_add_u32 v12, v13, 4, v12
        s_add_u32 s{s0}, s{s0}, {W2}
        v_add_u32 v53, s{s0}, v12
        s_lshl_b32 s{s0}, s{sW}, 2
        v_lshrrev_b32 v12, 5, v0
        v_lshlrev_b32 v12, 4, v12
        v_add_u32 v12, s{s0}, v12
        v_add_u32 v54, {ST}, v12
        s_lshl_b32 s{s0}, s{sW}, 6
        v_add_u32 v55, {AP}, v11
        v_add_u32 v45, s{s0}, v55
        v_mov_b32 v44, {ST}
        s_branch L_A_FDONE
        L_A_NOF:
        """)
        sK = sF
        e(f"""
        s_sub_u32 s{sK}, s{sX8}, 3
        s_lshl_b32 s{sK}, s{sK}, 1
        s_and_b32 s{s0}, s{sAi}, 1
        s_add_u32 s{sK}, s{sK}, s{s0}
        s_lshl_b32 s{sB}, s{sK}, 7
        """)
        self.mk_srd(rB, pB2, None, 1280)
        e(f"""
        s_cmp_eq_u32 s{sW}, 0
        s_cselect_b32 s{s1}, 32, 0
        v_cmp_gt_u32 vcc, s{s1}, v0
        v_cndmask_b32 v6, v9, v6, vcc
        v_cmp_gt_u32 vcc, 8, v1
        v_cndmask_b32 v6, v9, v6, vcc
        buffer_load_dwordx2 v[16:17], v6, {srd(rC)}, s{sB} offen
        buffer_load_dwordx2 v[18:19], v6, {srd(rB)}, s{sB} offen
        s_mul_i32 s{s0}, s{sW}, 27
        v_add_u32 v15, s{s0}, v12
        """)
        for i in range(4):
            e(f'v_bfe_u32 v10, v15, 2, 3\nv_cmp_eq_u32 vcc, s{sX8}, v10\nv_cndmask_b32 v{48+i}, v14, v13, vcc')
            if i < 3: e('v_add_u32 v15, 8, v15')
            if i > 0: e(f'v_add_u32 v{48+i}, {16384*i}, v{48+i}')
        e(f"""
        v_cmp_gt_u32 vcc, 3, v12
        v_cndmask_b32 v51, v9, v51, vcc
        s_add_u32 s79, s{sB}, {H3B}
        s_lshl_b32 s{s0}, s{s0}, 11
        s_add_u32 s78, s{sB}, s{s0}
        s_add_u32 s78, s78, {SL+S_H4}
        v_lshlrev_b32 v52, 5, v1
        v_lshl_add_u32 v52, v2, 4, v52
        s_lshl_b32 s{s1}, s{sW}, 8
        s_add_u32 s{s1}, s{s1}, {RED}
        v_add_u32 v52, s{s1}, v52
        v_mov_b32 v13, {DUM}
        v_cmp_gt_u32 vcc, 32, v0
        v_cndmask_b32 v52, v13, v52, vcc
        v_cmp_gt_u32 vcc, 8, v1
        v_cndmask_b32 v52, v13, v52, vcc
        v_cmp_gt_u32 vcc, 16, v0
        v_lshlrev_b32 v12, 3, v0
        v_cndmask_b32 v53, v9, v12, vcc
        v_lshlrev_b32 v54, 4, v1
        v_cmp_eq_u32 vcc, 0, v0
        v_cndmask_b32 v55, v9, v0, vcc
        L_A_FDONE:
        """)
        vMk = 36
        self.ident_masks(vMk, 0xffff, 0xffff0000, 0, 4, 12)
        e(f"""
        v_and_b32 v13, 7, v1
        v_lshl_add_u32 v12, v2, 3, v13
        s_lshl_b32 s{s0}, s{sW}, 5
        v_add_u32 v12, s{s0}, v12
        v_lshlrev_b32 v20, 11, v12
        v_lshrrev_b32 v13, 4, v12
        v_cmp_eq_u32 vcc, s{sX8}, v13
        v_or_b32 v12, s{sLOC}, v20
        v_cndmask_b32 v20, v20, v12, vcc
        v_and_b32 v20, s{sLM}, v20
        v_cmp_gt_u32 vcc, 8, v1
        v_cndmask_b32 v20, v9, v20, vcc
        s_mov_b32 s70, 0x00ff00ff
        s_mov_b32 s71, 0x00ff00ff
        s_lshl_b32 s68, s{sJ}, 9
        s_lshl_b32 s{s0}, s{sHd}, 4
        s_add_u32 s68, s68, s{s0}
        s_add_u32 s68, s68, {REC}
        v_lshlrev_b32 v22, 11, v2
        v_lshl_add_u32 v22, v1, 4, v22
        s_lshl_b32 s69, s{sHd}, 2
        s_add_u32 s69, s69, s{sJ}
        s_lshl_b32 s69, s69, 15
        s_lshl_b32 s{s0}, s{sW}, 13
        s_add_u32 s69, s69, s{s0}
        s_add_u32 s69, s69, {PART}
        v_lshlrev_b32 v12, 4, v1
        v_lshl_add_u32 v12, v2, 3, v12
        s_mul_i32 s{s0}, s{sW}, 320
        s_add_u32 s{s0}, s{s0}, {CL}
        v_add_u32 v12, s{s0}, v12
        v_mov_b32 v13, {DUM}
        v_cmp_gt_u32 vcc, 32, v0
        v_cndmask_b32 v23, v13, v12, vcc
        v_and_b32 v12, 3, v1
        v_mul_u32_u24 v12, 320, v12
        v_add_u32 v12, v12, v11
        v_add_u32 v24, {CL}, v12
        s_lshl_b32 s{s0}, s{sSL}, 11
        s_lshl_b32 s{s1}, s{sW}, 6
        s_add_u32 s{s0}, s{s0}, s{s1}
        s_add_u32 s{s0}, s{s0}, {SL+S_HC}
        v_add_u32 v12, s{s0}, v4
        v_cmp_gt_u32 vcc, 16, v0
        v_cndmask_b32 v25, v9, v12, vcc
        s_lshl_b32 s{s0}, s{sW}, 2
        s_add_u32 s{s0}, s{s0}, {ML}
        v_mov_b32 v12, s{s0}
        v_cmp_gt_u32 vcc, 8, v1
        v_cndmask_b32 v21, v13, v12, vcc
        v_mov_b32 v27, {ML}
        v_add_u32 v56, {WUV}, v60
        v_add_u32 v57, {WUV}, v61
        """)
        e(f's_lshl_b32 s{s0}, s{sJ}, 18\ns_lshl_b32 s{s1}, s{sHd}, 8\ns_add_u32 s{s0}, s{s0}, s{s1}')
        self.mk_srd(rA, pWUV, s0, 4194304)
        e(f"""
        s_and_b32 s{s0}, s{sW}, 1
        s_lshl_b32 s{s0}, s{s0}, 8
        s_lshr_b32 s{s1}, s{sW}, 1
        s_add_u32 s{s0}, s{s0}, s{s1}
        s_lshl_b32 s{s0}, s{s0}, 13
        s_lshl_b32 s{s1}, s{sW}, 10
        """)
        npace = self.o.get('a2_pace', 0)
        gate = self.o.get('gate', 0)
        ntr = self.o.get('trickle', 0)
        def gwait():
            e(f's_lshl_b32 s75, s{sSL}, 7\ns_add_u32 s75, s75, {GATE}\nv_mov_b32 v12, 0\ns_mov_b32 s77, 40')
            e(f'L_A_G:\nbuffer_load_dword v13, v12, {srd(rWS)}, s75 offen sc1\ns_waitcnt vmcnt(0)\nv_readfirstlane_b32 s76, v13\ns_cmp_eq_u32 s76, s{sT1}\ns_cbranch_scc1 L_A_GOK\ns_sub_u32 s77, s77, 1\ns_cbranch_scc0 L_A_G\nL_A_GOK:')
            self.stamp('A.gate')
        for k in range(8):
            if k < npace: e('s_waitcnt vmcnt(0)')
            if gate and k == ntr: gwait()
            e(f's_add_u32 m0, s{s1}, {WUV+k*4096}')
            e(f'buffer_load_dwordx4 v62, {srd(rA)}, s{s0} offen nt lds')
            if k < 7: e(f's_add_u32 s{s0}, s{s0}, 16384')
        e(f's_cmp_ge_u32 s{sG}, 27\ns_cbranch_scc1 L_A_NOW2')
        for k in range(5):
            e(f's_add_u32 m0, s{s1}, {W2+k*4096}\ns_add_u32 s{s0}, s{s1}, {k*4096}')
            e(f'buffer_load_dwordx4 v3, {srd(rB)}, s{s0} offen nt lds')
        e('L_A_NOW2:')
        if self.o.get('vw', 0):
            e(f'v_mov_b32 v12, 0\ns_and_b32 s{sTMP}, s69, 0xffe00000\nbuffer_load_dword v13, v12, {srd(rWS)}, s{sTMP} offen')
        e('s_waitcnt vmcnt(0)\ns_barrier')
        self.stamp('A.land')
        for s in range(4):
            for T in range(2):
                for q in range(2): e(f'ds_read_b64_tr_b16 {a((s*2+T)*4+2*q,2)}, v{56+T} offset:{s*8192+q*1024}')
        e(f'buffer_load_dwordx4 v[64:67], v20, {srd(rWS)}, s68 offen sc1')
        vC0, vC1, vB1, vS1 = 192, 196, 200, 204
        for dst,src in [(vC0,16),(vC1,18)]:
            e(f'v_lshlrev_b32 v{dst}, 16, v{src}\nv_and_b32 v{dst+1}, 0xffff0000, v{src}\nv_lshlrev_b32 v{dst+2}, 16, v{src+1}\nv_and_b32 v{dst+3}, 0xffff0000, v{src+1}')
        e('s_waitcnt lgkmcnt(0)')
        self.stamp('A.w2rdy')
        e('L_A_REC:')
        e('s_waitcnt vmcnt(0)')
        cs = self.o.get('cs', 1)
        if cs: e(f'v_cmp_ne_u32 vcc, s{sT0}, v67')
        else: self.tagcheck(12, [66])
        e('s_and_b64 vcc, vcc, s[70:71]\ns_cbranch_vccz L_A_RECOK')
        e('L_A_RETRY:')
        self.fb((20,), ())
        e(f'buffer_load_dwordx4 v[64:67], v20, {srd(rWS)}, s68 offen sc1\ns_branch L_A_REC\nL_A_RECOK:')
        vD = 128; vAF = 160
        if self.o.get('ddelay'): e(f's_sleep {self.o["ddelay"]}')
        for i in range(8): e(f'buffer_load_dwordx4 {v(vD+4*i,4)}, v22, {srd(rWS)}, s69 offen offset:{i*256} sc1')
        self.stamp('A.rec')
        e('v_mov_b32 v72, v64')
        self.allred('v_max_f32', 72, 74, 3)
        e('v_sub_f32 v64, v64, v72\nv_exp_f32 v64, v64\nv_cvt_pk_bf16_f32 v64, v64, v64\nv_and_b32 v73, 0xffff0000, v64\nv_mul_f32 v73, v73, v65')
        for i in range(8):
            for r in range(4): e(f'v_and_b32_dpp v{vAF+4*i+r}, v64, v{vMk+r} row_newbcast:{i} {DPP}')
        self.allred('v_add_f32', 73, 74, 3)
        e('ds_write2_b32 v21, v72, v73 offset0:0 offset1:4')
        for i in range(8):
            e(f's_waitcnt vmcnt({7-i})')
            e(f'v_mfma_f32_16x16x32_bf16 v[76:79], {v(vAF+4*i,4)}, {v(vD+4*i,4)}, ' + ('0' if i==0 else 'v[76:79]'))
            if cs: e(f'v_add3_u32 v66, v66, v{vD+4*i}, v{vD+4*i+1}\nv_add3_u32 v66, v66, v{vD+4*i+2}, v{vD+4*i+3}')
        self.stamp('A.data')
        if cs:
            for p in ['quad_perm:[1,0,3,2]','quad_perm:[2,3,0,1]']: e(f'v_add_u32_dpp v66, v66, v66 {p} {DPP}')
            e(f'v_cvt_pk_bf16_f32 v74, v76, v77\nv_cvt_pk_bf16_f32 v75, v78, v79\nv_add_u32_dpp v66, v66, v66 row_half_mirror {DPP}\nds_write_b64 v23, v[74:75]')
            e(f'v_add_u32_dpp v66, v66, v66 row_mirror {DPP}\nv_cmp_ne_u32 vcc, 0, v66\ns_cbranch_vccnz L_A_RETRY\ns_waitcnt lgkmcnt(0)\ns_barrier')
        else:
            e('v_cvt_pk_bf16_f32 v74, v76, v77\nv_cvt_pk_bf16_f32 v75, v78, v79\nds_write_b64 v23, v[74:75]\ns_waitcnt lgkmcnt(0)\ns_barrier')
        self.stamp('A.clbar')
        e(f'ds_read_b128 v[80:83], v24\nds_read_b128 v[64:67], v27\nds_read_b128 v[84:87], v24 offset:64\nds_read_b128 v[68:71], v27 offset:16\nds_read_b128 v[88:91], v24 offset:128\nds_read_b128 v[92:95], v24 offset:192')
        fac = [[], ['s_waitcnt lgkmcnt(4)', 'v_max3_f32 v72, v64, v65, v66', 'v_max_f32 v72, v72, v67'], ['v_sub_f32 v64, v64, v72', 'v_sub_f32 v65, v65, v72'], ['v_sub_f32 v66, v66, v72', 'v_sub_f32 v67, v67, v72'],
               ['v_exp_f32 v64, v64'], ['v_exp_f32 v65, v65'], ['v_exp_f32 v66, v66'],
               ['v_exp_f32 v67, v67', 'v_mul_f32 v72, v64, v68', 'v_fmac_f32 v72, v65, v69', 'v_fmac_f32 v72, v66, v70', 'v_fmac_f32 v72, v67, v71', 'v_rcp_f32 v72, v72']]
        for s in range(4):
            e(f's_waitcnt lgkmcnt({[5,3,1,0][s]})')
            for T in range(2):
                e(f'v_mfma_f32_16x16x32_bf16 {v(104+4*T,4)}, {v(80+4*s,4)}, {a((s*2+T)*4,4)}, ' + ('0' if s==0 else v(104+4*T,4)))
                for x in fac[2*s+T]: e(x)
        e('v_pk_mul_f32 v[104:105], v[104:105], v[64:65]\nv_pk_mul_f32 v[108:109], v[108:109], v[64:65]')
        e('v_pk_fma_f32 v[104:105], v[106:107], v[66:67], v[104:105]\nv_pk_fma_f32 v[108:109], v[110:111], v[66:67], v[108:109]')
        e('v_add_f32 v104, v104, v105\nv_add_f32 v108, v108, v109\nv_mul_f32 v104, v104, v72\nv_mul_f32 v108, v108, v72')
        e('v_cvt_pk_bf16_f32 v63, v104, v108\nv_min_u32 v63, -2, v63')
        self.publ('v63', 25); self.pubg('v63', 25)
        self.stamp('A.hc')
        e(f's_cmp_ge_u32 s{sG}, 27\ns_cbranch_scc1 L_FIN')
        for s in range(6):
            for q in range(2): e(f'ds_read_b64_tr_b16 {a(32+s*4+2*q,2)}, v52 offset:{s*1024+q*512}')
        for P in range(5):
            for hb in range(2): e(f'ds_read_b64_tr_b16 {a(56+P*4+2*hb,2)}, v53 offset:{P*64+hb*8}')
        e(f'v_lshlrev_b32 v{vB1}, 16, v58\nv_and_b32 v{vB1+1}, 0xffff0000, v58\nv_lshlrev_b32 v{vB1+2}, 16, v59\nv_and_b32 v{vB1+3}, 0xffff0000, v59')
        e(f's_cmp_lt_u32 s{sW}, 2\ns_cselect_b32 s{s0}, 0x3f803f80, 0')
        for r in range(4): e(f'v_mov_b32 v{208+r}, 0x3f803f80\nv_mov_b32 v{212+r}, s{s0}')
        e('s_waitcnt lgkmcnt(10)')
        for s in range(6):
            e(f'v_mfma_f32_16x16x32_bf16 {v(vS1,4)}, {a(32+s*4,4)}, {v(208 if s < 4 else 212,4)}, ' + ('0' if s == 0 else v(vS1,4)))
        e(f'ds_write_b128 v45, {v(vS1,4)}\ns_waitcnt lgkmcnt(0)\ns_barrier')
        for w in range(4): e(f'ds_read_b128 {v(208+4*w,4)}, v55 offset:{64*w}')
        e('s_waitcnt lgkmcnt(0)')
        for i in range(2): e(f'v_pk_add_f32 {v(208+2*i,2)}, {v(208+2*i,2)}, {v(212+2*i,2)}\nv_pk_add_f32 {v(216+2*i,2)}, {v(216+2*i,2)}, {v(220+2*i,2)}')
        for i in range(2): e(f'v_pk_add_f32 {v(vS1+2*i,2)}, {v(208+2*i,2)}, {v(216+2*i,2)}')
        e('s_barrier')
        self.stamp('F.prep')
        for P in range(5):
            e(f's_mov_b32 s{68+2*P}, {0x00010001<<P}\ns_mov_b32 s{69+2*P}, {0x00010001<<P}')
        self.lmask((46,47))
        if self.o.get('fdelay'): e(f's_sleep {self.o["fdelay"]}')
        vH = 64
        e('L_F_POLL:')
        e(f'buffer_load_dwordx4 {v(vH,4)}, v46, {srd(rWS)}, s79 offen sc1')
        e(f'buffer_load_dwordx4 {v(vH+4,4)}, v46, {srd(rWS)}, s79 offen offset:128 sc1')
        e(f'buffer_load_dwordx4 {v(vH+8,4)}, v47, {srd(rWS)}, s79 offen offset:256 sc1')
        e('s_waitcnt vmcnt(0)')
        e(f'v_mfma_f32_16x16x32_bf16 v[76:79], {v(vI,4)}, {v(vH,4)}, {v(vC0,4)}')
        e(f'v_mfma_f32_16x16x32_bf16 v[76:79], {v(vI+4,4)}, {v(vH+4,4)}, v[76:79]')
        e(f'v_mfma_f32_16x16x32_bf16 v[80:83], {v(vI,4)}, {v(vH+8,4)}, {v(vC1,4)}')
        self.maxchain(12, range(vH, vH+12))
        e('v_cmp_eq_u32 vcc, -1, v12')
        self.retry('L_F_POLL', vregs=(46,47), sleep=self.o.get('fsleep',0))
        self.stamp('F.h3b')
        vB = 128
        for r in range(4): e(f'v_add_f32_dpp v{76+r}, v{76+r}, v{76+r} row_ror:8 {DPP}')
        e('v_cvt_pk_bf16_f32 v84, v76, v77\nv_cvt_pk_bf16_f32 v85, v78, v79\nds_write_b64 v48, v[84:85]')
        for s in range(4): e(f'ds_read_b128 {v(vB+4*s,4)}, v50 offset:{s*64}')
        for r in range(4): e(f'v_add_f32_dpp v{80+r}, v{80+r}, v{80+r} row_ror:8 {DPP}')
        e('v_cvt_pk_bf16_f32 v86, v80, v81\nv_cvt_pk_bf16_f32 v87, v82, v83\nds_write_b64 v49, v[86:87]')
        for s in range(4,6): e(f'ds_read_b128 {v(vB+4*s,4)}, v50 offset:{s*64}')
        e('v_pk_add_f32 v[88:89], v[76:77], v[78:79]\nv_pk_mul_f32 v[92:93], v[76:77], v[76:77]\nv_pk_add_f32 v[90:91], v[80:81], v[82:83]\nv_pk_fma_f32 v[92:93], v[78:79], v[78:79], v[92:93]')
        e('v_pk_add_f32 v[88:89], v[88:89], v[90:91]\nv_pk_fma_f32 v[92:93], v[80:81], v[80:81], v[92:93]\nv_pk_fma_f32 v[92:93], v[82:83], v[82:83], v[92:93]')
        st = [['v_add_f32 v88, v88, v89', 'v_add_f32 v92, v92, v93'], ['s_nop 0', 'v_permlane32_swap_b32 v88, v92', 'v_add_f32 v88, v88, v92'], ['v_mov_b32 v92, v88'],
              ['s_nop 0', 'v_permlane16_swap_b32 v88, v92', 'v_add_f32 v88, v88, v92'], ['s_nop 0', f'v_add_f32_dpp v88, v88, v88 quad_perm:[1,0,3,2] {DPP}'],
              [f'v_add_f32_dpp v88, v88, v88 quad_perm:[2,3,0,1] {DPP}', f'v_add_f32_dpp v88, v88, v88 row_half_mirror {DPP}', 'v_mul_f32 v88, 0x3acccccd, v88', 'ds_write_b32 v54, v88']]
        for s in range(6):
            e(f's_waitcnt lgkmcnt({[6,5,4,3,1,0][s]})')
            e(f'v_mfma_f32_16x16x32_bf16 v[96:99], {a(32+s*4,4)}, {v(vB+4*s,4)}, ' + ('0' if s == 0 else 'v[96:99]'))
            for x in st[s]: e(x)
        e('ds_write_b128 v45, v[96:99]\ns_waitcnt lgkmcnt(0)\ns_barrier')
        self.stamp('F.abar')
        e('ds_read_b128 v[100:103], v44\nds_read_b128 v[104:107], v44 offset:16')
        for w in range(4): e(f'ds_read_b128 {v(128+4*w,4)}, v55 offset:{64*w}')
        e(f"""
        s_waitcnt lgkmcnt(4)
        v_pk_add_f32 v[100:101], v[100:101], v[102:103]
        v_pk_add_f32 v[104:105], v[104:105], v[106:107]
        v_add_f32 v100, v100, v101
        v_add_f32 v104, v104, v105
        v_fma_f32 v104, -v100, v100, v104
        v_max_f32 v104, 0, v104
        v_add_f32 v104, 0x3727c5ac, v104
        v_rsq_f32 v104, v104
        s_waitcnt lgkmcnt(0)
        v_pk_fma_f32 v[128:129], {v(vS1,2)}, v[100:101], v[128:129] op_sel_hi:[1,0,1] neg_lo:[0,1,0] neg_hi:[0,1,0]
        v_pk_fma_f32 v[130:131], {v(vS1+2,2)}, v[100:101], v[130:131] op_sel_hi:[1,0,1] neg_lo:[0,1,0] neg_hi:[0,1,0]
        v_pk_add_f32 v[136:137], v[136:137], v[140:141]
        v_pk_add_f32 v[138:139], v[138:139], v[142:143]
        v_pk_add_f32 v[128:129], v[128:129], v[132:133]
        v_pk_add_f32 v[130:131], v[130:131], v[134:135]
        v_pk_add_f32 v[128:129], v[128:129], v[136:137]
        v_pk_add_f32 v[130:131], v[130:131], v[138:139]
        v_pk_fma_f32 v[128:129], v[128:129], v[104:105], {v(vB1,2)} op_sel_hi:[1,0,1]
        v_pk_fma_f32 v[130:131], v[130:131], v[104:105], {v(vB1+2,2)} op_sel_hi:[1,0,1]
        """)
        for r in range(4): e(f'v_max_f32 v{128+r}, 0, v{128+r}')
        e('v_pk_mul_f32 v[128:129], v[128:129], v[128:129]\nv_pk_mul_f32 v[130:131], v[130:131], v[130:131]')
        e('v_cvt_pk_bf16_f32 v108, v128, v129\nv_cvt_pk_bf16_f32 v109, v130, v131')
        self.stamp('F.f1')
        def cm(P): e(f'v_cndmask_b32 v{110+2*P}, 0, v108, s[{68+2*P}:{69+2*P}]\nv_cndmask_b32 v{111+2*P}, 0, v109, s[{68+2*P}:{69+2*P}]')
        cm(0); cm(1)
        for P in range(5):
            for hb in range(2):
                e(f'v_mfma_f32_16x16x16_bf16 {v(120+4*hb,4)}, {a(56+P*4+2*hb,2)}, {v(110+2*P,2)}, ' + ('0' if P == 0 else v(120+4*hb,4)))
                if hb == 0 and P+2 < 5: cm(P+2)
        for i in range(4): e(f'v_cvt_pk_bf16_f32 v{64+i}, v{120+2*i}, v{121+2*i}')
        for i in range(4): e(f'v_min_u32 v{64+i}, -2, v{64+i}')
        self.pub('v[64:67]', 51)
        self.stamp('F.end')
        e('s_branch L_END')
        e('L_FIN:')
        e(f's_and_b32 s{s0}, s{sAi}, 2\ns_cbranch_scc1 L_END')
        self.mk_srd(rA, pOUT, None, 1280)
        if self.o.get('vw', 0): e(f'buffer_load_dword v13, v53, {srd(rA)}, s{sB} offen')
        e(f's_cmp_eq_u32 s{sW}, 0\ns_cselect_b32 s{s1}, -1, 0')
        for r in range(4): e(f'v_and_b32 v{32+r}, s{s1}, v{vI+r}')
        e(f'v_pk_add_f32 {v(vC0,2)}, {v(vC0,2)}, {v(vC1,2)}\nv_pk_add_f32 {v(vC0+2,2)}, {v(vC0+2,2)}, {v(vC1+2,2)}\nv_mov_b32 v45, s{sT0}')
        self.lmask((46,))
        e('L_R_P1:')
        e(f'buffer_load_dwordx4 v[64:67], v46, {srd(rWS)}, s79 offen sc1\ns_waitcnt vmcnt(0)')
        self.maxchain(12, range(64,68))
        e('v_cmp_eq_u32 vcc, -1, v12')
        self.retry('L_R_P1', sleep=1, vregs=(46,))
        self.stamp('R.h3b')
        self.lmask((48,49,50,51))
        e(f'v_mfma_f32_16x16x32_bf16 {v(vC0,4)}, v[32:35], v[64:67], {v(vC0,4)}')
        if self.o.get('rdelay'): e(f's_sleep {self.o["rdelay"]}')
        e('L_R_P2:')
        for i in range(4): e(f'buffer_load_dwordx4 {v(68+4*i,4)}, v{48+i}, {srd(rWS)}, s78 offen sc1')
        e('s_waitcnt vmcnt(0)')
        for i in range(4): e(f'v_mfma_f32_16x16x32_bf16 v[104:107], {v(vI,4)}, {v(68+4*i,4)}, ' + (v(vC0,4) if i == 0 else 'v[104:107]'))
        self.maxchain(12, range(68,84))
        e('v_cmp_eq_u32 vcc, -1, v12')
        self.retry('L_R_P2', vregs=(48,49,50,51), sleep=0)
        self.stamp('R.h4')
        for r in range(4): e(f'v_add_f32_dpp v{104+r}, v{104+r}, v{104+r} row_ror:8 {DPP}')
        e(f'ds_write_b128 v52, v[104:107]\ns_waitcnt lgkmcnt(0)\ns_barrier')
        e(f's_cmp_lg_u32 s{sW}, 0\ns_cbranch_scc1 L_END')
        self.red_final(RED, 128, 54, False)
        e(f'buffer_store_dwordx2 v[128:129], v53, {srd(rA)}, s{sB} offen')
        e(f's_cmp_lg_u32 s{sK}, 0\ns_cbranch_scc1 L_END2')
        e(f'buffer_store_dword v45, v55, {srd(rWS)}, 0 offen offset:{EPOCH} sc1')
        if 'amp' in self.o:
            self.stamp('R.end')
            k = self.idx[self.o['amp']]; ke = self.idx['R.end']
            e(f's_waitcnt lgkmcnt(0)\ns_sub_u32 s60, s{sSTAMP+2*k}, s{sSTAMP}\ns_lshl_b32 s60, s60, 2\ns_add_u32 s60, s60, s{sSTAMP+2*ke}')
            e('L_AMP:\ns_memrealtime s[62:63]\ns_waitcnt lgkmcnt(0)\ns_sub_u32 s61, s62, s60\ns_cmp_lt_i32 s61, 0\ns_cbranch_scc1 L_AMP')
        e('L_END2:')
        if 'amp' not in self.o: self.stamp('R.end')
        e('s_branch L_END')

    def role_T(self):
        e = self.e
        MX = QB; LX = QB+512; PB = QB+1024
        WO = 0; HB = 65536
        sT, s0, s1, s2_ = 72, 63, 64, 65
        e('L_T:')
        if self.o.get('noT'): e('s_branch L_END')
        e(f"""
        s_load_dword s{sE}, s[{pWS}:{pWS+1}], {EPOCH}
        s_lshl_b32 s{sT}, s{sX8}, 4
        s_add_u32 s{sT}, s{sT}, s{sR}
        s_lshl_b32 s66, s{sT}, 11
        s_add_u32 s66, s66, {SL}
        s_add_u32 s71, s66, {S_H4}
        s_cmp_eq_u32 s{sW}, 0
        s_cselect_b32 s66, s66, {WSSZ}
        s_add_u32 s70, s66, {LOC}
        v_mov_b32 v16, -1
        v_mov_b32 v17, -1
        v_mov_b32 v18, -1
        v_mov_b32 v19, -1
        v_and_b32 v12, 0x1ff, v3
        v_lshrrev_b32 v13, 5, v0
        v_lshl_add_u32 v12, v13, 20, v12
        buffer_store_dwordx4 v[16:19], v12, {srd(rWS)}, s66 offen sc1
        s_lshl_b32 s{s0}, s{sT}, 9
        s_add_u32 s{s0}, s{s0}, {QP+LOC}
        s_cmp_eq_u32 s{sW}, 1
        s_cselect_b32 s{s0}, s{s0}, {WSSZ}
        v_cmp_gt_u32 vcc, 32, v0
        v_cndmask_b32 v12, v9, v3, vcc
        buffer_load_dwordx4 v[200:203], v12, {srd(rWS)}, s{s0} offen nt
        """)
        if self.o.get('pf', 0) == 1: self.code_prefetch()
        if self.o.get('tw', 0): self.tlb_warm()
        if self.o.get('pf', 0) == 2:
            e(f's_cmp_eq_u32 s{sW}, 0\ns_cbranch_scc1 L_NOPF')
            e(f's_getpc_b64 s[20:21]\nL_PC:\ns_sub_u32 s20, s20, L_PC-{KN}\ns_subb_u32 s21, s21, 0')
            e(f's_mul_i32 s60, s{sR}, 3\ns_add_u32 s60, s60, s{sW}\ns_sub_u32 s60, s60, 1\ns_lshl_b32 s60, s60, 7')
            for i in range(3):
                e(f's_min_u32 s67, s60, L_EXIT-{KN}\ns_load_dword s7, s[20:21], s67')
                if i < 2: e(f's_add_u32 s60, s60, {48*128}')
            e('L_NOPF:')
        nwq = self.o.get('t_wq', 5)
        e(f's_add_u32 s61, s61, {(10-nwq)*4*32768}\ns_lshl_b32 s62, s{sW}, 13\ns_add_u32 s62, s62, {QB}\ns_mov_b32 m0, s62')
        for k in range(nwq):
            e(f'buffer_load_dwordx4 v8, {srd(rA)}, s61 offen nt lds')
            if k < nwq-1: e(f's_add_u32 s61, s61, {4*32768}')
        tsh, wsh, istr = self.kmap()
        e(f's_lshl_b32 s{s0}, s{sT}, {tsh}')
        self.mk_srd(rB, pCKV, s0, 16777216)
        e(f'v_lshl_add_u32 v52, v2, 10, v5\nv_xor_b32 v53, 0x80, v52\ns_lshl_b32 s68, s{sW}, {wsh}\ns_lshl_b32 s69, s{sW}, 13')
        def dma(n):
            c, i = n >> 3, n & 7
            e(f's_add_u32 m0, s69, {c*32768+i*1024}\ns_add_u32 s{sTMP}, s68, {i*istr+c*256}')
            e(f'buffer_load_dwordx4 v{52+(i&1)}, {srd(rB)}, s{sTMP} offen nt lds')
        n0 = self.o.get('n0', 2)
        thr = dict(self.o.get('t_throttle', []))
        for n in range(n0): dma(n)
        e(f's_cmp_lg_u32 s{sW}, 0\ns_cbranch_scc1 L_T_NOCNT\ns_waitcnt vmcnt({1+nwq+n0}) lgkmcnt(0)')
        self.tags()
        self.stamp('T.rst')
        e(f"""
        s_lshl_b32 s79, s{sX8}, 5
        s_add_u32 s79, s79, s{sR}
        s_lshl_b32 s79, s79, 2
        s_add_u32 s79, s79, {RDY}
        s_mov_b32 s78, s{sT0}
        s_atomic_swap s78, s[{pWS}:{pWS+1}], s79
        L_T_NOCNT:
        v_cmp_gt_u32 vcc, 16, v0
        v_cndmask_b32 v12, v9, v3, vcc
        buffer_load_dwordx4 v[204:207], v12, {srd(rWS)}, s70 offen sc1
        """)
        vm = [('d',n) for n in range(n0)] + ['pt']
        vKa, vQa, vVa = 24, 28, 32
        vPS, vRS, vMW, vMR, vPW, vPR, vQC, vLR = 40, 41, 42, 43, 44, 45, 46, 47
        vQS = 120
        pre = []
        pre.append(f'v_and_b32 v12, 7, v1\nv_lshlrev_b32 v12, 5, v12\nv_lshlrev_b32 v13, 10, v1\nv_lshlrev_b32 v14, 8, v1\nv_add_u32 v14, s69, v14\nv_add_u32 v13, {QB}, v13')
        for s3 in range(4):
            pre.append(f'v_add_u32 v15, {s3*64}, v11\nv_xor_b32 v15, v15, v12\nv_add_u32 v{vKa+s3}, v14, v15\nv_add_u32 v{vQa+s3}, v13, v15')
        pre.append(f"""
        v_lshrrev_b32 v13, 2, v0
        v_and_b32 v15, 7, v13
        v_lshlrev_b32 v13, 8, v13
        v_and_b32 v12, 3, v1
        v_lshl_add_u32 v13, v12, 3, v13
        s_lshl_b32 s{s2_}, s{sW}, 1
        v_xor_b32 v15, s{s2_}, v15
        v_lshl_add_u32 v{vVa}, v15, 5, v13
        v_xor_b32 v15, 1, v15
        v_lshl_add_u32 v{vVa+1}, v15, 5, v13
        v_add_u32 v{vVa+2}, 0x10000, v{vVa}
        v_add_u32 v{vVa+3}, 0x10000, v{vVa+1}
        v_lshlrev_b32 v12, 13, v2
        v_lshl_add_u32 v12, v1, 4, v12
        """)
        for i in range(8): pre.append(f'v_xor_b32 v{vQS+i}, {(i<<5) + (i&3)*2048}, v12')
        pre.append(f"""
        v_lshlrev_b32 v12, 6, v0
        v_lshl_add_u32 v12, v1, 2, v12
        v_add_u32 v{vQC}, s62, v12
        s_lshl_b32 s76, s{sW}, 16
        s_add_u32 s76, s76, {SL+S_QL}
        s_add_u32 s77, s76, 32768
        s_lshl_b32 s{s0}, s{sW}, 1
        s_cmp_eq_u32 s{s0}, s{sX8}
        s_cselect_b32 s{s1}, {LOC}, 0
        s_add_u32 s76, s76, s{s1}
        s_add_u32 s{s0}, s{s0}, 1
        s_cmp_eq_u32 s{s0}, s{sX8}
        s_cselect_b32 s{s1}, {LOC}, 0
        s_add_u32 s77, s77, s{s1}
        v_lshlrev_b32 v12, 19, v2
        v_lshl_add_u32 v12, v1, 4, v12
        s_lshl_b32 s{s2_}, s{sT}, 8
        s_lshl_b32 s{s0}, s{sW}, 15
        s_add_u32 s{s2_}, s{s2_}, s{s0}
        s_add_u32 s{s2_}, s{s2_}, {PART}
        v_add_u32 v{vPS}, s{s2_}, v12
        s_lshl_b32 s{s2_}, s{sT}, 11
        s_lshl_b32 s{s0}, s{sW}, 9
        s_add_u32 s{s2_}, s{s2_}, s{s0}
        s_add_u32 s{s2_}, s{s2_}, {REC}
        v_and_b32 v13, 1, v1
        v_lshrrev_b32 v12, 2, v0
        v_lshl_add_u32 v12, v13, 4, v12
        v_lshlrev_b32 v12, 4, v12
        v_add_u32 v{vLR}, {MX}, v12
        v_add_u32 v12, s{s2_}, v12
        v_and_b32 v13, 2, v1
        v_cmp_eq_u32 vcc, 0, v13
        v_cndmask_b32 v{vRS}, v9, v12, vcc
        v_lshrrev_b32 v12, 1, v2
        v_lshl_add_u32 v12, v12, 4, v1
        v_lshlrev_b32 v12, 4, v12
        s_lshl_b32 s{s2_}, s{sW}, 2
        s_add_u32 s{s2_}, s{s2_}, {MX}
        v_add_u32 v{vMW}, s{s2_}, v12
        v_lshlrev_b32 v12, 4, v1
        v_add_u32 v{vMR}, {MX}, v12
        v_add_u32 v22, s{s2_}, v12
        v_mov_b32 v38, 0x3e0293ee
        s_lshl_b32 s{s2_}, s{sW}, 11
        s_add_u32 s{s2_}, s{s2_}, {PB}
        v_add_u32 v{vPW}, s{s2_}, v3
        v_add_u32 v{vPR}, {PB}, v3
        s_and_b32 s{s0}, s{sW}, 1
        s_mul_i32 s{s0}, s{s0}, 640
        s_add_u32 s71, s71, s{s0}
        s_lshr_b32 s{s0}, s{sW}, 1
        s_lshl_b32 s{s0}, s{s0}, 20
        s_add_u32 s71, s71, s{s0}
        s_cmp_lt_u32 s{sT}, 116
        s_cselect_b32 s{s0}, 40, 0
        v_cmp_gt_u32 vcc, s{s0}, v0
        v_cndmask_b32 v20, v9, v3, vcc
        v_lshrrev_b32 v12, 3, v0
        v_lshrrev_b32 v13, 1, v12
        v_and_b32 v14, 1, v12
        v_lshl_add_u32 v13, v14, 4, v13
        v_mul_u32_u24 v13, 1280, v13
        v_and_b32 v14, 7, v0
        v_lshlrev_b32 v14, 4, v14
        v_and_b32 v12, 1, v2
        v_lshlrev_b32 v12, 5, v12
        v_xor_b32 v14, v14, v12
        v_add_u32 v36, v13, v14
        v_xor_b32 v14, 64, v14
        v_add_u32 v37, v13, v14
        s_lshl_b32 s73, s{sX8}, 2
        s_add_u32 s73, s73, s{sW}
        s_mul_i32 s73, s73, 163840
        s_lshl_b32 s{s1}, s{sR}, 7
        s_add_u32 s73, s73, s{s1}
        s_lshl_b32 s74, s{sW}, 14
        """)
        def qloads():
            for i in range(8):
                e(f's_add_u32 m0, s62, {i*1024}')
                e(f'buffer_load_dwordx4 v{vQS+i}, {srd(rWS)}, s{76+(i>>2)} offen sc1 lds')
        kdone = set()
        def younger(item): return len(vm) - 1 - vm.index(item)
        def kv(c):
            e(f's_waitcnt vmcnt({younger(("d",8*c+7))})')
            if c == 3: self.stamp('T.ckv')
            if c == 2:
                for s3 in range(4): e(f'v_add_u32 v{vKa+s3}, 0x10000, v{vKa+s3}')
            for s3 in range(4):
                for kt in range(2):
                    e(f'ds_read_b128 {a(((4*c+s3)*2+kt)*4,4)}, v{vKa+s3} offset:{(c&1)*32768+kt*4096}')
            kdone.add(c)
            e('s_barrier')
            for ks in range(4):
                for T2 in range(2):
                    for q in range(2):
                        e(f'ds_read_b64_tr_b16 {a(128+(ks*8+2*c+T2)*4+2*q,2)}, v{vVa+T2+2*(c>>1)} offset:{(c&1)*32768+ks*8192+q*4096}')
        qpos = self.o.get('qpos', 32); npre = self.o.get('npre', 4)
        klag = self.o.get('klag', 12)
        for n in range(n0, 33):
            if n == npre:
                for x in pre: e(x)
            if n == qpos - self.o.get('rdylead', 8):
                e(f's_lshl_b32 s75, s{sW}, 8\ns_add_u32 s75, s75, {RDY}')
                e(f's_load_dwordx8 s[8:15], s[{pWS}:{pWS+1}], s75\ns_load_dwordx4 s[20:23], s[{pWS}:{pWS+1}], s75 offset:32\ns_load_dwordx4 s[48:51], s[{pWS}:{pWS+1}], s75 offset:48')
                e(f's_load_dwordx8 s[24:31], s[{pWS}:{pWS+1}], s75 offset:128\ns_load_dwordx4 s[56:59], s[{pWS}:{pWS+1}], s75 offset:160\ns_load_dwordx2 s[16:17], s[{pWS}:{pWS+1}], s75 offset:176\ns_load_dwordx2 s[32:33], s[{pWS}:{pWS+1}], s75 offset:184')
            if n == qpos:
                e('s_waitcnt lgkmcnt(0)')
                self.tags()
                prs = [12,14,16] + list(range(20,34,2)) + [48,50,56,58]
                e('s_and_b64 s[60:61], s[8:9], s[10:11]\ns_or_b64 s[66:67], s[8:9], s[10:11]')
                for p in prs: e(f's_and_b64 s[60:61], s[60:61], s[{p}:{p+1}]\ns_or_b64 s[66:67], s[66:67], s[{p}:{p+1}]')
                e(f's_and_b32 s60, s60, s61\ns_or_b32 s66, s66, s67\ns_xor_b32 s60, s60, s{sT0}\ns_xor_b32 s66, s66, s{sT0}\ns_or_b32 s60, s60, s66')
                e('s_cbranch_scc0 L_T_RDYOK')
                e('v_and_b32 v12, 1, v2\nv_lshlrev_b32 v12, 7, v12\nv_lshl_add_u32 v12, v1, 2, v12')
                e('L_T_RDY:')
                self.timeout()
                e(f'buffer_load_dword v13, v12, {srd(rWS)}, s75 offen sc1\ns_waitcnt vmcnt(0)\nv_cmp_ne_u32 vcc, s{sT0}, v13\ns_cbranch_vccnz L_T_RDY')
                e('L_T_RDYOK:')
                self.stamp('T.qiss')
                e(f's_lshl_b32 s79, s{sT}, 7\ns_add_u32 s79, s79, {GATE}\ns_cmp_eq_u32 s{sW}, 0\ns_cselect_b32 s79, s79, {OOB}\nv_mov_b32 v39, s79\nv_mov_b32 v21, s{sT1}')
                qloads(); vm += [('q',i) for i in range(8)]
                if self.o.get('vw', 0):
                    e(f'v_and_b32 v12, 1, v0\nv_lshlrev_b32 v12, 21, v12\ns_mov_b32 s{sTMP}, {PART}\nbuffer_load_dword v13, v12, {srd(rWS)}, s{sTMP} offen'); vm.append('vw')
                self.mk_srd(rA, pWO, 73, 5242880)
                e(f's_cmp_lt_u32 s{sR}, 10\ns_cselect_b32 s{rA+2}, s{rA+2}, 0')
            if n < 32:
                dma(n); vm.append(('d',n))
                if n in thr: e(f's_waitcnt vmcnt({thr[n]})')
            for c in range(3):
                if c not in kdone and n >= npre and ('d',8*c+7) in vm and younger(('d',8*c+7)) >= klag and (c == 0 or c-1 in kdone): kv(c)
        self.stamp('T.issued')
        if self.o.get('gate') == 1:
            e(f'buffer_store_dword v21, v39, {srd(rWS)}, 0 offen'); vm.append('gate')
        if self.o.get('tonly'):
            e('s_waitcnt vmcnt(0)'); self.stamp('T.ckv0'); e('s_branch L_END')
        for c in range(4):
            if c not in kdone: kv(c)
        if self.o.get('gate') == 2:
            e(f'buffer_store_dword v21, v39, {srd(rWS)}, 0 offen'); vm.append('gate')
        e('s_branch L_T_Q1')
        e('L_T_Q0:')
        self.fb((), (76, 77)); e(f's_sleep {self.o.get("qsleep",1)}')
        qloads()
        e('L_T_Q1:')
        e(f's_waitcnt vmcnt(0)\nds_read_b32 v12, v{vQC}\nds_read_b32 v13, v{vQC} offset:4096\ns_waitcnt lgkmcnt(0)\nv_max_u32 v12, v12, v13\nv_cmp_eq_u32 vcc, -1, v12\ns_cbranch_vccnz L_T_Q0')
        self.stamp('T.qin')
        if self.o.get('gate') == 3:
            e(f'buffer_store_dword v21, v39, {srd(rWS)}, 0 offen'); vm.append('gate')
        e('s_barrier')
        self.stamp('T.Qbar')
        def wo_ops(i): return [f's_add_u32 m0, s74, {WO+i*1024}', f's_mov_b32 s{sTMP}, {(32*(i>>2)+4*(i&3))*1280}', f'buffer_load_dwordx4 v{36+(i&1)}, {srd(rA)}, s{sTMP} offen nt lds']
        nwe = self.o.get('wo_early', 10)
        vS = 48; vP = 76; vPF = 88; vAcc = 128; vO = 192
        def qreg(s, ht): return 128 + ht*64 + s*4
        def qread(s, ht): return f'ds_read_b128 {v(qreg(s,ht),4)}, v{vQa+(s&3)} offset:{(s>>2)*256+ht*16384}'
        def qk(s, kt, ht):
            d = v(vS+(kt*2+ht)*4,4)
            return f'v_mfma_f32_16x16x32_bf16 {d}, {a((s*2+kt)*4,4)}, {v(qreg(s,ht),4)}, ' + ('0' if s == 0 else d)
        def pv(ks, T, ht):
            d = v(vAcc+(ht*8+T)*4,4)
            return f'v_mfma_f32_16x16x32_bf16 {d}, {v(vPF+(ks*2+ht)*4,4)}, {a(128+(ks*8+T)*4,4)}, ' + ('0' if ks == 0 else d)
        def ver(s, ht): return f'v_max3_u32 v23, v23, v{qreg(s,ht)}, v{qreg(s,ht)+2}'
        def cost(x): return 2 if x.startswith('v_exp') else (0 if x.startswith('s_') else 1)
        def stream(mf, toks, bg):
            skip = 0
            for m in mf:
                e(m)
                b = 2
                if skip: skip -= 1
                else:
                    while toks:
                        t = toks[0]
                        if isinstance(t, tuple): skip = t[1]; toks.pop(0); break
                        if cost(t) > b: break
                        e(t); b -= cost(t); toks.pop(0)
                while bg and cost(bg[0]) <= b:
                    b -= cost(bg[0]); e(bg.pop(0))
            return toks
        def flush(toks):
            for t in toks:
                if not isinstance(t, tuple): e(t)
        D = 4
        for s in range(D): e(qread(s,0))
        e(f'v_mov_b32 v23, 0\nbuffer_store_dwordx4 v[16:19], v20, {srd(rWS)}, s71 offen sc1')
        rd = [(s,0) for s in range(D,16)] + [(s,1) for s in range(16)]
        issued = D
        wo = [wo_ops(i) for i in range(nwe)]
        for s in range(16):
            e(f's_waitcnt lgkmcnt({min(15, issued-1-s)})')
            if s == 15: e('s_barrier')
            for kt in range(2):
                e(qk(s,kt,0))
                if rd: e(qread(*rd.pop(0))); issued += 1
                if kt == 0: e(ver(s,0))
                elif wo: flush(wo.pop(0))
        self.stamp('T.QK0')
        def sm(ht):
            r0 = vS+ht*4; r1 = vS+8+ht*4; m = 64; t = 65; M = 66+ht; rb = 72
            a_ = [f'v_max3_f32 v{m}, v{r0}, v{r0+1}, v{r0+2}', f'v_max3_f32 v{t}, v{r1}, v{r1+1}, v{r1+2}', f'v_max3_f32 v{m}, v{m}, v{r0+3}, v{r1+3}', f'v_max_f32 v{m}, v{m}, v{t}',
                  f'v_mov_b32 v{t}, v{m}', ('gap',0), f'v_permlane32_swap_b32 v{m}, v{t}', f'v_max_f32 v{m}, v{m}, v{t}', f'v_mov_b32 v{t}, v{m}', ('gap',0),
                  f'v_permlane16_swap_b32 v{m}, v{t}', f'v_max_f32 v{m}, v{m}, v{t}', f'ds_write_b32 v22, v{m} offset:{ht*256}']
            b_ = ['s_waitcnt lgkmcnt(0)', 's_barrier', f'ds_read_b128 {v(rb,4)}, v{vMR} offset:{ht*256}']
            c_ = ['s_waitcnt lgkmcnt(0)', f'v_max3_f32 v{M}, v{rb}, v{rb+1}, v{rb+2}', f'v_max_f32 v{M}, v{M}, v{rb+3}', f'v_mul_f32 v{M}, v38, v{M}']
            for b in (r0, r1):
                for r in range(4): c_.append(f'v_fma_f32 v{b+r}, v{b+r}, v38, -v{M}')
            for b in (r0, r1):
                for r in range(4): c_.append(f'v_exp_f32 v{b+r}, v{b+r}')
            for k,b in enumerate((r0, r1)):
                c_ += [f'v_cvt_pk_bf16_f32 v{vP+ht*4+k*2}, v{b}, v{b+1}', f'v_cvt_pk_bf16_f32 v{vP+ht*4+k*2+1}, v{b+2}, v{b+3}']
            c_.append(f'ds_write_b128 v{vPW}, {v(vP+ht*4,4)} offset:{ht*1024}')
            d_ = ['s_waitcnt lgkmcnt(0)', 's_barrier'] + [f'ds_read_b128 {v(vPF+(ks*2+ht)*4,4)}, v{vPR} offset:{(ks*2+ht)*1024}' for ks in range(4)]
            return a_, b_, c_, d_
        g1 = self.o.get('g1', 2); g2 = self.o.get('g2', 2)
        a0,b0,c0,d0 = sm(0); a1_,b1,c1,d1 = sm(1)
        e('s_waitcnt lgkmcnt(0)')
        mf = [qk(s,kt,1) for s in range(16) for kt in range(2)]
        bg = [ver(s,1) for s in range(16)]
        left = stream(mf, [('gap',1)] + a0 + [('gap',g1)] + b0 + [('gap',g2)] + c0, bg)
        flush(left)
        self.stamp('T.QK')
        flush(bg)
        flush(a1_)
        e('v_cmp_eq_u32 vcc, -1, v23')
        flush(d0[:2])
        e('s_cbranch_vccnz L_T_Q0')
        flush(d0[2:] + b1[2:])
        self.stamp('T.Pbar')
        def lsum(ht, dst):
            r0 = vS+ht*4; r1 = vS+8+ht*4
            return [f'v_add_f32 v{r0}, v{r0}, v{r0+1}', f'v_add_f32 v{r0+2}, v{r0+2}, v{r0+3}', f'v_add_f32 v{r1}, v{r1}, v{r1+1}', f'v_add_f32 v{r1+2}, v{r1+2}, v{r1+3}',
                    f'v_add_f32 v{r0}, v{r0}, v{r0+2}', f'v_add_f32 v{r1}, v{r1}, v{r1+2}', f'v_add_f32 v{dst}, v{r0}, v{r1}']
        flush(lsum(0, 70))
        e('s_waitcnt lgkmcnt(4)')
        mf = [pv(ks,T,0) for ks in range(4) for T in range(8)]
        left = stream(mf, [('gap',0)] + c1 + lsum(1, 71) + [('gap',self.o.get('g3',0))] + d1, [])
        flush(left)
        self.stamp('T.pv4')
        def outops(ht):
            ops = []
            for r in range(4):
                o = vO + (ht*4+r)*4
                for k in range(4):
                    ops.append(f'v_cvt_pk_bf16_f32 v{o+k}, v{vAcc+(ht*8+2*k)*4+r}, v{vAcc+(ht*8+2*k+1)*4+r}')
                ops.append(f's_mov_b32 s{sTMP}, {(16*ht+r)*131072}')
                ops.append(f'buffer_store_dwordx4 {v(o,4)}, v{vPS}, {srd(rWS)}, s{sTMP} offen sc1')
            return ops
        e('s_waitcnt lgkmcnt(0)')
        mf = [pv(ks,T,1) for ks in range(4) for T in range(8)]
        cs = self.o.get('cs', 1)
        def csum(ht):
            c = 48 + 4*ht; y = 56 + 2*ht; z = 60 + ht
            ops = []
            for r in range(4):
                o = vO + (ht*4+r)*4
                ops.append([f'v_add3_u32 v{c+r}, v{o}, v{o+1}, v{o+2}', f'v_add_u32 v{c+r}, v{c+r}, v{o+3}'])
            red = [f'v_add_u32_dpp v{y}, v{c}, v{c} row_ror:8 row_mask:0xf bank_mask:0x3', f'v_add_u32_dpp v{y+1}, v{c+1}, v{c+1} row_ror:8 row_mask:0xf bank_mask:0x3',
                   f'v_add_u32_dpp v{y}, v{c+2}, v{c+2} row_ror:8 row_mask:0xf bank_mask:0xc', f'v_add_u32_dpp v{y+1}, v{c+3}, v{c+3} row_ror:8 row_mask:0xf bank_mask:0xc',
                   f'v_add_u32_dpp v{z}, v{y}, v{y} row_shl:4 row_mask:0xf bank_mask:0x5', f'v_add_u32_dpp v{z}, v{y+1}, v{y+1} row_shr:4 row_mask:0xf bank_mask:0xa',
                   f'v_add_u32_dpp v{z}, v{z}, v{z} quad_perm:[1,0,3,2] {DPP}', f'v_add_u32_dpp v{z}, v{z}, v{z} quad_perm:[2,3,0,1] {DPP}']
            return ops, red
        def out_cs(ht):
            if not cs: return outops(ht)
            o = outops(ht); l, red = csum(ht); res = []
            for r in range(4): res += o[6*r:6*r+6] + l[r]
            return res + red
        ltail = ['v_permlane32_swap_b32 v70, v71','v_add_f32 v70, v70, v71','v_mov_b32 v71, v70', f'ds_read_b128 v[76:79], v{vLR}', 'v_permlane16_swap_b32 v70, v71','v_add_f32 v70, v70, v71',
                 f'ds_write_b32 v{vMW}, v70 offset:512', 'v_and_b32 v71, 1, v1']
        recops = ['s_waitcnt lgkmcnt(0)', 's_barrier', f'ds_read_b128 v[72:75], v{vLR} offset:512', 'v_max3_f32 v84, v76, v77, v78', 'v_max_f32 v84, v84, v79', 'v_mul_f32 v84, v38, v84',
                  f'v_mov_b32 v86, s{sT0}', f'v_mov_b32 v87, s{sT0 if cs else sT1}', 'v_cmp_eq_u32 vcc, 1, v71', ('gap',1), 's_waitcnt lgkmcnt(0)', 'v_add_f32 v72, v72, v73', 'v_add_f32 v74, v74, v75', 'v_add_f32 v85, v72, v74']
        left = stream(mf, ltail + out_cs(0) + recops, [])
        flush(left)
        self.stamp('T.pv8')
        flush(out_cs(1))
        if cs: e('v_cndmask_b32 v86, v60, v61, vcc\nv_sub_u32 v86, 0, v86')
        self.stamp('T.PVst')
        rw = self.o.get('recwait', None if cs else 0)
        e(f's_waitcnt vmcnt({nwe+8 if rw is None else rw})')
        self.pub('v[84:87]', vRS)
        self.stamp('T.rec')
        e(f's_cmp_ge_u32 s{sR}, 10\ns_cbranch_scc1 L_END')
        for i in range(nwe, 16): flush(wo_ops(i))
        e(f"""
        v_lshrrev_b32 v12, 2, v1
        v_lshl_add_u32 v12, v2, 3, v12
        v_lshlrev_b32 v12, 7, v12
        v_and_b32 v13, 3, v1
        v_lshl_add_u32 v12, v13, 3, v12
        v_lshrrev_b32 v14, 3, v1
        v_and_b32 v15, 1, v2
        v_lshl_or_b32 v14, v15, 1, v14
        v_xor_b32 v14, s{sW}, v14
        v_lshl_add_u32 v24, v14, 5, v12
        v_mul_u32_u24 v13, 320, v13
        v_add_u32 v13, v13, v11
        v_add_u32 v25, {HB}, v13
        v_mul_u32_u24 v12, 320, v2
        v_lshl_add_u32 v12, v1, 4, v12
        s_mul_i32 s{s0}, s{sW}, 1280
        s_add_u32 s{s0}, s{s0}, {HB}
        v_add_u32 v26, s{s0}, v12
        v_lshlrev_b32 v12, 4, v1
        v_lshl_add_u32 v27, v2, 13, v12
        s_lshl_b32 s75, s{sX8}, 4
        s_add_u32 s75, s75, s{sW}
        s_lshl_b32 s75, s75, 11
        s_add_u32 s75, s75, {SL+S_HC+LOC}
        s_and_b32 s75, s75, s{sLM}
        s_lshl_b32 s{s0}, s{sX8}, 11
        s_lshl_b32 s{s1}, s{sR}, 7
        s_add_u32 s{s0}, s{s0}, s{s1}
        s_lshl_b32 s{s1}, s{sW}, 5
        s_add_u32 s{s0}, s{s0}, s{s1}
        s_add_u32 s{s0}, s{s0}, {H3B}
        v_lshlrev_b32 v12, 1, v0
        v_add_u32 v12, s{s0}, v12
        v_cmp_gt_u32 vcc, 16, v0
        v_cndmask_b32 v28, v9, v12, vcc
        s_waitcnt vmcnt(0)
        s_barrier
        """)
        self.stamp('C.land')
        for st_ in range(16):
            for q in range(2): e(f'ds_read_b64_tr_b16 {a(st_*4+2*q,2)}, v24 offset:{WO+st_*4096+q*512}')
        e('L_C_HC:')
        e(f'buffer_load_dwordx4 v[76:79], v27, {srd(rWS)}, s75 offen sc1')
        e('s_waitcnt vmcnt(0)')
        e('ds_write_b128 v26, v[76:79]')
        self.maxchain(12, range(76,80))
        e('v_cmp_eq_u32 vcc, -1, v12')
        self.retry('L_C_HC', sleep=0, sregs=(75,))
        self.stamp('C.hcin')
        e('s_waitcnt lgkmcnt(0)\ns_barrier')
        self.stamp('C.bar')
        NP = 8
        def ar(st_): return f'ds_read_b128 {v(128+4*st_,4)}, v25 offset:{(st_>>2)*1280+(st_&3)*64}'
        for st_ in range(NP): e(ar(st_))
        for st_ in range(16):
            e(f's_waitcnt lgkmcnt({min(NP-1, 15-st_)})')
            e(f'v_mfma_f32_16x16x32_bf16 v[104:107], {v(128+4*st_,4)}, {a(st_*4,4)}, ' + ('0' if st_ == 0 else 'v[104:107]'))
            if st_+NP < 16: e(ar(st_+NP))
        e('v_pk_add_f32 v[104:105], v[104:105], v[106:107]\nv_add_f32 v104, v104, v105\nv_cvt_pk_bf16_f32 v104, v104, v104\nv_min_u32 v104, -2, v104')
        e(f'buffer_store_short v104, v28, {srd(rWS)}, 0 offen sc1\nbuffer_store_short v104, v28, {srd(rWS)}, s{sLOC} offen')
        self.stamp('C.h3')

    def epilogue(self):
        e = self.e
        e('L_END:')
        if 'amp2' in self.o:
            k = self.idx[self.o['amp2']]
            e(f's_waitcnt lgkmcnt(0)\ns_cmp_eq_u32 s{sSTAMP+2*k}, 0\ns_cbranch_scc1 L_EXIT')
            if 'ampwg' in self.o: e(f's_cmp_lg_u32 s2, {self.o["ampwg"]}\ns_cbranch_scc1 L_EXIT')
            e(f's_sub_u32 s60, s{sSTAMP+2*k}, s{sSTAMP}\ns_lshl_b32 s60, s60, 3\ns_add_u32 s60, s60, s{sSTAMP}')
            e('L_AMP2:\ns_sleep 4\ns_memrealtime s[62:63]\ns_waitcnt lgkmcnt(0)\ns_sub_u32 s61, s62, s60\ns_cmp_lt_i32 s61, 0\ns_cbranch_scc1 L_AMP2')
        if self.stamps and 'amp' not in self.o and 'amp2' not in self.o:
            e(f's_waitcnt lgkmcnt(0)\ns_lshl_b32 s60, s2, 2\ns_add_u32 s60, s60, s{sW}\ns_lshl_b32 s60, s60, 6\ns_add_u32 s60, s60, {STAMP}\nv_mov_b32 v4, 0')
            for k in range(11): e(f'v_mov_b32 v5, s{sSTAMP+2*k}\nbuffer_store_dword v5, v4, {srd(rWS)}, s60 offen offset:{4*k}')
            e(f'v_mov_b32 v5, s{sTO}\nbuffer_store_dword v5, v4, {srd(rWS)}, s60 offen offset:44')
        e('L_EXIT:')

    def build(self):
        if self.stamps:
            for k in range(1,11): self.e(f's_mov_b32 s{sSTAMP+2*k}, 0')
        self.prologue(); self.role_A(); self.role_T(); self.epilogue()
        hdr = open('header.txt').read()
        return f'''{hdr}; @launch grid=(256,1,1) block=(256,1,1) lds=163840
.amdgcn_target "amdgcn-amd-amdhsa--gfx950"
.text
.globl {KN}
.p2align 8
.type {KN},@function
{KN}:
{self.e.text()}
s_endpgm
.section .rodata,"a"
.p2align 6
.amdhsa_kernel {KN}
  .amdhsa_next_free_vgpr 512
  .amdhsa_next_free_sgpr 102
  .amdhsa_accum_offset 256
  .amdhsa_group_segment_fixed_size 0
  .amdhsa_kernarg_size 112
  .amdhsa_user_sgpr_count 2
  .amdhsa_user_sgpr_kernarg_segment_ptr 1
  .amdhsa_system_sgpr_workgroup_id_x 1
.end_amdhsa_kernel
'''

if __name__ == '__main__':
    import json
    out = sys.argv[1]; stamps = len(sys.argv) > 2 and sys.argv[2] == '1'
    opt = json.loads(sys.argv[3]) if len(sys.argv) > 3 else {}
    open(out,'w').write(G(stamps, opt).build())
```

```python
import sys
sys.path.insert(0,'work')
from dsl import Asm
NAME = 'sequential_preLN__compressed_kv_cla__dense_activation_squared_relu__decode'
KN = NAME + '_kernel'

EPOCH=0; RDY=0x1000; GATE=0x2000; QP=0x8000; SL=0x40000; REC=0x80000; LOC=0x100000; PART=0x200000; STAMP=0x600000
S_QL=0; S_HC=256; S_H4=512; H3B = SL + 108*2048 + S_H4
WSSZ=0x700000
OOB=0x7ffffff0
NLOC=96
sLM,sLC,sLOC,sTMP = 3,4,5,6
pX,pCKV,pWQ,pWUK,pWUV,pWO,pBX,pW1,pB1,pW2,pB2,pOUT,pDBG,pWS = [8+2*i for i in range(14)]
sW,sX8,sR,sE,sT0,sT1,sTO,sC = 36,37,38,39,40,41,42,43
rWS=44; rA=48; rB=52; rC=56
sSTAMP=80
def srd(r): return f's[{r}:{r+3}]'
def v(n,c=1): return f'v{n}' if c==1 else f'v[{n}:{n+c-1}]'
def a(n,c=1): return f'a{n}' if c==1 else f'a[{n}:{n+c-1}]'
DPP='row_mask:0xf bank_mask:0xf'
QB = 131072
WQ = 69632; XN = 110592

class G:
    def __init__(self, stamps=False, opt=None):
        self.e = Asm(); self.stamps = stamps; self.o = opt or {}
        self.slots = {'A':['start'],'T':['start'],'R':[]}; self.idx = {}; self.tbase = 1
    def stamp(self, name):
        if not self.stamps: return
        role = name.split('.')[0]
        lst = self.slots['A' if role in 'AFR' else 'T']
        want = self.o.get('want')
        if name == 'start': k = 0
        else:
            if want is not None and name not in want: return
            if role == 'R':
                k = self.tbase + len(self.slots['R']); self.slots['R'].append(name)
            else:
                k = len(lst); lst.append(name)
                if role == 'A': self.tbase = len(lst)
            if k > 10: raise Exception('too many stamps '+name)
        self.idx[name] = k
        op = 's_memtime' if self.o.get('cyc') else 's_memrealtime'
        self.e(f'{op} s[{sSTAMP+2*k}:{sSTAMP+2*k+1}]')
        if name in self.o.get('cut', []): self.e('s_branch L_END')
    def mk_srd(self, r, ptr, off_sgpr, size):
        e = self.e
        if off_sgpr is None:
            e(f's_mov_b32 s{r}, s{ptr}\ns_and_b32 s{r+1}, s{ptr+1}, 0xffff\ns_mov_b32 s{r+2}, {size}')
        else:
            e(f's_add_u32 s{r}, s{ptr}, s{off_sgpr}\ns_addc_u32 s{r+1}, s{ptr+1}, 0\ns_and_b32 s{r+1}, s{r+1}, 0xffff\ns_sub_u32 s{r+2}, {size}, s{off_sgpr}')
        e(f's_mov_b32 s{r+3}, 0x20000')
    def allred(self, op, x, t, steps16=4):
        e = self.e
        pats = ['quad_perm:[1,0,3,2]','quad_perm:[2,3,0,1]','row_half_mirror','row_mirror'][:steps16]
        for p in pats: e(f'{op}_dpp v{x}, v{x}, v{x} {p} {DPP}')
        e(f'v_mov_b32 v{t}, v{x}\nv_permlane16_swap_b32 v{x}, v{t}\n{op} v{x}, v{x}, v{t}')
        e(f'v_mov_b32 v{t}, v{x}\nv_permlane32_swap_b32 v{x}, v{t}\n{op} v{x}, v{x}, v{t}')
    def timeout(self):
        self.e(f's_sub_u32 s{sTO}, s{sTO}, 1\ns_cmp_eq_u32 s{sTO}, 0\ns_cbranch_scc1 L_END')
    def fb(self, vregs=(), sregs=()):
        e = self.e
        self.timeout()
        e(f's_add_u32 s{sLC}, s{sLC}, 1\ns_cmp_ge_u32 s{sLC}, {NLOC}\ns_cselect_b32 s{sLM}, {(~LOC)&0xffffffff}, s{sLM}')
        self.lmask(vregs, sregs)
    def lmask(self, vregs=(), sregs=()):
        for r in vregs: self.e(f'v_and_b32 v{r}, s{sLM}, v{r}')
        for r in sregs: self.e(f's_and_b32 s{r}, s{r}, s{sLM}')
    def stop(self, data):
        if '[' not in data: return 'buffer_store_dword'
        lo, hi = data[2:-1].split(':'); return f'buffer_store_dwordx{int(hi)-int(lo)+1}'
    def publ(self, data, voff): self.e(f'{self.stop(data)} {data}, v{voff}, {srd(rWS)}, s{sLOC} offen')
    def pubg(self, data, voff): self.e(f'{self.stop(data)} {data}, v{voff}, {srd(rWS)}, 0 offen sc1')
    def pub(self, data, voff): self.pubg(data, voff); self.publ(data, voff)
    def late_pubg(self, data, voff):
        e = self.e; l = e.newlabel('Lnp')
        e(f's_cmp_eq_u32 s{sLM}, -1\ns_cbranch_scc1 {l}'); self.pubg(data, voff); e(f'{l}:')
    def retry(self, label, sleep=1, vregs=(), sregs=(), late=None):
        e = self.e
        ok = e.newlabel('Lok')
        e(f's_cbranch_vccz {ok}')
        self.fb(vregs, sregs)
        if late: self.late_pubg(*late)
        if sleep: e(f's_sleep {sleep}')
        e(f's_branch {label}')
        e(f'{ok}:')
    def maxchain(self, dst, regs):
        e = self.e
        regs = list(regs)
        e(f'v_max3_u32 v{dst}, v{regs[0]}, v{regs[1]}, v{regs[2]}'); regs = regs[3:]
        while len(regs) >= 2:
            e(f'v_max3_u32 v{dst}, v{dst}, v{regs[0]}, v{regs[1]}'); regs = regs[2:]
        if regs: e(f'v_max_u32 v{dst}, v{dst}, v{regs[0]}')
    def tagcheck(self, dst, pairs):
        e = self.e; rs = []
        for r in pairs:
            e(f'v_xor_b32 v{r}, s{sT0}, v{r}\nv_xor_b32 v{r+1}, s{sT1}, v{r+1}'); rs += [r, r+1]
        if len(rs) == 2: e(f'v_or_b32 v{dst}, v{rs[0]}, v{rs[1]}')
        else:
            e(f'v_or3_b32 v{dst}, v{rs[0]}, v{rs[1]}, v{rs[2]}'); rs = rs[3:]
            while len(rs) >= 2: e(f'v_or3_b32 v{dst}, v{dst}, v{rs[0]}, v{rs[1]}'); rs = rs[2:]
            if rs: e(f'v_or_b32 v{dst}, v{dst}, v{rs[0]}')
        e(f'v_cmp_ne_u32 vcc, 0, v{dst}')
    def ident_masks(self, dst, val_lo, val_hi, first, n, t):
        e = self.e
        e(f'v_and_b32 v{t}, 1, v1\nv_cmp_eq_u32 vcc, 1, v{t}\nv_mov_b32 v{t}, {val_lo}\nv_mov_b32 v{t+1}, {val_hi}\nv_cndmask_b32 v{t}, v{t}, v{t+1}, vcc')
        e(f'v_lshrrev_b32 v{t+1}, 1, v1')
        for r in range(n):
            e(f'v_cmp_eq_u32 vcc, {first+r}, v{t+1}\nv_cndmask_b32 v{dst+r}, 0, v{t}, vcc')
    def red_final(self, RED, t, va, clamp):
        e = self.e
        for w in range(4): e(f'ds_read_b128 {v(t+4+4*w,4)}, v{va} offset:{RED+256*w}')
        e('s_waitcnt lgkmcnt(2)')
        for i in range(2): e(f'v_pk_add_f32 {v(t+4+2*i,2)}, {v(t+4+2*i,2)}, {v(t+8+2*i,2)}')
        e('s_waitcnt lgkmcnt(0)')
        for i in range(2): e(f'v_pk_add_f32 {v(t+12+2*i,2)}, {v(t+12+2*i,2)}, {v(t+16+2*i,2)}')
        for i in range(2): e(f'v_pk_add_f32 {v(t+4+2*i,2)}, {v(t+4+2*i,2)}, {v(t+12+2*i,2)}')
        for i in range(2): e(f'v_cvt_pk_bf16_f32 v{t+i}, v{t+4+2*i}, v{t+5+2*i}')
        if clamp:
            for i in range(2): e(f'v_min_u32 v{t+i}, -2, v{t+i}')
    def code_prefetch(self):
        e = self.e
        npl = self.o.get('npl', 3)
        e(f's_getpc_b64 s[20:21]\nL_PC:\ns_sub_u32 s20, s20, L_PC-{KN}\ns_subb_u32 s21, s21, 0')
        e(f's_and_b32 s22, s{sR}, 15\ns_lshl_b32 s22, s22, 2\ns_add_u32 s22, s22, s{sW}\ns_lshl_b32 s22, s22, 7')
        for i in range(npl):
            e(f's_min_u32 s23, s22, L_EXIT-{KN}\ns_load_dword s7, s[20:21], s23')
            if i < npl-1: e(f's_add_u32 s22, s22, 8192')
    def kmap(self):
        k = self.o.get('kil', 0)
        if k == 0: return 17, 15, 4096
        if k == 1: return 12, 22, 1 << 19
        if k == 2: return 12, 19, 1 << 21
        if k == 3: return 14, 12, 1 << 21
        if k == 4: return 15, 22, 4096
    def tlb_warm(self):
        e = self.e
        M = 1 << 21
        lists = {1: [(pWUK,0),(pWUK,M),(pWS,PART),(pWS,PART+M),(pWUV,0),(pWUV,M)],
                 2: [(pW1,0),(pW1,M),(pW2,0),(pW2,M),(pB1,0),(pB2,0)],
                 3: [(pWO,0),(pWO,M),(pWO,2*M),(pOUT,0)]}
        for w,l in lists.items():
            e(f's_cmp_lg_u32 s{sW}, {w}\ns_cbranch_scc1 L_TW{w}')
            for p,off in l:
                if off: e(f's_mov_b32 s60, {off}\ns_load_dword s7, s[{p}:{p+1}], s60')
                else: e(f's_load_dword s7, s[{p}:{p+1}], 0')
            e(f'L_TW{w}:')
    def tags(self):
        self.e(f's_add_u32 s{sT0}, s{sE}, 0x9e3779b9\ns_xor_b32 s{sT1}, s{sT0}, 0x5bd1e995')

    def prologue(self):
        e = self.e
        self.stamp('start')
        e(f'''
        s_cmp_ge_u32 s2, 256
        s_cbranch_scc1 L_EXIT
        s_load_dwordx16 s[8:23], s[0:1], 0
        s_load_dwordx4 s[32:35], s[0:1], 96
        s_load_dwordx8 s[24:31], s[0:1], 64
        v_lshrrev_b32 v1, 6, v0
        v_and_b32 v0, 63, v0
        v_readfirstlane_b32 s{sW}, v1
        v_and_b32 v1, 15, v0
        v_lshrrev_b32 v2, 4, v0
        v_lshlrev_b32 v3, 4, v0
        v_lshlrev_b32 v4, 2, v0
        s_and_b32 s{sX8}, s2, 7
        s_lshr_b32 s{sR}, s2, 3
        v_lshlrev_b32 v5, 4, v1
        v_lshlrev_b32 v6, 5, v2
        v_xor_b32 v5, v5, v6
        v_lshl_add_u32 v6, v2, 13, v5
        s_lshr_b32 s67, s{sW}, 1
        s_lshl_b32 s67, s67, 7
        v_xor_b32 v8, s67, v6
        v_mov_b32 v9, {OOB}
        v_lshlrev_b32 v11, 4, v2
        s_bfe_u32 s60, s{sR}, 0x20002
        s_mul_i32 s60, s60, {160*8192}
        s_and_b32 s63, s{sR}, 3
        s_lshl_b32 s64, s{sX8}, 2
        s_add_u32 s63, s63, s64
        s_lshl_b32 s63, s63, 8
        s_add_u32 s60, s60, s63
        s_lshl_b32 s61, s{sW}, 15
        s_lshl_b32 s62, s{sW}, 10
        s_add_u32 s62, s62, {WQ}
        s_mov_b32 s{rA+3}, 0x20000
        s_mov_b32 s{rC+3}, 0x20000
        s_mov_b32 s{rC+2}, 1280
        s_sub_u32 s{rA+2}, 5242880, s60
        s_mov_b32 s{sTO}, 400000
        s_mov_b32 s{sLM}, -1
        s_mov_b32 s{sLC}, 0
        s_mov_b32 s{sLOC}, {LOC}
        s_mov_b32 s{rWS+2}, {WSSZ}
        s_mov_b32 s{rWS+3}, 0x20000
        s_waitcnt lgkmcnt(0)
        s_add_u32 s{rA}, s{pWQ}, s60
        s_addc_u32 s{rA+1}, s{pWQ+1}, 0
        s_and_b32 s{rA+1}, s{rA+1}, 0xffff
        s_mov_b32 s{rC}, s{pX}
        s_and_b32 s{rC+1}, s{pX+1}, 0xffff
        s_mov_b32 s{rWS}, s{pWS}
        s_and_b32 s{rWS+1}, s{pWS+1}, 0xffff
        s_cmp_lt_u32 s{sR}, 16
        s_cbranch_scc1 L_T
        ''')
    def x_issue(self):
        for kk in range(5): self.e(f'buffer_load_dword v{20+kk}, v4, {srd(rC)}, 0 offen offset:{256*kk} {self.o.get("xflag","")}')
    def wq_dma(self, k):
        e = self.e
        e(f's_add_u32 m0, s62, {k*4096}')
        e(f'buffer_load_dwordx4 v8, {srd(rA)}, s61 offen nt lds')
        if k < 9: e(f's_add_u32 s61, s61, {4*32768}')
    def wuk_setup(self, sAi, srdreg):
        e = self.e
        e(f'''
        s_lshl_b32 s63, s{sX8}, 2
        s_add_u32 s64, s63, s{sW}
        s_lshl_b32 s64, s64, 8
        s_lshl_b32 s65, s{sAi}, 18
        s_add_u32 s64, s64, s65
        ''')
        self.mk_srd(srdreg, pWUK, 64, 4194304)
        e(f'v_xor_b32 v7, 0x80, v6\ns_mov_b32 s68, 0\ns_lshl_b32 s69, s{sW}, 13')
    def wuk_dma(self, k, srdreg, base):
        e = self.e
        e(f's_add_u32 m0, s69, {base+k*1024}')
        e(f'buffer_load_dwordx4 v{6 if ((k>>1)&1)==0 else 7}, {srd(srdreg)}, s68 offen nt lds')
        if k < 7: e(f's_add_u32 s68, s68, 32768')
    def a1(self, role, y_x, y_wq, mid):
        e = self.e
        s0, s1 = 63, 64
        e(f'''
        v_lshrrev_b32 v12, 2, v1
        v_lshl_add_u32 v13, v2, 3, v12
        v_lshlrev_b32 v13, 8, v13
        v_and_b32 v14, 3, v1
        v_lshl_add_u32 v13, v14, 3, v13
        v_and_b32 v15, 1, v2
        v_lshl_or_b32 v15, v15, 2, v12
        s_lshl_b32 s{s0}, s{sW}, 1
        v_xor_b32 v15, s{s0}, v15
        v_lshl_add_u32 v60, v15, 5, v13
        v_xor_b32 v15, 1, v15
        v_lshl_add_u32 v61, v15, 5, v13
        v_add_u32 v56, {WQ}, v60
        v_add_u32 v57, {WQ}, v61
        ''')
        e(f'''
        v_lshl_add_u32 v12, v1, 6, v11
        s_and_b32 s{s0}, s{sR}, 3
        s_lshl_b32 s{s1}, s{sX8}, 2
        s_add_u32 s{s0}, s{s0}, s{s1}
        s_lshl_b32 s{s0}, s{s0}, 2
        s_bfe_u32 s{s1}, s{sR}, 0x20002
        s_add_u32 s{s0}, s{s0}, s{s1}
        s_lshl_b32 s{s0}, s{s0}, 9
        s_lshl_b32 s{s1}, s{sW}, 7
        s_add_u32 s{s0}, s{s0}, s{s1}
        s_add_u32 s{s0}, s{s0}, {QP}
        v_add_u32 v12, s{s0}, v12
        v_cmp_gt_u32 vcc, 2, v1
        v_cndmask_b32 v62, v9, v12, vcc
        v_cmp_eq_u32 s[70:71], 1, v1
        s_mul_i32 s{s0}, s{sW}, 1280
        s_add_u32 s{s0}, s{s0}, {XN}
        v_add_u32 v10, s{s0}, v4
        s_bfe_u32 s{s1}, s{sR}, 0x20002
        s_mul_i32 s{s1}, s{s1}, 320
        s_add_u32 s{s0}, s{s0}, s{s1}
        v_add_u32 v12, s{s0}, v11
        s_waitcnt vmcnt({y_x}) lgkmcnt(0)
        ''')
        self.stamp(role+'.x')
        for k in range(5): e(f'v_lshlrev_b32 v{26+2*k}, 16, v{20+k}\nv_and_b32 v{27+2*k}, 0xffff0000, v{20+k}')
        e('v_pk_add_f32 v[36:37], v[26:27], v[28:29]\nv_pk_add_f32 v[38:39], v[30:31], v[32:33]\nv_pk_add_f32 v[36:37], v[36:37], v[34:35]\nv_pk_add_f32 v[36:37], v[36:37], v[38:39]\nv_add_f32 v36, v36, v37')
        self.allred('v_add_f32', 36, 37)
        e('v_mul_f32 v36, 0xbacccccd, v36\nv_mov_b32 v37, v36')
        for k in range(26,36,2): e(f'v_pk_add_f32 {v(k,2)}, {v(k,2)}, v[36:37]')
        e('v_pk_mul_f32 v[36:37], v[26:27], v[26:27]')
        for k in range(28,36,2): e(f'v_pk_fma_f32 v[36:37], {v(k,2)}, {v(k,2)}, v[36:37]')
        e('v_add_f32 v36, v36, v37')
        self.allred('v_add_f32', 36, 37)
        e('v_mul_f32 v36, 0x3acccccd, v36\nv_add_f32 v36, 0x3727c5ac, v36\nv_rsq_f32 v36, v36\nv_mov_b32 v37, v36')
        for k in range(26,36,2): e(f'v_pk_mul_f32 {v(k,2)}, {v(k,2)}, v[36:37]')
        for k in range(5): e(f'v_cvt_pk_bf16_f32 v{20+k}, v{26+2*k}, v{27+2*k}\nds_write_b32 v10, v{20+k} offset:{256*k}')
        e('s_waitcnt lgkmcnt(0)')
        for s in range(5): e(f'ds_read_b128 {v(36+4*s,4)}, v12 offset:{s*64}')
        e(f's_load_dword s{sE}, s[{pWS}:{pWS+1}], {EPOCH}')
        self.stamp(role+'.ln')
        mid()
        e('s_waitcnt lgkmcnt(0)')
        self.tags()
        e(f'v_mov_b32 v18, s{sT0}\nv_mov_b32 v19, s{sT1}')
        e(f's_waitcnt vmcnt({y_wq})\ns_barrier')
        self.stamp(role+'.wq')
        vW = 128
        for s in range(5):
            for T in range(2):
                for q in range(2): e(f'ds_read_b64_tr_b16 {v(vW+(s*2+T)*4+2*q,2)}, v{56+T} offset:{s*8192+q*1024}')
        for s in range(5):
            for T in range(2):
                e(f's_waitcnt lgkmcnt({min(15,18-(s*2+T)*2)})')
                e(f'v_mfma_f32_16x16x32_bf16 {v(84+4*T,4)}, {v(vW+(s*2+T)*4,4)}, {v(36+4*s,4)}, ' + ('0' if s==0 else v(84+4*T,4)))
        for i in range(4): e(f'v_cvt_pk_bf16_f32 v{92+i}, v{84+2*i}, v{85+2*i}')
        e('v_cndmask_b32 v16, v92, v94, s[70:71]\nv_cndmask_b32 v17, v93, v95, s[70:71]')
        self.publ('v[16:19]', 62)
        self.stamp(role+'.qp')


    def role_A(self):
        e = self.e
        QV=0; CL=1024; ML=2304; RED=2560; DUM=3584; WUK=4096; WUV=36864
        W1=69632; W2=W1+20480; HB=4096; AP=HB+2048; ST=AP+256; HELP=135168
        sAi,sHd,sJ,s0,s1,s2_,sSL = 72,73,74,63,64,65,66
        sF,sG = 60,61
        if self.o.get('noA'): e('s_branch L_END')
        order = self.o.get('a_order', 'qqqqqqqqqq|uuuuuuuu')
        cnt = {'q':0,'u':0}
        def issue(ch):
            if ch == 'q': self.wq_dma(cnt['q'])
            else:
                if cnt['u'] == 0: self.wuk_setup(sAi, rB)
                self.wuk_dma(cnt['u'], rB, WUK)
            cnt[ch] += 1
        e(f's_sub_u32 s{sAi}, s{sR}, 16')
        self.x_issue()
        o1, o2 = order.split('|')
        for ch in o1: issue(ch)
        e(f"""
        s_lshl_b32 s63, s{sX8}, 2
        s_and_b32 s{sHd}, s{sAi}, 3
        s_add_u32 s{sHd}, s{sHd}, s63
        s_lshr_b32 s{sJ}, s{sAi}, 2
        s_lshl_b32 s{sSL}, s{sX8}, 4
        s_add_u32 s{sSL}, s{sSL}, s{sAi}
        """)
        def mid():
            for ch in o2: issue(ch)
        full = o1 + o2
        self.a1('A', len(o1), len(full)-1-full.rindex('q'), mid)
        e(f"""
        s_lshl_b32 s75, s{sX8}, 5
        s_and_b32 s{s1}, s{sAi}, 12
        s_add_u32 s75, s75, s{s1}
        s_add_u32 s75, s75, s{sW}
        s_lshl_b32 s75, s75, 2
        s_add_u32 s75, s75, {RDY}
        s_load_dword s76, s[{pWS}:{pWS+1}], s75
        v_lshlrev_b32 v27, 9, v2
        v_lshl_add_u32 v27, v1, 4, v27
        s_lshl_b32 s{s2_}, s{sX8}, 2
        s_add_u32 s{s2_}, s{s2_}, s{sW}
        s_lshl_b32 s{s2_}, s{s2_}, 11
        s_add_u32 s{s2_}, s{s2_}, {QP+LOC}
        v_lshlrev_b32 v12, 9, v1
        s_lshl_b32 s{s0}, s{sW}, 13
        s_add_u32 s{s0}, s{s0}, {WUK}
        v_add_u32 v12, s{s0}, v12
        v_and_b32 v13, 1, v1
        v_and_b32 v14, 4, v1
        v_lshl_or_b32 v13, v13, 1, v14
        v_lshlrev_b32 v13, 5, v13
        """)
        def h0loads():
            for i in range(2): e(f'buffer_load_dwordx4 {v(64+4*i,4)}, v27, {srd(rWS)}, s{s2_} offen offset:{i*256} sc1')
        for s in range(4):
            e(f'v_add_u32 v14, {s*64}, v11\nv_xor_b32 v14, v14, v13\nv_add_u32 v{40+2*s}, v14, v12\nv_xor_b32 v14, 32, v14\nv_add_u32 v{41+2*s}, v14, v12')
        vI = 28
        self.ident_masks(vI, 0x3f80, 0x3f800000, 0, 8, 12)
        e(f"""
        s_lshl_b32 s{s0}, s{sW}, 8
        v_lshlrev_b32 v12, 3, v0
        v_add_u32 v12, s{s0}, v12
        v_mov_b32 v13, {DUM}
        v_cmp_gt_u32 vcc, 32, v0
        v_cndmask_b32 v24, v13, v12, vcc
        v_add_u32 v25, s{s0}, v11
        s_lshl_b32 s{s0}, s{sX8}, 4
        s_and_b32 s{s1}, s{sAi}, 12
        s_add_u32 s{s0}, s{s0}, s{s1}
        s_add_u32 s{s0}, s{s0}, s{sW}
        s_lshl_b32 s{s0}, s{s0}, 11
        s_and_b32 s{s1}, s{sAi}, 3
        s_lshl_b32 s{s1}, s{s1}, 6
        s_add_u32 s{s0}, s{s0}, s{s1}
        s_add_u32 s{s0}, s{s0}, {SL+S_QL}
        v_add_u32 v12, s{s0}, v4
        v_cmp_gt_u32 vcc, 16, v0
        v_cndmask_b32 v26, v9, v12, vcc
        s_waitcnt lgkmcnt(0)
        s_cmp_eq_u32 s76, s{sT0}
        s_cbranch_scc1 L_A_RDYOK
        L_A_RDY:
        """)
        self.timeout()
        e(f's_sleep 8\ns_load_dword s76, s[{pWS}:{pWS+1}], s75 glc\ns_waitcnt lgkmcnt(0)\ns_cmp_eq_u32 s76, s{sT0}\ns_cbranch_scc0 L_A_RDY\nL_A_RDYOK:')
        self.stamp('A.rdy')
        e(f's_waitcnt vmcnt({1+self.o.get("h0lead",3)})')
        h0loads()
        e('s_waitcnt vmcnt(3)')
        self.stamp('A.wuk')
        vU = 112
        for s in range(4):
            for T in range(2): e(f'ds_read_b128 {v(vU+(s*2+T)*4,4)}, v{40+2*s+T} offset:{T*256}')
        e('L_A_H0:')
        e('s_waitcnt vmcnt(0)')
        for i in range(2):
            e(f'v_mfma_f32_16x16x16_bf16 v[80:83], {v(vI+2*i,2)}, {v(64+4*i,2)}, ' + ('0' if i==0 else 'v[80:83]'))
        self.tagcheck(12, [66,70])
        e('s_cbranch_vccz L_A_H0OK')
        self.fb((), (s2_,)); self.late_pubg('v[16:19]', 62)
        h0loads()
        e('s_branch L_A_H0')
        e('L_A_H0OK:')
        self.stamp('A.h0')
        e(f'v_cvt_pk_bf16_f32 v84, v80, v81\nv_cvt_pk_bf16_f32 v85, v82, v83\nds_write_b64 v24, v[84:85] offset:{QV}')
        for s in range(4): e(f'ds_read_b128 {v(88+4*s,4)}, v25 offset:{QV+s*64}')
        for s in range(4):
            e(f's_waitcnt lgkmcnt({3-s})')
            for T in range(2):
                e(f'v_mfma_f32_16x16x32_bf16 {v(104+4*T,4)}, {v(88+4*s,4)}, {v(vU+(s*2+T)*4,4)}, ' + ('0' if s==0 else v(104+4*T,4)))
        e('v_cvt_pk_bf16_f32 v64, v104, v108\nv_min_u32 v64, -2, v64')
        self.pub('v64', 26)
        self.stamp('A.ql')
        self.pubg('v[16:19]', 62)
        e('s_barrier')
        nh = self.o.get('a_help', 0)
        if nh:
            tsh, wsh, istr = self.kmap()
            e(f's_lshl_b32 s{s0}, s{sSL}, {tsh}')
            self.mk_srd(rA, pCKV, s0, 16777216)
            e(f'v_lshlrev_b32 v12, 10, v2\nv_lshl_add_u32 v12, v1, 4, v12\ns_lshl_b32 s68, s{sW}, {wsh}\ns_lshl_b32 s69, s{sW}, 12\ns_add_u32 m0, s69, {HELP}')
            for n in range(32-nh, 32):
                c, i = n >> 3, n & 7
                e(f's_add_u32 s{sTMP}, s68, {i*istr+c*256}')
                e(f'buffer_load_dwordx4 v12, {srd(rA)}, s{sTMP} offen nt lds')
        e(f"""
        v_lshrrev_b32 v12, 1, v2
        v_lshl_add_u32 v62, v12, 20, v5
        v_and_b32 v12, 1, v2
        v_lshl_add_u32 v62, v12, 17, v62
        v_xor_b32 v62, s67, v62
        s_lshl_b32 s{sG}, s{sJ}, 3
        s_add_u32 s{sG}, s{sG}, s{sX8}
        s_and_b32 s{sF}, s{sAi}, 3
        s_lshl_b32 s{s2_}, s{sG}, 2
        s_add_u32 s{sF}, s{sF}, s{s2_}
        """)
        sB = 62
        e(f"""
        v_and_b32 v5, 7, v1
        v_lshlrev_b32 v5, 4, v5
        v_and_b32 v6, 1, v2
        v_lshl_add_u32 v6, v6, 3, v5
        v_lshrrev_b32 v12, 3, v0
        v_lshl_add_u32 v14, v12, 11, v5
        v_cmp_eq_u32 vcc, s{sX8}, v12
        v_or_b32 v13, s{sLOC}, v14
        v_cndmask_b32 v46, v14, v13, vcc
        s_cmp_ge_u32 s{sG}, 27
        s_cbranch_scc1 L_A_NOF
        s_lshl_b32 s{s0}, s{sF}, 5
        """)
        self.mk_srd(rA, pW1, s0, 2211840)
        e(f's_mul_i32 s{s0}, s{sF}, 20480')
        self.mk_srd(rB, pW2, s0, 2211840)
        e(f"""
        v_and_b32 v7, 3, v12
        v_lshlrev_b32 v7, 3, v7
        v_lshrrev_b32 v8, 5, v0
        v_lshl_add_u32 v7, v8, 2, v7
        v_bfe_u32 v8, v0, 1, 2
        v_add_u32 v7, v7, v8
        v_mul_u32_u24 v7, 3456, v7
        v_and_b32 v8, 1, v0
        v_lshl_add_u32 v7, v8, 4, v7
        s_mul_i32 s{s0}, s{sW}, 110592
        s_lshl_b32 s{s1}, s{sW}, 10
        """)
        w1f = self.o.get('w1flag', 'nt')
        for k in range(5):
            if k and k <= self.o.get('w1pace', 0): e('s_waitcnt vmcnt(0)')
            e(f's_add_u32 m0, s{s1}, {W1+k*4096}')
            e(f'buffer_load_dwordx4 v7, {srd(rA)}, s{s0} offen {w1f} lds')
            if k < 4: e(f's_add_u32 s{s0}, s{s0}, {4*110592}')
        e(f"""
        s_mul_i32 s{sB}, s{sW}, 3
        s_cmp_eq_u32 s{sW}, 3
        s_cselect_b32 s{sB}, 8, s{sB}
        s_lshl_b32 s{sB}, s{sB}, 7
        v_lshrrev_b32 v8, 1, v2
        v_lshl_add_u32 v8, v8, 7, v6
        s_cmp_lt_u32 s{sW}, 2
        s_cselect_b32 s{s0}, 32, 0
        v_cmp_gt_u32 vcc, s{s0}, v0
        v_cndmask_b32 v13, v9, v6, vcc
        v_cmp_gt_u32 vcc, 8, v1
        v_cndmask_b32 v12, v9, v8, vcc
        v_cndmask_b32 v13, v9, v13, vcc
        buffer_load_dwordx2 v[16:17], v12, {srd(rC)}, s{sB} offen
        buffer_load_dwordx2 v[18:19], v13, {srd(rC)}, s{sB} offen offset:256
        s_lshl_b32 s{s0}, s{sF}, 5
        """)
        self.mk_srd(rC, pB1, s0, 3456)
        e(f'v_lshlrev_b32 v12, 3, v2\nbuffer_load_dwordx2 v[58:59], v12, {srd(rC)}, 0 offen')
        e(f"""
        s_lshl_b32 s{s0}, s{sW}, 9
        s_add_u32 s{s0}, s{s0}, {HB}
        v_add_u32 v48, s{s0}, v8
        v_add_u32 v12, 256, v48
        v_mov_b32 v13, {DUM}
        v_cmp_gt_u32 vcc, 32, v0
        v_cndmask_b32 v49, v13, v12, vcc
        v_add_u32 v50, s{s0}, v11
        s_cmp_lt_u32 s{sW}, 2
        s_cselect_b32 s{s0}, 0, {OOB}
        v_max_u32 v47, s{s0}, v46
        s_add_u32 s79, s{sB}, {H3B}
        v_lshl_add_u32 v12, v1, 6, v11
        s_mul_i32 s{s0}, s{sW}, 320
        s_lshl_b32 s{s2_}, s{sF}, 11
        s_add_u32 s{s2_}, s{s0}, s{s2_}
        s_add_u32 s{s2_}, s{s2_}, {SL+S_H4}
        v_add_u32 v12, s{s2_}, v12
        v_cmp_gt_u32 vcc, 5, v1
        v_cndmask_b32 v51, v9, v12, vcc
        s_lshl_b32 s{s2_}, s{sB}, 4
        s_add_u32 s{s2_}, s{s2_}, {W1}
        v_lshlrev_b32 v52, 3, v0
        v_add_u32 v52, s{s2_}, v52
        v_lshrrev_b32 v12, 2, v0
        v_mul_u32_u24 v12, 1280, v12
        v_and_b32 v13, 3, v1
        v_lshl_add_u32 v12, v13, 4, v12
        s_add_u32 s{s0}, s{s0}, {W2}
        v_add_u32 v53, s{s0}, v12
        s_lshl_b32 s{s0}, s{sW}, 2
        v_lshrrev_b32 v12, 5, v0
        v_lshlrev_b32 v12, 4, v12
        v_add_u32 v12, s{s0}, v12
        v_add_u32 v54, {ST}, v12
        s_lshl_b32 s{s0}, s{sW}, 6
        v_add_u32 v55, {AP}, v11
        v_add_u32 v45, s{s0}, v55
        v_mov_b32 v44, {ST}
        s_branch L_A_FDONE
        L_A_NOF:
        """)
        sK = sF
        e(f"""
        s_sub_u32 s{sK}, s{sX8}, 3
        s_lshl_b32 s{sK}, s{sK}, 1
        s_and_b32 s{s0}, s{sAi}, 1
        s_add_u32 s{sK}, s{sK}, s{s0}
        s_lshl_b32 s{sB}, s{sK}, 7
        """)
        self.mk_srd(rB, pB2, None, 1280)
        e(f"""
        s_cmp_eq_u32 s{sW}, 0
        s_cselect_b32 s{s1}, 32, 0
        v_cmp_gt_u32 vcc, s{s1}, v0
        v_cndmask_b32 v6, v9, v6, vcc
        v_cmp_gt_u32 vcc, 8, v1
        v_cndmask_b32 v6, v9, v6, vcc
        buffer_load_dwordx2 v[16:17], v6, {srd(rC)}, s{sB} offen
        buffer_load_dwordx2 v[18:19], v6, {srd(rB)}, s{sB} offen
        s_mul_i32 s{s0}, s{sW}, 27
        v_add_u32 v15, s{s0}, v12
        """)
        for i in range(4):
            e(f'v_bfe_u32 v10, v15, 2, 3\nv_cmp_eq_u32 vcc, s{sX8}, v10\nv_cndmask_b32 v{48+i}, v14, v13, vcc')
            if i < 3: e('v_add_u32 v15, 8, v15')
            if i > 0: e(f'v_add_u32 v{48+i}, {16384*i}, v{48+i}')
        e(f"""
        v_cmp_gt_u32 vcc, 3, v12
        v_cndmask_b32 v51, v9, v51, vcc
        s_add_u32 s79, s{sB}, {H3B}
        s_lshl_b32 s{s0}, s{s0}, 11
        s_add_u32 s78, s{sB}, s{s0}
        s_add_u32 s78, s78, {SL+S_H4}
        v_lshlrev_b32 v52, 5, v1
        v_lshl_add_u32 v52, v2, 4, v52
        s_lshl_b32 s{s1}, s{sW}, 8
        s_add_u32 s{s1}, s{s1}, {RED}
        v_add_u32 v52, s{s1}, v52
        v_mov_b32 v13, {DUM}
        v_cmp_gt_u32 vcc, 32, v0
        v_cndmask_b32 v52, v13, v52, vcc
        v_cmp_gt_u32 vcc, 8, v1
        v_cndmask_b32 v52, v13, v52, vcc
        v_cmp_gt_u32 vcc, 16, v0
        v_lshlrev_b32 v12, 3, v0
        v_cndmask_b32 v53, v9, v12, vcc
        v_lshlrev_b32 v54, 4, v1
        v_cmp_eq_u32 vcc, 0, v0
        v_cndmask_b32 v55, v9, v0, vcc
        L_A_FDONE:
        """)
        vMk = 36
        self.ident_masks(vMk, 0xffff, 0xffff0000, 0, 4, 12)
        e(f"""
        v_and_b32 v13, 7, v1
        v_lshl_add_u32 v12, v2, 3, v13
        s_lshl_b32 s{s0}, s{sW}, 5
        v_add_u32 v12, s{s0}, v12
        v_lshlrev_b32 v20, 11, v12
        v_lshrrev_b32 v13, 4, v12
        v_cmp_eq_u32 vcc, s{sX8}, v13
        v_or_b32 v12, s{sLOC}, v20
        v_cndmask_b32 v20, v20, v12, vcc
        v_and_b32 v20, s{sLM}, v20
        v_cmp_gt_u32 vcc, 8, v1
        v_cndmask_b32 v20, v9, v20, vcc
        s_mov_b32 s70, 0x00ff00ff
        s_mov_b32 s71, 0x00ff00ff
        s_lshl_b32 s68, s{sJ}, 9
        s_lshl_b32 s{s0}, s{sHd}, 4
        s_add_u32 s68, s68, s{s0}
        s_add_u32 s68, s68, {REC}
        v_lshlrev_b32 v22, 11, v2
        v_lshl_add_u32 v22, v1, 4, v22
        s_lshl_b32 s69, s{sHd}, 2
        s_add_u32 s69, s69, s{sJ}
        s_lshl_b32 s69, s69, 15
        s_lshl_b32 s{s0}, s{sW}, 13
        s_add_u32 s69, s69, s{s0}
        s_add_u32 s69, s69, {PART}
        v_lshlrev_b32 v12, 4, v1
        v_lshl_add_u32 v12, v2, 3, v12
        s_mul_i32 s{s0}, s{sW}, 320
        s_add_u32 s{s0}, s{s0}, {CL}
        v_add_u32 v12, s{s0}, v12
        v_mov_b32 v13, {DUM}
        v_cmp_gt_u32 vcc, 32, v0
        v_cndmask_b32 v23, v13, v12, vcc
        v_and_b32 v12, 3, v1
        v_mul_u32_u24 v12, 320, v12
        v_add_u32 v12, v12, v11
        v_add_u32 v24, {CL}, v12
        s_lshl_b32 s{s0}, s{sSL}, 11
        s_lshl_b32 s{s1}, s{sW}, 6
        s_add_u32 s{s0}, s{s0}, s{s1}
        s_add_u32 s{s0}, s{s0}, {SL+S_HC}
        v_add_u32 v12, s{s0}, v4
        v_cmp_gt_u32 vcc, 16, v0
        v_cndmask_b32 v25, v9, v12, vcc
        s_lshl_b32 s{s0}, s{sW}, 2
        s_add_u32 s{s0}, s{s0}, {ML}
        v_mov_b32 v12, s{s0}
        v_cmp_gt_u32 vcc, 8, v1
        v_cndmask_b32 v21, v13, v12, vcc
        v_mov_b32 v27, {ML}
        v_add_u32 v56, {WUV}, v60
        v_add_u32 v57, {WUV}, v61
        """)
        e(f's_lshl_b32 s{s0}, s{sJ}, 18\ns_lshl_b32 s{s1}, s{sHd}, 8\ns_add_u32 s{s0}, s{s0}, s{s1}')
        self.mk_srd(rA, pWUV, s0, 4194304)
        e(f"""
        s_and_b32 s{s0}, s{sW}, 1
        s_lshl_b32 s{s0}, s{s0}, 8
        s_lshr_b32 s{s1}, s{sW}, 1
        s_add_u32 s{s0}, s{s0}, s{s1}
        s_lshl_b32 s{s0}, s{s0}, 13
        s_lshl_b32 s{s1}, s{sW}, 10
        """)
        npace = self.o.get('a2_pace', 0)
        gate = self.o.get('gate', 0)
        ntr = self.o.get('trickle', 0)
        def gwait():
            e(f's_lshl_b32 s75, s{sSL}, 7\ns_add_u32 s75, s75, {GATE}\nv_mov_b32 v12, 0\ns_mov_b32 s77, 40')
            e(f'L_A_G:\nbuffer_load_dword v13, v12, {srd(rWS)}, s75 offen sc1\ns_waitcnt vmcnt(0)\nv_readfirstlane_b32 s76, v13\ns_cmp_eq_u32 s76, s{sT1}\ns_cbranch_scc1 L_A_GOK\ns_sub_u32 s77, s77, 1\ns_cbranch_scc0 L_A_G\nL_A_GOK:')
            self.stamp('A.gate')
        for k in range(8):
            if k < npace: e('s_waitcnt vmcnt(0)')
            if gate and k == ntr: gwait()
            e(f's_add_u32 m0, s{s1}, {WUV+k*4096}')
            e(f'buffer_load_dwordx4 v62, {srd(rA)}, s{s0} offen nt lds')
            if k < 7: e(f's_add_u32 s{s0}, s{s0}, 16384')
        e(f's_cmp_ge_u32 s{sG}, 27\ns_cbranch_scc1 L_A_NOW2')
        for k in range(5):
            e(f's_add_u32 m0, s{s1}, {W2+k*4096}\ns_add_u32 s{s0}, s{s1}, {k*4096}')
            e(f'buffer_load_dwordx4 v3, {srd(rB)}, s{s0} offen nt lds')
        e('L_A_NOW2:')
        if self.o.get('vw', 0):
            e(f'v_mov_b32 v12, 0\ns_and_b32 s{sTMP}, s69, 0xffe00000\nbuffer_load_dword v13, v12, {srd(rWS)}, s{sTMP} offen')
        e('s_waitcnt vmcnt(0)\ns_barrier')
        self.stamp('A.land')
        for s in range(4):
            for T in range(2):
                for q in range(2): e(f'ds_read_b64_tr_b16 {a((s*2+T)*4+2*q,2)}, v{56+T} offset:{s*8192+q*1024}')
        e(f'buffer_load_dwordx4 v[64:67], v20, {srd(rWS)}, s68 offen sc1')
        vC0, vC1, vB1, vS1 = 192, 196, 200, 204
        for dst,src in [(vC0,16),(vC1,18)]:
            e(f'v_lshlrev_b32 v{dst}, 16, v{src}\nv_and_b32 v{dst+1}, 0xffff0000, v{src}\nv_lshlrev_b32 v{dst+2}, 16, v{src+1}\nv_and_b32 v{dst+3}, 0xffff0000, v{src+1}')
        e('s_waitcnt lgkmcnt(0)')
        self.stamp('A.w2rdy')
        e('L_A_REC:')
        e('s_waitcnt vmcnt(0)')
        cs = self.o.get('cs', 1)
        if cs: e(f'v_cmp_ne_u32 vcc, s{sT0}, v67')
        else: self.tagcheck(12, [66])
        e('s_and_b64 vcc, vcc, s[70:71]\ns_cbranch_vccz L_A_RECOK')
        e('L_A_RETRY:')
        self.fb((20,), ())
        e(f'buffer_load_dwordx4 v[64:67], v20, {srd(rWS)}, s68 offen sc1\ns_branch L_A_REC\nL_A_RECOK:')
        vD = 128; vAF = 160
        if self.o.get('ddelay'): e(f's_sleep {self.o["ddelay"]}')
        for i in range(8): e(f'buffer_load_dwordx4 {v(vD+4*i,4)}, v22, {srd(rWS)}, s69 offen offset:{i*256} sc1')
        self.stamp('A.rec')
        e('v_mov_b32 v72, v64')
        self.allred('v_max_f32', 72, 74, 3)
        e('v_sub_f32 v64, v64, v72\nv_exp_f32 v64, v64\nv_cvt_pk_bf16_f32 v64, v64, v64\nv_and_b32 v73, 0xffff0000, v64\nv_mul_f32 v73, v73, v65')
        for i in range(8):
            for r in range(4): e(f'v_and_b32_dpp v{vAF+4*i+r}, v64, v{vMk+r} row_newbcast:{i} {DPP}')
        self.allred('v_add_f32', 73, 74, 3)
        e('ds_write2_b32 v21, v72, v73 offset0:0 offset1:4')
        for i in range(8):
            e(f's_waitcnt vmcnt({7-i})')
            e(f'v_mfma_f32_16x16x32_bf16 v[76:79], {v(vAF+4*i,4)}, {v(vD+4*i,4)}, ' + ('0' if i==0 else 'v[76:79]'))
            if cs: e(f'v_add3_u32 v66, v66, v{vD+4*i}, v{vD+4*i+1}\nv_add3_u32 v66, v66, v{vD+4*i+2}, v{vD+4*i+3}')
        self.stamp('A.data')
        if cs:
            for p in ['quad_perm:[1,0,3,2]','quad_perm:[2,3,0,1]']: e(f'v_add_u32_dpp v66, v66, v66 {p} {DPP}')
            e(f'v_cvt_pk_bf16_f32 v74, v76, v77\nv_cvt_pk_bf16_f32 v75, v78, v79\nv_add_u32_dpp v66, v66, v66 row_half_mirror {DPP}\nds_write_b64 v23, v[74:75]')
            e(f'v_add_u32_dpp v66, v66, v66 row_mirror {DPP}\nv_cmp_ne_u32 vcc, 0, v66\ns_cbranch_vccnz L_A_RETRY\ns_waitcnt lgkmcnt(0)\ns_barrier')
        else:
            e('v_cvt_pk_bf16_f32 v74, v76, v77\nv_cvt_pk_bf16_f32 v75, v78, v79\nds_write_b64 v23, v[74:75]\ns_waitcnt lgkmcnt(0)\ns_barrier')
        self.stamp('A.clbar')
        e(f'ds_read_b128 v[80:83], v24\nds_read_b128 v[64:67], v27\nds_read_b128 v[84:87], v24 offset:64\nds_read_b128 v[68:71], v27 offset:16\nds_read_b128 v[88:91], v24 offset:128\nds_read_b128 v[92:95], v24 offset:192')
        fac = [[], ['s_waitcnt lgkmcnt(4)', 'v_max3_f32 v72, v64, v65, v66', 'v_max_f32 v72, v72, v67'], ['v_sub_f32 v64, v64, v72', 'v_sub_f32 v65, v65, v72'], ['v_sub_f32 v66, v66, v72', 'v_sub_f32 v67, v67, v72'],
               ['v_exp_f32 v64, v64'], ['v_exp_f32 v65, v65'], ['v_exp_f32 v66, v66'],
               ['v_exp_f32 v67, v67', 'v_mul_f32 v72, v64, v68', 'v_fmac_f32 v72, v65, v69', 'v_fmac_f32 v72, v66, v70', 'v_fmac_f32 v72, v67, v71', 'v_rcp_f32 v72, v72']]
        for s in range(4):
            e(f's_waitcnt lgkmcnt({[5,3,1,0][s]})')
            for T in range(2):
                e(f'v_mfma_f32_16x16x32_bf16 {v(104+4*T,4)}, {v(80+4*s,4)}, {a((s*2+T)*4,4)}, ' + ('0' if s==0 else v(104+4*T,4)))
                for x in fac[2*s+T]: e(x)
        e('v_pk_mul_f32 v[104:105], v[104:105], v[64:65]\nv_pk_mul_f32 v[108:109], v[108:109], v[64:65]')
        e('v_pk_fma_f32 v[104:105], v[106:107], v[66:67], v[104:105]\nv_pk_fma_f32 v[108:109], v[110:111], v[66:67], v[108:109]')
        e('v_add_f32 v104, v104, v105\nv_add_f32 v108, v108, v109\nv_mul_f32 v104, v104, v72\nv_mul_f32 v108, v108, v72')
        e('v_cvt_pk_bf16_f32 v63, v104, v108\nv_min_u32 v63, -2, v63')
        self.publ('v63', 25); self.pubg('v63', 25)
        self.stamp('A.hc')
        e(f's_cmp_ge_u32 s{sG}, 27\ns_cbranch_scc1 L_FIN')
        for s in range(6):
            for q in range(2): e(f'ds_read_b64_tr_b16 {a(32+s*4+2*q,2)}, v52 offset:{s*1024+q*512}')
        for P in range(5):
            for hb in range(2): e(f'ds_read_b64_tr_b16 {a(56+P*4+2*hb,2)}, v53 offset:{P*64+hb*8}')
        e(f'v_lshlrev_b32 v{vB1}, 16, v58\nv_and_b32 v{vB1+1}, 0xffff0000, v58\nv_lshlrev_b32 v{vB1+2}, 16, v59\nv_and_b32 v{vB1+3}, 0xffff0000, v59')
        e(f's_cmp_lt_u32 s{sW}, 2\ns_cselect_b32 s{s0}, 0x3f803f80, 0')
        for r in range(4): e(f'v_mov_b32 v{208+r}, 0x3f803f80\nv_mov_b32 v{212+r}, s{s0}')
        e('s_waitcnt lgkmcnt(10)')
        for s in range(6):
            e(f'v_mfma_f32_16x16x32_bf16 {v(vS1,4)}, {a(32+s*4,4)}, {v(208 if s < 4 else 212,4)}, ' + ('0' if s == 0 else v(vS1,4)))
        e(f'ds_write_b128 v45, {v(vS1,4)}\ns_waitcnt lgkmcnt(0)\ns_barrier')
        for w in range(4): e(f'ds_read_b128 {v(208+4*w,4)}, v55 offset:{64*w}')
        e('s_waitcnt lgkmcnt(0)')
        for i in range(2): e(f'v_pk_add_f32 {v(208+2*i,2)}, {v(208+2*i,2)}, {v(212+2*i,2)}\nv_pk_add_f32 {v(216+2*i,2)}, {v(216+2*i,2)}, {v(220+2*i,2)}')
        for i in range(2): e(f'v_pk_add_f32 {v(vS1+2*i,2)}, {v(208+2*i,2)}, {v(216+2*i,2)}')
        e('s_barrier')
        self.stamp('F.prep')
        for P in range(5):
            e(f's_mov_b32 s{68+2*P}, {0x00010001<<P}\ns_mov_b32 s{69+2*P}, {0x00010001<<P}')
        self.lmask((46,47))
        if self.o.get('fdelay'): e(f's_sleep {self.o["fdelay"]}')
        vH = 64
        e('L_F_POLL:')
        e(f'buffer_load_dwordx4 {v(vH,4)}, v46, {srd(rWS)}, s79 offen sc1')
        e(f'buffer_load_dwordx4 {v(vH+4,4)}, v46, {srd(rWS)}, s79 offen offset:128 sc1')
        e(f'buffer_load_dwordx4 {v(vH+8,4)}, v47, {srd(rWS)}, s79 offen offset:256 sc1')
        e('s_waitcnt vmcnt(0)')
        e(f'v_mfma_f32_16x16x32_bf16 v[76:79], {v(vI,4)}, {v(vH,4)}, {v(vC0,4)}')
        e(f'v_mfma_f32_16x16x32_bf16 v[76:79], {v(vI+4,4)}, {v(vH+4,4)}, v[76:79]')
        e(f'v_mfma_f32_16x16x32_bf16 v[80:83], {v(vI,4)}, {v(vH+8,4)}, {v(vC1,4)}')
        self.maxchain(12, range(vH, vH+12))
        e('v_cmp_eq_u32 vcc, -1, v12')
        self.retry('L_F_POLL', vregs=(46,47), sleep=self.o.get('fsleep',0))
        self.stamp('F.h3b')
        vB = 128
        for r in range(4): e(f'v_add_f32_dpp v{76+r}, v{76+r}, v{76+r} row_ror:8 {DPP}')
        e('v_cvt_pk_bf16_f32 v84, v76, v77\nv_cvt_pk_bf16_f32 v85, v78, v79\nds_write_b64 v48, v[84:85]')
        for s in range(4): e(f'ds_read_b128 {v(vB+4*s,4)}, v50 offset:{s*64}')
        for r in range(4): e(f'v_add_f32_dpp v{80+r}, v{80+r}, v{80+r} row_ror:8 {DPP}')
        e('v_cvt_pk_bf16_f32 v86, v80, v81\nv_cvt_pk_bf16_f32 v87, v82, v83\nds_write_b64 v49, v[86:87]')
        for s in range(4,6): e(f'ds_read_b128 {v(vB+4*s,4)}, v50 offset:{s*64}')
        e('v_pk_add_f32 v[88:89], v[76:77], v[78:79]\nv_pk_mul_f32 v[92:93], v[76:77], v[76:77]\nv_pk_add_f32 v[90:91], v[80:81], v[82:83]\nv_pk_fma_f32 v[92:93], v[78:79], v[78:79], v[92:93]')
        e('v_pk_add_f32 v[88:89], v[88:89], v[90:91]\nv_pk_fma_f32 v[92:93], v[80:81], v[80:81], v[92:93]\nv_pk_fma_f32 v[92:93], v[82:83], v[82:83], v[92:93]')
        st = [['v_add_f32 v88, v88, v89', 'v_add_f32 v92, v92, v93'], ['s_nop 0', 'v_permlane32_swap_b32 v88, v92', 'v_add_f32 v88, v88, v92'], ['v_mov_b32 v92, v88'],
              ['s_nop 0', 'v_permlane16_swap_b32 v88, v92', 'v_add_f32 v88, v88, v92'], ['s_nop 0', f'v_add_f32_dpp v88, v88, v88 quad_perm:[1,0,3,2] {DPP}'],
              [f'v_add_f32_dpp v88, v88, v88 quad_perm:[2,3,0,1] {DPP}', f'v_add_f32_dpp v88, v88, v88 row_half_mirror {DPP}', 'v_mul_f32 v88, 0x3acccccd, v88', 'ds_write_b32 v54, v88']]
        for s in range(6):
            e(f's_waitcnt lgkmcnt({[6,5,4,3,1,0][s]})')
            e(f'v_mfma_f32_16x16x32_bf16 v[96:99], {a(32+s*4,4)}, {v(vB+4*s,4)}, ' + ('0' if s == 0 else 'v[96:99]'))
            for x in st[s]: e(x)
        e('ds_write_b128 v45, v[96:99]\ns_waitcnt lgkmcnt(0)\ns_barrier')
        self.stamp('F.abar')
        e('ds_read_b128 v[100:103], v44\nds_read_b128 v[104:107], v44 offset:16')
        for w in range(4): e(f'ds_read_b128 {v(128+4*w,4)}, v55 offset:{64*w}')
        e(f"""
        s_waitcnt lgkmcnt(4)
        v_pk_add_f32 v[100:101], v[100:101], v[102:103]
        v_pk_add_f32 v[104:105], v[104:105], v[106:107]
        v_add_f32 v100, v100, v101
        v_add_f32 v104, v104, v105
        v_fma_f32 v104, -v100, v100, v104
        v_max_f32 v104, 0, v104
        v_add_f32 v104, 0x3727c5ac, v104
        v_rsq_f32 v104, v104
        s_waitcnt lgkmcnt(0)
        v_pk_fma_f32 v[128:129], {v(vS1,2)}, v[100:101], v[128:129] op_sel_hi:[1,0,1] neg_lo:[0,1,0] neg_hi:[0,1,0]
        v_pk_fma_f32 v[130:131], {v(vS1+2,2)}, v[100:101], v[130:131] op_sel_hi:[1,0,1] neg_lo:[0,1,0] neg_hi:[0,1,0]
        v_pk_add_f32 v[136:137], v[136:137], v[140:141]
        v_pk_add_f32 v[138:139], v[138:139], v[142:143]
        v_pk_add_f32 v[128:129], v[128:129], v[132:133]
        v_pk_add_f32 v[130:131], v[130:131], v[134:135]
        v_pk_add_f32 v[128:129], v[128:129], v[136:137]
        v_pk_add_f32 v[130:131], v[130:131], v[138:139]
        v_pk_fma_f32 v[128:129], v[128:129], v[104:105], {v(vB1,2)} op_sel_hi:[1,0,1]
        v_pk_fma_f32 v[130:131], v[130:131], v[104:105], {v(vB1+2,2)} op_sel_hi:[1,0,1]
        """)
        for r in range(4): e(f'v_max_f32 v{128+r}, 0, v{128+r}')
        e('v_pk_mul_f32 v[128:129], v[128:129], v[128:129]\nv_pk_mul_f32 v[130:131], v[130:131], v[130:131]')
        e('v_cvt_pk_bf16_f32 v108, v128, v129\nv_cvt_pk_bf16_f32 v109, v130, v131')
        self.stamp('F.f1')
        def cm(P): e(f'v_cndmask_b32 v{110+2*P}, 0, v108, s[{68+2*P}:{69+2*P}]\nv_cndmask_b32 v{111+2*P}, 0, v109, s[{68+2*P}:{69+2*P}]')
        cm(0); cm(1)
        for P in range(5):
            for hb in range(2):
                e(f'v_mfma_f32_16x16x16_bf16 {v(120+4*hb,4)}, {a(56+P*4+2*hb,2)}, {v(110+2*P,2)}, ' + ('0' if P == 0 else v(120+4*hb,4)))
                if hb == 0 and P+2 < 5: cm(P+2)
        for i in range(4): e(f'v_cvt_pk_bf16_f32 v{64+i}, v{120+2*i}, v{121+2*i}')
        for i in range(4): e(f'v_min_u32 v{64+i}, -2, v{64+i}')
        self.pub('v[64:67]', 51)
        self.stamp('F.end')
        e('s_branch L_END')
        e('L_FIN:')
        e(f's_and_b32 s{s0}, s{sAi}, 2\ns_cbranch_scc1 L_END')
        self.mk_srd(rA, pOUT, None, 1280)
        if self.o.get('vw', 0): e(f'buffer_load_dword v13, v53, {srd(rA)}, s{sB} offen')
        e(f's_cmp_eq_u32 s{sW}, 0\ns_cselect_b32 s{s1}, -1, 0')
        for r in range(4): e(f'v_and_b32 v{32+r}, s{s1}, v{vI+r}')
        e(f'v_pk_add_f32 {v(vC0,2)}, {v(vC0,2)}, {v(vC1,2)}\nv_pk_add_f32 {v(vC0+2,2)}, {v(vC0+2,2)}, {v(vC1+2,2)}\nv_mov_b32 v45, s{sT0}')
        self.lmask((46,))
        e('L_R_P1:')
        e(f'buffer_load_dwordx4 v[64:67], v46, {srd(rWS)}, s79 offen sc1\ns_waitcnt vmcnt(0)')
        self.maxchain(12, range(64,68))
        e('v_cmp_eq_u32 vcc, -1, v12')
        self.retry('L_R_P1', sleep=1, vregs=(46,))
        self.stamp('R.h3b')
        self.lmask((48,49,50,51))
        e(f'v_mfma_f32_16x16x32_bf16 {v(vC0,4)}, v[32:35], v[64:67], {v(vC0,4)}')
        if self.o.get('rdelay'): e(f's_sleep {self.o["rdelay"]}')
        e('L_R_P2:')
        for i in range(4): e(f'buffer_load_dwordx4 {v(68+4*i,4)}, v{48+i}, {srd(rWS)}, s78 offen sc1')
        e('s_waitcnt vmcnt(0)')
        for i in range(4): e(f'v_mfma_f32_16x16x32_bf16 v[104:107], {v(vI,4)}, {v(68+4*i,4)}, ' + (v(vC0,4) if i == 0 else 'v[104:107]'))
        self.maxchain(12, range(68,84))
        e('v_cmp_eq_u32 vcc, -1, v12')
        self.retry('L_R_P2', vregs=(48,49,50,51), sleep=0)
        self.stamp('R.h4')
        for r in range(4): e(f'v_add_f32_dpp v{104+r}, v{104+r}, v{104+r} row_ror:8 {DPP}')
        e(f'ds_write_b128 v52, v[104:107]\ns_waitcnt lgkmcnt(0)\ns_barrier')
        e(f's_cmp_lg_u32 s{sW}, 0\ns_cbranch_scc1 L_END')
        self.red_final(RED, 128, 54, False)
        e(f'buffer_store_dwordx2 v[128:129], v53, {srd(rA)}, s{sB} offen')
        e(f's_cmp_lg_u32 s{sK}, 0\ns_cbranch_scc1 L_END2')
        e(f'buffer_store_dword v45, v55, {srd(rWS)}, 0 offen offset:{EPOCH} sc1')
        if 'amp' in self.o:
            self.stamp('R.end')
            k = self.idx[self.o['amp']]; ke = self.idx['R.end']
            e(f's_waitcnt lgkmcnt(0)\ns_sub_u32 s60, s{sSTAMP+2*k}, s{sSTAMP}\ns_lshl_b32 s60, s60, 2\ns_add_u32 s60, s60, s{sSTAMP+2*ke}')
            e('L_AMP:\ns_memrealtime s[62:63]\ns_waitcnt lgkmcnt(0)\ns_sub_u32 s61, s62, s60\ns_cmp_lt_i32 s61, 0\ns_cbranch_scc1 L_AMP')
        e('L_END2:')
        if 'amp' not in self.o: self.stamp('R.end')
        e('s_branch L_END')

    def role_T(self):
        e = self.e
        MX = QB; LX = QB+512; PB = QB+1024
        WO = 0; HB = 65536
        sT, s0, s1, s2_ = 72, 63, 64, 65
        e('L_T:')
        if self.o.get('noT'): e('s_branch L_END')
        e(f"""
        s_load_dword s{sE}, s[{pWS}:{pWS+1}], {EPOCH}
        s_lshl_b32 s{sT}, s{sX8}, 4
        s_add_u32 s{sT}, s{sT}, s{sR}
        s_lshl_b32 s66, s{sT}, 11
        s_add_u32 s66, s66, {SL}
        s_add_u32 s71, s66, {S_H4}
        s_cmp_eq_u32 s{sW}, 0
        s_cselect_b32 s66, s66, {WSSZ}
        s_add_u32 s70, s66, {LOC}
        v_mov_b32 v16, -1
        v_mov_b32 v17, -1
        v_mov_b32 v18, -1
        v_mov_b32 v19, -1
        v_and_b32 v12, 0x1ff, v3
        v_lshrrev_b32 v13, 5, v0
        v_lshl_add_u32 v12, v13, 20, v12
        buffer_store_dwordx4 v[16:19], v12, {srd(rWS)}, s66 offen sc1
        s_lshl_b32 s{s0}, s{sT}, 9
        s_add_u32 s{s0}, s{s0}, {QP+LOC}
        s_cmp_eq_u32 s{sW}, 1
        s_cselect_b32 s{s0}, s{s0}, {WSSZ}
        v_cmp_gt_u32 vcc, 32, v0
        v_cndmask_b32 v12, v9, v3, vcc
        buffer_load_dwordx4 v[200:203], v12, {srd(rWS)}, s{s0} offen nt
        """)
        if self.o.get('pf', 0) == 1: self.code_prefetch()
        if self.o.get('tw', 0): self.tlb_warm()
        if self.o.get('pf', 0) == 2:
            e(f's_cmp_eq_u32 s{sW}, 0\ns_cbranch_scc1 L_NOPF')
            e(f's_getpc_b64 s[20:21]\nL_PC:\ns_sub_u32 s20, s20, L_PC-{KN}\ns_subb_u32 s21, s21, 0')
            e(f's_mul_i32 s60, s{sR}, 3\ns_add_u32 s60, s60, s{sW}\ns_sub_u32 s60, s60, 1\ns_lshl_b32 s60, s60, 7')
            for i in range(3):
                e(f's_min_u32 s67, s60, L_EXIT-{KN}\ns_load_dword s7, s[20:21], s67')
                if i < 2: e(f's_add_u32 s60, s60, {48*128}')
            e('L_NOPF:')
        nwq = self.o.get('t_wq', 5)
        e(f's_add_u32 s61, s61, {(10-nwq)*4*32768}\ns_lshl_b32 s62, s{sW}, 13\ns_add_u32 s62, s62, {QB}\ns_mov_b32 m0, s62')
        for k in range(nwq):
            e(f'buffer_load_dwordx4 v8, {srd(rA)}, s61 offen nt lds')
            if k < nwq-1: e(f's_add_u32 s61, s61, {4*32768}')
        tsh, wsh, istr = self.kmap()
        e(f's_lshl_b32 s{s0}, s{sT}, {tsh}')
        self.mk_srd(rB, pCKV, s0, 16777216)
        e(f'v_lshl_add_u32 v52, v2, 10, v5\nv_xor_b32 v53, 0x80, v52\ns_lshl_b32 s68, s{sW}, {wsh}\ns_lshl_b32 s69, s{sW}, 13')
        def dma(n):
            c, i = n >> 3, n & 7
            e(f's_add_u32 m0, s69, {c*32768+i*1024}\ns_add_u32 s{sTMP}, s68, {i*istr+c*256}')
            e(f'buffer_load_dwordx4 v{52+(i&1)}, {srd(rB)}, s{sTMP} offen nt lds')
        n0 = self.o.get('n0', 2)
        thr = dict(self.o.get('t_throttle', []))
        for n in range(n0): dma(n)
        e(f's_cmp_lg_u32 s{sW}, 0\ns_cbranch_scc1 L_T_NOCNT\ns_waitcnt vmcnt({1+nwq+n0}) lgkmcnt(0)')
        self.tags()
        self.stamp('T.rst')
        e(f"""
        s_lshl_b32 s79, s{sX8}, 5
        s_add_u32 s79, s79, s{sR}
        s_lshl_b32 s79, s79, 2
        s_add_u32 s79, s79, {RDY}
        s_mov_b32 s78, s{sT0}
        s_atomic_swap s78, s[{pWS}:{pWS+1}], s79
        L_T_NOCNT:
        v_cmp_gt_u32 vcc, 16, v0
        v_cndmask_b32 v12, v9, v3, vcc
        buffer_load_dwordx4 v[204:207], v12, {srd(rWS)}, s70 offen sc1
        """)
        vm = [('d',n) for n in range(n0)] + ['pt']
        vKa, vQa, vVa = 24, 28, 32
        vPS, vRS, vMW, vMR, vPW, vPR, vQC, vLR = 40, 41, 42, 43, 44, 45, 46, 47
        vQS = 120
        pre = []
        pre.append(f'v_and_b32 v12, 7, v1\nv_lshlrev_b32 v12, 5, v12\nv_lshlrev_b32 v13, 10, v1\nv_lshlrev_b32 v14, 8, v1\nv_add_u32 v14, s69, v14\nv_add_u32 v13, {QB}, v13')
        for s3 in range(4):
            pre.append(f'v_add_u32 v15, {s3*64}, v11\nv_xor_b32 v15, v15, v12\nv_add_u32 v{vKa+s3}, v14, v15\nv_add_u32 v{vQa+s3}, v13, v15')
        pre.append(f"""
        v_lshrrev_b32 v13, 2, v0
        v_and_b32 v15, 7, v13
        v_lshlrev_b32 v13, 8, v13
        v_and_b32 v12, 3, v1
        v_lshl_add_u32 v13, v12, 3, v13
        s_lshl_b32 s{s2_}, s{sW}, 1
        v_xor_b32 v15, s{s2_}, v15
        v_lshl_add_u32 v{vVa}, v15, 5, v13
        v_xor_b32 v15, 1, v15
        v_lshl_add_u32 v{vVa+1}, v15, 5, v13
        v_add_u32 v{vVa+2}, 0x10000, v{vVa}
        v_add_u32 v{vVa+3}, 0x10000, v{vVa+1}
        v_lshlrev_b32 v12, 13, v2
        v_lshl_add_u32 v12, v1, 4, v12
        """)
        for i in range(8): pre.append(f'v_xor_b32 v{vQS+i}, {(i<<5) + (i&3)*2048}, v12')
        pre.append(f"""
        v_lshlrev_b32 v12, 6, v0
        v_lshl_add_u32 v12, v1, 2, v12
        v_add_u32 v{vQC}, s62, v12
        s_lshl_b32 s76, s{sW}, 16
        s_add_u32 s76, s76, {SL+S_QL}
        s_add_u32 s77, s76, 32768
        s_lshl_b32 s{s0}, s{sW}, 1
        s_cmp_eq_u32 s{s0}, s{sX8}
        s_cselect_b32 s{s1}, {LOC}, 0
        s_add_u32 s76, s76, s{s1}
        s_add_u32 s{s0}, s{s0}, 1
        s_cmp_eq_u32 s{s0}, s{sX8}
        s_cselect_b32 s{s1}, {LOC}, 0
        s_add_u32 s77, s77, s{s1}
        v_lshlrev_b32 v12, 19, v2
        v_lshl_add_u32 v12, v1, 4, v12
        s_lshl_b32 s{s2_}, s{sT}, 8
        s_lshl_b32 s{s0}, s{sW}, 15
        s_add_u32 s{s2_}, s{s2_}, s{s0}
        s_add_u32 s{s2_}, s{s2_}, {PART}
        v_add_u32 v{vPS}, s{s2_}, v12
        s_lshl_b32 s{s2_}, s{sT}, 11
        s_lshl_b32 s{s0}, s{sW}, 9
        s_add_u32 s{s2_}, s{s2_}, s{s0}
        s_add_u32 s{s2_}, s{s2_}, {REC}
        v_and_b32 v13, 1, v1
        v_lshrrev_b32 v12, 2, v0
        v_lshl_add_u32 v12, v13, 4, v12
        v_lshlrev_b32 v12, 4, v12
        v_add_u32 v{vLR}, {MX}, v12
        v_add_u32 v12, s{s2_}, v12
        v_and_b32 v13, 2, v1
        v_cmp_eq_u32 vcc, 0, v13
        v_cndmask_b32 v{vRS}, v9, v12, vcc
        v_lshrrev_b32 v12, 1, v2
        v_lshl_add_u32 v12, v12, 4, v1
        v_lshlrev_b32 v12, 4, v12
        s_lshl_b32 s{s2_}, s{sW}, 2
        s_add_u32 s{s2_}, s{s2_}, {MX}
        v_add_u32 v{vMW}, s{s2_}, v12
        v_lshlrev_b32 v12, 4, v1
        v_add_u32 v{vMR}, {MX}, v12
        v_add_u32 v22, s{s2_}, v12
        v_mov_b32 v38, 0x3e0293ee
        s_lshl_b32 s{s2_}, s{sW}, 11
        s_add_u32 s{s2_}, s{s2_}, {PB}
        v_add_u32 v{vPW}, s{s2_}, v3
        v_add_u32 v{vPR}, {PB}, v3
        s_and_b32 s{s0}, s{sW}, 1
        s_mul_i32 s{s0}, s{s0}, 640
        s_add_u32 s71, s71, s{s0}
        s_lshr_b32 s{s0}, s{sW}, 1
        s_lshl_b32 s{s0}, s{s0}, 20
        s_add_u32 s71, s71, s{s0}
        s_cmp_lt_u32 s{sT}, 116
        s_cselect_b32 s{s0}, 40, 0
        v_cmp_gt_u32 vcc, s{s0}, v0
        v_cndmask_b32 v20, v9, v3, vcc
        v_lshrrev_b32 v12, 3, v0
        v_lshrrev_b32 v13, 1, v12
        v_and_b32 v14, 1, v12
        v_lshl_add_u32 v13, v14, 4, v13
        v_mul_u32_u24 v13, 1280, v13
        v_and_b32 v14, 7, v0
        v_lshlrev_b32 v14, 4, v14
        v_and_b32 v12, 1, v2
        v_lshlrev_b32 v12, 5, v12
        v_xor_b32 v14, v14, v12
        v_add_u32 v36, v13, v14
        v_xor_b32 v14, 64, v14
        v_add_u32 v37, v13, v14
        s_lshl_b32 s73, s{sX8}, 2
        s_add_u32 s73, s73, s{sW}
        s_mul_i32 s73, s73, 163840
        s_lshl_b32 s{s1}, s{sR}, 7
        s_add_u32 s73, s73, s{s1}
        s_lshl_b32 s74, s{sW}, 14
        """)
        def qloads():
            for i in range(8):
                e(f's_add_u32 m0, s62, {i*1024}')
                e(f'buffer_load_dwordx4 v{vQS+i}, {srd(rWS)}, s{76+(i>>2)} offen sc1 lds')
        kdone = set()
        def younger(item): return len(vm) - 1 - vm.index(item)
        def kv(c):
            e(f's_waitcnt vmcnt({younger(("d",8*c+7))})')
            if c == 3: self.stamp('T.ckv')
            if c == 2:
                for s3 in range(4): e(f'v_add_u32 v{vKa+s3}, 0x10000, v{vKa+s3}')
            for s3 in range(4):
                for kt in range(2):
                    e(f'ds_read_b128 {a(((4*c+s3)*2+kt)*4,4)}, v{vKa+s3} offset:{(c&1)*32768+kt*4096}')
            kdone.add(c)
            e('s_barrier')
            for ks in range(4):
                for T2 in range(2):
                    for q in range(2):
                        e(f'ds_read_b64_tr_b16 {a(128+(ks*8+2*c+T2)*4+2*q,2)}, v{vVa+T2+2*(c>>1)} offset:{(c&1)*32768+ks*8192+q*4096}')
        qpos = self.o.get('qpos', 32); npre = self.o.get('npre', 4)
        klag = self.o.get('klag', 12)
        for n in range(n0, 33):
            if n == npre:
                for x in pre: e(x)
            if n == qpos - self.o.get('rdylead', 8):
                e(f's_lshl_b32 s75, s{sW}, 8\ns_add_u32 s75, s75, {RDY}')
                e(f's_load_dwordx8 s[8:15], s[{pWS}:{pWS+1}], s75\ns_load_dwordx4 s[20:23], s[{pWS}:{pWS+1}], s75 offset:32\ns_load_dwordx4 s[48:51], s[{pWS}:{pWS+1}], s75 offset:48')
                e(f's_load_dwordx8 s[24:31], s[{pWS}:{pWS+1}], s75 offset:128\ns_load_dwordx4 s[56:59], s[{pWS}:{pWS+1}], s75 offset:160\ns_load_dwordx2 s[16:17], s[{pWS}:{pWS+1}], s75 offset:176\ns_load_dwordx2 s[32:33], s[{pWS}:{pWS+1}], s75 offset:184')
            if n == qpos:
                e('s_waitcnt lgkmcnt(0)')
                self.tags()
                prs = [12,14,16] + list(range(20,34,2)) + [48,50,56,58]
                e('s_and_b64 s[60:61], s[8:9], s[10:11]\ns_or_b64 s[66:67], s[8:9], s[10:11]')
                for p in prs: e(f's_and_b64 s[60:61], s[60:61], s[{p}:{p+1}]\ns_or_b64 s[66:67], s[66:67], s[{p}:{p+1}]')
                e(f's_and_b32 s60, s60, s61\ns_or_b32 s66, s66, s67\ns_xor_b32 s60, s60, s{sT0}\ns_xor_b32 s66, s66, s{sT0}\ns_or_b32 s60, s60, s66')
                e('s_cbranch_scc0 L_T_RDYOK')
                e('v_and_b32 v12, 1, v2\nv_lshlrev_b32 v12, 7, v12\nv_lshl_add_u32 v12, v1, 2, v12')
                e('L_T_RDY:')
                self.timeout()
                e(f'buffer_load_dword v13, v12, {srd(rWS)}, s75 offen sc1\ns_waitcnt vmcnt(0)\nv_cmp_ne_u32 vcc, s{sT0}, v13\ns_cbranch_vccnz L_T_RDY')
                e('L_T_RDYOK:')
                self.stamp('T.qiss')
                e(f's_lshl_b32 s79, s{sT}, 7\ns_add_u32 s79, s79, {GATE}\ns_cmp_eq_u32 s{sW}, 0\ns_cselect_b32 s79, s79, {OOB}\nv_mov_b32 v39, s79\nv_mov_b32 v21, s{sT1}')
                qloads(); vm += [('q',i) for i in range(8)]
                if self.o.get('vw', 0):
                    e(f'v_and_b32 v12, 1, v0\nv_lshlrev_b32 v12, 21, v12\ns_mov_b32 s{sTMP}, {PART}\nbuffer_load_dword v13, v12, {srd(rWS)}, s{sTMP} offen'); vm.append('vw')
                self.mk_srd(rA, pWO, 73, 5242880)
                e(f's_cmp_lt_u32 s{sR}, 10\ns_cselect_b32 s{rA+2}, s{rA+2}, 0')
            if n < 32:
                dma(n); vm.append(('d',n))
                if n in thr: e(f's_waitcnt vmcnt({thr[n]})')
            for c in range(3):
                if c not in kdone and n >= npre and ('d',8*c+7) in vm and younger(('d',8*c+7)) >= klag and (c == 0 or c-1 in kdone): kv(c)
        self.stamp('T.issued')
        if self.o.get('gate') == 1:
            e(f'buffer_store_dword v21, v39, {srd(rWS)}, 0 offen'); vm.append('gate')
        if self.o.get('tonly'):
            e('s_waitcnt vmcnt(0)'); self.stamp('T.ckv0'); e('s_branch L_END')
        for c in range(4):
            if c not in kdone: kv(c)
        if self.o.get('gate') == 2:
            e(f'buffer_store_dword v21, v39, {srd(rWS)}, 0 offen'); vm.append('gate')
        e('s_branch L_T_Q1')
        e('L_T_Q0:')
        self.fb((), (76, 77)); e(f's_sleep {self.o.get("qsleep",1)}')
        qloads()
        e('L_T_Q1:')
        e(f's_waitcnt vmcnt(0)\nds_read_b32 v12, v{vQC}\nds_read_b32 v13, v{vQC} offset:4096\ns_waitcnt lgkmcnt(0)\nv_max_u32 v12, v12, v13\nv_cmp_eq_u32 vcc, -1, v12\ns_cbranch_vccnz L_T_Q0')
        self.stamp('T.qin')
        if self.o.get('gate') == 3:
            e(f'buffer_store_dword v21, v39, {srd(rWS)}, 0 offen'); vm.append('gate')
        e('s_barrier')
        self.stamp('T.Qbar')
        def wo_ops(i): return [f's_add_u32 m0, s74, {WO+i*1024}', f's_mov_b32 s{sTMP}, {(32*(i>>2)+4*(i&3))*1280}', f'buffer_load_dwordx4 v{36+(i&1)}, {srd(rA)}, s{sTMP} offen nt lds']
        nwe = self.o.get('wo_early', 10)
        vS = 48; vP = 76; vPF = 88; vAcc = 128; vO = 192
        def qreg(s, ht): return 128 + ht*64 + s*4
        def qread(s, ht): return f'ds_read_b128 {v(qreg(s,ht),4)}, v{vQa+(s&3)} offset:{(s>>2)*256+ht*16384}'
        def qk(s, kt, ht):
            d = v(vS+(kt*2+ht)*4,4)
            return f'v_mfma_f32_16x16x32_bf16 {d}, {a((s*2+kt)*4,4)}, {v(qreg(s,ht),4)}, ' + ('0' if s == 0 else d)
        def pv(ks, T, ht):
            d = v(vAcc+(ht*8+T)*4,4)
            return f'v_mfma_f32_16x16x32_bf16 {d}, {v(vPF+(ks*2+ht)*4,4)}, {a(128+(ks*8+T)*4,4)}, ' + ('0' if ks == 0 else d)
        def ver(s, ht): return f'v_max3_u32 v23, v23, v{qreg(s,ht)}, v{qreg(s,ht)+2}'
        def cost(x): return 2 if x.startswith('v_exp') else (0 if x.startswith('s_') else 1)
        def stream(mf, toks, bg):
            skip = 0
            for m in mf:
                e(m)
                b = 2
                if skip: skip -= 1
                else:
                    while toks:
                        t = toks[0]
                        if isinstance(t, tuple): skip = t[1]; toks.pop(0); break
                        if cost(t) > b: break
                        e(t); b -= cost(t); toks.pop(0)
                while bg and cost(bg[0]) <= b:
                    b -= cost(bg[0]); e(bg.pop(0))
            return toks
        def flush(toks):
            for t in toks:
                if not isinstance(t, tuple): e(t)
        D = 4
        for s in range(D): e(qread(s,0))
        e(f'v_mov_b32 v23, 0\nbuffer_store_dwordx4 v[16:19], v20, {srd(rWS)}, s71 offen sc1')
        rd = [(s,0) for s in range(D,16)] + [(s,1) for s in range(16)]
        issued = D
        wo = [wo_ops(i) for i in range(nwe)]
        for s in range(16):
            e(f's_waitcnt lgkmcnt({min(15, issued-1-s)})')
            if s == 15: e('s_barrier')
            for kt in range(2):
                e(qk(s,kt,0))
                if rd: e(qread(*rd.pop(0))); issued += 1
                if kt == 0: e(ver(s,0))
                elif wo: flush(wo.pop(0))
        self.stamp('T.QK0')
        def sm(ht):
            r0 = vS+ht*4; r1 = vS+8+ht*4; m = 64; t = 65; M = 66+ht; rb = 72
            a_ = [f'v_max3_f32 v{m}, v{r0}, v{r0+1}, v{r0+2}', f'v_max3_f32 v{t}, v{r1}, v{r1+1}, v{r1+2}', f'v_max3_f32 v{m}, v{m}, v{r0+3}, v{r1+3}', f'v_max_f32 v{m}, v{m}, v{t}',
                  f'v_mov_b32 v{t}, v{m}', ('gap',0), f'v_permlane32_swap_b32 v{m}, v{t}', f'v_max_f32 v{m}, v{m}, v{t}', f'v_mov_b32 v{t}, v{m}', ('gap',0),
                  f'v_permlane16_swap_b32 v{m}, v{t}', f'v_max_f32 v{m}, v{m}, v{t}', f'ds_write_b32 v22, v{m} offset:{ht*256}']
            b_ = ['s_waitcnt lgkmcnt(0)', 's_barrier', f'ds_read_b128 {v(rb,4)}, v{vMR} offset:{ht*256}']
            c_ = ['s_waitcnt lgkmcnt(0)', f'v_max3_f32 v{M}, v{rb}, v{rb+1}, v{rb+2}', f'v_max_f32 v{M}, v{M}, v{rb+3}', f'v_mul_f32 v{M}, v38, v{M}']
            for b in (r0, r1):
                for r in range(4): c_.append(f'v_fma_f32 v{b+r}, v{b+r}, v38, -v{M}')
            for b in (r0, r1):
                for r in range(4): c_.append(f'v_exp_f32 v{b+r}, v{b+r}')
            for k,b in enumerate((r0, r1)):
                c_ += [f'v_cvt_pk_bf16_f32 v{vP+ht*4+k*2}, v{b}, v{b+1}', f'v_cvt_pk_bf16_f32 v{vP+ht*4+k*2+1}, v{b+2}, v{b+3}']
            c_.append(f'ds_write_b128 v{vPW}, {v(vP+ht*4,4)} offset:{ht*1024}')
            d_ = ['s_waitcnt lgkmcnt(0)', 's_barrier'] + [f'ds_read_b128 {v(vPF+(ks*2+ht)*4,4)}, v{vPR} offset:{(ks*2+ht)*1024}' for ks in range(4)]
            return a_, b_, c_, d_
        g1 = self.o.get('g1', 2); g2 = self.o.get('g2', 2)
        a0,b0,c0,d0 = sm(0); a1_,b1,c1,d1 = sm(1)
        e('s_waitcnt lgkmcnt(0)')
        mf = [qk(s,kt,1) for s in range(16) for kt in range(2)]
        bg = [ver(s,1) for s in range(16)]
        left = stream(mf, [('gap',1)] + a0 + [('gap',g1)] + b0 + [('gap',g2)] + c0, bg)
        flush(left)
        self.stamp('T.QK')
        flush(bg)
        flush(a1_)
        e('v_cmp_eq_u32 vcc, -1, v23')
        flush(d0[:2])
        e('s_cbranch_vccnz L_T_Q0')
        flush(d0[2:] + b1[2:])
        self.stamp('T.Pbar')
        def lsum(ht, dst):
            r0 = vS+ht*4; r1 = vS+8+ht*4
            return [f'v_add_f32 v{r0}, v{r0}, v{r0+1}', f'v_add_f32 v{r0+2}, v{r0+2}, v{r0+3}', f'v_add_f32 v{r1}, v{r1}, v{r1+1}', f'v_add_f32 v{r1+2}, v{r1+2}, v{r1+3}',
                    f'v_add_f32 v{r0}, v{r0}, v{r0+2}', f'v_add_f32 v{r1}, v{r1}, v{r1+2}', f'v_add_f32 v{dst}, v{r0}, v{r1}']
        flush(lsum(0, 70))
        e('s_waitcnt lgkmcnt(4)')
        mf = [pv(ks,T,0) for ks in range(4) for T in range(8)]
        left = stream(mf, [('gap',0)] + c1 + lsum(1, 71) + [('gap',self.o.get('g3',0))] + d1, [])
        flush(left)
        self.stamp('T.pv4')
        def outops(ht):
            ops = []
            for r in range(4):
                o = vO + (ht*4+r)*4
                for k in range(4):
                    ops.append(f'v_cvt_pk_bf16_f32 v{o+k}, v{vAcc+(ht*8+2*k)*4+r}, v{vAcc+(ht*8+2*k+1)*4+r}')
                ops.append(f's_mov_b32 s{sTMP}, {(16*ht+r)*131072}')
                ops.append(f'buffer_store_dwordx4 {v(o,4)}, v{vPS}, {srd(rWS)}, s{sTMP} offen sc1')
            return ops
        e('s_waitcnt lgkmcnt(0)')
        mf = [pv(ks,T,1) for ks in range(4) for T in range(8)]
        cs = self.o.get('cs', 1)
        def csum(ht):
            c = 48 + 4*ht; y = 56 + 2*ht; z = 60 + ht
            ops = []
            for r in range(4):
                o = vO + (ht*4+r)*4
                ops.append([f'v_add3_u32 v{c+r}, v{o}, v{o+1}, v{o+2}', f'v_add_u32 v{c+r}, v{c+r}, v{o+3}'])
            red = [f'v_add_u32_dpp v{y}, v{c}, v{c} row_ror:8 row_mask:0xf bank_mask:0x3', f'v_add_u32_dpp v{y+1}, v{c+1}, v{c+1} row_ror:8 row_mask:0xf bank_mask:0x3',
                   f'v_add_u32_dpp v{y}, v{c+2}, v{c+2} row_ror:8 row_mask:0xf bank_mask:0xc', f'v_add_u32_dpp v{y+1}, v{c+3}, v{c+3} row_ror:8 row_mask:0xf bank_mask:0xc',
                   f'v_add_u32_dpp v{z}, v{y}, v{y} row_shl:4 row_mask:0xf bank_mask:0x5', f'v_add_u32_dpp v{z}, v{y+1}, v{y+1} row_shr:4 row_mask:0xf bank_mask:0xa',
                   f'v_add_u32_dpp v{z}, v{z}, v{z} quad_perm:[1,0,3,2] {DPP}', f'v_add_u32_dpp v{z}, v{z}, v{z} quad_perm:[2,3,0,1] {DPP}']
            return ops, red
        def out_cs(ht):
            if not cs: return outops(ht)
            o = outops(ht); l, red = csum(ht); res = []
            for r in range(4): res += o[6*r:6*r+6] + l[r]
            return res + red
        ltail = ['v_permlane32_swap_b32 v70, v71','v_add_f32 v70, v70, v71','v_mov_b32 v71, v70', f'ds_read_b128 v[76:79], v{vLR}', 'v_permlane16_swap_b32 v70, v71','v_add_f32 v70, v70, v71',
                 f'ds_write_b32 v{vMW}, v70 offset:512', 'v_and_b32 v71, 1, v1']
        recops = ['s_waitcnt lgkmcnt(0)', 's_barrier', f'ds_read_b128 v[72:75], v{vLR} offset:512', 'v_max3_f32 v84, v76, v77, v78', 'v_max_f32 v84, v84, v79', 'v_mul_f32 v84, v38, v84',
                  f'v_mov_b32 v86, s{sT0}', f'v_mov_b32 v87, s{sT0 if cs else sT1}', 'v_cmp_eq_u32 vcc, 1, v71', ('gap',1), 's_waitcnt lgkmcnt(0)', 'v_add_f32 v72, v72, v73', 'v_add_f32 v74, v74, v75', 'v_add_f32 v85, v72, v74']
        left = stream(mf, ltail + out_cs(0) + recops, [])
        flush(left)
        self.stamp('T.pv8')
        flush(out_cs(1))
        if cs: e('v_cndmask_b32 v86, v60, v61, vcc\nv_sub_u32 v86, 0, v86')
        self.stamp('T.PVst')
        rw = self.o.get('recwait', None if cs else 0)
        e(f's_waitcnt vmcnt({nwe+8 if rw is None else rw})')
        self.pub('v[84:87]', vRS)
        self.stamp('T.rec')
        e(f's_cmp_ge_u32 s{sR}, 10\ns_cbranch_scc1 L_END')
        for i in range(nwe, 16): flush(wo_ops(i))
        e(f"""
        v_lshrrev_b32 v12, 2, v1
        v_lshl_add_u32 v12, v2, 3, v12
        v_lshlrev_b32 v12, 7, v12
        v_and_b32 v13, 3, v1
        v_lshl_add_u32 v12, v13, 3, v12
        v_lshrrev_b32 v14, 3, v1
        v_and_b32 v15, 1, v2
        v_lshl_or_b32 v14, v15, 1, v14
        v_xor_b32 v14, s{sW}, v14
        v_lshl_add_u32 v24, v14, 5, v12
        v_mul_u32_u24 v13, 320, v13
        v_add_u32 v13, v13, v11
        v_add_u32 v25, {HB}, v13
        v_mul_u32_u24 v12, 320, v2
        v_lshl_add_u32 v12, v1, 4, v12
        s_mul_i32 s{s0}, s{sW}, 1280
        s_add_u32 s{s0}, s{s0}, {HB}
        v_add_u32 v26, s{s0}, v12
        v_lshlrev_b32 v12, 4, v1
        v_lshl_add_u32 v27, v2, 13, v12
        s_lshl_b32 s75, s{sX8}, 4
        s_add_u32 s75, s75, s{sW}
        s_lshl_b32 s75, s75, 11
        s_add_u32 s75, s75, {SL+S_HC+LOC}
        s_and_b32 s75, s75, s{sLM}
        s_lshl_b32 s{s0}, s{sX8}, 11
        s_lshl_b32 s{s1}, s{sR}, 7
        s_add_u32 s{s0}, s{s0}, s{s1}
        s_lshl_b32 s{s1}, s{sW}, 5
        s_add_u32 s{s0}, s{s0}, s{s1}
        s_add_u32 s{s0}, s{s0}, {H3B}
        v_lshlrev_b32 v12, 1, v0
        v_add_u32 v12, s{s0}, v12
        v_cmp_gt_u32 vcc, 16, v0
        v_cndmask_b32 v28, v9, v12, vcc
        s_waitcnt vmcnt(0)
        s_barrier
        """)
        self.stamp('C.land')
        for st_ in range(16):
            for q in range(2): e(f'ds_read_b64_tr_b16 {a(st_*4+2*q,2)}, v24 offset:{WO+st_*4096+q*512}')
        e('L_C_HC:')
        e(f'buffer_load_dwordx4 v[76:79], v27, {srd(rWS)}, s75 offen sc1')
        e('s_waitcnt vmcnt(0)')
        e('ds_write_b128 v26, v[76:79]')
        self.maxchain(12, range(76,80))
        e('v_cmp_eq_u32 vcc, -1, v12')
        self.retry('L_C_HC', sleep=0, sregs=(75,))
        self.stamp('C.hcin')
        e('s_waitcnt lgkmcnt(0)\ns_barrier')
        self.stamp('C.bar')
        NP = 8
        def ar(st_): return f'ds_read_b128 {v(128+4*st_,4)}, v25 offset:{(st_>>2)*1280+(st_&3)*64}'
        for st_ in range(NP): e(ar(st_))
        for st_ in range(16):
            e(f's_waitcnt lgkmcnt({min(NP-1, 15-st_)})')
            e(f'v_mfma_f32_16x16x32_bf16 v[104:107], {v(128+4*st_,4)}, {a(st_*4,4)}, ' + ('0' if st_ == 0 else 'v[104:107]'))
            if st_+NP < 16: e(ar(st_+NP))
        e('v_pk_add_f32 v[104:105], v[104:105], v[106:107]\nv_add_f32 v104, v104, v105\nv_cvt_pk_bf16_f32 v104, v104, v104\nv_min_u32 v104, -2, v104')
        e(f'buffer_store_short v104, v28, {srd(rWS)}, 0 offen sc1\nbuffer_store_short v104, v28, {srd(rWS)}, s{sLOC} offen')
        self.stamp('C.h3')

    def epilogue(self):
        e = self.e
        e('L_END:')
        if 'amp2' in self.o:
            k = self.idx[self.o['amp2']]
            e(f's_waitcnt lgkmcnt(0)\ns_cmp_eq_u32 s{sSTAMP+2*k}, 0\ns_cbranch_scc1 L_EXIT')
            if 'ampwg' in self.o: e(f's_cmp_lg_u32 s2, {self.o["ampwg"]}\ns_cbranch_scc1 L_EXIT')
            e(f's_sub_u32 s60, s{sSTAMP+2*k}, s{sSTAMP}\ns_lshl_b32 s60, s60, 3\ns_add_u32 s60, s60, s{sSTAMP}\ns_add_u32 s60, s60, 2000')
            e('L_AMP2:\ns_sleep 4\ns_memrealtime s[62:63]\ns_waitcnt lgkmcnt(0)\ns_sub_u32 s61, s62, s60\ns_cmp_lt_i32 s61, 0\ns_cbranch_scc1 L_AMP2')
        if self.stamps and 'amp' not in self.o and 'amp2' not in self.o:
            e(f's_waitcnt lgkmcnt(0)\ns_lshl_b32 s60, s2, 2\ns_add_u32 s60, s60, s{sW}\ns_lshl_b32 s60, s60, 6\ns_add_u32 s60, s60, {STAMP}\nv_mov_b32 v4, 0')
            for k in range(11): e(f'v_mov_b32 v5, s{sSTAMP+2*k}\nbuffer_store_dword v5, v4, {srd(rWS)}, s60 offen offset:{4*k}')
            e(f'v_mov_b32 v5, s{sTO}\nbuffer_store_dword v5, v4, {srd(rWS)}, s60 offen offset:44')
        e('L_EXIT:')

    def build(self):
        if self.stamps:
            for k in range(1,11): self.e(f's_mov_b32 s{sSTAMP+2*k}, 0')
        self.prologue(); self.role_A(); self.role_T(); self.epilogue()
        hdr = open('header.txt').read()
        return f'''{hdr}; @launch grid=(256,1,1) block=(256,1,1) lds=163840
.amdgcn_target "amdgcn-amd-amdhsa--gfx950"
.text
.globl {KN}
.p2align 8
.type {KN},@function
{KN}:
{self.e.text()}
s_endpgm
.section .rodata,"a"
.p2align 6
.amdhsa_kernel {KN}
  .amdhsa_next_free_vgpr 512
  .amdhsa_next_free_sgpr 102
  .amdhsa_accum_offset 256
  .amdhsa_group_segment_fixed_size 0
  .amdhsa_kernarg_size 112
  .amdhsa_user_sgpr_count 2
  .amdhsa_user_sgpr_kernarg_segment_ptr 1
  .amdhsa_system_sgpr_workgroup_id_x 1
.end_amdhsa_kernel
'''

if __name__ == '__main__':
    import json
    out = sys.argv[1]; stamps = len(sys.argv) > 2 and sys.argv[2] == '1'
    opt = json.loads(sys.argv[3]) if len(sys.argv) > 3 else {}
    open(out,'w').write(G(stamps, opt).build())
```

```python
import sys
sys.path.insert(0,'work')
from dsl import Asm
NAME = 'sequential_preLN__compressed_kv_cla__dense_activation_squared_relu__decode'
KN = NAME + '_kernel'

EPOCH=0; RDY=0x1000; GATE=0x2000; QP=0x8000; SL=0x40000; REC=0x80000; LOC=0x100000; PART=0x200000; STAMP=0x600000
S_QL=0; S_HC=256; S_H4=768; QCS=0x6000; H3B = SL + 108*2048 + S_H4
WSSZ=0x700000
OOB=0x7ffffff0
NLOC=96
sLM,sLC,sLOC,sTMP = 3,4,5,6
pX,pCKV,pWQ,pWUK,pWUV,pWO,pBX,pW1,pB1,pW2,pB2,pOUT,pDBG,pWS = [8+2*i for i in range(14)]
sW,sX8,sR,sE,sT0,sT1,sTO,sC = 36,37,38,39,40,41,42,43
rWS=44; rA=48; rB=52; rC=56
sSTAMP=80
def srd(r): return f's[{r}:{r+3}]'
def v(n,c=1): return f'v{n}' if c==1 else f'v[{n}:{n+c-1}]'
def a(n,c=1): return f'a{n}' if c==1 else f'a[{n}:{n+c-1}]'
DPP='row_mask:0xf bank_mask:0xf'
QB = 131072
WQ = 69632; XN = 110592

class G:
    def __init__(self, stamps=False, opt=None):
        self.e = Asm(); self.stamps = stamps; self.o = opt or {}
        self.slots = {'A':['start'],'T':['start'],'R':[]}; self.idx = {}; self.tbase = 1
    def stamp(self, name):
        if not self.stamps: return
        role = name.split('.')[0]
        lst = self.slots['A' if role in 'AFR' else 'T']
        want = self.o.get('want')
        if name == 'start': k = 0
        else:
            if want is not None and name not in want: return
            if role == 'R':
                k = self.tbase + len(self.slots['R']); self.slots['R'].append(name)
            else:
                k = len(lst); lst.append(name)
                if role == 'A': self.tbase = len(lst)
            if k > 10: raise Exception('too many stamps '+name)
        self.idx[name] = k
        op = 's_memtime' if self.o.get('cyc') else 's_memrealtime'
        self.e(f'{op} s[{sSTAMP+2*k}:{sSTAMP+2*k+1}]')
        if name in self.o.get('cut', []): self.e('s_branch L_END')
    def mk_srd(self, r, ptr, off_sgpr, size):
        e = self.e
        if off_sgpr is None:
            e(f's_mov_b32 s{r}, s{ptr}\ns_and_b32 s{r+1}, s{ptr+1}, 0xffff\ns_mov_b32 s{r+2}, {size}')
        else:
            e(f's_add_u32 s{r}, s{ptr}, s{off_sgpr}\ns_addc_u32 s{r+1}, s{ptr+1}, 0\ns_and_b32 s{r+1}, s{r+1}, 0xffff\ns_sub_u32 s{r+2}, {size}, s{off_sgpr}')
        e(f's_mov_b32 s{r+3}, 0x20000')
    def allred(self, op, x, t, steps16=4):
        e = self.e
        pats = ['quad_perm:[1,0,3,2]','quad_perm:[2,3,0,1]','row_half_mirror','row_mirror'][:steps16]
        for p in pats: e(f'{op}_dpp v{x}, v{x}, v{x} {p} {DPP}')
        e(f'v_mov_b32 v{t}, v{x}\nv_permlane16_swap_b32 v{x}, v{t}\n{op} v{x}, v{x}, v{t}')
        e(f'v_mov_b32 v{t}, v{x}\nv_permlane32_swap_b32 v{x}, v{t}\n{op} v{x}, v{x}, v{t}')
    def timeout(self):
        self.e(f's_sub_u32 s{sTO}, s{sTO}, 1\ns_cmp_eq_u32 s{sTO}, 0\ns_cbranch_scc1 L_END')
    def fb(self, vregs=(), sregs=()):
        e = self.e
        self.timeout()
        e(f's_add_u32 s{sLC}, s{sLC}, 1\ns_cmp_ge_u32 s{sLC}, {NLOC}\ns_cselect_b32 s{sLM}, {(~LOC)&0xffffffff}, s{sLM}')
        self.lmask(vregs, sregs)
    def lmask(self, vregs=(), sregs=()):
        for r in vregs: self.e(f'v_and_b32 v{r}, s{sLM}, v{r}')
        for r in sregs: self.e(f's_and_b32 s{r}, s{r}, s{sLM}')
    def stop(self, data):
        if '[' not in data: return 'buffer_store_dword'
        lo, hi = data[2:-1].split(':'); return f'buffer_store_dwordx{int(hi)-int(lo)+1}'
    def publ(self, data, voff): self.e(f'{self.stop(data)} {data}, v{voff}, {srd(rWS)}, s{sLOC} offen')
    def pubg(self, data, voff): self.e(f'{self.stop(data)} {data}, v{voff}, {srd(rWS)}, 0 offen sc1')
    def pub(self, data, voff): self.pubg(data, voff); self.publ(data, voff)
    def late_pubg(self, data, voff):
        e = self.e; l = e.newlabel('Lnp')
        e(f's_cmp_eq_u32 s{sLM}, -1\ns_cbranch_scc1 {l}'); self.pubg(data, voff); e(f'{l}:')
    def retry(self, label, sleep=1, vregs=(), sregs=(), late=None):
        e = self.e
        ok = e.newlabel('Lok')
        e(f's_cbranch_vccz {ok}')
        self.fb(vregs, sregs)
        if late: self.late_pubg(*late)
        if sleep: e(f's_sleep {sleep}')
        e(f's_branch {label}')
        e(f'{ok}:')
    def maxchain(self, dst, regs):
        e = self.e
        regs = list(regs)
        e(f'v_max3_u32 v{dst}, v{regs[0]}, v{regs[1]}, v{regs[2]}'); regs = regs[3:]
        while len(regs) >= 2:
            e(f'v_max3_u32 v{dst}, v{dst}, v{regs[0]}, v{regs[1]}'); regs = regs[2:]
        if regs: e(f'v_max_u32 v{dst}, v{dst}, v{regs[0]}')
    def tagcheck(self, dst, pairs):
        e = self.e; rs = []
        for r in pairs:
            e(f'v_xor_b32 v{r}, s{sT0}, v{r}\nv_xor_b32 v{r+1}, s{sT1}, v{r+1}'); rs += [r, r+1]
        if len(rs) == 2: e(f'v_or_b32 v{dst}, v{rs[0]}, v{rs[1]}')
        else:
            e(f'v_or3_b32 v{dst}, v{rs[0]}, v{rs[1]}, v{rs[2]}'); rs = rs[3:]
            while len(rs) >= 2: e(f'v_or3_b32 v{dst}, v{dst}, v{rs[0]}, v{rs[1]}'); rs = rs[2:]
            if rs: e(f'v_or_b32 v{dst}, v{dst}, v{rs[0]}')
        e(f'v_cmp_ne_u32 vcc, 0, v{dst}')
    def ident_masks(self, dst, val_lo, val_hi, first, n, t):
        e = self.e
        e(f'v_and_b32 v{t}, 1, v1\nv_cmp_eq_u32 vcc, 1, v{t}\nv_mov_b32 v{t}, {val_lo}\nv_mov_b32 v{t+1}, {val_hi}\nv_cndmask_b32 v{t}, v{t}, v{t+1}, vcc')
        e(f'v_lshrrev_b32 v{t+1}, 1, v1')
        for r in range(n):
            e(f'v_cmp_eq_u32 vcc, {first+r}, v{t+1}\nv_cndmask_b32 v{dst+r}, 0, v{t}, vcc')
    def red_final(self, RED, t, va, clamp):
        e = self.e
        for w in range(4): e(f'ds_read_b128 {v(t+4+4*w,4)}, v{va} offset:{RED+256*w}')
        e('s_waitcnt lgkmcnt(2)')
        for i in range(2): e(f'v_pk_add_f32 {v(t+4+2*i,2)}, {v(t+4+2*i,2)}, {v(t+8+2*i,2)}')
        e('s_waitcnt lgkmcnt(0)')
        for i in range(2): e(f'v_pk_add_f32 {v(t+12+2*i,2)}, {v(t+12+2*i,2)}, {v(t+16+2*i,2)}')
        for i in range(2): e(f'v_pk_add_f32 {v(t+4+2*i,2)}, {v(t+4+2*i,2)}, {v(t+12+2*i,2)}')
        for i in range(2): e(f'v_cvt_pk_bf16_f32 v{t+i}, v{t+4+2*i}, v{t+5+2*i}')
        if clamp:
            for i in range(2): e(f'v_min_u32 v{t+i}, -2, v{t+i}')
    def code_prefetch(self):
        e = self.e
        npl = self.o.get('npl', 3)
        e(f's_getpc_b64 s[20:21]\nL_PC:\ns_sub_u32 s20, s20, L_PC-{KN}\ns_subb_u32 s21, s21, 0')
        e(f's_and_b32 s22, s{sR}, 15\ns_lshl_b32 s22, s22, 2\ns_add_u32 s22, s22, s{sW}\ns_lshl_b32 s22, s22, 7')
        for i in range(npl):
            e(f's_min_u32 s23, s22, L_EXIT-{KN}\ns_load_dword s7, s[20:21], s23')
            if i < npl-1: e(f's_add_u32 s22, s22, 8192')
    def kmap(self):
        k = self.o.get('kil', 0)
        if k == 0: return 17, 15, 4096
        if k == 1: return 12, 22, 1 << 19
        if k == 2: return 12, 19, 1 << 21
        if k == 3: return 14, 12, 1 << 21
        if k == 4: return 15, 22, 4096
        if k == 5: return -12, 19, 1 << 16
        if k == 6: return -12, 16, 1 << 18
        if k == 7: return -14, 12, 1 << 18
        if k == 8: return -15, 19, 4096
    def kbase(self, dst, sidx, tsh):
        if tsh > 0: self.e(f's_lshl_b32 s{dst}, s{sidx}, {tsh}')
        else: self.e(f's_and_b32 s{dst}, s{sidx}, 15\ns_lshl_b32 s{dst}, s{dst}, {-tsh}\ns_lshl_b32 s{sTMP}, s{sX8}, 21\ns_add_u32 s{dst}, s{dst}, s{sTMP}')
    def tlb_warm(self):
        e = self.e
        M = 1 << 21
        lists = {1: [(pWUK,0),(pWUK,M),(pWS,PART),(pWS,PART+M),(pWUV,0),(pWUV,M)],
                 2: [(pW1,0),(pW1,M),(pW2,0),(pW2,M),(pB1,0),(pB2,0)],
                 3: [(pWO,0),(pWO,M),(pWO,2*M),(pOUT,0)]}
        for w,l in lists.items():
            e(f's_cmp_lg_u32 s{sW}, {w}\ns_cbranch_scc1 L_TW{w}')
            for p,off in l:
                if off: e(f's_mov_b32 s60, {off}\ns_load_dword s7, s[{p}:{p+1}], s60')
                else: e(f's_load_dword s7, s[{p}:{p+1}], 0')
            e(f'L_TW{w}:')
    def tags(self):
        self.e(f's_add_u32 s{sT0}, s{sE}, 0x9e3779b9\ns_xor_b32 s{sT1}, s{sT0}, 0x5bd1e995')

    def prologue(self):
        e = self.e
        self.stamp('start')
        e(f'''
        s_cmp_ge_u32 s2, 256
        s_cbranch_scc1 L_EXIT
        s_load_dwordx16 s[8:23], s[0:1], 0
        s_load_dwordx4 s[32:35], s[0:1], 96
        s_load_dwordx8 s[24:31], s[0:1], 64
        v_lshrrev_b32 v1, 6, v0
        v_and_b32 v0, 63, v0
        v_readfirstlane_b32 s{sW}, v1
        v_and_b32 v1, 15, v0
        v_lshrrev_b32 v2, 4, v0
        v_lshlrev_b32 v3, 4, v0
        v_lshlrev_b32 v4, 2, v0
        s_and_b32 s{sX8}, s2, 7
        s_lshr_b32 s{sR}, s2, 3
        v_lshlrev_b32 v5, 4, v1
        v_lshlrev_b32 v6, 5, v2
        v_xor_b32 v5, v5, v6
        v_lshl_add_u32 v6, v2, 13, v5
        s_lshr_b32 s67, s{sW}, 1
        s_lshl_b32 s67, s67, 7
        v_xor_b32 v8, s67, v6
        v_mov_b32 v9, {OOB}
        v_lshlrev_b32 v11, 4, v2
        s_bfe_u32 s60, s{sR}, 0x20002
        s_mul_i32 s60, s60, {160*8192}
        s_and_b32 s63, s{sR}, 3
        s_lshl_b32 s64, s{sX8}, 2
        s_add_u32 s63, s63, s64
        s_lshl_b32 s63, s63, 8
        s_add_u32 s60, s60, s63
        s_lshl_b32 s61, s{sW}, 15
        s_lshl_b32 s62, s{sW}, 10
        s_add_u32 s62, s62, {WQ}
        s_mov_b32 s{rA+3}, 0x20000
        s_mov_b32 s{rC+3}, 0x20000
        s_mov_b32 s{rC+2}, 1280
        s_sub_u32 s{rA+2}, 5242880, s60
        s_mov_b32 s{sTO}, 400000
        s_mov_b32 s{sLM}, -1
        s_mov_b32 s{sLC}, 0
        s_mov_b32 s{sLOC}, {LOC}
        s_mov_b32 s{rWS+2}, {WSSZ}
        s_mov_b32 s{rWS+3}, 0x20000
        s_waitcnt lgkmcnt(0)
        s_add_u32 s{rA}, s{pWQ}, s60
        s_addc_u32 s{rA+1}, s{pWQ+1}, 0
        s_and_b32 s{rA+1}, s{rA+1}, 0xffff
        s_mov_b32 s{rC}, s{pX}
        s_and_b32 s{rC+1}, s{pX+1}, 0xffff
        s_mov_b32 s{rWS}, s{pWS}
        s_and_b32 s{rWS+1}, s{pWS+1}, 0xffff
        s_cmp_lt_u32 s{sR}, 16
        s_cbranch_scc1 L_T
        ''')
    def x_issue(self):
        for kk in range(5): self.e(f'buffer_load_dword v{20+kk}, v4, {srd(rC)}, 0 offen offset:{256*kk} {self.o.get("xflag","")}')
    def wq_dma(self, k):
        e = self.e
        e(f's_add_u32 m0, s62, {k*4096}')
        e(f'buffer_load_dwordx4 v8, {srd(rA)}, s61 offen nt lds')
        if k < 9: e(f's_add_u32 s61, s61, {4*32768}')
    def wuk_setup(self, sAi, srdreg):
        e = self.e
        e(f'''
        s_lshl_b32 s63, s{sX8}, 2
        s_add_u32 s64, s63, s{sW}
        s_lshl_b32 s64, s64, 8
        s_lshl_b32 s65, s{sAi}, 18
        s_add_u32 s64, s64, s65
        ''')
        self.mk_srd(srdreg, pWUK, 64, 4194304)
        e(f'v_xor_b32 v7, 0x80, v6\ns_mov_b32 s68, 0\ns_lshl_b32 s69, s{sW}, 13')
    def wuk_dma(self, k, srdreg, base):
        e = self.e
        e(f's_add_u32 m0, s69, {base+k*1024}')
        e(f'buffer_load_dwordx4 v{6 if ((k>>1)&1)==0 else 7}, {srd(srdreg)}, s68 offen nt lds')
        if k < 7: e(f's_add_u32 s68, s68, 32768')
    def a1(self, role, y_x, y_wq, mid):
        e = self.e
        s0, s1 = 63, 64
        e(f'''
        v_lshrrev_b32 v12, 2, v1
        v_lshl_add_u32 v13, v2, 3, v12
        v_lshlrev_b32 v13, 8, v13
        v_and_b32 v14, 3, v1
        v_lshl_add_u32 v13, v14, 3, v13
        v_and_b32 v15, 1, v2
        v_lshl_or_b32 v15, v15, 2, v12
        s_lshl_b32 s{s0}, s{sW}, 1
        v_xor_b32 v15, s{s0}, v15
        v_lshl_add_u32 v60, v15, 5, v13
        v_xor_b32 v15, 1, v15
        v_lshl_add_u32 v61, v15, 5, v13
        v_add_u32 v56, {WQ}, v60
        v_add_u32 v57, {WQ}, v61
        ''')
        e(f'''
        v_lshl_add_u32 v12, v1, 6, v11
        s_and_b32 s{s0}, s{sR}, 3
        s_lshl_b32 s{s1}, s{sX8}, 2
        s_add_u32 s{s0}, s{s0}, s{s1}
        s_lshl_b32 s{s0}, s{s0}, 2
        s_bfe_u32 s{s1}, s{sR}, 0x20002
        s_add_u32 s{s0}, s{s0}, s{s1}
        s_lshl_b32 s{s0}, s{s0}, 9
        s_lshl_b32 s{s1}, s{sW}, 7
        s_add_u32 s{s0}, s{s0}, s{s1}
        s_add_u32 s{s0}, s{s0}, {QP}
        v_add_u32 v12, s{s0}, v12
        v_cmp_gt_u32 vcc, 2, v1
        v_cndmask_b32 v62, v9, v12, vcc
        v_cmp_eq_u32 s[70:71], 1, v1
        s_mul_i32 s{s0}, s{sW}, 1280
        s_add_u32 s{s0}, s{s0}, {XN}
        v_add_u32 v10, s{s0}, v4
        s_bfe_u32 s{s1}, s{sR}, 0x20002
        s_mul_i32 s{s1}, s{s1}, 320
        s_add_u32 s{s0}, s{s0}, s{s1}
        v_add_u32 v12, s{s0}, v11
        s_waitcnt vmcnt({y_x}) lgkmcnt(0)
        ''')
        self.stamp(role+'.x')
        for k in range(5): e(f'v_lshlrev_b32 v{26+2*k}, 16, v{20+k}\nv_and_b32 v{27+2*k}, 0xffff0000, v{20+k}')
        e('v_pk_add_f32 v[36:37], v[26:27], v[28:29]\nv_pk_add_f32 v[38:39], v[30:31], v[32:33]\nv_pk_add_f32 v[36:37], v[36:37], v[34:35]\nv_pk_add_f32 v[36:37], v[36:37], v[38:39]\nv_add_f32 v36, v36, v37')
        self.allred('v_add_f32', 36, 37)
        e('v_mul_f32 v36, 0xbacccccd, v36\nv_mov_b32 v37, v36')
        for k in range(26,36,2): e(f'v_pk_add_f32 {v(k,2)}, {v(k,2)}, v[36:37]')
        e('v_pk_mul_f32 v[36:37], v[26:27], v[26:27]')
        for k in range(28,36,2): e(f'v_pk_fma_f32 v[36:37], {v(k,2)}, {v(k,2)}, v[36:37]')
        e('v_add_f32 v36, v36, v37')
        self.allred('v_add_f32', 36, 37)
        e('v_mul_f32 v36, 0x3acccccd, v36\nv_add_f32 v36, 0x3727c5ac, v36\nv_rsq_f32 v36, v36\nv_mov_b32 v37, v36')
        for k in range(26,36,2): e(f'v_pk_mul_f32 {v(k,2)}, {v(k,2)}, v[36:37]')
        for k in range(5): e(f'v_cvt_pk_bf16_f32 v{20+k}, v{26+2*k}, v{27+2*k}\nds_write_b32 v10, v{20+k} offset:{256*k}')
        e('s_waitcnt lgkmcnt(0)')
        for s in range(5): e(f'ds_read_b128 {v(36+4*s,4)}, v12 offset:{s*64}')
        e(f's_load_dword s{sE}, s[{pWS}:{pWS+1}], {EPOCH}')
        self.stamp(role+'.ln')
        mid()
        e(f's_waitcnt vmcnt({y_wq}) lgkmcnt(0)\ns_barrier')
        self.stamp(role+'.wq')
        vW = 128
        for s in range(5):
            for T in range(2):
                for q in range(2): e(f'ds_read_b64_tr_b16 {v(vW+(s*2+T)*4+2*q,2)}, v{56+T} offset:{s*8192+q*1024}')
        self.tags()
        e(f'v_mov_b32 v18, s{sT0}\nv_mov_b32 v19, s{sT1}')
        for s in range(5):
            for T in range(2):
                e(f's_waitcnt lgkmcnt({min(15,18-(s*2+T)*2)})')
                e(f'v_mfma_f32_16x16x32_bf16 {v(84+4*T,4)}, {v(vW+(s*2+T)*4,4)}, {v(36+4*s,4)}, ' + ('0' if s==0 else v(84+4*T,4)))
        for i in range(4): e(f'v_cvt_pk_bf16_f32 v{92+i}, v{84+2*i}, v{85+2*i}')
        e('v_cndmask_b32 v16, v92, v94, s[70:71]\nv_cndmask_b32 v17, v93, v95, s[70:71]')
        self.publ('v[16:19]', 62)
        self.stamp(role+'.qp')


    def role_A(self):
        e = self.e
        QV=0; CL=1024; ML=2304; RED=2560; DUM=3584; WUK=4096; WUV=36864
        W1=69632; W2=W1+20480; HB=4096; AP=HB+2048; ST=AP+256; HELP=135168
        sAi,sHd,sJ,s0,s1,s2_,sSL = 72,73,74,63,64,65,66
        sF,sG = 60,61
        if self.o.get('noA'): e('s_branch L_END')
        order = self.o.get('a_order', 'qqqqqqqqqq|uuuuuuuu')
        cnt = {'q':0,'u':0}
        def issue(ch):
            if ch == 'q': self.wq_dma(cnt['q'])
            else:
                if cnt['u'] == 0: self.wuk_setup(sAi, rB)
                self.wuk_dma(cnt['u'], rB, WUK)
            cnt[ch] += 1
        e(f's_sub_u32 s{sAi}, s{sR}, 16')
        self.x_issue()
        o1, o2 = order.split('|')
        for ch in o1: issue(ch)
        e(f"""
        s_lshl_b32 s63, s{sX8}, 2
        s_and_b32 s{sHd}, s{sAi}, 3
        s_add_u32 s{sHd}, s{sHd}, s63
        s_lshr_b32 s{sJ}, s{sAi}, 2
        s_lshl_b32 s{sSL}, s{sX8}, 4
        s_add_u32 s{sSL}, s{sSL}, s{sAi}
        """)
        def mid():
            for ch in o2: issue(ch)
        full = o1 + o2
        self.a1('A', len(o1), len(full)-1-full.rindex('q'), mid)
        e(f"""
        s_lshl_b32 s{s0}, s{sX8}, 4
        s_and_b32 s{s1}, s{sAi}, 12
        s_add_u32 s{s0}, s{s0}, s{s1}
        s_add_u32 s{s0}, s{s0}, s{sW}
        s_lshl_b32 s{s0}, s{s0}, 11
        s_and_b32 s{s1}, s{sAi}, 3
        s_lshl_b32 s{s1}, s{s1}, 6
        s_add_u32 s{s0}, s{s0}, s{s1}
        s_add_u32 s{s0}, s{s0}, {SL+S_QL}
        v_add_u32 v12, s{s0}, v4
        s_lshl_b32 s{s0}, s{sSL}, 11
        s_lshl_b32 s{s1}, s{sW}, 7
        s_add_u32 s{s0}, s{s0}, s{s1}
        s_add_u32 s{s0}, s{s0}, {SL+S_HC}
        v_lshlrev_b32 v13, 3, v0
        v_add_u32 v13, s{s0}, v13
        v_cmp_gt_u32 vcc, 16, v0
        v_cndmask_b32 v101, v9, v12, vcc
        v_cndmask_b32 v102, v9, v13, vcc
        s_lshl_b32 s{s0}, s{sSL}, 2
        s_add_u32 s{s0}, s{s0}, s{sW}
        s_lshl_b32 s{s0}, s{s0}, 3
        s_add_u32 s{s0}, s{s0}, {QCS}
        v_mov_b32 v12, s{s0}
        s_and_b32 s{s1}, s{sAi}, 7
        s_lshl_b32 s{s1}, s{s1}, 1
        v_cmp_eq_u32 vcc, s{s1}, v0
        v_cndmask_b32 v103, v9, v12, vcc
        v_mov_b32 v99, s{sT0}
        """)
        e(f"""
        v_lshlrev_b32 v27, 9, v2
        v_lshl_add_u32 v27, v1, 4, v27
        s_lshl_b32 s{s2_}, s{sX8}, 2
        s_add_u32 s{s2_}, s{s2_}, s{sW}
        s_lshl_b32 s{s2_}, s{s2_}, 11
        s_add_u32 s{s2_}, s{s2_}, {QP+LOC}
        v_lshlrev_b32 v12, 9, v1
        s_lshl_b32 s{s0}, s{sW}, 13
        s_add_u32 s{s0}, s{s0}, {WUK}
        v_add_u32 v12, s{s0}, v12
        v_and_b32 v13, 1, v1
        v_and_b32 v14, 4, v1
        v_lshl_or_b32 v13, v13, 1, v14
        v_lshlrev_b32 v13, 5, v13
        """)
        def h0loads():
            for i in range(2): e(f'buffer_load_dwordx4 {v(64+4*i,4)}, v27, {srd(rWS)}, s{s2_} offen offset:{i*256} sc1')
        for s in range(4):
            e(f'v_add_u32 v14, {s*64}, v11\nv_xor_b32 v14, v14, v13\nv_add_u32 v{40+2*s}, v14, v12\nv_xor_b32 v14, 32, v14\nv_add_u32 v{41+2*s}, v14, v12')
        vI = 28
        self.ident_masks(vI, 0x3f80, 0x3f800000, 0, 8, 12)
        e(f"""
        s_lshl_b32 s{s0}, s{sW}, 8
        v_lshlrev_b32 v12, 3, v0
        v_add_u32 v12, s{s0}, v12
        v_mov_b32 v13, {DUM}
        v_cmp_gt_u32 vcc, 32, v0
        v_cndmask_b32 v24, v13, v12, vcc
        v_add_u32 v25, s{s0}, v11
        """)
        e(f's_waitcnt vmcnt({1+self.o.get("h0lead",3)})')
        h0loads()
        e('s_waitcnt vmcnt(3)')
        self.stamp('A.wuk')
        vU = 112
        for s in range(4):
            for T in range(2): e(f'ds_read_b128 {v(vU+(s*2+T)*4,4)}, v{40+2*s+T} offset:{T*256}')
        e('L_A_H0:')
        e('s_waitcnt vmcnt(0)')
        for i in range(2):
            e(f'v_mfma_f32_16x16x16_bf16 v[80:83], {v(vI+2*i,2)}, {v(64+4*i,2)}, ' + ('0' if i==0 else 'v[80:83]'))
        self.tagcheck(12, [66,70])
        e('s_cbranch_vccz L_A_H0OK')
        self.fb((), (s2_,)); self.late_pubg('v[16:19]', 62)
        h0loads()
        e('s_branch L_A_H0')
        e('L_A_H0OK:')
        self.stamp('A.h0')
        e(f'v_cvt_pk_bf16_f32 v84, v80, v81\nv_cvt_pk_bf16_f32 v85, v82, v83\nds_write_b64 v24, v[84:85] offset:{QV}')
        for s in range(4): e(f'ds_read_b128 {v(144+4*s,4)}, v25 offset:{QV+s*64}')
        for s in range(4):
            e(f's_waitcnt lgkmcnt({3-s})')
            for T in range(2):
                e(f'v_mfma_f32_16x16x32_bf16 {v(104+4*T,4)}, {v(144+4*s,4)}, {v(vU+(s*2+T)*4,4)}, ' + ('0' if s==0 else v(104+4*T,4)))
        e('v_cvt_pk_bf16_f32 v64, v104, v108')
        self.pub('v64', 101)
        e(f'v_add_u32_dpp v96, v64, v64 quad_perm:[2,3,0,1] {DPP}\nv_xor_b32 v97, s{sT0}, v64\nv_add_u32_dpp v96, v96, v96 row_ror:4 {DPP}\nv_add_u32_dpp v96, v96, v96 row_ror:8 {DPP}')
        self.pub('v[96:97]', 103)
        self.stamp('A.ql')
        self.pubg('v[16:19]', 62)
        e('s_barrier')
        nh = self.o.get('a_help', 0)
        if nh:
            tsh, wsh, istr = self.kmap()
            self.kbase(s0, sSL, tsh)
            self.mk_srd(rA, pCKV, s0, 16777216)
            e(f'v_lshlrev_b32 v12, 10, v2\nv_lshl_add_u32 v12, v1, 4, v12\ns_lshl_b32 s68, s{sW}, {wsh}\ns_lshl_b32 s69, s{sW}, 12\ns_add_u32 m0, s69, {HELP}')
            for n in range(32-nh, 32):
                c, i = n >> 3, n & 7
                e(f's_add_u32 s{sTMP}, s68, {i*istr+c*256}')
                e(f'buffer_load_dwordx4 v12, {srd(rA)}, s{sTMP} offen {self.o.get("helpflag","nt")} lds')
        e(f"""
        v_lshrrev_b32 v12, 1, v2
        v_lshl_add_u32 v62, v12, 20, v5
        v_and_b32 v12, 1, v2
        v_lshl_add_u32 v62, v12, 17, v62
        v_xor_b32 v62, s67, v62
        s_lshl_b32 s{sG}, s{sJ}, 3
        s_add_u32 s{sG}, s{sG}, s{sX8}
        s_and_b32 s{sF}, s{sAi}, 3
        s_lshl_b32 s{s2_}, s{sG}, 2
        s_add_u32 s{sF}, s{sF}, s{s2_}
        """)
        sB = 62
        e(f"""
        v_and_b32 v5, 7, v1
        v_lshlrev_b32 v5, 4, v5
        v_and_b32 v6, 1, v2
        v_lshl_add_u32 v6, v6, 3, v5
        v_lshrrev_b32 v12, 3, v0
        v_lshl_add_u32 v14, v12, 11, v5
        v_cmp_eq_u32 vcc, s{sX8}, v12
        v_or_b32 v13, s{sLOC}, v14
        v_cndmask_b32 v46, v14, v13, vcc
        s_cmp_ge_u32 s{sG}, 27
        s_cbranch_scc1 L_A_NOF
        s_lshl_b32 s{s0}, s{sF}, 5
        """)
        self.mk_srd(rA, pW1, s0, 2211840)
        e(f's_mul_i32 s{s0}, s{sF}, 20480')
        self.mk_srd(rB, pW2, s0, 2211840)
        e(f"""
        v_and_b32 v7, 3, v12
        v_lshlrev_b32 v7, 3, v7
        v_lshrrev_b32 v8, 5, v0
        v_lshl_add_u32 v7, v8, 2, v7
        v_bfe_u32 v8, v0, 1, 2
        v_add_u32 v7, v7, v8
        v_mul_u32_u24 v7, 3456, v7
        v_and_b32 v8, 1, v0
        v_lshl_add_u32 v7, v8, 4, v7
        s_and_b32 s78, s{sF}, 3
        s_lshl_b32 s78, s78, 2
        s_add_u32 s78, s78, s{sW}
        """)
        w1f = self.o.get('w1flag', '')
        n1 = self.o.get('w1first', 2)
        def w1dma(k, r):
            if k == 1: e(f's_add_u32 s{sTMP}, s{sW}, 16')
            else:
                if k >= 2: e(f's_add_u32 s78, s78, 4\ns_and_b32 s78, s78, 15')
                e(f's_mov_b32 s{sTMP}, s78')
            e(f's_lshl_b32 s{s0}, s{sTMP}, 10\ns_add_u32 m0, s{s0}, {W1}\ns_mul_i32 s{s0}, s{sTMP}, 110592')
            e(f'buffer_load_dwordx4 v7, {srd(r)}, s{s0} offen {w1f} lds')
        for k in range(n1): w1dma(k, rA)
        e(f"""
        s_mul_i32 s{sB}, s{sW}, 3
        s_cmp_eq_u32 s{sW}, 3
        s_cselect_b32 s{sB}, 8, s{sB}
        s_lshl_b32 s{sB}, s{sB}, 7
        v_lshrrev_b32 v8, 1, v2
        v_lshl_add_u32 v8, v8, 7, v6
        s_cmp_lt_u32 s{sW}, 2
        s_cselect_b32 s{s0}, 32, 0
        v_cmp_gt_u32 vcc, s{s0}, v0
        v_cndmask_b32 v13, v9, v6, vcc
        v_cmp_gt_u32 vcc, 8, v1
        v_cndmask_b32 v12, v9, v8, vcc
        v_cndmask_b32 v13, v9, v13, vcc
        buffer_load_dwordx2 v[16:17], v12, {srd(rC)}, s{sB} offen
        buffer_load_dwordx2 v[18:19], v13, {srd(rC)}, s{sB} offen offset:256
        s_lshl_b32 s{s0}, s{sF}, 5
        """)
        self.mk_srd(rC, pB1, s0, 3456)
        e(f'v_lshlrev_b32 v12, 3, v2\nbuffer_load_dwordx2 v[58:59], v12, {srd(rC)}, 0 offen')
        e(f"""
        s_lshl_b32 s{s0}, s{sW}, 9
        s_add_u32 s{s0}, s{s0}, {HB}
        v_add_u32 v48, s{s0}, v8
        v_add_u32 v12, 256, v48
        v_mov_b32 v13, {DUM}
        v_cmp_gt_u32 vcc, 32, v0
        v_cndmask_b32 v49, v13, v12, vcc
        v_add_u32 v50, s{s0}, v11
        s_cmp_lt_u32 s{sW}, 2
        s_cselect_b32 s{s0}, 0, {OOB}
        v_max_u32 v47, s{s0}, v46
        s_add_u32 s79, s{sB}, {H3B}
        v_lshl_add_u32 v12, v1, 6, v11
        s_mul_i32 s{s0}, s{sW}, 320
        s_lshl_b32 s{s2_}, s{sF}, 11
        s_add_u32 s{s2_}, s{s0}, s{s2_}
        s_add_u32 s{s2_}, s{s2_}, {SL+S_H4}
        v_add_u32 v12, s{s2_}, v12
        v_cmp_gt_u32 vcc, 5, v1
        v_cndmask_b32 v51, v9, v12, vcc
        s_lshl_b32 s{s2_}, s{sB}, 4
        s_add_u32 s{s2_}, s{s2_}, {W1}
        v_lshlrev_b32 v52, 3, v0
        v_add_u32 v52, s{s2_}, v52
        v_lshrrev_b32 v12, 2, v0
        v_mul_u32_u24 v12, 1280, v12
        v_and_b32 v13, 3, v1
        v_lshl_add_u32 v12, v13, 4, v12
        s_add_u32 s{s0}, s{s0}, {W2}
        v_add_u32 v53, s{s0}, v12
        s_lshl_b32 s{s0}, s{sW}, 2
        v_lshrrev_b32 v12, 5, v0
        v_lshlrev_b32 v12, 4, v12
        v_add_u32 v12, s{s0}, v12
        v_add_u32 v54, {ST}, v12
        s_lshl_b32 s{s0}, s{sW}, 6
        v_add_u32 v55, {AP}, v11
        v_add_u32 v45, s{s0}, v55
        v_mov_b32 v44, {ST}
        s_branch L_A_FDONE
        L_A_NOF:
        """)
        sK = sF
        e(f"""
        s_sub_u32 s{sK}, s{sX8}, 3
        s_lshl_b32 s{sK}, s{sK}, 1
        s_and_b32 s{s0}, s{sAi}, 1
        s_add_u32 s{sK}, s{sK}, s{s0}
        s_lshl_b32 s{sB}, s{sK}, 7
        """)
        self.mk_srd(rB, pB2, None, 1280)
        e(f"""
        s_cmp_eq_u32 s{sW}, 0
        s_cselect_b32 s{s1}, 32, 0
        v_cmp_gt_u32 vcc, s{s1}, v0
        v_cndmask_b32 v6, v9, v6, vcc
        v_cmp_gt_u32 vcc, 8, v1
        v_cndmask_b32 v6, v9, v6, vcc
        buffer_load_dwordx2 v[16:17], v6, {srd(rC)}, s{sB} offen
        buffer_load_dwordx2 v[18:19], v6, {srd(rB)}, s{sB} offen
        s_mul_i32 s{s0}, s{sW}, 27
        v_add_u32 v15, s{s0}, v12
        """)
        for i in range(4):
            e(f'v_bfe_u32 v10, v15, 2, 3\nv_cmp_eq_u32 vcc, s{sX8}, v10\nv_cndmask_b32 v{48+i}, v14, v13, vcc')
            if i < 3: e('v_add_u32 v15, 8, v15')
            if i > 0: e(f'v_add_u32 v{48+i}, {16384*i}, v{48+i}')
        e(f"""
        v_cmp_gt_u32 vcc, 3, v12
        v_cndmask_b32 v51, v9, v51, vcc
        s_add_u32 s79, s{sB}, {H3B}
        s_lshl_b32 s{s0}, s{s0}, 11
        s_add_u32 s78, s{sB}, s{s0}
        s_add_u32 s78, s78, {SL+S_H4}
        v_lshlrev_b32 v52, 5, v1
        v_lshl_add_u32 v52, v2, 4, v52
        s_lshl_b32 s{s1}, s{sW}, 8
        s_add_u32 s{s1}, s{s1}, {RED}
        v_add_u32 v52, s{s1}, v52
        v_mov_b32 v13, {DUM}
        v_cmp_gt_u32 vcc, 32, v0
        v_cndmask_b32 v52, v13, v52, vcc
        v_cmp_gt_u32 vcc, 8, v1
        v_cndmask_b32 v52, v13, v52, vcc
        v_cmp_gt_u32 vcc, 16, v0
        v_lshlrev_b32 v12, 3, v0
        v_cndmask_b32 v53, v9, v12, vcc
        v_lshlrev_b32 v54, 4, v1
        v_cmp_eq_u32 vcc, 0, v0
        v_cndmask_b32 v55, v9, v0, vcc
        L_A_FDONE:
        """)
        vMk = 36
        self.ident_masks(vMk, 0xffff, 0xffff0000, 0, 4, 12)
        e(f"""
        v_and_b32 v13, 7, v1
        v_lshl_add_u32 v12, v2, 3, v13
        s_lshl_b32 s{s0}, s{sW}, 5
        v_add_u32 v12, s{s0}, v12
        v_lshlrev_b32 v20, 11, v12
        v_lshrrev_b32 v13, 4, v12
        v_cmp_eq_u32 vcc, s{sX8}, v13
        v_or_b32 v12, s{sLOC}, v20
        v_cndmask_b32 v20, v20, v12, vcc
        v_and_b32 v20, s{sLM}, v20
        v_cmp_gt_u32 vcc, 8, v1
        v_cndmask_b32 v20, v9, v20, vcc
        s_mov_b32 s70, 0x00ff00ff
        s_mov_b32 s71, 0x00ff00ff
        s_lshl_b32 s68, s{sJ}, 9
        s_lshl_b32 s{s0}, s{sHd}, 4
        s_add_u32 s68, s68, s{s0}
        s_add_u32 s68, s68, {REC}
        v_lshlrev_b32 v22, 11, v2
        v_lshl_add_u32 v22, v1, 4, v22
        s_lshl_b32 s69, s{sHd}, 2
        s_add_u32 s69, s69, s{sJ}
        s_lshl_b32 s69, s69, 15
        s_lshl_b32 s{s0}, s{sW}, 13
        s_add_u32 s69, s69, s{s0}
        s_add_u32 s69, s69, {PART}
        v_lshlrev_b32 v12, 4, v1
        v_lshl_add_u32 v12, v2, 3, v12
        s_mul_i32 s{s0}, s{sW}, 320
        s_add_u32 s{s0}, s{s0}, {CL}
        v_add_u32 v12, s{s0}, v12
        v_mov_b32 v13, {DUM}
        v_cmp_gt_u32 vcc, 32, v0
        v_cndmask_b32 v23, v13, v12, vcc
        v_and_b32 v12, 3, v1
        v_mul_u32_u24 v12, 320, v12
        v_add_u32 v12, v12, v11
        v_add_u32 v24, {CL}, v12
        s_lshl_b32 s{s0}, s{sW}, 2
        s_add_u32 s{s0}, s{s0}, {ML}
        v_mov_b32 v12, s{s0}
        v_cmp_gt_u32 vcc, 8, v1
        v_cndmask_b32 v21, v13, v12, vcc
        v_mov_b32 v27, {ML}
        v_add_u32 v56, {WUV}, v60
        v_add_u32 v57, {WUV}, v61
        """)
        e(f's_lshl_b32 s{s0}, s{sJ}, 18\ns_lshl_b32 s{s1}, s{sHd}, 8\ns_add_u32 s{s0}, s{s0}, s{s1}')
        self.mk_srd(rA, pWUV, s0, 4194304)
        e(f"""
        s_and_b32 s{s0}, s{sW}, 1
        s_lshl_b32 s{s0}, s{s0}, 8
        s_lshr_b32 s{s1}, s{sW}, 1
        s_add_u32 s{s0}, s{s0}, s{s1}
        s_lshl_b32 s{s0}, s{s0}, 13
        s_lshl_b32 s{s1}, s{sW}, 10
        """)
        npace = self.o.get('a2_pace', 0)
        gate = self.o.get('gate', 0)
        ntr = self.o.get('trickle', 0)
        def gwait():
            e(f's_lshl_b32 s75, s{sSL}, 7\ns_add_u32 s75, s75, {GATE}\nv_mov_b32 v12, 0\ns_mov_b32 s77, 40')
            e(f'L_A_G:\nbuffer_load_dword v13, v12, {srd(rWS)}, s75 offen sc1\ns_waitcnt vmcnt(0)\nv_readfirstlane_b32 s76, v13\ns_cmp_eq_u32 s76, s{sT1}\ns_cbranch_scc1 L_A_GOK\ns_sub_u32 s77, s77, 1\ns_cbranch_scc0 L_A_G\nL_A_GOK:')
            self.stamp('A.gate')
        for k in range(8):
            if k < npace: e('s_waitcnt vmcnt(0)')
            if gate and k == ntr: gwait()
            e(f's_add_u32 m0, s{s1}, {WUV+k*4096}')
            e(f'buffer_load_dwordx4 v62, {srd(rA)}, s{s0} offen nt lds')
            if k < 7: e(f's_add_u32 s{s0}, s{s0}, 16384')
        e(f's_cmp_ge_u32 s{sG}, 27\ns_cbranch_scc1 L_A_NOW2')
        for k in range(5):
            e(f's_add_u32 m0, s{s1}, {W2+k*4096}\ns_add_u32 s{s0}, s{s1}, {k*4096}')
            e(f'buffer_load_dwordx4 v3, {srd(rB)}, s{s0} offen nt lds')
        e('L_A_NOW2:')
        nwo = self.o.get('wo_help', 0)
        if nwo:
            e(f's_mul_i32 s{s0}, s{sSL}, 40960')
            self.mk_srd(rA, pWO, s0, 5242880)
            e(f's_lshl_b32 s{s2_}, s{sW}, 12\ns_add_u32 m0, s{s2_}, {HELP}')
            for k in range(nwo):
                e(f's_add_u32 s{s0}, s{s1}, {k*4096}')
                e(f'buffer_load_dwordx4 v3, {srd(rA)}, s{s0} offen lds')
        if n1 < 5:
            e(f's_cmp_ge_u32 s{sG}, 27\ns_cbranch_scc1 L_A_NOW1\ns_lshl_b32 s{s0}, s{sF}, 5')
            self.mk_srd(rA, pW1, s0, 2211840)
            for k in range(n1, 5): w1dma(k, rA)
            e('L_A_NOW1:')
        if self.o.get('vw', 0):
            e(f'v_mov_b32 v12, 0\ns_and_b32 s{sTMP}, s69, 0xffe00000\nbuffer_load_dword v13, v12, {srd(rWS)}, s{sTMP} offen')
        e('s_waitcnt vmcnt(0)\ns_barrier')
        self.stamp('A.land')
        for s in range(4):
            for T in range(2):
                for q in range(2): e(f'ds_read_b64_tr_b16 {a((s*2+T)*4+2*q,2)}, v{56+T} offset:{s*8192+q*1024}')
        e(f'buffer_load_dwordx4 v[64:67], v20, {srd(rWS)}, s68 offen sc1')
        vC0, vC1, vB1, vS1 = 192, 196, 200, 204
        for dst,src in [(vC0,16),(vC1,18)]:
            e(f'v_lshlrev_b32 v{dst}, 16, v{src}\nv_and_b32 v{dst+1}, 0xffff0000, v{src}\nv_lshlrev_b32 v{dst+2}, 16, v{src+1}\nv_and_b32 v{dst+3}, 0xffff0000, v{src+1}')
        e('s_waitcnt lgkmcnt(0)')
        self.stamp('A.w2rdy')
        e('L_A_REC:')
        e('s_waitcnt vmcnt(0)')
        cs = self.o.get('cs', 1)
        if cs: e(f'v_cmp_ne_u32 vcc, s{sT0}, v67')
        else: self.tagcheck(12, [66])
        e('s_and_b64 vcc, vcc, s[70:71]\ns_cbranch_vccz L_A_RECOK')
        e('L_A_RETRY:')
        self.fb((20,), ())
        e(f'buffer_load_dwordx4 v[64:67], v20, {srd(rWS)}, s68 offen sc1\ns_branch L_A_REC\nL_A_RECOK:')
        vD = 128; vAF = 160
        if self.stamps and 'A.rec1' in self.o.get('want', []):
            k = len(self.slots['A']); e(f's_waitcnt lgkmcnt(0)\ns_cmp_lg_u32 s{sSTAMP+2*k}, 0\ns_cbranch_scc1 L_R1'); self.stamp('A.rec1'); e('L_R1:')
        if self.o.get('ddelay'): e(f's_sleep {self.o["ddelay"]}')
        for i in range(8): e(f'buffer_load_dwordx4 {v(vD+4*i,4)}, v22, {srd(rWS)}, s69 offen offset:{i*256} sc1')
        self.stamp('A.rec')
        e('v_mov_b32 v72, v64')
        self.allred('v_max_f32', 72, 74, 3)
        e('v_sub_f32 v64, v64, v72\nv_exp_f32 v64, v64\nv_cvt_pk_bf16_f32 v64, v64, v64\nv_and_b32 v73, 0xffff0000, v64\nv_mul_f32 v73, v73, v65')
        for i in range(8):
            for r in range(4): e(f'v_and_b32_dpp v{vAF+4*i+r}, v64, v{vMk+r} row_newbcast:{i} {DPP}')
        self.allred('v_add_f32', 73, 74, 3)
        e('ds_write2_b32 v21, v72, v73 offset0:0 offset1:4')
        for i in range(8):
            e(f's_waitcnt vmcnt({7-i})')
            e(f'v_mfma_f32_16x16x32_bf16 v[76:79], {v(vAF+4*i,4)}, {v(vD+4*i,4)}, ' + ('0' if i==0 else 'v[76:79]'))
            if cs: e(f'v_add3_u32 v66, v66, v{vD+4*i}, v{vD+4*i+1}\nv_add3_u32 v66, v66, v{vD+4*i+2}, v{vD+4*i+3}')
        self.stamp('A.data')
        if cs:
            for p in ['quad_perm:[1,0,3,2]','quad_perm:[2,3,0,1]']: e(f'v_add_u32_dpp v66, v66, v66 {p} {DPP}')
            e(f'v_cvt_pk_bf16_f32 v74, v76, v77\nv_cvt_pk_bf16_f32 v75, v78, v79\nv_add_u32_dpp v66, v66, v66 row_half_mirror {DPP}\nds_write_b64 v23, v[74:75]')
            e(f'v_add_u32_dpp v66, v66, v66 row_mirror {DPP}\nv_cmp_ne_u32 vcc, 0, v66\ns_cbranch_vccnz L_A_RETRY\ns_waitcnt lgkmcnt(0)\ns_barrier')
        else:
            e('v_cvt_pk_bf16_f32 v74, v76, v77\nv_cvt_pk_bf16_f32 v75, v78, v79\nds_write_b64 v23, v[74:75]\ns_waitcnt lgkmcnt(0)\ns_barrier')
        self.stamp('A.clbar')
        e(f'ds_read_b128 v[80:83], v24\nds_read_b128 v[64:67], v27\nds_read_b128 v[84:87], v24 offset:64\nds_read_b128 v[68:71], v27 offset:16\nds_read_b128 v[88:91], v24 offset:128\nds_read_b128 v[92:95], v24 offset:192')
        fac = [[], ['s_waitcnt lgkmcnt(4)', 'v_max3_f32 v72, v64, v65, v66', 'v_max_f32 v72, v72, v67'], ['v_sub_f32 v64, v64, v72', 'v_sub_f32 v65, v65, v72'], ['v_sub_f32 v66, v66, v72', 'v_sub_f32 v67, v67, v72'],
               ['v_exp_f32 v64, v64'], ['v_exp_f32 v65, v65'], ['v_exp_f32 v66, v66'],
               ['v_exp_f32 v67, v67', 'v_mul_f32 v72, v64, v68', 'v_fmac_f32 v72, v65, v69', 'v_fmac_f32 v72, v66, v70', 'v_fmac_f32 v72, v67, v71', 'v_rcp_f32 v72, v72']]
        for s in range(4):
            e(f's_waitcnt lgkmcnt({[5,3,1,0][s]})')
            for T in range(2):
                e(f'v_mfma_f32_16x16x32_bf16 {v(104+4*T,4)}, {v(80+4*s,4)}, {a((s*2+T)*4,4)}, ' + ('0' if s==0 else v(104+4*T,4)))
                for x in fac[2*s+T]: e(x)
        e('v_pk_mul_f32 v[104:105], v[104:105], v[64:65]\nv_pk_mul_f32 v[108:109], v[108:109], v[64:65]')
        e('v_pk_fma_f32 v[104:105], v[106:107], v[66:67], v[104:105]\nv_pk_fma_f32 v[108:109], v[110:111], v[66:67], v[108:109]')
        e('v_add_f32 v104, v104, v105\nv_add_f32 v108, v108, v109\nv_mul_f32 v104, v104, v72\nv_mul_f32 v108, v108, v72')
        e('v_cvt_pk_bf16_f32 v98, v104, v108')
        self.publ('v[98:99]', 102); self.pubg('v[98:99]', 102)
        self.stamp('A.hc')
        e(f's_cmp_ge_u32 s{sG}, 27\ns_cbranch_scc1 L_FIN')
        for s in range(6):
            for q in range(2): e(f'ds_read_b64_tr_b16 {a(32+s*4+2*q,2)}, v52 offset:{s*1024+q*512}')
        for P in range(5):
            for hb in range(2): e(f'ds_read_b64_tr_b16 {a(56+P*4+2*hb,2)}, v53 offset:{P*64+hb*8}')
        e(f'v_lshlrev_b32 v{vB1}, 16, v58\nv_and_b32 v{vB1+1}, 0xffff0000, v58\nv_lshlrev_b32 v{vB1+2}, 16, v59\nv_and_b32 v{vB1+3}, 0xffff0000, v59')
        e(f's_cmp_lt_u32 s{sW}, 2\ns_cselect_b32 s{s0}, 0x3f803f80, 0')
        for r in range(4): e(f'v_mov_b32 v{208+r}, 0x3f803f80\nv_mov_b32 v{212+r}, s{s0}')
        e('s_waitcnt lgkmcnt(10)')
        for s in range(6):
            e(f'v_mfma_f32_16x16x32_bf16 {v(vS1,4)}, {a(32+s*4,4)}, {v(208 if s < 4 else 212,4)}, ' + ('0' if s == 0 else v(vS1,4)))
        e(f'ds_write_b128 v45, {v(vS1,4)}\ns_waitcnt lgkmcnt(0)\ns_barrier')
        for w in range(4): e(f'ds_read_b128 {v(208+4*w,4)}, v55 offset:{64*w}')
        e('s_waitcnt lgkmcnt(0)')
        for i in range(2): e(f'v_pk_add_f32 {v(208+2*i,2)}, {v(208+2*i,2)}, {v(212+2*i,2)}\nv_pk_add_f32 {v(216+2*i,2)}, {v(216+2*i,2)}, {v(220+2*i,2)}')
        for i in range(2): e(f'v_pk_add_f32 {v(vS1+2*i,2)}, {v(208+2*i,2)}, {v(216+2*i,2)}')
        e('s_barrier')
        self.stamp('F.prep')
        for P in range(5):
            e(f's_mov_b32 s{68+2*P}, {0x00010001<<P}\ns_mov_b32 s{69+2*P}, {0x00010001<<P}')
        self.lmask((46,47))
        if self.o.get('fdelay'): e(f's_sleep {self.o["fdelay"]}')
        vH = 64
        e('L_F_POLL:')
        e(f'buffer_load_dwordx4 {v(vH,4)}, v46, {srd(rWS)}, s79 offen sc1')
        e(f'buffer_load_dwordx4 {v(vH+4,4)}, v46, {srd(rWS)}, s79 offen offset:128 sc1')
        e(f'buffer_load_dwordx4 {v(vH+8,4)}, v47, {srd(rWS)}, s79 offen offset:256 sc1')
        e('s_waitcnt vmcnt(0)')
        e(f'v_mfma_f32_16x16x32_bf16 v[76:79], {v(vI,4)}, {v(vH,4)}, {v(vC0,4)}')
        e(f'v_mfma_f32_16x16x32_bf16 v[76:79], {v(vI+4,4)}, {v(vH+4,4)}, v[76:79]')
        e(f'v_mfma_f32_16x16x32_bf16 v[80:83], {v(vI,4)}, {v(vH+8,4)}, {v(vC1,4)}')
        self.maxchain(12, range(vH, vH+12))
        e('v_cmp_eq_u32 vcc, -1, v12')
        self.retry('L_F_POLL', vregs=(46,47), sleep=self.o.get('fsleep',0))
        self.stamp('F.h3b')
        vB = 128
        for r in range(4): e(f'v_add_f32_dpp v{76+r}, v{76+r}, v{76+r} row_ror:8 {DPP}')
        e('v_cvt_pk_bf16_f32 v84, v76, v77\nv_cvt_pk_bf16_f32 v85, v78, v79\nds_write_b64 v48, v[84:85]')
        for s in range(4): e(f'ds_read_b128 {v(vB+4*s,4)}, v50 offset:{s*64}')
        for r in range(4): e(f'v_add_f32_dpp v{80+r}, v{80+r}, v{80+r} row_ror:8 {DPP}')
        e('v_cvt_pk_bf16_f32 v86, v80, v81\nv_cvt_pk_bf16_f32 v87, v82, v83\nds_write_b64 v49, v[86:87]')
        for s in range(4,6): e(f'ds_read_b128 {v(vB+4*s,4)}, v50 offset:{s*64}')
        e('v_pk_add_f32 v[88:89], v[76:77], v[78:79]\nv_pk_mul_f32 v[92:93], v[76:77], v[76:77]\nv_pk_add_f32 v[90:91], v[80:81], v[82:83]\nv_pk_fma_f32 v[92:93], v[78:79], v[78:79], v[92:93]')
        e('v_pk_add_f32 v[88:89], v[88:89], v[90:91]\nv_pk_fma_f32 v[92:93], v[80:81], v[80:81], v[92:93]\nv_pk_fma_f32 v[92:93], v[82:83], v[82:83], v[92:93]')
        st = [['v_add_f32 v88, v88, v89', 'v_add_f32 v92, v92, v93'], ['s_nop 0', 'v_permlane32_swap_b32 v88, v92', 'v_add_f32 v88, v88, v92'], ['v_mov_b32 v92, v88'],
              ['s_nop 0', 'v_permlane16_swap_b32 v88, v92', 'v_add_f32 v88, v88, v92'], ['s_nop 0', f'v_add_f32_dpp v88, v88, v88 quad_perm:[1,0,3,2] {DPP}'],
              [f'v_add_f32_dpp v88, v88, v88 quad_perm:[2,3,0,1] {DPP}', f'v_add_f32_dpp v88, v88, v88 row_half_mirror {DPP}', 'v_mul_f32 v88, 0x3acccccd, v88', 'ds_write_b32 v54, v88']]
        for s in range(6):
            e(f's_waitcnt lgkmcnt({[6,5,4,3,1,0][s]})')
            e(f'v_mfma_f32_16x16x32_bf16 v[96:99], {a(32+s*4,4)}, {v(vB+4*s,4)}, ' + ('0' if s == 0 else 'v[96:99]'))
            for x in st[s]: e(x)
        e('ds_write_b128 v45, v[96:99]\ns_waitcnt lgkmcnt(0)\ns_barrier')
        self.stamp('F.abar')
        e('ds_read_b128 v[100:103], v44\nds_read_b128 v[104:107], v44 offset:16')
        for w in range(4): e(f'ds_read_b128 {v(128+4*w,4)}, v55 offset:{64*w}')
        e(f"""
        s_waitcnt lgkmcnt(4)
        v_pk_add_f32 v[100:101], v[100:101], v[102:103]
        v_pk_add_f32 v[104:105], v[104:105], v[106:107]
        v_add_f32 v100, v100, v101
        v_add_f32 v104, v104, v105
        v_fma_f32 v104, -v100, v100, v104
        v_max_f32 v104, 0, v104
        v_add_f32 v104, 0x3727c5ac, v104
        v_rsq_f32 v104, v104
        s_waitcnt lgkmcnt(0)
        v_pk_fma_f32 v[128:129], {v(vS1,2)}, v[100:101], v[128:129] op_sel_hi:[1,0,1] neg_lo:[0,1,0] neg_hi:[0,1,0]
        v_pk_fma_f32 v[130:131], {v(vS1+2,2)}, v[100:101], v[130:131] op_sel_hi:[1,0,1] neg_lo:[0,1,0] neg_hi:[0,1,0]
        v_pk_add_f32 v[136:137], v[136:137], v[140:141]
        v_pk_add_f32 v[138:139], v[138:139], v[142:143]
        v_pk_add_f32 v[128:129], v[128:129], v[132:133]
        v_pk_add_f32 v[130:131], v[130:131], v[134:135]
        v_pk_add_f32 v[128:129], v[128:129], v[136:137]
        v_pk_add_f32 v[130:131], v[130:131], v[138:139]
        v_pk_fma_f32 v[128:129], v[128:129], v[104:105], {v(vB1,2)} op_sel_hi:[1,0,1]
        v_pk_fma_f32 v[130:131], v[130:131], v[104:105], {v(vB1+2,2)} op_sel_hi:[1,0,1]
        """)
        for r in range(4): e(f'v_max_f32 v{128+r}, 0, v{128+r}')
        e('v_pk_mul_f32 v[128:129], v[128:129], v[128:129]\nv_pk_mul_f32 v[130:131], v[130:131], v[130:131]')
        e('v_cvt_pk_bf16_f32 v108, v128, v129\nv_cvt_pk_bf16_f32 v109, v130, v131')
        self.stamp('F.f1')
        def cm(P): e(f'v_cndmask_b32 v{110+2*P}, 0, v108, s[{68+2*P}:{69+2*P}]\nv_cndmask_b32 v{111+2*P}, 0, v109, s[{68+2*P}:{69+2*P}]')
        cm(0); cm(1)
        for P in range(5):
            for hb in range(2):
                e(f'v_mfma_f32_16x16x16_bf16 {v(120+4*hb,4)}, {a(56+P*4+2*hb,2)}, {v(110+2*P,2)}, ' + ('0' if P == 0 else v(120+4*hb,4)))
                if hb == 0 and P+2 < 5: cm(P+2)
        for i in range(4): e(f'v_cvt_pk_bf16_f32 v{64+i}, v{120+2*i}, v{121+2*i}')
        for i in range(4): e(f'v_min_u32 v{64+i}, -2, v{64+i}')
        self.pub('v[64:67]', 51)
        self.stamp('F.end')
        e('s_branch L_END')
        e('L_FIN:')
        e(f's_and_b32 s{s0}, s{sAi}, 2\ns_cbranch_scc1 L_END')
        self.mk_srd(rA, pOUT, None, 1280)
        if self.o.get('vw', 0): e(f'buffer_load_dword v13, v53, {srd(rA)}, s{sB} offen')
        e(f's_cmp_eq_u32 s{sW}, 0\ns_cselect_b32 s{s1}, -1, 0')
        for r in range(4): e(f'v_and_b32 v{32+r}, s{s1}, v{vI+r}')
        e(f'v_pk_add_f32 {v(vC0,2)}, {v(vC0,2)}, {v(vC1,2)}\nv_pk_add_f32 {v(vC0+2,2)}, {v(vC0+2,2)}, {v(vC1+2,2)}\nv_mov_b32 v45, s{sT0}')
        self.lmask((46,))
        e('L_R_P1:')
        e(f'buffer_load_dwordx4 v[64:67], v46, {srd(rWS)}, s79 offen sc1\ns_waitcnt vmcnt(0)')
        self.maxchain(12, range(64,68))
        e('v_cmp_eq_u32 vcc, -1, v12')
        self.retry('L_R_P1', sleep=1, vregs=(46,))
        self.stamp('R.h3b')
        self.lmask((48,49,50,51))
        e(f'v_mfma_f32_16x16x32_bf16 {v(vC0,4)}, v[32:35], v[64:67], {v(vC0,4)}')
        if self.o.get('rdelay'): e(f's_sleep {self.o["rdelay"]}')
        e('L_R_P2:')
        for i in range(4): e(f'buffer_load_dwordx4 {v(68+4*i,4)}, v{48+i}, {srd(rWS)}, s78 offen sc1')
        e('s_waitcnt vmcnt(0)')
        for i in range(4): e(f'v_mfma_f32_16x16x32_bf16 v[104:107], {v(vI,4)}, {v(68+4*i,4)}, ' + (v(vC0,4) if i == 0 else 'v[104:107]'))
        self.maxchain(12, range(68,84))
        e('v_cmp_eq_u32 vcc, -1, v12')
        self.retry('L_R_P2', vregs=(48,49,50,51), sleep=0)
        self.stamp('R.h4')
        for r in range(4): e(f'v_add_f32_dpp v{104+r}, v{104+r}, v{104+r} row_ror:8 {DPP}')
        e(f'ds_write_b128 v52, v[104:107]\ns_waitcnt lgkmcnt(0)\ns_barrier')
        e(f's_cmp_lg_u32 s{sW}, 0\ns_cbranch_scc1 L_END')
        self.red_final(RED, 128, 54, False)
        e(f'buffer_store_dwordx2 v[128:129], v53, {srd(rA)}, s{sB} offen')
        e(f's_cmp_lg_u32 s{sK}, 0\ns_cbranch_scc1 L_END2')
        e(f'buffer_store_dword v45, v55, {srd(rWS)}, 0 offen offset:{EPOCH} sc1')
        if 'amp' in self.o:
            self.stamp('R.end')
            k = self.idx[self.o['amp']]; ke = self.idx['R.end']
            e(f's_waitcnt lgkmcnt(0)\ns_sub_u32 s60, s{sSTAMP+2*k}, s{sSTAMP}\ns_lshl_b32 s60, s60, 2\ns_add_u32 s60, s60, s{sSTAMP+2*ke}')
            e('L_AMP:\ns_memrealtime s[62:63]\ns_waitcnt lgkmcnt(0)\ns_sub_u32 s61, s62, s60\ns_cmp_lt_i32 s61, 0\ns_cbranch_scc1 L_AMP')
        e('L_END2:')
        if 'amp' not in self.o: self.stamp('R.end')
        e('s_branch L_END')

    def role_T(self):
        e = self.e
        MX = QB; LX = QB+512; PB = QB+1024
        WO = 0; HB = 65536; EX = 15360
        sT, s0, s1, s2_ = 72, 63, 64, 65
        e('L_T:')
        if self.o.get('noT'): e('s_branch L_END')
        e(f"""
        s_lshl_b32 s{sT}, s{sX8}, 4
        s_add_u32 s{sT}, s{sT}, s{sR}
        """)
        e(f"""
        s_lshl_b32 s{s0}, s{sT}, 9
        s_add_u32 s{s0}, s{s0}, {QP+LOC}
        s_lshl_b32 s{s1}, s{sT}, 11
        s_add_u32 s{s1}, s{s1}, {SL+LOC}
        s_cmp_eq_u32 s{sW}, 2
        s_cselect_b32 s{s0}, s{s1}, s{s0}
        s_lshl_b32 s{s1}, s{sX8}, 9
        s_add_u32 s{s1}, s{s1}, {QCS+LOC}
        s_cmp_eq_u32 s{sW}, 3
        s_cselect_b32 s{s0}, s{s1}, s{s0}
        s_cmp_eq_u32 s{sW}, 0
        s_cselect_b32 s66, {WSSZ}, s{s0}
        v_lshlrev_b32 v12, 7, v0
        v_cmp_gt_u32 vcc, 4, v0
        v_cndmask_b32 v12, v9, v12, vcc
        """)
        if self.o.get('pf', 0) == 1: self.code_prefetch()
        if self.o.get('tw', 0): self.tlb_warm()
        if self.o.get('pf', 0) == 2:
            e(f's_cmp_eq_u32 s{sW}, 0\ns_cbranch_scc1 L_NOPF')
            e(f's_getpc_b64 s[20:21]\nL_PC:\ns_sub_u32 s20, s20, L_PC-{KN}\ns_subb_u32 s21, s21, 0')
            e(f's_mul_i32 s60, s{sR}, 3\ns_add_u32 s60, s60, s{sW}\ns_sub_u32 s60, s60, 1\ns_lshl_b32 s60, s60, 7')
            for i in range(3):
                e(f's_min_u32 s67, s60, L_EXIT-{KN}\ns_load_dword s7, s[20:21], s67')
                if i < 2: e(f's_add_u32 s60, s60, {48*128}')
            e('L_NOPF:')
        nwq = self.o.get('t_wq', 5)
        e(f's_add_u32 s61, s61, {(10-nwq)*4*32768}\ns_lshl_b32 s62, s{sW}, 13\ns_add_u32 s62, s62, {QB}\ns_mov_b32 m0, s62')
        for k in range(nwq):
            e(f'buffer_load_dwordx4 v8, {srd(rA)}, s61 offen nt lds')
            if k < nwq-1: e(f's_add_u32 s61, s61, {4*32768}')
        e(f'buffer_load_dword v255, v12, {srd(rWS)}, s66 offen')
        nuk = self.o.get('t_wuk', 0)
        if nuk:
            self.wuk_setup(sR, rA)
            e(f's_mov_b32 s68, {(8-nuk)*32768}')
            for k in range(8-nuk, 8): self.wuk_dma(k, rA, QB)
        tsh, wsh, istr = self.kmap()
        self.kbase(s0, sT, tsh)
        self.mk_srd(rB, pCKV, s0, 16777216)
        e(f'v_lshl_add_u32 v52, v2, 10, v5\nv_xor_b32 v53, 0x80, v52\ns_lshl_b32 s68, s{sW}, {wsh}\ns_lshl_b32 s69, s{sW}, 13')
        def dma(n):
            c, i = n >> 3, n & 7
            e(f's_add_u32 m0, s69, {c*32768+i*1024}\ns_add_u32 s{sTMP}, s68, {i*istr+c*256}')
            e(f'buffer_load_dwordx4 v{52+(i&1)}, {srd(rB)}, s{sTMP} offen nt lds')
        n0 = 0
        thr = dict(self.o.get('t_throttle', []))
        vm = []
        vKa, vQa, vVa = 24, 28, 32
        vPS, vRS, vMW, vMR, vPW, vPR, vQC, vLR = 40, 41, 42, 43, 44, 45, 46, 47
        vQS = 120
        pre = []
        pre.append(f'v_and_b32 v12, 7, v1\nv_lshlrev_b32 v12, 5, v12\nv_lshlrev_b32 v13, 10, v1\nv_lshlrev_b32 v14, 8, v1\nv_add_u32 v14, s69, v14\nv_add_u32 v13, {QB}, v13')
        for s3 in range(4):
            pre.append(f'v_add_u32 v15, {s3*64}, v11\nv_xor_b32 v15, v15, v12\nv_add_u32 v{vKa+s3}, v14, v15\nv_add_u32 v{vQa+s3}, v13, v15')
        pre.append(f"""
        v_lshrrev_b32 v13, 2, v0
        v_and_b32 v15, 7, v13
        v_lshlrev_b32 v13, 8, v13
        v_and_b32 v12, 3, v1
        v_lshl_add_u32 v13, v12, 3, v13
        s_lshl_b32 s{s2_}, s{sW}, 1
        v_xor_b32 v15, s{s2_}, v15
        v_lshl_add_u32 v{vVa}, v15, 5, v13
        v_xor_b32 v15, 1, v15
        v_lshl_add_u32 v{vVa+1}, v15, 5, v13
        v_add_u32 v{vVa+2}, 0x10000, v{vVa}
        v_add_u32 v{vVa+3}, 0x10000, v{vVa+1}
        v_lshlrev_b32 v12, 13, v2
        v_lshl_add_u32 v12, v1, 4, v12
        """)
        for i in range(8): pre.append(f'v_xor_b32 v{vQS+i}, {(i<<5) + (i&3)*2048}, v12')
        pre.append(f"""
        s_lshl_b32 s{s0}, s{sW}, 10
        s_add_u32 s{s0}, s{s0}, {QCS}
        v_add_u32 v12, s{s0}, v3
        v_lshrrev_b32 v13, 5, v0
        s_lshl_b32 s{s0}, s{sW}, 1
        v_add_u32 v13, s{s0}, v13
        v_cmp_eq_u32 vcc, s{sX8}, v13
        v_or_b32 v13, s{sLOC}, v12
        v_cndmask_b32 v{vQC}, v12, v13, vcc
        v_add_u32 v15, {EX}, v3
        s_lshl_b32 s{s0}, s{sW}, 2
        v_add_u32 v14, s{s0}, v15
        v_mov_b32 v10, v14
        v_mov_b32 v8, v15
        v_lshrrev_b32 v12, 5, v0
        v_and_b32 v13, 1, v0
        v_lshlrev_b32 v13, 1, v13
        v_lshl_add_u32 v12, v12, 2, v13
        v_bfe_u32 v13, v0, 1, 4
        v_and_b32 v14, 7, v13
        v_lshlrev_b32 v14, 3, v14
        v_lshl_add_u32 v13, v13, 6, v14
        v_lshlrev_b32 v14, 5, v12
        v_xor_b32 v13, v13, v14
        v_lshl_add_u32 v13, v12, 10, v13
        v_add_u32 v6, s62, v13
        v_xor_b32 v7, 32, v6
        s_lshl_b32 s76, s{sW}, 16
        s_add_u32 s76, s76, {SL+S_QL}
        s_add_u32 s77, s76, 32768
        s_lshl_b32 s{s0}, s{sW}, 1
        s_cmp_eq_u32 s{s0}, s{sX8}
        s_cselect_b32 s{s1}, {LOC}, 0
        s_add_u32 s76, s76, s{s1}
        s_add_u32 s{s0}, s{s0}, 1
        s_cmp_eq_u32 s{s0}, s{sX8}
        s_cselect_b32 s{s1}, {LOC}, 0
        s_add_u32 s77, s77, s{s1}
        v_lshlrev_b32 v12, 19, v2
        v_lshl_add_u32 v12, v1, 4, v12
        s_lshl_b32 s{s2_}, s{sT}, 8
        s_lshl_b32 s{s0}, s{sW}, 15
        s_add_u32 s{s2_}, s{s2_}, s{s0}
        s_add_u32 s{s2_}, s{s2_}, {PART}
        v_add_u32 v{vPS}, s{s2_}, v12
        s_lshl_b32 s{s2_}, s{sT}, 11
        s_lshl_b32 s{s0}, s{sW}, 9
        s_add_u32 s{s2_}, s{s2_}, s{s0}
        s_add_u32 s{s2_}, s{s2_}, {REC}
        v_and_b32 v13, 1, v1
        v_lshrrev_b32 v12, 2, v0
        v_lshl_add_u32 v12, v13, 4, v12
        v_lshlrev_b32 v12, 4, v12
        v_add_u32 v{vLR}, {MX}, v12
        v_add_u32 v12, s{s2_}, v12
        v_and_b32 v13, 2, v1
        v_cmp_eq_u32 vcc, 0, v13
        v_cndmask_b32 v{vRS}, v9, v12, vcc
        v_lshrrev_b32 v12, 1, v2
        v_lshl_add_u32 v12, v12, 4, v1
        v_lshlrev_b32 v12, 4, v12
        s_lshl_b32 s{s2_}, s{sW}, 2
        s_add_u32 s{s2_}, s{s2_}, {MX}
        v_add_u32 v{vMW}, s{s2_}, v12
        v_lshlrev_b32 v12, 4, v1
        v_add_u32 v{vMR}, {MX}, v12
        v_add_u32 v22, s{s2_}, v12
        v_mov_b32 v38, 0x3e0293ee
        s_lshl_b32 s{s2_}, s{sW}, 11
        s_add_u32 s{s2_}, s{s2_}, {PB}
        v_add_u32 v{vPW}, s{s2_}, v3
        v_add_u32 v{vPR}, {PB}, v3
        s_lshl_b32 s71, s{sT}, 11
        s_add_u32 s71, s71, {SL+S_H4}
        v_mov_b32 v16, -1
        v_mov_b32 v17, -1
        v_mov_b32 v18, -1
        v_mov_b32 v19, -1
        s_and_b32 s{s0}, s{sW}, 1
        s_mul_i32 s{s0}, s{s0}, 640
        s_add_u32 s71, s71, s{s0}
        s_lshr_b32 s{s0}, s{sW}, 1
        s_lshl_b32 s{s0}, s{s0}, 20
        s_add_u32 s71, s71, s{s0}
        s_cmp_lt_u32 s{sT}, 116
        s_cselect_b32 s{s0}, 40, 0
        v_cmp_gt_u32 vcc, s{s0}, v0
        v_cndmask_b32 v20, v9, v3, vcc
        v_lshrrev_b32 v12, 3, v0
        v_lshrrev_b32 v13, 1, v12
        v_and_b32 v14, 1, v12
        v_lshl_add_u32 v13, v14, 4, v13
        v_mul_u32_u24 v13, 1280, v13
        v_and_b32 v14, 7, v0
        v_lshlrev_b32 v14, 4, v14
        v_and_b32 v12, 1, v2
        v_lshlrev_b32 v12, 5, v12
        v_xor_b32 v14, v14, v12
        v_add_u32 v36, v13, v14
        v_xor_b32 v14, 64, v14
        v_add_u32 v37, v13, v14
        s_lshl_b32 s73, s{sX8}, 2
        s_add_u32 s73, s73, s{sW}
        s_mul_i32 s73, s73, 163840
        s_lshl_b32 s{s1}, s{sR}, 7
        s_add_u32 s73, s73, s{s1}
        s_lshl_b32 s74, s{sW}, 14
        """)
        def qloads():
            e(f'buffer_load_dwordx4 v[80:83], v{vQC}, {srd(rWS)}, 0 offen sc1')
            for i in range(8):
                e(f's_add_u32 m0, s62, {i*1024}')
                e(f'buffer_load_dwordx4 v{vQS+i}, {srd(rWS)}, s{76+(i>>2)} offen sc1 lds')
        kdone = set()
        def younger(item): return len(vm) - 1 - vm.index(item)
        def kv(c):
            e(f's_waitcnt vmcnt({younger(("d",8*c+7))})')
            if c == 3: self.stamp('T.ckv')
            if c == 2:
                for s3 in range(4): e(f'v_add_u32 v{vKa+s3}, 0x10000, v{vKa+s3}')
            for s3 in range(4):
                for kt in range(2):
                    e(f'ds_read_b128 {a(((4*c+s3)*2+kt)*4,4)}, v{vKa+s3} offset:{(c&1)*32768+kt*4096}')
            kdone.add(c)
            e('s_barrier')
            for ks in range(4):
                for T2 in range(2):
                    for q in range(2):
                        e(f'ds_read_b64_tr_b16 {a(128+(ks*8+2*c+T2)*4+2*q,2)}, v{vVa+T2+2*(c>>1)} offset:{(c&1)*32768+ks*8192+q*4096}')
        tp = []
        def tprep():
            if tp: return
            tp.append(1)
            e('s_waitcnt lgkmcnt(0)')
            self.tags()
            e(f's_lshl_b32 s79, s{sT}, 7\ns_add_u32 s79, s79, {GATE}\ns_cmp_eq_u32 s{sW}, 0\ns_cselect_b32 s79, s79, {OOB}\nv_mov_b32 v39, s79\nv_mov_b32 v21, s{sT1}')
        qpos = self.o.get('qpos', 32); npre = self.o.get('npre', 2)
        klag = self.o.get('klag', 12)
        for n in range(n0, 33):
            if n == npre:
                for x in pre: e(x)
            if n == npre: e(f's_load_dword s{sE}, s[{pWS}:{pWS+1}], {EPOCH}')
            if n == self.o.get('gpos', -1):
                tprep(); e(f'buffer_store_dword v21, v39, {srd(rWS)}, 0 offen'); vm.append('gate')
            if n == qpos:
                tprep()
                self.stamp('T.qiss')
                qloads(); vm += [('q',i) for i in range(9)]
                if self.o.get('vw', 0):
                    e(f'v_and_b32 v12, 1, v0\nv_lshlrev_b32 v12, 21, v12\ns_mov_b32 s{sTMP}, {PART}\nbuffer_load_dword v13, v12, {srd(rWS)}, s{sTMP} offen'); vm.append('vw')
                self.mk_srd(rA, pWO, 73, 5242880)
                e(f's_cmp_lt_u32 s{sR}, 10\ns_cselect_b32 s{rA+2}, s{rA+2}, 0')
            if n < 32:
                dma(n); vm.append(('d',n))
                if n in thr: e(f's_waitcnt vmcnt({thr[n]})')
            for c in range(3):
                if c not in kdone and n >= npre and ('d',8*c+7) in vm and younger(('d',8*c+7)) >= klag and (c == 0 or c-1 in kdone): kv(c)
        self.stamp('T.issued')
        if self.o.get('gate') == 1:
            e(f'buffer_store_dword v21, v39, {srd(rWS)}, 0 offen'); vm.append('gate')
        if self.o.get('tonly'):
            e('s_waitcnt vmcnt(0)'); self.stamp('T.ckv0'); e('s_branch L_END')
        for c in range(4):
            if c not in kdone: kv(c)
        if self.o.get('gate') == 2:
            e(f'buffer_store_dword v21, v39, {srd(rWS)}, 0 offen'); vm.append('gate')
        e('s_branch L_T_Q1')
        e('L_T_Q0:')
        self.fb((vQC,), (76, 77)); e(f's_sleep {self.o.get("qsleep",1)}')
        qloads()
        e('L_T_Q1:')
        e(f's_waitcnt vmcnt(0)\nds_read_b32 v12, v6\nds_read_b32 v13, v7 offset:1024')
        e(f'v_add_u32 v14, v80, v82\nv_sub_u32 v14, 0, v14\nds_write_b32 v10, v14\nv_xor_b32 v81, s{sT0}, v81\nv_xor_b32 v83, s{sT0}, v83\ns_waitcnt lgkmcnt(0)')
        e('v_xor_b32 v12, v12, v81\nv_xor_b32 v13, v13, v83\nv_or_b32 v12, v12, v13\nv_cmp_ne_u32 vcc, 0, v12\ns_cbranch_vccnz L_T_Q0')
        self.stamp('T.qin')
        if self.o.get('gate') == 3:
            e(f'buffer_store_dword v21, v39, {srd(rWS)}, 0 offen'); vm.append('gate')
        e('s_barrier')
        self.stamp('T.Qbar')
        def wo_ops(i): return [f's_add_u32 m0, s74, {WO+i*1024}', f's_mov_b32 s{sTMP}, {(32*(i>>2)+4*(i&3))*1280}', f'buffer_load_dwordx4 v{36+(i&1)}, {srd(rA)}, s{sTMP} offen {self.o.get("woflag","nt")} lds']
        nwe = self.o.get('wo_early', 6)
        vS = 48; vP = 76; vPF = 88; vAcc = 128; vO = 192
        def qreg(s, ht): return 128 + ht*64 + s*4
        def qread(s, ht): return f'ds_read_b128 {v(qreg(s,ht),4)}, v{vQa+(s&3)} offset:{(s>>2)*256+ht*16384}'
        def qk(s, kt, ht):
            d = v(vS+(kt*2+ht)*4,4)
            return f'v_mfma_f32_16x16x32_bf16 {d}, {a((s*2+kt)*4,4)}, {v(qreg(s,ht),4)}, ' + ('0' if s == 0 else d)
        def pv(ks, T, ht):
            d = v(vAcc+(ht*8+T)*4,4)
            return f'v_mfma_f32_16x16x32_bf16 {d}, {v(vPF+(ks*2+ht)*4,4)}, {a(128+(ks*8+T)*4,4)}, ' + ('0' if ks == 0 else d)
        def ver(s, ht): return f'v_add3_u32 v23, v23, v{qreg(s,ht)}, v{qreg(s,ht)+2}'
        def cost(x): return 2 if x.startswith('v_exp') else (0 if x.startswith('s_') else 1)
        def stream(mf, toks, bg):
            skip = 0
            for m in mf:
                e(m)
                b = 2
                if skip: skip -= 1
                else:
                    while toks:
                        t = toks[0]
                        if isinstance(t, tuple): skip = t[1]; toks.pop(0); break
                        if cost(t) > b: break
                        e(t); b -= cost(t); toks.pop(0)
                while bg and cost(bg[0]) <= b:
                    b -= cost(bg[0]); e(bg.pop(0))
            return toks
        def flush(toks):
            for t in toks:
                if not isinstance(t, tuple): e(t)
        D = 4
        for s in range(D): e(qread(s,0))
        e(f'v_mov_b32 v23, 0\nbuffer_store_dwordx4 v[16:19], v20, {srd(rWS)}, s71 offen sc1')
        rd = [(s,0) for s in range(D,16)] + [(s,1) for s in range(16)]
        issued = D
        wo = [wo_ops(i) for i in range(nwe)]
        for s in range(16):
            e(f's_waitcnt lgkmcnt({min(15, issued-1-s)})')
            if s == 15: e('s_barrier')
            for kt in range(2):
                e(qk(s,kt,0))
                if rd: e(qread(*rd.pop(0))); issued += 1
                if kt == 0: e(ver(s,0))
                elif wo: flush(wo.pop(0))
                if s == 14 and kt == 1: e('ds_read_b128 v[80:83], v8')
        self.stamp('T.QK0')
        def sm(ht):
            r0 = vS+ht*4; r1 = vS+8+ht*4; m = 64; t = 65; M = 66+ht; rb = 72
            a_ = [f'v_max3_f32 v{m}, v{r0}, v{r0+1}, v{r0+2}', f'v_max3_f32 v{t}, v{r1}, v{r1+1}, v{r1+2}', f'v_max3_f32 v{m}, v{m}, v{r0+3}, v{r1+3}', f'v_max_f32 v{m}, v{m}, v{t}',
                  f'v_mov_b32 v{t}, v{m}', ('gap',0), f'v_permlane32_swap_b32 v{m}, v{t}', f'v_max_f32 v{m}, v{m}, v{t}', f'v_mov_b32 v{t}, v{m}', ('gap',0),
                  f'v_permlane16_swap_b32 v{m}, v{t}', f'v_max_f32 v{m}, v{m}, v{t}', f'ds_write_b32 v22, v{m} offset:{ht*256}']
            b_ = ['s_waitcnt lgkmcnt(0)', 's_barrier', f'ds_read_b128 {v(rb,4)}, v{vMR} offset:{ht*256}']
            c_ = ['s_waitcnt lgkmcnt(0)', f'v_max3_f32 v{M}, v{rb}, v{rb+1}, v{rb+2}', f'v_max_f32 v{M}, v{M}, v{rb+3}', f'v_mul_f32 v{M}, v38, v{M}']
            for b in (r0, r1):
                for r in range(4): c_.append(f'v_fma_f32 v{b+r}, v{b+r}, v38, -v{M}')
            for b in (r0, r1):
                for r in range(4): c_.append(f'v_exp_f32 v{b+r}, v{b+r}')
            for k,b in enumerate((r0, r1)):
                c_ += [f'v_cvt_pk_bf16_f32 v{vP+ht*4+k*2}, v{b}, v{b+1}', f'v_cvt_pk_bf16_f32 v{vP+ht*4+k*2+1}, v{b+2}, v{b+3}']
            c_.append(f'ds_write_b128 v{vPW}, {v(vP+ht*4,4)} offset:{ht*1024}')
            d_ = ['s_waitcnt lgkmcnt(0)', 's_barrier'] + [f'ds_read_b128 {v(vPF+(ks*2+ht)*4,4)}, v{vPR} offset:{(ks*2+ht)*1024}' for ks in range(4)]
            return a_, b_, c_, d_
        g1 = self.o.get('g1', 2); g2 = self.o.get('g2', 2)
        a0,b0,c0,d0 = sm(0); a1_,b1,c1,d1 = sm(1)
        e('s_waitcnt lgkmcnt(0)')
        mf = [qk(s,kt,1) for s in range(16) for kt in range(2)]
        bg = [ver(s,1) for s in range(16)] + ['v_add3_u32 v23, v23, v80, v81', 'v_add3_u32 v23, v23, v82, v83']
        left = stream(mf, [('gap',1)] + a0 + [('gap',g1)] + b0 + [('gap',g2)] + c0, bg)
        flush(left)
        self.stamp('T.QK')
        flush(a1_)
        flush(d0 + b1[2:])
        flush(bg)
        self.stamp('T.Pbar')
        def lsum(ht, dst):
            r0 = vS+ht*4; r1 = vS+8+ht*4
            return [f'v_add_f32 v{r0}, v{r0}, v{r0+1}', f'v_add_f32 v{r0+2}, v{r0+2}, v{r0+3}', f'v_add_f32 v{r1}, v{r1}, v{r1+1}', f'v_add_f32 v{r1+2}, v{r1+2}, v{r1+3}',
                    f'v_add_f32 v{r0}, v{r0}, v{r0+2}', f'v_add_f32 v{r1}, v{r1}, v{r1+2}', f'v_add_f32 v{dst}, v{r0}, v{r1}']
        flush(lsum(0, 70))
        e('s_waitcnt lgkmcnt(4)')
        mf = [pv(ks,T,0) for ks in range(4) for T in range(8)]
        red = []
        ls = lsum(1, 71)
        for p in ['quad_perm:[1,0,3,2]','quad_perm:[2,3,0,1]','row_half_mirror','row_mirror']: red += [f'v_add_u32_dpp v23, v23, v23 {p} {DPP}', ls.pop(0)]
        red += ['v_mov_b32 v64, v23', ls.pop(0), 'v_permlane16_swap_b32 v23, v64', 'v_add_u32 v23, v23, v64', 'v_mov_b32 v64, v23', ls.pop(0), 'v_permlane32_swap_b32 v23, v64', 'v_add_u32 v23, v23, v64', 'v_cmp_ne_u32 vcc, 0, v23', ls.pop(0)]
        left = stream(mf, [('gap',0)] + c1 + red + d1[:2] + ['s_cbranch_vccnz L_T_Q0'] + d1[2:], [])
        flush(left)
        self.stamp('T.pv4')
        def outops(ht):
            ops = []
            for r in range(4):
                o = vO + (ht*4+r)*4
                for k in range(4):
                    ops.append(f'v_cvt_pk_bf16_f32 v{o+k}, v{vAcc+(ht*8+2*k)*4+r}, v{vAcc+(ht*8+2*k+1)*4+r}')
                ops.append(f's_mov_b32 s{sTMP}, {(16*ht+r)*131072}')
                ops.append(f'buffer_store_dwordx4 {v(o,4)}, v{vPS}, {srd(rWS)}, s{sTMP} offen sc1')
            return ops
        e('s_waitcnt lgkmcnt(0)')
        mf = [pv(ks,T,1) for ks in range(4) for T in range(8)]
        cs = self.o.get('cs', 1)
        def csum(ht):
            c = 48 + 4*ht; y = 56 + 2*ht; z = 60 + ht
            ops = []
            for r in range(4):
                o = vO + (ht*4+r)*4
                ops.append([f'v_add3_u32 v{c+r}, v{o}, v{o+1}, v{o+2}', f'v_add_u32 v{c+r}, v{c+r}, v{o+3}'])
            red = [f'v_add_u32_dpp v{y}, v{c}, v{c} row_ror:8 row_mask:0xf bank_mask:0x3', f'v_add_u32_dpp v{y+1}, v{c+1}, v{c+1} row_ror:8 row_mask:0xf bank_mask:0x3',
                   f'v_add_u32_dpp v{y}, v{c+2}, v{c+2} row_ror:8 row_mask:0xf bank_mask:0xc', f'v_add_u32_dpp v{y+1}, v{c+3}, v{c+3} row_ror:8 row_mask:0xf bank_mask:0xc',
                   f'v_add_u32_dpp v{z}, v{y}, v{y} row_shl:4 row_mask:0xf bank_mask:0x5', f'v_add_u32_dpp v{z}, v{y+1}, v{y+1} row_shr:4 row_mask:0xf bank_mask:0xa',
                   f'v_add_u32_dpp v{z}, v{z}, v{z} quad_perm:[1,0,3,2] {DPP}', f'v_add_u32_dpp v{z}, v{z}, v{z} quad_perm:[2,3,0,1] {DPP}']
            return ops, red
        def out_cs(ht):
            if not cs: return outops(ht)
            o = outops(ht); l, red = csum(ht); res = []
            for r in range(4): res += o[6*r:6*r+6] + l[r]
            return res + red
        ltail = ['v_permlane32_swap_b32 v70, v71','v_add_f32 v70, v70, v71','v_mov_b32 v71, v70', f'ds_read_b128 v[76:79], v{vLR}', 'v_permlane16_swap_b32 v70, v71','v_add_f32 v70, v70, v71',
                 f'ds_write_b32 v{vMW}, v70 offset:512', 'v_and_b32 v71, 1, v1']
        recops = ['s_waitcnt lgkmcnt(0)', 's_barrier', f'ds_read_b128 v[72:75], v{vLR} offset:512', 'v_max3_f32 v84, v76, v77, v78', 'v_max_f32 v84, v84, v79', 'v_mul_f32 v84, v38, v84',
                  f'v_mov_b32 v86, s{sT0}', f'v_mov_b32 v87, s{sT0 if cs else sT1}', 'v_cmp_eq_u32 vcc, 1, v71', ('gap',1), 's_waitcnt lgkmcnt(0)', 'v_add_f32 v72, v72, v73', 'v_add_f32 v74, v74, v75', 'v_add_f32 v85, v72, v74']
        left = stream(mf, ltail + out_cs(0) + recops, [])
        flush(left)
        self.stamp('T.pv8')
        flush(out_cs(1))
        if cs: e('v_cndmask_b32 v86, v60, v61, vcc\nv_sub_u32 v86, 0, v86')
        self.stamp('T.PVst')
        rw = self.o.get('recwait', None if cs else 0)
        e(f's_waitcnt vmcnt({nwe+8 if rw is None else rw})')
        self.pub('v[84:87]', vRS)
        self.stamp('T.rec')
        e(f's_cmp_ge_u32 s{sR}, 10\ns_cbranch_scc1 L_END')
        for i in range(nwe, 16): flush(wo_ops(i))
        e(f"""
        v_lshrrev_b32 v12, 2, v1
        v_lshl_add_u32 v12, v2, 3, v12
        v_lshlrev_b32 v12, 7, v12
        v_and_b32 v13, 3, v1
        v_lshl_add_u32 v12, v13, 3, v12
        v_lshrrev_b32 v14, 3, v1
        v_and_b32 v15, 1, v2
        v_lshl_or_b32 v14, v15, 1, v14
        v_xor_b32 v14, s{sW}, v14
        v_lshl_add_u32 v24, v14, 5, v12
        v_mul_u32_u24 v13, 320, v13
        v_add_u32 v13, v13, v11
        v_add_u32 v25, {HB}, v13
        v_mul_u32_u24 v12, 320, v2
        v_lshl_add_u32 v12, v1, 3, v12
        s_mul_i32 s{s0}, s{sW}, 1280
        s_add_u32 s{s0}, s{s0}, {HB}
        v_add_u32 v26, s{s0}, v12
        v_lshlrev_b32 v12, 4, v1
        v_lshl_add_u32 v27, v2, 13, v12
        s_lshl_b32 s75, s{sX8}, 4
        s_add_u32 s75, s75, s{sW}
        s_lshl_b32 s75, s75, 11
        s_add_u32 s75, s75, {SL+S_HC+LOC}
        s_and_b32 s75, s75, s{sLM}
        s_lshl_b32 s{s0}, s{sX8}, 11
        s_lshl_b32 s{s1}, s{sR}, 7
        s_add_u32 s{s0}, s{s0}, s{s1}
        s_lshl_b32 s{s1}, s{sW}, 5
        s_add_u32 s{s0}, s{s0}, s{s1}
        s_add_u32 s{s0}, s{s0}, {H3B}
        v_lshlrev_b32 v12, 1, v0
        v_add_u32 v12, s{s0}, v12
        v_cmp_gt_u32 vcc, 16, v0
        v_cndmask_b32 v28, v9, v12, vcc
        s_waitcnt vmcnt(0)
        s_barrier
        """)
        self.stamp('C.land')
        for st_ in range(16):
            for q in range(2): e(f'ds_read_b64_tr_b16 {a(st_*4+2*q,2)}, v24 offset:{WO+st_*4096+q*512}')
        e('L_C_HC:')
        e(f'buffer_load_dwordx4 v[76:79], v27, {srd(rWS)}, s75 offen sc1\nbuffer_load_dwordx4 v[80:83], v27, {srd(rWS)}, s75 offen offset:256 sc1')
        e('s_waitcnt vmcnt(0)')
        e('ds_write2_b32 v26, v76, v78 offset0:0 offset1:1\nds_write2_b32 v26, v80, v82 offset0:32 offset1:33')
        for r in (77,79,81,83): e(f'v_xor_b32 v{r}, s{sT0}, v{r}')
        e('v_or3_b32 v12, v77, v79, v81\nv_or_b32 v12, v12, v83\nv_cmp_ne_u32 vcc, 0, v12')
        self.retry('L_C_HC', sleep=0, sregs=(75,))
        self.stamp('C.hcin')
        e('s_waitcnt lgkmcnt(0)\ns_barrier')
        self.stamp('C.bar')
        NP = 8
        def ar(st_): return f'ds_read_b128 {v(128+4*st_,4)}, v25 offset:{(st_>>2)*1280+(st_&3)*64}'
        for st_ in range(NP): e(ar(st_))
        for st_ in range(16):
            e(f's_waitcnt lgkmcnt({min(NP-1, 15-st_)})')
            e(f'v_mfma_f32_16x16x32_bf16 v[104:107], {v(128+4*st_,4)}, {a(st_*4,4)}, ' + ('0' if st_ == 0 else 'v[104:107]'))
            if st_+NP < 16: e(ar(st_+NP))
        e('v_pk_add_f32 v[104:105], v[104:105], v[106:107]\nv_add_f32 v104, v104, v105\nv_cvt_pk_bf16_f32 v104, v104, v104\nv_min_u32 v104, -2, v104')
        e(f'buffer_store_short v104, v28, {srd(rWS)}, 0 offen sc1\nbuffer_store_short v104, v28, {srd(rWS)}, s{sLOC} offen')
        self.stamp('C.h3')

    def epilogue(self):
        e = self.e
        e('L_END:')
        if 'amp2' in self.o:
            k = self.idx[self.o['amp2']]
            e(f's_waitcnt lgkmcnt(0)\ns_cmp_eq_u32 s{sSTAMP+2*k}, 0\ns_cbranch_scc1 L_EXIT')
            if 'ampwg' in self.o: e(f's_cmp_lg_u32 s2, {self.o["ampwg"]}\ns_cbranch_scc1 L_EXIT')
            e(f's_sub_u32 s60, s{sSTAMP+2*k}, s{sSTAMP}\ns_lshl_b32 s60, s60, 3\ns_add_u32 s60, s60, s{sSTAMP}\ns_add_u32 s60, s60, 2000')
            e('L_AMP2:\ns_sleep 4\ns_memrealtime s[62:63]\ns_waitcnt lgkmcnt(0)\ns_sub_u32 s61, s62, s60\ns_cmp_lt_i32 s61, 0\ns_cbranch_scc1 L_AMP2')
        if self.stamps and 'amp' not in self.o and 'amp2' not in self.o:
            e(f's_waitcnt lgkmcnt(0)\ns_lshl_b32 s60, s2, 2\ns_add_u32 s60, s60, s{sW}\ns_lshl_b32 s60, s60, 6\ns_add_u32 s60, s60, {STAMP}\nv_mov_b32 v4, 0')
            for k in range(11): e(f'v_mov_b32 v5, s{sSTAMP+2*k}\nbuffer_store_dword v5, v4, {srd(rWS)}, s60 offen offset:{4*k}')
            e(f'v_mov_b32 v5, s{sTO}\nbuffer_store_dword v5, v4, {srd(rWS)}, s60 offen offset:44')
        e('L_EXIT:')

    def build(self):
        if self.stamps:
            for k in range(1,11): self.e(f's_mov_b32 s{sSTAMP+2*k}, 0')
        self.prologue(); self.role_A(); self.role_T(); self.epilogue()
        hdr = open('header.txt').read()
        return f'''{hdr}; @launch grid=(256,1,1) block=(256,1,1) lds=163840
.amdgcn_target "amdgcn-amd-amdhsa--gfx950"
.text
.globl {KN}
.p2align 8
.type {KN},@function
{KN}:
{self.e.text()}
s_endpgm
.section .rodata,"a"
.p2align 6
.amdhsa_kernel {KN}
  .amdhsa_next_free_vgpr 512
  .amdhsa_next_free_sgpr 102
  .amdhsa_accum_offset 256
  .amdhsa_group_segment_fixed_size 0
  .amdhsa_kernarg_size 112
  .amdhsa_user_sgpr_count 2
  .amdhsa_user_sgpr_kernarg_segment_ptr 1
  .amdhsa_system_sgpr_workgroup_id_x 1
.end_amdhsa_kernel
'''

if __name__ == '__main__':
    import json
    out = sys.argv[1]; stamps = len(sys.argv) > 2 and sys.argv[2] == '1'
    opt = json.loads(sys.argv[3]) if len(sys.argv) > 3 else {}
    open(out,'w').write(G(stamps, opt).build())
```

```python
import sys
sys.path.insert(0,'work')
from dsl import Asm
NAME = 'sequential_preLN__compressed_kv_cla__dense_activation_squared_relu__decode'
KN = NAME + '_kernel'

EPOCH=0; RDY=0x1000; GATE=0x2000; QP=0x8000; SL=0x40000; REC=0x80000; LOC=0x100000; PART=0x200000; STAMP=0x680000; PAD=32768+1024
S_QL=0; S_HC=256; S_H4=768; QCS=0x6000; H3B = SL + 108*2048 + S_H4
WSSZ=0x700000
OOB=0x7ffffff0
NLOC=96
sLM,sLC,sLOC,sTMP = 3,4,5,6
pX,pCKV,pWQ,pWUK,pWUV,pWO,pBX,pW1,pB1,pW2,pB2,pOUT,pDBG,pWS = [8+2*i for i in range(14)]
sW,sX8,sR,sE,sT0,sT1,sTO,sC = 36,37,38,39,40,41,42,43
rWS=44; rA=48; rB=52; rC=56
sSTAMP=80
def srd(r): return f's[{r}:{r+3}]'
def v(n,c=1): return f'v{n}' if c==1 else f'v[{n}:{n+c-1}]'
def a(n,c=1): return f'a{n}' if c==1 else f'a[{n}:{n+c-1}]'
DPP='row_mask:0xf bank_mask:0xf'
QB = 131072
WQ = 69632; XN = 110592

class G:
    def __init__(self, stamps=False, opt=None):
        self.e = Asm(); self.stamps = stamps; self.o = opt or {}
        self.slots = {'A':['start'],'T':['start'],'R':[]}; self.idx = {}; self.tbase = 1
    def stamp(self, name):
        if not self.stamps: return
        role = name.split('.')[0]
        lst = self.slots['A' if role in 'AFR' else 'T']
        want = self.o.get('want')
        if name == 'start': k = 0
        else:
            if want is not None and name not in want: return
            if role == 'R':
                k = self.tbase + len(self.slots['R']); self.slots['R'].append(name)
            else:
                k = len(lst); lst.append(name)
                if role == 'A': self.tbase = len(lst)
            if k > 10: raise Exception('too many stamps '+name)
        self.idx[name] = k
        op = 's_memtime' if self.o.get('cyc') else 's_memrealtime'
        self.e(f'{op} s[{sSTAMP+2*k}:{sSTAMP+2*k+1}]')
        if name in self.o.get('cut', []): self.e('s_branch L_END')
    def stamptok(self, name):
        n = len(self.e.lines); self.stamp(name)
        t = [x.strip() for x in self.e.lines[n:]]
        del self.e.lines[n:]
        if t: self.e.hist.pop()
        return t
    def mk_srd(self, r, ptr, off_sgpr, size):
        e = self.e
        if off_sgpr is None:
            e(f's_mov_b32 s{r}, s{ptr}\ns_and_b32 s{r+1}, s{ptr+1}, 0xffff\ns_mov_b32 s{r+2}, {size}')
        else:
            e(f's_add_u32 s{r}, s{ptr}, s{off_sgpr}\ns_addc_u32 s{r+1}, s{ptr+1}, 0\ns_and_b32 s{r+1}, s{r+1}, 0xffff\ns_sub_u32 s{r+2}, {size}, s{off_sgpr}')
        e(f's_mov_b32 s{r+3}, 0x20000')
    def allred(self, op, x, t, steps16=4):
        e = self.e
        pats = ['quad_perm:[1,0,3,2]','quad_perm:[2,3,0,1]','row_half_mirror','row_mirror'][:steps16]
        for p in pats: e(f'{op}_dpp v{x}, v{x}, v{x} {p} {DPP}')
        e(f'v_mov_b32 v{t}, v{x}\nv_permlane16_swap_b32 v{x}, v{t}\n{op} v{x}, v{x}, v{t}')
        e(f'v_mov_b32 v{t}, v{x}\nv_permlane32_swap_b32 v{x}, v{t}\n{op} v{x}, v{x}, v{t}')
    def timeout(self):
        self.e(f's_sub_u32 s{sTO}, s{sTO}, 1\ns_cmp_eq_u32 s{sTO}, 0\ns_cbranch_scc1 L_END')
    def fb(self, vregs=(), sregs=()):
        e = self.e
        self.timeout()
        e(f's_add_u32 s{sLC}, s{sLC}, 1\ns_cmp_ge_u32 s{sLC}, {NLOC}\ns_cselect_b32 s{sLM}, {(~LOC)&0xffffffff}, s{sLM}')
        self.lmask(vregs, sregs)
    def lmask(self, vregs=(), sregs=()):
        for r in vregs: self.e(f'v_and_b32 v{r}, s{sLM}, v{r}')
        for r in sregs: self.e(f's_and_b32 s{r}, s{r}, s{sLM}')
    def stop(self, data):
        if '[' not in data: return 'buffer_store_dword'
        lo, hi = data[2:-1].split(':'); return f'buffer_store_dwordx{int(hi)-int(lo)+1}'
    def publ(self, data, voff): self.e(f'{self.stop(data)} {data}, v{voff}, {srd(rWS)}, s{sLOC} offen')
    def pubg(self, data, voff): self.e(f'{self.stop(data)} {data}, v{voff}, {srd(rWS)}, 0 offen sc1')
    def pub(self, data, voff): self.pubg(data, voff); self.publ(data, voff)
    def late_pubg(self, data, voff):
        e = self.e; l = e.newlabel('Lnp')
        e(f's_cmp_eq_u32 s{sLM}, -1\ns_cbranch_scc1 {l}'); self.pubg(data, voff); e(f'{l}:')
    def retry(self, label, sleep=1, vregs=(), sregs=(), late=None):
        e = self.e
        ok = e.newlabel('Lok')
        e(f's_cbranch_vccz {ok}')
        self.fb(vregs, sregs)
        if late: self.late_pubg(*late)
        if sleep: e(f's_sleep {sleep}')
        e(f's_branch {label}')
        e(f'{ok}:')
    def maxchain(self, dst, regs):
        e = self.e
        regs = list(regs)
        e(f'v_max3_u32 v{dst}, v{regs[0]}, v{regs[1]}, v{regs[2]}'); regs = regs[3:]
        while len(regs) >= 2:
            e(f'v_max3_u32 v{dst}, v{dst}, v{regs[0]}, v{regs[1]}'); regs = regs[2:]
        if regs: e(f'v_max_u32 v{dst}, v{dst}, v{regs[0]}')
    def tagcheck(self, dst, pairs):
        e = self.e; rs = []
        for r in pairs:
            e(f'v_xor_b32 v{r}, s{sT0}, v{r}\nv_xor_b32 v{r+1}, s{sT1}, v{r+1}'); rs += [r, r+1]
        if len(rs) == 2: e(f'v_or_b32 v{dst}, v{rs[0]}, v{rs[1]}')
        else:
            e(f'v_or3_b32 v{dst}, v{rs[0]}, v{rs[1]}, v{rs[2]}'); rs = rs[3:]
            while len(rs) >= 2: e(f'v_or3_b32 v{dst}, v{dst}, v{rs[0]}, v{rs[1]}'); rs = rs[2:]
            if rs: e(f'v_or_b32 v{dst}, v{dst}, v{rs[0]}')
        e(f'v_cmp_ne_u32 vcc, 0, v{dst}')
    def ident_masks(self, dst, val_lo, val_hi, first, n, t):
        e = self.e
        e(f'v_and_b32 v{t}, 1, v1\nv_cmp_eq_u32 vcc, 1, v{t}\nv_mov_b32 v{t}, {val_lo}\nv_mov_b32 v{t+1}, {val_hi}\nv_cndmask_b32 v{t}, v{t}, v{t+1}, vcc')
        e(f'v_lshrrev_b32 v{t+1}, 1, v1')
        for r in range(n):
            e(f'v_cmp_eq_u32 vcc, {first+r}, v{t+1}\nv_cndmask_b32 v{dst+r}, 0, v{t}, vcc')
    def red_final(self, RED, t, va, clamp):
        e = self.e
        for w in range(4): e(f'ds_read_b128 {v(t+4+4*w,4)}, v{va} offset:{RED+256*w}')
        e('s_waitcnt lgkmcnt(2)')
        for i in range(2): e(f'v_pk_add_f32 {v(t+4+2*i,2)}, {v(t+4+2*i,2)}, {v(t+8+2*i,2)}')
        e('s_waitcnt lgkmcnt(0)')
        for i in range(2): e(f'v_pk_add_f32 {v(t+12+2*i,2)}, {v(t+12+2*i,2)}, {v(t+16+2*i,2)}')
        for i in range(2): e(f'v_pk_add_f32 {v(t+4+2*i,2)}, {v(t+4+2*i,2)}, {v(t+12+2*i,2)}')
        for i in range(2): e(f'v_cvt_pk_bf16_f32 v{t+i}, v{t+4+2*i}, v{t+5+2*i}')
        if clamp:
            for i in range(2): e(f'v_min_u32 v{t+i}, -2, v{t+i}')
    def code_prefetch(self):
        e = self.e
        npl = self.o.get('npl', 3)
        e(f's_getpc_b64 s[20:21]\nL_PC:\ns_sub_u32 s20, s20, L_PC-{KN}\ns_subb_u32 s21, s21, 0')
        e(f's_and_b32 s22, s{sR}, 15\ns_lshl_b32 s22, s22, 2\ns_add_u32 s22, s22, s{sW}\ns_lshl_b32 s22, s22, 7')
        for i in range(npl):
            e(f's_min_u32 s23, s22, L_EXIT-{KN}\ns_load_dword s7, s[20:21], s23')
            if i < npl-1: e(f's_add_u32 s22, s22, 8192')
    def kmap(self):
        k = self.o.get('kil', 0)
        if k == 0: return 17, 15, 4096
        if k == 1: return 12, 22, 1 << 19
        if k == 2: return 12, 19, 1 << 21
        if k == 3: return 14, 12, 1 << 21
        if k == 4: return 15, 22, 4096
        if k == 5: return -12, 19, 1 << 16
        if k == 6: return -12, 16, 1 << 18
        if k == 7: return -14, 12, 1 << 18
        if k == 8: return -15, 19, 4096
    def kbase(self, dst, sidx, tsh):
        if tsh > 0: self.e(f's_lshl_b32 s{dst}, s{sidx}, {tsh}')
        else: self.e(f's_and_b32 s{dst}, s{sidx}, 15\ns_lshl_b32 s{dst}, s{dst}, {-tsh}\ns_lshl_b32 s{sTMP}, s{sX8}, 21\ns_add_u32 s{dst}, s{dst}, s{sTMP}')
    def tlb_warm(self):
        e = self.e
        M = 1 << 21
        lists = {1: [(pWUK,0),(pWUK,M),(pWS,PART),(pWS,PART+M),(pWUV,0),(pWUV,M)],
                 2: [(pW1,0),(pW1,M),(pW2,0),(pW2,M),(pB1,0),(pB2,0)],
                 3: [(pWO,0),(pWO,M),(pWO,2*M),(pOUT,0)]}
        for w,l in lists.items():
            e(f's_cmp_lg_u32 s{sW}, {w}\ns_cbranch_scc1 L_TW{w}')
            for p,off in l:
                if off: e(f's_mov_b32 s60, {off}\ns_load_dword s7, s[{p}:{p+1}], s60')
                else: e(f's_load_dword s7, s[{p}:{p+1}], 0')
            e(f'L_TW{w}:')
    def tags(self):
        self.e(f's_add_u32 s{sT0}, s{sE}, 0x9e3779b9\ns_xor_b32 s{sT1}, s{sT0}, 0x5bd1e995')

    def prologue(self):
        e = self.e
        self.stamp('start')
        e(f'''
        s_cmp_ge_u32 s2, 256
        s_cbranch_scc1 L_EXIT
        s_load_dwordx16 s[8:23], s[0:1], 0
        s_load_dwordx4 s[32:35], s[0:1], 96
        s_load_dwordx8 s[24:31], s[0:1], 64
        v_lshrrev_b32 v1, 6, v0
        v_and_b32 v0, 63, v0
        v_readfirstlane_b32 s{sW}, v1
        v_and_b32 v1, 15, v0
        v_lshrrev_b32 v2, 4, v0
        v_lshlrev_b32 v3, 4, v0
        v_lshlrev_b32 v4, 2, v0
        s_and_b32 s{sX8}, s2, 7
        s_lshr_b32 s{sR}, s2, 3
        v_lshlrev_b32 v5, 4, v1
        v_lshlrev_b32 v6, 5, v2
        v_xor_b32 v5, v5, v6
        v_lshl_add_u32 v6, v2, 13, v5
        s_lshr_b32 s67, s{sW}, 1
        s_lshl_b32 s67, s67, 7
        v_xor_b32 v8, s67, v6
        v_mov_b32 v9, {OOB}
        v_lshlrev_b32 v11, 4, v2
        s_bfe_u32 s60, s{sR}, 0x20002
        s_mul_i32 s60, s60, {160*8192}
        s_and_b32 s63, s{sR}, 3
        s_lshl_b32 s64, s{sX8}, 2
        s_add_u32 s63, s63, s64
        s_lshl_b32 s63, s63, 8
        s_add_u32 s60, s60, s63
        s_lshl_b32 s61, s{sW}, 15
        s_lshl_b32 s62, s{sW}, 10
        s_add_u32 s62, s62, {WQ}
        s_mov_b32 s{rA+3}, 0x20000
        s_mov_b32 s{rC+3}, 0x20000
        s_mov_b32 s{rC+2}, 1280
        s_sub_u32 s{rA+2}, 5242880, s60
        s_mov_b32 s{sTO}, 400000
        s_mov_b32 s{sLM}, -1
        s_mov_b32 s{sLC}, 0
        s_mov_b32 s{sLOC}, {LOC}
        s_mov_b32 s{rWS+2}, {WSSZ}
        s_mov_b32 s{rWS+3}, 0x20000
        s_waitcnt lgkmcnt(0)
        s_add_u32 s{rA}, s{pWQ}, s60
        s_addc_u32 s{rA+1}, s{pWQ+1}, 0
        s_and_b32 s{rA+1}, s{rA+1}, 0xffff
        s_mov_b32 s{rC}, s{pX}
        s_and_b32 s{rC+1}, s{pX+1}, 0xffff
        s_mov_b32 s{rWS}, s{pWS}
        s_and_b32 s{rWS+1}, s{pWS+1}, 0xffff
        s_cmp_lt_u32 s{sR}, 16
        s_cbranch_scc1 L_T
        ''')
    def x_issue(self):
        for kk in range(5): self.e(f'buffer_load_dword v{20+kk}, v4, {srd(rC)}, 0 offen offset:{256*kk} {self.o.get("xflag","")}')
    def wq_dma(self, k):
        e = self.e
        e(f's_add_u32 m0, s62, {k*4096}')
        e(f'buffer_load_dwordx4 v8, {srd(rA)}, s61 offen nt lds')
        if k < 9: e(f's_add_u32 s61, s61, {4*32768}')
    def wuk_setup(self, sAi, srdreg):
        e = self.e
        e(f'''
        s_lshl_b32 s63, s{sX8}, 2
        s_add_u32 s64, s63, s{sW}
        s_lshl_b32 s64, s64, 8
        s_lshl_b32 s65, s{sAi}, 18
        s_add_u32 s64, s64, s65
        ''')
        self.mk_srd(srdreg, pWUK, 64, 4194304)
        e(f'v_xor_b32 v7, 0x80, v6\ns_mov_b32 s68, 0\ns_lshl_b32 s69, s{sW}, 13')
    def wuk_dma(self, k, srdreg, base):
        e = self.e
        e(f's_add_u32 m0, s69, {base+k*1024}')
        e(f'buffer_load_dwordx4 v{6 if ((k>>1)&1)==0 else 7}, {srd(srdreg)}, s68 offen nt lds')
        if k < 7: e(f's_add_u32 s68, s68, 32768')
    def a1(self, role, y_x, y_wq, mid):
        e = self.e
        s0, s1 = 63, 64
        e(f'''
        v_lshrrev_b32 v12, 2, v1
        v_lshl_add_u32 v13, v2, 3, v12
        v_lshlrev_b32 v13, 8, v13
        v_and_b32 v14, 3, v1
        v_lshl_add_u32 v13, v14, 3, v13
        v_and_b32 v15, 1, v2
        v_lshl_or_b32 v15, v15, 2, v12
        s_lshl_b32 s{s0}, s{sW}, 1
        v_xor_b32 v15, s{s0}, v15
        v_lshl_add_u32 v60, v15, 5, v13
        v_xor_b32 v15, 1, v15
        v_lshl_add_u32 v61, v15, 5, v13
        v_add_u32 v56, {WQ}, v60
        v_add_u32 v57, {WQ}, v61
        ''')
        e(f'''
        v_lshl_add_u32 v12, v1, 6, v11
        s_and_b32 s{s0}, s{sR}, 3
        s_lshl_b32 s{s1}, s{sX8}, 2
        s_add_u32 s{s0}, s{s0}, s{s1}
        s_lshl_b32 s{s0}, s{s0}, 2
        s_bfe_u32 s{s1}, s{sR}, 0x20002
        s_add_u32 s{s0}, s{s0}, s{s1}
        s_lshl_b32 s{s0}, s{s0}, 9
        s_lshl_b32 s{s1}, s{sW}, 7
        s_add_u32 s{s0}, s{s0}, s{s1}
        s_add_u32 s{s0}, s{s0}, {QP}
        v_add_u32 v12, s{s0}, v12
        v_cmp_gt_u32 vcc, 2, v1
        v_cndmask_b32 v62, v9, v12, vcc
        v_cmp_eq_u32 s[70:71], 1, v1
        s_mul_i32 s{s0}, s{sW}, 1280
        s_add_u32 s{s0}, s{s0}, {XN}
        v_add_u32 v10, s{s0}, v4
        s_bfe_u32 s{s1}, s{sR}, 0x20002
        s_mul_i32 s{s1}, s{s1}, 320
        s_add_u32 s{s0}, s{s0}, s{s1}
        v_add_u32 v12, s{s0}, v11
        s_waitcnt vmcnt({y_x}) lgkmcnt(0)
        ''')
        self.stamp(role+'.x')
        for k in range(5): e(f'v_lshlrev_b32 v{26+2*k}, 16, v{20+k}\nv_and_b32 v{27+2*k}, 0xffff0000, v{20+k}')
        e('v_pk_add_f32 v[36:37], v[26:27], v[28:29]\nv_pk_add_f32 v[38:39], v[30:31], v[32:33]\nv_pk_add_f32 v[36:37], v[36:37], v[34:35]\nv_pk_add_f32 v[36:37], v[36:37], v[38:39]\nv_add_f32 v36, v36, v37')
        self.allred('v_add_f32', 36, 37)
        e('v_mul_f32 v36, 0xbacccccd, v36\nv_mov_b32 v37, v36')
        for k in range(26,36,2): e(f'v_pk_add_f32 {v(k,2)}, {v(k,2)}, v[36:37]')
        e('v_pk_mul_f32 v[36:37], v[26:27], v[26:27]')
        for k in range(28,36,2): e(f'v_pk_fma_f32 v[36:37], {v(k,2)}, {v(k,2)}, v[36:37]')
        e('v_add_f32 v36, v36, v37')
        self.allred('v_add_f32', 36, 37)
        e('v_mul_f32 v36, 0x3acccccd, v36\nv_add_f32 v36, 0x3727c5ac, v36\nv_rsq_f32 v36, v36\nv_mov_b32 v37, v36')
        for k in range(26,36,2): e(f'v_pk_mul_f32 {v(k,2)}, {v(k,2)}, v[36:37]')
        for k in range(5): e(f'v_cvt_pk_bf16_f32 v{20+k}, v{26+2*k}, v{27+2*k}\nds_write_b32 v10, v{20+k} offset:{256*k}')
        e('s_waitcnt lgkmcnt(0)')
        for s in range(5): e(f'ds_read_b128 {v(36+4*s,4)}, v12 offset:{s*64}')
        e(f's_load_dword s{sE}, s[{pWS}:{pWS+1}], {EPOCH}')
        self.stamp(role+'.ln')
        mid()
        e(f's_waitcnt vmcnt({y_wq}) lgkmcnt(0)\ns_barrier')
        self.stamp(role+'.wq')
        vW = 128
        for s in range(5):
            for T in range(2):
                for q in range(2): e(f'ds_read_b64_tr_b16 {v(vW+(s*2+T)*4+2*q,2)}, v{56+T} offset:{s*8192+q*1024}')
        self.tags()
        e(f'v_mov_b32 v18, s{sT0}\nv_mov_b32 v19, s{sT1}')
        for s in range(5):
            for T in range(2):
                e(f's_waitcnt lgkmcnt({min(15,18-(s*2+T)*2)})')
                e(f'v_mfma_f32_16x16x32_bf16 {v(84+4*T,4)}, {v(vW+(s*2+T)*4,4)}, {v(36+4*s,4)}, ' + ('0' if s==0 else v(84+4*T,4)))
        for i in range(4): e(f'v_cvt_pk_bf16_f32 v{92+i}, v{84+2*i}, v{85+2*i}')
        e('v_cndmask_b32 v16, v92, v94, s[70:71]\nv_cndmask_b32 v17, v93, v95, s[70:71]')
        self.publ('v[16:19]', 62)
        self.stamp(role+'.qp')


    def role_A(self):
        e = self.e
        QV=0; CL=1024; ML=2304; RED=2560; DUM=3584; WUK=4096; WUV=36864
        W1=69632; W2=W1+20480; HB=4096; AP=HB+2048; ST=AP+256; HELP=135168
        sAi,sHd,sJ,s0,s1,s2_,sSL = 72,73,74,63,64,65,66
        sF,sG = 60,61
        if self.o.get('noA'): e('s_branch L_END')
        order = self.o.get('a_order', 'qqqqqqqqqq|uuuuuuuu')
        cnt = {'q':0,'u':0}
        def issue(ch):
            if ch == 'q': self.wq_dma(cnt['q'])
            else:
                if cnt['u'] == 0: self.wuk_setup(sAi, rB)
                self.wuk_dma(cnt['u'], rB, WUK)
            cnt[ch] += 1
        e(f's_sub_u32 s{sAi}, s{sR}, 16')
        self.x_issue()
        o1, o2 = order.split('|')
        for ch in o1: issue(ch)
        e(f"""
        s_lshl_b32 s63, s{sX8}, 2
        s_and_b32 s{sHd}, s{sAi}, 3
        s_add_u32 s{sHd}, s{sHd}, s63
        s_lshr_b32 s{sJ}, s{sAi}, 2
        s_lshl_b32 s{sSL}, s{sX8}, 4
        s_add_u32 s{sSL}, s{sSL}, s{sAi}
        """)
        def mid():
            for ch in o2: issue(ch)
        full = o1 + o2
        self.a1('A', len(o1), len(full)-1-full.rindex('q'), mid)
        e(f"""
        s_lshl_b32 s{s0}, s{sX8}, 4
        s_and_b32 s{s1}, s{sAi}, 12
        s_add_u32 s{s0}, s{s0}, s{s1}
        s_add_u32 s{s0}, s{s0}, s{sW}
        s_lshl_b32 s{s0}, s{s0}, 11
        s_and_b32 s{s1}, s{sAi}, 3
        s_lshl_b32 s{s1}, s{s1}, 6
        s_add_u32 s{s0}, s{s0}, s{s1}
        s_add_u32 s{s0}, s{s0}, {SL+S_QL}
        v_add_u32 v12, s{s0}, v4
        s_lshl_b32 s{s0}, s{sSL}, 11
        s_lshl_b32 s{s1}, s{sW}, 7
        s_add_u32 s{s0}, s{s0}, s{s1}
        s_add_u32 s{s0}, s{s0}, {SL+S_HC}
        v_lshlrev_b32 v13, 3, v0
        v_add_u32 v13, s{s0}, v13
        v_cmp_gt_u32 vcc, 16, v0
        v_cndmask_b32 v101, v9, v12, vcc
        v_cndmask_b32 v102, v9, v13, vcc
        s_lshl_b32 s{s0}, s{sSL}, 2
        s_add_u32 s{s0}, s{s0}, s{sW}
        s_lshl_b32 s{s0}, s{s0}, 3
        s_add_u32 s{s0}, s{s0}, {QCS}
        v_mov_b32 v12, s{s0}
        s_and_b32 s{s1}, s{sAi}, 7
        s_lshl_b32 s{s1}, s{s1}, 1
        v_cmp_eq_u32 vcc, s{s1}, v0
        v_cndmask_b32 v103, v9, v12, vcc
        v_mov_b32 v99, s{sT0}
        """)
        e(f"""
        v_lshlrev_b32 v27, 9, v2
        v_lshl_add_u32 v27, v1, 4, v27
        s_lshl_b32 s{s2_}, s{sX8}, 2
        s_add_u32 s{s2_}, s{s2_}, s{sW}
        s_lshl_b32 s{s2_}, s{s2_}, 11
        s_add_u32 s{s2_}, s{s2_}, {QP+LOC}
        v_lshlrev_b32 v12, 9, v1
        s_lshl_b32 s{s0}, s{sW}, 13
        s_add_u32 s{s0}, s{s0}, {WUK}
        v_add_u32 v12, s{s0}, v12
        v_and_b32 v13, 1, v1
        v_and_b32 v14, 4, v1
        v_lshl_or_b32 v13, v13, 1, v14
        v_lshlrev_b32 v13, 5, v13
        """)
        def h0loads():
            for i in range(2): e(f'buffer_load_dwordx4 {v(64+4*i,4)}, v27, {srd(rWS)}, s{s2_} offen offset:{i*256} sc1')
        for s in range(4):
            e(f'v_add_u32 v14, {s*64}, v11\nv_xor_b32 v14, v14, v13\nv_add_u32 v{40+2*s}, v14, v12\nv_xor_b32 v14, 32, v14\nv_add_u32 v{41+2*s}, v14, v12')
        vI = 28
        self.ident_masks(vI, 0x3f80, 0x3f800000, 0, 8, 12)
        e(f"""
        s_lshl_b32 s{s0}, s{sW}, 8
        v_lshlrev_b32 v12, 3, v0
        v_add_u32 v12, s{s0}, v12
        v_mov_b32 v13, {DUM}
        v_cmp_gt_u32 vcc, 32, v0
        v_cndmask_b32 v24, v13, v12, vcc
        v_add_u32 v25, s{s0}, v11
        """)
        e(f's_waitcnt vmcnt({1+self.o.get("h0lead",3)})')
        h0loads()
        e('s_waitcnt vmcnt(3)')
        self.stamp('A.wuk')
        vU = 112
        for s in range(4):
            for T in range(2): e(f'ds_read_b128 {v(vU+(s*2+T)*4,4)}, v{40+2*s+T} offset:{T*256}')
        e('L_A_H0:')
        e('s_waitcnt vmcnt(0)')
        for i in range(2):
            e(f'v_mfma_f32_16x16x16_bf16 v[80:83], {v(vI+2*i,2)}, {v(64+4*i,2)}, ' + ('0' if i==0 else 'v[80:83]'))
        self.tagcheck(12, [66,70])
        e('s_cbranch_vccz L_A_H0OK')
        self.fb((), (s2_,)); self.late_pubg('v[16:19]', 62)
        h0loads()
        e('s_branch L_A_H0')
        e('L_A_H0OK:')
        self.stamp('A.h0')
        e(f'v_cvt_pk_bf16_f32 v84, v80, v81\nv_cvt_pk_bf16_f32 v85, v82, v83\nds_write_b64 v24, v[84:85] offset:{QV}')
        for s in range(4): e(f'ds_read_b128 {v(144+4*s,4)}, v25 offset:{QV+s*64}')
        for s in range(4):
            e(f's_waitcnt lgkmcnt({3-s})')
            for T in range(2):
                e(f'v_mfma_f32_16x16x32_bf16 {v(104+4*T,4)}, {v(144+4*s,4)}, {v(vU+(s*2+T)*4,4)}, ' + ('0' if s==0 else v(104+4*T,4)))
        e('v_cvt_pk_bf16_f32 v64, v104, v108')
        self.pub('v64', 101)
        e(f'v_add_u32_dpp v96, v64, v64 quad_perm:[2,3,0,1] {DPP}\nv_xor_b32 v97, s{sT0}, v64\nv_add_u32_dpp v96, v96, v96 row_ror:4 {DPP}\nv_add_u32_dpp v96, v96, v96 row_ror:8 {DPP}')
        self.pub('v[96:97]', 103)
        self.stamp('A.ql')
        self.pubg('v[16:19]', 62)
        if self.o.get('pf', 3) == 3:
            e(f's_getpc_b64 s[20:21]\nL_PC:\ns_sub_u32 s20, s20, L_PC-{KN}\ns_subb_u32 s21, s21, 0')
            e(f's_lshl_b32 s{s0}, s{sW}, 13\nv_lshlrev_b32 v12, 7, v0\nv_add_u32 v12, s{s0}, v12\nv_min_u32 v12, L_EXIT-{KN}, v12')
            e(f's_and_b32 s{s0}, s{sAi}, 3\ns_cmp_lg_u32 s{s0}, 0\ns_cbranch_scc1 L_NOPF\nglobal_load_dword v255, v12, s[20:21]\nL_NOPF:')
        e('s_barrier')
        nh = self.o.get('a_help', 0)
        if nh:
            tsh, wsh, istr = self.kmap()
            self.kbase(s0, sSL, tsh)
            self.mk_srd(rA, pCKV, s0, 16777216)
            e(f'v_lshlrev_b32 v12, 10, v2\nv_lshl_add_u32 v12, v1, 4, v12\ns_lshl_b32 s68, s{sW}, {wsh}\ns_lshl_b32 s69, s{sW}, 12\ns_add_u32 m0, s69, {HELP}')
            for n in range(32-nh, 32):
                c, i = n >> 3, n & 7
                e(f's_add_u32 s{sTMP}, s68, {i*istr+c*256}')
                e(f'buffer_load_dwordx4 v12, {srd(rA)}, s{sTMP} offen {self.o.get("helpflag","nt")} lds')
        e(f"""
        v_lshrrev_b32 v12, 1, v2
        v_lshl_add_u32 v62, v12, 20, v5
        v_and_b32 v12, 1, v2
        v_lshl_add_u32 v62, v12, 17, v62
        v_xor_b32 v62, s67, v62
        s_lshl_b32 s{sG}, s{sJ}, 3
        s_add_u32 s{sG}, s{sG}, s{sX8}
        s_and_b32 s{sF}, s{sAi}, 3
        s_lshl_b32 s{s2_}, s{sG}, 2
        s_add_u32 s{sF}, s{sF}, s{s2_}
        """)
        sB = 62
        e(f"""
        v_and_b32 v5, 7, v1
        v_lshlrev_b32 v5, 4, v5
        v_and_b32 v6, 1, v2
        v_lshl_add_u32 v6, v6, 3, v5
        v_lshrrev_b32 v12, 3, v0
        v_lshl_add_u32 v14, v12, 11, v5
        v_cmp_eq_u32 vcc, s{sX8}, v12
        v_or_b32 v13, s{sLOC}, v14
        v_cndmask_b32 v46, v14, v13, vcc
        s_cmp_ge_u32 s{sG}, 27
        s_cbranch_scc1 L_A_NOF
        s_lshl_b32 s{s0}, s{sF}, 5
        """)
        self.mk_srd(rA, pW1, s0, 2211840)
        e(f's_mul_i32 s{s0}, s{sF}, 20480')
        self.mk_srd(rB, pW2, s0, 2211840)
        e(f"""
        v_and_b32 v7, 3, v12
        v_lshlrev_b32 v7, 3, v7
        v_lshrrev_b32 v8, 5, v0
        v_lshl_add_u32 v7, v8, 2, v7
        v_bfe_u32 v8, v0, 1, 2
        v_add_u32 v7, v7, v8
        v_mul_u32_u24 v7, 3456, v7
        v_and_b32 v8, 1, v0
        v_lshl_add_u32 v7, v8, 4, v7
        s_and_b32 s78, s{sF}, 3
        s_lshl_b32 s78, s78, 2
        s_add_u32 s78, s78, s{sW}
        """)
        w1f = self.o.get('w1flag', '')
        n1 = self.o.get('w1first', 2)
        def w1dma(k, r):
            if k == 1: e(f's_add_u32 s{sTMP}, s{sW}, 16')
            else:
                if k >= 2: e(f's_add_u32 s78, s78, 4\ns_and_b32 s78, s78, 15')
                e(f's_mov_b32 s{sTMP}, s78')
            e(f's_lshl_b32 s{s0}, s{sTMP}, 10\ns_add_u32 m0, s{s0}, {W1}\ns_mul_i32 s{s0}, s{sTMP}, 110592')
            e(f'buffer_load_dwordx4 v7, {srd(r)}, s{s0} offen {w1f} lds')
        for k in range(n1): w1dma(k, rA)
        e(f"""
        s_mul_i32 s{sB}, s{sW}, 3
        s_cmp_eq_u32 s{sW}, 3
        s_cselect_b32 s{sB}, 8, s{sB}
        s_lshl_b32 s{sB}, s{sB}, 7
        v_lshrrev_b32 v8, 1, v2
        v_lshl_add_u32 v8, v8, 7, v6
        s_cmp_lt_u32 s{sW}, 2
        s_cselect_b32 s{s0}, 32, 0
        v_cmp_gt_u32 vcc, s{s0}, v0
        v_cndmask_b32 v13, v9, v6, vcc
        v_cmp_gt_u32 vcc, 8, v1
        v_cndmask_b32 v12, v9, v8, vcc
        v_cndmask_b32 v13, v9, v13, vcc
        buffer_load_dwordx2 v[16:17], v12, {srd(rC)}, s{sB} offen
        buffer_load_dwordx2 v[18:19], v13, {srd(rC)}, s{sB} offen offset:256
        s_lshl_b32 s{s0}, s{sF}, 5
        """)
        self.mk_srd(rC, pB1, s0, 3456)
        e(f'v_lshlrev_b32 v12, 3, v2\nbuffer_load_dwordx2 v[58:59], v12, {srd(rC)}, 0 offen')
        e(f"""
        s_lshl_b32 s{s0}, s{sW}, 9
        s_add_u32 s{s0}, s{s0}, {HB}
        v_add_u32 v48, s{s0}, v8
        v_add_u32 v12, 256, v48
        v_mov_b32 v13, {DUM}
        v_cmp_gt_u32 vcc, 32, v0
        v_cndmask_b32 v49, v13, v12, vcc
        v_add_u32 v50, s{s0}, v11
        s_cmp_lt_u32 s{sW}, 2
        s_cselect_b32 s{s0}, 0, {OOB}
        v_max_u32 v47, s{s0}, v46
        s_add_u32 s79, s{sB}, {H3B}
        v_lshl_add_u32 v12, v1, 6, v11
        s_mul_i32 s{s0}, s{sW}, 320
        s_lshl_b32 s{s2_}, s{sF}, 11
        s_add_u32 s{s2_}, s{s0}, s{s2_}
        s_add_u32 s{s2_}, s{s2_}, {SL+S_H4}
        v_add_u32 v12, s{s2_}, v12
        v_cmp_gt_u32 vcc, 5, v1
        v_cndmask_b32 v51, v9, v12, vcc
        s_lshl_b32 s{s2_}, s{sB}, 4
        s_add_u32 s{s2_}, s{s2_}, {W1}
        v_lshlrev_b32 v52, 3, v0
        v_add_u32 v52, s{s2_}, v52
        v_lshrrev_b32 v12, 2, v0
        v_mul_u32_u24 v12, 1280, v12
        v_and_b32 v13, 3, v1
        v_lshl_add_u32 v12, v13, 4, v12
        s_add_u32 s{s0}, s{s0}, {W2}
        v_add_u32 v53, s{s0}, v12
        s_lshl_b32 s{s0}, s{sW}, 2
        v_lshrrev_b32 v12, 5, v0
        v_lshlrev_b32 v12, 4, v12
        v_add_u32 v12, s{s0}, v12
        v_add_u32 v54, {ST}, v12
        s_lshl_b32 s{s0}, s{sW}, 6
        v_add_u32 v55, {AP}, v11
        v_add_u32 v45, s{s0}, v55
        v_mov_b32 v44, {ST}
        s_branch L_A_FDONE
        L_A_NOF:
        """)
        sK = sF
        e(f"""
        s_sub_u32 s{sK}, s{sX8}, 3
        s_lshl_b32 s{sK}, s{sK}, 1
        s_and_b32 s{s0}, s{sAi}, 1
        s_add_u32 s{sK}, s{sK}, s{s0}
        s_lshl_b32 s{sB}, s{sK}, 7
        """)
        self.mk_srd(rB, pB2, None, 1280)
        e(f"""
        s_cmp_eq_u32 s{sW}, 0
        s_cselect_b32 s{s1}, 32, 0
        v_cmp_gt_u32 vcc, s{s1}, v0
        v_cndmask_b32 v6, v9, v6, vcc
        v_cmp_gt_u32 vcc, 8, v1
        v_cndmask_b32 v6, v9, v6, vcc
        buffer_load_dwordx2 v[16:17], v6, {srd(rC)}, s{sB} offen
        buffer_load_dwordx2 v[18:19], v6, {srd(rB)}, s{sB} offen
        s_mul_i32 s{s0}, s{sW}, 27
        v_add_u32 v15, s{s0}, v12
        """)
        for i in range(4):
            e(f'v_bfe_u32 v10, v15, 2, 3\nv_cmp_eq_u32 vcc, s{sX8}, v10\nv_cndmask_b32 v{48+i}, v14, v13, vcc')
            if i < 3: e('v_add_u32 v15, 8, v15')
            if i > 0: e(f'v_add_u32 v{48+i}, {16384*i}, v{48+i}')
        e(f"""
        v_cmp_gt_u32 vcc, 3, v12
        v_cndmask_b32 v51, v9, v51, vcc
        s_add_u32 s79, s{sB}, {H3B}
        s_lshl_b32 s{s0}, s{s0}, 11
        s_add_u32 s78, s{sB}, s{s0}
        s_add_u32 s78, s78, {SL+S_H4}
        v_lshlrev_b32 v52, 5, v1
        v_lshl_add_u32 v52, v2, 4, v52
        s_lshl_b32 s{s1}, s{sW}, 8
        s_add_u32 s{s1}, s{s1}, {RED}
        v_add_u32 v52, s{s1}, v52
        v_mov_b32 v13, {DUM}
        v_cmp_gt_u32 vcc, 32, v0
        v_cndmask_b32 v52, v13, v52, vcc
        v_cmp_gt_u32 vcc, 8, v1
        v_cndmask_b32 v52, v13, v52, vcc
        v_cmp_gt_u32 vcc, 16, v0
        v_lshlrev_b32 v12, 3, v0
        v_cndmask_b32 v53, v9, v12, vcc
        v_lshlrev_b32 v54, 4, v1
        v_cmp_eq_u32 vcc, 0, v0
        v_cndmask_b32 v55, v9, v0, vcc
        L_A_FDONE:
        """)
        vMk = 36
        self.ident_masks(vMk, 0xffff, 0xffff0000, 0, 4, 12)
        e(f"""
        v_and_b32 v13, 7, v1
        v_lshl_add_u32 v12, v2, 3, v13
        s_lshl_b32 s{s0}, s{sW}, 5
        v_add_u32 v12, s{s0}, v12
        v_lshlrev_b32 v20, 11, v12
        v_lshrrev_b32 v13, 4, v12
        v_cmp_eq_u32 vcc, s{sX8}, v13
        v_or_b32 v12, s{sLOC}, v20
        v_cndmask_b32 v20, v20, v12, vcc
        v_and_b32 v20, s{sLM}, v20
        v_cmp_gt_u32 vcc, 8, v1
        v_cndmask_b32 v20, v9, v20, vcc
        s_mov_b32 s70, 0x00ff00ff
        s_mov_b32 s71, 0x00ff00ff
        s_lshl_b32 s68, s{sJ}, 9
        s_lshl_b32 s{s0}, s{sHd}, 4
        s_add_u32 s68, s68, s{s0}
        s_add_u32 s68, s68, {REC}
        s_mov_b32 s{s0}, {8*PAD}
        v_mul_lo_u32 v22, s{s0}, v2
        s_mov_b32 s{s0}, {PAD}
        v_mul_lo_u32 v12, s{s0}, v1
        v_add_u32 v12, v12, v22
        v_cmp_gt_u32 vcc, 8, v1
        v_cndmask_b32 v26, v9, v12, vcc
        v_mov_b32 v12, s{sT0}
        v_cndmask_b32 v25, 0, v12, vcc
        v_lshl_add_u32 v22, v1, 4, v22
        s_mul_i32 s69, s{sW}, {32*PAD}
        s_add_u32 s69, s69, {PART}
        s_lshl_b32 s{s0}, s{sJ}, 8
        s_and_b32 s{s1}, s{sHd}, 16
        s_add_u32 s{s1}, s{s1}, s{sHd}
        s_lshl_b32 s{s1}, s{s1}, 2
        s_add_u32 s{s0}, s{s0}, s{s1}
        s_add_u32 s67, s69, s{s0}
        s_add_u32 s67, s67, 32768
        s_lshl_b32 s{s0}, s{sJ}, 13
        s_add_u32 s69, s69, s{s0}
        s_lshr_b32 s{s0}, s{sHd}, 4
        s_lshl_b32 s{s0}, s{s0}, 12
        s_add_u32 s69, s69, s{s0}
        s_and_b32 s{s0}, s{sHd}, 3
        s_lshl_b32 s{s0}, s{s0}, 10
        s_add_u32 s69, s69, s{s0}
        s_bfe_u32 s{s0}, s{sHd}, 0x20002
        s_lshl_b32 s{s0}, s{s0}, 8
        s_add_u32 s69, s69, s{s0}
        v_lshlrev_b32 v12, 4, v1
        v_lshl_add_u32 v12, v2, 3, v12
        s_mul_i32 s{s0}, s{sW}, 320
        s_add_u32 s{s0}, s{s0}, {CL}
        v_add_u32 v12, s{s0}, v12
        v_mov_b32 v13, {DUM}
        v_cmp_gt_u32 vcc, 32, v0
        v_cndmask_b32 v23, v13, v12, vcc
        v_and_b32 v12, 3, v1
        v_mul_u32_u24 v12, 320, v12
        v_add_u32 v12, v12, v11
        v_add_u32 v24, {CL}, v12
        s_lshl_b32 s{s0}, s{sW}, 2
        s_add_u32 s{s0}, s{s0}, {ML}
        v_mov_b32 v12, s{s0}
        v_cmp_gt_u32 vcc, 8, v1
        v_cndmask_b32 v21, v13, v12, vcc
        v_mov_b32 v27, {ML}
        v_add_u32 v56, {WUV}, v60
        v_add_u32 v57, {WUV}, v61
        """)
        e(f's_lshl_b32 s{s0}, s{sJ}, 18\ns_lshl_b32 s{s1}, s{sHd}, 8\ns_add_u32 s{s0}, s{s0}, s{s1}')
        self.mk_srd(rA, pWUV, s0, 4194304)
        e(f"""
        s_and_b32 s{s0}, s{sW}, 1
        s_lshl_b32 s{s0}, s{s0}, 8
        s_lshr_b32 s{s1}, s{sW}, 1
        s_add_u32 s{s0}, s{s0}, s{s1}
        s_lshl_b32 s{s0}, s{s0}, 13
        s_lshl_b32 s{s1}, s{sW}, 10
        """)
        npace = self.o.get('a2_pace', 0)
        gate = self.o.get('gate', 0)
        ntr = self.o.get('trickle', 0)
        def gwait():
            e(f's_lshl_b32 s75, s{sSL}, 7\ns_add_u32 s75, s75, {GATE}\nv_mov_b32 v12, 0\ns_mov_b32 s77, 40')
            e(f'L_A_G:\nbuffer_load_dword v13, v12, {srd(rWS)}, s75 offen sc1\ns_waitcnt vmcnt(0)\nv_readfirstlane_b32 s76, v13\ns_cmp_eq_u32 s76, s{sT1}\ns_cbranch_scc1 L_A_GOK\ns_sub_u32 s77, s77, 1\ns_cbranch_scc0 L_A_G\nL_A_GOK:')
            self.stamp('A.gate')
        for k in range(8):
            if k < npace: e('s_waitcnt vmcnt(0)')
            if gate and k == ntr: gwait()
            e(f's_add_u32 m0, s{s1}, {WUV+k*4096}')
            e(f'buffer_load_dwordx4 v62, {srd(rA)}, s{s0} offen nt lds')
            if k < 7: e(f's_add_u32 s{s0}, s{s0}, 16384')
        e(f's_cmp_ge_u32 s{sG}, 27\ns_cbranch_scc1 L_A_NOW2')
        for k in range(5):
            e(f's_add_u32 m0, s{s1}, {W2+k*4096}\ns_add_u32 s{s0}, s{s1}, {k*4096}')
            e(f'buffer_load_dwordx4 v3, {srd(rB)}, s{s0} offen nt lds')
        e('L_A_NOW2:')
        nwo = self.o.get('wo_help', 0)
        if nwo:
            e(f's_mul_i32 s{s0}, s{sSL}, 40960')
            self.mk_srd(rA, pWO, s0, 5242880)
            e(f's_lshl_b32 s{s2_}, s{sW}, 12\ns_add_u32 m0, s{s2_}, {HELP}')
            for k in range(nwo):
                e(f's_add_u32 s{s0}, s{s1}, {k*4096}')
                e(f'buffer_load_dwordx4 v3, {srd(rA)}, s{s0} offen lds')
        if n1 < 5:
            e(f's_cmp_ge_u32 s{sG}, 27\ns_cbranch_scc1 L_A_NOW1\ns_lshl_b32 s{s0}, s{sF}, 5')
            self.mk_srd(rA, pW1, s0, 2211840)
            for k in range(n1, 5): w1dma(k, rA)
            e('L_A_NOW1:')
        if self.o.get('vw', 0):
            e(f'v_mov_b32 v12, 0\ns_and_b32 s{sTMP}, s69, 0xffe00000\nbuffer_load_dword v13, v12, {srd(rWS)}, s{sTMP} offen')
        e('s_waitcnt vmcnt(0)\ns_barrier')
        self.stamp('A.land')
        for s in range(4):
            for T in range(2):
                for q in range(2): e(f'ds_read_b64_tr_b16 {a((s*2+T)*4+2*q,2)}, v{56+T} offset:{s*8192+q*1024}')
        e(f'buffer_load_dwordx4 v[64:67], v20, {srd(rWS)}, s68 offen sc1')
        vC0, vC1, vB1, vS1 = 192, 196, 200, 204
        for dst,src in [(vC0,16),(vC1,18)]:
            e(f'v_lshlrev_b32 v{dst}, 16, v{src}\nv_and_b32 v{dst+1}, 0xffff0000, v{src}\nv_lshlrev_b32 v{dst+2}, 16, v{src+1}\nv_and_b32 v{dst+3}, 0xffff0000, v{src+1}')
        e('s_waitcnt lgkmcnt(0)')
        self.stamp('A.w2rdy')
        e('L_A_REC:')
        e('s_waitcnt vmcnt(0)')
        self.tagcheck(12, [66])
        e('s_and_b64 vcc, vcc, s[70:71]\ns_cbranch_vccz L_A_RECOK')
        self.fb((20,), ())
        e(f'buffer_load_dwordx4 v[64:67], v20, {srd(rWS)}, s68 offen sc1\ns_branch L_A_REC\nL_A_RECOK:')
        vD = 128; vAF = 160
        if self.stamps and 'A.rec1' in self.o.get('want', []):
            k = len(self.slots['A']); e(f's_waitcnt lgkmcnt(0)\ns_cmp_lg_u32 s{sSTAMP+2*k}, 0\ns_cbranch_scc1 L_R1'); self.stamp('A.rec1'); e('L_R1:')
        dd = self.o.get('ddelay', [0,0])
        if dd[0]: e(f's_sleep {dd[0]}')
        if dd[1]: e(f's_cmp_lt_u32 s{sX8}, 4\ns_cbranch_scc1 L_A_NOD\ns_sleep {dd[1]}\nL_A_NOD:')
        def dloads():
            e(f's_mov_b32 s{sTMP}, s69')
            for i in range(8):
                e(f'buffer_load_dwordx4 {v(vD+4*i,4)}, v22, {srd(rWS)}, s{sTMP} offen sc1')
                if i < 7: e(f's_add_u32 s{sTMP}, s{sTMP}, {PAD}')
            e(f'buffer_load_dword v67, v26, {srd(rWS)}, s67 offen sc1')
        dloads()
        self.stamp('A.rec')
        e('v_mov_b32 v72, v64')
        self.allred('v_max_f32', 72, 74, 3)
        e('v_sub_f32 v64, v64, v72\nv_exp_f32 v64, v64\nv_cvt_pk_bf16_f32 v64, v64, v64\nv_and_b32 v73, 0xffff0000, v64\nv_mul_f32 v73, v73, v65')
        for i in range(8):
            for r in range(4): e(f'v_and_b32_dpp v{vAF+4*i+r}, v64, v{vMk+r} row_newbcast:{i} {DPP}')
        self.allred('v_add_f32', 73, 74, 3)
        e('ds_write2_b32 v21, v72, v73 offset0:0 offset1:4')
        e('L_A_DATA:')
        e('v_sub_u32 v66, 0, v25')
        for i in range(8):
            e(f's_waitcnt vmcnt({8-i})')
            e(f'v_mfma_f32_16x16x32_bf16 v[76:79], {v(vAF+4*i,4)}, {v(vD+4*i,4)}, ' + ('0' if i==0 else 'v[76:79]'))
            e(f'v_add3_u32 v66, v66, v{vD+4*i}, v{vD+4*i+1}\nv_add3_u32 v66, v66, v{vD+4*i+2}, v{vD+4*i+3}')
        e('s_waitcnt vmcnt(0)\nv_add_u32 v66, v66, v67')
        self.stamp('A.data')
        e(f'v_add_u32_dpp v66, v66, v66 quad_perm:[1,0,3,2] {DPP}')
        e(f'v_cvt_pk_bf16_f32 v74, v76, v77\nv_cvt_pk_bf16_f32 v75, v78, v79\nv_add_u32_dpp v66, v66, v66 quad_perm:[2,3,0,1] {DPP}\nds_write_b64 v23, v[74:75]')
        e(f'v_add_u32_dpp v66, v66, v66 row_half_mirror {DPP}\nv_add_u32_dpp v66, v66, v66 row_mirror {DPP}\nv_cmp_ne_u32 vcc, 0, v66\ns_cbranch_vccz L_A_DOK')
        self.timeout()
        if self.stamps: e('s_add_u32 s7, s7, 1')
        dloads()
        e('s_branch L_A_DATA\nL_A_DOK:')
        e('s_waitcnt lgkmcnt(0)\ns_barrier')
        self.stamp('A.clbar')
        e(f'ds_read_b128 v[80:83], v24\nds_read_b128 v[64:67], v27\nds_read_b128 v[84:87], v24 offset:64\nds_read_b128 v[68:71], v27 offset:16\nds_read_b128 v[88:91], v24 offset:128\nds_read_b128 v[92:95], v24 offset:192')
        fac = [[], ['s_waitcnt lgkmcnt(4)', 'v_max3_f32 v72, v64, v65, v66', 'v_max_f32 v72, v72, v67'], ['v_sub_f32 v64, v64, v72', 'v_sub_f32 v65, v65, v72'], ['v_sub_f32 v66, v66, v72', 'v_sub_f32 v67, v67, v72'],
               ['v_exp_f32 v64, v64'], ['v_exp_f32 v65, v65'], ['v_exp_f32 v66, v66'],
               ['v_exp_f32 v67, v67', 'v_mul_f32 v72, v64, v68', 'v_fmac_f32 v72, v65, v69', 'v_fmac_f32 v72, v66, v70', 'v_fmac_f32 v72, v67, v71', 'v_rcp_f32 v72, v72']]
        for s in range(4):
            e(f's_waitcnt lgkmcnt({[5,3,1,0][s]})')
            for T in range(2):
                e(f'v_mfma_f32_16x16x32_bf16 {v(104+4*T,4)}, {v(80+4*s,4)}, {a((s*2+T)*4,4)}, ' + ('0' if s==0 else v(104+4*T,4)))
                for x in fac[2*s+T]: e(x)
        e('v_pk_mul_f32 v[104:105], v[104:105], v[64:65]\nv_pk_mul_f32 v[108:109], v[108:109], v[64:65]')
        e('v_pk_fma_f32 v[104:105], v[106:107], v[66:67], v[104:105]\nv_pk_fma_f32 v[108:109], v[110:111], v[66:67], v[108:109]')
        e('v_add_f32 v104, v104, v105\nv_add_f32 v108, v108, v109\nv_mul_f32 v104, v104, v72\nv_mul_f32 v108, v108, v72')
        e('v_cvt_pk_bf16_f32 v98, v104, v108')
        self.publ('v[98:99]', 102); self.pubg('v[98:99]', 102)
        self.stamp('A.hc')
        e(f's_cmp_ge_u32 s{sG}, 27\ns_cbranch_scc1 L_FIN')
        for s in range(6):
            for q in range(2): e(f'ds_read_b64_tr_b16 {a(32+s*4+2*q,2)}, v52 offset:{s*1024+q*512}')
        for P in range(5):
            for hb in range(2): e(f'ds_read_b64_tr_b16 {a(56+P*4+2*hb,2)}, v53 offset:{P*64+hb*8}')
        e(f'v_lshlrev_b32 v{vB1}, 16, v58\nv_and_b32 v{vB1+1}, 0xffff0000, v58\nv_lshlrev_b32 v{vB1+2}, 16, v59\nv_and_b32 v{vB1+3}, 0xffff0000, v59')
        e(f's_cmp_lt_u32 s{sW}, 2\ns_cselect_b32 s{s0}, 0x3f803f80, 0')
        for r in range(4): e(f'v_mov_b32 v{208+r}, 0x3f803f80\nv_mov_b32 v{212+r}, s{s0}')
        e('s_waitcnt lgkmcnt(10)')
        for s in range(6):
            e(f'v_mfma_f32_16x16x32_bf16 {v(vS1,4)}, {a(32+s*4,4)}, {v(208 if s < 4 else 212,4)}, ' + ('0' if s == 0 else v(vS1,4)))
        e(f'ds_write_b128 v45, {v(vS1,4)}\ns_waitcnt lgkmcnt(0)\ns_barrier')
        for w in range(4): e(f'ds_read_b128 {v(208+4*w,4)}, v55 offset:{64*w}')
        e('s_waitcnt lgkmcnt(0)')
        for i in range(2): e(f'v_pk_add_f32 {v(208+2*i,2)}, {v(208+2*i,2)}, {v(212+2*i,2)}\nv_pk_add_f32 {v(216+2*i,2)}, {v(216+2*i,2)}, {v(220+2*i,2)}')
        for i in range(2): e(f'v_pk_add_f32 {v(vS1+2*i,2)}, {v(208+2*i,2)}, {v(216+2*i,2)}')
        e('s_barrier')
        self.stamp('F.prep')
        for P in range(5):
            e(f's_mov_b32 s{68+2*P}, {0x00010001<<P}\ns_mov_b32 s{69+2*P}, {0x00010001<<P}')
        self.lmask((46,47))
        if self.o.get('fdelay'): e(f's_sleep {self.o["fdelay"]}')
        vH = 64
        e('L_F_POLL:')
        e(f'buffer_load_dwordx4 {v(vH,4)}, v46, {srd(rWS)}, s79 offen sc1')
        e(f'buffer_load_dwordx4 {v(vH+4,4)}, v46, {srd(rWS)}, s79 offen offset:128 sc1')
        e(f'buffer_load_dwordx4 {v(vH+8,4)}, v47, {srd(rWS)}, s79 offen offset:256 sc1')
        e('s_waitcnt vmcnt(0)')
        e(f'v_mfma_f32_16x16x32_bf16 v[76:79], {v(vI,4)}, {v(vH,4)}, {v(vC0,4)}')
        e(f'v_mfma_f32_16x16x32_bf16 v[76:79], {v(vI+4,4)}, {v(vH+4,4)}, v[76:79]')
        e(f'v_mfma_f32_16x16x32_bf16 v[80:83], {v(vI,4)}, {v(vH+8,4)}, {v(vC1,4)}')
        self.maxchain(12, range(vH, vH+12))
        e('v_cmp_eq_u32 vcc, -1, v12')
        self.retry('L_F_POLL', vregs=(46,47), sleep=self.o.get('fsleep',0))
        self.stamp('F.h3b')
        vB = 128
        for r in range(4): e(f'v_add_f32_dpp v{76+r}, v{76+r}, v{76+r} row_ror:8 {DPP}')
        e('v_cvt_pk_bf16_f32 v84, v76, v77\nv_cvt_pk_bf16_f32 v85, v78, v79\nds_write_b64 v48, v[84:85]')
        for s in range(4): e(f'ds_read_b128 {v(vB+4*s,4)}, v50 offset:{s*64}')
        for r in range(4): e(f'v_add_f32_dpp v{80+r}, v{80+r}, v{80+r} row_ror:8 {DPP}')
        e('v_cvt_pk_bf16_f32 v86, v80, v81\nv_cvt_pk_bf16_f32 v87, v82, v83\nds_write_b64 v49, v[86:87]')
        for s in range(4,6): e(f'ds_read_b128 {v(vB+4*s,4)}, v50 offset:{s*64}')
        e('v_pk_add_f32 v[88:89], v[76:77], v[78:79]\nv_pk_mul_f32 v[92:93], v[76:77], v[76:77]\nv_pk_add_f32 v[90:91], v[80:81], v[82:83]\nv_pk_fma_f32 v[92:93], v[78:79], v[78:79], v[92:93]')
        e('v_pk_add_f32 v[88:89], v[88:89], v[90:91]\nv_pk_fma_f32 v[92:93], v[80:81], v[80:81], v[92:93]\nv_pk_fma_f32 v[92:93], v[82:83], v[82:83], v[92:93]')
        st = [['v_add_f32 v88, v88, v89', 'v_add_f32 v92, v92, v93'], ['s_nop 0', 'v_permlane32_swap_b32 v88, v92', 'v_add_f32 v88, v88, v92'], ['v_mov_b32 v92, v88'],
              ['s_nop 0', 'v_permlane16_swap_b32 v88, v92', 'v_add_f32 v88, v88, v92'], ['s_nop 0', f'v_add_f32_dpp v88, v88, v88 quad_perm:[1,0,3,2] {DPP}'],
              [f'v_add_f32_dpp v88, v88, v88 quad_perm:[2,3,0,1] {DPP}', f'v_add_f32_dpp v88, v88, v88 row_half_mirror {DPP}', 'v_mul_f32 v88, 0x3acccccd, v88', 'ds_write_b32 v54, v88']]
        for s in range(6):
            e(f's_waitcnt lgkmcnt({[6,5,4,3,1,0][s]})')
            e(f'v_mfma_f32_16x16x32_bf16 v[96:99], {a(32+s*4,4)}, {v(vB+4*s,4)}, ' + ('0' if s == 0 else 'v[96:99]'))
            for x in st[s]: e(x)
        e('ds_write_b128 v45, v[96:99]\ns_waitcnt lgkmcnt(0)\ns_barrier')
        self.stamp('F.abar')
        e('ds_read_b128 v[100:103], v44\nds_read_b128 v[104:107], v44 offset:16')
        for w in range(4): e(f'ds_read_b128 {v(128+4*w,4)}, v55 offset:{64*w}')
        e(f"""
        s_waitcnt lgkmcnt(4)
        v_pk_add_f32 v[100:101], v[100:101], v[102:103]
        v_pk_add_f32 v[104:105], v[104:105], v[106:107]
        v_add_f32 v100, v100, v101
        v_add_f32 v104, v104, v105
        v_fma_f32 v104, -v100, v100, v104
        v_max_f32 v104, 0, v104
        v_add_f32 v104, 0x3727c5ac, v104
        v_rsq_f32 v104, v104
        s_waitcnt lgkmcnt(0)
        v_pk_fma_f32 v[128:129], {v(vS1,2)}, v[100:101], v[128:129] op_sel_hi:[1,0,1] neg_lo:[0,1,0] neg_hi:[0,1,0]
        v_pk_fma_f32 v[130:131], {v(vS1+2,2)}, v[100:101], v[130:131] op_sel_hi:[1,0,1] neg_lo:[0,1,0] neg_hi:[0,1,0]
        v_pk_add_f32 v[136:137], v[136:137], v[140:141]
        v_pk_add_f32 v[138:139], v[138:139], v[142:143]
        v_pk_add_f32 v[128:129], v[128:129], v[132:133]
        v_pk_add_f32 v[130:131], v[130:131], v[134:135]
        v_pk_add_f32 v[128:129], v[128:129], v[136:137]
        v_pk_add_f32 v[130:131], v[130:131], v[138:139]
        v_pk_fma_f32 v[128:129], v[128:129], v[104:105], {v(vB1,2)} op_sel_hi:[1,0,1]
        v_pk_fma_f32 v[130:131], v[130:131], v[104:105], {v(vB1+2,2)} op_sel_hi:[1,0,1]
        """)
        for r in range(4): e(f'v_max_f32 v{128+r}, 0, v{128+r}')
        e('v_pk_mul_f32 v[128:129], v[128:129], v[128:129]\nv_pk_mul_f32 v[130:131], v[130:131], v[130:131]')
        e('v_cvt_pk_bf16_f32 v108, v128, v129\nv_cvt_pk_bf16_f32 v109, v130, v131')
        self.stamp('F.f1')
        def cm(P): e(f'v_cndmask_b32 v{110+2*P}, 0, v108, s[{68+2*P}:{69+2*P}]\nv_cndmask_b32 v{111+2*P}, 0, v109, s[{68+2*P}:{69+2*P}]')
        cm(0); cm(1)
        for P in range(5):
            for hb in range(2):
                e(f'v_mfma_f32_16x16x16_bf16 {v(120+4*hb,4)}, {a(56+P*4+2*hb,2)}, {v(110+2*P,2)}, ' + ('0' if P == 0 else v(120+4*hb,4)))
                if hb == 0 and P+2 < 5: cm(P+2)
        for i in range(4): e(f'v_cvt_pk_bf16_f32 v{64+i}, v{120+2*i}, v{121+2*i}')
        for i in range(4): e(f'v_min_u32 v{64+i}, -2, v{64+i}')
        self.pub('v[64:67]', 51)
        self.stamp('F.end')
        e('s_branch L_END')
        e('L_FIN:')
        e(f's_and_b32 s{s0}, s{sAi}, 2\ns_cbranch_scc1 L_END')
        self.mk_srd(rA, pOUT, None, 1280)
        if self.o.get('vw', 0): e(f'buffer_load_dword v13, v53, {srd(rA)}, s{sB} offen')
        e(f's_cmp_eq_u32 s{sW}, 0\ns_cselect_b32 s{s1}, -1, 0')
        for r in range(4): e(f'v_and_b32 v{32+r}, s{s1}, v{vI+r}')
        e(f'v_pk_add_f32 {v(vC0,2)}, {v(vC0,2)}, {v(vC1,2)}\nv_pk_add_f32 {v(vC0+2,2)}, {v(vC0+2,2)}, {v(vC1+2,2)}\nv_mov_b32 v45, s{sT0}')
        self.lmask((46,))
        e('L_R_P1:')
        e(f'buffer_load_dwordx4 v[64:67], v46, {srd(rWS)}, s79 offen sc1\ns_waitcnt vmcnt(0)')
        self.maxchain(12, range(64,68))
        e('v_cmp_eq_u32 vcc, -1, v12')
        self.retry('L_R_P1', sleep=1, vregs=(46,))
        self.stamp('R.h3b')
        self.lmask((48,49,50,51))
        e(f'v_mfma_f32_16x16x32_bf16 {v(vC0,4)}, v[32:35], v[64:67], {v(vC0,4)}')
        if self.o.get('rdelay'): e(f's_sleep {self.o["rdelay"]}')
        e('L_R_P2:')
        for i in range(4): e(f'buffer_load_dwordx4 {v(68+4*i,4)}, v{48+i}, {srd(rWS)}, s78 offen sc1')
        e('s_waitcnt vmcnt(0)')
        for i in range(4): e(f'v_mfma_f32_16x16x32_bf16 v[104:107], {v(vI,4)}, {v(68+4*i,4)}, ' + (v(vC0,4) if i == 0 else 'v[104:107]'))
        self.maxchain(12, range(68,84))
        e('v_cmp_eq_u32 vcc, -1, v12')
        self.retry('L_R_P2', vregs=(48,49,50,51), sleep=0)
        self.stamp('R.h4')
        for r in range(4): e(f'v_add_f32_dpp v{104+r}, v{104+r}, v{104+r} row_ror:8 {DPP}')
        e(f'ds_write_b128 v52, v[104:107]\ns_waitcnt lgkmcnt(0)\ns_barrier')
        e(f's_cmp_lg_u32 s{sW}, 0\ns_cbranch_scc1 L_END')
        self.red_final(RED, 128, 54, False)
        e(f'buffer_store_dwordx2 v[128:129], v53, {srd(rA)}, s{sB} offen')
        e(f's_cmp_lg_u32 s{sK}, 0\ns_cbranch_scc1 L_END2')
        e(f'buffer_store_dword v45, v55, {srd(rWS)}, 0 offen offset:{EPOCH} sc1')
        if 'amp' in self.o:
            self.stamp('R.end')
            k = self.idx[self.o['amp']]; ke = self.idx['R.end']
            e(f's_waitcnt lgkmcnt(0)\ns_sub_u32 s60, s{sSTAMP+2*k}, s{sSTAMP}\ns_lshl_b32 s60, s60, 2\ns_add_u32 s60, s60, s{sSTAMP+2*ke}')
            e('L_AMP:\ns_memrealtime s[62:63]\ns_waitcnt lgkmcnt(0)\ns_sub_u32 s61, s62, s60\ns_cmp_lt_i32 s61, 0\ns_cbranch_scc1 L_AMP')
        e('L_END2:')
        if 'amp' not in self.o: self.stamp('R.end')
        e('s_branch L_END')

    def role_T(self):
        e = self.e
        MX = QB; LX = QB+512; PB = QB+1024
        WO = 0; HB = 65536; EX = 15360
        sT, s0, s1, s2_ = 72, 63, 64, 65
        e('L_T:')
        if self.o.get('noT'): e('s_branch L_END')
        e(f"""
        s_lshl_b32 s{sT}, s{sX8}, 4
        s_add_u32 s{sT}, s{sT}, s{sR}
        """)
        e(f"""
        s_lshl_b32 s{s0}, s{sT}, 9
        s_add_u32 s{s0}, s{s0}, {QP+LOC}
        s_lshl_b32 s{s1}, s{sT}, 11
        s_add_u32 s{s1}, s{s1}, {SL+LOC}
        s_cmp_eq_u32 s{sW}, 2
        s_cselect_b32 s{s0}, s{s1}, s{s0}
        s_lshl_b32 s{s1}, s{sX8}, 9
        s_add_u32 s{s1}, s{s1}, {QCS+LOC}
        s_cmp_eq_u32 s{sW}, 3
        s_cselect_b32 s{s0}, s{s1}, s{s0}
        s_cmp_eq_u32 s{sW}, 0
        s_cselect_b32 s66, {WSSZ}, s{s0}
        v_lshlrev_b32 v12, 7, v0
        v_cmp_gt_u32 vcc, 4, v0
        v_cndmask_b32 v12, v9, v12, vcc
        """)
        if self.o.get('pf', 0) == 1: self.code_prefetch()
        if self.o.get('tw', 0): self.tlb_warm()
        if self.o.get('pf', 0) == 2:
            e(f's_cmp_eq_u32 s{sW}, 0\ns_cbranch_scc1 L_NOPF')
            e(f's_getpc_b64 s[20:21]\nL_PC:\ns_sub_u32 s20, s20, L_PC-{KN}\ns_subb_u32 s21, s21, 0')
            e(f's_mul_i32 s60, s{sR}, 3\ns_add_u32 s60, s60, s{sW}\ns_sub_u32 s60, s60, 1\ns_lshl_b32 s60, s60, 7')
            for i in range(3):
                e(f's_min_u32 s67, s60, L_EXIT-{KN}\ns_load_dword s7, s[20:21], s67')
                if i < 2: e(f's_add_u32 s60, s60, {48*128}')
            e('L_NOPF:')
        nwq = self.o.get('t_wq', 5)
        e(f's_add_u32 s61, s61, {(10-nwq)*4*32768}\ns_lshl_b32 s62, s{sW}, 13\ns_add_u32 s62, s62, {QB}\ns_mov_b32 m0, s62')
        for k in range(nwq):
            e(f'buffer_load_dwordx4 v8, {srd(rA)}, s61 offen nt lds')
            if k < nwq-1: e(f's_add_u32 s61, s61, {4*32768}')
        e(f'buffer_load_dword v255, v12, {srd(rWS)}, s66 offen')
        nuk = self.o.get('t_wuk', 0)
        if nuk:
            self.wuk_setup(sR, rA)
            e(f's_mov_b32 s68, {(8-nuk)*32768}')
            for k in range(8-nuk, 8): self.wuk_dma(k, rA, QB)
        tsh, wsh, istr = self.kmap()
        self.kbase(s0, sT, tsh)
        self.mk_srd(rB, pCKV, s0, 16777216)
        e(f'v_lshl_add_u32 v52, v2, 10, v5\nv_xor_b32 v53, 0x80, v52\ns_lshl_b32 s68, s{sW}, {wsh}\ns_lshl_b32 s69, s{sW}, 13')
        def dma(n):
            c, i = n >> 3, n & 7
            e(f's_add_u32 m0, s69, {c*32768+i*1024}\ns_add_u32 s{sTMP}, s68, {i*istr+c*256}')
            e(f'buffer_load_dwordx4 v{52+(i&1)}, {srd(rB)}, s{sTMP} offen nt lds')
        n0 = 0
        thr = dict(self.o.get('t_throttle', []))
        vm = []
        vKa, vQa, vVa = 24, 28, 32
        vPS, vRS, vMW, vMR, vPW, vPR, vQC, vLR = 40, 41, 42, 43, 44, 45, 46, 47
        vQS = 120
        pre = []
        pre.append(f'v_and_b32 v12, 7, v1\nv_lshlrev_b32 v12, 5, v12\nv_lshlrev_b32 v13, 10, v1\nv_lshlrev_b32 v14, 8, v1\nv_add_u32 v14, s69, v14\nv_add_u32 v13, {QB}, v13')
        for s3 in range(4):
            pre.append(f'v_add_u32 v15, {s3*64}, v11\nv_xor_b32 v15, v15, v12\nv_add_u32 v{vKa+s3}, v14, v15\nv_add_u32 v{vQa+s3}, v13, v15')
        pre.append(f"""
        v_lshrrev_b32 v13, 2, v0
        v_and_b32 v15, 7, v13
        v_lshlrev_b32 v13, 8, v13
        v_and_b32 v12, 3, v1
        v_lshl_add_u32 v13, v12, 3, v13
        s_lshl_b32 s{s2_}, s{sW}, 1
        v_xor_b32 v15, s{s2_}, v15
        v_lshl_add_u32 v{vVa}, v15, 5, v13
        v_xor_b32 v15, 1, v15
        v_lshl_add_u32 v{vVa+1}, v15, 5, v13
        v_add_u32 v{vVa+2}, 0x10000, v{vVa}
        v_add_u32 v{vVa+3}, 0x10000, v{vVa+1}
        v_lshlrev_b32 v12, 13, v2
        v_lshl_add_u32 v12, v1, 4, v12
        """)
        for i in range(8): pre.append(f'v_xor_b32 v{vQS+i}, {(i<<5) + (i&3)*2048}, v12')
        pre.append(f"""
        s_lshl_b32 s{s0}, s{sW}, 10
        s_add_u32 s{s0}, s{s0}, {QCS}
        v_add_u32 v12, s{s0}, v3
        v_lshrrev_b32 v13, 5, v0
        s_lshl_b32 s{s0}, s{sW}, 1
        v_add_u32 v13, s{s0}, v13
        v_cmp_eq_u32 vcc, s{sX8}, v13
        v_or_b32 v13, s{sLOC}, v12
        v_cndmask_b32 v{vQC}, v12, v13, vcc
        v_add_u32 v15, {EX}, v3
        s_lshl_b32 s{s0}, s{sW}, 2
        v_add_u32 v14, s{s0}, v15
        v_mov_b32 v10, v14
        v_mov_b32 v8, v15
        v_lshrrev_b32 v12, 5, v0
        v_and_b32 v13, 1, v0
        v_lshlrev_b32 v13, 1, v13
        v_lshl_add_u32 v12, v12, 2, v13
        v_bfe_u32 v13, v0, 1, 4
        v_and_b32 v14, 7, v13
        v_lshlrev_b32 v14, 3, v14
        v_lshl_add_u32 v13, v13, 6, v14
        v_lshlrev_b32 v14, 5, v12
        v_xor_b32 v13, v13, v14
        v_lshl_add_u32 v13, v12, 10, v13
        v_add_u32 v6, s62, v13
        v_xor_b32 v7, 32, v6
        s_lshl_b32 s76, s{sW}, 16
        s_add_u32 s76, s76, {SL+S_QL}
        s_add_u32 s77, s76, 32768
        s_lshl_b32 s{s0}, s{sW}, 1
        s_cmp_eq_u32 s{s0}, s{sX8}
        s_cselect_b32 s{s1}, {LOC}, 0
        s_add_u32 s76, s76, s{s1}
        s_add_u32 s{s0}, s{s0}, 1
        s_cmp_eq_u32 s{s0}, s{sX8}
        s_cselect_b32 s{s1}, {LOC}, 0
        s_add_u32 s77, s77, s{s1}
        s_mul_i32 s70, s{sT}, {PAD}
        s_add_u32 s70, s70, {PART}
        s_add_u32 s{s2_}, s70, s69
        v_add_u32 v{vPS}, s{s2_}, v3
        s_lshl_b32 s{s0}, s{sW}, 8
        s_add_u32 s70, s70, s{s0}
        s_add_u32 s70, s70, 32768
        s_movk_i32 s66, 0x1000
        s_lshl_b32 s{s2_}, s{sT}, 11
        s_lshl_b32 s{s0}, s{sW}, 9
        s_add_u32 s{s2_}, s{s2_}, s{s0}
        s_add_u32 s{s2_}, s{s2_}, {REC}
        v_and_b32 v13, 1, v1
        v_lshrrev_b32 v12, 2, v0
        v_lshl_add_u32 v12, v13, 4, v12
        v_lshlrev_b32 v12, 4, v12
        v_add_u32 v{vLR}, {MX}, v12
        v_add_u32 v12, s{s2_}, v12
        v_and_b32 v13, 2, v1
        v_cmp_eq_u32 vcc, 0, v13
        v_cndmask_b32 v{vRS}, v9, v12, vcc
        v_and_b32 v13, 3, v1
        v_cmp_eq_u32 vcc, 0, v13
        v_cndmask_b32 v5, v9, v0, vcc
        v_lshrrev_b32 v12, 1, v2
        v_lshl_add_u32 v12, v12, 4, v1
        v_lshlrev_b32 v12, 4, v12
        s_lshl_b32 s{s2_}, s{sW}, 2
        s_add_u32 s{s2_}, s{s2_}, {MX}
        v_add_u32 v{vMW}, s{s2_}, v12
        v_lshlrev_b32 v12, 4, v1
        v_add_u32 v{vMR}, {MX}, v12
        v_add_u32 v22, s{s2_}, v12
        v_mov_b32 v38, 0x3e0293ee
        s_lshl_b32 s{s2_}, s{sW}, 11
        s_add_u32 s{s2_}, s{s2_}, {PB}
        v_add_u32 v{vPW}, s{s2_}, v3
        v_add_u32 v{vPR}, {PB}, v3
        s_lshl_b32 s71, s{sT}, 11
        s_add_u32 s71, s71, {SL+S_H4}
        v_mov_b32 v16, -1
        v_mov_b32 v17, -1
        v_mov_b32 v18, -1
        v_mov_b32 v19, -1
        s_and_b32 s{s0}, s{sW}, 1
        s_mul_i32 s{s0}, s{s0}, 640
        s_add_u32 s71, s71, s{s0}
        s_lshr_b32 s{s0}, s{sW}, 1
        s_lshl_b32 s{s0}, s{s0}, 20
        s_add_u32 s71, s71, s{s0}
        s_cmp_lt_u32 s{sT}, 116
        s_cselect_b32 s{s0}, 40, 0
        v_cmp_gt_u32 vcc, s{s0}, v0
        v_cndmask_b32 v20, v9, v3, vcc
        v_lshrrev_b32 v12, 3, v0
        v_lshrrev_b32 v13, 1, v12
        v_and_b32 v14, 1, v12
        v_lshl_add_u32 v13, v14, 4, v13
        v_mul_u32_u24 v13, 1280, v13
        v_and_b32 v14, 7, v0
        v_lshlrev_b32 v14, 4, v14
        v_and_b32 v12, 1, v2
        v_lshlrev_b32 v12, 5, v12
        v_xor_b32 v14, v14, v12
        v_add_u32 v36, v13, v14
        v_xor_b32 v14, 64, v14
        v_add_u32 v37, v13, v14
        s_lshl_b32 s73, s{sX8}, 2
        s_add_u32 s73, s73, s{sW}
        s_mul_i32 s73, s73, 163840
        s_lshl_b32 s{s1}, s{sR}, 7
        s_add_u32 s73, s73, s{s1}
        s_lshl_b32 s74, s{sW}, 14
        """)
        def qloads():
            e(f'buffer_load_dwordx4 v[80:83], v{vQC}, {srd(rWS)}, 0 offen sc1')
            for i in range(8):
                e(f's_add_u32 m0, s62, {i*1024}')
                e(f'buffer_load_dwordx4 v{vQS+i}, {srd(rWS)}, s{76+(i>>2)} offen sc1 lds')
        kdone = set()
        def younger(item): return len(vm) - 1 - vm.index(item)
        def kv(c):
            e(f's_waitcnt vmcnt({younger(("d",8*c+7))})')
            if c == 3: self.stamp('T.ckv')
            if c == 2:
                for s3 in range(4): e(f'v_add_u32 v{vKa+s3}, 0x10000, v{vKa+s3}')
            for s3 in range(4):
                for kt in range(2):
                    e(f'ds_read_b128 {a(((4*c+s3)*2+kt)*4,4)}, v{vKa+s3} offset:{(c&1)*32768+kt*4096}')
            kdone.add(c)
            e('s_barrier')
            for ks in range(4):
                for T2 in range(2):
                    for q in range(2):
                        e(f'ds_read_b64_tr_b16 {a(128+(ks*8+2*c+T2)*4+2*q,2)}, v{vVa+T2+2*(c>>1)} offset:{(c&1)*32768+ks*8192+q*4096}')
        tp = []
        def tprep():
            if tp: return
            tp.append(1)
            e('s_waitcnt lgkmcnt(0)')
            self.tags()
            e(f's_lshl_b32 s79, s{sT}, 7\ns_add_u32 s79, s79, {GATE}\ns_cmp_eq_u32 s{sW}, 0\ns_cselect_b32 s79, s79, {OOB}\nv_mov_b32 v39, s79\nv_mov_b32 v21, s{sT1}')
        qpos = self.o.get('qpos', 32); npre = self.o.get('npre', 2)
        klag = self.o.get('klag', 12)
        for n in range(n0, 33):
            if n == npre:
                for x in pre: e(x)
            if n == npre: e(f's_load_dword s{sE}, s[{pWS}:{pWS+1}], {EPOCH}')
            if n == self.o.get('gpos', -1):
                tprep(); e(f'buffer_store_dword v21, v39, {srd(rWS)}, 0 offen'); vm.append('gate')
            if n == qpos:
                tprep()
                self.stamp('T.qiss')
                qloads(); vm += [('q',i) for i in range(9)]
                if self.o.get('vw', 0):
                    e(f'v_and_b32 v12, 1, v0\nv_lshlrev_b32 v12, 21, v12\ns_mov_b32 s{sTMP}, {PART}\nbuffer_load_dword v13, v12, {srd(rWS)}, s{sTMP} offen'); vm.append('vw')
                self.mk_srd(rA, pWO, 73, 5242880)
                e(f's_cmp_lt_u32 s{sR}, 10\ns_cselect_b32 s{rA+2}, s{rA+2}, 0')
            if n < 32:
                dma(n); vm.append(('d',n))
                if n in thr: e(f's_waitcnt vmcnt({thr[n]})')
            for c in range(3):
                if c not in kdone and n >= npre and ('d',8*c+7) in vm and younger(('d',8*c+7)) >= klag and (c == 0 or c-1 in kdone): kv(c)
        self.stamp('T.issued')
        if self.o.get('gate') == 1:
            e(f'buffer_store_dword v21, v39, {srd(rWS)}, 0 offen'); vm.append('gate')
        if self.o.get('tonly'):
            e('s_waitcnt vmcnt(0)'); self.stamp('T.ckv0'); e('s_branch L_END')
        for c in range(4):
            if c not in kdone: kv(c)
        if self.o.get('gate') == 2:
            e(f'buffer_store_dword v21, v39, {srd(rWS)}, 0 offen'); vm.append('gate')
        e('s_branch L_T_Q1')
        e('L_T_Q0:')
        self.fb((vQC,), (76, 77)); e(f's_sleep {self.o.get("qsleep",1)}')
        qloads()
        e('L_T_Q1:')
        e(f's_waitcnt vmcnt(0)\nds_read_b32 v12, v6\nds_read_b32 v13, v7 offset:1024')
        e(f'v_add_u32 v14, v80, v82\nv_sub_u32 v14, 0, v14\nds_write_b32 v10, v14\nv_xor_b32 v81, s{sT0}, v81\nv_xor_b32 v83, s{sT0}, v83\ns_waitcnt lgkmcnt(0)')
        e('v_xor_b32 v12, v12, v81\nv_xor_b32 v13, v13, v83\nv_or_b32 v12, v12, v13\nv_cmp_ne_u32 vcc, 0, v12\ns_cbranch_vccnz L_T_Q0')
        self.stamp('T.qin')
        if self.o.get('gate') == 3:
            e(f'buffer_store_dword v21, v39, {srd(rWS)}, 0 offen'); vm.append('gate')
        e('s_barrier')
        self.stamp('T.Qbar')
        def wo_ops(i): return [f's_add_u32 m0, s74, {WO+i*1024}', f's_mov_b32 s{sTMP}, {(32*(i>>2)+4*(i&3))*1280}', f'buffer_load_dwordx4 v{36+(i&1)}, {srd(rA)}, s{sTMP} offen {self.o.get("woflag","nt")} lds']
        nwe = self.o.get('wo_early', 6)
        vS = 48; vP = 76; vPF = 88; vAcc = 128; vO = 192
        def qreg(s, ht): return 128 + ht*64 + s*4
        def qread(s, ht): return f'ds_read_b128 {v(qreg(s,ht),4)}, v{vQa+(s&3)} offset:{(s>>2)*256+ht*16384}'
        def qk(s, kt, ht):
            d = v(vS+(kt*2+ht)*4,4)
            return f'v_mfma_f32_16x16x32_bf16 {d}, {a((s*2+kt)*4,4)}, {v(qreg(s,ht),4)}, ' + ('0' if s == 0 else d)
        def pv(ks, T, ht):
            d = v(vAcc+(ht*8+T)*4,4)
            return f'v_mfma_f32_16x16x32_bf16 {d}, {v(vPF+(ks*2+ht)*4,4)}, {a(128+(ks*8+T)*4,4)}, ' + ('0' if ks == 0 else d)
        def ver(s, ht): return f'v_add3_u32 v23, v23, v{qreg(s,ht)}, v{qreg(s,ht)+2}'
        def cost(x): return 2 if x.startswith('v_exp') else (0 if x.startswith('s_') else 1)
        def stream(mf, toks, bg):
            skip = 0
            for m in mf:
                e(m)
                b = 2
                if skip: skip -= 1
                else:
                    while toks:
                        t = toks[0]
                        if isinstance(t, tuple): skip = t[1]; toks.pop(0); break
                        if cost(t) > b: break
                        e(t); b -= cost(t); toks.pop(0)
                while bg and cost(bg[0]) <= b:
                    b -= cost(bg[0]); e(bg.pop(0))
            return toks
        def flush(toks):
            for t in toks:
                if not isinstance(t, tuple): e(t)
        D = 4
        for s in range(D): e(qread(s,0))
        e(f'v_mov_b32 v23, 0\nbuffer_store_dwordx4 v[16:19], v20, {srd(rWS)}, s71 offen sc1')
        rd = [(s,0) for s in range(D,16)] + [(s,1) for s in range(16)]
        issued = D
        wo = [wo_ops(i) for i in range(nwe)]
        for s in range(16):
            e(f's_waitcnt lgkmcnt({min(15, issued-1-s)})')
            if s == 15: e('s_barrier')
            for kt in range(2):
                e(qk(s,kt,0))
                if rd: e(qread(*rd.pop(0))); issued += 1
                if kt == 0: e(ver(s,0))
                elif wo: flush(wo.pop(0))
                if s == 14 and kt == 1: e('ds_read_b128 v[80:83], v8')
        self.stamp('T.QK0')
        def sm(ht):
            r0 = vS+ht*4; r1 = vS+8+ht*4; m = 64; t = 65; M = 66+ht; rb = 72
            a_ = [f'v_max3_f32 v{m}, v{r0}, v{r0+1}, v{r0+2}', f'v_max3_f32 v{t}, v{r1}, v{r1+1}, v{r1+2}', f'v_max3_f32 v{m}, v{m}, v{r0+3}, v{r1+3}', f'v_max_f32 v{m}, v{m}, v{t}',
                  f'v_mov_b32 v{t}, v{m}', ('gap',0), f'v_permlane32_swap_b32 v{m}, v{t}', f'v_max_f32 v{m}, v{m}, v{t}', f'v_mov_b32 v{t}, v{m}', ('gap',0),
                  f'v_permlane16_swap_b32 v{m}, v{t}', f'v_max_f32 v{m}, v{m}, v{t}', f'ds_write_b32 v22, v{m} offset:{ht*256}']
            b_ = ['s_waitcnt lgkmcnt(0)', 's_barrier', f'ds_read_b128 {v(rb,4)}, v{vMR} offset:{ht*256}']
            c_ = ['s_waitcnt lgkmcnt(0)', f'v_max3_f32 v{M}, v{rb}, v{rb+1}, v{rb+2}', f'v_max_f32 v{M}, v{M}, v{rb+3}', f'v_mul_f32 v{M}, v38, v{M}']
            for b in (r0, r1):
                for r in range(4): c_.append(f'v_fma_f32 v{b+r}, v{b+r}, v38, -v{M}')
            for b in (r0, r1):
                for r in range(4): c_.append(f'v_exp_f32 v{b+r}, v{b+r}')
            for k,b in enumerate((r0, r1)):
                c_ += [f'v_cvt_pk_bf16_f32 v{vP+ht*4+k*2}, v{b}, v{b+1}', f'v_cvt_pk_bf16_f32 v{vP+ht*4+k*2+1}, v{b+2}, v{b+3}']
            c_.append(f'ds_write_b128 v{vPW}, {v(vP+ht*4,4)} offset:{ht*1024}')
            d_ = ['s_waitcnt lgkmcnt(0)', 's_barrier'] + [f'ds_read_b128 {v(vPF+(ks*2+ht)*4,4)}, v{vPR} offset:{(ks*2+ht)*1024}' for ks in range(4)]
            return a_, b_, c_, d_
        g1 = self.o.get('g1', 2); g2 = self.o.get('g2', 2)
        a0,b0,c0,d0 = sm(0); a1_,b1,c1,d1 = sm(1)
        e('s_waitcnt lgkmcnt(0)')
        mf = [qk(s,kt,1) for s in range(16) for kt in range(2)]
        bg = [ver(s,1) for s in range(16)] + ['v_add3_u32 v23, v23, v80, v81', 'v_add3_u32 v23, v23, v82, v83']
        left = stream(mf, [('gap',1)] + a0 + [('gap',g1)] + b0 + [('gap',g2)] + c0, bg)
        flush(left)
        self.stamp('T.QK')
        flush(bg)
        A = [x for x in a1_ if not isinstance(x, tuple)]
        R = [f'v_add_u32_dpp v23, v23, v23 {p} {DPP}' for p in ['quad_perm:[1,0,3,2]','quad_perm:[2,3,0,1]','row_half_mirror','row_mirror']]
        R += ['v_mov_b32 v69, v23', 'v_permlane16_swap_b32 v23, v69', 'v_add_u32 v23, v23, v69', 'v_mov_b32 v69, v23', 'v_permlane32_swap_b32 v23, v69', 'v_add_u32 v23, v23, v69', 'v_cmp_ne_u32 vcc, 0, v23']
        flush([R[0], R[1], A[0], A[1], R[2], A[2], A[3], R[3], A[4], R[4], 's_nop 0', A[5], R[5], A[6], R[6], A[7], R[7], 's_nop 0', A[8], A[9], A[10], R[8], R[9], R[10]])
        flush(d0[:2]); e('s_cbranch_vccnz L_T_Q0'); flush(d0[2:] + b1[2:])
        self.stamp('T.Pbar')
        def lsum(ht, dst):
            r0 = vS+ht*4; r1 = vS+8+ht*4
            return [f'v_add_f32 v{r0}, v{r0}, v{r0+1}', f'v_add_f32 v{r0+2}, v{r0+2}, v{r0+3}', f'v_add_f32 v{r1}, v{r1}, v{r1+1}', f'v_add_f32 v{r1+2}, v{r1+2}, v{r1+3}',
                    f'v_add_f32 v{r0}, v{r0}, v{r0+2}', f'v_add_f32 v{r1}, v{r1}, v{r1+2}', f'v_add_f32 v{dst}, v{r0}, v{r1}']
        flush(lsum(0, 70))
        e('s_waitcnt lgkmcnt(4)')
        mf = [pv(ks,T,0) for ks in range(4) for T in range(8)]
        lt = ['v_permlane32_swap_b32 v70, v71','v_add_f32 v70, v70, v71','v_mov_b32 v71, v70', f'ds_read_b128 v[76:79], v{vLR}', 'v_permlane16_swap_b32 v70, v71','v_add_f32 v70, v70, v71',
              f'ds_write_b32 v{vMW}, v70 offset:512']
        left = stream(mf, [('gap',0)] + c1 + lsum(1, 71) + [('gap',0)] + lt + [('gap',self.o.get('g3',1))] + d1 + [f'ds_read_b128 v[72:75], v{vLR} offset:512'], [])
        flush(left)
        self.stamp('T.pv4')
        def outops(ht):
            ops = []
            for r in range(4):
                o = vO + (ht*4+r)*4
                for k in range(4):
                    ops.append(f'v_cvt_pk_bf16_f32 v{o+k}, v{vAcc+(ht*8+2*k)*4+r}, v{vAcc+(ht*8+2*k+1)*4+r}')
                ops.append(f'buffer_store_dwordx4 {v(o,4)}, v{vPS}, {srd(rWS)}, {"s66" if ht else "0"} offen offset:{r*1024} sc1')
            return ops
        e('s_waitcnt lgkmcnt(0)')
        mf = [pv(ks,T,1) for ks in range(4) for T in range(8)]
        cs = self.o.get('cs', 1)
        def csum(ht):
            c = 48 + 4*ht; y = 56 + 2*ht; z = 60 + ht
            ops = []
            for r in range(4):
                o = vO + (ht*4+r)*4
                ops.append([f'v_add3_u32 v{c+r}, v{o}, v{o+1}, v{o+2}', f'v_add_u32 v{c+r}, v{c+r}, v{o+3}'])
            red = [f'v_add_u32_dpp v{y}, v{c}, v{c} row_ror:8 row_mask:0xf bank_mask:0x3', f'v_add_u32_dpp v{y+1}, v{c+1}, v{c+1} row_ror:8 row_mask:0xf bank_mask:0x3',
                   f'v_add_u32_dpp v{y}, v{c+2}, v{c+2} row_ror:8 row_mask:0xf bank_mask:0xc', f'v_add_u32_dpp v{y+1}, v{c+3}, v{c+3} row_ror:8 row_mask:0xf bank_mask:0xc',
                   f'v_add_u32_dpp v{z}, v{y}, v{y} row_shl:4 row_mask:0xf bank_mask:0x5', f'v_add_u32_dpp v{z}, v{y+1}, v{y+1} row_shr:4 row_mask:0xf bank_mask:0xa',
                   f'v_add_u32_dpp v{z}, v{z}, v{z} quad_perm:[1,0,3,2] {DPP}', f'v_add_u32_dpp v{z}, v{z}, v{z} quad_perm:[2,3,0,1] {DPP}']
            return ops, red
        def out_cs(ht):
            if not cs: return outops(ht)
            o = outops(ht); l, red = csum(ht); res = []
            for r in range(4): res += o[5*r:5*r+5] + l[r]
            return res + red + [f'v_sub_u32 v{60+ht}, s{sT0}, v{60+ht}', f'buffer_store_dword v{60+ht}, v5, {srd(rWS)}, s70 offen offset:{128*ht} sc1']
        recv = ['v_max3_f32 v84, v76, v77, v78', 'v_max_f32 v84, v84, v79', 'v_mul_f32 v84, v38, v84', f'v_mov_b32 v86, s{sT0}', f'v_mov_b32 v87, s{sT1}',
                'v_add_f32 v72, v72, v73', 'v_add_f32 v74, v74, v75', 'v_add_f32 v85, v72, v74']
        o0 = out_cs(0)
        rp = self.o.get('recpos', 0)
        def recst(nst): return self.stamptok('T.recw') + [f's_waitcnt vmcnt({nwe+nst})', f'buffer_store_dwordx4 v[84:87], v{vRS}, {srd(rWS)}, 0 offen sc1', f'buffer_store_dwordx4 v[84:87], v{vRS}, {srd(rWS)}, s{sLOC} offen'] + self.stamptok('T.recst')
        if rp <= 4: o0 = o0[:7*rp] + recst(rp) + o0[7*rp:]
        left = stream(mf, recv + o0, [])
        flush(left)
        self.stamp('T.pv8')
        o1 = out_cs(1)
        if rp > 4: o1 = o1[:7*(rp-4)] + recst(rp+1) + o1[7*(rp-4):]
        flush(o1)
        self.stamp('T.PVst')
        self.stamp('T.rec')
        e(f's_cmp_ge_u32 s{sR}, 10\ns_cbranch_scc1 L_END')
        for i in range(nwe, 16): flush(wo_ops(i))
        e(f"""
        v_lshrrev_b32 v12, 2, v1
        v_lshl_add_u32 v12, v2, 3, v12
        v_lshlrev_b32 v12, 7, v12
        v_and_b32 v13, 3, v1
        v_lshl_add_u32 v12, v13, 3, v12
        v_lshrrev_b32 v14, 3, v1
        v_and_b32 v15, 1, v2
        v_lshl_or_b32 v14, v15, 1, v14
        v_xor_b32 v14, s{sW}, v14
        v_lshl_add_u32 v24, v14, 5, v12
        v_mul_u32_u24 v13, 320, v13
        v_add_u32 v13, v13, v11
        v_add_u32 v25, {HB}, v13
        v_mul_u32_u24 v12, 320, v2
        v_lshl_add_u32 v12, v1, 3, v12
        s_mul_i32 s{s0}, s{sW}, 1280
        s_add_u32 s{s0}, s{s0}, {HB}
        v_add_u32 v26, s{s0}, v12
        v_lshlrev_b32 v12, 4, v1
        v_lshl_add_u32 v27, v2, 13, v12
        s_lshl_b32 s75, s{sX8}, 4
        s_add_u32 s75, s75, s{sW}
        s_lshl_b32 s75, s75, 11
        s_add_u32 s75, s75, {SL+S_HC+LOC}
        s_and_b32 s75, s75, s{sLM}
        s_lshl_b32 s{s0}, s{sX8}, 11
        s_lshl_b32 s{s1}, s{sR}, 7
        s_add_u32 s{s0}, s{s0}, s{s1}
        s_lshl_b32 s{s1}, s{sW}, 5
        s_add_u32 s{s0}, s{s0}, s{s1}
        s_add_u32 s{s0}, s{s0}, {H3B}
        v_lshlrev_b32 v12, 1, v0
        v_add_u32 v12, s{s0}, v12
        v_cmp_gt_u32 vcc, 16, v0
        v_cndmask_b32 v28, v9, v12, vcc
        s_waitcnt vmcnt(0)
        s_barrier
        """)
        self.stamp('C.land')
        for st_ in range(16):
            for q in range(2): e(f'ds_read_b64_tr_b16 {a(st_*4+2*q,2)}, v24 offset:{WO+st_*4096+q*512}')
        e('L_C_HC:')
        e(f'buffer_load_dwordx4 v[76:79], v27, {srd(rWS)}, s75 offen sc1\nbuffer_load_dwordx4 v[80:83], v27, {srd(rWS)}, s75 offen offset:256 sc1')
        e('s_waitcnt vmcnt(0)')
        e('ds_write2_b32 v26, v76, v78 offset0:0 offset1:1\nds_write2_b32 v26, v80, v82 offset0:32 offset1:33')
        for r in (77,79,81,83): e(f'v_xor_b32 v{r}, s{sT0}, v{r}')
        e('v_or3_b32 v12, v77, v79, v81\nv_or_b32 v12, v12, v83\nv_cmp_ne_u32 vcc, 0, v12')
        self.retry('L_C_HC', sleep=0, sregs=(75,))
        self.stamp('C.hcin')
        e('s_waitcnt lgkmcnt(0)\ns_barrier')
        self.stamp('C.bar')
        NP = 8
        def ar(st_): return f'ds_read_b128 {v(128+4*st_,4)}, v25 offset:{(st_>>2)*1280+(st_&3)*64}'
        for st_ in range(NP): e(ar(st_))
        for st_ in range(16):
            e(f's_waitcnt lgkmcnt({min(NP-1, 15-st_)})')
            e(f'v_mfma_f32_16x16x32_bf16 v[104:107], {v(128+4*st_,4)}, {a(st_*4,4)}, ' + ('0' if st_ == 0 else 'v[104:107]'))
            if st_+NP < 16: e(ar(st_+NP))
        e('v_pk_add_f32 v[104:105], v[104:105], v[106:107]\nv_add_f32 v104, v104, v105\nv_cvt_pk_bf16_f32 v104, v104, v104\nv_min_u32 v104, -2, v104')
        e(f'buffer_store_short v104, v28, {srd(rWS)}, 0 offen sc1\nbuffer_store_short v104, v28, {srd(rWS)}, s{sLOC} offen')
        self.stamp('C.h3')

    def epilogue(self):
        e = self.e
        e('L_END:')
        if 'amp2' in self.o:
            k = self.idx[self.o['amp2']]
            e(f's_waitcnt lgkmcnt(0)\ns_cmp_eq_u32 s{sSTAMP+2*k}, 0\ns_cbranch_scc1 L_EXIT')
            if 'ampwg' in self.o: e(f's_cmp_lg_u32 s2, {self.o["ampwg"]}\ns_cbranch_scc1 L_EXIT')
            e(f's_sub_u32 s60, s{sSTAMP+2*k}, s{sSTAMP}\ns_lshl_b32 s60, s60, 3\ns_add_u32 s60, s60, s{sSTAMP}\ns_add_u32 s60, s60, 2000')
            e('L_AMP2:\ns_sleep 4\ns_memrealtime s[62:63]\ns_waitcnt lgkmcnt(0)\ns_sub_u32 s61, s62, s60\ns_cmp_lt_i32 s61, 0\ns_cbranch_scc1 L_AMP2')
        if self.stamps and 'amp' not in self.o and 'amp2' not in self.o:
            e(f's_waitcnt lgkmcnt(0)\ns_lshl_b32 s60, s2, 2\ns_add_u32 s60, s60, s{sW}\ns_lshl_b32 s60, s60, 6\ns_add_u32 s60, s60, {STAMP}\nv_mov_b32 v4, 0')
            for k in range(11): e(f'v_mov_b32 v5, s{sSTAMP+2*k}\nbuffer_store_dword v5, v4, {srd(rWS)}, s60 offen offset:{4*k}')
            e(f'v_mov_b32 v5, s{sTO}\nbuffer_store_dword v5, v4, {srd(rWS)}, s60 offen offset:44\nv_mov_b32 v5, s7\nbuffer_store_dword v5, v4, {srd(rWS)}, s60 offen offset:48')
        e('L_EXIT:')

    def build(self):
        if self.stamps:
            for k in range(1,11): self.e(f's_mov_b32 s{sSTAMP+2*k}, 0')
            self.e('s_mov_b32 s7, 0')
        self.prologue(); self.role_A(); self.role_T(); self.epilogue()
        hdr = open('header.txt').read()
        if self.o.get('noloc'):
            self.e.lines = [l.replace(f', s{sLOC} offen', ', 0 offen sc1') if 'buffer_store' in l else l.replace(f's_mov_b32 s{sLM}, -1', f's_mov_b32 s{sLM}, {(~LOC)&0xffffffff}') for l in self.e.lines]
        return f'''{hdr}; @launch grid=(256,1,1) block=(256,1,1) lds=163840
.amdgcn_target "amdgcn-amd-amdhsa--gfx950"
.text
.globl {KN}
.p2align 8
.type {KN},@function
{KN}:
{self.e.text()}
s_endpgm
.section .rodata,"a"
.p2align 6
.amdhsa_kernel {KN}
  .amdhsa_next_free_vgpr 512
  .amdhsa_next_free_sgpr 102
  .amdhsa_accum_offset 256
  .amdhsa_group_segment_fixed_size 0
  .amdhsa_kernarg_size 112
  .amdhsa_user_sgpr_count 2
  .amdhsa_user_sgpr_kernarg_segment_ptr 1
  .amdhsa_system_sgpr_workgroup_id_x 1
.end_amdhsa_kernel
'''

if __name__ == '__main__':
    import json
    out = sys.argv[1]; stamps = len(sys.argv) > 2 and sys.argv[2] == '1'
    opt = json.loads(sys.argv[3]) if len(sys.argv) > 3 else {}
    open(out,'w').write(G(stamps, opt).build())
```

```python
import sys
sys.path.insert(0,'work')
import gen9 as gen
base = gen.G(False, {'t_throttle':[[2,0]],'gate':4,'gpos':24,'ddelay':[0,4]}).build()
KN = gen.KN
def mk(order, egrid=1, eblock=64, elds=0, evg=8):
    s = base
    lines = []
    for o in order:
        if o == 'M': lines.append(f'; @launch kernel={KN} grid=(256,1,1) block=(256,1,1) lds=163840')
        else: lines.append(f'; @launch kernel=empty_kernel grid=({egrid},1,1) block=({eblock},1,1) lds={elds}')
    s = s.replace('; @launch grid=(256,1,1) block=(256,1,1) lds=163840', '\n'.join(lines))
    s = s.replace('.section .rodata,"a"', '.globl empty_kernel\n.p2align 8\n.type empty_kernel,@function\nempty_kernel:\ns_endpgm\n.section .rodata,"a"')
    s += f'''.p2align 6
.amdhsa_kernel empty_kernel
  .amdhsa_next_free_vgpr {evg}
  .amdhsa_next_free_sgpr 16
  .amdhsa_accum_offset {min(evg,256)}
  .amdhsa_group_segment_fixed_size 0
  .amdhsa_kernarg_size 112
  .amdhsa_user_sgpr_count 2
  .amdhsa_user_sgpr_kernarg_segment_ptr 1
  .amdhsa_system_sgpr_workgroup_id_x 1
.end_amdhsa_kernel
'''
    return s
open('l1.s','w').write(mk('EM',256,256,0,8))
open('l2.s','w').write(mk('EM',256,256,163840,512))
open('l3.s','w').write(mk('EM',256,256,163840,8))
open('l4.s','w').write(mk('EM',256,256,0,512))
```

```python
import sys
sys.path.insert(0,'work')
from dsl import Asm
NAME = 'sequential_preLN__compressed_kv_cla__dense_activation_squared_relu__decode'
KN = NAME + '_kernel'

EPOCH=0; RDY=0x1000; GATE=0x2000; QP=0x8000; SL=0x40000; REC=0x80000; LOC=0x100000; PART=0x200000; STAMP=0x680000; PAD=32768+1024
S_QL=0; S_HC=256; S_H4=768; QCS=0x6000; H3B = SL + 108*2048 + S_H4
WSSZ=0x700000
OOB=0x7ffffff0
NLOC=96
sLM,sLC,sLOC,sTMP = 3,4,5,6
pX,pCKV,pWQ,pWUK,pWUV,pWO,pBX,pW1,pB1,pW2,pB2,pOUT,pDBG,pWS = [8+2*i for i in range(14)]
sW,sX8,sR,sE,sT0,sT1,sTO,sC = 36,37,38,39,40,41,42,43
rWS=44; rA=48; rB=52; rC=56
sSTAMP=80
def srd(r): return f's[{r}:{r+3}]'
def v(n,c=1): return f'v{n}' if c==1 else f'v[{n}:{n+c-1}]'
def a(n,c=1): return f'a{n}' if c==1 else f'a[{n}:{n+c-1}]'
DPP='row_mask:0xf bank_mask:0xf'
QB = 131072
WQ = 69632; XN = 110592

class G:
    def __init__(self, stamps=False, opt=None):
        self.e = Asm(); self.stamps = stamps; self.o = opt or {}
        self.slots = {'A':['start'],'T':['start'],'R':[]}; self.idx = {}; self.tbase = 1
    def stamp(self, name):
        if not self.stamps: return
        role = name.split('.')[0]
        lst = self.slots['A' if role in 'AFR' else 'T']
        want = self.o.get('want')
        if name == 'start': k = 0
        else:
            if want is not None and name not in want: return
            if role == 'R':
                k = self.tbase + len(self.slots['R']); self.slots['R'].append(name)
            else:
                k = len(lst); lst.append(name)
                if role == 'A': self.tbase = len(lst)
            if k > 10: raise Exception('too many stamps '+name)
        self.idx[name] = k
        op = 's_memtime' if self.o.get('cyc') else 's_memrealtime'
        self.e(f'{op} s[{sSTAMP+2*k}:{sSTAMP+2*k+1}]')
        if name in self.o.get('cut', []): self.e('s_branch L_END')
    def stamptok(self, name):
        n = len(self.e.lines); self.stamp(name)
        t = [x.strip() for x in self.e.lines[n:]]
        del self.e.lines[n:]
        if t: self.e.hist.pop()
        return t
    def mk_srd(self, r, ptr, off_sgpr, size):
        e = self.e
        if off_sgpr is None:
            e(f's_mov_b32 s{r}, s{ptr}\ns_and_b32 s{r+1}, s{ptr+1}, 0xffff\ns_mov_b32 s{r+2}, {size}')
        else:
            e(f's_add_u32 s{r}, s{ptr}, s{off_sgpr}\ns_addc_u32 s{r+1}, s{ptr+1}, 0\ns_and_b32 s{r+1}, s{r+1}, 0xffff\ns_sub_u32 s{r+2}, {size}, s{off_sgpr}')
        e(f's_mov_b32 s{r+3}, 0x20000')
    def allred(self, op, x, t, steps16=4):
        e = self.e
        pats = ['quad_perm:[1,0,3,2]','quad_perm:[2,3,0,1]','row_half_mirror','row_mirror'][:steps16]
        for p in pats: e(f'{op}_dpp v{x}, v{x}, v{x} {p} {DPP}')
        e(f'v_mov_b32 v{t}, v{x}\nv_permlane16_swap_b32 v{x}, v{t}\n{op} v{x}, v{x}, v{t}')
        e(f'v_mov_b32 v{t}, v{x}\nv_permlane32_swap_b32 v{x}, v{t}\n{op} v{x}, v{x}, v{t}')
    def timeout(self):
        self.e(f's_sub_u32 s{sTO}, s{sTO}, 1\ns_cmp_eq_u32 s{sTO}, 0\ns_cbranch_scc1 L_END')
    def fb(self, vregs=(), sregs=()):
        e = self.e
        self.timeout()
        e(f's_add_u32 s{sLC}, s{sLC}, 1\ns_cmp_ge_u32 s{sLC}, {NLOC}\ns_cselect_b32 s{sLM}, {(~LOC)&0xffffffff}, s{sLM}')
        self.lmask(vregs, sregs)
    def lmask(self, vregs=(), sregs=()):
        for r in vregs: self.e(f'v_and_b32 v{r}, s{sLM}, v{r}')
        for r in sregs: self.e(f's_and_b32 s{r}, s{r}, s{sLM}')
    def stop(self, data):
        if '[' not in data: return 'buffer_store_dword'
        lo, hi = data[2:-1].split(':'); return f'buffer_store_dwordx{int(hi)-int(lo)+1}'
    def publ(self, data, voff): self.e(f'{self.stop(data)} {data}, v{voff}, {srd(rWS)}, s{sLOC} offen')
    def pubg(self, data, voff): self.e(f'{self.stop(data)} {data}, v{voff}, {srd(rWS)}, 0 offen sc1')
    def pub(self, data, voff): self.pubg(data, voff); self.publ(data, voff)
    def late_pubg(self, data, voff):
        e = self.e; l = e.newlabel('Lnp')
        e(f's_cmp_eq_u32 s{sLM}, -1\ns_cbranch_scc1 {l}'); self.pubg(data, voff); e(f'{l}:')
    def retry(self, label, sleep=1, vregs=(), sregs=(), late=None):
        e = self.e
        ok = e.newlabel('Lok')
        e(f's_cbranch_vccz {ok}')
        self.fb(vregs, sregs)
        if late: self.late_pubg(*late)
        if sleep: e(f's_sleep {sleep}')
        e(f's_branch {label}')
        e(f'{ok}:')
    def maxchain(self, dst, regs):
        e = self.e
        regs = list(regs)
        e(f'v_max3_u32 v{dst}, v{regs[0]}, v{regs[1]}, v{regs[2]}'); regs = regs[3:]
        while len(regs) >= 2:
            e(f'v_max3_u32 v{dst}, v{dst}, v{regs[0]}, v{regs[1]}'); regs = regs[2:]
        if regs: e(f'v_max_u32 v{dst}, v{dst}, v{regs[0]}')
    def tagcheck(self, dst, pairs):
        e = self.e; rs = []
        for r in pairs:
            e(f'v_xor_b32 v{r}, s{sT0}, v{r}\nv_xor_b32 v{r+1}, s{sT1}, v{r+1}'); rs += [r, r+1]
        if len(rs) == 2: e(f'v_or_b32 v{dst}, v{rs[0]}, v{rs[1]}')
        else:
            e(f'v_or3_b32 v{dst}, v{rs[0]}, v{rs[1]}, v{rs[2]}'); rs = rs[3:]
            while len(rs) >= 2: e(f'v_or3_b32 v{dst}, v{dst}, v{rs[0]}, v{rs[1]}'); rs = rs[2:]
            if rs: e(f'v_or_b32 v{dst}, v{dst}, v{rs[0]}')
        e(f'v_cmp_ne_u32 vcc, 0, v{dst}')
    def ident_masks(self, dst, val_lo, val_hi, first, n, t):
        e = self.e
        e(f'v_and_b32 v{t}, 1, v1\nv_cmp_eq_u32 vcc, 1, v{t}\nv_mov_b32 v{t}, {val_lo}\nv_mov_b32 v{t+1}, {val_hi}\nv_cndmask_b32 v{t}, v{t}, v{t+1}, vcc')
        e(f'v_lshrrev_b32 v{t+1}, 1, v1')
        for r in range(n):
            e(f'v_cmp_eq_u32 vcc, {first+r}, v{t+1}\nv_cndmask_b32 v{dst+r}, 0, v{t}, vcc')
    def red_final(self, RED, t, va, clamp):
        e = self.e
        for w in range(4): e(f'ds_read_b128 {v(t+4+4*w,4)}, v{va} offset:{RED+256*w}')
        e('s_waitcnt lgkmcnt(2)')
        for i in range(2): e(f'v_pk_add_f32 {v(t+4+2*i,2)}, {v(t+4+2*i,2)}, {v(t+8+2*i,2)}')
        e('s_waitcnt lgkmcnt(0)')
        for i in range(2): e(f'v_pk_add_f32 {v(t+12+2*i,2)}, {v(t+12+2*i,2)}, {v(t+16+2*i,2)}')
        for i in range(2): e(f'v_pk_add_f32 {v(t+4+2*i,2)}, {v(t+4+2*i,2)}, {v(t+12+2*i,2)}')
        for i in range(2): e(f'v_cvt_pk_bf16_f32 v{t+i}, v{t+4+2*i}, v{t+5+2*i}')
        if clamp:
            for i in range(2): e(f'v_min_u32 v{t+i}, -2, v{t+i}')
    def code_prefetch(self):
        e = self.e
        npl = self.o.get('npl', 3)
        e(f's_getpc_b64 s[20:21]\nL_PC:\ns_sub_u32 s20, s20, L_PC-{KN}\ns_subb_u32 s21, s21, 0')
        e(f's_and_b32 s22, s{sR}, 15\ns_lshl_b32 s22, s22, 2\ns_add_u32 s22, s22, s{sW}\ns_lshl_b32 s22, s22, 7')
        for i in range(npl):
            e(f's_min_u32 s23, s22, L_EXIT-{KN}\ns_load_dword s7, s[20:21], s23')
            if i < npl-1: e(f's_add_u32 s22, s22, 8192')
    def kmap(self):
        k = self.o.get('kil', 0)
        if k == 0: return 17, 15, 4096
        if k == 1: return 12, 22, 1 << 19
        if k == 2: return 12, 19, 1 << 21
        if k == 3: return 14, 12, 1 << 21
        if k == 4: return 15, 22, 4096
        if k == 5: return -12, 19, 1 << 16
        if k == 6: return -12, 16, 1 << 18
        if k == 7: return -14, 12, 1 << 18
        if k == 8: return -15, 19, 4096
    def kbase(self, dst, sidx, tsh):
        if tsh > 0: self.e(f's_lshl_b32 s{dst}, s{sidx}, {tsh}')
        else: self.e(f's_and_b32 s{dst}, s{sidx}, 15\ns_lshl_b32 s{dst}, s{dst}, {-tsh}\ns_lshl_b32 s{sTMP}, s{sX8}, 21\ns_add_u32 s{dst}, s{dst}, s{sTMP}')
    def tlb_warm(self):
        e = self.e
        M = 1 << 21
        lists = {1: [(pWUK,0),(pWUK,M),(pWS,PART),(pWS,PART+M),(pWUV,0),(pWUV,M)],
                 2: [(pW1,0),(pW1,M),(pW2,0),(pW2,M),(pB1,0),(pB2,0)],
                 3: [(pWO,0),(pWO,M),(pWO,2*M),(pOUT,0)]}
        for w,l in lists.items():
            e(f's_cmp_lg_u32 s{sW}, {w}\ns_cbranch_scc1 L_TW{w}')
            for p,off in l:
                if off: e(f's_mov_b32 s60, {off}\ns_load_dword s7, s[{p}:{p+1}], s60')
                else: e(f's_load_dword s7, s[{p}:{p+1}], 0')
            e(f'L_TW{w}:')
    def tags(self):
        self.e(f's_add_u32 s{sT0}, s{sE}, 0x9e3779b9\ns_xor_b32 s{sT1}, s{sT0}, 0x5bd1e995')

    def prologue(self):
        e = self.e
        self.stamp('start')
        e(f'''
        s_cmp_ge_u32 s2, 256
        s_cbranch_scc1 L_EXIT
        s_load_dwordx16 s[8:23], s[0:1], 0
        s_load_dwordx4 s[32:35], s[0:1], 96
        s_load_dwordx8 s[24:31], s[0:1], 64
        v_lshrrev_b32 v1, 6, v0
        v_and_b32 v0, 63, v0
        v_readfirstlane_b32 s{sW}, v1
        v_and_b32 v1, 15, v0
        v_lshrrev_b32 v2, 4, v0
        v_lshlrev_b32 v3, 4, v0
        v_lshlrev_b32 v4, 2, v0
        s_and_b32 s{sX8}, s2, 7
        s_lshr_b32 s{sR}, s2, 3
        v_lshlrev_b32 v5, 4, v1
        v_lshlrev_b32 v6, 5, v2
        v_xor_b32 v5, v5, v6
        v_lshl_add_u32 v6, v2, 13, v5
        s_lshr_b32 s67, s{sW}, 1
        s_lshl_b32 s67, s67, 7
        v_xor_b32 v8, s67, v6
        v_mov_b32 v9, {OOB}
        v_lshlrev_b32 v11, 4, v2
        s_bfe_u32 s60, s{sR}, 0x20002
        s_mul_i32 s60, s60, {160*8192}
        s_and_b32 s63, s{sR}, 3
        s_lshl_b32 s64, s{sX8}, 2
        s_add_u32 s63, s63, s64
        s_lshl_b32 s63, s63, 8
        s_add_u32 s60, s60, s63
        s_lshl_b32 s61, s{sW}, 15
        s_lshl_b32 s62, s{sW}, 10
        s_add_u32 s62, s62, {WQ}
        s_mov_b32 s{rA+3}, 0x20000
        s_mov_b32 s{rC+3}, 0x20000
        s_mov_b32 s{rC+2}, 1280
        s_sub_u32 s{rA+2}, 5242880, s60
        s_mov_b32 s{sTO}, 400000
        s_mov_b32 s{sLM}, -1
        s_mov_b32 s{sLC}, 0
        s_mov_b32 s{sLOC}, {LOC}
        s_mov_b32 s{rWS+2}, {WSSZ}
        s_mov_b32 s{rWS+3}, 0x20000
        s_waitcnt lgkmcnt(0)
        s_add_u32 s{rA}, s{pWQ}, s60
        s_addc_u32 s{rA+1}, s{pWQ+1}, 0
        s_and_b32 s{rA+1}, s{rA+1}, 0xffff
        s_mov_b32 s{rC}, s{pX}
        s_and_b32 s{rC+1}, s{pX+1}, 0xffff
        s_mov_b32 s{rWS}, s{pWS}
        s_and_b32 s{rWS+1}, s{pWS+1}, 0xffff
        s_cmp_lt_u32 s{sR}, 16
        s_cbranch_scc1 L_T
        ''')
    def x_issue(self):
        for kk in range(5): self.e(f'buffer_load_dword v{20+kk}, v4, {srd(rC)}, 0 offen offset:{256*kk} {self.o.get("xflag","")}')
    def wq_dma(self, k):
        e = self.e
        e(f's_add_u32 m0, s62, {k*4096}')
        e(f'buffer_load_dwordx4 v8, {srd(rA)}, s61 offen nt lds')
        if k < 9: e(f's_add_u32 s61, s61, {4*32768}')
    def wuk_setup(self, sAi, srdreg):
        e = self.e
        e(f'''
        s_lshl_b32 s63, s{sX8}, 2
        s_add_u32 s64, s63, s{sW}
        s_lshl_b32 s64, s64, 8
        s_lshl_b32 s65, s{sAi}, 18
        s_add_u32 s64, s64, s65
        ''')
        self.mk_srd(srdreg, pWUK, 64, 4194304)
        e(f'v_xor_b32 v7, 0x80, v6\ns_mov_b32 s68, 0\ns_lshl_b32 s69, s{sW}, 13')
    def wuk_dma(self, k, srdreg, base):
        e = self.e
        e(f's_add_u32 m0, s69, {base+k*1024}')
        e(f'buffer_load_dwordx4 v{6 if ((k>>1)&1)==0 else 7}, {srd(srdreg)}, s68 offen nt lds')
        if k < 7: e(f's_add_u32 s68, s68, 32768')
    def a1(self, role, y_x, y_wq, mid):
        e = self.e
        s0, s1 = 63, 64
        e(f'''
        v_lshrrev_b32 v12, 2, v1
        v_lshl_add_u32 v13, v2, 3, v12
        v_lshlrev_b32 v13, 8, v13
        v_and_b32 v14, 3, v1
        v_lshl_add_u32 v13, v14, 3, v13
        v_and_b32 v15, 1, v2
        v_lshl_or_b32 v15, v15, 2, v12
        s_lshl_b32 s{s0}, s{sW}, 1
        v_xor_b32 v15, s{s0}, v15
        v_lshl_add_u32 v60, v15, 5, v13
        v_xor_b32 v15, 1, v15
        v_lshl_add_u32 v61, v15, 5, v13
        v_add_u32 v56, {WQ}, v60
        v_add_u32 v57, {WQ}, v61
        ''')
        e(f'''
        v_lshl_add_u32 v12, v1, 6, v11
        s_and_b32 s{s0}, s{sR}, 3
        s_lshl_b32 s{s1}, s{sX8}, 2
        s_add_u32 s{s0}, s{s0}, s{s1}
        s_lshl_b32 s{s0}, s{s0}, 2
        s_bfe_u32 s{s1}, s{sR}, 0x20002
        s_add_u32 s{s0}, s{s0}, s{s1}
        s_lshl_b32 s{s0}, s{s0}, 9
        s_lshl_b32 s{s1}, s{sW}, 7
        s_add_u32 s{s0}, s{s0}, s{s1}
        s_add_u32 s{s0}, s{s0}, {QP}
        v_add_u32 v12, s{s0}, v12
        v_cmp_gt_u32 vcc, 2, v1
        v_cndmask_b32 v62, v9, v12, vcc
        v_cmp_eq_u32 s[70:71], 1, v1
        s_mul_i32 s{s0}, s{sW}, 1280
        s_add_u32 s{s0}, s{s0}, {XN}
        v_add_u32 v10, s{s0}, v4
        s_bfe_u32 s{s1}, s{sR}, 0x20002
        s_mul_i32 s{s1}, s{s1}, 320
        s_add_u32 s{s0}, s{s0}, s{s1}
        v_add_u32 v12, s{s0}, v11
        s_waitcnt vmcnt({y_x}) lgkmcnt(0)
        ''')
        self.stamp(role+'.x')
        for k in range(5): e(f'v_lshlrev_b32 v{26+2*k}, 16, v{20+k}\nv_and_b32 v{27+2*k}, 0xffff0000, v{20+k}')
        e('v_pk_add_f32 v[36:37], v[26:27], v[28:29]\nv_pk_add_f32 v[38:39], v[30:31], v[32:33]\nv_pk_add_f32 v[36:37], v[36:37], v[34:35]\nv_pk_add_f32 v[36:37], v[36:37], v[38:39]\nv_add_f32 v36, v36, v37')
        self.allred('v_add_f32', 36, 37)
        e('v_mul_f32 v36, 0xbacccccd, v36\nv_mov_b32 v37, v36')
        for k in range(26,36,2): e(f'v_pk_add_f32 {v(k,2)}, {v(k,2)}, v[36:37]')
        e('v_pk_mul_f32 v[36:37], v[26:27], v[26:27]')
        for k in range(28,36,2): e(f'v_pk_fma_f32 v[36:37], {v(k,2)}, {v(k,2)}, v[36:37]')
        e('v_add_f32 v36, v36, v37')
        self.allred('v_add_f32', 36, 37)
        e('v_mul_f32 v36, 0x3acccccd, v36\nv_add_f32 v36, 0x3727c5ac, v36\nv_rsq_f32 v36, v36\nv_mov_b32 v37, v36')
        for k in range(26,36,2): e(f'v_pk_mul_f32 {v(k,2)}, {v(k,2)}, v[36:37]')
        for k in range(5): e(f'v_cvt_pk_bf16_f32 v{20+k}, v{26+2*k}, v{27+2*k}\nds_write_b32 v10, v{20+k} offset:{256*k}')
        e('s_waitcnt lgkmcnt(0)')
        for s in range(5): e(f'ds_read_b128 {v(36+4*s,4)}, v12 offset:{s*64}')
        e(f's_load_dword s{sE}, s[{pWS}:{pWS+1}], {EPOCH}')
        self.stamp(role+'.ln')
        mid()
        e(f's_waitcnt vmcnt({y_wq}) lgkmcnt(0)\ns_barrier')
        self.stamp(role+'.wq')
        vW = 128
        for s in range(5):
            for T in range(2):
                for q in range(2): e(f'ds_read_b64_tr_b16 {v(vW+(s*2+T)*4+2*q,2)}, v{56+T} offset:{s*8192+q*1024}')
        self.tags()
        e(f'v_mov_b32 v18, s{sT0}\nv_mov_b32 v19, s{sT1}')
        for s in range(5):
            for T in range(2):
                e(f's_waitcnt lgkmcnt({min(15,18-(s*2+T)*2)})')
                e(f'v_mfma_f32_16x16x32_bf16 {v(84+4*T,4)}, {v(vW+(s*2+T)*4,4)}, {v(36+4*s,4)}, ' + ('0' if s==0 else v(84+4*T,4)))
        for i in range(4): e(f'v_cvt_pk_bf16_f32 v{92+i}, v{84+2*i}, v{85+2*i}')
        e('v_cndmask_b32 v16, v92, v94, s[70:71]\nv_cndmask_b32 v17, v93, v95, s[70:71]')
        self.publ('v[16:19]', 62)
        self.stamp(role+'.qp')


    def role_A(self):
        e = self.e
        QV=0; CL=1024; ML=2304; RED=2560; DUM=3584; WUK=4096; WUV=36864
        W1=69632; W2=W1+20480; HB=4096; AP=HB+2048; ST=AP+256; HELP=135168
        sAi,sHd,sJ,s0,s1,s2_,sSL = 72,73,74,63,64,65,66
        sF,sG = 60,61
        if self.o.get('noA'): e('s_branch L_END')
        order = self.o.get('a_order', 'qqqqqqqqqq|uuuuuuuu')
        cnt = {'q':0,'u':0}
        def issue(ch):
            if ch == 'q': self.wq_dma(cnt['q'])
            else:
                if cnt['u'] == 0: self.wuk_setup(sAi, rB)
                self.wuk_dma(cnt['u'], rB, WUK)
            cnt[ch] += 1
        e(f's_sub_u32 s{sAi}, s{sR}, 16')
        self.x_issue()
        o1, o2 = order.split('|')
        for ch in o1: issue(ch)
        e(f"""
        s_lshl_b32 s63, s{sX8}, 2
        s_and_b32 s{sHd}, s{sAi}, 3
        s_add_u32 s{sHd}, s{sHd}, s63
        s_lshr_b32 s{sJ}, s{sAi}, 2
        s_lshl_b32 s{sSL}, s{sX8}, 4
        s_add_u32 s{sSL}, s{sSL}, s{sAi}
        """)
        def mid():
            for ch in o2: issue(ch)
        full = o1 + o2
        self.a1('A', len(o1), len(full)-1-full.rindex('q'), mid)
        e(f"""
        s_lshl_b32 s{s0}, s{sX8}, 4
        s_and_b32 s{s1}, s{sAi}, 12
        s_add_u32 s{s0}, s{s0}, s{s1}
        s_add_u32 s{s0}, s{s0}, s{sW}
        s_lshl_b32 s{s0}, s{s0}, 11
        s_and_b32 s{s1}, s{sAi}, 3
        s_lshl_b32 s{s1}, s{s1}, 6
        s_add_u32 s{s0}, s{s0}, s{s1}
        s_add_u32 s{s0}, s{s0}, {SL+S_QL}
        v_add_u32 v12, s{s0}, v4
        s_lshl_b32 s{s0}, s{sSL}, 11
        s_lshl_b32 s{s1}, s{sW}, 7
        s_add_u32 s{s0}, s{s0}, s{s1}
        s_add_u32 s{s0}, s{s0}, {SL+S_HC}
        v_lshlrev_b32 v13, 3, v0
        v_add_u32 v13, s{s0}, v13
        v_cmp_gt_u32 vcc, 16, v0
        v_cndmask_b32 v101, v9, v12, vcc
        v_cndmask_b32 v102, v9, v13, vcc
        s_lshl_b32 s{s0}, s{sSL}, 2
        s_add_u32 s{s0}, s{s0}, s{sW}
        s_lshl_b32 s{s0}, s{s0}, 3
        s_add_u32 s{s0}, s{s0}, {QCS}
        v_mov_b32 v12, s{s0}
        s_and_b32 s{s1}, s{sAi}, 7
        s_lshl_b32 s{s1}, s{s1}, 1
        v_cmp_eq_u32 vcc, s{s1}, v0
        v_cndmask_b32 v103, v9, v12, vcc
        v_mov_b32 v99, s{sT0}
        v_mov_b32 v100, v62
        """)
        e(f"""
        v_lshlrev_b32 v27, 9, v2
        v_lshl_add_u32 v27, v1, 4, v27
        s_lshl_b32 s{s2_}, s{sX8}, 2
        s_add_u32 s{s2_}, s{s2_}, s{sW}
        s_lshl_b32 s{s2_}, s{s2_}, 11
        s_add_u32 s{s2_}, s{s2_}, {QP+LOC}
        v_lshlrev_b32 v12, 9, v1
        s_lshl_b32 s{s0}, s{sW}, 13
        s_add_u32 s{s0}, s{s0}, {WUK}
        v_add_u32 v12, s{s0}, v12
        v_and_b32 v13, 1, v1
        v_and_b32 v14, 4, v1
        v_lshl_or_b32 v13, v13, 1, v14
        v_lshlrev_b32 v13, 5, v13
        """)
        def h0loads():
            for i in range(2): e(f'buffer_load_dwordx4 {v(64+4*i,4)}, v27, {srd(rWS)}, s{s2_} offen offset:{i*256} sc1')
        for s in range(4):
            e(f'v_add_u32 v14, {s*64}, v11\nv_xor_b32 v14, v14, v13\nv_add_u32 v{40+2*s}, v14, v12\nv_xor_b32 v14, 32, v14\nv_add_u32 v{41+2*s}, v14, v12')
        vI = 28
        self.ident_masks(vI, 0x3f80, 0x3f800000, 0, 8, 12)
        e(f"""
        s_lshl_b32 s{s0}, s{sW}, 8
        v_lshlrev_b32 v12, 3, v0
        v_add_u32 v12, s{s0}, v12
        v_mov_b32 v13, {DUM}
        v_cmp_gt_u32 vcc, 32, v0
        v_cndmask_b32 v24, v13, v12, vcc
        v_add_u32 v25, s{s0}, v11
        """)
        e(f's_waitcnt vmcnt({1+self.o.get("h0lead",3)})')
        h0loads()
        e('s_waitcnt vmcnt(3)')
        self.stamp('A.wuk')
        vU = 112
        for s in range(4):
            for T in range(2): e(f'ds_read_b128 {v(vU+(s*2+T)*4,4)}, v{40+2*s+T} offset:{T*256}')
        e('L_A_H0:')
        e('s_waitcnt vmcnt(0)')
        for i in range(2):
            e(f'v_mfma_f32_16x16x16_bf16 v[80:83], {v(vI+2*i,2)}, {v(64+4*i,2)}, ' + ('0' if i==0 else 'v[80:83]'))
        self.tagcheck(12, [66,70])
        e('s_cbranch_vccz L_A_H0OK')
        self.fb((), (s2_,)); self.late_pubg('v[16:19]', 62)
        h0loads()
        e('s_branch L_A_H0')
        e('L_A_H0OK:')
        self.stamp('A.h0')
        e(f'v_cvt_pk_bf16_f32 v84, v80, v81\nv_cvt_pk_bf16_f32 v85, v82, v83\nds_write_b64 v24, v[84:85] offset:{QV}')
        for s in range(4): e(f'ds_read_b128 {v(144+4*s,4)}, v25 offset:{QV+s*64}')
        for s in range(4):
            e(f's_waitcnt lgkmcnt({3-s})')
            for T in range(2):
                e(f'v_mfma_f32_16x16x32_bf16 {v(104+4*T,4)}, {v(144+4*s,4)}, {v(vU+(s*2+T)*4,4)}, ' + ('0' if s==0 else v(104+4*T,4)))
        e('v_cvt_pk_bf16_f32 v64, v104, v108')
        self.pub('v64', 101)
        e(f'v_add_u32_dpp v96, v64, v64 quad_perm:[2,3,0,1] {DPP}\nv_xor_b32 v97, s{sT0}, v64\nv_add_u32_dpp v96, v96, v96 row_ror:4 {DPP}\nv_add_u32_dpp v96, v96, v96 row_ror:8 {DPP}')
        self.pub('v[96:97]', 103)
        self.stamp('A.ql')
        self.pubg('v[16:19]', 62)
        if self.o.get('pf', 3) == 3:
            e(f's_getpc_b64 s[20:21]\nL_PC:\ns_sub_u32 s20, s20, L_PC-{KN}\ns_subb_u32 s21, s21, 0')
            e(f's_lshl_b32 s{s0}, s{sW}, 13\nv_lshlrev_b32 v12, 7, v0\nv_add_u32 v12, s{s0}, v12\nv_min_u32 v12, L_EXIT-{KN}, v12')
            e(f's_and_b32 s{s0}, s{sAi}, 3\ns_cmp_lg_u32 s{s0}, 0\ns_cbranch_scc1 L_NOPF\nglobal_load_dword v255, v12, s[20:21]\nL_NOPF:')
        e('s_barrier')
        nh = self.o.get('a_help', 0)
        if nh:
            tsh, wsh, istr = self.kmap()
            self.kbase(s0, sSL, tsh)
            self.mk_srd(rA, pCKV, s0, 16777216)
            e(f'v_lshlrev_b32 v12, 10, v2\nv_lshl_add_u32 v12, v1, 4, v12\ns_lshl_b32 s68, s{sW}, {wsh}\ns_lshl_b32 s69, s{sW}, 12\ns_add_u32 m0, s69, {HELP}')
            for n in range(32-nh, 32):
                c, i = n >> 3, n & 7
                e(f's_add_u32 s{sTMP}, s68, {i*istr+c*256}')
                e(f'buffer_load_dwordx4 v12, {srd(rA)}, s{sTMP} offen {self.o.get("helpflag","nt")} lds')
        e(f"""
        v_lshrrev_b32 v12, 1, v2
        v_lshl_add_u32 v62, v12, 20, v5
        v_and_b32 v12, 1, v2
        v_lshl_add_u32 v62, v12, 17, v62
        v_xor_b32 v62, s67, v62
        s_lshl_b32 s{sG}, s{sJ}, 3
        s_add_u32 s{sG}, s{sG}, s{sX8}
        s_and_b32 s{sF}, s{sAi}, 3
        s_lshl_b32 s{s2_}, s{sG}, 2
        s_add_u32 s{sF}, s{sF}, s{s2_}
        """)
        sB = 62
        e(f"""
        v_and_b32 v5, 7, v1
        v_lshlrev_b32 v5, 4, v5
        v_and_b32 v6, 1, v2
        v_lshl_add_u32 v6, v6, 3, v5
        v_lshrrev_b32 v12, 3, v0
        v_lshl_add_u32 v14, v12, 11, v5
        v_cmp_eq_u32 vcc, s{sX8}, v12
        v_or_b32 v13, {'s%d' % sLOC if self.o.get('hloc',1) else 0}, v14
        v_cndmask_b32 v46, v14, v13, vcc
        s_cmp_ge_u32 s{sG}, 27
        s_cbranch_scc1 L_A_NOF
        s_lshl_b32 s{s0}, s{sF}, 5
        """)
        self.mk_srd(rA, pW1, s0, 2211840)
        e(f's_mul_i32 s{s0}, s{sF}, 20480')
        self.mk_srd(rB, pW2, s0, 2211840)
        e(f"""
        v_and_b32 v7, 3, v12
        v_lshlrev_b32 v7, 3, v7
        v_lshrrev_b32 v8, 5, v0
        v_lshl_add_u32 v7, v8, 2, v7
        v_bfe_u32 v8, v0, 1, 2
        v_add_u32 v7, v7, v8
        v_mul_u32_u24 v7, 3456, v7
        v_and_b32 v8, 1, v0
        v_lshl_add_u32 v7, v8, 4, v7
        s_and_b32 s78, s{sF}, 3
        s_lshl_b32 s78, s78, 2
        s_add_u32 s78, s78, s{sW}
        """)
        w1f = self.o.get('w1flag', '')
        n1 = self.o.get('w1first', 2)
        def w1dma(k, r):
            if k == 1: e(f's_add_u32 s{sTMP}, s{sW}, 16')
            else:
                if k >= 2: e(f's_add_u32 s78, s78, 4\ns_and_b32 s78, s78, 15')
                e(f's_mov_b32 s{sTMP}, s78')
            e(f's_lshl_b32 s{s0}, s{sTMP}, 10\ns_add_u32 m0, s{s0}, {W1}\ns_mul_i32 s{s0}, s{sTMP}, 110592')
            e(f'buffer_load_dwordx4 v7, {srd(r)}, s{s0} offen {w1f} lds')
        for k in range(n1): w1dma(k, rA)
        e(f"""
        s_mul_i32 s{sB}, s{sW}, 3
        s_cmp_eq_u32 s{sW}, 3
        s_cselect_b32 s{sB}, 8, s{sB}
        s_lshl_b32 s{sB}, s{sB}, 7
        v_lshrrev_b32 v8, 1, v2
        v_lshl_add_u32 v8, v8, 7, v6
        s_cmp_lt_u32 s{sW}, 2
        s_cselect_b32 s{s0}, 32, 0
        v_cmp_gt_u32 vcc, s{s0}, v0
        v_cndmask_b32 v13, v9, v6, vcc
        v_cmp_gt_u32 vcc, 8, v1
        v_cndmask_b32 v12, v9, v8, vcc
        v_cndmask_b32 v13, v9, v13, vcc
        buffer_load_dwordx2 v[16:17], v12, {srd(rC)}, s{sB} offen
        buffer_load_dwordx2 v[18:19], v13, {srd(rC)}, s{sB} offen offset:256
        s_lshl_b32 s{s0}, s{sF}, 5
        """)
        self.mk_srd(rC, pB1, s0, 3456)
        e(f'v_lshlrev_b32 v12, 3, v2\nbuffer_load_dwordx2 v[58:59], v12, {srd(rC)}, 0 offen')
        e(f"""
        s_lshl_b32 s{s0}, s{sW}, 9
        s_add_u32 s{s0}, s{s0}, {HB}
        v_add_u32 v48, s{s0}, v8
        v_add_u32 v12, 256, v48
        v_mov_b32 v13, {DUM}
        v_cmp_gt_u32 vcc, 32, v0
        v_cndmask_b32 v49, v13, v12, vcc
        v_add_u32 v50, s{s0}, v11
        s_cmp_lt_u32 s{sW}, 2
        s_cselect_b32 s{s0}, 0, {OOB}
        v_max_u32 v47, s{s0}, v46
        s_add_u32 s79, s{sB}, {H3B}
        v_lshl_add_u32 v12, v1, 6, v11
        s_mul_i32 s{s0}, s{sW}, 320
        v_add_u32 v13, s{s0}, v12
        s_lshl_b32 s{s2_}, s{sF}, 11
        s_add_u32 s{s2_}, s{s2_}, {SL+S_H4}
        v_add_u32 v12, s{s2_}, v13
        v_cmp_gt_u32 vcc, 5, v1
        v_cndmask_b32 v51, v9, v12, vcc
        v_lshrrev_b32 v13, 8, v13
        v_add_u32 v13, 3, v13
        v_cmp_eq_u32 vcc, s{sX8}, v13
        v_cndmask_b32 v43, v9, v51, vcc
        s_lshl_b32 s{s2_}, s{sB}, 4
        s_add_u32 s{s2_}, s{s2_}, {W1}
        v_lshlrev_b32 v52, 3, v0
        v_add_u32 v52, s{s2_}, v52
        v_lshrrev_b32 v12, 2, v0
        v_mul_u32_u24 v12, 1280, v12
        v_and_b32 v13, 3, v1
        v_lshl_add_u32 v12, v13, 4, v12
        s_add_u32 s{s0}, s{s0}, {W2}
        v_add_u32 v53, s{s0}, v12
        s_lshl_b32 s{s0}, s{sW}, 2
        v_lshrrev_b32 v12, 5, v0
        v_lshlrev_b32 v12, 4, v12
        v_add_u32 v12, s{s0}, v12
        v_add_u32 v54, {ST}, v12
        s_lshl_b32 s{s0}, s{sW}, 6
        v_add_u32 v55, {AP}, v11
        v_add_u32 v45, s{s0}, v55
        v_mov_b32 v44, {ST}
        s_branch L_A_FDONE
        L_A_NOF:
        """)
        sK = sF
        e(f"""
        s_sub_u32 s{sK}, s{sX8}, 3
        s_lshl_b32 s{sK}, s{sK}, 1
        s_and_b32 s{s0}, s{sAi}, 1
        s_add_u32 s{sK}, s{sK}, s{s0}
        s_lshl_b32 s{sB}, s{sK}, 7
        """)
        self.mk_srd(rB, pB2, None, 1280)
        e(f"""
        s_cmp_eq_u32 s{sW}, 0
        s_cselect_b32 s{s1}, 32, 0
        v_cmp_gt_u32 vcc, s{s1}, v0
        v_cndmask_b32 v6, v9, v6, vcc
        v_cmp_gt_u32 vcc, 8, v1
        v_cndmask_b32 v6, v9, v6, vcc
        buffer_load_dwordx2 v[16:17], v6, {srd(rC)}, s{sB} offen
        buffer_load_dwordx2 v[18:19], v6, {srd(rB)}, s{sB} offen
        s_mul_i32 s{s0}, s{sW}, 27
        v_add_u32 v15, s{s0}, v12
        """)
        for i in range(4):
            e(f'v_bfe_u32 v10, v15, 2, 3\nv_cmp_eq_u32 vcc, s{sX8}, v10\nv_cndmask_b32 v{48+i}, v14, v13, vcc')
            if i < 3: e('v_add_u32 v15, 8, v15')
            if i > 0: e(f'v_add_u32 v{48+i}, {16384*i}, v{48+i}')
        e(f"""
        v_cmp_gt_u32 vcc, 3, v12
        v_cndmask_b32 v51, v9, v51, vcc
        s_add_u32 s79, s{sB}, {H3B}
        s_lshl_b32 s{s0}, s{s0}, 11
        s_add_u32 s78, s{sB}, s{s0}
        s_add_u32 s78, s78, {SL+S_H4}
        v_lshlrev_b32 v52, 5, v1
        v_lshl_add_u32 v52, v2, 4, v52
        s_lshl_b32 s{s1}, s{sW}, 8
        s_add_u32 s{s1}, s{s1}, {RED}
        v_add_u32 v52, s{s1}, v52
        v_mov_b32 v13, {DUM}
        v_cmp_gt_u32 vcc, 32, v0
        v_cndmask_b32 v52, v13, v52, vcc
        v_cmp_gt_u32 vcc, 8, v1
        v_cndmask_b32 v52, v13, v52, vcc
        v_cmp_gt_u32 vcc, 16, v0
        v_lshlrev_b32 v12, 3, v0
        v_cndmask_b32 v53, v9, v12, vcc
        v_lshlrev_b32 v54, 4, v1
        v_cmp_eq_u32 vcc, 0, v0
        v_cndmask_b32 v55, v9, v0, vcc
        L_A_FDONE:
        """)
        vMk = 36
        self.ident_masks(vMk, 0xffff, 0xffff0000, 0, 4, 12)
        e(f"""
        v_and_b32 v13, 7, v1
        v_lshl_add_u32 v12, v2, 3, v13
        s_lshl_b32 s{s0}, s{sW}, 5
        v_add_u32 v12, s{s0}, v12
        v_lshlrev_b32 v20, 11, v12
        v_lshrrev_b32 v13, 4, v12
        v_cmp_eq_u32 vcc, s{sX8}, v13
        v_or_b32 v12, {'s%d' % sLOC if self.o.get('recloc',2) else 0}, v20
        v_cndmask_b32 v20, v20, v12, vcc
        v_and_b32 v20, s{sLM}, v20
        v_cmp_gt_u32 vcc, 8, v1
        v_cndmask_b32 v20, v9, v20, vcc
        s_mov_b32 s70, 0x00ff00ff
        s_mov_b32 s71, 0x00ff00ff
        s_lshl_b32 s68, s{sJ}, 9
        s_lshl_b32 s{s0}, s{sHd}, 4
        s_add_u32 s68, s68, s{s0}
        s_add_u32 s68, s68, {REC}
        s_mov_b32 s{s0}, {8*PAD}
        v_mul_lo_u32 v22, s{s0}, v2
        s_mov_b32 s{s0}, {PAD}
        v_mul_lo_u32 v12, s{s0}, v1
        v_add_u32 v12, v12, v22
        v_cmp_gt_u32 vcc, 8, v1
        v_cndmask_b32 v26, v9, v12, vcc
        v_mov_b32 v12, s{sT0}
        v_cndmask_b32 v25, 0, v12, vcc
        v_lshl_add_u32 v22, v1, 4, v22
        s_mul_i32 s69, s{sW}, {32*PAD}
        s_add_u32 s69, s69, {PART}
        s_lshl_b32 s{s0}, s{sJ}, 8
        s_and_b32 s{s1}, s{sHd}, 16
        s_add_u32 s{s1}, s{s1}, s{sHd}
        s_lshl_b32 s{s1}, s{s1}, 2
        s_add_u32 s{s0}, s{s0}, s{s1}
        s_add_u32 s67, s69, s{s0}
        s_add_u32 s67, s67, 32768
        s_lshl_b32 s{s0}, s{sJ}, 13
        s_add_u32 s69, s69, s{s0}
        s_lshr_b32 s{s0}, s{sHd}, 4
        s_lshl_b32 s{s0}, s{s0}, 12
        s_add_u32 s69, s69, s{s0}
        s_and_b32 s{s0}, s{sHd}, 3
        s_lshl_b32 s{s0}, s{s0}, 10
        s_add_u32 s69, s69, s{s0}
        s_bfe_u32 s{s0}, s{sHd}, 0x20002
        s_lshl_b32 s{s0}, s{s0}, 8
        s_add_u32 s69, s69, s{s0}
        v_lshlrev_b32 v12, 4, v1
        v_lshl_add_u32 v12, v2, 3, v12
        s_mul_i32 s{s0}, s{sW}, 320
        s_add_u32 s{s0}, s{s0}, {CL}
        v_add_u32 v12, s{s0}, v12
        v_mov_b32 v13, {DUM}
        v_cmp_gt_u32 vcc, 32, v0
        v_cndmask_b32 v23, v13, v12, vcc
        v_and_b32 v12, 3, v1
        v_mul_u32_u24 v12, 320, v12
        v_add_u32 v12, v12, v11
        v_add_u32 v24, {CL}, v12
        s_lshl_b32 s{s0}, s{sW}, 2
        s_add_u32 s{s0}, s{s0}, {ML}
        v_mov_b32 v12, s{s0}
        v_cmp_gt_u32 vcc, 8, v1
        v_cndmask_b32 v21, v13, v12, vcc
        v_mov_b32 v27, {ML}
        v_add_u32 v56, {WUV}, v60
        v_add_u32 v57, {WUV}, v61
        """)
        e(f's_lshl_b32 s{s0}, s{sJ}, 18\ns_lshl_b32 s{s1}, s{sHd}, 8\ns_add_u32 s{s0}, s{s0}, s{s1}')
        self.mk_srd(rA, pWUV, s0, 4194304)
        e(f"""
        s_and_b32 s{s0}, s{sW}, 1
        s_lshl_b32 s{s0}, s{s0}, 8
        s_lshr_b32 s{s1}, s{sW}, 1
        s_add_u32 s{s0}, s{s0}, s{s1}
        s_lshl_b32 s{s0}, s{s0}, 13
        s_lshl_b32 s{s1}, s{sW}, 10
        """)
        npace = self.o.get('a2_pace', 0)
        gate = self.o.get('gate', 0)
        ntr = self.o.get('trickle', 0)
        def gwait():
            e(f's_lshl_b32 s75, s{sSL}, 7\ns_add_u32 s75, s75, {GATE}\nv_mov_b32 v12, 0\ns_mov_b32 s77, 40')
            e(f'L_A_G:\nbuffer_load_dword v13, v12, {srd(rWS)}, s75 offen sc1\ns_waitcnt vmcnt(0)\nv_readfirstlane_b32 s76, v13\ns_cmp_eq_u32 s76, s{sT1}\ns_cbranch_scc1 L_A_GOK\ns_sub_u32 s77, s77, 1\ns_cbranch_scc0 L_A_G\nL_A_GOK:')
            self.stamp('A.gate')
        for k in range(8):
            if k < npace: e('s_waitcnt vmcnt(0)')
            if gate and k == ntr: gwait()
            e(f's_add_u32 m0, s{s1}, {WUV+k*4096}')
            e(f'buffer_load_dwordx4 v62, {srd(rA)}, s{s0} offen nt lds')
            if k < 7: e(f's_add_u32 s{s0}, s{s0}, 16384')
        e(f's_cmp_ge_u32 s{sG}, 27\ns_cbranch_scc1 L_A_NOW2')
        for k in range(5):
            e(f's_add_u32 m0, s{s1}, {W2+k*4096}\ns_add_u32 s{s0}, s{s1}, {k*4096}')
            e(f'buffer_load_dwordx4 v3, {srd(rB)}, s{s0} offen nt lds')
        e('L_A_NOW2:')
        nwo = self.o.get('wo_help', 0)
        if nwo:
            e(f's_mul_i32 s{s0}, s{sSL}, 40960')
            self.mk_srd(rA, pWO, s0, 5242880)
            e(f's_lshl_b32 s{s2_}, s{sW}, 12\ns_add_u32 m0, s{s2_}, {HELP}')
            for k in range(nwo):
                e(f's_add_u32 s{s0}, s{s1}, {k*4096}')
                e(f'buffer_load_dwordx4 v3, {srd(rA)}, s{s0} offen lds')
        if n1 < 5:
            e(f's_cmp_ge_u32 s{sG}, 27\ns_cbranch_scc1 L_A_NOW1\ns_lshl_b32 s{s0}, s{sF}, 5')
            self.mk_srd(rA, pW1, s0, 2211840)
            for k in range(n1, 5): w1dma(k, rA)
            e('L_A_NOW1:')
        if self.o.get('vw', 0):
            e(f'v_mov_b32 v12, 0\ns_and_b32 s{sTMP}, s69, 0xffe00000\nbuffer_load_dword v13, v12, {srd(rWS)}, s{sTMP} offen')
        e('s_waitcnt vmcnt(0)\ns_barrier')
        self.stamp('A.land')
        for s in range(4):
            for T in range(2):
                for q in range(2): e(f'ds_read_b64_tr_b16 {a((s*2+T)*4+2*q,2)}, v{56+T} offset:{s*8192+q*1024}')
        e(f'buffer_load_dwordx4 v[64:67], v20, {srd(rWS)}, s68 offen sc1')
        vC0, vC1, vB1, vS1 = 192, 196, 200, 204
        for dst,src in [(vC0,16),(vC1,18)]:
            e(f'v_lshlrev_b32 v{dst}, 16, v{src}\nv_and_b32 v{dst+1}, 0xffff0000, v{src}\nv_lshlrev_b32 v{dst+2}, 16, v{src+1}\nv_and_b32 v{dst+3}, 0xffff0000, v{src+1}')
        e('s_waitcnt lgkmcnt(0)')
        self.stamp('A.w2rdy')
        e('L_A_REC:')
        e('s_waitcnt vmcnt(0)')
        self.tagcheck(12, [66])
        e('s_and_b64 vcc, vcc, s[70:71]\ns_cbranch_vccz L_A_RECOK')
        self.fb((20,), ())
        e(f'buffer_load_dwordx4 v[64:67], v20, {srd(rWS)}, s68 offen sc1\ns_branch L_A_REC\nL_A_RECOK:')
        vD = 128; vAF = 160
        if self.stamps and 'A.rec1' in self.o.get('want', []):
            k = len(self.slots['A']); e(f's_waitcnt lgkmcnt(0)\ns_cmp_lg_u32 s{sSTAMP+2*k}, 0\ns_cbranch_scc1 L_R1'); self.stamp('A.rec1'); e('L_R1:')
        dd = self.o.get('ddelay', [0,0])
        if dd[0]: e(f's_sleep {dd[0]}')
        if dd[1]: e(f's_cmp_lt_u32 s{sX8}, 4\ns_cbranch_scc1 L_A_NOD\ns_sleep {dd[1]}\nL_A_NOD:')
        def dloads():
            e(f's_mov_b32 s{sTMP}, s69')
            for i in range(8):
                e(f'buffer_load_dwordx4 {v(vD+4*i,4)}, v22, {srd(rWS)}, s{sTMP} offen sc1')
                if i < 7: e(f's_add_u32 s{sTMP}, s{sTMP}, {PAD}')
            e(f'buffer_load_dword v67, v26, {srd(rWS)}, s67 offen sc1')
        dloads()
        self.stamp('A.rec')
        e('v_mov_b32 v72, v64')
        self.allred('v_max_f32', 72, 74, 3)
        e('v_sub_f32 v64, v64, v72\nv_exp_f32 v64, v64\nv_cvt_pk_bf16_f32 v64, v64, v64\nv_and_b32 v73, 0xffff0000, v64\nv_mul_f32 v73, v73, v65')
        for i in range(8):
            for r in range(4): e(f'v_and_b32_dpp v{vAF+4*i+r}, v64, v{vMk+r} row_newbcast:{i} {DPP}')
        self.allred('v_add_f32', 73, 74, 3)
        e('ds_write2_b32 v21, v72, v73 offset0:0 offset1:4')
        e('L_A_DATA:')
        e('v_sub_u32 v66, 0, v25')
        for i in range(8):
            e(f's_waitcnt vmcnt({8-i})')
            e(f'v_mfma_f32_16x16x32_bf16 v[76:79], {v(vAF+4*i,4)}, {v(vD+4*i,4)}, ' + ('0' if i==0 else 'v[76:79]'))
            e(f'v_add3_u32 v66, v66, v{vD+4*i}, v{vD+4*i+1}\nv_add3_u32 v66, v66, v{vD+4*i+2}, v{vD+4*i+3}')
        e('s_waitcnt vmcnt(0)\nv_add_u32 v66, v66, v67')
        self.stamp('A.data')
        e(f'v_add_u32_dpp v66, v66, v66 quad_perm:[1,0,3,2] {DPP}')
        e(f'v_cvt_pk_bf16_f32 v74, v76, v77\nv_cvt_pk_bf16_f32 v75, v78, v79\nv_add_u32_dpp v66, v66, v66 quad_perm:[2,3,0,1] {DPP}\nds_write_b64 v23, v[74:75]')
        e(f'v_add_u32_dpp v66, v66, v66 row_half_mirror {DPP}\nv_add_u32_dpp v66, v66, v66 row_mirror {DPP}\nv_cmp_ne_u32 vcc, 0, v66\ns_cbranch_vccz L_A_DOK')
        self.timeout()
        if self.stamps: e('s_add_u32 s7, s7, 1')
        dloads()
        e('s_branch L_A_DATA\nL_A_DOK:')
        e('s_waitcnt lgkmcnt(0)\ns_barrier')
        self.stamp('A.clbar')
        e(f'ds_read_b128 v[80:83], v24\nds_read_b128 v[64:67], v27\nds_read_b128 v[84:87], v24 offset:64\nds_read_b128 v[68:71], v27 offset:16\nds_read_b128 v[88:91], v24 offset:128\nds_read_b128 v[92:95], v24 offset:192')
        fac = [[], ['s_waitcnt lgkmcnt(4)', 'v_max3_f32 v72, v64, v65, v66', 'v_max_f32 v72, v72, v67'], ['v_sub_f32 v64, v64, v72', 'v_sub_f32 v65, v65, v72'], ['v_sub_f32 v66, v66, v72', 'v_sub_f32 v67, v67, v72'],
               ['v_exp_f32 v64, v64'], ['v_exp_f32 v65, v65'], ['v_exp_f32 v66, v66'],
               ['v_exp_f32 v67, v67', 'v_mul_f32 v72, v64, v68', 'v_fmac_f32 v72, v65, v69', 'v_fmac_f32 v72, v66, v70', 'v_fmac_f32 v72, v67, v71', 'v_rcp_f32 v72, v72']]
        for s in range(4):
            e(f's_waitcnt lgkmcnt({[5,3,1,0][s]})')
            for T in range(2):
                e(f'v_mfma_f32_16x16x32_bf16 {v(104+4*T,4)}, {v(80+4*s,4)}, {a((s*2+T)*4,4)}, ' + ('0' if s==0 else v(104+4*T,4)))
                for x in fac[2*s+T]: e(x)
        e('v_pk_mul_f32 v[104:105], v[104:105], v[64:65]\nv_pk_mul_f32 v[108:109], v[108:109], v[64:65]')
        e('v_pk_fma_f32 v[104:105], v[106:107], v[66:67], v[104:105]\nv_pk_fma_f32 v[108:109], v[110:111], v[66:67], v[108:109]')
        e('v_add_f32 v104, v104, v105\nv_add_f32 v108, v108, v109\nv_mul_f32 v104, v104, v72\nv_mul_f32 v108, v108, v72')
        e('v_cvt_pk_bf16_f32 v98, v104, v108')
        self.publ('v[98:99]', 102); self.pubg('v[98:99]', 102)
        self.stamp('A.hc')
        if self.o.get('clean', 1):
            e(f'buffer_store_dword v98, v101, {srd(rWS)}, s{sLOC} offen sc1\nbuffer_store_dwordx2 v[98:99], v103, {srd(rWS)}, s{sLOC} offen sc1')
            e(f'buffer_store_dwordx4 v[104:107], v100, {srd(rWS)}, s{sLOC} offen sc1')
        e(f's_cmp_ge_u32 s{sG}, 27\ns_cbranch_scc1 L_FIN')
        e(f'v_mov_b32 v42, v102\nv_and_b32 v12, s{sLOC}, v20\nv_cmp_ne_u32 vcc, 0, v12\nv_cndmask_b32 v41, v9, v20, vcc\ns_mov_b32 s78, s68')
        for s in range(6):
            for q in range(2): e(f'ds_read_b64_tr_b16 {a(32+s*4+2*q,2)}, v52 offset:{s*1024+q*512}')
        for P in range(5):
            for hb in range(2): e(f'ds_read_b64_tr_b16 {a(56+P*4+2*hb,2)}, v53 offset:{P*64+hb*8}')
        e(f'v_lshlrev_b32 v{vB1}, 16, v58\nv_and_b32 v{vB1+1}, 0xffff0000, v58\nv_lshlrev_b32 v{vB1+2}, 16, v59\nv_and_b32 v{vB1+3}, 0xffff0000, v59')
        e(f's_cmp_lt_u32 s{sW}, 2\ns_cselect_b32 s{s0}, 0x3f803f80, 0')
        for r in range(4): e(f'v_mov_b32 v{208+r}, 0x3f803f80\nv_mov_b32 v{212+r}, s{s0}')
        e('s_waitcnt lgkmcnt(10)')
        for s in range(6):
            e(f'v_mfma_f32_16x16x32_bf16 {v(vS1,4)}, {a(32+s*4,4)}, {v(208 if s < 4 else 212,4)}, ' + ('0' if s == 0 else v(vS1,4)))
        e(f'ds_write_b128 v45, {v(vS1,4)}\ns_waitcnt lgkmcnt(0)\ns_barrier')
        for w in range(4): e(f'ds_read_b128 {v(208+4*w,4)}, v55 offset:{64*w}')
        e('s_waitcnt lgkmcnt(0)')
        for i in range(2): e(f'v_pk_add_f32 {v(208+2*i,2)}, {v(208+2*i,2)}, {v(212+2*i,2)}\nv_pk_add_f32 {v(216+2*i,2)}, {v(216+2*i,2)}, {v(220+2*i,2)}')
        for i in range(2): e(f'v_pk_add_f32 {v(vS1+2*i,2)}, {v(208+2*i,2)}, {v(216+2*i,2)}')
        e('s_barrier')
        self.stamp('F.prep')
        for P in range(5):
            e(f's_mov_b32 s{68+2*P}, {0x00010001<<P}\ns_mov_b32 s{69+2*P}, {0x00010001<<P}')
        self.lmask((46,47))
        if self.o.get('fdelay'): e(f's_sleep {self.o["fdelay"]}')
        vH = 64
        e('L_F_POLL:')
        e(f'buffer_load_dwordx4 {v(vH,4)}, v46, {srd(rWS)}, s79 offen sc1')
        e(f'buffer_load_dwordx4 {v(vH+4,4)}, v46, {srd(rWS)}, s79 offen offset:128 sc1')
        e(f'buffer_load_dwordx4 {v(vH+8,4)}, v47, {srd(rWS)}, s79 offen offset:256 sc1')
        e('s_waitcnt vmcnt(0)')
        e(f'v_mfma_f32_16x16x32_bf16 v[76:79], {v(vI,4)}, {v(vH,4)}, {v(vC0,4)}')
        e(f'v_mfma_f32_16x16x32_bf16 v[76:79], {v(vI+4,4)}, {v(vH+4,4)}, v[76:79]')
        e(f'v_mfma_f32_16x16x32_bf16 v[80:83], {v(vI,4)}, {v(vH+8,4)}, {v(vC1,4)}')
        self.maxchain(12, range(vH, vH+12))
        e('v_cmp_eq_u32 vcc, -1, v12')
        self.retry('L_F_POLL', vregs=(46,47), sleep=self.o.get('fsleep',0))
        self.stamp('F.h3b')
        vB = 128
        for r in range(4): e(f'v_add_f32_dpp v{76+r}, v{76+r}, v{76+r} row_ror:8 {DPP}')
        e('v_cvt_pk_bf16_f32 v84, v76, v77\nv_cvt_pk_bf16_f32 v85, v78, v79\nds_write_b64 v48, v[84:85]')
        for s in range(4): e(f'ds_read_b128 {v(vB+4*s,4)}, v50 offset:{s*64}')
        for r in range(4): e(f'v_add_f32_dpp v{80+r}, v{80+r}, v{80+r} row_ror:8 {DPP}')
        e('v_cvt_pk_bf16_f32 v86, v80, v81\nv_cvt_pk_bf16_f32 v87, v82, v83\nds_write_b64 v49, v[86:87]')
        for s in range(4,6): e(f'ds_read_b128 {v(vB+4*s,4)}, v50 offset:{s*64}')
        e('v_pk_add_f32 v[88:89], v[76:77], v[78:79]\nv_pk_mul_f32 v[92:93], v[76:77], v[76:77]\nv_pk_add_f32 v[90:91], v[80:81], v[82:83]\nv_pk_fma_f32 v[92:93], v[78:79], v[78:79], v[92:93]')
        e('v_pk_add_f32 v[88:89], v[88:89], v[90:91]\nv_pk_fma_f32 v[92:93], v[80:81], v[80:81], v[92:93]\nv_pk_fma_f32 v[92:93], v[82:83], v[82:83], v[92:93]')
        st = [['v_add_f32 v88, v88, v89', 'v_add_f32 v92, v92, v93'], ['s_nop 0', 'v_permlane32_swap_b32 v88, v92', 'v_add_f32 v88, v88, v92'], ['v_mov_b32 v92, v88'],
              ['s_nop 0', 'v_permlane16_swap_b32 v88, v92', 'v_add_f32 v88, v88, v92'], ['s_nop 0', f'v_add_f32_dpp v88, v88, v88 quad_perm:[1,0,3,2] {DPP}'],
              [f'v_add_f32_dpp v88, v88, v88 quad_perm:[2,3,0,1] {DPP}', f'v_add_f32_dpp v88, v88, v88 row_half_mirror {DPP}', 'v_mul_f32 v88, 0x3acccccd, v88', 'ds_write_b32 v54, v88']]
        for s in range(6):
            e(f's_waitcnt lgkmcnt({[6,5,4,3,1,0][s]})')
            e(f'v_mfma_f32_16x16x32_bf16 v[96:99], {a(32+s*4,4)}, {v(vB+4*s,4)}, ' + ('0' if s == 0 else 'v[96:99]'))
            for x in st[s]: e(x)
        e('ds_write_b128 v45, v[96:99]\ns_waitcnt lgkmcnt(0)\ns_barrier')
        self.stamp('F.abar')
        e('ds_read_b128 v[100:103], v44\nds_read_b128 v[104:107], v44 offset:16')
        for w in range(4): e(f'ds_read_b128 {v(128+4*w,4)}, v55 offset:{64*w}')
        e(f"""
        s_waitcnt lgkmcnt(4)
        v_pk_add_f32 v[100:101], v[100:101], v[102:103]
        v_pk_add_f32 v[104:105], v[104:105], v[106:107]
        v_add_f32 v100, v100, v101
        v_add_f32 v104, v104, v105
        v_fma_f32 v104, -v100, v100, v104
        v_max_f32 v104, 0, v104
        v_add_f32 v104, 0x3727c5ac, v104
        v_rsq_f32 v104, v104
        s_waitcnt lgkmcnt(0)
        v_pk_fma_f32 v[128:129], {v(vS1,2)}, v[100:101], v[128:129] op_sel_hi:[1,0,1] neg_lo:[0,1,0] neg_hi:[0,1,0]
        v_pk_fma_f32 v[130:131], {v(vS1+2,2)}, v[100:101], v[130:131] op_sel_hi:[1,0,1] neg_lo:[0,1,0] neg_hi:[0,1,0]
        v_pk_add_f32 v[136:137], v[136:137], v[140:141]
        v_pk_add_f32 v[138:139], v[138:139], v[142:143]
        v_pk_add_f32 v[128:129], v[128:129], v[132:133]
        v_pk_add_f32 v[130:131], v[130:131], v[134:135]
        v_pk_add_f32 v[128:129], v[128:129], v[136:137]
        v_pk_add_f32 v[130:131], v[130:131], v[138:139]
        v_pk_fma_f32 v[128:129], v[128:129], v[104:105], {v(vB1,2)} op_sel_hi:[1,0,1]
        v_pk_fma_f32 v[130:131], v[130:131], v[104:105], {v(vB1+2,2)} op_sel_hi:[1,0,1]
        """)
        for r in range(4): e(f'v_max_f32 v{128+r}, 0, v{128+r}')
        e('v_pk_mul_f32 v[128:129], v[128:129], v[128:129]\nv_pk_mul_f32 v[130:131], v[130:131], v[130:131]')
        e('v_cvt_pk_bf16_f32 v108, v128, v129\nv_cvt_pk_bf16_f32 v109, v130, v131')
        self.stamp('F.f1')
        def cm(P): e(f'v_cndmask_b32 v{110+2*P}, 0, v108, s[{68+2*P}:{69+2*P}]\nv_cndmask_b32 v{111+2*P}, 0, v109, s[{68+2*P}:{69+2*P}]')
        cm(0); cm(1)
        for P in range(5):
            for hb in range(2):
                e(f'v_mfma_f32_16x16x16_bf16 {v(120+4*hb,4)}, {a(56+P*4+2*hb,2)}, {v(110+2*P,2)}, ' + ('0' if P == 0 else v(120+4*hb,4)))
                if hb == 0 and P+2 < 5: cm(P+2)
        for i in range(4): e(f'v_cvt_pk_bf16_f32 v{64+i}, v{120+2*i}, v{121+2*i}')
        for i in range(4): e(f'v_min_u32 v{64+i}, -2, v{64+i}')
        self.pubg('v[64:67]', 51)
        if self.o.get('hloc',1): self.publ('v[64:67]', 43)
        self.stamp('F.end')
        if self.o.get('clean', 1) >= 2: e(f'buffer_store_dwordx2 v[64:65], v42, {srd(rWS)}, s{sLOC} offen sc1\nbuffer_store_dwordx4 v[64:67], v41, {srd(rWS)}, s78 offen sc1')
        e('s_branch L_END')
        e('L_FIN:')
        e(f's_and_b32 s{s0}, s{sAi}, 2\ns_cbranch_scc1 L_END')
        self.mk_srd(rA, pOUT, None, 1280)
        if self.o.get('vw', 0): e(f'buffer_load_dword v13, v53, {srd(rA)}, s{sB} offen')
        e(f's_cmp_eq_u32 s{sW}, 0\ns_cselect_b32 s{s1}, -1, 0')
        for r in range(4): e(f'v_and_b32 v{32+r}, s{s1}, v{vI+r}')
        e(f'v_pk_add_f32 {v(vC0,2)}, {v(vC0,2)}, {v(vC1,2)}\nv_pk_add_f32 {v(vC0+2,2)}, {v(vC0+2,2)}, {v(vC1+2,2)}\nv_mov_b32 v45, s{sT0}')
        self.lmask((46,))
        e('L_R_P1:')
        e(f'buffer_load_dwordx4 v[64:67], v46, {srd(rWS)}, s79 offen sc1\ns_waitcnt vmcnt(0)')
        self.maxchain(12, range(64,68))
        e('v_cmp_eq_u32 vcc, -1, v12')
        self.retry('L_R_P1', sleep=1, vregs=(46,))
        self.stamp('R.h3b')
        self.lmask((48,49,50,51))
        e(f'v_mfma_f32_16x16x32_bf16 {v(vC0,4)}, v[32:35], v[64:67], {v(vC0,4)}')
        if self.o.get('rdelay'): e(f's_sleep {self.o["rdelay"]}')
        e('L_R_P2:')
        for i in range(4): e(f'buffer_load_dwordx4 {v(68+4*i,4)}, v{48+i}, {srd(rWS)}, s78 offen sc1')
        e('s_waitcnt vmcnt(0)')
        for i in range(4): e(f'v_mfma_f32_16x16x32_bf16 v[104:107], {v(vI,4)}, {v(68+4*i,4)}, ' + (v(vC0,4) if i == 0 else 'v[104:107]'))
        self.maxchain(12, range(68,84))
        e('v_cmp_eq_u32 vcc, -1, v12')
        self.retry('L_R_P2', vregs=(48,49,50,51), sleep=0)
        self.stamp('R.h4')
        for r in range(4): e(f'v_add_f32_dpp v{104+r}, v{104+r}, v{104+r} row_ror:8 {DPP}')
        e(f'ds_write_b128 v52, v[104:107]\ns_waitcnt lgkmcnt(0)\ns_barrier')
        e(f's_cmp_lg_u32 s{sW}, 0\ns_cbranch_scc1 L_END')
        self.red_final(RED, 128, 54, False)
        e(f'buffer_store_dwordx2 v[128:129], v53, {srd(rA)}, s{sB} offen {self.o.get("outflag","sc1")}')
        e(f's_cmp_lg_u32 s{sK}, 0\ns_cbranch_scc1 L_END2')
        e(f'buffer_store_dword v45, v55, {srd(rWS)}, 0 offen offset:{EPOCH} sc1')
        if 'amp' in self.o:
            self.stamp('R.end')
            k = self.idx[self.o['amp']]; ke = self.idx['R.end']
            e(f's_waitcnt lgkmcnt(0)\ns_sub_u32 s60, s{sSTAMP+2*k}, s{sSTAMP}\ns_lshl_b32 s60, s60, 2\ns_add_u32 s60, s60, s{sSTAMP+2*ke}')
            e('L_AMP:\ns_memrealtime s[62:63]\ns_waitcnt lgkmcnt(0)\ns_sub_u32 s61, s62, s60\ns_cmp_lt_i32 s61, 0\ns_cbranch_scc1 L_AMP')
        e('L_END2:')
        if 'amp' not in self.o: self.stamp('R.end')
        e('s_branch L_END')

    def role_T(self):
        e = self.e
        MX = QB; LX = QB+512; PB = QB+1024
        WO = 0; HB = 65536; EX = 15360
        sT, s0, s1, s2_ = 72, 63, 64, 65
        e('L_T:')
        if self.o.get('noT'): e('s_branch L_END')
        e(f"""
        s_lshl_b32 s{sT}, s{sX8}, 4
        s_add_u32 s{sT}, s{sT}, s{sR}
        """)
        e(f"""
        s_lshl_b32 s{s0}, s{sT}, 9
        s_add_u32 s{s0}, s{s0}, {QP+LOC}
        s_lshl_b32 s{s1}, s{sT}, 11
        s_add_u32 s{s1}, s{s1}, {SL+LOC}
        s_cmp_eq_u32 s{sW}, 2
        s_cselect_b32 s{s0}, s{s1}, s{s0}
        s_lshl_b32 s{s1}, s{sX8}, 9
        s_add_u32 s{s1}, s{s1}, {QCS+LOC}
        s_cmp_eq_u32 s{sW}, 3
        s_cselect_b32 s{s0}, s{s1}, s{s0}
        s_cmp_eq_u32 s{sW}, 0
        s_cselect_b32 s66, {WSSZ}, s{s0}
        v_lshlrev_b32 v12, 7, v0
        v_cmp_gt_u32 vcc, 4, v0
        v_cndmask_b32 v12, v9, v12, vcc
        """)
        if self.o.get('pf', 0) == 1: self.code_prefetch()
        if self.o.get('tw', 0): self.tlb_warm()
        if self.o.get('pf', 0) == 2:
            e(f's_cmp_eq_u32 s{sW}, 0\ns_cbranch_scc1 L_NOPF')
            e(f's_getpc_b64 s[20:21]\nL_PC:\ns_sub_u32 s20, s20, L_PC-{KN}\ns_subb_u32 s21, s21, 0')
            e(f's_mul_i32 s60, s{sR}, 3\ns_add_u32 s60, s60, s{sW}\ns_sub_u32 s60, s60, 1\ns_lshl_b32 s60, s60, 7')
            for i in range(3):
                e(f's_min_u32 s67, s60, L_EXIT-{KN}\ns_load_dword s7, s[20:21], s67')
                if i < 2: e(f's_add_u32 s60, s60, {48*128}')
            e('L_NOPF:')
        nwq = self.o.get('t_wq', 5)
        e(f's_add_u32 s61, s61, {(10-nwq)*4*32768}\ns_lshl_b32 s62, s{sW}, 13\ns_add_u32 s62, s62, {QB}\ns_mov_b32 m0, s62')
        for k in range(nwq):
            e(f'buffer_load_dwordx4 v8, {srd(rA)}, s61 offen nt lds')
            if k < nwq-1: e(f's_add_u32 s61, s61, {4*32768}')
        e(f'buffer_load_dword v255, v12, {srd(rWS)}, s66 offen')
        nuk = self.o.get('t_wuk', 0)
        if nuk:
            self.wuk_setup(sR, rA)
            e(f's_mov_b32 s68, {(8-nuk)*32768}')
            for k in range(8-nuk, 8): self.wuk_dma(k, rA, QB)
        tsh, wsh, istr = self.kmap()
        self.kbase(s0, sT, tsh)
        self.mk_srd(rB, pCKV, s0, 16777216)
        e(f'v_lshl_add_u32 v52, v2, 10, v5\nv_xor_b32 v53, 0x80, v52\ns_lshl_b32 s68, s{sW}, {wsh}\ns_lshl_b32 s69, s{sW}, 13')
        def dma(n):
            c, i = n >> 3, n & 7
            e(f's_add_u32 m0, s69, {c*32768+i*1024}\ns_add_u32 s{sTMP}, s68, {i*istr+c*256}')
            e(f'buffer_load_dwordx4 v{52+(i&1)}, {srd(rB)}, s{sTMP} offen nt lds')
        n0 = 0
        thr = dict(self.o.get('t_throttle', []))
        vm = []
        vKa, vQa, vVa = 24, 28, 32
        vPS, vRS, vMW, vMR, vPW, vPR, vQC, vLR = 40, 41, 42, 43, 44, 45, 46, 47
        vQS = 120
        pre = []
        pre.append(f'v_and_b32 v12, 7, v1\nv_lshlrev_b32 v12, 5, v12\nv_lshlrev_b32 v13, 10, v1\nv_lshlrev_b32 v14, 8, v1\nv_add_u32 v14, s69, v14\nv_add_u32 v13, {QB}, v13')
        for s3 in range(4):
            pre.append(f'v_add_u32 v15, {s3*64}, v11\nv_xor_b32 v15, v15, v12\nv_add_u32 v{vKa+s3}, v14, v15\nv_add_u32 v{vQa+s3}, v13, v15')
        pre.append(f"""
        v_lshrrev_b32 v13, 2, v0
        v_and_b32 v15, 7, v13
        v_lshlrev_b32 v13, 8, v13
        v_and_b32 v12, 3, v1
        v_lshl_add_u32 v13, v12, 3, v13
        s_lshl_b32 s{s2_}, s{sW}, 1
        v_xor_b32 v15, s{s2_}, v15
        v_lshl_add_u32 v{vVa}, v15, 5, v13
        v_xor_b32 v15, 1, v15
        v_lshl_add_u32 v{vVa+1}, v15, 5, v13
        v_add_u32 v{vVa+2}, 0x10000, v{vVa}
        v_add_u32 v{vVa+3}, 0x10000, v{vVa+1}
        v_lshlrev_b32 v12, 13, v2
        v_lshl_add_u32 v12, v1, 4, v12
        """)
        for i in range(8): pre.append(f'v_xor_b32 v{vQS+i}, {(i<<5) + (i&3)*2048}, v12')
        pre.append(f"""
        s_lshl_b32 s{s0}, s{sW}, 10
        s_add_u32 s{s0}, s{s0}, {QCS}
        v_add_u32 v12, s{s0}, v3
        v_lshrrev_b32 v13, 5, v0
        s_lshl_b32 s{s0}, s{sW}, 1
        v_add_u32 v13, s{s0}, v13
        v_cmp_eq_u32 vcc, s{sX8}, v13
        v_or_b32 v13, s{sLOC}, v12
        v_cndmask_b32 v{vQC}, v12, v13, vcc
        v_add_u32 v15, {EX}, v3
        s_lshl_b32 s{s0}, s{sW}, 2
        v_add_u32 v14, s{s0}, v15
        v_mov_b32 v10, v14
        v_mov_b32 v8, v15
        v_lshrrev_b32 v12, 5, v0
        v_and_b32 v13, 1, v0
        v_lshlrev_b32 v13, 1, v13
        v_lshl_add_u32 v12, v12, 2, v13
        v_bfe_u32 v13, v0, 1, 4
        v_and_b32 v14, 7, v13
        v_lshlrev_b32 v14, 3, v14
        v_lshl_add_u32 v13, v13, 6, v14
        v_lshlrev_b32 v14, 5, v12
        v_xor_b32 v13, v13, v14
        v_lshl_add_u32 v13, v12, 10, v13
        v_add_u32 v6, s62, v13
        v_xor_b32 v7, 32, v6
        s_lshl_b32 s76, s{sW}, 16
        s_add_u32 s76, s76, {SL+S_QL}
        s_add_u32 s77, s76, 32768
        s_lshl_b32 s{s0}, s{sW}, 1
        s_cmp_eq_u32 s{s0}, s{sX8}
        s_cselect_b32 s{s1}, {LOC}, 0
        s_add_u32 s76, s76, s{s1}
        s_add_u32 s{s0}, s{s0}, 1
        s_cmp_eq_u32 s{s0}, s{sX8}
        s_cselect_b32 s{s1}, {LOC}, 0
        s_add_u32 s77, s77, s{s1}
        s_mul_i32 s70, s{sT}, {PAD}
        s_add_u32 s70, s70, {PART}
        s_add_u32 s{s2_}, s70, s69
        v_add_u32 v{vPS}, s{s2_}, v3
        s_lshl_b32 s{s0}, s{sW}, 8
        s_add_u32 s70, s70, s{s0}
        s_add_u32 s70, s70, 32768
        s_movk_i32 s66, 0x1000
        s_lshl_b32 s{s2_}, s{sT}, 11
        s_lshl_b32 s{s0}, s{sW}, 9
        s_add_u32 s{s2_}, s{s2_}, s{s0}
        s_add_u32 s{s2_}, s{s2_}, {REC}
        v_and_b32 v13, 1, v1
        v_lshrrev_b32 v12, 2, v0
        v_lshl_add_u32 v12, v13, 4, v12
        v_lshlrev_b32 v12, 4, v12
        v_add_u32 v{vLR}, {MX}, v12
        v_add_u32 v12, s{s2_}, v12
        v_and_b32 v13, 2, v1
        v_cmp_eq_u32 vcc, 0, v13
        v_cndmask_b32 v{vRS}, v9, v12, vcc
        v_bfe_u32 v13, v{vLR}, 6, 3
        v_cmp_eq_u32 vcc, s{sX8}, v13
        v_cndmask_b32 v4, v9, v{vRS}, vcc
        v_and_b32 v13, 3, v1
        v_cmp_eq_u32 vcc, 0, v13
        v_cndmask_b32 v5, v9, v0, vcc
        v_lshrrev_b32 v12, 1, v2
        v_lshl_add_u32 v12, v12, 4, v1
        v_lshlrev_b32 v12, 4, v12
        s_lshl_b32 s{s2_}, s{sW}, 2
        s_add_u32 s{s2_}, s{s2_}, {MX}
        v_add_u32 v{vMW}, s{s2_}, v12
        v_lshlrev_b32 v12, 4, v1
        v_add_u32 v{vMR}, {MX}, v12
        v_add_u32 v22, s{s2_}, v12
        v_mov_b32 v38, 0x3e0293ee
        s_lshl_b32 s{s2_}, s{sW}, 11
        s_add_u32 s{s2_}, s{s2_}, {PB}
        v_add_u32 v{vPW}, s{s2_}, v3
        v_add_u32 v{vPR}, {PB}, v3
        s_lshl_b32 s71, s{sT}, 11
        s_add_u32 s71, s71, {SL+S_H4}
        v_mov_b32 v16, -1
        v_mov_b32 v17, -1
        v_mov_b32 v18, -1
        v_mov_b32 v19, -1
        s_and_b32 s{s0}, s{sW}, 1
        s_mul_i32 s{s0}, s{s0}, 640
        s_add_u32 s71, s71, s{s0}
        s_lshr_b32 s{s0}, s{sW}, 1
        s_lshl_b32 s{s0}, s{s0}, 20
        s_add_u32 s71, s71, s{s0}
        s_cmp_lt_u32 s{sT}, 116
        s_cselect_b32 s{s0}, 40, 0
        s_cmp_lt_u32 s{sW}, {4 if self.o.get('hloc',1) else 2}
        s_cselect_b32 s{s0}, s{s0}, 0
        v_cmp_gt_u32 vcc, s{s0}, v0
        v_cndmask_b32 v20, v9, v3, vcc
        v_lshrrev_b32 v12, 3, v0
        v_lshrrev_b32 v13, 1, v12
        v_and_b32 v14, 1, v12
        v_lshl_add_u32 v13, v14, 4, v13
        v_mul_u32_u24 v13, 1280, v13
        v_and_b32 v14, 7, v0
        v_lshlrev_b32 v14, 4, v14
        v_and_b32 v12, 1, v2
        v_lshlrev_b32 v12, 5, v12
        v_xor_b32 v14, v14, v12
        v_add_u32 v36, v13, v14
        v_xor_b32 v14, 64, v14
        v_add_u32 v37, v13, v14
        s_lshl_b32 s73, s{sX8}, 2
        s_add_u32 s73, s73, s{sW}
        s_mul_i32 s73, s73, 163840
        s_lshl_b32 s{s1}, s{sR}, 7
        s_add_u32 s73, s73, s{s1}
        s_lshl_b32 s74, s{sW}, 14
        """)
        def qloads():
            e(f'buffer_load_dwordx4 v[80:83], v{vQC}, {srd(rWS)}, 0 offen sc1')
            for i in range(8):
                e(f's_add_u32 m0, s62, {i*1024}')
                e(f'buffer_load_dwordx4 v{vQS+i}, {srd(rWS)}, s{76+(i>>2)} offen sc1 lds')
        kdone = set()
        def younger(item): return len(vm) - 1 - vm.index(item)
        def kv(c):
            e(f's_waitcnt vmcnt({younger(("d",8*c+7))})')
            if c == 3: self.stamp('T.ckv')
            if c == 2:
                for s3 in range(4): e(f'v_add_u32 v{vKa+s3}, 0x10000, v{vKa+s3}')
            for s3 in range(4):
                for kt in range(2):
                    e(f'ds_read_b128 {a(((4*c+s3)*2+kt)*4,4)}, v{vKa+s3} offset:{(c&1)*32768+kt*4096}')
            kdone.add(c)
            e('s_barrier')
            for ks in range(4):
                for T2 in range(2):
                    for q in range(2):
                        e(f'ds_read_b64_tr_b16 {a(128+(ks*8+2*c+T2)*4+2*q,2)}, v{vVa+T2+2*(c>>1)} offset:{(c&1)*32768+ks*8192+q*4096}')
        tp = []
        def tprep():
            if tp: return
            tp.append(1)
            e('s_waitcnt lgkmcnt(0)')
            self.tags()
            e(f's_lshl_b32 s79, s{sT}, 7\ns_add_u32 s79, s79, {GATE}\ns_cmp_eq_u32 s{sW}, 0\ns_cselect_b32 s79, s79, {OOB}\nv_mov_b32 v39, s79\nv_mov_b32 v21, s{sT1}')
        qpos = self.o.get('qpos', 32); npre = self.o.get('npre', 2)
        klag = self.o.get('klag', 12)
        for n in range(n0, 33):
            if n == npre:
                for x in pre: e(x)
            if n == npre: e(f's_load_dword s{sE}, s[{pWS}:{pWS+1}], {EPOCH}')
            if n == self.o.get('gpos', -1):
                tprep(); e(f'buffer_store_dword v21, v39, {srd(rWS)}, 0 offen'); vm.append('gate')
            if n == qpos:
                tprep()
                self.stamp('T.qiss')
                qloads(); vm += [('q',i) for i in range(9)]
                if self.o.get('vw', 0):
                    e(f'v_and_b32 v12, 1, v0\nv_lshlrev_b32 v12, 21, v12\ns_mov_b32 s{sTMP}, {PART}\nbuffer_load_dword v13, v12, {srd(rWS)}, s{sTMP} offen'); vm.append('vw')
                self.mk_srd(rA, pWO, 73, 5242880)
                e(f's_cmp_lt_u32 s{sR}, 10\ns_cselect_b32 s{rA+2}, s{rA+2}, 0')
            if n < 32:
                dma(n); vm.append(('d',n))
                if n in thr: e(f's_waitcnt vmcnt({thr[n]})')
            for c in range(3):
                if c not in kdone and n >= npre and ('d',8*c+7) in vm and younger(('d',8*c+7)) >= klag and (c == 0 or c-1 in kdone): kv(c)
        self.stamp('T.issued')
        if self.o.get('gate') == 1:
            e(f'buffer_store_dword v21, v39, {srd(rWS)}, 0 offen'); vm.append('gate')
        if self.o.get('tonly'):
            e('s_waitcnt vmcnt(0)'); self.stamp('T.ckv0'); e('s_branch L_END')
        for c in range(4):
            if c not in kdone: kv(c)
        if self.o.get('gate') == 2:
            e(f'buffer_store_dword v21, v39, {srd(rWS)}, 0 offen'); vm.append('gate')
        e('s_branch L_T_Q1')
        e('L_T_Q0:')
        self.fb((vQC,), (76, 77)); e(f's_sleep {self.o.get("qsleep",1)}')
        qloads()
        e('L_T_Q1:')
        e(f's_waitcnt vmcnt(0)\nds_read_b32 v12, v6\nds_read_b32 v13, v7 offset:1024')
        e(f'v_add_u32 v14, v80, v82\nv_sub_u32 v14, 0, v14\nds_write_b32 v10, v14\nv_xor_b32 v81, s{sT0}, v81\nv_xor_b32 v83, s{sT0}, v83\ns_waitcnt lgkmcnt(0)')
        e('v_xor_b32 v12, v12, v81\nv_xor_b32 v13, v13, v83\nv_or_b32 v12, v12, v13\nv_cmp_ne_u32 vcc, 0, v12\ns_cbranch_vccnz L_T_Q0')
        self.stamp('T.qin')
        if self.o.get('gate') == 3:
            e(f'buffer_store_dword v21, v39, {srd(rWS)}, 0 offen'); vm.append('gate')
        e('s_barrier')
        self.stamp('T.Qbar')
        def wo_ops(i): return [f's_add_u32 m0, s74, {WO+i*1024}', f's_mov_b32 s{sTMP}, {(32*(i>>2)+4*(i&3))*1280}', f'buffer_load_dwordx4 v{36+(i&1)}, {srd(rA)}, s{sTMP} offen {self.o.get("woflag","nt")} lds']
        nwe = self.o.get('wo_early', 6)
        vS = 48; vP = 76; vPF = 88; vAcc = 128; vO = 192
        def qreg(s, ht): return 128 + ht*64 + s*4
        def qread(s, ht): return f'ds_read_b128 {v(qreg(s,ht),4)}, v{vQa+(s&3)} offset:{(s>>2)*256+ht*16384}'
        def qk(s, kt, ht):
            d = v(vS+(kt*2+ht)*4,4)
            return f'v_mfma_f32_16x16x32_bf16 {d}, {a((s*2+kt)*4,4)}, {v(qreg(s,ht),4)}, ' + ('0' if s == 0 else d)
        def pv(ks, T, ht):
            d = v(vAcc+(ht*8+T)*4,4)
            return f'v_mfma_f32_16x16x32_bf16 {d}, {v(vPF+(ks*2+ht)*4,4)}, {a(128+(ks*8+T)*4,4)}, ' + ('0' if ks == 0 else d)
        def ver(s, ht): return f'v_add3_u32 v23, v23, v{qreg(s,ht)}, v{qreg(s,ht)+2}'
        def cost(x): return 2 if x.startswith('v_exp') else (0 if x.startswith('s_') else 1)
        def stream(mf, toks, bg):
            skip = 0
            for m in mf:
                e(m)
                b = 2
                if skip: skip -= 1
                else:
                    while toks:
                        t = toks[0]
                        if isinstance(t, tuple): skip = t[1]; toks.pop(0); break
                        if cost(t) > b: break
                        e(t); b -= cost(t); toks.pop(0)
                while bg and cost(bg[0]) <= b:
                    b -= cost(bg[0]); e(bg.pop(0))
            return toks
        def flush(toks):
            for t in toks:
                if not isinstance(t, tuple): e(t)
        D = 4
        for s in range(D): e(qread(s,0))
        e(f'v_mov_b32 v23, 0\nbuffer_store_dwordx4 v[16:19], v20, {srd(rWS)}, s71 offen sc1')
        rd = [(s,0) for s in range(D,16)] + [(s,1) for s in range(16)]
        issued = D
        wo = [wo_ops(i) for i in range(nwe)]
        for s in range(16):
            e(f's_waitcnt lgkmcnt({min(15, issued-1-s)})')
            if s == 15: e('s_barrier')
            for kt in range(2):
                e(qk(s,kt,0))
                if rd: e(qread(*rd.pop(0))); issued += 1
                if kt == 0: e(ver(s,0))
                elif wo: flush(wo.pop(0))
                if s == 14 and kt == 1: e('ds_read_b128 v[80:83], v8')
        self.stamp('T.QK0')
        def sm(ht):
            r0 = vS+ht*4; r1 = vS+8+ht*4; m = 64; t = 65; M = 66+ht; rb = 72
            a_ = [f'v_max3_f32 v{m}, v{r0}, v{r0+1}, v{r0+2}', f'v_max3_f32 v{t}, v{r1}, v{r1+1}, v{r1+2}', f'v_max3_f32 v{m}, v{m}, v{r0+3}, v{r1+3}', f'v_max_f32 v{m}, v{m}, v{t}',
                  f'v_mov_b32 v{t}, v{m}', ('gap',0), f'v_permlane32_swap_b32 v{m}, v{t}', f'v_max_f32 v{m}, v{m}, v{t}', f'v_mov_b32 v{t}, v{m}', ('gap',0),
                  f'v_permlane16_swap_b32 v{m}, v{t}', f'v_max_f32 v{m}, v{m}, v{t}', f'ds_write_b32 v22, v{m} offset:{ht*256}']
            b_ = ['s_waitcnt lgkmcnt(0)', 's_barrier', f'ds_read_b128 {v(rb,4)}, v{vMR} offset:{ht*256}']
            c_ = ['s_waitcnt lgkmcnt(0)', f'v_max3_f32 v{M}, v{rb}, v{rb+1}, v{rb+2}', f'v_max_f32 v{M}, v{M}, v{rb+3}', f'v_mul_f32 v{M}, v38, v{M}']
            for b in (r0, r1):
                for r in range(4): c_.append(f'v_fma_f32 v{b+r}, v{b+r}, v38, -v{M}')
            for b in (r0, r1):
                for r in range(4): c_.append(f'v_exp_f32 v{b+r}, v{b+r}')
            for k,b in enumerate((r0, r1)):
                c_ += [f'v_cvt_pk_bf16_f32 v{vP+ht*4+k*2}, v{b}, v{b+1}', f'v_cvt_pk_bf16_f32 v{vP+ht*4+k*2+1}, v{b+2}, v{b+3}']
            c_.append(f'ds_write_b128 v{vPW}, {v(vP+ht*4,4)} offset:{ht*1024}')
            d_ = ['s_waitcnt lgkmcnt(0)', 's_barrier'] + [f'ds_read_b128 {v(vPF+(ks*2+ht)*4,4)}, v{vPR} offset:{(ks*2+ht)*1024}' for ks in range(4)]
            return a_, b_, c_, d_
        g1 = self.o.get('g1', 2); g2 = self.o.get('g2', 2)
        a0,b0,c0,d0 = sm(0); a1_,b1,c1,d1 = sm(1)
        e('s_waitcnt lgkmcnt(0)')
        mf = [qk(s,kt,1) for s in range(16) for kt in range(2)]
        bg = [ver(s,1) for s in range(16)] + ['v_add3_u32 v23, v23, v80, v81', 'v_add3_u32 v23, v23, v82, v83']
        left = stream(mf, [('gap',1)] + a0 + [('gap',g1)] + b0 + [('gap',g2)] + c0, bg)
        flush(left)
        self.stamp('T.QK')
        flush(bg)
        A = [x for x in a1_ if not isinstance(x, tuple)]
        R = [f'v_add_u32_dpp v23, v23, v23 {p} {DPP}' for p in ['quad_perm:[1,0,3,2]','quad_perm:[2,3,0,1]','row_half_mirror','row_mirror']]
        R += ['v_mov_b32 v69, v23', 'v_permlane16_swap_b32 v23, v69', 'v_add_u32 v23, v23, v69', 'v_mov_b32 v69, v23', 'v_permlane32_swap_b32 v23, v69', 'v_add_u32 v23, v23, v69', 'v_cmp_ne_u32 vcc, 0, v23']
        flush([R[0], R[1], A[0], A[1], R[2], A[2], A[3], R[3], A[4], R[4], 's_nop 0', A[5], R[5], A[6], R[6], A[7], R[7], 's_nop 0', A[8], A[9], A[10], R[8], R[9], R[10]])
        flush(d0[:2]); e('s_cbranch_vccnz L_T_Q0'); flush(d0[2:] + b1[2:])
        self.stamp('T.Pbar')
        def lsum(ht, dst):
            r0 = vS+ht*4; r1 = vS+8+ht*4
            return [f'v_add_f32 v{r0}, v{r0}, v{r0+1}', f'v_add_f32 v{r0+2}, v{r0+2}, v{r0+3}', f'v_add_f32 v{r1}, v{r1}, v{r1+1}', f'v_add_f32 v{r1+2}, v{r1+2}, v{r1+3}',
                    f'v_add_f32 v{r0}, v{r0}, v{r0+2}', f'v_add_f32 v{r1}, v{r1}, v{r1+2}', f'v_add_f32 v{dst}, v{r0}, v{r1}']
        flush(lsum(0, 70))
        e('s_waitcnt lgkmcnt(4)')
        mf = [pv(ks,T,0) for ks in range(4) for T in range(8)]
        lt = ['v_permlane32_swap_b32 v70, v71','v_add_f32 v70, v70, v71','v_mov_b32 v71, v70', f'ds_read_b128 v[76:79], v{vLR}', 'v_permlane16_swap_b32 v70, v71','v_add_f32 v70, v70, v71',
              f'ds_write_b32 v{vMW}, v70 offset:512']
        left = stream(mf, [('gap',0)] + c1 + lsum(1, 71) + [('gap',0)] + lt + [('gap',self.o.get('g3',1))] + d1 + [f'ds_read_b128 v[72:75], v{vLR} offset:512'], [])
        flush(left)
        self.stamp('T.pv4')
        def outops(ht):
            ops = []
            for r in range(4):
                o = vO + (ht*4+r)*4
                for k in range(4):
                    ops.append(f'v_cvt_pk_bf16_f32 v{o+k}, v{vAcc+(ht*8+2*k)*4+r}, v{vAcc+(ht*8+2*k+1)*4+r}')
                ops.append(f'buffer_store_dwordx4 {v(o,4)}, v{vPS}, {srd(rWS)}, {"s66" if ht else "0"} offen offset:{r*1024} sc1')
            return ops
        e('s_waitcnt lgkmcnt(0)')
        mf = [pv(ks,T,1) for ks in range(4) for T in range(8)]
        cs = self.o.get('cs', 1)
        def csum(ht):
            c = 48 + 4*ht; y = 56 + 2*ht; z = 60 + ht
            ops = []
            for r in range(4):
                o = vO + (ht*4+r)*4
                ops.append([f'v_add3_u32 v{c+r}, v{o}, v{o+1}, v{o+2}', f'v_add_u32 v{c+r}, v{c+r}, v{o+3}'])
            red = [f'v_add_u32_dpp v{y}, v{c}, v{c} row_ror:8 row_mask:0xf bank_mask:0x3', f'v_add_u32_dpp v{y+1}, v{c+1}, v{c+1} row_ror:8 row_mask:0xf bank_mask:0x3',
                   f'v_add_u32_dpp v{y}, v{c+2}, v{c+2} row_ror:8 row_mask:0xf bank_mask:0xc', f'v_add_u32_dpp v{y+1}, v{c+3}, v{c+3} row_ror:8 row_mask:0xf bank_mask:0xc',
                   f'v_add_u32_dpp v{z}, v{y}, v{y} row_shl:4 row_mask:0xf bank_mask:0x5', f'v_add_u32_dpp v{z}, v{y+1}, v{y+1} row_shr:4 row_mask:0xf bank_mask:0xa',
                   f'v_add_u32_dpp v{z}, v{z}, v{z} quad_perm:[1,0,3,2] {DPP}', f'v_add_u32_dpp v{z}, v{z}, v{z} quad_perm:[2,3,0,1] {DPP}']
            return ops, red
        def out_cs(ht):
            if not cs: return outops(ht)
            o = outops(ht); l, red = csum(ht); res = []
            for r in range(4): res += o[5*r:5*r+5] + l[r]
            return res + red + [f'v_sub_u32 v{60+ht}, s{sT0}, v{60+ht}', f'buffer_store_dword v{60+ht}, v5, {srd(rWS)}, s70 offen offset:{128*ht} sc1']
        recv = ['v_max3_f32 v84, v76, v77, v78', 'v_max_f32 v84, v84, v79', 'v_mul_f32 v84, v38, v84', f'v_mov_b32 v86, s{sT0}', f'v_mov_b32 v87, s{sT1}',
                'v_add_f32 v72, v72, v73', 'v_add_f32 v74, v74, v75', 'v_add_f32 v85, v72, v74']
        o0 = out_cs(0)
        rl = self.o.get('recloc', 2)
        rp = self.o.get('recpos', 0)
        def recst(nst): return self.stamptok('T.recw') + [f's_waitcnt vmcnt({nwe+nst})', f'buffer_store_dwordx4 v[84:87], v{vRS}, {srd(rWS)}, 0 offen sc1', ] + ([f'buffer_store_dwordx4 v[84:87], v{vRS if rl == 1 else 4}, {srd(rWS)}, s{sLOC} offen'] if rl else []) + self.stamptok('T.recst')
        if rp <= 4: o0 = o0[:7*rp] + recst(rp) + o0[7*rp:]
        left = stream(mf, recv + o0, [])
        flush(left)
        self.stamp('T.pv8')
        o1 = out_cs(1)
        if rp > 4: o1 = o1[:7*(rp-4)] + recst(rp+1) + o1[7*(rp-4):]
        flush(o1)
        self.stamp('T.PVst')
        self.stamp('T.rec')
        if self.o.get('wb') == 2: e(f's_lshl_b32 s{s0}, s{sW}, 4\ns_or_b32 s{s0}, s{s0}, s{sR}\ns_cmp_lg_u32 s{s0}, 15\ns_cbranch_scc1 L_NOWB\nbuffer_wbl2 sc1\nL_NOWB:')
        e(f's_cmp_ge_u32 s{sR}, 10\ns_cbranch_scc1 L_END')
        for i in range(nwe, 16): flush(wo_ops(i))
        e(f"""
        v_lshrrev_b32 v12, 2, v1
        v_lshl_add_u32 v12, v2, 3, v12
        v_lshlrev_b32 v12, 7, v12
        v_and_b32 v13, 3, v1
        v_lshl_add_u32 v12, v13, 3, v12
        v_lshrrev_b32 v14, 3, v1
        v_and_b32 v15, 1, v2
        v_lshl_or_b32 v14, v15, 1, v14
        v_xor_b32 v14, s{sW}, v14
        v_lshl_add_u32 v24, v14, 5, v12
        v_mul_u32_u24 v13, 320, v13
        v_add_u32 v13, v13, v11
        v_add_u32 v25, {HB}, v13
        v_mul_u32_u24 v12, 320, v2
        v_lshl_add_u32 v12, v1, 3, v12
        s_mul_i32 s{s0}, s{sW}, 1280
        s_add_u32 s{s0}, s{s0}, {HB}
        v_add_u32 v26, s{s0}, v12
        v_lshlrev_b32 v12, 4, v1
        v_lshl_add_u32 v27, v2, 13, v12
        s_lshl_b32 s75, s{sX8}, 4
        s_add_u32 s75, s75, s{sW}
        s_lshl_b32 s75, s75, 11
        s_add_u32 s75, s75, {SL+S_HC+LOC}
        s_and_b32 s75, s75, s{sLM}
        s_lshl_b32 s{s0}, s{sX8}, 11
        s_lshl_b32 s{s1}, s{sR}, 7
        s_add_u32 s{s0}, s{s0}, s{s1}
        s_lshl_b32 s{s1}, s{sW}, 5
        s_add_u32 s{s0}, s{s0}, s{s1}
        s_add_u32 s{s0}, s{s0}, {H3B}
        v_lshlrev_b32 v12, 1, v0
        v_add_u32 v12, s{s0}, v12
        v_cmp_gt_u32 vcc, 16, v0
        v_cndmask_b32 v28, v9, v12, vcc
        s_waitcnt vmcnt(0)
        s_barrier
        """)
        self.stamp('C.land')
        for st_ in range(16):
            for q in range(2): e(f'ds_read_b64_tr_b16 {a(st_*4+2*q,2)}, v24 offset:{WO+st_*4096+q*512}')
        e('L_C_HC:')
        e(f'buffer_load_dwordx4 v[76:79], v27, {srd(rWS)}, s75 offen sc1\nbuffer_load_dwordx4 v[80:83], v27, {srd(rWS)}, s75 offen offset:256 sc1')
        e('s_waitcnt vmcnt(0)')
        e('ds_write2_b32 v26, v76, v78 offset0:0 offset1:1\nds_write2_b32 v26, v80, v82 offset0:32 offset1:33')
        for r in (77,79,81,83): e(f'v_xor_b32 v{r}, s{sT0}, v{r}')
        e('v_or3_b32 v12, v77, v79, v81\nv_or_b32 v12, v12, v83\nv_cmp_ne_u32 vcc, 0, v12')
        self.retry('L_C_HC', sleep=0, sregs=(75,))
        self.stamp('C.hcin')
        e('s_waitcnt lgkmcnt(0)\ns_barrier')
        self.stamp('C.bar')
        NP = 8
        def ar(st_): return f'ds_read_b128 {v(128+4*st_,4)}, v25 offset:{(st_>>2)*1280+(st_&3)*64}'
        for st_ in range(NP): e(ar(st_))
        for st_ in range(16):
            e(f's_waitcnt lgkmcnt({min(NP-1, 15-st_)})')
            e(f'v_mfma_f32_16x16x32_bf16 v[104:107], {v(128+4*st_,4)}, {a(st_*4,4)}, ' + ('0' if st_ == 0 else 'v[104:107]'))
            if st_+NP < 16: e(ar(st_+NP))
        e('v_pk_add_f32 v[104:105], v[104:105], v[106:107]\nv_add_f32 v104, v104, v105\nv_cvt_pk_bf16_f32 v104, v104, v104\nv_min_u32 v104, -2, v104')
        e(f'buffer_store_short v104, v28, {srd(rWS)}, 0 offen sc1')
        if self.o.get('hloc',1): e(f'buffer_store_short v104, v28, {srd(rWS)}, s{sLOC} offen')
        self.stamp('C.h3')
        if self.o.get('wb') == 1: e(f's_or_b32 s{s0}, s{sR}, s{sW}\ns_cbranch_scc1 L_END\nbuffer_wbl2 sc1')

    def epilogue(self):
        e = self.e
        e('L_END:')
        if 'amp2' in self.o:
            k = self.idx[self.o['amp2']]
            e(f's_waitcnt lgkmcnt(0)\ns_cmp_eq_u32 s{sSTAMP+2*k}, 0\ns_cbranch_scc1 L_EXIT')
            if 'ampwg' in self.o: e(f's_cmp_lg_u32 s2, {self.o["ampwg"]}\ns_cbranch_scc1 L_EXIT')
            e(f's_sub_u32 s60, s{sSTAMP+2*k}, s{sSTAMP}\ns_lshl_b32 s60, s60, 3\ns_add_u32 s60, s60, s{sSTAMP}\ns_add_u32 s60, s60, 2000')
            e('L_AMP2:\ns_sleep 4\ns_memrealtime s[62:63]\ns_waitcnt lgkmcnt(0)\ns_sub_u32 s61, s62, s60\ns_cmp_lt_i32 s61, 0\ns_cbranch_scc1 L_AMP2')
        if self.stamps and 'amp' not in self.o and 'amp2' not in self.o:
            e(f's_waitcnt lgkmcnt(0)\ns_lshl_b32 s60, s2, 2\ns_add_u32 s60, s60, s{sW}\ns_lshl_b32 s60, s60, 6\ns_add_u32 s60, s60, {STAMP}\nv_mov_b32 v4, 0')
            for k in range(11): e(f'v_mov_b32 v5, s{sSTAMP+2*k}\nbuffer_store_dword v5, v4, {srd(rWS)}, s60 offen offset:{4*k}')
            e(f'v_mov_b32 v5, s{sTO}\nbuffer_store_dword v5, v4, {srd(rWS)}, s60 offen offset:44\nv_mov_b32 v5, s7\nbuffer_store_dword v5, v4, {srd(rWS)}, s60 offen offset:48')
        e('L_EXIT:')

    def build(self):
        if self.stamps:
            for k in range(1,11): self.e(f's_mov_b32 s{sSTAMP+2*k}, 0')
            self.e('s_mov_b32 s7, 0')
        self.prologue(); self.role_A(); self.role_T(); self.epilogue()
        hdr = open('header.txt').read()
        if self.o.get('noloc'):
            self.e.lines = [l.replace(f', s{sLOC} offen', ', 0 offen sc1') if 'buffer_store' in l else l.replace(f's_mov_b32 s{sLM}, -1', f's_mov_b32 s{sLM}, {(~LOC)&0xffffffff}') for l in self.e.lines]
        return f'''{hdr}; @launch grid=(256,1,1) block=(256,1,1) lds=163840
.amdgcn_target "amdgcn-amd-amdhsa--gfx950"
.text
.globl {KN}
.p2align 8
.type {KN},@function
{KN}:
{self.e.text()}
s_endpgm
.section .rodata,"a"
.p2align 6
.amdhsa_kernel {KN}
  .amdhsa_next_free_vgpr 512
  .amdhsa_next_free_sgpr 102
  .amdhsa_accum_offset 256
  .amdhsa_group_segment_fixed_size 0
  .amdhsa_kernarg_size 112
  .amdhsa_user_sgpr_count 2
  .amdhsa_user_sgpr_kernarg_segment_ptr 1
  .amdhsa_system_sgpr_workgroup_id_x 1
.end_amdhsa_kernel
'''

if __name__ == '__main__':
    import json
    out = sys.argv[1]; stamps = len(sys.argv) > 2 and sys.argv[2] == '1'
    opt = json.loads(sys.argv[3]) if len(sys.argv) > 3 else {}
    open(out,'w').write(G(stamps, opt).build())
```

```python
import sys
sys.path.insert(0,'work')
from dsl import Asm
NAME = 'sequential_preLN__compressed_kv_cla__dense_activation_squared_relu__decode'
KN = NAME + '_kernel'

EPOCH=0; GATE=0x2000; QCS=0x6000; QP=0x8000; HCB=0x18000; QLB=0x28000; CS=0x30000; REC=0x40000; HS=0x80000; H3B=HS+27*16384
PROBE=0xf8000; LOC=0x100000; PART=0x200000; STAMP=0x680000; BIAS=0x10000
WSSZ=0x700000
OOB=0x7ffffff0
NLOC=96
sLM,sLC,sLOC,sTMP = 3,4,5,6
pX,pCKV,pWQ,pWUK,pWUV,pWO,pBX,pW1,pB1,pW2,pB2,pOUT,pDBG,pWS = [8+2*i for i in range(14)]
sW,sX8,sR,sE,sT0,sT1,sTO,sP = 36,37,38,39,40,41,42,43
rWS=44; rA=48; rB=52; rC=56
sSTAMP=80
def srd(r): return f's[{r}:{r+3}]'
def v(n,c=1): return f'v{n}' if c==1 else f'v[{n}:{n+c-1}]'
def a(n,c=1): return f'a{n}' if c==1 else f'a[{n}:{n+c-1}]'
DPP='row_mask:0xf bank_mask:0xf'
QB = 131072
WQ = 69632; XN = 110592

class G:
    def __init__(self, stamps=False, opt=None):
        self.e = Asm(); self.stamps = stamps; self.o = opt or {}
        self.slots = {'A':['start'],'T':['start'],'R':[]}; self.idx = {}; self.tbase = 1
    def stamp(self, name):
        if not self.stamps: return
        role = name.split('.')[0]
        lst = self.slots['A' if role in 'AFR' else 'T']
        want = self.o.get('want')
        if name == 'start': k = 0
        else:
            if want is not None and name not in want: return
            if role == 'R':
                k = self.tbase + len(self.slots['R']); self.slots['R'].append(name)
            else:
                k = len(lst); lst.append(name)
                if role == 'A': self.tbase = len(lst)
            if k > 10: raise Exception('too many stamps '+name)
        self.idx[name] = k
        op = 's_memtime' if self.o.get('cyc') else 's_memrealtime'
        self.e(f'{op} s[{sSTAMP+2*k}:{sSTAMP+2*k+1}]')
        if name in self.o.get('cut', []): self.e('s_branch L_END')
    def stamptok(self, name):
        n = len(self.e.lines); self.stamp(name)
        t = [x.strip() for x in self.e.lines[n:]]
        del self.e.lines[n:]
        if t: self.e.hist.pop()
        return t
    def mk_srd(self, r, ptr, off_sgpr, size):
        e = self.e
        if off_sgpr is None:
            e(f's_mov_b32 s{r}, s{ptr}\ns_and_b32 s{r+1}, s{ptr+1}, 0xffff\ns_mov_b32 s{r+2}, {size}')
        else:
            e(f's_add_u32 s{r}, s{ptr}, s{off_sgpr}\ns_addc_u32 s{r+1}, s{ptr+1}, 0\ns_and_b32 s{r+1}, s{r+1}, 0xffff\ns_sub_u32 s{r+2}, {size}, s{off_sgpr}')
        e(f's_mov_b32 s{r+3}, 0x20000')
    def allred(self, op, x, t, steps16=4):
        e = self.e
        pats = ['quad_perm:[1,0,3,2]','quad_perm:[2,3,0,1]','row_half_mirror','row_mirror'][:steps16]
        for p in pats: e(f'{op}_dpp v{x}, v{x}, v{x} {p} {DPP}')
        e(f'v_mov_b32 v{t}, v{x}\nv_permlane16_swap_b32 v{x}, v{t}\n{op} v{x}, v{x}, v{t}')
        e(f'v_mov_b32 v{t}, v{x}\nv_permlane32_swap_b32 v{x}, v{t}\n{op} v{x}, v{x}, v{t}')
    def timeout(self):
        self.e(f's_sub_u32 s{sTO}, s{sTO}, 1\ns_cmp_eq_u32 s{sTO}, 0\ns_cbranch_scc1 L_END')
    def fb(self, vregs=(), sregs=()):
        e = self.e
        self.timeout()
        e(f's_add_u32 s{sLC}, s{sLC}, 1\ns_cmp_ge_u32 s{sLC}, {NLOC}\ns_cselect_b32 s{sLM}, {(~LOC)&0xffffffff}, s{sLM}')
        self.lmask(vregs, sregs)
    def lmask(self, vregs=(), sregs=()):
        for r in vregs: self.e(f'v_and_b32 v{r}, s{sLM}, v{r}')
        for r in sregs: self.e(f's_and_b32 s{r}, s{r}, s{sLM}')
    def stop(self, data):
        if '[' not in data: return 'buffer_store_dword'
        lo, hi = data[2:-1].split(':'); return f'buffer_store_dwordx{int(hi)-int(lo)+1}'
    def publ(self, data, voff): self.e(f'{self.stop(data)} {data}, v{voff}, {srd(rWS)}, s{sLOC} offen')
    def pubg(self, data, voff): self.e(f'{self.stop(data)} {data}, v{voff}, {srd(rWS)}, 0 offen sc1')
    def pub(self, data, voff): self.pubg(data, voff); self.publ(data, voff)
    def late_pubg(self, data, voff):
        e = self.e; l = e.newlabel('Lnp')
        e(f's_cmp_eq_u32 s{sLM}, -1\ns_cbranch_scc1 {l}'); self.pubg(data, voff); e(f'{l}:')
    def retry(self, label, sleep=1, vregs=(), sregs=(), late=None):
        e = self.e
        ok = e.newlabel('Lok')
        e(f's_cbranch_vccz {ok}')
        self.fb(vregs, sregs)
        if late: self.late_pubg(*late)
        if sleep: e(f's_sleep {sleep}')
        e(f's_branch {label}')
        e(f'{ok}:')
    def maxchain(self, dst, regs):
        e = self.e
        regs = list(regs)
        e(f'v_max3_u32 v{dst}, v{regs[0]}, v{regs[1]}, v{regs[2]}'); regs = regs[3:]
        while len(regs) >= 2:
            e(f'v_max3_u32 v{dst}, v{dst}, v{regs[0]}, v{regs[1]}'); regs = regs[2:]
        if regs: e(f'v_max_u32 v{dst}, v{dst}, v{regs[0]}')
    def tagcheck(self, dst, pairs):
        e = self.e; rs = []
        for r in pairs:
            e(f'v_xor_b32 v{r}, s{sT0}, v{r}\nv_xor_b32 v{r+1}, s{sT1}, v{r+1}'); rs += [r, r+1]
        if len(rs) == 2: e(f'v_or_b32 v{dst}, v{rs[0]}, v{rs[1]}')
        else:
            e(f'v_or3_b32 v{dst}, v{rs[0]}, v{rs[1]}, v{rs[2]}'); rs = rs[3:]
            while len(rs) >= 2: e(f'v_or3_b32 v{dst}, v{dst}, v{rs[0]}, v{rs[1]}'); rs = rs[2:]
            if rs: e(f'v_or_b32 v{dst}, v{dst}, v{rs[0]}')
        e(f'v_cmp_ne_u32 vcc, 0, v{dst}')
    def ident_masks(self, dst, val_lo, val_hi, first, n, t):
        e = self.e
        e(f'v_and_b32 v{t}, 1, v1\nv_cmp_eq_u32 vcc, 1, v{t}\nv_mov_b32 v{t}, {val_lo}\nv_mov_b32 v{t+1}, {val_hi}\nv_cndmask_b32 v{t}, v{t}, v{t+1}, vcc')
        e(f'v_lshrrev_b32 v{t+1}, 1, v1')
        for r in range(n):
            e(f'v_cmp_eq_u32 vcc, {first+r}, v{t+1}\nv_cndmask_b32 v{dst+r}, 0, v{t}, vcc')
    def red_final(self, RED, t, va, clamp):
        e = self.e
        for w in range(4): e(f'ds_read_b128 {v(t+4+4*w,4)}, v{va} offset:{RED+256*w}')
        e('s_waitcnt lgkmcnt(2)')
        for i in range(2): e(f'v_pk_add_f32 {v(t+4+2*i,2)}, {v(t+4+2*i,2)}, {v(t+8+2*i,2)}')
        e('s_waitcnt lgkmcnt(0)')
        for i in range(2): e(f'v_pk_add_f32 {v(t+12+2*i,2)}, {v(t+12+2*i,2)}, {v(t+16+2*i,2)}')
        for i in range(2): e(f'v_pk_add_f32 {v(t+4+2*i,2)}, {v(t+4+2*i,2)}, {v(t+12+2*i,2)}')
        for i in range(2): e(f'v_cvt_pk_bf16_f32 v{t+i}, v{t+4+2*i}, v{t+5+2*i}')
        if clamp:
            for i in range(2): e(f'v_min_u32 v{t+i}, -2, v{t+i}')
    def code_prefetch(self):
        e = self.e
        npl = self.o.get('npl', 3)
        e(f's_getpc_b64 s[20:21]\nL_PC:\ns_sub_u32 s20, s20, L_PC-{KN}\ns_subb_u32 s21, s21, 0')
        e(f's_and_b32 s22, s{sR}, 15\ns_lshl_b32 s22, s22, 2\ns_add_u32 s22, s22, s{sW}\ns_lshl_b32 s22, s22, 7')
        for i in range(npl):
            e(f's_min_u32 s23, s22, L_CODE_END-4-{KN}\ns_load_dword s7, s[20:21], s23')
            if i < npl-1: e(f's_add_u32 s22, s22, 8192')
    def kmap(self):
        k = self.o.get('kil', 0)
        if k == 0: return 17, 15, 4096
        if k == 1: return 12, 22, 1 << 19
        if k == 2: return 12, 19, 1 << 21
        if k == 3: return 14, 12, 1 << 21
        if k == 4: return 15, 22, 4096
        if k == 5: return -12, 19, 1 << 16
        if k == 6: return -12, 16, 1 << 18
        if k == 7: return -14, 12, 1 << 18
        if k == 8: return -15, 19, 4096
        if k == 9: return None, 16, None
    def ioff(self, i, istr): return i*istr if istr else (i>>1)*16384 + (i&1)*4096
    def kbase(self, dst, sidx, tsh):
        if tsh is None:
            self.e(f's_and_b32 s{dst}, s{sidx}, 63\ns_lshl_b32 s{dst}, s{dst}, 18\ns_lshr_b32 s{sTMP}, s{sidx}, 3\ns_lshr_b32 s7, s{sidx}, 6\ns_xor_b32 s{sTMP}, s{sTMP}, s7\ns_xor_b32 s{sTMP}, s{sTMP}, {self.o.get("kpol",0)}\ns_and_b32 s{sTMP}, s{sTMP}, 1\ns_lshl_b32 s{sTMP}, s{sTMP}, 13\ns_add_u32 s{dst}, s{dst}, s{sTMP}\ns_mov_b32 s7, 0')
        elif tsh > 0: self.e(f's_lshl_b32 s{dst}, s{sidx}, {tsh}')
        else: self.e(f's_and_b32 s{dst}, s{sidx}, 15\ns_lshl_b32 s{dst}, s{dst}, {-tsh}\ns_lshl_b32 s{sTMP}, s{sX8}, 21\ns_add_u32 s{dst}, s{dst}, s{sTMP}')
    def pol_ops(self, r, sd):
        ops = [f'v_cmp_eq_u32 vcc, 0, v{r}']
        ops += [f'v_add_u32_dpp v{r}, v{r}, v{r} {p} {DPP}' for p in ['quad_perm:[1,0,3,2]','quad_perm:[2,3,0,1]','row_half_mirror']]
        ops += [f'v_readlane_b32 s{sd+g}, v{r}, {8*g}' for g in range(3)]
        for g in range(3):
            ops += [f's_cmp_lt_u32 s{sd+g}, {8*BIAS}', f's_cselect_b32 s{sd+g}, 8192, 0']
            if 'force' in self.o: ops.append(f's_mov_b32 s{sd+g}, {8192*((self.o["force"]+g)&1)}')
        return ops
    def tags(self):
        self.e(f's_add_u32 s{sT0}, s{sE}, 0x9e3779b9\ns_xor_b32 s{sT1}, s{sT0}, 0x5bd1e995')

    def prologue(self):
        e = self.e
        self.stamp('start')
        e(f"""
        s_load_dwordx16 s[8:23], s[0:1], 0
        s_cmp_ge_u32 s2, 256
        s_cbranch_scc1 L_EXIT
        v_lshrrev_b32 v1, 6, v0
        v_and_b32 v0, 63, v0
        v_readfirstlane_b32 s{sW}, v1
        v_and_b32 v1, 15, v0
        v_lshrrev_b32 v2, 4, v0
        v_lshlrev_b32 v4, 2, v0
        s_and_b32 s{sX8}, s2, 7
        s_lshr_b32 s{sR}, s2, 3
        v_lshlrev_b32 v5, 4, v1
        v_lshlrev_b32 v6, 5, v2
        v_xor_b32 v5, v5, v6
        v_lshl_add_u32 v6, v2, 13, v5
        s_lshr_b32 s67, s{sW}, 1
        s_lshl_b32 s67, s67, 7
        v_xor_b32 v8, s67, v6
        s_bfe_u32 s60, s{sR}, 0x20002
        s_mul_i32 s60, s60, {160*8192}
        s_and_b32 s63, s{sR}, 3
        s_lshl2_add_u32 s63, s{sX8}, s63
        s_lshl_b32 s63, s63, 8
        s_add_u32 s60, s60, s63
        s_lshl_b32 s61, s{sW}, 15
        s_lshl_b32 s62, s{sW}, 10
        s_mov_b32 s{rA+3}, 0x20000
        s_mov_b32 s{rC+3}, s{rA+3}
        s_sub_u32 s{rA+2}, 5242880, s60
        s_cmp_lt_u32 s{sR}, 16
        s_cselect_b32 s{rC+2}, 0, 1280
        s_cselect_b32 s64, {5*4*32768}, 0
        s_cselect_b32 s65, {QB-WQ}, 0
        s_add_u32 s61, s61, s64
        s_add_u32 s62, s62, s65
        s_add_u32 s62, s62, {WQ}
        s_waitcnt lgkmcnt(0)
        s_load_dwordx4 s[32:35], s[0:1], 96
        s_load_dwordx8 s[24:31], s[0:1], 64
        s_mov_b32 s{rC}, s{pX}
        s_and_b32 s{rC+1}, s{pX+1}, 0xffff
        s_add_u32 s{rA}, s{pWQ}, s60
        s_addc_u32 s{rA+1}, s{pWQ+1}, 0
        s_and_b32 s{rA+1}, s{rA+1}, 0xffff
        """)
        self.x_issue()
        for k in range(5): self.wq_dma(k)
        e(f"""
        v_lshlrev_b32 v3, 4, v0
        v_mov_b32 v9, {OOB}
        v_lshlrev_b32 v11, 4, v2
        s_mov_b32 s{sTO}, 400000
        s_mov_b32 s{sLM}, -1
        s_mov_b32 s{sLC}, 0
        s_mov_b32 s{sLOC}, {LOC}
        s_mov_b32 s{rWS+2}, {WSSZ}
        s_mov_b32 s{rWS+3}, 0x20000
        s_cmp_lt_u32 s{sR}, 16
        s_cbranch_scc1 L_T
        """)
    def ws_srd(self):
        self.e(f's_waitcnt lgkmcnt(0)\ns_mov_b32 s{rWS}, s{pWS}\ns_and_b32 s{rWS+1}, s{pWS+1}, 0xffff')
    def x_issue(self):
        for kk in range(5): self.e(f'buffer_load_dword v{20+kk}, v4, {srd(rC)}, 0 offen offset:{256*kk} {self.o.get("xflag","")}')
    def wq_dma(self, k):
        e = self.e
        e(f's_add_u32 m0, s62, {k*4096}')
        e(f'buffer_load_dwordx4 v8, {srd(rA)}, s61 offen nt lds')
        if k < 9: e(f's_add_u32 s61, s61, {4*32768}')
    def wuk_setup(self, sAi, srdreg):
        e = self.e
        e(f'''
        s_lshl_b32 s63, s{sX8}, 2
        s_add_u32 s64, s63, s{sW}
        s_lshl_b32 s64, s64, 8
        s_lshl_b32 s65, s{sAi}, 18
        s_add_u32 s64, s64, s65
        ''')
        self.mk_srd(srdreg, pWUK, 64, 4194304)
        e(f'v_xor_b32 v7, 0x80, v6\ns_mov_b32 s68, 0\ns_lshl_b32 s69, s{sW}, 13')
    def wuk_dma(self, k, srdreg, base):
        e = self.e
        e(f's_add_u32 m0, s69, {base+k*1024}')
        e(f'buffer_load_dwordx4 v{6 if ((k>>1)&1)==0 else 7}, {srd(srdreg)}, s68 offen nt lds')
        if k < 7: e(f's_add_u32 s68, s68, 32768')
    def a1(self, role, y_x, y_wq, mid):
        e = self.e
        s0, s1 = 63, 64
        e(f'''
        v_lshrrev_b32 v12, 2, v1
        v_lshl_add_u32 v13, v2, 3, v12
        v_lshlrev_b32 v13, 8, v13
        v_and_b32 v14, 3, v1
        v_lshl_add_u32 v13, v14, 3, v13
        v_and_b32 v15, 1, v2
        v_lshl_or_b32 v15, v15, 2, v12
        s_lshl_b32 s{s0}, s{sW}, 1
        v_xor_b32 v15, s{s0}, v15
        v_lshl_add_u32 v60, v15, 5, v13
        v_xor_b32 v15, 1, v15
        v_lshl_add_u32 v61, v15, 5, v13
        v_add_u32 v56, {WQ}, v60
        v_add_u32 v57, {WQ}, v61
        ''')
        e(f'''
        v_lshl_add_u32 v12, v1, 6, v11
        s_and_b32 s{s0}, s{sR}, 3
        s_lshl_b32 s{s1}, s{sX8}, 2
        s_add_u32 s{s0}, s{s0}, s{s1}
        s_lshl_b32 s{s0}, s{s0}, 2
        s_bfe_u32 s{s1}, s{sR}, 0x20002
        s_add_u32 s{s0}, s{s0}, s{s1}
        s_lshl_b32 s{s0}, s{s0}, 9
        s_lshl_b32 s{s1}, s{sW}, 7
        s_add_u32 s{s0}, s{s0}, s{s1}
        s_add_u32 s{s0}, s{s0}, {QP}
        v_add_u32 v12, s{s0}, v12
        v_cmp_gt_u32 vcc, 2, v1
        v_cndmask_b32 v62, v9, v12, vcc
        v_cmp_eq_u32 s[70:71], 1, v1
        s_mul_i32 s{s0}, s{sW}, 1280
        s_add_u32 s{s0}, s{s0}, {XN}
        v_add_u32 v10, s{s0}, v4
        s_bfe_u32 s{s1}, s{sR}, 0x20002
        s_mul_i32 s{s1}, s{s1}, 320
        s_add_u32 s{s0}, s{s0}, s{s1}
        v_add_u32 v12, s{s0}, v11
        s_waitcnt vmcnt({y_x}) lgkmcnt(0)
        ''')
        self.stamp(role+'.x')
        for k in range(5): e(f'v_lshlrev_b32 v{26+2*k}, 16, v{20+k}\nv_and_b32 v{27+2*k}, 0xffff0000, v{20+k}')
        e('v_pk_add_f32 v[36:37], v[26:27], v[28:29]\nv_pk_add_f32 v[38:39], v[30:31], v[32:33]\nv_pk_add_f32 v[36:37], v[36:37], v[34:35]\nv_pk_add_f32 v[36:37], v[36:37], v[38:39]\nv_add_f32 v36, v36, v37')
        self.allred('v_add_f32', 36, 37)
        e('v_mul_f32 v36, 0xbacccccd, v36\nv_mov_b32 v37, v36')
        for k in range(26,36,2): e(f'v_pk_add_f32 {v(k,2)}, {v(k,2)}, v[36:37]')
        e('v_pk_mul_f32 v[36:37], v[26:27], v[26:27]')
        for k in range(28,36,2): e(f'v_pk_fma_f32 v[36:37], {v(k,2)}, {v(k,2)}, v[36:37]')
        e('v_add_f32 v36, v36, v37')
        self.allred('v_add_f32', 36, 37)
        e('v_mul_f32 v36, 0x3acccccd, v36\nv_add_f32 v36, 0x3727c5ac, v36\nv_rsq_f32 v36, v36\nv_mov_b32 v37, v36')
        for k in range(26,36,2): e(f'v_pk_mul_f32 {v(k,2)}, {v(k,2)}, v[36:37]')
        for k in range(5): e(f'v_cvt_pk_bf16_f32 v{20+k}, v{26+2*k}, v{27+2*k}\nds_write_b32 v10, v{20+k} offset:{256*k}')
        e('s_waitcnt lgkmcnt(0)')
        for s in range(5): e(f'ds_read_b128 {v(36+4*s,4)}, v12 offset:{s*64}')
        e(f's_load_dword s{sE}, s[{pWS}:{pWS+1}], {EPOCH}')
        self.stamp(role+'.ln')
        mid()
        e(f's_waitcnt vmcnt({y_wq}) lgkmcnt(0)\ns_barrier')
        self.stamp(role+'.wq')
        vW = 128
        for s in range(5):
            for T in range(2):
                for q in range(2): e(f'ds_read_b64_tr_b16 {v(vW+(s*2+T)*4+2*q,2)}, v{56+T} offset:{s*8192+q*1024}')
        self.tags()
        e(f'v_mov_b32 v18, s{sT0}\nv_mov_b32 v19, s{sT1}')
        for s in range(5):
            for T in range(2):
                e(f's_waitcnt lgkmcnt({min(15,18-(s*2+T)*2)})')
                e(f'v_mfma_f32_16x16x32_bf16 {v(84+4*T,4)}, {v(vW+(s*2+T)*4,4)}, {v(36+4*s,4)}, ' + ('0' if s==0 else v(84+4*T,4)))
        for i in range(4): e(f'v_cvt_pk_bf16_f32 v{92+i}, v{84+2*i}, v{85+2*i}')
        e('v_cndmask_b32 v16, v92, v94, s[70:71]\nv_cndmask_b32 v17, v93, v95, s[70:71]')
        self.publ('v[16:19]', 62)
        self.stamp(role+'.qp')


    def role_A(self):
        e = self.e
        QV=0; CL=1024; ML=2304; RED=2560; DUM=3584; WUK=4096; WUV=36864
        W1=69632; W2=W1+20480; HB=4096; AP=HB+2048; ST=AP+256; HELP=135168
        sAi,sHd,sJ,s0,s1,s2_,sSL = 72,73,74,63,64,65,66
        sF,sG = 60,61
        if self.o.get('noA'): e('s_branch L_EXIT')
        order = self.o.get('a_order', 'qqqqq|uuuuuuuu')
        cnt = {'q':5,'u':0}
        def issue(ch):
            if ch == 'q': self.wq_dma(cnt['q'])
            else:
                if cnt['u'] == 0: self.wuk_setup(sAi, rB)
                self.wuk_dma(cnt['u'], rB, WUK)
            cnt[ch] += 1
        e(f's_sub_u32 s{sAi}, s{sR}, 16')
        o1, o2 = order.split('|')
        for ch in o1: issue(ch)
        self.ws_srd()
        e(f"""
        s_lshl_b32 s63, s{sX8}, 2
        s_and_b32 s{sHd}, s{sAi}, 3
        s_add_u32 s{sHd}, s{sHd}, s63
        s_lshr_b32 s{sJ}, s{sAi}, 2
        s_lshl_b32 s{sSL}, s{sX8}, 4
        s_add_u32 s{sSL}, s{sSL}, s{sAi}
        """)
        def mid():
            for ch in o2: issue(ch)
        full = o1 + o2
        self.a1('A', 5+len(o1), len(full)-1-full.rindex('q'), mid)
        e(f"""
        s_lshl2_add_u32 s{s0}, s{sX8}, s{sW}
        s_lshl4_add_u32 s{s0}, s{s0}, s{sAi}
        s_lshl_b32 s{s0}, s{s0}, 6
        s_add_u32 s{s0}, s{s0}, {QLB}
        v_add_u32 v12, s{s0}, v4
        s_lshl2_add_u32 s{s1}, s{sSL}, s{sW}
        s_lshl_b32 s{s0}, s{s1}, 7
        s_add_u32 s{s0}, s{s0}, {HCB}
        v_lshlrev_b32 v13, 3, v0
        v_add_u32 v13, s{s0}, v13
        s_lshl_b32 s{s0}, s{s1}, 3
        s_add_u32 s{s0}, s{s0}, {QCS}
        v_mov_b32 v14, s{s0}
        s_and_b32 s{s1}, s{sAi}, 7
        s_lshl_b32 s{s1}, s{s1}, 1
        v_cmp_eq_u32 vcc, s{s1}, v0
        v_cndmask_b32 v103, v9, v14, vcc
        v_cmp_gt_u32 vcc, 16, v0
        v_cndmask_b32 v101, v9, v12, vcc
        v_cndmask_b32 v102, v9, v13, vcc
        v_mov_b32 v99, s{sT0}
        """)
        e(f"""
        v_lshlrev_b32 v27, 9, v2
        v_lshl_add_u32 v27, v1, 4, v27
        s_lshl_b32 s{s2_}, s{sX8}, 2
        s_add_u32 s{s2_}, s{s2_}, s{sW}
        s_lshl_b32 s{s2_}, s{s2_}, 11
        s_add_u32 s{s2_}, s{s2_}, {QP+LOC}
        v_lshlrev_b32 v12, 9, v1
        s_lshl_b32 s{s0}, s{sW}, 13
        s_add_u32 s{s0}, s{s0}, {WUK}
        v_add_u32 v12, s{s0}, v12
        v_and_b32 v13, 1, v1
        v_and_b32 v14, 4, v1
        v_lshl_or_b32 v13, v13, 1, v14
        v_lshlrev_b32 v13, 5, v13
        """)
        def h0loads():
            for i in range(2): e(f'buffer_load_dwordx4 {v(64+4*i,4)}, v27, {srd(rWS)}, s{s2_} offen offset:{i*256} sc1')
        for s in range(4):
            e(f'v_add_u32 v14, {s*64}, v11\nv_xor_b32 v14, v14, v13\nv_add_u32 v{40+2*s}, v14, v12\nv_xor_b32 v14, 32, v14\nv_add_u32 v{41+2*s}, v14, v12')
        vI = 28
        self.ident_masks(vI, 0x3f80, 0x3f800000, 0, 8, 12)
        e(f"""
        s_lshl_b32 s{s0}, s{sW}, 8
        v_lshlrev_b32 v12, 3, v0
        v_add_u32 v12, s{s0}, v12
        v_mov_b32 v13, {DUM}
        v_cmp_gt_u32 vcc, 32, v0
        v_cndmask_b32 v24, v13, v12, vcc
        v_add_u32 v25, s{s0}, v11
        """)
        e(f's_waitcnt vmcnt({1+self.o.get("h0lead",3)})')
        h0loads()
        e('s_waitcnt vmcnt(3)')
        self.stamp('A.wuk')
        vU = 112
        for s in range(4):
            for T in range(2): e(f'ds_read_b128 {v(vU+(s*2+T)*4,4)}, v{40+2*s+T} offset:{T*256}')
        e('L_A_H0:')
        e('s_waitcnt vmcnt(0)')
        for i in range(2):
            e(f'v_mfma_f32_16x16x16_bf16 v[80:83], {v(vI+2*i,2)}, {v(64+4*i,2)}, ' + ('0' if i==0 else 'v[80:83]'))
        self.tagcheck(12, [66,70])
        e('s_cbranch_vccz L_A_H0OK')
        self.fb((), (s2_,)); self.late_pubg('v[16:19]', 62)
        h0loads()
        e('s_branch L_A_H0')
        e('L_A_H0OK:')
        self.stamp('A.h0')
        e(f'v_cvt_pk_bf16_f32 v84, v80, v81\nv_cvt_pk_bf16_f32 v85, v82, v83\nds_write_b64 v24, v[84:85] offset:{QV}')
        for s in range(4): e(f'ds_read_b128 {v(144+4*s,4)}, v25 offset:{QV+s*64}')
        for s in range(4):
            e(f's_waitcnt lgkmcnt({3-s})')
            for T in range(2):
                e(f'v_mfma_f32_16x16x32_bf16 {v(104+4*T,4)}, {v(144+4*s,4)}, {v(vU+(s*2+T)*4,4)}, ' + ('0' if s==0 else v(104+4*T,4)))
        e('v_cvt_pk_bf16_f32 v64, v104, v108')
        self.pub('v64', 101)
        e(f'v_add_u32_dpp v96, v64, v64 quad_perm:[2,3,0,1] {DPP}\nv_xor_b32 v97, s{sT0}, v64\nv_add_u32_dpp v96, v96, v96 row_ror:4 {DPP}\nv_add_u32_dpp v96, v96, v96 row_ror:8 {DPP}')
        self.pub('v[96:97]', 103)
        self.stamp('A.ql')
        self.pubg('v[16:19]', 62)
        e('s_branch L_A2\n;SEG A2\nL_A2:')
        if self.o.get('pf', 0) == 3:
            e(f's_getpc_b64 s[20:21]\nL_PC:\ns_sub_u32 s20, s20, L_PC-{KN}\ns_subb_u32 s21, s21, 0')
            e(f's_lshl_b32 s{s0}, s{sW}, 13\nv_lshlrev_b32 v12, 7, v0\nv_add_u32 v12, s{s0}, v12\nv_min_u32 v12, L_CODE_END-4-{KN}, v12')
            e(f's_and_b32 s{s0}, s{sAi}, 3\ns_cmp_lg_u32 s{s0}, 0\ns_cbranch_scc1 L_NOPF\nglobal_load_dword v255, v12, s[20:21]\nL_NOPF:')
        e('s_barrier')
        nh = self.o.get('a_help', 0)
        if nh:
            tsh, wsh, istr = self.kmap()
            self.kbase(s0, sSL, tsh)
            self.mk_srd(rA, pCKV, s0, 16777216)
            e(f'v_lshlrev_b32 v12, 10, v2\nv_lshl_add_u32 v12, v1, 4, v12\ns_lshl_b32 s68, s{sW}, {wsh}\ns_lshl_b32 s69, s{sW}, 12\ns_add_u32 m0, s69, {HELP}')
            for n in range(32-nh, 32):
                c, i = n >> 3, n & 7
                e(f's_add_u32 s{sTMP}, s68, {self.ioff(i,istr)+c*256}')
                e(f'buffer_load_dwordx4 v12, {srd(rA)}, s{sTMP} offen {self.o.get("helpflag","nt")} lds')
        e(f"""
        v_lshrrev_b32 v12, 1, v2
        v_lshl_add_u32 v62, v12, 20, v5
        v_and_b32 v12, 1, v2
        v_lshl_add_u32 v62, v12, 17, v62
        v_xor_b32 v62, s67, v62
        s_lshl_b32 s{sG}, s{sJ}, 3
        s_add_u32 s{sG}, s{sG}, s{sX8}
        s_and_b32 s{sF}, s{sAi}, 3
        s_lshl_b32 s{s2_}, s{sG}, 2
        s_add_u32 s{sF}, s{sF}, s{s2_}
        """)
        sB = 62
        e(f"""
        v_and_b32 v5, 7, v1
        v_lshlrev_b32 v5, 4, v5
        v_and_b32 v6, 1, v2
        v_lshl_add_u32 v6, v6, 3, v5
        v_lshrrev_b32 v12, 3, v0
        v_and_b32 v13, 3, v12
        v_lshl_add_u32 v14, v13, 11, v5
        v_lshrrev_b32 v13, 5, v0
        v_lshl_add_u32 v14, v13, 14, v14
        v_cmp_eq_u32 vcc, s{sX8}, v12
        v_or_b32 v13, s{sLOC}, v14
        s_lshr_b32 s77, s{sX8}, 2
        s_lshl_b32 s77, s77, 13
        v_cndmask_b32 v46, v14, v13, vcc
        v_mov_b32 v15, 8192
        v_cndmask_b32 v40, v15, 0, vcc
        s_cmp_ge_u32 s{sG}, 27
        s_cbranch_scc1 L_A_NOF
        s_lshl_b32 s{s0}, s{sF}, 5
        """)
        self.mk_srd(rA, pW1, s0, 2211840)
        e(f's_mul_i32 s{s0}, s{sF}, 20480')
        self.mk_srd(rB, pW2, s0, 2211840)
        e(f"""
        v_and_b32 v7, 3, v12
        v_lshlrev_b32 v7, 3, v7
        v_lshrrev_b32 v8, 5, v0
        v_lshl_add_u32 v7, v8, 2, v7
        v_bfe_u32 v8, v0, 1, 2
        v_add_u32 v7, v7, v8
        v_mul_u32_u24 v7, 3456, v7
        v_and_b32 v8, 1, v0
        v_lshl_add_u32 v7, v8, 4, v7
        s_and_b32 s78, s{sF}, 3
        s_lshl_b32 s78, s78, 2
        s_add_u32 s78, s78, s{sW}
        """)
        w1f = self.o.get('w1flag', '')
        n1 = self.o.get('w1first', 2)
        def w1dma(k, r):
            if k == 1: e(f's_add_u32 s{sTMP}, s{sW}, 16')
            else:
                if k >= 2: e(f's_add_u32 s78, s78, 4\ns_and_b32 s78, s78, 15')
                e(f's_mov_b32 s{sTMP}, s78')
            e(f's_lshl_b32 s{s0}, s{sTMP}, 10\ns_add_u32 m0, s{s0}, {W1}\ns_mul_i32 s{s0}, s{sTMP}, 110592')
            e(f'buffer_load_dwordx4 v7, {srd(r)}, s{s0} offen {w1f} lds')
        for k in range(n1): w1dma(k, rA)
        e(f"""
        s_mul_i32 s{sB}, s{sW}, 3
        s_cmp_eq_u32 s{sW}, 3
        s_cselect_b32 s{sB}, 8, s{sB}
        s_lshl_b32 s{sB}, s{sB}, 7
        v_lshrrev_b32 v8, 1, v2
        v_lshl_add_u32 v8, v8, 7, v6
        s_cmp_lt_u32 s{sW}, 2
        s_cselect_b32 s{s0}, 32, 0
        v_cmp_gt_u32 vcc, s{s0}, v0
        v_cndmask_b32 v13, v9, v6, vcc
        v_cmp_gt_u32 vcc, 8, v1
        v_cndmask_b32 v12, v9, v8, vcc
        v_cndmask_b32 v13, v9, v13, vcc
        buffer_load_dwordx2 v[16:17], v12, {srd(rC)}, s{sB} offen
        buffer_load_dwordx2 v[18:19], v13, {srd(rC)}, s{sB} offen offset:256
        s_lshl_b32 s{s0}, s{sF}, 5
        """)
        self.mk_srd(rC, pB1, s0, 3456)
        e(f'v_lshlrev_b32 v12, 3, v2\nbuffer_load_dwordx2 v[58:59], v12, {srd(rC)}, 0 offen')
        e(f"""
        s_lshl_b32 s{s0}, s{sW}, 9
        s_add_u32 s{s0}, s{s0}, {HB}
        v_add_u32 v48, s{s0}, v8
        v_add_u32 v12, 256, v48
        v_mov_b32 v13, {DUM}
        v_cmp_gt_u32 vcc, 32, v0
        v_cndmask_b32 v49, v13, v12, vcc
        v_add_u32 v50, s{s0}, v11
        s_cmp_lt_u32 s{sW}, 2
        s_cselect_b32 s{s0}, 0, {OOB}
        v_max_u32 v47, s{s0}, v46
        s_add_u32 s79, s{sB}, {H3B}
        v_lshl_add_u32 v12, v1, 6, v11
        s_mul_i32 s{s0}, s{sW}, 320
        v_add_u32 v13, s{s0}, v12
        s_and_b32 s{s2_}, s{sF}, 3
        s_lshl3_add_u32 s{s2_}, s{sG}, s{s2_}
        s_lshl_b32 s{s2_}, s{s2_}, 11
        s_add_u32 s{s2_}, s{s2_}, {HS+8192}
        v_add_u32 v12, s{s2_}, v13
        v_cmp_gt_u32 vcc, 5, v1
        v_cndmask_b32 v51, v9, v12, vcc
        v_bfe_u32 v13, v13, 7, 2
        v_add_u32 v13, 4, v13
        v_cmp_eq_u32 vcc, s{sX8}, v13
        v_cndmask_b32 v43, v9, v51, vcc
        s_and_b32 s{s0}, s{sW}, 1
        s_mul_i32 s{s0}, s{s0}, 640
        s_add_u32 s{s2_}, s{s2_}, s{s0}
        s_lshr_b32 s{s0}, s{sW}, 1
        s_lshl_b32 s{s0}, s{s0}, 20
        s_add_u32 s{s2_}, s{s2_}, s{s0}
        v_add_u32 v12, s{s2_}, v3
        v_cmp_gt_u32 vcc, 40, v0
        v_cndmask_b32 v41, v9, v12, vcc
        s_lshl_b32 s{s2_}, s{sB}, 4
        s_add_u32 s{s2_}, s{s2_}, {W1}
        v_lshlrev_b32 v52, 3, v0
        v_add_u32 v52, s{s2_}, v52
        v_lshrrev_b32 v12, 2, v0
        v_mul_u32_u24 v12, 1280, v12
        v_and_b32 v13, 3, v1
        v_lshl_add_u32 v12, v13, 4, v12
        v_add_u32 v53, {W2}, v12
        s_lshl_b32 s{s0}, s{sW}, 2
        v_lshrrev_b32 v12, 5, v0
        v_lshlrev_b32 v12, 4, v12
        v_add_u32 v12, s{s0}, v12
        v_add_u32 v54, {ST}, v12
        s_lshl_b32 s{s0}, s{sW}, 6
        v_add_u32 v55, {AP}, v11
        v_add_u32 v45, s{s0}, v55
        v_mov_b32 v44, {ST}
        s_branch L_A_FDONE
        L_A_NOF:
        """)
        sK = sF
        e(f"""
        s_and_b32 s{s0}, s{sAi}, 3
        s_and_b32 s{sK}, s{sX8}, 3
        s_lshl2_add_u32 s{sK}, s{s0}, s{sK}
        s_cmp_lt_u32 s{sX8}, 4
        s_cselect_b32 s{sK}, 15, s{sK}
        s_lshl_b32 s{sB}, s{sK}, 7
        """)
        self.mk_srd(rB, pB2, None, 1280)
        e(f"""
        s_cmp_eq_u32 s{sW}, 0
        s_cselect_b32 s{s1}, 32, 0
        v_cmp_gt_u32 vcc, s{s1}, v0
        v_cndmask_b32 v6, v9, v6, vcc
        v_cmp_gt_u32 vcc, 8, v1
        v_cndmask_b32 v6, v9, v6, vcc
        buffer_load_dwordx2 v[16:17], v6, {srd(rC)}, s{sB} offen
        buffer_load_dwordx2 v[18:19], v6, {srd(rB)}, s{sB} offen
        s_mul_i32 s{s0}, s{sW}, 28
        v_add_u32 v15, s{s0}, v12
        """)
        for i in range(4):
            e(f'v_bfe_u32 v10, v15, 2, 3\nv_cmp_eq_u32 vcc, s{sX8}, v10\nv_cndmask_b32 v{48+i}, v14, v13, vcc')
            if i < 3: e('v_add_u32 v15, 8, v15')
            if i > 0: e(f'v_add_u32 v{48+i}, {32768*i}, v{48+i}')
        e(f"""
        s_cmp_lt_u32 s{sW}, 3
        s_cselect_b32 s{s1}, 4, 0
        v_cmp_gt_u32 vcc, s{s1}, v12
        v_cndmask_b32 v51, v9, v51, vcc
        s_add_u32 s79, s{sB}, {H3B}
        v_mov_b32 v47, v46
        v_mov_b32 v43, v9
        v_mov_b32 v41, v9
        s_lshl_b32 s{s0}, s{s0}, 12
        s_add_u32 s78, s{sB}, s{s0}
        s_add_u32 s78, s78, {HS+8192}
        v_lshlrev_b32 v52, 5, v1
        v_lshl_add_u32 v52, v2, 4, v52
        s_lshl_b32 s{s1}, s{sW}, 8
        s_add_u32 s{s1}, s{s1}, {RED}
        v_add_u32 v52, s{s1}, v52
        v_mov_b32 v13, {DUM}
        v_cmp_gt_u32 vcc, 32, v0
        v_cndmask_b32 v52, v13, v52, vcc
        v_cmp_gt_u32 vcc, 8, v1
        v_cndmask_b32 v52, v13, v52, vcc
        v_cmp_gt_u32 vcc, 16, v0
        v_lshlrev_b32 v12, 3, v0
        v_cndmask_b32 v53, v9, v12, vcc
        v_lshlrev_b32 v54, 4, v1
        v_cmp_eq_u32 vcc, 0, v0
        v_cndmask_b32 v55, v9, v0, vcc
        L_A_FDONE:
        """)
        vMk = 36
        self.ident_masks(vMk, 0xffff, 0xffff0000, 0, 4, 12)
        e(f"""
        s_lshl_b32 s{s0}, s{sW}, 2
        v_add_u32 v12, s{s0}, v2
        v_lshlrev_b32 v20, 10, v1
        v_lshl_add_u32 v20, v12, 14, v20
        v_lshrrev_b32 v13, 1, v12
        v_cmp_eq_u32 vcc, s{sX8}, v13
        v_or_b32 v12, s{sLOC}, v20
        v_cndmask_b32 v20, v20, v12, vcc
        v_and_b32 v20, s{sLM}, v20
        v_lshl_add_u32 v12, v2, 3, v1
        v_lshlrev_b32 v12, 8, v12
        v_mov_b32 v13, s{sT0}
        v_cmp_gt_u32 vcc, 8, v1
        v_cndmask_b32 v20, v9, v20, vcc
        v_cndmask_b32 v26, v9, v12, vcc
        v_cndmask_b32 v25, 0, v13, vcc
        s_mov_b32 s70, 0x00ff00ff
        s_mov_b32 s71, 0x00ff00ff
        s_and_b32 s{s1}, s{sHd}, 15
        s_lshl4_add_u32 s68, s{sJ}, s{s1}
        s_lshl_b32 s67, s68, 2
        s_lshl_b32 s68, s68, 4
        s_add_u32 s68, s68, s77
        s_add_u32 s68, s68, {REC}
        s_add_u32 s67, s67, s77
        s_lshl_b32 s{s1}, s{sW}, 14
        s_add_u32 s67, s67, s{s1}
        s_add_u32 s67, s67, {CS}
        v_lshlrev_b32 v22, 18, v2
        v_lshl_add_u32 v22, v1, 4, v22
        s_lshl_b32 s{s0}, s{sW}, 20
        s_add_u32 s69, s77, s{s0}
        s_add_u32 s69, s69, {PART}
        s_lshr_b32 s{s0}, s{sJ}, 1
        s_lshl_b32 s{s0}, s{s0}, 14
        s_add_u32 s69, s69, s{s0}
        s_and_b32 s{s0}, s{sJ}, 1
        s_lshl_b32 s{s0}, s{s0}, 12
        s_add_u32 s69, s69, s{s0}
        s_and_b32 s{s0}, s{sHd}, 3
        s_lshl_b32 s{s0}, s{s0}, 10
        s_add_u32 s69, s69, s{s0}
        s_bfe_u32 s{s0}, s{sHd}, 0x20002
        s_lshl_b32 s{s0}, s{s0}, 8
        s_add_u32 s69, s69, s{s0}
        v_lshlrev_b32 v12, 4, v1
        v_lshl_add_u32 v12, v2, 3, v12
        s_mul_i32 s{s0}, s{sW}, 320
        s_add_u32 s{s0}, s{s0}, {CL}
        v_add_u32 v12, s{s0}, v12
        v_mov_b32 v13, {DUM}
        v_cmp_gt_u32 vcc, 32, v0
        v_cndmask_b32 v23, v13, v12, vcc
        v_and_b32 v12, 3, v1
        v_mul_u32_u24 v12, 320, v12
        v_add_u32 v12, v12, v11
        v_add_u32 v24, {CL}, v12
        s_lshl_b32 s{s0}, s{sW}, 2
        s_add_u32 s{s0}, s{s0}, {ML}
        v_mov_b32 v12, s{s0}
        v_cmp_gt_u32 vcc, 8, v1
        v_cndmask_b32 v21, v13, v12, vcc
        v_mov_b32 v27, {ML}
        v_add_u32 v56, {WUV}, v60
        v_add_u32 v57, {WUV}, v61
        """)
        e(f's_lshl_b32 s{s0}, s{sJ}, 18\ns_lshl_b32 s{s1}, s{sHd}, 8\ns_add_u32 s{s0}, s{s0}, s{s1}')
        self.mk_srd(rA, pWUV, s0, 4194304)
        e(f"""
        s_and_b32 s{s0}, s{sW}, 1
        s_lshl_b32 s{s0}, s{s0}, 8
        s_lshr_b32 s{s1}, s{sW}, 1
        s_add_u32 s{s0}, s{s0}, s{s1}
        s_lshl_b32 s{s0}, s{s0}, 13
        s_lshl_b32 s{s1}, s{sW}, 10
        """)
        npace = self.o.get('a2_pace', 0)
        gate = self.o.get('gate', 0)
        ntr = self.o.get('trickle', 0)
        def gwait():
            e(f's_lshl_b32 s75, s{sSL}, 7\ns_add_u32 s75, s75, {GATE}\nv_mov_b32 v12, 0\ns_mov_b32 s8, 40')
            e(f'L_A_G:\nbuffer_load_dword v13, v12, {srd(rWS)}, s75 offen sc1\ns_waitcnt vmcnt(0)\nv_readfirstlane_b32 s76, v13\ns_cmp_eq_u32 s76, s{sT1}\ns_cbranch_scc1 L_A_GOK\ns_sub_u32 s8, s8, 1\ns_cbranch_scc0 L_A_G\nL_A_GOK:')
            self.stamp('A.gate')
        for k in range(8):
            if k < npace: e('s_waitcnt vmcnt(0)')
            if gate and k == ntr: gwait()
            e(f's_add_u32 m0, s{s1}, {WUV+k*4096}')
            e(f'buffer_load_dwordx4 v62, {srd(rA)}, s{s0} offen nt lds')
            if k < 7: e(f's_add_u32 s{s0}, s{s0}, 16384')
        late = self.o.get('late', 0)
        def w2dma():
            e(f's_lshl_b32 s{s0}, s{sW}, 2\nv_add_u32 v12, s{s0}, v2')
            for k in range(5):
                e(f'v_add_u32 v13, {16*k}, v12\nv_mul_u32_u24 v13, 205, v13\nv_bfe_u32 v13, v13, 10, 2\nv_lshlrev_b32 v13, 6, v13\nv_xor_b32 v13, v13, v3')
                e(f's_add_u32 m0, s{s1}, {W2+k*4096}\ns_add_u32 s{s0}, s{s1}, {k*4096}')
                e(f'buffer_load_dwordx4 v13, {srd(rB)}, s{s0} offen nt lds')
        if not late & 1:
            e(f's_cmp_ge_u32 s{sG}, 27\ns_cbranch_scc1 L_A_NOW2')
            w2dma()
            e('L_A_NOW2:')
        nwo = self.o.get('wo_help', 0)
        if nwo:
            e(f's_mul_i32 s{s0}, s{sSL}, 40960')
            self.mk_srd(rA, pWO, s0, 5242880)
            e(f's_lshl_b32 s{s2_}, s{sW}, 12\ns_add_u32 m0, s{s2_}, {HELP}')
            for k in range(nwo):
                e(f's_add_u32 s{s0}, s{s1}, {k*4096}')
                e(f'buffer_load_dwordx4 v3, {srd(rA)}, s{s0} offen {self.o.get("wohflag","")} lds')
        if n1 < 5 and not late & 2:
            e(f's_cmp_ge_u32 s{sG}, 27\ns_cbranch_scc1 L_A_NOW1\ns_lshl_b32 s{s0}, s{sF}, 5')
            self.mk_srd(rA, pW1, s0, 2211840)
            for k in range(n1, 5): w1dma(k, rA)
            e('L_A_NOW1:')
        e('v_min_u32 v14, 92, v4')
        e(f'L_A_POL:\nglobal_load_dword v15, v14, s[{pDBG}:{pDBG+1}] sc1\ns_waitcnt vmcnt(0)')
        for x in self.pol_ops(15, 8): e(x)
        e('s_cbranch_vccz L_A_POLOK'); self.timeout(); e('s_branch L_A_POL\nL_A_POLOK:')
        e(f"""
        s_cmp_lt_u32 s{sW}, 2
        s_cselect_b32 s9, s9, s10
        s_xor_b32 s69, s69, s9
        s_xor_b32 s68, s68, s8
        s_xor_b32 s67, s67, s8
        s_xor_b32 s77, s77, s8
        v_and_b32 v40, s77, v40
        v_xor_b32 v46, v46, v40
        v_xor_b32 v47, v47, v40
        v_xor_b32 v43, s8, v43
        v_xor_b32 v41, s8, v41
        s_cmp_ge_u32 s{sG}, 27
        s_cselect_b32 s9, s8, 0
        s_cselect_b32 s10, 0, s8
        s_xor_b32 s78, s78, s9
        v_xor_b32 v51, s10, v51
        v_mov_b32 v12, -1
        v_mov_b32 v13, -1
        v_mov_b32 v14, -1
        v_mov_b32 v15, -1
        buffer_store_dwordx4 v[12:15], v41, {srd(rWS)}, 0 offen sc1
        """)
        e('s_branch L_A3\n;SEG A3\nL_A3:')
        e('s_barrier')
        self.stamp('A.land')
        for s in range(4):
            for T in range(2):
                for q in range(2): e(f'ds_read_b64_tr_b16 {a((s*2+T)*4+2*q,2)}, v{56+T} offset:{s*8192+q*1024}')
        e(f'buffer_load_dwordx4 v[64:67], v20, {srd(rWS)}, s68 offen sc1')
        vC0, vC1, vB1, vS1 = 192, 196, 200, 204
        for dst,src in [(vC0,16),(vC1,18)]:
            e(f'v_lshlrev_b32 v{dst}, 16, v{src}\nv_and_b32 v{dst+1}, 0xffff0000, v{src}\nv_lshlrev_b32 v{dst+2}, 16, v{src+1}\nv_and_b32 v{dst+3}, 0xffff0000, v{src+1}')
        e('s_waitcnt lgkmcnt(0)')
        self.stamp('A.w2rdy')
        e('L_A_REC:')
        e('s_waitcnt vmcnt(0)')
        self.tagcheck(12, [66])
        e('s_and_b64 vcc, vcc, s[70:71]\ns_cbranch_vccz L_A_RECOK')
        self.fb((20,), ())
        e(f'buffer_load_dwordx4 v[64:67], v20, {srd(rWS)}, s68 offen sc1\ns_branch L_A_REC\nL_A_RECOK:')
        vD = 128; vAF = 160
        if self.stamps and 'A.rec1' in self.o.get('want', []):
            k = len(self.slots['A']); e(f's_waitcnt lgkmcnt(0)\ns_cmp_lg_u32 s{sSTAMP+2*k}, 0\ns_cbranch_scc1 L_R1'); self.stamp('A.rec1'); e('L_R1:')
        if self.o.get('recbar'): e('s_barrier')
        dd = self.o.get('ddelay', [0,0])
        if dd[0]: e(f's_sleep {dd[0]}')
        if dd[1]: e(f's_cmp_lt_u32 s{sX8}, 4\ns_cbranch_scc1 L_A_NOD\ns_sleep {dd[1]}\nL_A_NOD:')
        def dloads():
            e(f's_mov_b32 s{sTMP}, s69')
            for i in range(8):
                e(f'buffer_load_dwordx4 {v(vD+4*i,4)}, v22, {srd(rWS)}, s{sTMP} offen sc1')
                if i < 7: e(f's_add_u32 s{sTMP}, s{sTMP}, 32768')
            e(f'buffer_load_dword v67, v26, {srd(rWS)}, s67 offen sc1')
        dloads()
        self.stamp('A.rec')
        e('v_mov_b32 v72, v64')
        self.allred('v_max_f32', 72, 74, 3)
        e('v_sub_f32 v64, v64, v72\nv_exp_f32 v64, v64\nv_cvt_pk_bf16_f32 v64, v64, v64\nv_and_b32 v73, 0xffff0000, v64\nv_mul_f32 v73, v73, v65')
        for i in range(8):
            for r in range(4): e(f'v_and_b32_dpp v{vAF+4*i+r}, v64, v{vMk+r} row_newbcast:{i} {DPP}')
        self.allred('v_add_f32', 73, 74, 3)
        e('ds_write2_b32 v21, v72, v73 offset0:0 offset1:4')
        e('L_A_DATA:')
        e('v_sub_u32 v66, 0, v25')
        for i in range(8):
            e(f's_waitcnt vmcnt({8-i})')
            e(f'v_mfma_f32_16x16x32_bf16 v[76:79], {v(vAF+4*i,4)}, {v(vD+4*i,4)}, ' + ('0' if i==0 else 'v[76:79]'))
            e(f'v_add3_u32 v66, v66, v{vD+4*i}, v{vD+4*i+1}\nv_add3_u32 v66, v66, v{vD+4*i+2}, v{vD+4*i+3}')
        e('s_waitcnt vmcnt(0)\nv_add_u32 v66, v66, v67')
        self.stamp('A.data')
        e(f'v_add_u32_dpp v66, v66, v66 quad_perm:[1,0,3,2] {DPP}')
        e(f'v_cvt_pk_bf16_f32 v74, v76, v77\nv_cvt_pk_bf16_f32 v75, v78, v79\nv_add_u32_dpp v66, v66, v66 quad_perm:[2,3,0,1] {DPP}\nds_write_b64 v23, v[74:75]')
        e(f'v_add_u32_dpp v66, v66, v66 row_half_mirror {DPP}\nv_add_u32_dpp v66, v66, v66 row_mirror {DPP}\nv_cmp_ne_u32 vcc, 0, v66\ns_cbranch_vccz L_A_DOK')
        self.timeout()
        if self.stamps: e('s_add_u32 s7, s7, 1')
        e('s_mov_b64 exec, vcc')
        dloads()
        e('s_mov_b64 exec, -1\ns_branch L_A_DATA\nL_A_DOK:')
        e('s_waitcnt lgkmcnt(0)\ns_barrier')
        self.stamp('A.clbar')
        e(f'ds_read_b128 v[80:83], v24\nds_read_b128 v[64:67], v27\nds_read_b128 v[84:87], v24 offset:64\nds_read_b128 v[68:71], v27 offset:16\nds_read_b128 v[88:91], v24 offset:128\nds_read_b128 v[92:95], v24 offset:192')
        fac = [[], ['s_waitcnt lgkmcnt(4)', 'v_max3_f32 v72, v64, v65, v66', 'v_max_f32 v72, v72, v67'], ['v_sub_f32 v64, v64, v72', 'v_sub_f32 v65, v65, v72'], ['v_sub_f32 v66, v66, v72', 'v_sub_f32 v67, v67, v72'],
               ['v_exp_f32 v64, v64'], ['v_exp_f32 v65, v65'], ['v_exp_f32 v66, v66'],
               ['v_exp_f32 v67, v67', 'v_mul_f32 v72, v64, v68', 'v_fmac_f32 v72, v65, v69', 'v_fmac_f32 v72, v66, v70', 'v_fmac_f32 v72, v67, v71', 'v_rcp_f32 v72, v72']]
        for s in range(4):
            e(f's_waitcnt lgkmcnt({[5,3,1,0][s]})')
            for T in range(2):
                e(f'v_mfma_f32_16x16x32_bf16 {v(104+4*T,4)}, {v(80+4*s,4)}, {a((s*2+T)*4,4)}, ' + ('0' if s==0 else v(104+4*T,4)))
                for x in fac[2*s+T]: e(x)
        e('v_pk_mul_f32 v[104:105], v[104:105], v[64:65]\nv_pk_mul_f32 v[108:109], v[108:109], v[64:65]')
        e('v_pk_fma_f32 v[104:105], v[106:107], v[66:67], v[104:105]\nv_pk_fma_f32 v[108:109], v[110:111], v[66:67], v[108:109]')
        e('v_add_f32 v104, v104, v105\nv_add_f32 v108, v108, v109\nv_mul_f32 v104, v104, v72\nv_mul_f32 v108, v108, v72')
        e('v_cvt_pk_bf16_f32 v98, v104, v108')
        self.publ('v[98:99]', 102); self.pubg('v[98:99]', 102)
        self.stamp('A.hc')
        e(f's_cmp_ge_u32 s{sG}, 27\ns_cbranch_scc1 L_FIN')
        if late:
            e(f's_lshl_b32 s{s1}, s{sW}, 10')
            if late & 1: w2dma()
            if late & 2 and n1 < 5:
                e(f's_lshl_b32 s{s0}, s{sF}, 5')
                self.mk_srd(rA, pW1, s0, 2211840)
                for k in range(n1, 5): w1dma(k, rA)
            e('s_waitcnt vmcnt(0)\ns_barrier')
            self.stamp('F.land')
        for s in range(6):
            for q in range(2): e(f'ds_read_b64_tr_b16 {a(32+s*4+2*q,2)}, v52 offset:{s*1024+q*512}')
        e(f'v_lshrrev_b32 v12, 2, v1\nv_lshlrev_b32 v12, 6, v12\ns_mul_i32 s{s0}, s{sW}, 320')
        for P in range(5):
            e(f'v_xor_b32 v13, s{s0}, v12\nv_add_u32 v13, v13, v53')
            for hb in range(2): e(f'ds_read_b64_tr_b16 {a(56+P*4+2*hb,2)}, v13 offset:{hb*8}')
            if P < 4: e(f's_add_u32 s{s0}, s{s0}, 64')
        e(f'v_lshlrev_b32 v{vB1}, 16, v58\nv_and_b32 v{vB1+1}, 0xffff0000, v58\nv_lshlrev_b32 v{vB1+2}, 16, v59\nv_and_b32 v{vB1+3}, 0xffff0000, v59')
        e(f's_cmp_lt_u32 s{sW}, 2\ns_cselect_b32 s{s0}, 0x3f803f80, 0')
        for r in range(4): e(f'v_mov_b32 v{208+r}, 0x3f803f80\nv_mov_b32 v{212+r}, s{s0}')
        e('s_waitcnt lgkmcnt(10)')
        for s in range(6):
            e(f'v_mfma_f32_16x16x32_bf16 {v(vS1,4)}, {a(32+s*4,4)}, {v(208 if s < 4 else 212,4)}, ' + ('0' if s == 0 else v(vS1,4)))
        e(f'ds_write_b128 v45, {v(vS1,4)}\ns_waitcnt lgkmcnt(0)\ns_barrier')
        for w in range(4): e(f'ds_read_b128 {v(208+4*w,4)}, v55 offset:{64*w}')
        e('s_waitcnt lgkmcnt(0)')
        for i in range(2): e(f'v_pk_add_f32 {v(208+2*i,2)}, {v(208+2*i,2)}, {v(212+2*i,2)}\nv_pk_add_f32 {v(216+2*i,2)}, {v(216+2*i,2)}, {v(220+2*i,2)}')
        for i in range(2): e(f'v_pk_add_f32 {v(vS1+2*i,2)}, {v(208+2*i,2)}, {v(216+2*i,2)}')
        e('s_barrier')
        self.stamp('F.prep')
        for P in range(5):
            e(f's_mov_b32 s{68+2*P}, {0x00010001<<P}\ns_mov_b32 s{69+2*P}, {0x00010001<<P}')
        self.lmask((46,47))
        if self.o.get('fdelay'): e(f's_sleep {self.o["fdelay"]}')
        vH = 64
        e('L_F_POLL:')
        e(f'buffer_load_dwordx4 {v(vH,4)}, v46, {srd(rWS)}, s79 offen sc1')
        e(f'buffer_load_dwordx4 {v(vH+4,4)}, v46, {srd(rWS)}, s79 offen offset:128 sc1')
        e(f'buffer_load_dwordx4 {v(vH+8,4)}, v47, {srd(rWS)}, s79 offen offset:256 sc1')
        e('s_waitcnt vmcnt(0)')
        e(f'v_mfma_f32_16x16x32_bf16 v[76:79], {v(vI,4)}, {v(vH,4)}, {v(vC0,4)}')
        e(f'v_mfma_f32_16x16x32_bf16 v[76:79], {v(vI+4,4)}, {v(vH+4,4)}, v[76:79]')
        e(f'v_mfma_f32_16x16x32_bf16 v[80:83], {v(vI,4)}, {v(vH+8,4)}, {v(vC1,4)}')
        self.maxchain(12, range(vH, vH+12))
        e('v_cmp_eq_u32 vcc, -1, v12')
        self.retry('L_F_POLL', vregs=(46,47), sleep=self.o.get('fsleep',0))
        self.stamp('F.h3b')
        vB = 128
        for r in range(4): e(f'v_add_f32_dpp v{76+r}, v{76+r}, v{76+r} row_ror:8 {DPP}')
        e('v_cvt_pk_bf16_f32 v84, v76, v77\nv_cvt_pk_bf16_f32 v85, v78, v79\nds_write_b64 v48, v[84:85]')
        for s in range(4): e(f'ds_read_b128 {v(vB+4*s,4)}, v50 offset:{s*64}')
        for r in range(4): e(f'v_add_f32_dpp v{80+r}, v{80+r}, v{80+r} row_ror:8 {DPP}')
        e('v_cvt_pk_bf16_f32 v86, v80, v81\nv_cvt_pk_bf16_f32 v87, v82, v83\nds_write_b64 v49, v[86:87]')
        for s in range(4,6): e(f'ds_read_b128 {v(vB+4*s,4)}, v50 offset:{s*64}')
        e('v_pk_add_f32 v[88:89], v[76:77], v[78:79]\nv_pk_mul_f32 v[92:93], v[76:77], v[76:77]\nv_pk_add_f32 v[90:91], v[80:81], v[82:83]\nv_pk_fma_f32 v[92:93], v[78:79], v[78:79], v[92:93]')
        e('v_pk_add_f32 v[88:89], v[88:89], v[90:91]\nv_pk_fma_f32 v[92:93], v[80:81], v[80:81], v[92:93]\nv_pk_fma_f32 v[92:93], v[82:83], v[82:83], v[92:93]')
        st = [['v_add_f32 v88, v88, v89', 'v_add_f32 v92, v92, v93'], ['s_nop 0', 'v_permlane32_swap_b32 v88, v92', 'v_add_f32 v88, v88, v92'], ['v_mov_b32 v92, v88'],
              ['s_nop 0', 'v_permlane16_swap_b32 v88, v92', 'v_add_f32 v88, v88, v92'], ['s_nop 0', f'v_add_f32_dpp v88, v88, v88 quad_perm:[1,0,3,2] {DPP}'],
              [f'v_add_f32_dpp v88, v88, v88 quad_perm:[2,3,0,1] {DPP}', f'v_add_f32_dpp v88, v88, v88 row_half_mirror {DPP}', 'v_mul_f32 v88, 0x3acccccd, v88', 'ds_write_b32 v54, v88']]
        for s in range(6):
            e(f's_waitcnt lgkmcnt({[6,5,4,3,1,0][s]})')
            e(f'v_mfma_f32_16x16x32_bf16 v[96:99], {a(32+s*4,4)}, {v(vB+4*s,4)}, ' + ('0' if s == 0 else 'v[96:99]'))
            for x in st[s]: e(x)
        e('ds_write_b128 v45, v[96:99]\ns_waitcnt lgkmcnt(0)\ns_barrier')
        self.stamp('F.abar')
        e('ds_read_b128 v[100:103], v44\nds_read_b128 v[104:107], v44 offset:16')
        for w in range(4): e(f'ds_read_b128 {v(128+4*w,4)}, v55 offset:{64*w}')
        e(f"""
        s_waitcnt lgkmcnt(4)
        v_pk_add_f32 v[100:101], v[100:101], v[102:103]
        v_pk_add_f32 v[104:105], v[104:105], v[106:107]
        v_add_f32 v100, v100, v101
        v_add_f32 v104, v104, v105
        v_fma_f32 v104, -v100, v100, v104
        v_max_f32 v104, 0, v104
        v_add_f32 v104, 0x3727c5ac, v104
        v_rsq_f32 v104, v104
        s_waitcnt lgkmcnt(0)
        v_pk_fma_f32 v[128:129], {v(vS1,2)}, v[100:101], v[128:129] op_sel_hi:[1,0,1] neg_lo:[0,1,0] neg_hi:[0,1,0]
        v_pk_fma_f32 v[130:131], {v(vS1+2,2)}, v[100:101], v[130:131] op_sel_hi:[1,0,1] neg_lo:[0,1,0] neg_hi:[0,1,0]
        v_pk_add_f32 v[136:137], v[136:137], v[140:141]
        v_pk_add_f32 v[138:139], v[138:139], v[142:143]
        v_pk_add_f32 v[128:129], v[128:129], v[132:133]
        v_pk_add_f32 v[130:131], v[130:131], v[134:135]
        v_pk_add_f32 v[128:129], v[128:129], v[136:137]
        v_pk_add_f32 v[130:131], v[130:131], v[138:139]
        v_pk_fma_f32 v[128:129], v[128:129], v[104:105], {v(vB1,2)} op_sel_hi:[1,0,1]
        v_pk_fma_f32 v[130:131], v[130:131], v[104:105], {v(vB1+2,2)} op_sel_hi:[1,0,1]
        """)
        for r in range(4): e(f'v_max_f32 v{128+r}, 0, v{128+r}')
        e('v_pk_mul_f32 v[128:129], v[128:129], v[128:129]\nv_pk_mul_f32 v[130:131], v[130:131], v[130:131]')
        e('v_cvt_pk_bf16_f32 v108, v128, v129\nv_cvt_pk_bf16_f32 v109, v130, v131')
        self.stamp('F.f1')
        def cm(P): e(f'v_cndmask_b32 v{110+2*P}, 0, v108, s[{68+2*P}:{69+2*P}]\nv_cndmask_b32 v{111+2*P}, 0, v109, s[{68+2*P}:{69+2*P}]')
        cm(0); cm(1)
        for P in range(5):
            for hb in range(2):
                e(f'v_mfma_f32_16x16x16_bf16 {v(120+4*hb,4)}, {a(56+P*4+2*hb,2)}, {v(110+2*P,2)}, ' + ('0' if P == 0 else v(120+4*hb,4)))
                if hb == 0 and P+2 < 5: cm(P+2)
        for i in range(4): e(f'v_cvt_pk_bf16_f32 v{64+i}, v{120+2*i}, v{121+2*i}')
        for i in range(4): e(f'v_min_u32 v{64+i}, -2, v{64+i}')
        self.pubg('v[64:67]', 51)
        if self.o.get('hloc',1): self.publ('v[64:67]', 43)
        self.stamp('F.end')
        e('s_branch L_END')
        e(';SEG FIN\nL_FIN:')
        e(f's_cmp_ge_u32 s{sK}, 10\ns_cbranch_scc1 L_END')
        self.mk_srd(rA, pOUT, None, 1280)
        if self.o.get('vw', 0): e(f'buffer_load_dword v13, v53, {srd(rA)}, s{sB} offen')
        e(f's_cmp_eq_u32 s{sW}, 0\ns_cselect_b32 s{s1}, -1, 0')
        for r in range(4): e(f'v_and_b32 v{32+r}, s{s1}, v{vI+r}')
        e(f'v_pk_add_f32 {v(vC0,2)}, {v(vC0,2)}, {v(vC1,2)}\nv_pk_add_f32 {v(vC0+2,2)}, {v(vC0+2,2)}, {v(vC1+2,2)}\nv_mov_b32 v45, s{sT0}')
        self.lmask((46,))
        e('L_R_P1:')
        e(f'buffer_load_dwordx4 v[64:67], v46, {srd(rWS)}, s79 offen sc1\ns_waitcnt vmcnt(0)')
        self.maxchain(12, range(64,68))
        e('v_cmp_eq_u32 vcc, -1, v12')
        self.retry('L_R_P1', sleep=1, vregs=(46,))
        self.stamp('R.h3b')
        self.lmask((48,49,50,51))
        e(f'v_mfma_f32_16x16x32_bf16 {v(vC0,4)}, v[32:35], v[64:67], {v(vC0,4)}')
        if self.o.get('rdelay'): e(f's_sleep {self.o["rdelay"]}')
        e('L_R_P2:')
        for i in range(4): e(f'buffer_load_dwordx4 {v(68+4*i,4)}, v{48+i}, {srd(rWS)}, s78 offen sc1')
        e('s_waitcnt vmcnt(0)')
        for i in range(4): e(f'v_mfma_f32_16x16x32_bf16 v[104:107], {v(vI,4)}, {v(68+4*i,4)}, ' + (v(vC0,4) if i == 0 else 'v[104:107]'))
        self.maxchain(12, range(68,84))
        e('v_cmp_eq_u32 vcc, -1, v12')
        self.retry('L_R_P2', vregs=(48,49,50,51), sleep=0)
        self.stamp('R.h4')
        for r in range(4): e(f'v_add_f32_dpp v{104+r}, v{104+r}, v{104+r} row_ror:8 {DPP}')
        e(f'ds_write_b128 v52, v[104:107]\ns_waitcnt lgkmcnt(0)\ns_barrier')
        e(f's_cmp_lg_u32 s{sW}, 0\ns_cbranch_scc1 L_END')
        self.red_final(RED, 128, 54, False)
        e(f'buffer_store_dwordx2 v[128:129], v53, {srd(rA)}, s{sB} offen {self.o.get("outflag","sc1")}')
        e(f's_cmp_lg_u32 s{sK}, 0\ns_cbranch_scc1 L_END2')
        e(f'buffer_store_dword v45, v55, {srd(rWS)}, 0 offen offset:{EPOCH} sc1')
        if 'amp' in self.o:
            self.stamp('R.end')
            k = self.idx[self.o['amp']]; ke = self.idx['R.end']
            e(f's_waitcnt lgkmcnt(0)\ns_sub_u32 s60, s{sSTAMP+2*k}, s{sSTAMP}\ns_lshl_b32 s60, s60, 2\ns_add_u32 s60, s60, s{sSTAMP+2*ke}')
            e('L_AMP:\ns_memrealtime s[62:63]\ns_waitcnt lgkmcnt(0)\ns_sub_u32 s61, s62, s60\ns_cmp_lt_i32 s61, 0\ns_cbranch_scc1 L_AMP')
        e('L_END2:')
        if 'amp' not in self.o: self.stamp('R.end')
        e('s_branch L_END')

    def role_T(self):
        e = self.e
        MX = QB; LX = QB+512; PB = QB+1024
        WO = 0; HB = 65536; EX = 15360
        sT, s0, s1, s2_ = 72, 63, 64, 65
        e(';SEG T1\nL_T:\ns_waitcnt vmcnt(5)')
        if self.o.get('noT'): e('s_branch L_END')
        e(f"""
        s_lshl_b32 s{sT}, s{sX8}, 4
        s_add_u32 s{sT}, s{sT}, s{sR}
        """)
        e(f"""
        s_lshl_b32 s{s0}, s{sT}, 9
        s_add_u32 s{s0}, s{s0}, {QP+LOC}
        s_lshl_b32 s{s1}, s{sT}, 8
        s_add_u32 s{s1}, s{s1}, {QLB+LOC}
        s_cmp_eq_u32 s{sW}, 2
        s_cselect_b32 s{s0}, s{s1}, s{s0}
        s_lshl_b32 s{s1}, s{sX8}, 9
        s_add_u32 s{s1}, s{s1}, {QCS+LOC}
        s_cmp_eq_u32 s{sW}, 3
        s_cselect_b32 s{s0}, s{s1}, s{s0}
        s_cmp_eq_u32 s{sW}, 0
        s_cselect_b32 s66, {WSSZ}, s{s0}
        v_lshlrev_b32 v12, 7, v0
        v_cmp_gt_u32 vcc, 4, v0
        v_cndmask_b32 v12, v9, v12, vcc
        """)
        e(f's_lshl_b32 s62, s{sW}, 13\ns_add_u32 s62, s62, {QB}')
        self.ws_srd()
        e(f'buffer_load_dword v255, v12, {srd(rWS)}, s66 offen')
        e(f"""
        s_sub_u32 s24, s{sR}, 11
        s_cmp_eq_u32 s{sW}, 3
        s_cselect_b32 s24, s24, -1
        s_cmp_ge_u32 s24, 3
        s_cbranch_scc1 L_T_NOV1
        s_lshl3_add_u32 s27, s24, s{sX8}
        s_lshl_b32 s27, s27, 2
        s_lshl_b32 s25, s24, 21
        s_mul_i32 s26, s{sX8}, 896
        s_add_u32 s25, s25, s26
        s_add_u32 s25, s25, {PROBE}
        s_add_u32 s26, s25, 8192
        s_load_dword s28, s[{pWS}:{pWS+1}], s25 glc
        s_load_dword s28, s[{pWS}:{pWS+1}], s26 glc
        L_T_NOV1:
        """)
        nuk = self.o.get('t_wuk', 0)
        if nuk:
            self.wuk_setup(sR, rA)
            e(f's_mov_b32 s68, {(8-nuk)*32768}')
            for k in range(8-nuk, 8): self.wuk_dma(k, rA, QB)
        tsh, wsh, istr = self.kmap()
        self.kbase(s0, sT, tsh)
        self.mk_srd(rB, pCKV, s0, 16777216)
        e(f'v_lshl_add_u32 v52, v2, 10, v5\nv_xor_b32 v53, 0x80, v52\ns_lshl_b32 s68, s{sW}, {wsh}\ns_lshl_b32 s69, s{sW}, 13')
        def dma(n):
            c, i = n >> 3, n & 7
            dg = self.o.get('diag', 0)
            if dg:
                if n == 0:
                    if dg == 1: e(f's_mov_b32 s7, 0')
                    if dg == 2: e(f's_mul_i32 s7, s{sT}, 5\ns_lshl_b32 s60, s{sW}, 3\ns_add_u32 s7, s7, s60\ns_and_b32 s7, s7, 31\ns_lshl_b32 s7, s7, 10')
                    if dg == 3: e(f's_and_b32 s7, s{sT}, 3\ns_lshl_b32 s7, s7, 8')
                    if dg == 4: e(f's_and_b32 s7, s{sT}, 3\ns_lshl_b32 s7, s7, 8\ns_bfe_u32 s60, s{sT}, 0x30002\ns_lshl_b32 s60, s60, 12\ns_or_b32 s7, s7, s60')
                    if dg == 5: e(f's_lshl_b32 s7, s{sW}, 8')
                off = n*1024 if dg <= 2 else i*4096+c*256
                e(f's_add_u32 m0, s69, {c*32768+i*1024}\ns_xor_b32 s{sTMP}, s7, {off}\ns_add_u32 s{sTMP}, s{sTMP}, s68')
                e(f'buffer_load_dwordx4 v{3 if dg <= 2 else 52+(i&1)}, {srd(rB)}, s{sTMP} offen nt lds')
                return
            e(f's_add_u32 m0, s69, {c*32768+i*1024}\ns_add_u32 s{sTMP}, s68, {self.ioff(i,istr)+c*256}')
            e(f'buffer_load_dwordx4 v{52+(i&1)}, {srd(rB)}, s{sTMP} offen nt lds')
        n0 = 0
        thr = dict(self.o.get('t_throttle', []))
        vm = []
        vKa, vQa, vVa = 24, 28, 32
        vPS, vRS, vMW, vMR, vPW, vPR, vQC, vLR = 40, 41, 42, 43, 44, 45, 46, 47
        vQS = 120
        pre = []
        pre.append(f'v_and_b32 v12, 7, v1\nv_lshlrev_b32 v12, 5, v12\nv_lshlrev_b32 v13, 10, v1\nv_lshlrev_b32 v14, 8, v1\nv_add_u32 v14, s69, v14\nv_add_u32 v13, {QB}, v13')
        for s3 in range(4):
            pre.append(f'v_add_u32 v15, {s3*64}, v11\nv_xor_b32 v15, v15, v12\nv_add_u32 v{vKa+s3}, v14, v15\nv_add_u32 v{vQa+s3}, v13, v15')
        pre.append(f"""
        v_lshrrev_b32 v13, 2, v0
        v_and_b32 v15, 7, v13
        v_lshlrev_b32 v13, 8, v13
        v_and_b32 v12, 3, v1
        v_lshl_add_u32 v13, v12, 3, v13
        s_lshl_b32 s{s2_}, s{sW}, 1
        v_xor_b32 v15, s{s2_}, v15
        v_lshl_add_u32 v{vVa}, v15, 5, v13
        v_xor_b32 v15, 1, v15
        v_lshl_add_u32 v{vVa+1}, v15, 5, v13
        v_add_u32 v{vVa+2}, 0x10000, v{vVa}
        v_add_u32 v{vVa+3}, 0x10000, v{vVa+1}
        """)
        for i in range(8): pre.append(f'v_xor_b32 v{vQS+i}, {(i<<5) + (i&3)*1024}, v3')
        pre.append(f"""
        v_add_u32 v15, {EX}, v3
        s_lshl_b32 s{s0}, s{sW}, 2
        v_add_u32 v14, s{s0}, v15
        v_mov_b32 v10, v14
        v_mov_b32 v8, v15
        v_lshrrev_b32 v12, 5, v0
        v_and_b32 v13, 1, v0
        v_lshlrev_b32 v13, 1, v13
        v_lshl_add_u32 v12, v12, 2, v13
        v_bfe_u32 v13, v0, 1, 4
        v_and_b32 v14, 7, v13
        v_lshlrev_b32 v14, 3, v14
        v_lshl_add_u32 v13, v13, 6, v14
        v_lshlrev_b32 v14, 5, v12
        v_xor_b32 v13, v13, v14
        v_lshl_add_u32 v13, v12, 10, v13
        v_add_u32 v6, s62, v13
        v_xor_b32 v7, 32, v6
        s_lshl_b32 s{s2_}, s{sT}, 15
        s_lshr_b32 s{s0}, s{sW}, 1
        s_lshl_b32 s{s0}, s{s0}, 14
        s_add_u32 s{s2_}, s{s2_}, s{s0}
        s_and_b32 s{s0}, s{sW}, 1
        s_lshl_b32 s{s0}, s{s0}, 12
        s_add_u32 s{s2_}, s{s2_}, s{s0}
        s_add_u32 s{s2_}, s{s2_}, {PART}
        v_add_u32 v{vPS}, s{s2_}, v3
        s_and_b32 s75, s{sT}, 0x60
        s_add_u32 s75, s75, s{sT}
        s_lshl2_add_u32 s75, s75, s{sW}
        s_lshl_b32 s75, s75, 6
        s_add_u32 s75, s75, {CS}
        v_min_u32 v68, 92, v4
        s_lshr_b32 s{s2_}, s{sT}, 3
        s_lshl_b32 s{s2_}, s{s2_}, 3
        s_add_u32 s{s2_}, s{s2_}, s{sT}
        s_lshl2_add_u32 s{s2_}, s{s2_}, s{sW}
        s_lshl_b32 s{s2_}, s{s2_}, 8
        s_add_u32 s{s2_}, s{s2_}, {REC}
        v_and_b32 v13, 1, v1
        v_lshrrev_b32 v12, 2, v0
        v_lshl_add_u32 v12, v13, 4, v12
        v_lshlrev_b32 v12, 4, v12
        v_add_u32 v{vLR}, {MX}, v12
        v_and_b32 v12, 0xff, v12
        v_lshl_add_u32 v12, v13, 13, v12
        v_add_u32 v12, s{s2_}, v12
        v_and_b32 v13, 2, v1
        v_cmp_eq_u32 vcc, 0, v13
        v_cndmask_b32 v{vRS}, v9, v12, vcc
        v_bfe_u32 v13, v{vLR}, 6, 3
        v_cmp_eq_u32 vcc, s{sX8}, v13
        v_cndmask_b32 v4, v9, v{vRS}, vcc
        v_and_b32 v13, 3, v1
        v_cmp_eq_u32 vcc, 0, v13
        v_cndmask_b32 v5, v9, v0, vcc
        v_lshrrev_b32 v12, 1, v2
        v_lshl_add_u32 v12, v12, 4, v1
        v_lshlrev_b32 v12, 4, v12
        s_lshl_b32 s{s2_}, s{sW}, 2
        s_add_u32 s{s2_}, s{s2_}, {MX}
        v_add_u32 v{vMW}, s{s2_}, v12
        v_lshlrev_b32 v12, 4, v1
        v_add_u32 v{vMR}, {MX}, v12
        v_add_u32 v22, s{s2_}, v12
        v_mov_b32 v38, 0x3e0293ee
        s_lshl_b32 s{s2_}, s{sW}, 11
        s_add_u32 s{s2_}, s{s2_}, {PB}
        v_add_u32 v{vPW}, s{s2_}, v3
        v_add_u32 v{vPR}, {PB}, v3
        s_and_b32 s71, s{sX8}, 4
        s_add_u32 s71, s71, s{sX8}
        s_lshl_b32 s71, s71, 11
        s_add_u32 s71, s71, {H3B}
        v_mov_b32 v16, -1
        v_mov_b32 v17, -1
        v_mov_b32 v18, -1
        v_mov_b32 v19, -1
        s_and_b32 s{s0}, s{sW}, 1
        s_mul_i32 s{s0}, s{s0}, 640
        s_add_u32 s71, s71, s{s0}
        s_lshr_b32 s{s0}, s{sW}, 1
        s_lshl_b32 s{s0}, s{s0}, 13
        s_add_u32 s71, s71, s{s0}
        s_and_b32 s{s0}, s{sR}, 1
        s_lshl_b32 s{s0}, s{s0}, 20
        s_add_u32 s71, s71, s{s0}
        s_cmp_ge_u32 s{sR}, 14
        s_cselect_b32 s{s0}, 40, 0
        v_cmp_gt_u32 vcc, s{s0}, v0
        v_cndmask_b32 v20, v9, v3, vcc
        v_lshrrev_b32 v12, 3, v0
        v_lshrrev_b32 v13, 1, v12
        v_and_b32 v14, 1, v12
        v_lshl_add_u32 v13, v14, 4, v13
        v_mul_u32_u24 v13, 1280, v13
        v_and_b32 v14, 7, v0
        v_lshlrev_b32 v14, 4, v14
        v_and_b32 v12, 1, v2
        v_lshlrev_b32 v12, 5, v12
        v_xor_b32 v14, v14, v12
        v_add_u32 v36, v13, v14
        v_xor_b32 v14, 64, v14
        v_add_u32 v37, v13, v14
        s_lshl_b32 s73, s{sX8}, 2
        s_add_u32 s73, s73, s{sW}
        s_mul_i32 s73, s73, 163840
        s_lshl_b32 s{s1}, s{sR}, 7
        s_add_u32 s73, s73, s{s1}
        s_lshl_b32 s74, s{sW}, 14
        """)
        def qloads():
            e(f'global_load_dword v69, v68, s[{pDBG}:{pDBG+1}] sc1')
            e(f'buffer_load_dwordx4 v[80:83], v{vQC}, {srd(rWS)}, 0 offen sc1')
            for i in range(8):
                e(f's_add_u32 m0, s62, {i*1024}')
                e(f'buffer_load_dwordx4 v{vQS+i}, {srd(rWS)}, s{76+(i>>2)} offen sc1 lds')
        kdone = set()
        def younger(item): return len(vm) - 1 - vm.index(item)
        def kv(c):
            e(f's_waitcnt vmcnt({younger(("d",8*c+7))})')
            if c == 3: self.stamp('T.ckv')
            if c == 2:
                for s3 in range(4): e(f'v_add_u32 v{vKa+s3}, 0x10000, v{vKa+s3}')
            for s3 in range(4):
                for kt in range(2):
                    e(f'ds_read_b128 {a(((4*c+s3)*2+kt)*4,4)}, v{vKa+s3} offset:{(c&1)*32768+kt*4096}')
            kdone.add(c)
            e('s_barrier')
            for ks in range(4):
                for T2 in range(2):
                    for q in range(2):
                        e(f'ds_read_b64_tr_b16 {a(128+(ks*8+2*c+T2)*4+2*q,2)}, v{vVa+T2+2*(c>>1)} offset:{(c&1)*32768+ks*8192+q*4096}')
        tp = []
        def tprep():
            if tp: return
            tp.append(1)
            e('s_waitcnt lgkmcnt(0)')
            self.tags()
            e(f"""
            s_lshl_b32 s76, s{sW}, 13
            s_add_u32 s76, s76, {QLB}
            s_add_u32 s77, s76, 4096
            s_lshl_b32 s{s0}, s{sW}, 1
            s_cmp_eq_u32 s{s0}, s{sX8}
            s_cselect_b32 s{s1}, s{sLOC}, 0
            s_add_u32 s76, s76, s{s1}
            v_mov_b32 v12, s{s1}
            s_add_u32 s{s0}, s{s0}, 1
            s_cmp_eq_u32 s{s0}, s{sX8}
            s_cselect_b32 s{s1}, s{sLOC}, 0
            s_add_u32 s77, s77, s{s1}
            v_mov_b32 v13, s{s1}
            v_cmp_gt_u32 vcc, 32, v0
            v_cndmask_b32 v12, v13, v12, vcc
            s_lshl_b32 s{s0}, s{sW}, 10
            s_add_u32 s{s0}, s{s0}, {QCS}
            v_add3_u32 v{vQC}, s{s0}, v3, v12
            """)
            e(f's_lshl_b32 s79, s{sT}, 7\ns_add_u32 s79, s79, {GATE}\ns_cmp_eq_u32 s{sW}, 0\ns_cselect_b32 s79, s79, {OOB}\nv_mov_b32 v39, s79\nv_mov_b32 v21, s{sT1}')
        qpos = self.o.get('qpos', 32); npre = self.o.get('npre', 2)
        klag = self.o.get('klag', 12)
        for n in range(n0, 33):
            if n == npre:
                for x in pre: e(x)
            if n == npre: e(f's_load_dword s{sE}, s[{pWS}:{pWS+1}], {EPOCH}')
            if n == self.o.get('vpos', 2):
                e('s_cmp_ge_u32 s24, 3\ns_cbranch_scc1 L_T_NOV2\ns_mov_b32 s29, 0\ns_waitcnt lgkmcnt(0)\ns_memtime s[8:9]\ns_waitcnt lgkmcnt(0)')
                ns = self.o.get('nsamp', 1)
                for k in range(ns):
                    e(f's_load_dword s28, s[{pWS}:{pWS+1}], s25 glc\ns_waitcnt lgkmcnt(0)\ns_memtime s[12:13]\ns_waitcnt lgkmcnt(0)')
                    e(f's_load_dword s28, s[{pWS}:{pWS+1}], s26 glc\ns_waitcnt lgkmcnt(0)\ns_sub_u32 s30, s12, s8\ns_memtime s[8:9]\ns_waitcnt lgkmcnt(0)')
                    e(f's_sub_u32 s31, s8, s12\ns_sub_u32 s31, s31, s30\ns_max_i32 s31, s31, -{self.o.get("clip",300)}\ns_min_i32 s31, s31, {self.o.get("clip",300)}\ns_add_u32 s29, s29, s31')
                e(f's_sub_u32 s30, 0, s29\ns_cmp_lt_u32 s{sX8}, 4\ns_cselect_b32 s29, s29, s30\ns_add_u32 s29, s29, {BIAS}')
                e(f's_atomic_add s29, s[{pDBG}:{pDBG+1}], s27\nL_T_NOV2:')
            if n == self.o.get('gpos', -1):
                tprep(); e(f'buffer_store_dword v21, v39, {srd(rWS)}, 0 offen'); vm.append('gate')
            if n == qpos:
                tprep()
                self.stamp('T.qiss')
                if not self.o.get('noq'): qloads(); vm += [('q',i) for i in range(10)]
                self.mk_srd(rA, pWO, 73, 5242880)
                e(f's_cmp_lt_u32 s{sR}, 10\ns_cselect_b32 s{rA+2}, s{rA+2}, 0')
            if n < 32:
                dma(n); vm.append(('d',n))
                if n in thr: e(f's_waitcnt vmcnt({thr[n]})')
                elif self.o.get('tdepth'): e(f's_waitcnt vmcnt({self.o["tdepth"]-1})')
            for c in range(3):
                if c not in kdone and n >= npre and ('d',8*c+7) in vm and younger(('d',8*c+7)) >= klag and (c == 0 or c-1 in kdone): kv(c)
        self.stamp('T.issued')
        e('s_branch L_T2\n;SEG T2\nL_T2:')
        if self.o.get('gate') == 1:
            e(f'buffer_store_dword v21, v39, {srd(rWS)}, 0 offen'); vm.append('gate')
        if self.o.get('tonly'):
            e('s_waitcnt vmcnt(0)'); self.stamp('T.ckv0'); e('s_branch L_END')
        for c in range(4):
            if c not in kdone: kv(c)
        if self.o.get('gate') == 2:
            e(f'buffer_store_dword v21, v39, {srd(rWS)}, 0 offen'); vm.append('gate')
        e('s_branch L_T_Q1')
        e('L_T_Q0:')
        self.fb((vQC,), (76, 77)); e(f's_sleep {self.o.get("qsleep",1)}')
        qloads()
        e('L_T_Q1:')
        e(f's_waitcnt vmcnt({9 if qpos == 32 else 0})')
        for x in self.pol_ops(69, 8): e(x)
        e(f's_cbranch_vccnz L_T_Q0\ns_cmp_lt_u32 s{sX8}, 4\ns_cselect_b32 s66, s9, s10\ns_xor_b32 s67, s66, 8192\ns_xor_b32 s60, s75, s8\ns_xor_b32 s70, s60, 8192\nv_xor_b32 v15, s8, v{vRS}\nv_xor_b32 v39, s8, v4')
        e(f's_waitcnt vmcnt(0)\nds_read_b32 v12, v6\nds_read_b32 v13, v7 offset:1024')
        e(f'v_add_u32 v14, v80, v82\nv_sub_u32 v14, 0, v14\nds_write_b32 v10, v14\nv_xor_b32 v81, s{sT0}, v81\nv_xor_b32 v83, s{sT0}, v83\ns_waitcnt lgkmcnt(0)')
        e('v_xor_b32 v12, v12, v81\nv_xor_b32 v13, v13, v83\nv_or_b32 v12, v12, v13\nv_cmp_ne_u32 vcc, 0, v12\ns_cbranch_vccnz L_T_Q0')
        self.stamp('T.qin')
        if self.o.get('gate') == 3:
            e(f'buffer_store_dword v21, v39, {srd(rWS)}, 0 offen'); vm.append('gate')
        e('s_barrier')
        self.stamp('T.Qbar')
        def wo_ops(i): return [f's_add_u32 m0, s74, {WO+i*1024}', f's_mov_b32 s{sTMP}, {(32*(i>>2)+4*(i&3))*1280}', f'buffer_load_dwordx4 v{36+(i&1)}, {srd(rA)}, s{sTMP} offen {self.o.get("woflag","nt")} lds']
        nwe = self.o.get('wo_early', 6)
        vS = 48; vP = 76; vPF = 88; vAcc = 128; vO = 192
        def qreg(s, ht): return 128 + ht*64 + s*4
        def qread(s, ht): return f'ds_read_b128 {v(qreg(s,ht),4)}, v{vQa+(s&3)} offset:{(s>>2)*256+ht*16384}'
        def qk(s, kt, ht):
            d = v(vS+(kt*2+ht)*4,4)
            return f'v_mfma_f32_16x16x32_bf16 {d}, {a((s*2+kt)*4,4)}, {v(qreg(s,ht),4)}, ' + ('0' if s == 0 else d)
        def pv(ks, T, ht):
            d = v(vAcc+(ht*8+T)*4,4)
            return f'v_mfma_f32_16x16x32_bf16 {d}, {v(vPF+(ks*2+ht)*4,4)}, {a(128+(ks*8+T)*4,4)}, ' + ('0' if ks == 0 else d)
        def ver(s, ht): return f'v_add3_u32 v23, v23, v{qreg(s,ht)}, v{qreg(s,ht)+2}'
        def cost(x): return 2 if x.startswith('v_exp') else (0 if x.startswith('s_') else 1)
        def stream(mf, toks, bg):
            skip = 0
            for m in mf:
                e(m)
                b = self.o.get('slots', 2)
                if skip: skip -= 1
                else:
                    while toks:
                        t = toks[0]
                        if isinstance(t, tuple): skip = t[1]; toks.pop(0); break
                        if cost(t) > b: break
                        e(t); b -= cost(t); toks.pop(0)
                while bg and cost(bg[0]) <= b:
                    b -= cost(bg[0]); e(bg.pop(0))
            return toks
        def flush(toks):
            for t in toks:
                if not isinstance(t, tuple): e(t)
        D = self.o.get('qD', 4)
        for s in range(D): e(qread(s,0))
        e(f'v_mov_b32 v23, 0\nbuffer_store_dwordx4 v[16:19], v20, {srd(rWS)}, s71 offen sc1')
        rd = [(s,0) for s in range(D,16)] + [(s,1) for s in range(16)]
        issued = D
        wo = [wo_ops(i) for i in range(nwe)]
        for s in range(16):
            e(f's_waitcnt lgkmcnt({min(15, issued-1-s)})')
            if s == 15: e('s_barrier')
            for kt in range(2):
                e(qk(s,kt,0))
                if rd: e(qread(*rd.pop(0))); issued += 1
                if kt == 0:
                    if not self.o.get('nover'): e(ver(s,0))
                elif wo: flush(wo.pop(0))
                if s == 14 and kt == 1: e('ds_read_b128 v[80:83], v8')
        self.stamp('T.QK0')
        def sm(ht):
            r0 = vS+ht*4; r1 = vS+8+ht*4; m = 64; t = 65; M = 66+ht; rb = 72
            a_ = [f'v_max3_f32 v{m}, v{r0}, v{r0+1}, v{r0+2}', f'v_max3_f32 v{t}, v{r1}, v{r1+1}, v{r1+2}', f'v_max3_f32 v{m}, v{m}, v{r0+3}, v{r1+3}', f'v_max_f32 v{m}, v{m}, v{t}',
                  f'v_mov_b32 v{t}, v{m}', ('gap',0), f'v_permlane32_swap_b32 v{m}, v{t}', f'v_max_f32 v{m}, v{m}, v{t}', f'v_mov_b32 v{t}, v{m}', ('gap',0),
                  f'v_permlane16_swap_b32 v{m}, v{t}', f'v_max_f32 v{m}, v{m}, v{t}', f'ds_write_b32 v22, v{m} offset:{ht*256}']
            b_ = ['s_waitcnt lgkmcnt(0)', 's_barrier', f'ds_read_b128 {v(rb,4)}, v{vMR} offset:{ht*256}']
            c_ = ['s_waitcnt lgkmcnt(0)', f'v_max3_f32 v{M}, v{rb}, v{rb+1}, v{rb+2}', f'v_max_f32 v{M}, v{M}, v{rb+3}', f'v_mul_f32 v{M}, v38, v{M}']
            for b in (r0, r1):
                for r in range(4): c_.append(f'v_fma_f32 v{b+r}, v{b+r}, v38, -v{M}')
            for b in (r0, r1):
                for r in range(4): c_.append(f'v_exp_f32 v{b+r}, v{b+r}')
            for k,b in enumerate((r0, r1)):
                c_ += [f'v_cvt_pk_bf16_f32 v{vP+ht*4+k*2}, v{b}, v{b+1}', f'v_cvt_pk_bf16_f32 v{vP+ht*4+k*2+1}, v{b+2}, v{b+3}']
            c_.append(f'ds_write_b128 v{vPW}, {v(vP+ht*4,4)} offset:{ht*1024}')
            d_ = ['s_waitcnt lgkmcnt(0)', 's_barrier'] + [f'ds_read_b128 {v(vPF+(ks*2+ht)*4,4)}, v{vPR} offset:{(ks*2+ht)*1024}' for ks in range(4)]
            return a_, b_, c_, d_
        g1 = self.o.get('g1', 2); g2 = self.o.get('g2', 2)
        a0,b0,c0,d0 = sm(0); a1_,b1,c1,d1 = sm(1)
        e('s_waitcnt lgkmcnt(0)')
        mf = [qk(s,kt,1) for s in range(16) for kt in range(2)]
        bg = [ver(s,1) for s in range(16)] + ['v_add3_u32 v23, v23, v80, v81', 'v_add3_u32 v23, v23, v82, v83']
        if self.o.get('nover'): bg = []
        left = stream(mf, [('gap',1)] + a0 + [('gap',g1)] + b0 + [('gap',g2)] + c0, bg)
        flush(left)
        self.stamp('T.QK')
        flush(bg)
        A = [x for x in a1_ if not isinstance(x, tuple)]
        R = [f'v_add_u32_dpp v23, v23, v23 {p} {DPP}' for p in ['quad_perm:[1,0,3,2]','quad_perm:[2,3,0,1]','row_half_mirror','row_mirror']]
        R += ['v_mov_b32 v69, v23', 'v_permlane16_swap_b32 v23, v69', 'v_add_u32 v23, v23, v69', 'v_mov_b32 v69, v23', 'v_permlane32_swap_b32 v23, v69', 'v_add_u32 v23, v23, v69', 'v_cmp_ne_u32 vcc, 0, v23']
        flush([R[0], R[1], A[0], A[1], R[2], A[2], A[3], R[3], A[4], R[4], 's_nop 0', A[5], R[5], A[6], R[6], A[7], R[7], 's_nop 0', A[8], A[9], A[10], R[8], R[9], R[10]])
        flush(d0[:2]); e('s_cbranch_vccnz L_T_Q0'); flush(d0[2:] + b1[2:])
        self.stamp('T.Pbar')
        def lsum(ht, dst):
            r0 = vS+ht*4; r1 = vS+8+ht*4
            return [f'v_add_f32 v{r0}, v{r0}, v{r0+1}', f'v_add_f32 v{r0+2}, v{r0+2}, v{r0+3}', f'v_add_f32 v{r1}, v{r1}, v{r1+1}', f'v_add_f32 v{r1+2}, v{r1+2}, v{r1+3}',
                    f'v_add_f32 v{r0}, v{r0}, v{r0+2}', f'v_add_f32 v{r1}, v{r1}, v{r1+2}', f'v_add_f32 v{dst}, v{r0}, v{r1}']
        flush(lsum(0, 70))
        e('s_waitcnt lgkmcnt(4)')
        mf = [pv(ks,T,0) for ks in range(4) for T in range(8)]
        lt = ['v_permlane32_swap_b32 v70, v71','v_add_f32 v70, v70, v71','v_mov_b32 v71, v70', f'ds_read_b128 v[76:79], v{vLR}', 'v_permlane16_swap_b32 v70, v71','v_add_f32 v70, v70, v71',
              f'ds_write_b32 v{vMW}, v70 offset:512']
        left = stream(mf, [('gap',0)] + c1 + lsum(1, 71) + [('gap',0)] + lt + [('gap',self.o.get('g3',1))] + d1 + [f'ds_read_b128 v[72:75], v{vLR} offset:512'], [])
        flush(left)
        self.stamp('T.pv4')
        def outops(ht):
            ops = []
            for r in range(4):
                o = vO + (ht*4+r)*4
                for k in range(4):
                    ops.append(f'v_cvt_pk_bf16_f32 v{o+k}, v{vAcc+(ht*8+2*k)*4+r}, v{vAcc+(ht*8+2*k+1)*4+r}')
                ops.append(f'buffer_store_dwordx4 {v(o,4)}, v{vPS}, {srd(rWS)}, s{66+ht} offen offset:{r*1024} sc1')
            return ops
        e('s_waitcnt lgkmcnt(0)')
        mf = [pv(ks,T,1) for ks in range(4) for T in range(8)]
        cs = self.o.get('cs', 1)
        def csum(ht):
            c = 48 + 4*ht; y = 56 + 2*ht; z = 60 + ht
            ops = []
            for r in range(4):
                o = vO + (ht*4+r)*4
                ops.append([f'v_add3_u32 v{c+r}, v{o}, v{o+1}, v{o+2}', f'v_add_u32 v{c+r}, v{c+r}, v{o+3}'])
            red = [f'v_add_u32_dpp v{y}, v{c}, v{c} row_ror:8 row_mask:0xf bank_mask:0x3', f'v_add_u32_dpp v{y+1}, v{c+1}, v{c+1} row_ror:8 row_mask:0xf bank_mask:0x3',
                   f'v_add_u32_dpp v{y}, v{c+2}, v{c+2} row_ror:8 row_mask:0xf bank_mask:0xc', f'v_add_u32_dpp v{y+1}, v{c+3}, v{c+3} row_ror:8 row_mask:0xf bank_mask:0xc',
                   f'v_add_u32_dpp v{z}, v{y}, v{y} row_shl:4 row_mask:0xf bank_mask:0x5', f'v_add_u32_dpp v{z}, v{y+1}, v{y+1} row_shr:4 row_mask:0xf bank_mask:0xa',
                   f'v_add_u32_dpp v{z}, v{z}, v{z} quad_perm:[1,0,3,2] {DPP}', f'v_add_u32_dpp v{z}, v{z}, v{z} quad_perm:[2,3,0,1] {DPP}']
            return ops, red
        def out_cs(ht):
            if not cs: return outops(ht)
            o = outops(ht); l, red = csum(ht); res = []
            for r in range(4): res += o[5*r:5*r+5] + l[r]
            return res + red + [f'v_sub_u32 v{60+ht}, s{sT0}, v{60+ht}', f'buffer_store_dword v{60+ht}, v5, {srd(rWS)}, s{70 if ht else 60} offen sc1']
        recv = ['v_max3_f32 v84, v76, v77, v78', 'v_max_f32 v84, v84, v79', 'v_mul_f32 v84, v38, v84', f'v_mov_b32 v86, s{sT0}', f'v_mov_b32 v87, s{sT1}',
                'v_add_f32 v72, v72, v73', 'v_add_f32 v74, v74, v75', 'v_add_f32 v85, v72, v74']
        o0 = out_cs(0)
        rl = self.o.get('recloc', 2)
        rp = self.o.get('recpos', 0)
        def recst(nst): return self.stamptok('T.recw') + [f's_waitcnt vmcnt({nwe+nst})', f'buffer_store_dwordx4 v[84:87], v15, {srd(rWS)}, 0 offen sc1', ] + ([f'buffer_store_dwordx4 v[84:87], v39, {srd(rWS)}, s{sLOC} offen'] if rl and not self.o.get('loclate') else []) + self.stamptok('T.recst')
        if rp <= 4: o0 = o0[:7*rp] + recst(rp) + o0[7*rp:]
        left = stream(mf, recv + o0, [])
        flush(left)
        self.stamp('T.pv8')
        o1 = out_cs(1)
        if rp > 4: o1 = o1[:7*(rp-4)] + recst(rp+1) + o1[7*(rp-4):]
        flush(o1)
        if rl and self.o.get('loclate'): e(f'buffer_store_dwordx4 v[84:87], v39, {srd(rWS)}, s{sLOC} offen')
        self.stamp('T.PVst')
        self.stamp('T.rec')
        if self.o.get('wb') == 2: e(f's_lshl_b32 s{s0}, s{sW}, 4\ns_or_b32 s{s0}, s{s0}, s{sR}\ns_cmp_lg_u32 s{s0}, 15\ns_cbranch_scc1 L_NOWB\nbuffer_wbl2 sc1\nL_NOWB:')
        e(f's_cmp_ge_u32 s{sR}, 10\ns_cbranch_scc1 L_END')
        e('s_branch L_T3\n;SEG T3\nL_T3:')
        if self.o.get('wowait'): e('s_waitcnt vmcnt(0)')
        for i in range(nwe, 16): flush(wo_ops(i))
        e(f"""
        v_lshrrev_b32 v12, 2, v1
        v_lshl_add_u32 v12, v2, 3, v12
        v_lshlrev_b32 v12, 7, v12
        v_and_b32 v13, 3, v1
        v_lshl_add_u32 v12, v13, 3, v12
        v_lshrrev_b32 v14, 3, v1
        v_and_b32 v15, 1, v2
        v_lshl_or_b32 v14, v15, 1, v14
        v_xor_b32 v14, s{sW}, v14
        v_lshl_add_u32 v24, v14, 5, v12
        v_mul_u32_u24 v13, 320, v13
        v_add_u32 v13, v13, v11
        v_add_u32 v25, {HB}, v13
        v_mul_u32_u24 v12, 320, v2
        v_lshl_add_u32 v12, v1, 3, v12
        s_mul_i32 s{s0}, s{sW}, 1280
        s_add_u32 s{s0}, s{s0}, {HB}
        v_add_u32 v26, s{s0}, v12
        v_lshlrev_b32 v12, 4, v1
        v_lshl_add_u32 v27, v2, 11, v12
        s_lshl4_add_u32 s75, s{sX8}, s{sW}
        s_lshl_b32 s75, s75, 9
        s_add_u32 s75, s75, {HCB+LOC}
        s_and_b32 s75, s75, s{sLM}
        s_and_b32 s{s0}, s{sX8}, 4
        s_add_u32 s{s0}, s{s0}, s{sX8}
        s_lshl_b32 s{s0}, s{s0}, 11
        s_lshl_b32 s{s1}, s{sR}, 7
        s_add_u32 s{s0}, s{s0}, s{s1}
        s_lshl_b32 s{s1}, s{sW}, 5
        s_add_u32 s{s0}, s{s0}, s{s1}
        s_add_u32 s{s0}, s{s0}, {H3B}
        v_lshlrev_b32 v12, 1, v1
        v_lshl_add_u32 v12, v2, 13, v12
        v_add_u32 v12, s{s0}, v12
        v_cmp_gt_u32 vcc, 32, v0
        v_cndmask_b32 v28, v9, v12, vcc
        v_cmp_gt_u32 vcc, 16, v0
        v_cndmask_b32 v29, v9, v12, vcc
        s_waitcnt vmcnt(0)
        s_barrier
        """)
        self.stamp('C.land')
        for st_ in range(16):
            for q in range(2): e(f'ds_read_b64_tr_b16 {a(st_*4+2*q,2)}, v24 offset:{WO+st_*4096+q*512}')
        e('L_C_HC:')
        e(f'buffer_load_dwordx4 v[76:79], v27, {srd(rWS)}, s75 offen sc1\nbuffer_load_dwordx4 v[80:83], v27, {srd(rWS)}, s75 offen offset:256 sc1')
        e('s_waitcnt vmcnt(0)')
        e('ds_write2_b32 v26, v76, v78 offset0:0 offset1:1\nds_write2_b32 v26, v80, v82 offset0:32 offset1:33')
        for r in (77,79,81,83): e(f'v_xor_b32 v{r}, s{sT0}, v{r}')
        e('v_or3_b32 v12, v77, v79, v81\nv_or_b32 v12, v12, v83\nv_cmp_ne_u32 vcc, 0, v12')
        self.retry('L_C_HC', sleep=0, sregs=(75,))
        self.stamp('C.hcin')
        e('s_waitcnt lgkmcnt(0)\ns_barrier')
        self.stamp('C.bar')
        NP = 8
        def ar(st_): return f'ds_read_b128 {v(128+4*st_,4)}, v25 offset:{(st_>>2)*1280+(st_&3)*64}'
        for st_ in range(NP): e(ar(st_))
        for st_ in range(16):
            e(f's_waitcnt lgkmcnt({min(NP-1, 15-st_)})')
            e(f'v_mfma_f32_16x16x32_bf16 v[104:107], {v(128+4*st_,4)}, {a(st_*4,4)}, ' + ('0' if st_ == 0 else 'v[104:107]'))
            if st_+NP < 16: e(ar(st_+NP))
        e('v_pk_add_f32 v[104:105], v[104:105], v[106:107]\nv_add_f32 v104, v104, v105\nv_cvt_pk_bf16_f32 v104, v104, v104\nv_min_u32 v104, -2, v104')
        e(f'buffer_store_short v104, v28, {srd(rWS)}, 0 offen sc1')
        e(f'buffer_store_short v104, v29, {srd(rWS)}, s{sLOC} offen')
        self.stamp('C.h3')
        if self.o.get('wb') == 1: e(f's_or_b32 s{s0}, s{sR}, s{sW}\ns_cbranch_scc1 L_END\nbuffer_wbl2 sc1')

    def epilogue(self):
        e = self.e
        e('s_branch L_END\n;SEG END\nL_END:')
        if 'amp2' in self.o:
            k = self.idx[self.o['amp2']]
            e(f's_waitcnt lgkmcnt(0)\ns_cmp_eq_u32 s{sSTAMP+2*k}, 0\ns_cbranch_scc1 L_EXIT')
            if 'ampwg' in self.o: e(f's_cmp_lg_u32 s2, {self.o["ampwg"]}\ns_cbranch_scc1 L_EXIT')
            e(f's_sub_u32 s60, s{sSTAMP+2*k}, s{sSTAMP}\ns_lshl_b32 s60, s60, 3\ns_add_u32 s60, s60, s{sSTAMP}\ns_add_u32 s60, s60, 2000')
            e('L_AMP2:\ns_sleep 4\ns_memrealtime s[62:63]\ns_waitcnt lgkmcnt(0)\ns_sub_u32 s61, s62, s60\ns_cmp_lt_i32 s61, 0\ns_cbranch_scc1 L_AMP2')
        if self.stamps and 'amp' not in self.o and 'amp2' not in self.o:
            self.mk_srd(rWS, pWS, None, WSSZ)
            e(f's_waitcnt lgkmcnt(0)\ns_lshl_b32 s60, s2, 2\ns_add_u32 s60, s60, s{sW}\ns_lshl_b32 s60, s60, 6\ns_add_u32 s60, s60, {STAMP}\nv_mov_b32 v4, 0')
            for k in range(11): e(f'v_mov_b32 v5, s{sSTAMP+2*k}\nbuffer_store_dword v5, v4, {srd(rWS)}, s60 offen offset:{4*k}')
            e(f'v_mov_b32 v5, s{sTO}\nbuffer_store_dword v5, v4, {srd(rWS)}, s60 offen offset:44\nv_mov_b32 v5, s7\nbuffer_store_dword v5, v4, {srd(rWS)}, s60 offen offset:48')
        e('L_EXIT:')

    def layout(self):
        segs = {}; cur = 'A1'; segs[cur] = []
        for l in self.e.lines:
            if l.strip().startswith(';SEG '): cur = l.split()[1]; segs[cur] = []
            else: segs[cur].append(l)
        segs['END'].append('s_endpgm')
        out = []
        for x in self.o.get('layout', ['A1','END','|','T1','A2','T3','FIN','|','A3','|','T2']):
            if x == '|':
                if self.o.get('align',1): out.append('.p2align 12')
            else: out += segs[x]
        out.append('L_CODE_END:')
        return '\n'.join(out)
    def build(self):
        if self.stamps:
            for k in range(1,11): self.e(f's_mov_b32 s{sSTAMP+2*k}, 0')
            self.e('s_mov_b32 s7, 0')
        self.prologue(); self.role_A(); self.role_T(); self.epilogue()
        hdr = open('header.txt').read()
        if self.o.get('noloc'):
            self.e.lines = [l.replace(f', s{sLOC} offen', ', 0 offen sc1') if 'buffer_store' in l else l.replace(f's_mov_b32 s{sLM}, -1', f's_mov_b32 s{sLM}, {(~LOC)&0xffffffff}') for l in self.e.lines]
        return f'''{hdr}; @launch grid=(256,1,1) block=(256,1,1) lds=163840
.amdgcn_target "amdgcn-amd-amdhsa--gfx950"
.text
.globl {KN}
{'.p2align 12' if self.o.get('align',1) else ''}
.p2align 8
.type {KN},@function
{KN}:
{self.layout()}
.section .rodata,"a"
.p2align 6
.amdhsa_kernel {KN}
  .amdhsa_next_free_vgpr 512
  .amdhsa_next_free_sgpr 102
  .amdhsa_accum_offset 256
  .amdhsa_group_segment_fixed_size 0
  .amdhsa_kernarg_size 112
  .amdhsa_user_sgpr_count 2
  .amdhsa_user_sgpr_kernarg_segment_ptr 1
  .amdhsa_system_sgpr_workgroup_id_x 1
.end_amdhsa_kernel
'''

if __name__ == '__main__':
    import json
    out = sys.argv[1]; stamps = len(sys.argv) > 2 and sys.argv[2] == '1'
    opt = json.loads(sys.argv[3]) if len(sys.argv) > 3 else {}
    open(out,'w').write(G(stamps, opt).build())
```

```python
import sys
sys.path.insert(0,'work')
from dsl import Asm
NAME = 'sequential_preLN__compressed_kv_cla__dense_activation_squared_relu__decode'
KN = NAME + '_kernel'

EPOCH=0; GATE=0x2000; QCS=0x6000; QP=0x8000; HCB=0x18000; QLB=0x28000; CS=0x30000; REC=0x40000; HS=0x80000; H3B=HS+27*16384
PROBE=0xf8000; LOC=0x100000; PART=0x200000; STAMP=0x680000; BIAS=0x10000
WSSZ=0x700000
OOB=0x7ffffff0
NLOC=96
sLM,sLC,sLOC,sTMP = 3,4,5,6
pX,pCKV,pWQ,pWUK,pWUV,pWO,pBX,pW1,pB1,pW2,pB2,pOUT,pDBG,pWS = [8+2*i for i in range(14)]
sW,sX8,sR,sE,sT0,sT1,sTO,sP = 36,37,38,39,40,41,42,43
rWS=44; rA=48; rB=52; rC=56
sSTAMP=80
def srd(r): return f's[{r}:{r+3}]'
def v(n,c=1): return f'v{n}' if c==1 else f'v[{n}:{n+c-1}]'
def a(n,c=1): return f'a{n}' if c==1 else f'a[{n}:{n+c-1}]'
DPP='row_mask:0xf bank_mask:0xf'
QB = 131072
WQ = 69632; XN = 110592

class G:
    def __init__(self, stamps=False, opt=None):
        self.e = Asm(); self.stamps = stamps; self.o = opt or {}
        self.slots = {'A':['start'],'T':['start'],'R':[]}; self.idx = {}; self.tbase = 1
    def stamp(self, name):
        if not self.stamps: return
        role = name.split('.')[0]
        lst = self.slots['A' if role in 'AFR' else 'T']
        want = self.o.get('want')
        if name == 'start': k = 0
        else:
            if want is not None and name not in want: return
            if role == 'R':
                k = self.tbase + len(self.slots['R']); self.slots['R'].append(name)
            else:
                k = len(lst); lst.append(name)
                if role == 'A': self.tbase = len(lst)
            if k > 10: raise Exception('too many stamps '+name)
        self.idx[name] = k
        op = 's_memtime' if self.o.get('cyc') else 's_memrealtime'
        self.e(f'{op} s[{sSTAMP+2*k}:{sSTAMP+2*k+1}]')
        if name in self.o.get('cut', []): self.e('s_branch L_END')
    def stamptok(self, name):
        n = len(self.e.lines); self.stamp(name)
        t = [x.strip() for x in self.e.lines[n:]]
        del self.e.lines[n:]
        if t: self.e.hist.pop()
        return t
    def mk_srd(self, r, ptr, off_sgpr, size):
        e = self.e
        if off_sgpr is None:
            e(f's_mov_b32 s{r}, s{ptr}\ns_and_b32 s{r+1}, s{ptr+1}, 0xffff\ns_mov_b32 s{r+2}, {size}')
        else:
            e(f's_add_u32 s{r}, s{ptr}, s{off_sgpr}\ns_addc_u32 s{r+1}, s{ptr+1}, 0\ns_and_b32 s{r+1}, s{r+1}, 0xffff\ns_sub_u32 s{r+2}, {size}, s{off_sgpr}')
        e(f's_mov_b32 s{r+3}, 0x20000')
    def allred(self, op, x, t, steps16=4):
        e = self.e
        pats = ['quad_perm:[1,0,3,2]','quad_perm:[2,3,0,1]','row_half_mirror','row_mirror'][:steps16]
        for p in pats: e(f'{op}_dpp v{x}, v{x}, v{x} {p} {DPP}')
        e(f'v_mov_b32 v{t}, v{x}\nv_permlane16_swap_b32 v{x}, v{t}\n{op} v{x}, v{x}, v{t}')
        e(f'v_mov_b32 v{t}, v{x}\nv_permlane32_swap_b32 v{x}, v{t}\n{op} v{x}, v{x}, v{t}')
    def timeout(self):
        self.e(f's_sub_u32 s{sTO}, s{sTO}, 1\ns_cmp_eq_u32 s{sTO}, 0\ns_cbranch_scc1 L_END')
    def fb(self, vregs=(), sregs=()):
        e = self.e
        self.timeout()
        e(f's_add_u32 s{sLC}, s{sLC}, 1\ns_cmp_ge_u32 s{sLC}, {NLOC}\ns_cselect_b32 s{sLM}, {(~LOC)&0xffffffff}, s{sLM}')
        self.lmask(vregs, sregs)
    def lmask(self, vregs=(), sregs=()):
        for r in vregs: self.e(f'v_and_b32 v{r}, s{sLM}, v{r}')
        for r in sregs: self.e(f's_and_b32 s{r}, s{r}, s{sLM}')
    def stop(self, data):
        if '[' not in data: return 'buffer_store_dword'
        lo, hi = data[2:-1].split(':'); return f'buffer_store_dwordx{int(hi)-int(lo)+1}'
    def publ(self, data, voff): self.e(f'{self.stop(data)} {data}, v{voff}, {srd(rWS)}, s{sLOC} offen')
    def pubg(self, data, voff): self.e(f'{self.stop(data)} {data}, v{voff}, {srd(rWS)}, 0 offen sc1')
    def pub(self, data, voff): self.pubg(data, voff); self.publ(data, voff)
    def late_pubg(self, data, voff):
        e = self.e; l = e.newlabel('Lnp')
        e(f's_cmp_eq_u32 s{sLM}, -1\ns_cbranch_scc1 {l}'); self.pubg(data, voff); e(f'{l}:')
    def retry(self, label, sleep=1, vregs=(), sregs=(), late=None):
        e = self.e
        ok = e.newlabel('Lok')
        e(f's_cbranch_vccz {ok}')
        self.fb(vregs, sregs)
        if late: self.late_pubg(*late)
        if sleep: e(f's_sleep {sleep}')
        e(f's_branch {label}')
        e(f'{ok}:')
    def ppoll(self, name, nsets, nld, loads, check, vregs=(), sregs=(), pre_issued=0):
        e = self.e
        for k in range(pre_issued, nsets): loads(k)
        e(f'{name}:')
        for k in range(nsets):
            e(f's_waitcnt vmcnt({nld*(nsets-1)})')
            check(k)
            e(f's_cbranch_vccz {name}_OK')
            if k == nsets-1: self.fb(vregs, sregs)
            loads(k)
        e(f's_branch {name}\n{name}_OK:')
    def maxchain(self, dst, regs):
        e = self.e
        regs = list(regs)
        e(f'v_max3_u32 v{dst}, v{regs[0]}, v{regs[1]}, v{regs[2]}'); regs = regs[3:]
        while len(regs) >= 2:
            e(f'v_max3_u32 v{dst}, v{dst}, v{regs[0]}, v{regs[1]}'); regs = regs[2:]
        if regs: e(f'v_max_u32 v{dst}, v{dst}, v{regs[0]}')
    def tagcheck(self, dst, pairs):
        e = self.e; rs = []
        for r in pairs:
            e(f'v_xor_b32 v{r}, s{sT0}, v{r}\nv_xor_b32 v{r+1}, s{sT1}, v{r+1}'); rs += [r, r+1]
        if len(rs) == 2: e(f'v_or_b32 v{dst}, v{rs[0]}, v{rs[1]}')
        else:
            e(f'v_or3_b32 v{dst}, v{rs[0]}, v{rs[1]}, v{rs[2]}'); rs = rs[3:]
            while len(rs) >= 2: e(f'v_or3_b32 v{dst}, v{dst}, v{rs[0]}, v{rs[1]}'); rs = rs[2:]
            if rs: e(f'v_or_b32 v{dst}, v{dst}, v{rs[0]}')
        e(f'v_cmp_ne_u32 vcc, 0, v{dst}')
    def ident_masks(self, dst, val_lo, val_hi, first, n, t):
        e = self.e
        e(f'v_and_b32 v{t}, 1, v1\nv_cmp_eq_u32 vcc, 1, v{t}\nv_mov_b32 v{t}, {val_lo}\nv_mov_b32 v{t+1}, {val_hi}\nv_cndmask_b32 v{t}, v{t}, v{t+1}, vcc')
        e(f'v_lshrrev_b32 v{t+1}, 1, v1')
        for r in range(n):
            e(f'v_cmp_eq_u32 vcc, {first+r}, v{t+1}\nv_cndmask_b32 v{dst+r}, 0, v{t}, vcc')
    def red_final(self, RED, t, va, clamp):
        e = self.e
        for w in range(4): e(f'ds_read_b128 {v(t+4+4*w,4)}, v{va} offset:{RED+256*w}')
        e('s_waitcnt lgkmcnt(2)')
        for i in range(2): e(f'v_pk_add_f32 {v(t+4+2*i,2)}, {v(t+4+2*i,2)}, {v(t+8+2*i,2)}')
        e('s_waitcnt lgkmcnt(0)')
        for i in range(2): e(f'v_pk_add_f32 {v(t+12+2*i,2)}, {v(t+12+2*i,2)}, {v(t+16+2*i,2)}')
        for i in range(2): e(f'v_pk_add_f32 {v(t+4+2*i,2)}, {v(t+4+2*i,2)}, {v(t+12+2*i,2)}')
        for i in range(2): e(f'v_cvt_pk_bf16_f32 v{t+i}, v{t+4+2*i}, v{t+5+2*i}')
        if clamp:
            for i in range(2): e(f'v_min_u32 v{t+i}, -2, v{t+i}')
    def code_prefetch(self):
        e = self.e
        npl = self.o.get('npl', 3)
        e(f's_getpc_b64 s[20:21]\nL_PC:\ns_sub_u32 s20, s20, L_PC-{KN}\ns_subb_u32 s21, s21, 0')
        e(f's_and_b32 s22, s{sR}, 15\ns_lshl_b32 s22, s22, 2\ns_add_u32 s22, s22, s{sW}\ns_lshl_b32 s22, s22, 7')
        for i in range(npl):
            e(f's_min_u32 s23, s22, L_CODE_END-4-{KN}\ns_load_dword s7, s[20:21], s23')
            if i < npl-1: e(f's_add_u32 s22, s22, 8192')
    def kmap(self):
        k = self.o.get('kil', 0)
        if k == 0: return 17, 15, 4096
        if k == 1: return 12, 22, 1 << 19
        if k == 2: return 12, 19, 1 << 21
        if k == 3: return 14, 12, 1 << 21
        if k == 4: return 15, 22, 4096
        if k == 5: return -12, 19, 1 << 16
        if k == 6: return -12, 16, 1 << 18
        if k == 7: return -14, 12, 1 << 18
        if k == 8: return -15, 19, 4096
        if k == 9: return None, 16, None
    def ioff(self, i, istr): return i*istr if istr else (i>>1)*16384 + (i&1)*4096
    def kbase(self, dst, sidx, tsh):
        if tsh is None:
            self.e(f's_and_b32 s{dst}, s{sidx}, 63\ns_lshl_b32 s{dst}, s{dst}, 18\ns_lshr_b32 s{sTMP}, s{sidx}, 3\ns_lshr_b32 s7, s{sidx}, 6\ns_xor_b32 s{sTMP}, s{sTMP}, s7\ns_xor_b32 s{sTMP}, s{sTMP}, {self.o.get("kpol",0)}\ns_and_b32 s{sTMP}, s{sTMP}, 1\ns_lshl_b32 s{sTMP}, s{sTMP}, 13\ns_add_u32 s{dst}, s{dst}, s{sTMP}\ns_mov_b32 s7, 0')
        elif tsh > 0: self.e(f's_lshl_b32 s{dst}, s{sidx}, {tsh}')
        else: self.e(f's_and_b32 s{dst}, s{sidx}, 15\ns_lshl_b32 s{dst}, s{dst}, {-tsh}\ns_lshl_b32 s{sTMP}, s{sX8}, 21\ns_add_u32 s{dst}, s{dst}, s{sTMP}')
    def pol_ops(self, r, sd):
        ops = [f'v_cmp_lt_u32 vcc, 0xffffff, v{r}', f'v_and_b32 v{r}, 0xffffff, v{r}', f's_and_b32 s{sd+3}, vcc_lo, 15', f'v_cmp_eq_u32 vcc, 0, v{r}']
        ops += [f'v_add_u32_dpp v{r}, v{r}, v{r} {p} {DPP}' for p in ['quad_perm:[1,0,3,2]','quad_perm:[2,3,0,1]','row_half_mirror']]
        ops += [f'v_readlane_b32 s{sd+g}, v{r}, {8*g}' for g in range(3)]
        for g in range(3):
            ops += [f's_cmp_lt_u32 s{sd+g}, {8*BIAS}', f's_cselect_b32 s{sd+g}, 8192, 0']
            if 'force' in self.o: ops.append(f's_mov_b32 s{sd+g}, {8192*((self.o["force"]+g)&1)}')
        return ops
    def tags(self):
        self.e(f's_add_u32 s{sT0}, s{sE}, 0x9e3779b9\ns_xor_b32 s{sT1}, s{sT0}, 0x5bd1e995')

    def prologue(self):
        e = self.e
        self.stamp('start')
        e(f"""
        s_load_dwordx16 s[8:23], s[0:1], 0
        s_cmp_ge_u32 s2, 256
        s_cbranch_scc1 L_EXIT
        v_lshrrev_b32 v1, 6, v0
        v_and_b32 v0, 63, v0
        v_readfirstlane_b32 s{sW}, v1
        v_and_b32 v1, 15, v0
        v_lshrrev_b32 v2, 4, v0
        v_lshlrev_b32 v4, 2, v0
        {('s_add_u32 s%d, s2, %d' % (sX8, self.o['lrot'])) if self.o.get('lrot') else ''}
        s_and_b32 s{sX8}, s{sX8 if self.o.get('lrot') else 2}, 7
        s_lshr_b32 s{sR}, s2, 3
        v_lshlrev_b32 v5, 4, v1
        v_lshlrev_b32 v6, 5, v2
        v_xor_b32 v5, v5, v6
        v_lshl_add_u32 v6, v2, 13, v5
        s_lshr_b32 s67, s{sW}, 1
        s_lshl_b32 s67, s67, 7
        v_xor_b32 v8, s67, v6
        s_bfe_u32 s60, s{sR}, 0x20002
        s_mul_i32 s60, s60, {160*8192}
        s_and_b32 s63, s{sR}, 3
        s_lshl2_add_u32 s63, s{sX8}, s63
        s_lshl_b32 s63, s63, 8
        s_add_u32 s60, s60, s63
        s_lshl_b32 s61, s{sW}, 15
        s_lshl_b32 s62, s{sW}, 10
        s_mov_b32 s{rA+3}, 0x20000
        s_mov_b32 s{rC+3}, s{rA+3}
        s_sub_u32 s{rA+2}, 5242880, s60
        s_cmp_lt_u32 s{sR}, 16
        s_cselect_b32 s{rC+2}, 0, 1280
        s_cselect_b32 s64, {5*4*32768}, 0
        s_cselect_b32 s65, {QB-WQ}, 0
        s_add_u32 s61, s61, s64
        s_add_u32 s62, s62, s65
        s_add_u32 s62, s62, {WQ}
        s_waitcnt lgkmcnt(0)
        s_load_dwordx4 s[32:35], s[0:1], 96
        s_load_dwordx8 s[24:31], s[0:1], 64
        s_mov_b32 s{rC}, s{pX}
        s_and_b32 s{rC+1}, s{pX+1}, 0xffff
        s_add_u32 s{rA}, s{pWQ}, s60
        s_addc_u32 s{rA+1}, s{pWQ+1}, 0
        s_and_b32 s{rA+1}, s{rA+1}, 0xffff
        """)
        if self.o.get('t_wq', 5) == 0: e(f's_cmp_lt_u32 s{sR}, 16\ns_cbranch_scc1 L_SKIPQ')
        self.x_issue()
        for k in range(5): self.wq_dma(k)
        e(f"""
        L_SKIPQ:
        v_lshlrev_b32 v3, 4, v0
        v_mov_b32 v9, {OOB}
        v_lshlrev_b32 v11, 4, v2
        s_mov_b32 s{sTO}, 400000
        s_mov_b32 s{sLM}, -1
        s_mov_b32 s{sLC}, 0
        s_mov_b32 s{sLOC}, {LOC}
        s_mov_b32 s{rWS+2}, {WSSZ}
        s_mov_b32 s{rWS+3}, 0x20000
        s_cmp_lt_u32 s{sR}, 16
        s_cbranch_scc1 L_T
        """)
    def ws_srd(self):
        self.e(f's_waitcnt lgkmcnt(0)\ns_mov_b32 s{rWS}, s{pWS}\ns_and_b32 s{rWS+1}, s{pWS+1}, 0xffff')
    def x_issue(self):
        for kk in range(5): self.e(f'buffer_load_dword v{20+kk}, v4, {srd(rC)}, 0 offen offset:{256*kk} {self.o.get("xflag","")}')
    def wq_dma(self, k):
        e = self.e
        e(f's_add_u32 m0, s62, {k*4096}')
        e(f'buffer_load_dwordx4 v8, {srd(rA)}, s61 offen nt lds')
        if k < 9: e(f's_add_u32 s61, s61, {4*32768}')
    def wuk_setup(self, sAi, srdreg):
        e = self.e
        e(f'''
        s_lshl_b32 s63, s{sX8}, 2
        s_add_u32 s64, s63, s{sW}
        s_lshl_b32 s64, s64, 8
        s_lshl_b32 s65, s{sAi}, 18
        s_add_u32 s64, s64, s65
        ''')
        self.mk_srd(srdreg, pWUK, 64, 4194304)
        e(f'v_xor_b32 v7, 0x80, v6\ns_mov_b32 s68, 0\ns_lshl_b32 s69, s{sW}, 13')
    def wuk_dma(self, k, srdreg, base):
        e = self.e
        e(f's_add_u32 m0, s69, {base+k*1024}')
        e(f'buffer_load_dwordx4 v{6 if ((k>>1)&1)==0 else 7}, {srd(srdreg)}, s68 offen {self.o.get("ukflag","nt")} lds')
        if k < 7: e(f's_add_u32 s68, s68, 32768')
    def a1(self, role, y_x, y_wq, mid):
        e = self.e
        s0, s1 = 63, 64
        e(f'''
        v_lshrrev_b32 v12, 2, v1
        v_lshl_add_u32 v13, v2, 3, v12
        v_lshlrev_b32 v13, 8, v13
        v_and_b32 v14, 3, v1
        v_lshl_add_u32 v13, v14, 3, v13
        v_and_b32 v15, 1, v2
        v_lshl_or_b32 v15, v15, 2, v12
        s_lshl_b32 s{s0}, s{sW}, 1
        v_xor_b32 v15, s{s0}, v15
        v_lshl_add_u32 v60, v15, 5, v13
        v_xor_b32 v15, 1, v15
        v_lshl_add_u32 v61, v15, 5, v13
        v_add_u32 v56, {WQ}, v60
        v_add_u32 v57, {WQ}, v61
        ''')
        e(f'''
        v_lshl_add_u32 v12, v1, 6, v11
        s_and_b32 s{s0}, s{sR}, 3
        s_lshl_b32 s{s1}, s{sX8}, 2
        s_add_u32 s{s0}, s{s0}, s{s1}
        s_lshl_b32 s{s0}, s{s0}, 2
        s_bfe_u32 s{s1}, s{sR}, 0x20002
        s_add_u32 s{s0}, s{s0}, s{s1}
        s_lshl_b32 s{s0}, s{s0}, 9
        s_lshl_b32 s{s1}, s{sW}, 7
        s_add_u32 s{s0}, s{s0}, s{s1}
        s_add_u32 s{s0}, s{s0}, {QP}
        v_add_u32 v12, s{s0}, v12
        v_cmp_gt_u32 vcc, 2, v1
        v_cndmask_b32 v62, v9, v12, vcc
        v_cmp_eq_u32 s[70:71], 1, v1
        s_mul_i32 s{s0}, s{sW}, 1280
        s_add_u32 s{s0}, s{s0}, {XN}
        v_add_u32 v10, s{s0}, v4
        s_bfe_u32 s{s1}, s{sR}, 0x20002
        s_mul_i32 s{s1}, s{s1}, 320
        s_add_u32 s{s0}, s{s0}, s{s1}
        v_add_u32 v12, s{s0}, v11
        s_waitcnt vmcnt({y_x}) lgkmcnt(0)
        ''')
        self.stamp(role+'.x')
        for k in range(5): e(f'v_lshlrev_b32 v{26+2*k}, 16, v{20+k}\nv_and_b32 v{27+2*k}, 0xffff0000, v{20+k}')
        e('v_pk_add_f32 v[36:37], v[26:27], v[28:29]\nv_pk_add_f32 v[38:39], v[30:31], v[32:33]\nv_pk_add_f32 v[36:37], v[36:37], v[34:35]\nv_pk_add_f32 v[36:37], v[36:37], v[38:39]\nv_add_f32 v36, v36, v37')
        self.allred('v_add_f32', 36, 37)
        e('v_mul_f32 v36, 0xbacccccd, v36\nv_mov_b32 v37, v36')
        for k in range(26,36,2): e(f'v_pk_add_f32 {v(k,2)}, {v(k,2)}, v[36:37]')
        e('v_pk_mul_f32 v[36:37], v[26:27], v[26:27]')
        for k in range(28,36,2): e(f'v_pk_fma_f32 v[36:37], {v(k,2)}, {v(k,2)}, v[36:37]')
        e('v_add_f32 v36, v36, v37')
        self.allred('v_add_f32', 36, 37)
        e('v_mul_f32 v36, 0x3acccccd, v36\nv_add_f32 v36, 0x3727c5ac, v36\nv_rsq_f32 v36, v36\nv_mov_b32 v37, v36')
        for k in range(26,36,2): e(f'v_pk_mul_f32 {v(k,2)}, {v(k,2)}, v[36:37]')
        for k in range(5): e(f'v_cvt_pk_bf16_f32 v{20+k}, v{26+2*k}, v{27+2*k}\nds_write_b32 v10, v{20+k} offset:{256*k}')
        e('s_waitcnt lgkmcnt(0)')
        for s in range(5): e(f'ds_read_b128 {v(36+4*s,4)}, v12 offset:{s*64}')
        e(f's_load_dword s{sE}, s[{pWS}:{pWS+1}], {EPOCH}')
        self.stamp(role+'.ln')
        mid()
        e(f's_waitcnt vmcnt({y_wq}) lgkmcnt(0)\ns_barrier')
        self.stamp(role+'.wq')
        vW = 128
        for s in range(5):
            for T in range(2):
                for q in range(2): e(f'ds_read_b64_tr_b16 {v(vW+(s*2+T)*4+2*q,2)}, v{56+T} offset:{s*8192+q*1024}')
        self.tags()
        e(f'v_mov_b32 v18, s{sT0}\nv_mov_b32 v19, s{sT1}')
        for s in range(5):
            for T in range(2):
                e(f's_waitcnt lgkmcnt({min(15,18-(s*2+T)*2)})')
                e(f'v_mfma_f32_16x16x32_bf16 {v(84+4*T,4)}, {v(vW+(s*2+T)*4,4)}, {v(36+4*s,4)}, ' + ('0' if s==0 else v(84+4*T,4)))
        for i in range(4): e(f'v_cvt_pk_bf16_f32 v{92+i}, v{84+2*i}, v{85+2*i}')
        e('v_cndmask_b32 v16, v92, v94, s[70:71]\nv_cndmask_b32 v17, v93, v95, s[70:71]')
        self.publ('v[16:19]', 62)
        self.stamp(role+'.qp')


    def role_A(self):
        e = self.e
        QV=0; CL=1024; ML=2304; RED=2560; DUM=3584; WUK=4096; WUV=36864
        W1=69632; W2=W1+20480; HB=4096; AP=HB+2048; ST=AP+256; HELP=135168
        sAi,sHd,sJ,s0,s1,s2_,sSL = 72,73,74,63,64,65,66
        sF,sG = 60,61
        if self.o.get('noA'): e('s_branch L_EXIT')
        order = self.o.get('a_order', 'qqqqq|uuuuuuuu')
        cnt = {'q':5,'u':0}
        def issue(ch):
            if ch == 'q': self.wq_dma(cnt['q'])
            else:
                if cnt['u'] == 0: self.wuk_setup(sAi, rB)
                self.wuk_dma(cnt['u'], rB, WUK)
            cnt[ch] += 1
        e(f's_sub_u32 s{sAi}, s{sR}, 16')
        order, o3 = (order.split('!') + [''])[:2]
        o1, o2 = order.split('|')
        for ch in o1: issue(ch)
        self.ws_srd()
        e(f"""
        s_lshl_b32 s63, s{sX8}, 2
        s_and_b32 s{sHd}, s{sAi}, 3
        s_add_u32 s{sHd}, s{sHd}, s63
        s_lshr_b32 s{sJ}, s{sAi}, 2
        s_lshl_b32 s{sSL}, s{sX8}, 4
        s_add_u32 s{sSL}, s{sSL}, s{sAi}
        """)
        def mid():
            for ch in o2: issue(ch)
        full = o1 + o2
        self.a1('A', 5+len(o1), len(full)-1-full.rindex('q'), mid)
        for ch in o3: issue(ch)
        e(f"""
        s_lshl2_add_u32 s{s0}, s{sX8}, s{sW}
        s_lshl4_add_u32 s{s0}, s{s0}, s{sAi}
        s_lshl_b32 s{s0}, s{s0}, 6
        s_add_u32 s{s0}, s{s0}, {QLB}
        v_add_u32 v12, s{s0}, v4
        s_lshl2_add_u32 s{s1}, s{sSL}, s{sW}
        s_lshl_b32 s{s0}, s{s1}, 7
        s_add_u32 s{s0}, s{s0}, {HCB}
        v_lshlrev_b32 v13, 3, v0
        v_add_u32 v13, s{s0}, v13
        s_lshl_b32 s{s0}, s{s1}, 3
        s_add_u32 s{s0}, s{s0}, {QCS}
        v_mov_b32 v14, s{s0}
        s_and_b32 s{s1}, s{sAi}, 7
        s_lshl_b32 s{s1}, s{s1}, 1
        v_cmp_eq_u32 vcc, s{s1}, v0
        v_cndmask_b32 v103, v9, v14, vcc
        v_cmp_gt_u32 vcc, 16, v0
        v_cndmask_b32 v101, v9, v12, vcc
        v_cndmask_b32 v102, v9, v13, vcc
        v_mov_b32 v99, s{sT0}
        """)
        e(f"""
        v_lshlrev_b32 v27, 9, v2
        v_lshl_add_u32 v27, v1, 4, v27
        s_lshl_b32 s{s2_}, s{sX8}, 2
        s_add_u32 s{s2_}, s{s2_}, s{sW}
        s_lshl_b32 s{s2_}, s{s2_}, 11
        s_add_u32 s{s2_}, s{s2_}, {QP+LOC}
        v_lshlrev_b32 v12, 9, v1
        s_lshl_b32 s{s0}, s{sW}, 13
        s_add_u32 s{s0}, s{s0}, {WUK}
        v_add_u32 v12, s{s0}, v12
        v_and_b32 v13, 1, v1
        v_and_b32 v14, 4, v1
        v_lshl_or_b32 v13, v13, 1, v14
        v_lshlrev_b32 v13, 5, v13
        """)
        def h0loads():
            for i in range(2): e(f'buffer_load_dwordx4 {v(64+4*i,4)}, v27, {srd(rWS)}, s{s2_} offen offset:{i*256} sc1')
        for s in range(4):
            e(f'v_add_u32 v14, {s*64}, v11\nv_xor_b32 v14, v14, v13\nv_add_u32 v{40+2*s}, v14, v12\nv_xor_b32 v14, 32, v14\nv_add_u32 v{41+2*s}, v14, v12')
        vI = 28
        self.ident_masks(vI, 0x3f80, 0x3f800000, 0, 8, 12)
        e(f"""
        s_lshl_b32 s{s0}, s{sW}, 8
        v_lshlrev_b32 v12, 3, v0
        v_add_u32 v12, s{s0}, v12
        v_mov_b32 v13, {DUM}
        v_cmp_gt_u32 vcc, 32, v0
        v_cndmask_b32 v24, v13, v12, vcc
        v_add_u32 v25, s{s0}, v11
        """)
        e(f's_waitcnt vmcnt({(0 if o3 else 1)+self.o.get("h0lead",3)})')
        h0loads()
        e(f's_waitcnt vmcnt({2 if o3 else 3})')
        self.stamp('A.wuk')
        vU = 112
        for s in range(4):
            for T in range(2): e(f'ds_read_b128 {v(vU+(s*2+T)*4,4)}, v{40+2*s+T} offset:{T*256}')
        e('L_A_H0:')
        e('s_waitcnt vmcnt(0)')
        for i in range(2):
            e(f'v_mfma_f32_16x16x16_bf16 v[80:83], {v(vI+2*i,2)}, {v(64+4*i,2)}, ' + ('0' if i==0 else 'v[80:83]'))
        self.tagcheck(12, [66,70])
        e('s_cbranch_vccz L_A_H0OK')
        self.fb((), (s2_,)); self.late_pubg('v[16:19]', 62)
        h0loads()
        e('s_branch L_A_H0')
        e('L_A_H0OK:')
        self.stamp('A.h0')
        e(f'v_cvt_pk_bf16_f32 v84, v80, v81\nv_cvt_pk_bf16_f32 v85, v82, v83\nds_write_b64 v24, v[84:85] offset:{QV}')
        for s in range(4): e(f'ds_read_b128 {v(144+4*s,4)}, v25 offset:{QV+s*64}')
        for s in range(4):
            e(f's_waitcnt lgkmcnt({3-s})')
            for T in range(2):
                e(f'v_mfma_f32_16x16x32_bf16 {v(104+4*T,4)}, {v(144+4*s,4)}, {v(vU+(s*2+T)*4,4)}, ' + ('0' if s==0 else v(104+4*T,4)))
        e('v_cvt_pk_bf16_f32 v64, v104, v108')
        self.pub('v64', 101)
        e(f'v_add_u32_dpp v96, v64, v64 quad_perm:[2,3,0,1] {DPP}\nv_xor_b32 v97, s{sT0}, v64\nv_add_u32_dpp v96, v96, v96 row_ror:4 {DPP}\nv_add_u32_dpp v96, v96, v96 row_ror:8 {DPP}')
        self.pub('v[96:97]', 103)
        self.stamp('A.ql')
        self.pubg('v[16:19]', 62)
        e('s_branch L_A2\n;SEG A2\nL_A2:')
        if self.o.get('pf', 3) == 3:
            e(f's_getpc_b64 s[20:21]\nL_PC:\ns_sub_u32 s20, s20, L_PC-{KN}\ns_subb_u32 s21, s21, 0')
            e(f's_lshl_b32 s{s0}, s{sW}, 13\nv_lshlrev_b32 v12, 7, v0\nv_add_u32 v12, s{s0}, v12\nv_min_u32 v12, L_CODE_END-4-{KN}, v12')
            e(f's_and_b32 s{s0}, s{sAi}, 3\ns_cmp_lg_u32 s{s0}, 0\ns_cbranch_scc1 L_NOPF\nglobal_load_dword v255, v12, s[20:21]\nL_NOPF:')
        e('s_barrier')
        nh = self.o.get('a_help', 0)
        if nh:
            tsh, wsh, istr = self.kmap()
            self.kbase(s0, sSL, tsh)
            self.mk_srd(rA, pCKV, s0, 16777216)
            e(f'v_lshlrev_b32 v12, 10, v2\nv_lshl_add_u32 v12, v1, 4, v12\ns_lshl_b32 s68, s{sW}, {wsh}\ns_lshl_b32 s69, s{sW}, 12\ns_add_u32 m0, s69, {HELP}')
            for n in range(32-nh, 32):
                c, i = n >> 3, n & 7
                e(f's_add_u32 s{sTMP}, s68, {self.ioff(i,istr)+c*256}')
                e(f'buffer_load_dwordx4 v12, {srd(rA)}, s{sTMP} offen {self.o.get("helpflag","nt")} lds')
        e(f"""
        v_lshrrev_b32 v12, 1, v2
        v_lshl_add_u32 v62, v12, 20, v5
        v_and_b32 v12, 1, v2
        v_lshl_add_u32 v62, v12, 17, v62
        v_xor_b32 v62, s67, v62
        s_lshl_b32 s{sG}, s{sJ}, 3
        s_add_u32 s{sG}, s{sG}, s{sX8}
        s_and_b32 s{sF}, s{sAi}, 3
        s_lshl_b32 s{s2_}, s{sG}, 2
        s_add_u32 s{sF}, s{sF}, s{s2_}
        """)
        sB = 62
        e(f"""
        v_and_b32 v5, 7, v1
        v_lshlrev_b32 v5, 4, v5
        v_and_b32 v6, 1, v2
        v_lshl_add_u32 v6, v6, 3, v5
        v_lshrrev_b32 v12, 3, v0
        v_and_b32 v13, 3, v12
        v_lshl_add_u32 v14, v13, 11, v5
        v_lshrrev_b32 v13, 5, v0
        v_lshl_add_u32 v14, v13, 14, v14
        v_cmp_eq_u32 vcc, s{sX8}, v12
        v_or_b32 v13, s{sLOC}, v14
        s_lshr_b32 s77, s{sX8}, 2
        s_lshl_b32 s77, s77, 13
        v_cndmask_b32 v46, v14, v13, vcc
        v_mov_b32 v15, 8192
        v_cndmask_b32 v40, v15, 0, vcc
        s_cmp_ge_u32 s{sG}, 27
        s_cbranch_scc1 L_A_NOF
        s_lshl_b32 s{s0}, s{sF}, 5
        """)
        self.mk_srd(rA, pW1, s0, 2211840)
        e(f's_mul_i32 s{s0}, s{sF}, 20480')
        self.mk_srd(rB, pW2, s0, 2211840)
        e(f"""
        v_and_b32 v7, 3, v12
        v_lshlrev_b32 v7, 3, v7
        v_lshrrev_b32 v8, 5, v0
        v_lshl_add_u32 v7, v8, 2, v7
        v_bfe_u32 v8, v0, 1, 2
        v_add_u32 v7, v7, v8
        v_mul_u32_u24 v7, 3456, v7
        v_and_b32 v8, 1, v0
        v_lshl_add_u32 v7, v8, 4, v7
        s_and_b32 s78, s{sF}, 3
        s_lshl_b32 s78, s78, 2
        s_add_u32 s78, s78, s{sW}
        """)
        w1f = self.o.get('w1flag', '')
        n1 = self.o.get('w1first', 2)
        def w1dma(k, r):
            if k == 1: e(f's_add_u32 s{sTMP}, s{sW}, 16')
            else:
                if k >= 2: e(f's_add_u32 s78, s78, 4\ns_and_b32 s78, s78, 15')
                e(f's_mov_b32 s{sTMP}, s78')
            e(f's_lshl_b32 s{s0}, s{sTMP}, 10\ns_add_u32 m0, s{s0}, {W1}\ns_mul_i32 s{s0}, s{sTMP}, 110592')
            e(f'buffer_load_dwordx4 v7, {srd(r)}, s{s0} offen {w1f} lds')
        for k in range(n1): w1dma(k, rA)
        e(f"""
        s_mul_i32 s{sB}, s{sW}, 3
        s_cmp_eq_u32 s{sW}, 3
        s_cselect_b32 s{sB}, 8, s{sB}
        s_lshl_b32 s{sB}, s{sB}, 7
        v_lshrrev_b32 v8, 1, v2
        v_lshl_add_u32 v8, v8, 7, v6
        s_cmp_lt_u32 s{sW}, 2
        s_cselect_b32 s{s0}, 32, 0
        v_cmp_gt_u32 vcc, s{s0}, v0
        v_cndmask_b32 v13, v9, v6, vcc
        v_cmp_gt_u32 vcc, 8, v1
        v_cndmask_b32 v12, v9, v8, vcc
        v_cndmask_b32 v13, v9, v13, vcc
        buffer_load_dwordx2 v[16:17], v12, {srd(rC)}, s{sB} offen
        buffer_load_dwordx2 v[18:19], v13, {srd(rC)}, s{sB} offen offset:256
        s_lshl_b32 s{s0}, s{sF}, 5
        """)
        self.mk_srd(rC, pB1, s0, 3456)
        e(f'v_lshlrev_b32 v12, 3, v2\nbuffer_load_dwordx2 v[58:59], v12, {srd(rC)}, 0 offen')
        e(f"""
        s_lshl_b32 s{s0}, s{sW}, 9
        s_add_u32 s{s0}, s{s0}, {HB}
        v_add_u32 v48, s{s0}, v8
        v_add_u32 v12, 256, v48
        v_mov_b32 v13, {DUM}
        v_cmp_gt_u32 vcc, 32, v0
        v_cndmask_b32 v49, v13, v12, vcc
        v_add_u32 v50, s{s0}, v11
        s_cmp_lt_u32 s{sW}, 2
        s_cselect_b32 s{s0}, 0, {OOB}
        v_max_u32 v47, s{s0}, v46
        s_add_u32 s79, s{sB}, {H3B}
        v_lshl_add_u32 v12, v1, 6, v11
        s_mul_i32 s{s0}, s{sW}, 320
        v_add_u32 v13, s{s0}, v12
        s_and_b32 s{s2_}, s{sF}, 3
        s_lshl3_add_u32 s{s2_}, s{sG}, s{s2_}
        s_lshl_b32 s{s2_}, s{s2_}, 11
        s_add_u32 s{s2_}, s{s2_}, {HS+8192}
        v_add_u32 v12, s{s2_}, v13
        v_cmp_gt_u32 vcc, 5, v1
        v_cndmask_b32 v51, v9, v12, vcc
        v_bfe_u32 v13, v13, 7, 2
        v_add_u32 v13, 4, v13
        v_cmp_eq_u32 vcc, s{sX8}, v13
        v_cndmask_b32 v43, v9, v51, vcc
        s_and_b32 s{s0}, s{sW}, 1
        s_mul_i32 s{s0}, s{s0}, 640
        s_add_u32 s{s2_}, s{s2_}, s{s0}
        s_lshr_b32 s{s0}, s{sW}, 1
        s_lshl_b32 s{s0}, s{s0}, 20
        s_add_u32 s{s2_}, s{s2_}, s{s0}
        v_add_u32 v12, s{s2_}, v3
        v_cmp_gt_u32 vcc, 40, v0
        v_cndmask_b32 v41, v9, v12, vcc
        s_lshl_b32 s{s2_}, s{sB}, 4
        s_add_u32 s{s2_}, s{s2_}, {W1}
        v_lshlrev_b32 v52, 3, v0
        v_add_u32 v52, s{s2_}, v52
        v_lshrrev_b32 v12, 2, v0
        v_mul_u32_u24 v12, 1280, v12
        v_and_b32 v13, 3, v1
        v_lshl_add_u32 v12, v13, 4, v12
        v_add_u32 v53, {W2}, v12
        s_lshl_b32 s{s0}, s{sW}, 2
        v_lshrrev_b32 v12, 5, v0
        v_lshlrev_b32 v12, 4, v12
        v_add_u32 v12, s{s0}, v12
        v_add_u32 v54, {ST}, v12
        s_lshl_b32 s{s0}, s{sW}, 6
        v_add_u32 v55, {AP}, v11
        v_add_u32 v45, s{s0}, v55
        v_mov_b32 v44, {ST}
        s_cmp_eq_u32 s{sW}, 3
        s_cselect_b32 s{s0}, 2048, 0
        v_subrev_u32 v42, s{s0}, v52
        """)
        e(f'v_lshrrev_b32 v12, 2, v1\nv_lshlrev_b32 v12, 6, v12\ns_mul_i32 s{s0}, s{sW}, 320')
        for P in range(5):
            e(f'v_xor_b32 v13, s{s0}, v12\nv_add_u32 v{229+P}, v13, v53')
            if P < 4: e(f's_add_u32 s{s0}, s{s0}, 64')
        e('s_branch L_A_FDONE\nL_A_NOF:')
        sK = sF
        e(f"""
        s_and_b32 s{s0}, s{sAi}, 3
        s_and_b32 s{sK}, s{sX8}, 3
        s_lshl2_add_u32 s{sK}, s{s0}, s{sK}
        s_cmp_lt_u32 s{sX8}, 4
        s_cselect_b32 s{sK}, 15, s{sK}
        s_lshl_b32 s{sB}, s{sK}, 7
        """)
        self.mk_srd(rB, pB2, None, 1280)
        e(f"""
        s_cmp_eq_u32 s{sW}, 0
        s_cselect_b32 s{s1}, 32, 0
        v_cmp_gt_u32 vcc, s{s1}, v0
        v_cndmask_b32 v6, v9, v6, vcc
        v_cmp_gt_u32 vcc, 8, v1
        v_cndmask_b32 v6, v9, v6, vcc
        buffer_load_dwordx2 v[16:17], v6, {srd(rC)}, s{sB} offen
        buffer_load_dwordx2 v[18:19], v6, {srd(rB)}, s{sB} offen
        s_mul_i32 s{s0}, s{sW}, 28
        v_add_u32 v15, s{s0}, v12
        """)
        for i in range(4):
            e(f'v_bfe_u32 v10, v15, 2, 3\nv_cmp_eq_u32 vcc, s{sX8}, v10\nv_cndmask_b32 v{48+i}, v14, v13, vcc')
            if i < 3: e('v_add_u32 v15, 8, v15')
            if i > 0: e(f'v_add_u32 v{48+i}, {32768*i}, v{48+i}')
        e(f"""
        s_cmp_lt_u32 s{sW}, 3
        s_cselect_b32 s{s1}, 4, 0
        v_cmp_gt_u32 vcc, s{s1}, v12
        v_cndmask_b32 v51, v9, v51, vcc
        s_add_u32 s79, s{sB}, {H3B}
        v_mov_b32 v47, v46
        v_mov_b32 v43, v9
        v_mov_b32 v41, v9
        s_lshl_b32 s{s0}, s{s0}, 12
        s_add_u32 s78, s{sB}, s{s0}
        s_add_u32 s78, s78, {HS+8192}
        v_lshlrev_b32 v52, 5, v1
        v_lshl_add_u32 v52, v2, 4, v52
        s_lshl_b32 s{s1}, s{sW}, 8
        s_add_u32 s{s1}, s{s1}, {RED}
        v_add_u32 v52, s{s1}, v52
        v_mov_b32 v13, {DUM}
        v_cmp_gt_u32 vcc, 32, v0
        v_cndmask_b32 v52, v13, v52, vcc
        v_cmp_gt_u32 vcc, 8, v1
        v_cndmask_b32 v52, v13, v52, vcc
        v_cmp_gt_u32 vcc, 16, v0
        v_lshlrev_b32 v12, 3, v0
        v_cndmask_b32 v53, v9, v12, vcc
        v_lshlrev_b32 v54, 4, v1
        v_cmp_eq_u32 vcc, 0, v0
        v_cndmask_b32 v55, v9, v0, vcc
        L_A_FDONE:
        """)
        e(f's_lshl_b32 s{s0}, s{sW}, 2\nv_add_u32 v12, s{s0}, v2')
        for k in range(5):
            e(f'v_add_u32 v13, {16*k}, v12\nv_mul_u32_u24 v13, 205, v13\nv_bfe_u32 v13, v13, 10, 2\nv_lshlrev_b32 v13, 6, v13\nv_xor_b32 v{224+k}, v13, v3')
        vMk = 36
        self.ident_masks(vMk, 0xffff, 0xffff0000, 0, 4, 12)
        e(f"""
        s_lshl_b32 s{s0}, s{sW}, 2
        v_add_u32 v12, s{s0}, v2
        v_lshlrev_b32 v20, 10, v1
        v_lshl_add_u32 v20, v12, 14, v20
        v_lshrrev_b32 v13, 1, v12
        v_cmp_eq_u32 vcc, s{sX8}, v13
        v_or_b32 v12, s{sLOC}, v20
        v_cndmask_b32 v20, v20, v12, vcc
        v_and_b32 v20, s{sLM}, v20
        v_lshl_add_u32 v12, v2, 3, v1
        v_lshlrev_b32 v12, 8, v12
        v_mov_b32 v13, s{sT0}
        v_cmp_gt_u32 vcc, 8, v1
        v_cndmask_b32 v20, v9, v20, vcc
        v_cndmask_b32 v26, v9, v12, vcc
        v_cndmask_b32 v25, 0, v13, vcc
        s_mov_b32 s70, 0x00ff00ff
        s_mov_b32 s71, 0x00ff00ff
        s_and_b32 s{s1}, s{sHd}, 15
        s_lshl4_add_u32 s68, s{sJ}, s{s1}
        s_lshl_b32 s67, s68, 2
        s_lshl_b32 s68, s68, 4
        s_add_u32 s68, s68, s77
        s_add_u32 s68, s68, {REC}
        s_add_u32 s67, s67, s77
        s_lshl_b32 s{s1}, s{sW}, 14
        s_add_u32 s67, s67, s{s1}
        s_add_u32 s67, s67, {CS}
        v_lshlrev_b32 v22, 18, v2
        v_lshl_add_u32 v22, v1, 4, v22
        s_lshl_b32 s{s0}, s{sW}, 20
        s_add_u32 s69, s77, s{s0}
        s_add_u32 s69, s69, {PART}
        s_lshr_b32 s{s0}, s{sJ}, 1
        s_lshl_b32 s{s0}, s{s0}, 14
        s_add_u32 s69, s69, s{s0}
        s_and_b32 s{s0}, s{sJ}, 1
        s_lshl_b32 s{s0}, s{s0}, 12
        s_add_u32 s69, s69, s{s0}
        s_and_b32 s{s0}, s{sHd}, 3
        s_lshl_b32 s{s0}, s{s0}, 10
        s_add_u32 s69, s69, s{s0}
        s_bfe_u32 s{s0}, s{sHd}, 0x20002
        s_lshl_b32 s{s0}, s{s0}, 8
        s_add_u32 s69, s69, s{s0}
        v_lshlrev_b32 v12, 4, v1
        v_lshl_add_u32 v12, v2, 3, v12
        s_mul_i32 s{s0}, s{sW}, 320
        s_add_u32 s{s0}, s{s0}, {CL}
        v_add_u32 v12, s{s0}, v12
        v_mov_b32 v13, {DUM}
        v_cmp_gt_u32 vcc, 32, v0
        v_cndmask_b32 v23, v13, v12, vcc
        v_and_b32 v12, 3, v1
        v_mul_u32_u24 v12, 320, v12
        v_add_u32 v12, v12, v11
        v_add_u32 v24, {CL}, v12
        s_lshl_b32 s{s0}, s{sW}, 2
        s_add_u32 s{s0}, s{s0}, {ML}
        v_mov_b32 v12, s{s0}
        v_cmp_gt_u32 vcc, 8, v1
        v_cndmask_b32 v21, v13, v12, vcc
        v_mov_b32 v27, {ML}
        v_add_u32 v56, {WUV}, v60
        v_add_u32 v57, {WUV}, v61
        """)
        e(f's_lshl_b32 s{s0}, s{sJ}, 18\ns_lshl_b32 s{s1}, s{sHd}, 8\ns_add_u32 s{s0}, s{s0}, s{s1}')
        self.mk_srd(rA, pWUV, s0, 4194304)
        e(f"""
        s_and_b32 s{s0}, s{sW}, 1
        s_lshl_b32 s{s0}, s{s0}, 8
        s_lshr_b32 s{s1}, s{sW}, 1
        s_add_u32 s{s0}, s{s0}, s{s1}
        s_lshl_b32 s{s0}, s{s0}, 13
        s_lshl_b32 s{s1}, s{sW}, 10
        """)
        npace = self.o.get('a2_pace', 0)
        gate = self.o.get('gate', 4)
        ntr = self.o.get('trickle', 0)
        def gwait():
            e(f's_lshl_b32 s75, s{sSL}, 7\ns_add_u32 s75, s75, {GATE}\nv_mov_b32 v12, 0\ns_mov_b32 s8, 40')
            e(f'L_A_G:\nbuffer_load_dword v13, v12, {srd(rWS)}, s75 offen sc1\ns_waitcnt vmcnt(0)\nv_readfirstlane_b32 s76, v13\ns_cmp_eq_u32 s76, s{sT1}\ns_cbranch_scc1 L_A_GOK\ns_sub_u32 s8, s8, 1\ns_cbranch_scc0 L_A_G\nL_A_GOK:')
            self.stamp('A.gate')
        for k in range(8):
            if k < npace: e('s_waitcnt vmcnt(0)')
            if gate and k == ntr: gwait()
            e(f's_add_u32 m0, s{s1}, {WUV+k*4096}')
            e(f'buffer_load_dwordx4 v62, {srd(rA)}, s{s0} offen nt lds')
            if k < 7: e(f's_add_u32 s{s0}, s{s0}, 16384')
        late = 1
        nwo = self.o.get('wo_help', 0)
        if nwo:
            e(f's_lshl2_add_u32 s{s0}, s{sX8}, s{sJ}\ns_lshl_b32 s{s0}, s{s0}, 3\ns_and_b32 s{s2_}, s{sAi}, 3\ns_add_u32 s{s0}, s{s0}, s{s2_}\ns_add_u32 s{s0}, s{s0}, 4\ns_mul_i32 s{s0}, s{s0}, 20480')
            self.mk_srd(rA, pWO, s0, 5242880)
            e(f's_lshl_b32 s{s2_}, s{sW}, 12\ns_add_u32 m0, s{s2_}, {HELP}')
            for k in range(5):
                e(f's_add_u32 s{s0}, s{s1}, {k*4096}')
                e(f'buffer_load_dwordx4 v3, {srd(rA)}, s{s0} offen lds')
        if n1 < 5 and not late & 2:
            e(f's_cmp_ge_u32 s{sG}, 27\ns_cbranch_scc1 L_A_NOW1\ns_lshl_b32 s{s0}, s{sF}, 5')
            self.mk_srd(rA, pW1, s0, 2211840)
            for k in range(n1, 5): w1dma(k, rA)
            e('L_A_NOW1:')
        e('v_min_u32 v14, 92, v4')
        e(f'L_A_POL:\nglobal_load_dword v15, v14, s[{pDBG}:{pDBG+1}] sc1\ns_waitcnt vmcnt(0)')
        for x in self.pol_ops(15, 8): e(x)
        e('s_cbranch_vccz L_A_POLOK'); self.timeout(); e('s_branch L_A_POL\nL_A_POLOK:')
        e(f"""
        s_and_b32 s12, s{sX8}, 3
        s_lshr_b32 s12, s11, s12
        s_and_b32 s12, s12, 1
        s_lshl_b32 s12, s12, 13
        s_cmp_lt_u32 s{sW}, 2
        s_cselect_b32 s9, s9, s10
        s_xor_b32 s9, s9, s12
        s_xor_b32 s12, s12, s8
        s_xor_b32 s69, s69, s9
        s_xor_b32 s68, s68, s12
        s_xor_b32 s67, s67, s12
        s_xor_b32 s77, s77, s12
        v_and_b32 v40, s77, v40
        v_xor_b32 v46, v46, v40
        v_xor_b32 v47, v47, v40
        v_xor_b32 v43, s12, v43
        v_bfe_u32 v12, v41, 7, 2
        v_bfe_u32 v12, s11, v12, 1
        v_lshlrev_b32 v12, 13, v12
        v_xor_b32 v12, s8, v12
        v_xor_b32 v41, v12, v41
        v_bfe_u32 v12, v51, 7, 2
        v_bfe_u32 v12, s11, v12, 1
        v_lshlrev_b32 v12, 13, v12
        v_xor_b32 v12, s8, v12
        s_cmp_ge_u32 s{sG}, 27
        s_cselect_b32 s9, s12, 0
        s_cselect_b32 s10, 0, -1
        s_xor_b32 s78, s78, s9
        v_and_b32 v12, s10, v12
        v_xor_b32 v51, v12, v51
        v_mov_b32 v12, -1
        v_mov_b32 v13, -1
        v_mov_b32 v14, -1
        v_mov_b32 v15, -1
        buffer_store_dwordx4 v[12:15], v41, {srd(rWS)}, 0 offen sc1
        """)
        e('s_branch L_A3\n;SEG A3\nL_A3:')
        e('s_barrier')
        self.stamp('A.land')
        for s in range(4):
            for T in range(2):
                for q in range(2): e(f'ds_read_b64_tr_b16 {a((s*2+T)*4+2*q,2)}, v{56+T} offset:{s*8192+q*1024}')
        e(f'buffer_load_dwordx4 v[236:239], v20, {srd(rWS)}, s68 offen sc1')
        vC0, vC1, vB1, vS1 = 192, 196, 200, 204
        for dst,src in [(vC0,16),(vC1,18)]:
            e(f'v_lshlrev_b32 v{dst}, 16, v{src}\nv_and_b32 v{dst+1}, 0xffff0000, v{src}\nv_lshlrev_b32 v{dst+2}, 16, v{src+1}\nv_and_b32 v{dst+3}, 0xffff0000, v{src+1}')
        e(f's_cmp_ge_u32 s{sG}, 27\ns_cbranch_scc1 L_A_NOF2')
        for s in range(6):
            for q in range(2): e(f'ds_read_b64_tr_b16 {a(32+s*4+2*q,2)}, v{52 if s < 4 else 42} offset:{s*1024+q*512}')
        e(f'v_lshlrev_b32 v{vB1}, 16, v58\nv_and_b32 v{vB1+1}, 0xffff0000, v58\nv_lshlrev_b32 v{vB1+2}, 16, v59\nv_and_b32 v{vB1+3}, 0xffff0000, v59')
        e(f's_cmp_lt_u32 s{sW}, 2\ns_cselect_b32 s{s0}, 0x3f803f80, 0')
        for r in range(4): e(f'v_mov_b32 v{208+r}, 0x3f803f80\nv_mov_b32 v{212+r}, s{s0}')
        e('s_waitcnt lgkmcnt(0)')
        for s in range(6):
            e(f'v_mfma_f32_16x16x32_bf16 {v(vS1,4)}, {a(32+s*4,4)}, {v(208 if s < 4 else 212,4)}, ' + ('0' if s == 0 else v(vS1,4)))
        e(f'ds_write_b128 v45, {v(vS1,4)}\ns_waitcnt lgkmcnt(0)\ns_barrier')
        for w in range(4): e(f'ds_read_b128 {v(208+4*w,4)}, v55 offset:{64*w}')
        e('s_waitcnt lgkmcnt(0)')
        for i in range(2): e(f'v_pk_add_f32 {v(208+2*i,2)}, {v(208+2*i,2)}, {v(212+2*i,2)}\nv_pk_add_f32 {v(216+2*i,2)}, {v(216+2*i,2)}, {v(220+2*i,2)}')
        for i in range(2): e(f'v_pk_add_f32 {v(vS1+2*i,2)}, {v(208+2*i,2)}, {v(216+2*i,2)}')
        e('L_A_NOF2:')
        e('s_waitcnt lgkmcnt(0)')
        self.stamp('A.w2rdy')
        def rl_(k): e(f'buffer_load_dwordx4 {v(236+4*k,4)}, v20, {srd(rWS)}, s68 offen sc1')
        def rc_(k):
            e(f'v_cmp_ne_u64 vcc, s[{sT0}:{sT1}], {v(238+4*k,2)}\nv_mov_b32 v64, v{236+4*k}\nv_mov_b32 v65, v{237+4*k}\ns_and_b64 vcc, vcc, s[70:71]')
        self.ppoll('L_A_REC', self.o.get('nrec',2), 1, rl_, rc_, vregs=(20,), pre_issued=1)
        vD = 128; vAF = 160
        if self.stamps and 'A.rec1' in self.o.get('want', []):
            k = len(self.slots['A']); e(f's_waitcnt lgkmcnt(0)\ns_cmp_lg_u32 s{sSTAMP+2*k}, 0\ns_cbranch_scc1 L_R1'); self.stamp('A.rec1'); e('L_R1:')
        if self.o.get('recbar'): e('s_barrier')
        dd = self.o.get('ddelay', [0,0])
        if dd[0]: e(f's_sleep {dd[0]}')
        if dd[1]: e(f's_cmp_lt_u32 s{sX8}, 4\ns_cbranch_scc1 L_A_NOD\ns_sleep {dd[1]}\nL_A_NOD:')
        def dloads():
            e(f's_mov_b32 s{sTMP}, s69')
            for i in range(8):
                e(f'buffer_load_dwordx4 {v(vD+4*i,4)}, v22, {srd(rWS)}, s{sTMP} offen sc1')
                if i < 7: e(f's_add_u32 s{sTMP}, s{sTMP}, 32768')
            e(f'buffer_load_dword v67, v26, {srd(rWS)}, s67 offen sc1')
        dloads()
        self.stamp('A.rec')
        e('v_mov_b32 v72, v64')
        self.allred('v_max_f32', 72, 74, 3)
        e('v_sub_f32 v64, v64, v72\nv_exp_f32 v64, v64\nv_cvt_pk_bf16_f32 v64, v64, v64\nv_and_b32 v73, 0xffff0000, v64\nv_mul_f32 v73, v73, v65')
        for i in range(8):
            for r in range(4): e(f'v_and_b32_dpp v{vAF+4*i+r}, v64, v{vMk+r} row_newbcast:{i} {DPP}')
        self.allred('v_add_f32', 73, 74, 3)
        e('ds_write2_b32 v21, v72, v73 offset0:0 offset1:4')
        e('L_A_DATA:')
        e('v_sub_u32 v66, 0, v25')
        for i in range(8):
            e(f's_waitcnt vmcnt({8-i})')
            e(f'v_mfma_f32_16x16x32_bf16 v[76:79], {v(vAF+4*i,4)}, {v(vD+4*i,4)}, ' + ('0' if i==0 else 'v[76:79]'))
            e(f'v_add3_u32 v66, v66, v{vD+4*i}, v{vD+4*i+1}\nv_add3_u32 v66, v66, v{vD+4*i+2}, v{vD+4*i+3}')
        e('s_waitcnt vmcnt(0)\nv_add_u32 v66, v66, v67')
        self.stamp('A.data')
        e(f'v_add_u32_dpp v66, v66, v66 quad_perm:[1,0,3,2] {DPP}')
        e(f'v_cvt_pk_bf16_f32 v74, v76, v77\nv_cvt_pk_bf16_f32 v75, v78, v79\nv_add_u32_dpp v66, v66, v66 quad_perm:[2,3,0,1] {DPP}\nds_write_b64 v23, v[74:75]')
        e(f'v_add_u32_dpp v66, v66, v66 row_half_mirror {DPP}\nv_add_u32_dpp v66, v66, v66 row_mirror {DPP}\nv_cmp_ne_u32 vcc, 0, v66\ns_cbranch_vccz L_A_DOK')
        self.timeout()
        if self.stamps: e('s_add_u32 s7, s7, 1')
        e('s_mov_b64 exec, vcc')
        dloads()
        e('s_mov_b64 exec, -1\ns_branch L_A_DATA\nL_A_DOK:')
        e('s_waitcnt lgkmcnt(0)\ns_barrier')
        self.stamp('A.clbar')
        e(f'ds_read_b128 v[80:83], v24\nds_read_b128 v[64:67], v27\nds_read_b128 v[84:87], v24 offset:64\nds_read_b128 v[68:71], v27 offset:16\nds_read_b128 v[88:91], v24 offset:128\nds_read_b128 v[92:95], v24 offset:192')
        fac = [[], ['s_waitcnt lgkmcnt(4)', 'v_max3_f32 v72, v64, v65, v66', 'v_max_f32 v72, v72, v67'], ['v_sub_f32 v64, v64, v72', 'v_sub_f32 v65, v65, v72'], ['v_sub_f32 v66, v66, v72', 'v_sub_f32 v67, v67, v72'],
               ['v_exp_f32 v64, v64'], ['v_exp_f32 v65, v65'], ['v_exp_f32 v66, v66'],
               ['v_exp_f32 v67, v67', 'v_mul_f32 v72, v64, v68', 'v_fmac_f32 v72, v65, v69', 'v_fmac_f32 v72, v66, v70', 'v_fmac_f32 v72, v67, v71', 'v_rcp_f32 v72, v72']]
        for s in range(4):
            e(f's_waitcnt lgkmcnt({[5,3,1,0][s]})')
            for T in range(2):
                e(f'v_mfma_f32_16x16x32_bf16 {v(104+4*T,4)}, {v(80+4*s,4)}, {a((s*2+T)*4,4)}, ' + ('0' if s==0 else v(104+4*T,4)))
                for x in fac[2*s+T]: e(x)
        e('v_pk_mul_f32 v[104:105], v[104:105], v[64:65]\nv_pk_mul_f32 v[108:109], v[108:109], v[64:65]')
        e('v_pk_fma_f32 v[104:105], v[106:107], v[66:67], v[104:105]\nv_pk_fma_f32 v[108:109], v[110:111], v[66:67], v[108:109]')
        e('v_add_f32 v104, v104, v105\nv_add_f32 v108, v108, v109\nv_mul_f32 v104, v104, v72\nv_mul_f32 v108, v108, v72')
        e('v_cvt_pk_bf16_f32 v98, v104, v108')
        self.publ('v[98:99]', 102); self.pubg('v[98:99]', 102)
        self.stamp('A.hc')
        e(f's_cmp_ge_u32 s{sG}, 27\ns_cbranch_scc1 L_FIN')
        def w2dma():
            for k in range(5):
                e(f's_add_u32 m0, s{s1}, {W2+k*4096}\ns_add_u32 s{s0}, s{s1}, {k*4096}')
                e(f'buffer_load_dwordx4 v{224+k}, {srd(rB)}, s{s0} offen nt lds')
        e(f's_lshl_b32 s{s1}, s{sW}, 10')
        w2dma()
        for P in range(5):
            e(f's_mov_b32 s{68+2*P}, {0x00010001<<P}\ns_mov_b32 s{69+2*P}, {0x00010001<<P}')
        self.lmask((46,47))
        def hl(k):
            b = 152+12*k
            e(f'buffer_load_dwordx4 {v(b,4)}, v46, {srd(rWS)}, s79 offen sc1')
            e(f'buffer_load_dwordx4 {v(b+4,4)}, v46, {srd(rWS)}, s79 offen offset:128 sc1')
            e(f'buffer_load_dwordx4 {v(b+8,4)}, v47, {srd(rWS)}, s79 offen offset:256 sc1')
        def hck(k):
            b = 152+12*k
            e(f'v_mfma_f32_16x16x32_bf16 v[76:79], {v(vI,4)}, {v(b,4)}, {v(vC0,4)}')
            e(f'v_mfma_f32_16x16x32_bf16 v[76:79], {v(vI+4,4)}, {v(b+4,4)}, v[76:79]')
            e(f'v_mfma_f32_16x16x32_bf16 v[80:83], {v(vI,4)}, {v(b+8,4)}, {v(vC1,4)}')
            self.maxchain(12, range(b, b+12))
            e('v_cmp_eq_u32 vcc, -1, v12')
        e('s_waitcnt vmcnt(0)')
        self.stamp('F.land')
        hl(0)
        e('s_barrier')
        for P in range(5):
            for hb in range(2): e(f'ds_read_b64_tr_b16 {a(56+P*4+2*hb,2)}, v{229+P} offset:{hb*8}')
        e('s_waitcnt lgkmcnt(0)')
        self.stamp('F.prep')
        self.ppoll('L_F_POLL', self.o.get('nh3',2), 3, hl, hck, vregs=(46,47), pre_issued=1)
        self.stamp('F.h3b')
        vB = 128
        for r in range(4): e(f'v_add_f32_dpp v{76+r}, v{76+r}, v{76+r} row_ror:8 {DPP}')
        e('v_cvt_pk_bf16_f32 v84, v76, v77\nv_cvt_pk_bf16_f32 v85, v78, v79\nds_write_b64 v48, v[84:85]')
        for s in range(4): e(f'ds_read_b128 {v(vB+4*s,4)}, v50 offset:{s*64}')
        for r in range(4): e(f'v_add_f32_dpp v{80+r}, v{80+r}, v{80+r} row_ror:8 {DPP}')
        e('v_cvt_pk_bf16_f32 v86, v80, v81\nv_cvt_pk_bf16_f32 v87, v82, v83\nds_write_b64 v49, v[86:87]')
        for s in range(4,6): e(f'ds_read_b128 {v(vB+4*s,4)}, v50 offset:{s*64}')
        e('v_pk_add_f32 v[88:89], v[76:77], v[78:79]\nv_pk_mul_f32 v[92:93], v[76:77], v[76:77]\nv_pk_add_f32 v[90:91], v[80:81], v[82:83]\nv_pk_fma_f32 v[92:93], v[78:79], v[78:79], v[92:93]')
        e('v_pk_add_f32 v[88:89], v[88:89], v[90:91]\nv_pk_fma_f32 v[92:93], v[80:81], v[80:81], v[92:93]\nv_pk_fma_f32 v[92:93], v[82:83], v[82:83], v[92:93]')
        st = [['v_add_f32 v88, v88, v89', 'v_add_f32 v92, v92, v93'], ['s_nop 0', 'v_permlane32_swap_b32 v88, v92', 'v_add_f32 v88, v88, v92'], ['v_mov_b32 v92, v88'],
              ['s_nop 0', 'v_permlane16_swap_b32 v88, v92', 'v_add_f32 v88, v88, v92'], ['s_nop 0', f'v_add_f32_dpp v88, v88, v88 quad_perm:[1,0,3,2] {DPP}'],
              [f'v_add_f32_dpp v88, v88, v88 quad_perm:[2,3,0,1] {DPP}', f'v_add_f32_dpp v88, v88, v88 row_half_mirror {DPP}', 'v_mul_f32 v88, 0x3acccccd, v88', 'ds_write_b32 v54, v88']]
        for s in range(6):
            e(f's_waitcnt lgkmcnt({[6,5,4,3,1,0][s]})')
            e(f'v_mfma_f32_16x16x32_bf16 v[96:99], {a(32+s*4,4)}, {v(vB+4*s,4)}, ' + ('0' if s == 0 else 'v[96:99]'))
            for x in st[s]: e(x)
        e('ds_write_b128 v45, v[96:99]\ns_waitcnt lgkmcnt(0)\ns_barrier')
        self.stamp('F.abar')
        e('ds_read_b128 v[100:103], v44\nds_read_b128 v[104:107], v44 offset:16')
        for w in range(4): e(f'ds_read_b128 {v(128+4*w,4)}, v55 offset:{64*w}')
        e(f"""
        s_waitcnt lgkmcnt(4)
        v_pk_add_f32 v[100:101], v[100:101], v[102:103]
        v_pk_add_f32 v[104:105], v[104:105], v[106:107]
        v_add_f32 v100, v100, v101
        v_add_f32 v104, v104, v105
        v_fma_f32 v104, -v100, v100, v104
        v_max_f32 v104, 0, v104
        v_add_f32 v104, 0x3727c5ac, v104
        v_rsq_f32 v104, v104
        s_waitcnt lgkmcnt(0)
        v_pk_fma_f32 v[128:129], {v(vS1,2)}, v[100:101], v[128:129] op_sel_hi:[1,0,1] neg_lo:[0,1,0] neg_hi:[0,1,0]
        v_pk_fma_f32 v[130:131], {v(vS1+2,2)}, v[100:101], v[130:131] op_sel_hi:[1,0,1] neg_lo:[0,1,0] neg_hi:[0,1,0]
        v_pk_add_f32 v[136:137], v[136:137], v[140:141]
        v_pk_add_f32 v[138:139], v[138:139], v[142:143]
        v_pk_add_f32 v[128:129], v[128:129], v[132:133]
        v_pk_add_f32 v[130:131], v[130:131], v[134:135]
        v_pk_add_f32 v[128:129], v[128:129], v[136:137]
        v_pk_add_f32 v[130:131], v[130:131], v[138:139]
        v_pk_fma_f32 v[128:129], v[128:129], v[104:105], {v(vB1,2)} op_sel_hi:[1,0,1]
        v_pk_fma_f32 v[130:131], v[130:131], v[104:105], {v(vB1+2,2)} op_sel_hi:[1,0,1]
        """)
        for r in range(4): e(f'v_max_f32 v{128+r}, 0, v{128+r}')
        e('v_pk_mul_f32 v[128:129], v[128:129], v[128:129]\nv_pk_mul_f32 v[130:131], v[130:131], v[130:131]')
        e('v_cvt_pk_bf16_f32 v108, v128, v129\nv_cvt_pk_bf16_f32 v109, v130, v131')
        self.stamp('F.f1')
        def cm(P): e(f'v_cndmask_b32 v{110+2*P}, 0, v108, s[{68+2*P}:{69+2*P}]\nv_cndmask_b32 v{111+2*P}, 0, v109, s[{68+2*P}:{69+2*P}]')
        cm(0); cm(1)
        for P in range(5):
            for hb in range(2):
                e(f'v_mfma_f32_16x16x16_bf16 {v(120+4*hb,4)}, {a(56+P*4+2*hb,2)}, {v(110+2*P,2)}, ' + ('0' if P == 0 else v(120+4*hb,4)))
                if hb == 0 and P+2 < 5: cm(P+2)
        for i in range(4): e(f'v_cvt_pk_bf16_f32 v{64+i}, v{120+2*i}, v{121+2*i}')
        for i in range(4): e(f'v_min_u32 v{64+i}, -2, v{64+i}')
        self.pubg('v[64:67]', 51)
        if self.o.get('hloc',1): self.publ('v[64:67]', 43)
        self.stamp('F.end')
        e('s_branch L_END')
        e(';SEG FIN\nL_FIN:')
        e(f's_cmp_ge_u32 s{sK}, 10\ns_cbranch_scc1 L_END')
        self.mk_srd(rA, pOUT, None, 1280)
        if self.o.get('vw', 0): e(f'buffer_load_dword v13, v53, {srd(rA)}, s{sB} offen')
        e(f's_cmp_eq_u32 s{sW}, 0\ns_cselect_b32 s{s1}, -1, 0')
        for r in range(4): e(f'v_and_b32 v{32+r}, s{s1}, v{vI+r}')
        e(f'v_pk_add_f32 {v(vC0,2)}, {v(vC0,2)}, {v(vC1,2)}\nv_pk_add_f32 {v(vC0+2,2)}, {v(vC0+2,2)}, {v(vC1+2,2)}\nv_mov_b32 v45, s{sT0}')
        self.lmask((46,))
        e('L_R_P1:')
        e(f'buffer_load_dwordx4 v[64:67], v46, {srd(rWS)}, s79 offen sc1\ns_waitcnt vmcnt(0)')
        self.maxchain(12, range(64,68))
        e('v_cmp_eq_u32 vcc, -1, v12')
        self.retry('L_R_P1', sleep=1, vregs=(46,))
        self.stamp('R.h3b')
        self.lmask((48,49,50,51))
        e(f'v_mfma_f32_16x16x32_bf16 {v(vC0,4)}, v[32:35], v[64:67], {v(vC0,4)}')
        if self.o.get('rdelay'): e(f's_sleep {self.o["rdelay"]}')
        def r4l(k):
            for i in range(4): e(f'buffer_load_dwordx4 {v(208+16*k+4*i,4)}, v{48+i}, {srd(rWS)}, s78 offen sc1')
        def r4c(k):
            for i in range(4): e(f'v_mfma_f32_16x16x32_bf16 v[104:107], {v(vI,4)}, {v(208+16*k+4*i,4)}, ' + (v(vC0,4) if i == 0 else 'v[104:107]'))
            self.maxchain(12, range(208+16*k,224+16*k))
            e('v_cmp_eq_u32 vcc, -1, v12')
        self.ppoll('L_R_P2', self.o.get('nh4',2), 4, r4l, r4c, vregs=(48,49,50,51))
        self.stamp('R.h4')
        for r in range(4): e(f'v_add_f32_dpp v{104+r}, v{104+r}, v{104+r} row_ror:8 {DPP}')
        e(f'ds_write_b128 v52, v[104:107]\ns_waitcnt lgkmcnt(0)\ns_barrier')
        e(f's_cmp_lg_u32 s{sW}, 0\ns_cbranch_scc1 L_END')
        self.red_final(RED, 128, 54, False)
        e(f'buffer_store_dwordx2 v[128:129], v53, {srd(rA)}, s{sB} offen {self.o.get("outflag","sc1")}')
        e(f's_cmp_lg_u32 s{sK}, 0\ns_cbranch_scc1 L_END2')
        e(f'buffer_store_dword v45, v55, {srd(rWS)}, 0 offen offset:{EPOCH} sc1')
        if 'amp' in self.o:
            self.stamp('R.end')
            k = self.idx[self.o['amp']]; ke = self.idx['R.end']
            e(f's_waitcnt lgkmcnt(0)\ns_sub_u32 s60, s{sSTAMP+2*k}, s{sSTAMP}\ns_lshl_b32 s60, s60, 2\ns_add_u32 s60, s60, s{sSTAMP+2*ke}')
            e('L_AMP:\ns_memrealtime s[62:63]\ns_waitcnt lgkmcnt(0)\ns_sub_u32 s61, s62, s60\ns_cmp_lt_i32 s61, 0\ns_cbranch_scc1 L_AMP')
        e('L_END2:')
        if 'amp' not in self.o: self.stamp('R.end')
        e('s_branch L_END')

    def role_T(self):
        e = self.e
        MX = QB; LX = QB+512; PB = QB+1024
        WO = 0; HB = 65536; EX = 11264
        sT, s0, s1, s2_ = 72, 63, 64, 65
        e(';SEG T1\nL_T:\ns_waitcnt vmcnt(5)')
        if self.o.get('noT'): e('s_branch L_END')
        e(f"""
        s_lshl_b32 s{sT}, s{sX8}, 4
        s_add_u32 s{sT}, s{sT}, s{sR}
        """)
        e(f"""
        s_lshl_b32 s{s0}, s{sT}, 9
        s_add_u32 s{s0}, s{s0}, {QP+LOC}
        s_lshl_b32 s{s1}, s{sT}, 8
        s_add_u32 s{s1}, s{s1}, {QLB+LOC}
        s_cmp_eq_u32 s{sW}, 2
        s_cselect_b32 s{s0}, s{s1}, s{s0}
        s_lshl_b32 s{s1}, s{sX8}, 9
        s_add_u32 s{s1}, s{s1}, {QCS+LOC}
        s_cmp_eq_u32 s{sW}, 3
        s_cselect_b32 s{s0}, s{s1}, s{s0}
        s_cmp_eq_u32 s{sW}, 0
        s_cselect_b32 s66, {WSSZ}, s{s0}
        v_lshlrev_b32 v12, 7, v0
        v_cmp_gt_u32 vcc, 4, v0
        v_cndmask_b32 v12, v9, v12, vcc
        """)
        e(f's_lshl_b32 s62, s{sW}, 13\ns_add_u32 s62, s62, {QB}')
        self.ws_srd()
        e(f'buffer_load_dword v255, v12, {srd(rWS)}, s66 offen')
        e(f"""
        s_sub_u32 s24, s{sR}, 11
        s_cmp_eq_u32 s{sW}, 3
        s_cselect_b32 s24, s24, -1
        s_cmp_ge_u32 s24, 3
        s_cbranch_scc1 L_T_NOV1
        s_lshl3_add_u32 s27, s24, s{sX8}
        s_lshl_b32 s27, s27, 2
        s_lshl_b32 s25, s24, 21
        s_mul_i32 s26, s{sX8}, 896
        s_add_u32 s25, s25, s26
        s_add_u32 s25, s25, {PROBE}
        s_add_u32 s26, s25, 8192
        s_load_dword s28, s[{pWS}:{pWS+1}], s25 glc
        s_load_dword s28, s[{pWS}:{pWS+1}], s26 glc
        L_T_NOV1:
        """)
        nuk = self.o.get('t_wuk', 0)
        if nuk:
            self.wuk_setup(sR, rA)
            e(f's_mov_b32 s68, {(8-nuk)*32768}')
            for k in range(8-nuk, 8): self.wuk_dma(k, rA, QB)
        tsh, wsh, istr = self.kmap()
        self.kbase(s0, sT, tsh)
        self.mk_srd(rB, pCKV, s0, 16777216)
        e(f'v_lshl_add_u32 v52, v2, 10, v5\nv_xor_b32 v53, 0x80, v52\ns_lshl_b32 s68, s{sW}, {wsh}\ns_lshl_b32 s69, s{sW}, 13')
        stages = {0: [((0,1),(c,)) for c in range(4)], 1: [((0,),(0,1,2,3)), ((1,),(0,1,2,3))], 2: [((0,),(0,1,2,3)), ((1,),(0,1)), ((1,),(2,3))],
                  3: [((0,),(0,1)), ((0,),(2,3)), ((1,),(0,1)), ((1,),(2,3))], 4: [((0,1),(0,1)), ((0,),(2,3)), ((1,),(2,3))]}[self.o.get('sorder', 4)]
        seq = []; send = []
        for kts, cs_ in stages:
            seq += [(c, i) for kt in kts for i in range(4*kt, 4*kt+4) for c in cs_]; send.append(len(seq)-1)
        def dma(n):
            c, i = seq[n]
            e(f's_add_u32 m0, s69, {c*32768+i*1024}\ns_add_u32 s{sTMP}, s68, {self.ioff(i,istr)+c*256}')
            e(f'buffer_load_dwordx4 v{52+(i&1)}, {srd(rB)}, s{sTMP} offen nt lds')
        n0 = 0
        thr = dict(self.o.get('t_throttle', [[2,0]]))
        vm = []
        vKa, vQa, vVa = 24, 28, 32
        vPS, vRS, vMW, vMR, vPW, vPR, vQC, vLR = 40, 41, 42, 43, 44, 45, 46, 47
        vQS = 120
        pre = []
        pre.append(f'v_and_b32 v12, 7, v1\nv_lshlrev_b32 v12, 5, v12\nv_lshlrev_b32 v13, 10, v1\nv_lshlrev_b32 v14, 8, v1\nv_add_u32 v14, s69, v14\nv_add_u32 v13, {QB}, v13')
        for s3 in range(4):
            pre.append(f'v_add_u32 v15, {s3*64}, v11\nv_xor_b32 v15, v15, v12\nv_add_u32 v{vKa+s3}, v14, v15\nv_add_u32 v{vQa+s3}, v13, v15\nv_add_u32 v{56+s3}, 0x10000, v{vKa+s3}')
        pre.append(f"""
        v_lshrrev_b32 v13, 2, v0
        v_and_b32 v15, 7, v13
        v_lshlrev_b32 v13, 8, v13
        v_and_b32 v12, 3, v1
        v_lshl_add_u32 v13, v12, 3, v13
        s_lshl_b32 s{s2_}, s{sW}, 1
        v_xor_b32 v15, s{s2_}, v15
        v_lshl_add_u32 v{vVa}, v15, 5, v13
        v_xor_b32 v15, 1, v15
        v_lshl_add_u32 v{vVa+1}, v15, 5, v13
        v_add_u32 v{vVa+2}, 0x10000, v{vVa}
        v_add_u32 v{vVa+3}, 0x10000, v{vVa+1}
        """)
        for i in range(8): pre.append(f'v_xor_b32 v{vQS+i}, {(i<<5) + (i&3)*1024}, v3')
        pre.append(f"""
        v_add_u32 v15, {EX}, v3
        s_lshl_b32 s{s0}, s{sW}, 2
        v_add_u32 v14, s{s0}, v15
        v_mov_b32 v10, v14
        v_mov_b32 v8, v15
        v_lshrrev_b32 v12, 5, v0
        v_and_b32 v13, 1, v0
        v_lshlrev_b32 v13, 1, v13
        v_lshl_add_u32 v12, v12, 2, v13
        v_bfe_u32 v13, v0, 1, 4
        v_and_b32 v14, 7, v13
        v_lshlrev_b32 v14, 3, v14
        v_lshl_add_u32 v13, v13, 6, v14
        v_lshlrev_b32 v14, 5, v12
        v_xor_b32 v13, v13, v14
        v_lshl_add_u32 v13, v12, 10, v13
        v_add_u32 v6, s62, v13
        v_xor_b32 v7, 32, v6
        s_lshl_b32 s{s2_}, s{sT}, 15
        s_lshr_b32 s{s0}, s{sW}, 1
        s_lshl_b32 s{s0}, s{s0}, 14
        s_add_u32 s{s2_}, s{s2_}, s{s0}
        s_and_b32 s{s0}, s{sW}, 1
        s_lshl_b32 s{s0}, s{s0}, 12
        s_add_u32 s{s2_}, s{s2_}, s{s0}
        s_add_u32 s{s2_}, s{s2_}, {PART}
        v_add_u32 v{vPS}, s{s2_}, v3
        s_and_b32 s75, s{sT}, 0x60
        s_add_u32 s75, s75, s{sT}
        s_lshl2_add_u32 s75, s75, s{sW}
        s_lshl_b32 s75, s75, 6
        s_add_u32 s75, s75, {CS}
        v_min_u32 v68, 92, v4
        s_lshr_b32 s{s2_}, s{sT}, 3
        s_lshl_b32 s{s2_}, s{s2_}, 3
        s_add_u32 s{s2_}, s{s2_}, s{sT}
        s_lshl2_add_u32 s{s2_}, s{s2_}, s{sW}
        s_lshl_b32 s{s2_}, s{s2_}, 8
        s_add_u32 s{s2_}, s{s2_}, {REC}
        v_and_b32 v13, 1, v1
        v_lshrrev_b32 v12, 2, v0
        v_lshl_add_u32 v12, v13, 4, v12
        v_lshlrev_b32 v12, 4, v12
        v_add_u32 v{vLR}, {MX}, v12
        v_and_b32 v12, 0xff, v12
        v_lshl_add_u32 v12, v13, 13, v12
        v_add_u32 v12, s{s2_}, v12
        v_and_b32 v13, 2, v1
        v_cmp_eq_u32 vcc, 0, v13
        v_cndmask_b32 v{vRS}, v9, v12, vcc
        v_bfe_u32 v13, v{vLR}, 6, 3
        v_cmp_eq_u32 vcc, s{sX8}, v13
        v_cndmask_b32 v4, v9, v{vRS}, vcc
        v_and_b32 v13, 3, v1
        v_cmp_eq_u32 vcc, 0, v13
        v_cndmask_b32 v5, v9, v0, vcc
        v_lshrrev_b32 v12, 1, v2
        v_lshl_add_u32 v12, v12, 4, v1
        v_lshlrev_b32 v12, 4, v12
        s_lshl_b32 s{s2_}, s{sW}, 2
        s_add_u32 s{s2_}, s{s2_}, {MX}
        v_add_u32 v{vMW}, s{s2_}, v12
        v_lshlrev_b32 v12, 4, v1
        v_add_u32 v{vMR}, {MX}, v12
        v_add_u32 v22, s{s2_}, v12
        v_mov_b32 v38, 0x3e0293ee
        s_lshl_b32 s{s2_}, s{sW}, 11
        s_add_u32 s{s2_}, s{s2_}, {PB}
        v_add_u32 v{vPW}, s{s2_}, v3
        v_add_u32 v{vPR}, {PB}, v3
        s_and_b32 s71, s{sX8}, 4
        s_add_u32 s71, s71, s{sX8}
        s_lshl_b32 s71, s71, 11
        s_add_u32 s71, s71, {H3B}
        v_mov_b32 v16, -1
        v_mov_b32 v17, -1
        v_mov_b32 v18, -1
        v_mov_b32 v19, -1
        s_and_b32 s{s0}, s{sW}, 1
        s_mul_i32 s{s0}, s{s0}, 640
        s_add_u32 s71, s71, s{s0}
        s_lshr_b32 s{s0}, s{sW}, 1
        s_lshl_b32 s{s0}, s{s0}, 13
        s_add_u32 s71, s71, s{s0}
        s_and_b32 s{s0}, s{sR}, 1
        s_lshl_b32 s{s0}, s{s0}, 20
        s_add_u32 s71, s71, s{s0}
        s_cmp_ge_u32 s{sR}, 14
        s_cselect_b32 s{s0}, 40, 0
        v_cmp_gt_u32 vcc, s{s0}, v0
        v_cndmask_b32 v20, v9, v3, vcc
        v_lshrrev_b32 v12, 3, v0
        v_lshrrev_b32 v13, 1, v12
        v_and_b32 v14, 1, v12
        v_lshl_add_u32 v13, v14, 4, v13
        v_mul_u32_u24 v13, 1280, v13
        v_and_b32 v14, 7, v0
        v_lshlrev_b32 v14, 4, v14
        v_and_b32 v12, 1, v2
        v_lshlrev_b32 v12, 5, v12
        v_xor_b32 v14, v14, v12
        v_add_u32 v36, v13, v14
        v_xor_b32 v14, 64, v14
        v_add_u32 v37, v13, v14
        s_lshl_b32 s73, s{sX8}, 2
        s_add_u32 s73, s73, s{sW}
        s_mul_i32 s73, s73, 163840
        s_lshl_b32 s{s1}, s{sR}, 7
        s_add_u32 s73, s73, s{s1}
        s_lshl_b32 s74, s{sW}, 14
        """)
        def qloads():
            e(f'global_load_dword v69, v68, s[{pDBG}:{pDBG+1}] sc1')
            e(f'buffer_load_dwordx4 v[80:83], v{vQC}, {srd(rWS)}, 0 offen sc1')
            for i in range(8):
                e(f's_add_u32 m0, s62, {i*1024}')
                e(f'buffer_load_dwordx4 v{vQS+i}, {srd(rWS)}, s{76+(i>>2)} offen sc1 lds')
        kdone = set()
        def younger(item): return len(vm) - 1 - vm.index(item)
        def kv(st):
            e(f's_waitcnt vmcnt({younger(("d",send[st]))})')
            if st == len(stages)-1: self.stamp('T.ckv')
            kts, cs_ = stages[st]
            for c in cs_:
                for s3 in range(4):
                    for kt in kts:
                        e(f'ds_read_b128 {a(((4*c+s3)*2+kt)*4,4)}, v{(vKa if c < 2 else 56)+s3} offset:{(c&1)*32768+kt*4096}')
            kdone.add(st)
            e('s_barrier')
            for c in cs_:
                for ks in range(4):
                    for T2 in range(2):
                        for q in kts:
                            e(f'ds_read_b64_tr_b16 {a(128+(ks*8+2*c+T2)*4+2*q,2)}, v{vVa+T2+2*(c>>1)} offset:{(c&1)*32768+ks*8192+q*4096}')
        tp = []
        def tprep():
            if tp: return
            tp.append(1)
            e('s_waitcnt lgkmcnt(0)')
            self.tags()
            e(f"""
            s_lshl_b32 s76, s{sW}, 13
            s_add_u32 s76, s76, {QLB}
            s_add_u32 s77, s76, 4096
            s_lshl_b32 s{s0}, s{sW}, 1
            s_cmp_eq_u32 s{s0}, s{sX8}
            s_cselect_b32 s{s1}, s{sLOC}, 0
            s_add_u32 s76, s76, s{s1}
            v_mov_b32 v12, s{s1}
            s_add_u32 s{s0}, s{s0}, 1
            s_cmp_eq_u32 s{s0}, s{sX8}
            s_cselect_b32 s{s1}, s{sLOC}, 0
            s_add_u32 s77, s77, s{s1}
            v_mov_b32 v13, s{s1}
            v_cmp_gt_u32 vcc, 32, v0
            v_cndmask_b32 v12, v13, v12, vcc
            s_lshl_b32 s{s0}, s{sW}, 10
            s_add_u32 s{s0}, s{s0}, {QCS}
            v_add3_u32 v{vQC}, s{s0}, v3, v12
            """)
            e(f's_lshl_b32 s79, s{sT}, 7\ns_add_u32 s79, s79, {GATE}\ns_cmp_eq_u32 s{sW}, 0\ns_cselect_b32 s79, s79, {OOB}\nv_mov_b32 v39, s79\nv_mov_b32 v21, s{sT1}')
        qpos = self.o.get('qpos', 32); npre = self.o.get('npre', 2)
        klag = self.o.get('klag', 12)
        for n in range(n0, 33):
            if n == npre:
                for x in pre: e(x)
            if n == npre: e(f's_load_dword s{sE}, s[{pWS}:{pWS+1}], {EPOCH}')
            if n == self.o.get('vpos', 2):
                e('s_cmp_ge_u32 s24, 3\ns_cbranch_scc1 L_T_NOV2\ns_mov_b32 s29, 0\ns_waitcnt lgkmcnt(0)\ns_memtime s[8:9]\ns_waitcnt lgkmcnt(0)')
                ns = self.o.get('nsamp', 1)
                for k in range(ns):
                    e(f's_load_dword s28, s[{pWS}:{pWS+1}], s25 glc\ns_waitcnt lgkmcnt(0)\ns_memtime s[12:13]\ns_waitcnt lgkmcnt(0)')
                    e(f's_load_dword s28, s[{pWS}:{pWS+1}], s26 glc\ns_waitcnt lgkmcnt(0)\ns_sub_u32 s30, s12, s8\ns_memtime s[8:9]\ns_waitcnt lgkmcnt(0)')
                    e(f's_sub_u32 s31, s8, s12\ns_sub_u32 s31, s31, s30\ns_max_i32 s31, s31, -{self.o.get("clip",300)}\ns_min_i32 s31, s31, {self.o.get("clip",300)}\ns_add_u32 s29, s29, s31')
                e(f's_getreg_b32 s31, hwreg(HW_REG_XCC_ID, 2, 1)\ns_sub_u32 s30, 0x1000000, s29\ns_cmp_eq_u32 s31, 0\ns_cselect_b32 s29, s29, s30\ns_add_u32 s29, s29, {BIAS}')
                e(f's_atomic_add s29, s[{pDBG}:{pDBG+1}], s27\nL_T_NOV2:')
            if self.o.get('gate', 4) == 4 and n == self.o.get('gpos', 31):
                tprep(); e(f'buffer_store_dword v21, v39, {srd(rWS)}, 0 offen'); vm.append('gate')
            if n == qpos:
                tprep()
                self.stamp('T.qiss')
                if not self.o.get('noq'): qloads(); vm += [('q',i) for i in range(10)]
                self.mk_srd(rA, pWO, 73, 5242880)
                e(f's_cmp_lt_u32 s{sR}, 10\ns_cselect_b32 s{rA+2}, s{rA+2}, 0')
            if n < 32:
                dma(n); vm.append(('d',n))
                if n in thr: e(f's_waitcnt vmcnt({thr[n]})')
                elif self.o.get('tdepth'): e(f's_waitcnt vmcnt({self.o["tdepth"]-1})')
            for c in range(len(stages)-1):
                if c not in kdone and n >= npre and ('d',send[c]) in vm and younger(('d',send[c])) >= klag and (c == 0 or c-1 in kdone): kv(c)
        self.stamp('T.issued')
        e('s_branch L_T2\n;SEG T2\nL_T2:')
        if self.o.get('gate') == 1:
            e(f'buffer_store_dword v21, v39, {srd(rWS)}, 0 offen'); vm.append('gate')
        if self.o.get('tonly'):
            e('s_waitcnt vmcnt(0)'); self.stamp('T.ckv0'); e('s_branch L_END')
        for c in range(len(stages)):
            if c not in kdone: kv(c)
        if self.o.get('gate') == 2:
            e(f'buffer_store_dword v21, v39, {srd(rWS)}, 0 offen'); vm.append('gate')
        e('s_branch L_T_Q1')
        e('L_T_Q0:')
        self.fb((vQC,), (76, 77)); e(f's_sleep {self.o.get("qsleep",1)}')
        qloads()
        e('L_T_Q1:')
        e(f's_waitcnt vmcnt({9 if qpos == 32 else 0})')
        for x in self.pol_ops(69, 8): e(x)
        e(f"""
        s_cbranch_vccnz L_T_Q0
        s_cmp_lt_u32 s{sX8}, 4
        s_cselect_b32 s9, s9, s10
        v_bfe_u32 v12, s11, v2, 1
        v_lshlrev_b32 v12, 13, v12
        v_xor_b32 v13, s9, v12
        v_xor_b32 v24, v13, v{vPS}
        v_xor_b32 v25, 0x2000, v24
        v_xor_b32 v12, s8, v12
        v_xor_b32 v15, v12, v{vRS}
        v_xor_b32 v32, v12, v4
        v_xor_b32 v26, v12, v5
        v_xor_b32 v27, 0x2000, v26
        """)
        e(f's_waitcnt vmcnt(0)\nds_read_b32 v12, v6\nds_read_b32 v13, v7 offset:1024')
        e(f'v_add_u32 v14, v80, v82\nv_sub_u32 v14, 0, v14\nds_write_b32 v10, v14\nv_xor_b32 v81, s{sT0}, v81\nv_xor_b32 v83, s{sT0}, v83\ns_waitcnt lgkmcnt(0)')
        e('v_xor_b32 v12, v12, v81\nv_xor_b32 v13, v13, v83\nv_or_b32 v12, v12, v13\nv_cmp_ne_u32 vcc, 0, v12\ns_cbranch_vccnz L_T_Q0')
        self.stamp('T.qin')
        if self.o.get('gate') == 3:
            e(f'buffer_store_dword v21, v39, {srd(rWS)}, 0 offen'); vm.append('gate')
        e('s_barrier')
        self.stamp('T.Qbar')
        def wo_ops(i): return [f's_add_u32 m0, s74, {WO+i*1024}', f's_mov_b32 s{sTMP}, {(32*(i>>2)+4*(i&3))*1280}', f'buffer_load_dwordx4 v{36+(i&1)}, {srd(rA)}, s{sTMP} offen {self.o.get("woflag","nt")} lds']
        nwe = self.o.get('wo_early', 8)
        vS = 48; vP = 76; vPF = 88; vAcc = 128; vO = 192
        def qreg(s, ht): return 128 + ht*64 + s*4
        def qread(s, ht): return f'ds_read_b128 {v(qreg(s,ht),4)}, v{vQa+(s&3)} offset:{(s>>2)*256+ht*16384}'
        def qk(s, kt, ht):
            d = v(vS+(kt*2+ht)*4,4)
            return f'v_mfma_f32_16x16x32_bf16 {d}, {a((s*2+kt)*4,4)}, {v(qreg(s,ht),4)}, ' + ('0' if s == 0 else d)
        def pv(ks, T, ht):
            d = v(vAcc+(ht*8+T)*4,4)
            return f'v_mfma_f32_16x16x32_bf16 {d}, {v(vPF+(ks*2+ht)*4,4)}, {a(128+(ks*8+T)*4,4)}, ' + ('0' if ks == 0 else d)
        def ver(s, ht): return f'v_add3_u32 v23, v23, v{qreg(s,ht)}, v{qreg(s,ht)+2}'
        def cost(x): return 2 if x.startswith('v_exp') else (0 if x.startswith('s_') else 1)
        def stream(mf, toks, bg):
            skip = 0
            for m in mf:
                e(m)
                b = self.o.get('slots', 2)
                if skip: skip -= 1
                else:
                    while toks:
                        t = toks[0]
                        if isinstance(t, tuple): skip = t[1]; toks.pop(0); break
                        if cost(t) > b: break
                        e(t); b -= cost(t); toks.pop(0)
                while bg and cost(bg[0]) <= b:
                    b -= cost(bg[0]); e(bg.pop(0))
            return toks
        def flush(toks):
            for t in toks:
                if not isinstance(t, tuple): e(t)
        D = self.o.get('qD', 4)
        for s in range(D): e(qread(s,0))
        e(f'v_mov_b32 v23, 0\nbuffer_store_dwordx4 v[16:19], v20, {srd(rWS)}, s71 offen sc1')
        rd = [(s,0) for s in range(D,16)] + [(s,1) for s in range(16)]
        issued = D
        wo = [wo_ops(i) for i in range(nwe)]
        for s in range(16):
            e(f's_waitcnt lgkmcnt({min(15, issued-1-s)})')
            if s == 15: e('s_barrier')
            for kt in range(2):
                e(qk(s,kt,0))
                if rd: e(qread(*rd.pop(0))); issued += 1
                if kt == 0:
                    if not self.o.get('nover'): e(ver(s,0))
                elif wo: flush(wo.pop(0))
                if s == 14 and kt == 1: e('ds_read_b128 v[80:83], v8')
        self.stamp('T.QK0')
        def sm(ht):
            r0 = vS+ht*4; r1 = vS+8+ht*4; m = 64; t = 65; M = 66+ht; rb = 72
            a_ = [f'v_max3_f32 v{m}, v{r0}, v{r0+1}, v{r0+2}', f'v_max3_f32 v{t}, v{r1}, v{r1+1}, v{r1+2}', f'v_max3_f32 v{m}, v{m}, v{r0+3}, v{r1+3}', f'v_max_f32 v{m}, v{m}, v{t}',
                  f'v_mov_b32 v{t}, v{m}', ('gap',0), f'v_permlane32_swap_b32 v{m}, v{t}', f'v_max_f32 v{m}, v{m}, v{t}', f'v_mov_b32 v{t}, v{m}', ('gap',0),
                  f'v_permlane16_swap_b32 v{m}, v{t}', f'v_max_f32 v{m}, v{m}, v{t}', f'ds_write_b32 v22, v{m} offset:{ht*256}']
            b_ = ['s_waitcnt lgkmcnt(0)', 's_barrier', f'ds_read_b128 {v(rb,4)}, v{vMR} offset:{ht*256}']
            c_ = ['s_waitcnt lgkmcnt(0)', f'v_max3_f32 v{M}, v{rb}, v{rb+1}, v{rb+2}', f'v_max_f32 v{M}, v{M}, v{rb+3}', f'v_mul_f32 v{M}, v38, v{M}']
            for b in (r0, r1):
                for r in range(4): c_.append(f'v_fma_f32 v{b+r}, v{b+r}, v38, -v{M}')
            for b in (r0, r1):
                for r in range(4): c_.append(f'v_exp_f32 v{b+r}, v{b+r}')
            for k,b in enumerate((r0, r1)):
                c_ += [f'v_cvt_pk_bf16_f32 v{vP+ht*4+k*2}, v{b}, v{b+1}', f'v_cvt_pk_bf16_f32 v{vP+ht*4+k*2+1}, v{b+2}, v{b+3}']
            c_.append(f'ds_write_b128 v{vPW}, {v(vP+ht*4,4)} offset:{ht*1024}')
            d_ = ['s_waitcnt lgkmcnt(0)', 's_barrier'] + [f'ds_read_b128 {v(vPF+(ks*2+ht)*4,4)}, v{vPR} offset:{(ks*2+ht)*1024}' for ks in range(4)]
            return a_, b_, c_, d_
        g1 = self.o.get('g1', 2); g2 = self.o.get('g2', 2)
        a0,b0,c0,d0 = sm(0); a1_,b1,c1,d1 = sm(1)
        e('s_waitcnt lgkmcnt(0)')
        mf = [qk(s,kt,1) for s in range(16) for kt in range(2)]
        bg = [ver(s,1) for s in range(16)] + ['v_add3_u32 v23, v23, v80, v81', 'v_add3_u32 v23, v23, v82, v83']
        if self.o.get('nover'): bg = []
        left = stream(mf, [('gap',1)] + a0 + [('gap',g1)] + b0 + [('gap',g2)] + c0, bg)
        flush(left)
        self.stamp('T.QK')
        flush(bg)
        A = [x for x in a1_ if not isinstance(x, tuple)]
        R = [f'v_add_u32_dpp v23, v23, v23 {p} {DPP}' for p in ['quad_perm:[1,0,3,2]','quad_perm:[2,3,0,1]','row_half_mirror','row_mirror']]
        R += ['v_mov_b32 v69, v23', 'v_permlane16_swap_b32 v23, v69', 'v_add_u32 v23, v23, v69', 'v_mov_b32 v69, v23', 'v_permlane32_swap_b32 v23, v69', 'v_add_u32 v23, v23, v69', 'v_cmp_ne_u32 vcc, 0, v23']
        flush([R[0], R[1], A[0], A[1], R[2], A[2], A[3], R[3], A[4], R[4], 's_nop 0', A[5], R[5], A[6], R[6], A[7], R[7], 's_nop 0', A[8], A[9], A[10], R[8], R[9], R[10]])
        flush(d0[:2]); e('s_cbranch_vccnz L_T_Q0'); flush(d0[2:] + b1[2:])
        self.stamp('T.Pbar')
        def lsum(ht, dst):
            r0 = vS+ht*4; r1 = vS+8+ht*4
            return [f'v_add_f32 v{r0}, v{r0}, v{r0+1}', f'v_add_f32 v{r0+2}, v{r0+2}, v{r0+3}', f'v_add_f32 v{r1}, v{r1}, v{r1+1}', f'v_add_f32 v{r1+2}, v{r1+2}, v{r1+3}',
                    f'v_add_f32 v{r0}, v{r0}, v{r0+2}', f'v_add_f32 v{r1}, v{r1}, v{r1+2}', f'v_add_f32 v{dst}, v{r0}, v{r1}']
        n3 = self.o.get('wo3', 0); n4 = self.o.get('wo4', 0)
        flush(lsum(0, 70))
        e('s_waitcnt lgkmcnt(4)')
        mf = [pv(ks,T,0) for ks in range(4) for T in range(8)]
        lt = ['v_permlane32_swap_b32 v70, v71','v_add_f32 v70, v70, v71','v_mov_b32 v71, v70', f'ds_read_b128 v[76:79], v{vLR}', 'v_permlane16_swap_b32 v70, v71','v_add_f32 v70, v70, v71',
              f'ds_write_b32 v{vMW}, v70 offset:512']
        left = stream(mf, [('gap',0)] + c1 + lsum(1, 71) + [('gap',0)] + lt + [('gap',self.o.get('g3',1))] + d1 + [f'ds_read_b128 v[72:75], v{vLR} offset:512'] + sum([wo_ops(i) for i in range(nwe, nwe+n3)], []), [])
        flush(left)
        nwe += n3
        self.stamp('T.pv4')
        def outops(ht):
            ops = []
            for r in range(4):
                o = vO + (ht*4+r)*4
                for k in range(4):
                    ops.append(f'v_cvt_pk_bf16_f32 v{o+k}, v{vAcc+(ht*8+2*k)*4+r}, v{vAcc+(ht*8+2*k+1)*4+r}')
                ops.append(f'buffer_store_dwordx4 {v(o,4)}, v{24+ht}, {srd(rWS)}, 0 offen offset:{r*1024} sc1')
            return ops
        e('s_waitcnt lgkmcnt(0)')
        mf = [pv(ks,T,1) for ks in range(4) for T in range(8)]
        cs = self.o.get('cs', 1)
        def csum(ht):
            c = 48 + 4*ht; y = 56 + 2*ht; z = 60 + ht
            ops = []
            for r in range(4):
                o = vO + (ht*4+r)*4
                ops.append([f'v_add3_u32 v{c+r}, v{o}, v{o+1}, v{o+2}', f'v_add_u32 v{c+r}, v{c+r}, v{o+3}'])
            red = [f'v_add_u32_dpp v{y}, v{c}, v{c} row_ror:8 row_mask:0xf bank_mask:0x3', f'v_add_u32_dpp v{y+1}, v{c+1}, v{c+1} row_ror:8 row_mask:0xf bank_mask:0x3',
                   f'v_add_u32_dpp v{y}, v{c+2}, v{c+2} row_ror:8 row_mask:0xf bank_mask:0xc', f'v_add_u32_dpp v{y+1}, v{c+3}, v{c+3} row_ror:8 row_mask:0xf bank_mask:0xc',
                   f'v_add_u32_dpp v{z}, v{y}, v{y} row_shl:4 row_mask:0xf bank_mask:0x5', f'v_add_u32_dpp v{z}, v{y+1}, v{y+1} row_shr:4 row_mask:0xf bank_mask:0xa',
                   f'v_add_u32_dpp v{z}, v{z}, v{z} quad_perm:[1,0,3,2] {DPP}', f'v_add_u32_dpp v{z}, v{z}, v{z} quad_perm:[2,3,0,1] {DPP}']
            return ops, red
        def out_cs(ht):
            if not cs: return outops(ht)
            o = outops(ht); l, red = csum(ht); res = []
            for r in range(4): res += o[5*r:5*r+5] + l[r]
            return res + red + [f'v_sub_u32 v{60+ht}, s{sT0}, v{60+ht}', f'buffer_store_dword v{60+ht}, v{26+ht}, {srd(rWS)}, s75 offen sc1']
        recv = ['v_max3_f32 v84, v76, v77, v78', 'v_max_f32 v84, v84, v79', 'v_mul_f32 v84, v38, v84', f'v_mov_b32 v86, s{sT0}', f'v_mov_b32 v87, s{sT1}',
                'v_add_f32 v72, v72, v73', 'v_add_f32 v74, v74, v75', 'v_add_f32 v85, v72, v74']
        o0 = out_cs(0)
        rl = self.o.get('recloc', 2)
        rp = self.o.get('recpos', 4)
        def recst(nst): return self.stamptok('T.recw') + [f's_waitcnt vmcnt({nwe+nst})', f'buffer_store_dwordx4 v[84:87], v15, {srd(rWS)}, 0 offen sc1', ] + ([f'buffer_store_dwordx4 v[84:87], v32, {srd(rWS)}, s{sLOC} offen'] if rl and not self.o.get('loclate') else []) + self.stamptok('T.recst')
        assert rp <= 4
        o0 = recv[:4] + o0[:7*rp] + recv[4:] + recst(rp) + o0[7*rp:]
        left = stream(mf, o0 + sum([wo_ops(i) for i in range(nwe, nwe+n4)], []), [])
        flush(left)
        nwe += n4
        self.stamp('T.pv8')
        o1 = out_cs(1)
        flush(o1)
        if rl and self.o.get('loclate'): e(f'buffer_store_dwordx4 v[84:87], v32, {srd(rWS)}, s{sLOC} offen')
        self.stamp('T.PVst')
        self.stamp('T.rec')
        if self.o.get('wb') == 2: e(f's_lshl_b32 s{s0}, s{sW}, 4\ns_or_b32 s{s0}, s{s0}, s{sR}\ns_cmp_lg_u32 s{s0}, 15\ns_cbranch_scc1 L_NOWB\nbuffer_wbl2 sc1\nL_NOWB:')
        e('s_branch L_T3\n;SEG T3\nL_T3:')
        if self.o.get('thelp', 1):
            first = (nwe>>2)*32*1280
            e(f's_cmp_lt_u32 s{sR}, 10\ns_cbranch_scc1 L_T_C2\ns_lshl2_add_u32 s{s0}, s{sX8}, s{sW}\ns_mul_i32 s{s0}, s{s0}, 163840\ns_add_u32 s{s0}, s{s0}, {first}')
            self.mk_srd(rA, pWO, s0, 5242880)
            e(f's_mov_b32 s{rA+2}, {163840-first}\ns_sub_u32 s{s0}, s{sR}, 10\ns_lshl_b32 s{s0}, s{s0}, 10\ns_mov_b32 m0, s74')
            for k in range(((163840-first)//1024+5)//6):
                e(f'buffer_load_dwordx4 v3, {srd(rA)}, s{s0} offen lds\ns_add_u32 s{s0}, s{s0}, 6144')
            e('s_waitcnt vmcnt(0)\ns_branch L_END\nL_T_C2:')
        else: e(f's_cmp_ge_u32 s{sR}, 10\ns_cbranch_scc1 L_END')
        if self.o.get('wowait'): e('s_waitcnt vmcnt(0)')
        for i in range(nwe, 16): flush(wo_ops(i))
        e(f"""
        v_lshrrev_b32 v12, 2, v1
        v_lshl_add_u32 v12, v2, 3, v12
        v_lshlrev_b32 v12, 7, v12
        v_and_b32 v13, 3, v1
        v_lshl_add_u32 v12, v13, 3, v12
        v_lshrrev_b32 v14, 3, v1
        v_and_b32 v15, 1, v2
        v_lshl_or_b32 v14, v15, 1, v14
        v_xor_b32 v14, s{sW}, v14
        v_lshl_add_u32 v24, v14, 5, v12
        v_mul_u32_u24 v13, 320, v13
        v_add_u32 v13, v13, v11
        v_add_u32 v25, {HB}, v13
        v_mul_u32_u24 v12, 320, v2
        v_lshl_add_u32 v12, v1, 3, v12
        s_mul_i32 s{s0}, s{sW}, 1280
        s_add_u32 s{s0}, s{s0}, {HB}
        v_add_u32 v26, s{s0}, v12
        v_lshlrev_b32 v12, 4, v1
        v_lshl_add_u32 v27, v2, 11, v12
        s_lshl4_add_u32 s75, s{sX8}, s{sW}
        s_lshl_b32 s75, s75, 9
        s_add_u32 s75, s75, {HCB+LOC}
        s_and_b32 s75, s75, s{sLM}
        s_and_b32 s{s0}, s{sX8}, 4
        s_add_u32 s{s0}, s{s0}, s{sX8}
        s_lshl_b32 s{s0}, s{s0}, 11
        s_lshl_b32 s{s1}, s{sR}, 7
        s_add_u32 s{s0}, s{s0}, s{s1}
        s_lshl_b32 s{s1}, s{sW}, 5
        s_add_u32 s{s0}, s{s0}, s{s1}
        s_add_u32 s{s0}, s{s0}, {H3B}
        v_lshlrev_b32 v12, 1, v1
        v_lshl_add_u32 v12, v2, 13, v12
        v_add_u32 v12, s{s0}, v12
        v_cmp_gt_u32 vcc, 32, v0
        v_cndmask_b32 v28, v9, v12, vcc
        v_cmp_gt_u32 vcc, 16, v0
        v_cndmask_b32 v29, v9, v12, vcc
        s_waitcnt vmcnt(0)
        s_barrier
        """)
        self.stamp('C.land')
        for st_ in range(16):
            for q in range(2): e(f'ds_read_b64_tr_b16 {a(st_*4+2*q,2)}, v24 offset:{WO+st_*4096+q*512}')
        def hcl(k):
            b = 64+8*k
            e(f'buffer_load_dwordx4 {v(b,4)}, v27, {srd(rWS)}, s75 offen sc1\nbuffer_load_dwordx4 {v(b+4,4)}, v27, {srd(rWS)}, s75 offen offset:256 sc1')
        def hcc(k):
            b = 64+8*k
            e(f'ds_write2_b32 v26, v{b}, v{b+2} offset0:0 offset1:1\nds_write2_b32 v26, v{b+4}, v{b+6} offset0:32 offset1:33')
            e(f'v_and_b32 v12, v{b+1}, v{b+3}\nv_or_b32 v13, v{b+1}, v{b+3}\nv_bitop3_b32 v12, v12, v{b+5}, v{b+7} bitop3:0x80\nv_or3_b32 v13, v13, v{b+5}, v{b+7}')
            e(f'v_cmp_ne_u64 vcc, s[76:77], v[12:13]')
        e(f's_mov_b32 s76, s{sT0}\ns_mov_b32 s77, s{sT0}')
        self.ppoll('L_C_HC', self.o.get('nhc',3), 2, hcl, hcc, sregs=(75,))
        self.stamp('C.hcin')
        e('s_waitcnt lgkmcnt(0)\ns_barrier')
        self.stamp('C.bar')
        NP = 8
        def ar(st_): return f'ds_read_b128 {v(128+4*st_,4)}, v25 offset:{(st_>>2)*1280+(st_&3)*64}'
        for st_ in range(NP): e(ar(st_))
        for st_ in range(16):
            e(f's_waitcnt lgkmcnt({min(NP-1, 15-st_)})')
            e(f'v_mfma_f32_16x16x32_bf16 v[104:107], {v(128+4*st_,4)}, {a(st_*4,4)}, ' + ('0' if st_ == 0 else 'v[104:107]'))
            if st_+NP < 16: e(ar(st_+NP))
        e('v_pk_add_f32 v[104:105], v[104:105], v[106:107]\nv_add_f32 v104, v104, v105\nv_cvt_pk_bf16_f32 v104, v104, v104\nv_min_u32 v104, -2, v104')
        e(f'buffer_store_short v104, v28, {srd(rWS)}, 0 offen sc1')
        e(f'buffer_store_short v104, v29, {srd(rWS)}, s{sLOC} offen')
        self.stamp('C.h3')
        if self.o.get('wb') == 1: e(f's_or_b32 s{s0}, s{sR}, s{sW}\ns_cbranch_scc1 L_END\nbuffer_wbl2 sc1')

    def epilogue(self):
        e = self.e
        e('s_branch L_END\n;SEG END\nL_END:')
        if 'amp2' in self.o:
            k = self.idx[self.o['amp2']]
            e(f's_waitcnt lgkmcnt(0)\ns_cmp_eq_u32 s{sSTAMP+2*k}, 0\ns_cbranch_scc1 L_EXIT')
            if 'ampwg' in self.o: e(f's_cmp_lg_u32 s2, {self.o["ampwg"]}\ns_cbranch_scc1 L_EXIT')
            e(f's_sub_u32 s60, s{sSTAMP+2*k}, s{sSTAMP}\ns_lshl_b32 s60, s60, 3\ns_add_u32 s60, s60, s{sSTAMP}\ns_add_u32 s60, s60, 2000')
            e('L_AMP2:\ns_sleep 4\ns_memrealtime s[62:63]\ns_waitcnt lgkmcnt(0)\ns_sub_u32 s61, s62, s60\ns_cmp_lt_i32 s61, 0\ns_cbranch_scc1 L_AMP2')
        if self.stamps and 'amp' not in self.o and 'amp2' not in self.o:
            self.mk_srd(rWS, pWS, None, WSSZ)
            e(f's_waitcnt lgkmcnt(0)\ns_lshl_b32 s60, s2, 2\ns_add_u32 s60, s60, s{sW}\ns_lshl_b32 s60, s60, 6\ns_add_u32 s60, s60, {STAMP}\nv_mov_b32 v4, 0')
            for k in range(11): e(f'v_mov_b32 v5, s{sSTAMP+2*k}\nbuffer_store_dword v5, v4, {srd(rWS)}, s60 offen offset:{4*k}')
            e(f'v_mov_b32 v5, s{sTO}\nbuffer_store_dword v5, v4, {srd(rWS)}, s60 offen offset:44\nv_mov_b32 v5, s7\nbuffer_store_dword v5, v4, {srd(rWS)}, s60 offen offset:48')
        e('L_EXIT:')

    def layout(self):
        segs = {}; cur = 'A1'; segs[cur] = []
        for l in self.e.lines:
            if l.strip().startswith(';SEG '): cur = l.split()[1]; segs[cur] = []
            else: segs[cur].append(l)
        segs['END'].append('s_endpgm')
        out = []
        for x in self.o.get('layout', ['A1','END','|','T1','A2','T3','FIN','|','A3','|','T2']):
            if x == '|':
                if self.o.get('align',1): out.append('.p2align 12')
            else: out += segs[x]
        out.append('L_CODE_END:')
        return '\n'.join(out)
    def build(self):
        if self.stamps:
            for k in range(1,11): self.e(f's_mov_b32 s{sSTAMP+2*k}, 0')
            self.e('s_mov_b32 s7, 0')
        self.prologue(); self.role_A(); self.role_T(); self.epilogue()
        hdr = open('header.txt').read()
        if self.o.get('noloc'):
            self.e.lines = [l.replace(f', s{sLOC} offen', ', 0 offen sc1') if 'buffer_store' in l else l.replace(f's_mov_b32 s{sLM}, -1', f's_mov_b32 s{sLM}, {(~LOC)&0xffffffff}') for l in self.e.lines]
        return f'''{hdr}; @launch grid=(256,1,1) block=(256,1,1) lds=163840
.amdgcn_target "amdgcn-amd-amdhsa--gfx950"
.text
.globl {KN}
{'.p2align 12' if self.o.get('align',1) else ''}
.p2align 8
.type {KN},@function
{KN}:
{self.layout()}
.section .rodata,"a"
.p2align 6
.amdhsa_kernel {KN}
  .amdhsa_next_free_vgpr 512
  .amdhsa_next_free_sgpr 102
  .amdhsa_accum_offset 256
  .amdhsa_group_segment_fixed_size 0
  .amdhsa_kernarg_size 112
  .amdhsa_user_sgpr_count 2
  .amdhsa_user_sgpr_kernarg_segment_ptr 1
  .amdhsa_system_sgpr_workgroup_id_x 1
.end_amdhsa_kernel
'''

if __name__ == '__main__':
    import json
    out = sys.argv[1]; stamps = len(sys.argv) > 2 and sys.argv[2] == '1'
    opt = json.loads(sys.argv[3]) if len(sys.argv) > 3 else {}
    open(out,'w').write(G(stamps, opt).build())
```

```python
import sys
sys.path.insert(0,'work')
from dsl import Asm
NAME = 'sequential_preLN__compressed_kv_cla__dense_activation_squared_relu__decode'
KN = NAME + '_kernel'

EPOCH=0; GATE=0x2000; QP=0x8000; HCB=0x18000; QLB=0x28000; QCS=0x38000; CS=0x600000; REC=0x40000; HS=0x80000; H3B=HS+27*16384
PROBE=0xf8000; LOC=0x100000; PART=0x200000; STAMP=0x680000; BIAS=0x10000
WSSZ=0x700000
OOB=0x7ffffff0
NLOC=96
sLM,sLC,sLOC,sTMP = 3,4,5,6
pX,pCKV,pWQ,pWUK,pWUV,pWO,pBX,pW1,pB1,pW2,pB2,pOUT,pDBG,pWS = [8+2*i for i in range(14)]
sW,sX8,sR,sE,sT0,sT1,sTO,sP = 36,37,38,39,40,41,42,43
rWS=44; rA=48; rB=52; rC=56
sSTAMP=80
def srd(r): return f's[{r}:{r+3}]'
def v(n,c=1): return f'v{n}' if c==1 else f'v[{n}:{n+c-1}]'
def a(n,c=1): return f'a{n}' if c==1 else f'a[{n}:{n+c-1}]'
DPP='row_mask:0xf bank_mask:0xf'
QB = 131072
WQ = 69632; XN = 110592

class G:
    def __init__(self, stamps=False, opt=None):
        self.e = Asm(); self.stamps = stamps; self.o = opt or {}
        self.slots = {'A':['start'],'T':['start'],'R':[]}; self.idx = {}; self.tbase = 1
    def stamp(self, name):
        if not self.stamps: return
        role = name.split('.')[0]
        lst = self.slots['A' if role in 'AFR' else 'T']
        want = self.o.get('want')
        if name == 'start': k = 0
        else:
            if want is not None and name not in want: return
            if role == 'R':
                k = self.tbase + len(self.slots['R']); self.slots['R'].append(name)
            else:
                k = len(lst); lst.append(name)
                if role == 'A': self.tbase = len(lst)
            if k > 10: raise Exception('too many stamps '+name)
        self.idx[name] = k
        op = 's_memtime' if self.o.get('cyc') else 's_memrealtime'
        self.e(f'{op} s[{sSTAMP+2*k}:{sSTAMP+2*k+1}]')
        if name in self.o.get('cut', []): self.e('s_branch L_END')
    def stamptok(self, name):
        n = len(self.e.lines); self.stamp(name)
        t = [x.strip() for x in self.e.lines[n:]]
        del self.e.lines[n:]
        if t: self.e.hist.pop()
        return t
    def mk_srd(self, r, ptr, off_sgpr, size):
        e = self.e
        if off_sgpr is None:
            e(f's_mov_b32 s{r}, s{ptr}\ns_and_b32 s{r+1}, s{ptr+1}, 0xffff\ns_mov_b32 s{r+2}, {size}')
        else:
            e(f's_add_u32 s{r}, s{ptr}, s{off_sgpr}\ns_addc_u32 s{r+1}, s{ptr+1}, 0\ns_and_b32 s{r+1}, s{r+1}, 0xffff\ns_sub_u32 s{r+2}, {size}, s{off_sgpr}')
        e(f's_mov_b32 s{r+3}, 0x20000')
    def allred(self, op, x, t, steps16=4):
        e = self.e
        pats = ['quad_perm:[1,0,3,2]','quad_perm:[2,3,0,1]','row_half_mirror','row_mirror'][:steps16]
        for p in pats: e(f'{op}_dpp v{x}, v{x}, v{x} {p} {DPP}')
        e(f'v_mov_b32 v{t}, v{x}\nv_permlane16_swap_b32 v{x}, v{t}\n{op} v{x}, v{x}, v{t}')
        e(f'v_mov_b32 v{t}, v{x}\nv_permlane32_swap_b32 v{x}, v{t}\n{op} v{x}, v{x}, v{t}')
    def timeout(self):
        self.e(f's_sub_u32 s{sTO}, s{sTO}, 1\ns_cmp_eq_u32 s{sTO}, 0\ns_cbranch_scc1 L_END')
    def fb(self, vregs=(), sregs=()):
        e = self.e
        self.timeout()
        e(f's_add_u32 s{sLC}, s{sLC}, 1\ns_cmp_ge_u32 s{sLC}, {NLOC}\ns_cselect_b32 s{sLM}, {(~LOC)&0xffffffff}, s{sLM}')
        self.lmask(vregs, sregs)
    def lmask(self, vregs=(), sregs=()):
        for r in vregs: self.e(f'v_and_b32 v{r}, s{sLM}, v{r}')
        for r in sregs: self.e(f's_and_b32 s{r}, s{r}, s{sLM}')
    def stop(self, data):
        if '[' not in data: return 'buffer_store_dword'
        lo, hi = data[2:-1].split(':'); return f'buffer_store_dwordx{int(hi)-int(lo)+1}'
    def publ(self, data, voff): self.e(f'{self.stop(data)} {data}, v{voff}, {srd(rWS)}, s{sLOC} offen')
    def pubg(self, data, voff): self.e(f'{self.stop(data)} {data}, v{voff}, {srd(rWS)}, 0 offen sc1')
    def pub(self, data, voff): self.pubg(data, voff); self.publ(data, voff)
    def late_pubg(self, data, voff):
        e = self.e; l = e.newlabel('Lnp')
        e(f's_cmp_eq_u32 s{sLM}, -1\ns_cbranch_scc1 {l}'); self.pubg(data, voff); e(f'{l}:')
    def retry(self, label, sleep=1, vregs=(), sregs=(), late=None):
        e = self.e
        ok = e.newlabel('Lok')
        e(f's_cbranch_vccz {ok}')
        self.fb(vregs, sregs)
        if late: self.late_pubg(*late)
        if sleep: e(f's_sleep {sleep}')
        e(f's_branch {label}')
        e(f'{ok}:')
    def ppoll(self, name, nsets, nld, loads, check, vregs=(), sregs=(), pre_issued=0):
        e = self.e
        for k in range(pre_issued, nsets): loads(k)
        e(f'{name}:')
        for k in range(nsets):
            e(f's_waitcnt vmcnt({nld*(nsets-1)})')
            check(k)
            e(f's_cbranch_vccz {name}_OK')
            if k == nsets-1: self.fb(vregs, sregs)
            loads(k)
        e(f's_branch {name}\n{name}_OK:')
    def maxchain(self, dst, regs):
        e = self.e
        regs = list(regs)
        e(f'v_max3_u32 v{dst}, v{regs[0]}, v{regs[1]}, v{regs[2]}'); regs = regs[3:]
        while len(regs) >= 2:
            e(f'v_max3_u32 v{dst}, v{dst}, v{regs[0]}, v{regs[1]}'); regs = regs[2:]
        if regs: e(f'v_max_u32 v{dst}, v{dst}, v{regs[0]}')
    def tagcheck(self, dst, pairs):
        e = self.e; rs = []
        for r in pairs:
            e(f'v_xor_b32 v{r}, s{sT0}, v{r}\nv_xor_b32 v{r+1}, s{sT1}, v{r+1}'); rs += [r, r+1]
        if len(rs) == 2: e(f'v_or_b32 v{dst}, v{rs[0]}, v{rs[1]}')
        else:
            e(f'v_or3_b32 v{dst}, v{rs[0]}, v{rs[1]}, v{rs[2]}'); rs = rs[3:]
            while len(rs) >= 2: e(f'v_or3_b32 v{dst}, v{dst}, v{rs[0]}, v{rs[1]}'); rs = rs[2:]
            if rs: e(f'v_or_b32 v{dst}, v{dst}, v{rs[0]}')
        e(f'v_cmp_ne_u32 vcc, 0, v{dst}')
    def ident_masks(self, dst, val_lo, val_hi, first, n, t):
        e = self.e
        e(f'v_and_b32 v{t}, 1, v1\nv_cmp_eq_u32 vcc, 1, v{t}\nv_mov_b32 v{t}, {val_lo}\nv_mov_b32 v{t+1}, {val_hi}\nv_cndmask_b32 v{t}, v{t}, v{t+1}, vcc')
        e(f'v_lshrrev_b32 v{t+1}, 1, v1')
        for r in range(n):
            e(f'v_cmp_eq_u32 vcc, {first+r}, v{t+1}\nv_cndmask_b32 v{dst+r}, 0, v{t}, vcc')
    def red_final(self, RED, t, va, clamp):
        e = self.e
        for w in range(4): e(f'ds_read_b128 {v(t+4+4*w,4)}, v{va} offset:{RED+256*w}')
        e('s_waitcnt lgkmcnt(2)')
        for i in range(2): e(f'v_pk_add_f32 {v(t+4+2*i,2)}, {v(t+4+2*i,2)}, {v(t+8+2*i,2)}')
        e('s_waitcnt lgkmcnt(0)')
        for i in range(2): e(f'v_pk_add_f32 {v(t+12+2*i,2)}, {v(t+12+2*i,2)}, {v(t+16+2*i,2)}')
        for i in range(2): e(f'v_pk_add_f32 {v(t+4+2*i,2)}, {v(t+4+2*i,2)}, {v(t+12+2*i,2)}')
        for i in range(2): e(f'v_cvt_pk_bf16_f32 v{t+i}, v{t+4+2*i}, v{t+5+2*i}')
        if clamp:
            for i in range(2): e(f'v_min_u32 v{t+i}, -2, v{t+i}')
    def code_prefetch(self):
        e = self.e
        npl = self.o.get('npl', 3)
        e(f's_getpc_b64 s[20:21]\nL_PC:\ns_sub_u32 s20, s20, L_PC-{KN}\ns_subb_u32 s21, s21, 0')
        e(f's_and_b32 s22, s{sR}, 15\ns_lshl_b32 s22, s22, 2\ns_add_u32 s22, s22, s{sW}\ns_lshl_b32 s22, s22, 7')
        for i in range(npl):
            e(f's_min_u32 s23, s22, L_CODE_END-4-{KN}\ns_load_dword s7, s[20:21], s23')
            if i < npl-1: e(f's_add_u32 s22, s22, 8192')
    def kmap(self):
        k = self.o.get('kil', 0)
        if k == 0: return 17, 15, 4096
        if k == 1: return 12, 22, 1 << 19
        if k == 2: return 12, 19, 1 << 21
        if k == 3: return 14, 12, 1 << 21
        if k == 4: return 15, 22, 4096
        if k == 5: return -12, 19, 1 << 16
        if k == 6: return -12, 16, 1 << 18
        if k == 7: return -14, 12, 1 << 18
        if k == 8: return -15, 19, 4096
        if k == 9: return None, 16, None
    def ioff(self, i, istr): return i*istr if istr else (i>>1)*16384 + (i&1)*4096
    def kbase(self, dst, sidx, tsh):
        if tsh is None:
            self.e(f's_and_b32 s{dst}, s{sidx}, 63\ns_lshl_b32 s{dst}, s{dst}, 18\ns_lshr_b32 s{sTMP}, s{sidx}, 3\ns_lshr_b32 s7, s{sidx}, 6\ns_xor_b32 s{sTMP}, s{sTMP}, s7\ns_xor_b32 s{sTMP}, s{sTMP}, {self.o.get("kpol",0)}\ns_and_b32 s{sTMP}, s{sTMP}, 1\ns_lshl_b32 s{sTMP}, s{sTMP}, 13\ns_add_u32 s{dst}, s{dst}, s{sTMP}\ns_mov_b32 s7, 0')
        elif tsh > 0: self.e(f's_lshl_b32 s{dst}, s{sidx}, {tsh}')
        else: self.e(f's_and_b32 s{dst}, s{sidx}, 15\ns_lshl_b32 s{dst}, s{dst}, {-tsh}\ns_lshl_b32 s{sTMP}, s{sX8}, 21\ns_add_u32 s{dst}, s{dst}, s{sTMP}')
    def pol_ops(self, r, sd):
        ops = [f'v_cmp_lt_u32 vcc, 0xffffff, v{r}', f'v_and_b32 v{r}, 0xffffff, v{r}', f's_and_b32 s{sd+3}, vcc_lo, 15', f'v_cmp_eq_u32 vcc, 0, v{r}']
        ops += [f'v_add_u32_dpp v{r}, v{r}, v{r} {p} {DPP}' for p in ['quad_perm:[1,0,3,2]','quad_perm:[2,3,0,1]','row_half_mirror']]
        ops += [f'v_readlane_b32 s{sd+g}, v{r}, {8*g}' for g in range(3)]
        ops += [f's_sub_u32 s{sd+4}, s{sd}, s{sd+1}', f's_add_u32 s{sd+4}, s{sd+4}, s{sd+2}', f's_lshl1_add_u32 s{sd}, s{sd}, s{sd+4}', f's_lshl1_add_u32 s{sd+2}, s{sd+2}, s{sd+4}',
                f's_lshl_b32 s{sd+1}, s{sd+1}, 1', f's_sub_u32 s{sd+1}, s{sd+1}, s{sd+4}']
        for g in range(3):
            ops += [f's_cmp_lt_u32 s{sd+g}, {(8 if g == 1 else 24)*BIAS}', f's_cselect_b32 s{sd+g}, 8192, 0']
            if 'force' in self.o: ops.append(f's_mov_b32 s{sd+g}, {8192*((self.o["force"]+g)&1)}')
        return ops
    def tags(self):
        self.e(f's_add_u32 s{sT0}, s{sE}, 0x9e3779b9\ns_xor_b32 s{sT1}, s{sT0}, 0x5bd1e995')

    def prologue(self):
        e = self.e
        self.stamp('start')
        e(f"""
        s_load_dwordx16 s[8:23], s[0:1], 0
        s_cmp_ge_u32 s2, 256
        s_cbranch_scc1 L_EXIT
        v_lshrrev_b32 v1, 6, v0
        v_and_b32 v0, 63, v0
        v_readfirstlane_b32 s{sW}, v1
        v_and_b32 v1, 15, v0
        v_lshrrev_b32 v2, 4, v0
        v_lshlrev_b32 v4, 2, v0
        {('s_add_u32 s%d, s2, %d' % (sX8, self.o['lrot'])) if self.o.get('lrot') else ''}
        s_and_b32 s{sX8}, s{sX8 if self.o.get('lrot') else 2}, 7
        s_lshr_b32 s{sR}, s2, 3
        v_lshlrev_b32 v5, 4, v1
        v_lshlrev_b32 v6, 5, v2
        v_xor_b32 v5, v5, v6
        v_lshl_add_u32 v6, v2, 13, v5
        s_lshr_b32 s67, s{sW}, 1
        s_lshl_b32 s67, s67, 7
        v_xor_b32 v8, s67, v6
        s_bfe_u32 s60, s{sR}, 0x20002
        s_mul_i32 s60, s60, {160*8192}
        s_and_b32 s63, s{sR}, 3
        s_lshl2_add_u32 s63, s{sX8}, s63
        s_lshl_b32 s63, s63, 8
        s_add_u32 s60, s60, s63
        s_lshl_b32 s61, s{sW}, 15
        s_lshl_b32 s62, s{sW}, 10
        s_mov_b32 s{rA+3}, 0x20000
        s_mov_b32 s{rC+3}, s{rA+3}
        s_sub_u32 s{rA+2}, 5242880, s60
        s_cmp_lt_u32 s{sR}, 16
        s_cselect_b32 s{rC+2}, 0, 1280
        s_cselect_b32 s64, {5*4*32768}, 0
        s_cselect_b32 s65, {QB-WQ}, 0
        s_add_u32 s61, s61, s64
        s_add_u32 s62, s62, s65
        s_add_u32 s62, s62, {WQ}
        s_waitcnt lgkmcnt(0)
        s_load_dwordx4 s[32:35], s[0:1], 96
        s_load_dwordx8 s[24:31], s[0:1], 64
        s_mov_b32 s{rC}, s{pX}
        s_and_b32 s{rC+1}, s{pX+1}, 0xffff
        s_add_u32 s{rA}, s{pWQ}, s60
        s_addc_u32 s{rA+1}, s{pWQ+1}, 0
        s_and_b32 s{rA+1}, s{rA+1}, 0xffff
        """)
        if self.o.get('t_wq', 5) == 0: e(f's_cmp_lt_u32 s{sR}, 16\ns_cbranch_scc1 L_SKIPQ')
        self.x_issue()
        for k in range(5): self.wq_dma(k)
        e(f"""
        L_SKIPQ:
        v_lshlrev_b32 v3, 4, v0
        v_mov_b32 v9, {OOB}
        v_lshlrev_b32 v11, 4, v2
        s_mov_b32 s{sTO}, 400000
        s_mov_b32 s{sLM}, -1
        s_mov_b32 s{sLC}, 0
        s_mov_b32 s{sLOC}, {LOC}
        s_mov_b32 s{rWS+2}, {WSSZ}
        s_mov_b32 s{rWS+3}, 0x20000
        s_cmp_lt_u32 s{sR}, 16
        s_cbranch_scc1 L_T
        """)
    def ws_srd(self):
        self.e(f's_waitcnt lgkmcnt(0)\ns_mov_b32 s{rWS}, s{pWS}\ns_and_b32 s{rWS+1}, s{pWS+1}, 0xffff')
    def x_issue(self):
        for kk in range(5): self.e(f'buffer_load_dword v{20+kk}, v4, {srd(rC)}, 0 offen offset:{256*kk} {self.o.get("xflag","")}')
    def wq_dma(self, k):
        e = self.e
        e(f's_add_u32 m0, s62, {k*4096}')
        e(f'buffer_load_dwordx4 v8, {srd(rA)}, s61 offen nt lds')
        if k < 9: e(f's_add_u32 s61, s61, {4*32768}')
    def wuk_setup(self, sAi, srdreg):
        e = self.e
        e(f'''
        s_lshl_b32 s63, s{sX8}, 2
        s_add_u32 s64, s63, s{sW}
        s_lshl_b32 s64, s64, 8
        s_lshl_b32 s65, s{sAi}, 18
        s_add_u32 s64, s64, s65
        ''')
        self.mk_srd(srdreg, pWUK, 64, 4194304)
        e(f'v_xor_b32 v7, 0x80, v6\ns_mov_b32 s68, 0\ns_lshl_b32 s69, s{sW}, 13')
    def wuk_dma(self, k, srdreg, base):
        e = self.e
        e(f's_add_u32 m0, s69, {base+k*1024}')
        e(f'buffer_load_dwordx4 v{6 if ((k>>1)&1)==0 else 7}, {srd(srdreg)}, s68 offen {self.o.get("ukflag","nt")} lds')
        if k < 7: e(f's_add_u32 s68, s68, 32768')
    def a1(self, role, y_x, y_wq, mid):
        e = self.e
        s0, s1 = 63, 64
        e(f'''
        v_lshrrev_b32 v12, 2, v1
        v_lshl_add_u32 v13, v2, 3, v12
        v_lshlrev_b32 v13, 8, v13
        v_and_b32 v14, 3, v1
        v_lshl_add_u32 v13, v14, 3, v13
        v_and_b32 v15, 1, v2
        v_lshl_or_b32 v15, v15, 2, v12
        s_lshl_b32 s{s0}, s{sW}, 1
        v_xor_b32 v15, s{s0}, v15
        v_lshl_add_u32 v60, v15, 5, v13
        v_xor_b32 v15, 1, v15
        v_lshl_add_u32 v61, v15, 5, v13
        v_add_u32 v56, {WQ}, v60
        v_add_u32 v57, {WQ}, v61
        ''')
        e(f'''
        v_lshl_add_u32 v12, v1, 6, v11
        s_and_b32 s{s0}, s{sR}, 3
        s_lshl_b32 s{s1}, s{sX8}, 2
        s_add_u32 s{s0}, s{s0}, s{s1}
        s_lshl_b32 s{s0}, s{s0}, 2
        s_bfe_u32 s{s1}, s{sR}, 0x20002
        s_add_u32 s{s0}, s{s0}, s{s1}
        s_lshl_b32 s{s0}, s{s0}, 9
        s_lshl_b32 s{s1}, s{sW}, 7
        s_add_u32 s{s0}, s{s0}, s{s1}
        s_add_u32 s{s0}, s{s0}, {QP}
        v_add_u32 v12, s{s0}, v12
        v_cmp_gt_u32 vcc, 2, v1
        v_cndmask_b32 v62, v9, v12, vcc
        v_cmp_eq_u32 s[70:71], 1, v1
        s_mul_i32 s{s0}, s{sW}, 1280
        s_add_u32 s{s0}, s{s0}, {XN}
        v_add_u32 v10, s{s0}, v4
        s_bfe_u32 s{s1}, s{sR}, 0x20002
        s_mul_i32 s{s1}, s{s1}, 320
        s_add_u32 s{s0}, s{s0}, s{s1}
        v_add_u32 v12, s{s0}, v11
        s_waitcnt vmcnt({y_x}) lgkmcnt(0)
        ''')
        self.stamp(role+'.x')
        for k in range(5): e(f'v_lshlrev_b32 v{26+2*k}, 16, v{20+k}\nv_and_b32 v{27+2*k}, 0xffff0000, v{20+k}')
        e('v_pk_add_f32 v[36:37], v[26:27], v[28:29]\nv_pk_add_f32 v[38:39], v[30:31], v[32:33]\nv_pk_add_f32 v[36:37], v[36:37], v[34:35]\nv_pk_add_f32 v[36:37], v[36:37], v[38:39]\nv_add_f32 v36, v36, v37')
        self.allred('v_add_f32', 36, 37)
        e('v_mul_f32 v36, 0xbacccccd, v36\nv_mov_b32 v37, v36')
        for k in range(26,36,2): e(f'v_pk_add_f32 {v(k,2)}, {v(k,2)}, v[36:37]')
        e('v_pk_mul_f32 v[36:37], v[26:27], v[26:27]')
        for k in range(28,36,2): e(f'v_pk_fma_f32 v[36:37], {v(k,2)}, {v(k,2)}, v[36:37]')
        e('v_add_f32 v36, v36, v37')
        self.allred('v_add_f32', 36, 37)
        e('v_mul_f32 v36, 0x3acccccd, v36\nv_add_f32 v36, 0x3727c5ac, v36\nv_rsq_f32 v36, v36\nv_mov_b32 v37, v36')
        for k in range(26,36,2): e(f'v_pk_mul_f32 {v(k,2)}, {v(k,2)}, v[36:37]')
        for k in range(5): e(f'v_cvt_pk_bf16_f32 v{20+k}, v{26+2*k}, v{27+2*k}\nds_write_b32 v10, v{20+k} offset:{256*k}')
        e('s_waitcnt lgkmcnt(0)')
        for s in range(5): e(f'ds_read_b128 {v(36+4*s,4)}, v12 offset:{s*64}')
        e(f's_load_dword s{sE}, s[{pWS}:{pWS+1}], {EPOCH}')
        self.stamp(role+'.ln')
        mid()
        e(f's_waitcnt vmcnt({y_wq}) lgkmcnt(0)\ns_barrier')
        self.stamp(role+'.wq')
        vW = 128
        for s in range(5):
            for T in range(2):
                for q in range(2): e(f'ds_read_b64_tr_b16 {v(vW+(s*2+T)*4+2*q,2)}, v{56+T} offset:{s*8192+q*1024}')
        self.tags()
        e(f'v_mov_b32 v18, s{sT0}\nv_mov_b32 v19, s{sT1}')
        for s in range(5):
            for T in range(2):
                e(f's_waitcnt lgkmcnt({min(15,18-(s*2+T)*2)})')
                e(f'v_mfma_f32_16x16x32_bf16 {v(84+4*T,4)}, {v(vW+(s*2+T)*4,4)}, {v(36+4*s,4)}, ' + ('0' if s==0 else v(84+4*T,4)))
        for i in range(4): e(f'v_cvt_pk_bf16_f32 v{92+i}, v{84+2*i}, v{85+2*i}')
        e('v_cndmask_b32 v16, v92, v94, s[70:71]\nv_cndmask_b32 v17, v93, v95, s[70:71]')
        self.publ('v[16:19]', 62)
        self.stamp(role+'.qp')


    def role_A(self):
        e = self.e
        QV=0; CL=1024; ML=2304; RED=2560; DUM=3584; WUK=4096; WUV=36864
        W1=69632; W2=W1+20480; HB=4096; AP=HB+2048; ST=AP+256; HELP=135168
        sAi,sHd,sJ,s0,s1,s2_,sSL = 72,73,74,63,64,65,66
        sF,sG = 60,61
        if self.o.get('noA'): e('s_branch L_EXIT')
        order = self.o.get('a_order', 'qqqqq|uuuuuuuu')
        cnt = {'q':5,'u':0}
        def issue(ch):
            if ch == 'q': self.wq_dma(cnt['q'])
            else:
                if cnt['u'] == 0: self.wuk_setup(sAi, rB)
                self.wuk_dma(cnt['u'], rB, WUK)
            cnt[ch] += 1
        e(f's_sub_u32 s{sAi}, s{sR}, 16')
        order, o3 = (order.split('!') + [''])[:2]
        o1, o2 = order.split('|')
        for ch in o1: issue(ch)
        self.ws_srd()
        e(f"""
        s_lshl_b32 s63, s{sX8}, 2
        s_and_b32 s{sHd}, s{sAi}, 3
        s_add_u32 s{sHd}, s{sHd}, s63
        s_lshr_b32 s{sJ}, s{sAi}, 2
        s_lshl_b32 s{sSL}, s{sX8}, 4
        s_add_u32 s{sSL}, s{sSL}, s{sAi}
        """)
        def mid():
            for ch in o2: issue(ch)
        full = o1 + o2
        self.a1('A', 5+len(o1), len(full)-1-full.rindex('q'), mid)
        for ch in o3: issue(ch)
        e(f"""
        s_and_b32 s{s0}, s{sX8}, 6
        s_add_u32 s{s0}, s{s0}, s{sX8}
        s_lshl2_add_u32 s{s0}, s{s0}, s{sW}
        s_lshl4_add_u32 s{s0}, s{s0}, s{sAi}
        s_lshl_b32 s{s0}, s{s0}, 6
        s_add_u32 s{s0}, s{s0}, {QLB}
        v_lshlrev_b32 v14, 13, v2
        v_lshl_add_u32 v12, v1, 2, v14
        v_add_u32 v12, s{s0}, v12
        s_lshl2_add_u32 s{s1}, s{sSL}, s{sW}
        s_lshl_b32 s{s0}, s{s1}, 7
        s_add_u32 s{s0}, s{s0}, {HCB}
        v_lshlrev_b32 v13, 3, v0
        v_add_u32 v13, s{s0}, v13
        s_lshl_b32 s{s0}, s{s1}, 3
        s_add_u32 s{s0}, s{s0}, {QCS}
        v_add_u32 v14, s{s0}, v14
        s_and_b32 s{s1}, s{sAi}, 7
        s_lshl_b32 s{s1}, s{s1}, 1
        v_cmp_eq_u32 vcc, s{s1}, v1
        v_cndmask_b32 v14, v9, v14, vcc
        v_cmp_gt_u32 vcc, 32, v0
        v_cndmask_b32 v101, v9, v12, vcc
        v_cndmask_b32 v103, v9, v14, vcc
        v_cmp_gt_u32 vcc, 16, v0
        v_cndmask_b32 v100, v9, v12, vcc
        v_cndmask_b32 v26, v9, v14, vcc
        v_cndmask_b32 v102, v9, v13, vcc
        v_mov_b32 v99, s{sT0}
        """)
        e(f"""
        v_lshlrev_b32 v27, 9, v2
        v_lshl_add_u32 v27, v1, 4, v27
        s_lshl_b32 s{s2_}, s{sX8}, 2
        s_add_u32 s{s2_}, s{s2_}, s{sW}
        s_lshl_b32 s{s2_}, s{s2_}, 11
        s_add_u32 s{s2_}, s{s2_}, {QP+LOC}
        v_lshlrev_b32 v12, 9, v1
        s_lshl_b32 s{s0}, s{sW}, 13
        s_add_u32 s{s0}, s{s0}, {WUK}
        v_add_u32 v12, s{s0}, v12
        v_and_b32 v13, 1, v1
        v_and_b32 v14, 4, v1
        v_lshl_or_b32 v13, v13, 1, v14
        v_lshlrev_b32 v13, 5, v13
        """)
        def h0loads():
            for i in range(2): e(f'buffer_load_dwordx4 {v(64+4*i,4)}, v27, {srd(rWS)}, s{s2_} offen offset:{i*256} sc1')
        for s in range(4):
            e(f'v_add_u32 v14, {s*64}, v11\nv_xor_b32 v14, v14, v13\nv_add_u32 v{40+2*s}, v14, v12\nv_xor_b32 v14, 32, v14\nv_add_u32 v{41+2*s}, v14, v12')
        vI = 28
        self.ident_masks(vI, 0x3f80, 0x3f800000, 0, 8, 12)
        e(f"""
        s_lshl_b32 s{s0}, s{sW}, 8
        v_lshlrev_b32 v12, 3, v0
        v_add_u32 v12, s{s0}, v12
        v_mov_b32 v13, {DUM}
        v_cmp_gt_u32 vcc, 32, v0
        v_cndmask_b32 v24, v13, v12, vcc
        v_add_u32 v25, s{s0}, v11
        """)
        e(f's_waitcnt vmcnt({(0 if o3 else 1)+self.o.get("h0lead",3)})')
        h0loads()
        e(f's_waitcnt vmcnt({2 if o3 else 3})')
        self.stamp('A.wuk')
        vU = 112
        for s in range(4):
            for T in range(2): e(f'ds_read_b128 {v(vU+(s*2+T)*4,4)}, v{40+2*s+T} offset:{T*256}')
        e('L_A_H0:')
        e('s_waitcnt vmcnt(0)')
        for i in range(2):
            e(f'v_mfma_f32_16x16x16_bf16 v[80:83], {v(vI+2*i,2)}, {v(64+4*i,2)}, ' + ('0' if i==0 else 'v[80:83]'))
        self.tagcheck(12, [66,70])
        e('s_cbranch_vccz L_A_H0OK')
        self.fb((), (s2_,)); self.late_pubg('v[16:19]', 62)
        h0loads()
        e('s_branch L_A_H0')
        e('L_A_H0OK:')
        self.stamp('A.h0')
        e(f'v_cvt_pk_bf16_f32 v84, v80, v81\nv_cvt_pk_bf16_f32 v85, v82, v83\nds_write_b64 v24, v[84:85] offset:{QV}')
        for s in range(4): e(f'ds_read_b128 {v(144+4*s,4)}, v25 offset:{QV+s*64}')
        for s in range(4):
            e(f's_waitcnt lgkmcnt({3-s})')
            for T in range(2):
                e(f'v_mfma_f32_16x16x32_bf16 {v(104+4*T,4)}, {v(144+4*s,4)}, {v(vU+(s*2+T)*4,4)}, ' + ('0' if s==0 else v(104+4*T,4)))
        e('v_cvt_pk_bf16_f32 v64, v104, v108')
        self.pubg('v64', 101); self.publ('v64', 100)
        e(f'v_add_u32_dpp v96, v64, v64 quad_perm:[2,3,0,1] {DPP}\nv_xor_b32 v97, s{sT0}, v64\nv_add_u32_dpp v96, v96, v96 row_ror:4 {DPP}\nv_add_u32_dpp v96, v96, v96 row_ror:8 {DPP}')
        self.pubg('v[96:97]', 103); self.publ('v[96:97]', 26)
        self.stamp('A.ql')
        self.pubg('v[16:19]', 62)
        e('s_branch L_A2\n;SEG A2\nL_A2:')
        if self.o.get('pf', 3) == 3:
            e(f's_getpc_b64 s[20:21]\nL_PC:\ns_sub_u32 s20, s20, L_PC-{KN}\ns_subb_u32 s21, s21, 0')
            e(f's_lshl_b32 s{s0}, s{sW}, 13\nv_lshlrev_b32 v12, 7, v0\nv_add_u32 v12, s{s0}, v12\nv_min_u32 v12, L_CODE_END-4-{KN}, v12')
            e(f's_and_b32 s{s0}, s{sAi}, 3\ns_cmp_lg_u32 s{s0}, 0\ns_cbranch_scc1 L_NOPF\nglobal_load_dword v255, v12, s[20:21]\nL_NOPF:')
        e('s_barrier')
        nh = self.o.get('a_help', 0)
        if nh:
            tsh, wsh, istr = self.kmap()
            self.kbase(s0, sSL, tsh)
            self.mk_srd(rA, pCKV, s0, 16777216)
            e(f'v_lshlrev_b32 v12, 10, v2\nv_lshl_add_u32 v12, v1, 4, v12\ns_lshl_b32 s68, s{sW}, {wsh}\ns_lshl_b32 s69, s{sW}, 12\ns_add_u32 m0, s69, {HELP}')
            for n in range(32-nh, 32):
                c, i = n >> 3, n & 7
                e(f's_add_u32 s{sTMP}, s68, {self.ioff(i,istr)+c*256}')
                e(f'buffer_load_dwordx4 v12, {srd(rA)}, s{sTMP} offen {self.o.get("helpflag","nt")} lds')
        e(f"""
        v_lshrrev_b32 v12, 1, v2
        v_lshl_add_u32 v62, v12, 20, v5
        v_and_b32 v12, 1, v2
        v_lshl_add_u32 v62, v12, 17, v62
        v_xor_b32 v62, s67, v62
        s_lshl_b32 s{sG}, s{sJ}, 3
        s_add_u32 s{sG}, s{sG}, s{sX8}
        s_and_b32 s{sF}, s{sAi}, 3
        s_lshl_b32 s{s2_}, s{sG}, 2
        s_add_u32 s{sF}, s{sF}, s{s2_}
        """)
        sB = 62
        e(f"""
        v_and_b32 v5, 7, v1
        v_lshlrev_b32 v5, 4, v5
        v_and_b32 v6, 1, v2
        v_lshl_add_u32 v6, v6, 3, v5
        v_lshrrev_b32 v12, 3, v0
        v_and_b32 v13, 3, v12
        v_lshl_add_u32 v14, v13, 11, v5
        v_lshrrev_b32 v13, 5, v0
        v_lshl_add_u32 v14, v13, 14, v14
        v_cmp_eq_u32 vcc, s{sX8}, v12
        v_or_b32 v13, s{sLOC}, v14
        s_lshr_b32 s77, s{sX8}, 2
        s_lshl_b32 s77, s77, 13
        v_cndmask_b32 v46, v14, v13, vcc
        v_mov_b32 v15, 8192
        v_cndmask_b32 v40, v15, 0, vcc
        s_cmp_ge_u32 s{sG}, 27
        s_cbranch_scc1 L_A_NOF
        s_lshl_b32 s{s0}, s{sF}, 5
        """)
        self.mk_srd(rA, pW1, s0, 2211840)
        e(f's_mul_i32 s{s0}, s{sF}, 20480')
        self.mk_srd(rB, pW2, s0, 2211840)
        e(f"""
        v_and_b32 v7, 3, v12
        v_lshlrev_b32 v7, 3, v7
        v_lshrrev_b32 v8, 5, v0
        v_lshl_add_u32 v7, v8, 2, v7
        v_bfe_u32 v8, v0, 1, 2
        v_add_u32 v7, v7, v8
        v_mul_u32_u24 v7, 3456, v7
        v_and_b32 v8, 1, v0
        v_lshl_add_u32 v7, v8, 4, v7
        s_and_b32 s78, s{sF}, 3
        s_lshl_b32 s78, s78, 2
        s_add_u32 s78, s78, s{sW}
        """)
        w1f = self.o.get('w1flag', '')
        n1 = self.o.get('w1first', 2)
        def w1dma(k, r):
            if k == 1: e(f's_add_u32 s{sTMP}, s{sW}, 16')
            else:
                if k >= 2: e(f's_add_u32 s78, s78, 4\ns_and_b32 s78, s78, 15')
                e(f's_mov_b32 s{sTMP}, s78')
            e(f's_lshl_b32 s{s0}, s{sTMP}, 10\ns_add_u32 m0, s{s0}, {W1}\ns_mul_i32 s{s0}, s{sTMP}, 110592')
            e(f'buffer_load_dwordx4 v7, {srd(r)}, s{s0} offen {w1f} lds')
        for k in range(n1): w1dma(k, rA)
        e(f"""
        s_mul_i32 s{sB}, s{sW}, 3
        s_cmp_eq_u32 s{sW}, 3
        s_cselect_b32 s{sB}, 8, s{sB}
        s_lshl_b32 s{sB}, s{sB}, 7
        v_lshrrev_b32 v8, 1, v2
        v_lshl_add_u32 v8, v8, 7, v6
        s_cmp_lt_u32 s{sW}, 2
        s_cselect_b32 s{s0}, 32, 0
        v_cmp_gt_u32 vcc, s{s0}, v0
        v_cndmask_b32 v13, v9, v6, vcc
        v_cmp_gt_u32 vcc, 8, v1
        v_cndmask_b32 v12, v9, v8, vcc
        v_cndmask_b32 v13, v9, v13, vcc
        buffer_load_dwordx2 v[16:17], v12, {srd(rC)}, s{sB} offen
        buffer_load_dwordx2 v[18:19], v13, {srd(rC)}, s{sB} offen offset:256
        s_lshl_b32 s{s0}, s{sF}, 5
        """)
        self.mk_srd(rC, pB1, s0, 3456)
        e(f'v_lshlrev_b32 v12, 3, v2\nbuffer_load_dwordx2 v[58:59], v12, {srd(rC)}, 0 offen')
        e(f"""
        s_lshl_b32 s{s0}, s{sW}, 9
        s_add_u32 s{s0}, s{s0}, {HB}
        v_add_u32 v48, s{s0}, v8
        v_add_u32 v12, 256, v48
        v_mov_b32 v13, {DUM}
        v_cmp_gt_u32 vcc, 32, v0
        v_cndmask_b32 v49, v13, v12, vcc
        v_add_u32 v50, s{s0}, v11
        s_cmp_lt_u32 s{sW}, 2
        s_cselect_b32 s{s0}, 0, {OOB}
        v_max_u32 v47, s{s0}, v46
        s_add_u32 s79, s{sB}, {H3B}
        v_lshl_add_u32 v12, v1, 6, v11
        s_mul_i32 s{s0}, s{sW}, 320
        v_add_u32 v13, s{s0}, v12
        s_and_b32 s{s2_}, s{sF}, 3
        s_lshl3_add_u32 s{s2_}, s{sG}, s{s2_}
        s_lshl_b32 s{s2_}, s{s2_}, 11
        s_add_u32 s{s2_}, s{s2_}, {HS+8192}
        v_add_u32 v12, s{s2_}, v13
        v_cmp_gt_u32 vcc, 5, v1
        v_cndmask_b32 v51, v9, v12, vcc
        v_bfe_u32 v13, v13, 7, 2
        v_add_u32 v13, 4, v13
        v_cmp_eq_u32 vcc, s{sX8}, v13
        v_cndmask_b32 v43, v9, v51, vcc
        s_and_b32 s{s0}, s{sW}, 1
        s_mul_i32 s{s0}, s{s0}, 640
        s_add_u32 s{s2_}, s{s2_}, s{s0}
        s_lshr_b32 s{s0}, s{sW}, 1
        s_lshl_b32 s{s0}, s{s0}, 20
        s_add_u32 s{s2_}, s{s2_}, s{s0}
        v_add_u32 v12, s{s2_}, v3
        v_cmp_gt_u32 vcc, 40, v0
        v_cndmask_b32 v41, v9, v12, vcc
        s_lshl_b32 s{s2_}, s{sB}, 4
        s_add_u32 s{s2_}, s{s2_}, {W1}
        v_lshlrev_b32 v52, 3, v0
        v_add_u32 v52, s{s2_}, v52
        v_lshrrev_b32 v12, 2, v0
        v_mul_u32_u24 v12, 1280, v12
        v_and_b32 v13, 3, v1
        v_lshl_add_u32 v12, v13, 4, v12
        v_add_u32 v53, {W2}, v12
        s_lshl_b32 s{s0}, s{sW}, 2
        v_lshrrev_b32 v12, 5, v0
        v_lshlrev_b32 v12, 4, v12
        v_add_u32 v12, s{s0}, v12
        v_add_u32 v54, {ST}, v12
        s_lshl_b32 s{s0}, s{sW}, 6
        v_add_u32 v55, {AP}, v11
        v_add_u32 v45, s{s0}, v55
        v_mov_b32 v44, {ST}
        s_cmp_eq_u32 s{sW}, 3
        s_cselect_b32 s{s0}, 2048, 0
        v_subrev_u32 v42, s{s0}, v52
        """)
        e(f'v_lshrrev_b32 v12, 2, v1\nv_lshlrev_b32 v12, 6, v12\ns_mul_i32 s{s0}, s{sW}, 320')
        for P in range(5):
            e(f'v_xor_b32 v13, s{s0}, v12\nv_add_u32 v{229+P}, v13, v53')
            if P < 4: e(f's_add_u32 s{s0}, s{s0}, 64')
        e('s_branch L_A_FDONE\nL_A_NOF:')
        sK = sF
        e(f"""
        s_and_b32 s{s0}, s{sAi}, 3
        s_and_b32 s{sK}, s{sX8}, 3
        s_lshl2_add_u32 s{sK}, s{s0}, s{sK}
        s_cmp_lt_u32 s{sX8}, 4
        s_cselect_b32 s{sK}, 15, s{sK}
        s_lshl_b32 s{sB}, s{sK}, 7
        """)
        self.mk_srd(rB, pB2, None, 1280)
        e(f"""
        s_cmp_eq_u32 s{sW}, 0
        s_cselect_b32 s{s1}, 32, 0
        v_cmp_gt_u32 vcc, s{s1}, v0
        v_cndmask_b32 v6, v9, v6, vcc
        v_cmp_gt_u32 vcc, 8, v1
        v_cndmask_b32 v6, v9, v6, vcc
        buffer_load_dwordx2 v[16:17], v6, {srd(rC)}, s{sB} offen
        buffer_load_dwordx2 v[18:19], v6, {srd(rB)}, s{sB} offen
        s_mul_i32 s{s0}, s{sW}, 28
        v_add_u32 v15, s{s0}, v12
        """)
        for i in range(4):
            e(f'v_bfe_u32 v10, v15, 2, 3\nv_cmp_eq_u32 vcc, s{sX8}, v10\nv_cndmask_b32 v{48+i}, v14, v13, vcc')
            if i < 3: e('v_add_u32 v15, 8, v15')
            if i > 0: e(f'v_add_u32 v{48+i}, {32768*i}, v{48+i}')
        e(f"""
        s_cmp_lt_u32 s{sW}, 3
        s_cselect_b32 s{s1}, 4, 0
        v_cmp_gt_u32 vcc, s{s1}, v12
        v_cndmask_b32 v51, v9, v51, vcc
        s_add_u32 s79, s{sB}, {H3B}
        v_mov_b32 v47, v46
        v_mov_b32 v43, v9
        v_mov_b32 v41, v9
        s_lshl_b32 s{s0}, s{s0}, 12
        s_add_u32 s78, s{sB}, s{s0}
        s_add_u32 s78, s78, {HS+8192}
        v_lshlrev_b32 v52, 5, v1
        v_lshl_add_u32 v52, v2, 4, v52
        s_lshl_b32 s{s1}, s{sW}, 8
        s_add_u32 s{s1}, s{s1}, {RED}
        v_add_u32 v52, s{s1}, v52
        v_mov_b32 v13, {DUM}
        v_cmp_gt_u32 vcc, 32, v0
        v_cndmask_b32 v52, v13, v52, vcc
        v_cmp_gt_u32 vcc, 8, v1
        v_cndmask_b32 v52, v13, v52, vcc
        v_cmp_gt_u32 vcc, 16, v0
        v_lshlrev_b32 v12, 3, v0
        v_cndmask_b32 v53, v9, v12, vcc
        v_lshlrev_b32 v54, 4, v1
        v_cmp_eq_u32 vcc, 0, v0
        v_cndmask_b32 v55, v9, v0, vcc
        L_A_FDONE:
        """)
        e(f's_lshl_b32 s{s0}, s{sW}, 2\nv_add_u32 v12, s{s0}, v2')
        for k in range(5):
            e(f'v_add_u32 v13, {16*k}, v12\nv_mul_u32_u24 v13, 205, v13\nv_bfe_u32 v13, v13, 10, 2\nv_lshlrev_b32 v13, 6, v13\nv_xor_b32 v{224+k}, v13, v3')
        vMk = 36
        self.ident_masks(vMk, 0xffff, 0xffff0000, 0, 4, 12)
        e(f"""
        s_lshl_b32 s{s0}, s{sW}, 2
        v_add_u32 v12, s{s0}, v2
        v_lshlrev_b32 v20, 10, v1
        v_lshl_add_u32 v20, v12, 14, v20
        v_lshrrev_b32 v13, 1, v12
        v_cmp_eq_u32 vcc, s{sX8}, v13
        v_or_b32 v12, s{sLOC}, v20
        v_cndmask_b32 v20, v20, v12, vcc
        v_and_b32 v20, s{sLM}, v20
        v_lshl_add_u32 v12, v2, 3, v1
        v_lshlrev_b32 v12, 8, v12
        v_mov_b32 v13, s{sT0}
        v_cmp_gt_u32 vcc, 8, v1
        v_cndmask_b32 v20, v9, v20, vcc
        v_cndmask_b32 v26, v9, v12, vcc
        v_cndmask_b32 v25, 0, v13, vcc
        s_mov_b32 s70, 0x00ff00ff
        s_mov_b32 s71, 0x00ff00ff
        s_and_b32 s{s1}, s{sHd}, 15
        s_lshl4_add_u32 s68, s{sJ}, s{s1}
        s_lshl_b32 s67, s68, 2
        s_lshl_b32 s68, s68, 4
        s_add_u32 s68, s68, s77
        s_add_u32 s68, s68, {REC}
        s_add_u32 s67, s67, s77
        s_lshl_b32 s{s1}, s{sW}, 14
        s_add_u32 s67, s67, s{s1}
        s_add_u32 s67, s67, {CS}
        v_lshlrev_b32 v22, 18, v2
        v_lshl_add_u32 v22, v1, 4, v22
        s_lshl_b32 s{s0}, s{sW}, 20
        s_add_u32 s69, s77, s{s0}
        s_add_u32 s69, s69, {PART}
        s_lshr_b32 s{s0}, s{sJ}, 1
        s_lshl_b32 s{s0}, s{s0}, 14
        s_add_u32 s69, s69, s{s0}
        s_and_b32 s{s0}, s{sJ}, 1
        s_lshl_b32 s{s0}, s{s0}, 12
        s_add_u32 s69, s69, s{s0}
        s_and_b32 s{s0}, s{sHd}, 3
        s_lshl_b32 s{s0}, s{s0}, 10
        s_add_u32 s69, s69, s{s0}
        s_bfe_u32 s{s0}, s{sHd}, 0x20002
        s_lshl_b32 s{s0}, s{s0}, 8
        s_add_u32 s69, s69, s{s0}
        v_lshlrev_b32 v12, 4, v1
        v_lshl_add_u32 v12, v2, 3, v12
        s_mul_i32 s{s0}, s{sW}, 320
        s_add_u32 s{s0}, s{s0}, {CL}
        v_add_u32 v12, s{s0}, v12
        v_mov_b32 v13, {DUM}
        v_cmp_gt_u32 vcc, 32, v0
        v_cndmask_b32 v23, v13, v12, vcc
        v_and_b32 v12, 3, v1
        v_mul_u32_u24 v12, 320, v12
        v_add_u32 v12, v12, v11
        v_add_u32 v24, {CL}, v12
        s_lshl_b32 s{s0}, s{sW}, 2
        s_add_u32 s{s0}, s{s0}, {ML}
        v_mov_b32 v12, s{s0}
        v_cmp_gt_u32 vcc, 8, v1
        v_cndmask_b32 v21, v13, v12, vcc
        v_mov_b32 v27, {ML}
        v_add_u32 v56, {WUV}, v60
        v_add_u32 v57, {WUV}, v61
        """)
        e(f's_lshl_b32 s{s0}, s{sJ}, 18\ns_lshl_b32 s{s1}, s{sHd}, 8\ns_add_u32 s{s0}, s{s0}, s{s1}')
        self.mk_srd(rC, pWUV, s0, 4194304)
        e(f"""
        s_cmp_lt_u32 s{sG}, 27
        s_cselect_b32 s9, 1, 0
        s_lshl_b32 s75, s{sSL}, 7
        s_add_u32 s75, s75, {GATE}
        v_mov_b32 v12, 0
        s_mov_b32 s8, 40
        L_A_G:
        buffer_load_dword v13, v12, {srd(rWS)}, s75 offen sc1
        s_waitcnt vmcnt(0)
        v_readfirstlane_b32 s76, v13
        s_cmp_eq_u32 s76, s{sT1}
        s_cbranch_scc1 L_A_GOK
        """)
        if self.o.get('w1dyn', 1):
            e('s_cmp_eq_u32 s9, 0\ns_cbranch_scc1 L_A_G2\ns_mov_b32 s9, 0')
            for k in range(n1, 5): w1dma(k, rA)
            e('L_A_G2:')
        e('s_sub_u32 s8, s8, 1\ns_cbranch_scc0 L_A_G\nL_A_GOK:')
        self.stamp('A.gate')
        e(f"""
        s_and_b32 s{s0}, s{sW}, 1
        s_lshl_b32 s{s0}, s{s0}, 8
        s_lshr_b32 s{s1}, s{sW}, 1
        s_add_u32 s{s0}, s{s0}, s{s1}
        s_lshl_b32 s{s0}, s{s0}, 13
        s_lshl_b32 s{s1}, s{sW}, 10
        """)
        for k in range(8):
            e(f's_add_u32 m0, s{s1}, {WUV+k*4096}')
            e(f'buffer_load_dwordx4 v62, {srd(rC)}, s{s0} offen nt lds')
            if k < 7: e(f's_add_u32 s{s0}, s{s0}, 16384')
        e('s_cmp_eq_u32 s9, 0\ns_cbranch_scc1 L_A_NOW1')
        for k in range(n1, 5): w1dma(k, rA)
        e('L_A_NOW1:')
        e('v_min_u32 v14, 92, v4')
        if self.o.get('hcpre', 1): e(f'buffer_load_dword v255, v102, {srd(rWS)}, s{sLOC} offen')
        e(f'L_A_POL:\nglobal_load_dword v15, v14, s[{pDBG}:{pDBG+1}] sc1\ns_waitcnt vmcnt(0)')
        for x in self.pol_ops(15, 8): e(x)
        e('s_cbranch_vccz L_A_POLOK'); self.timeout(); e('s_branch L_A_POL\nL_A_POLOK:')
        e(f"""
        s_and_b32 s12, s{sX8}, 3
        s_lshr_b32 s12, s11, s12
        s_and_b32 s12, s12, 1
        s_lshl_b32 s12, s12, 13
        s_xor_b32 s67, s67, s9
        s_xor_b32 s67, s67, s12
        s_cmp_lt_u32 s{sW}, 2
        s_cselect_b32 s9, s9, s10
        s_xor_b32 s9, s9, s12
        s_xor_b32 s12, s12, s8
        s_xor_b32 s69, s69, s9
        s_xor_b32 s68, s68, s12
        s_xor_b32 s77, s77, s12
        v_and_b32 v40, s77, v40
        v_xor_b32 v46, v46, v40
        v_xor_b32 v47, v47, v40
        v_xor_b32 v43, s12, v43
        v_bfe_u32 v12, v41, 7, 2
        v_bfe_u32 v12, s11, v12, 1
        v_lshlrev_b32 v12, 13, v12
        v_xor_b32 v12, s8, v12
        v_xor_b32 v41, v12, v41
        v_bfe_u32 v12, v51, 7, 2
        v_bfe_u32 v12, s11, v12, 1
        v_lshlrev_b32 v12, 13, v12
        v_xor_b32 v12, s8, v12
        s_cmp_ge_u32 s{sG}, 27
        s_cselect_b32 s9, s12, 0
        s_cselect_b32 s10, 0, -1
        s_xor_b32 s78, s78, s9
        v_and_b32 v12, s10, v12
        v_xor_b32 v51, v12, v51
        v_mov_b32 v12, -1
        v_mov_b32 v13, -1
        v_mov_b32 v14, -1
        v_mov_b32 v15, -1
        buffer_store_dwordx4 v[12:15], v41, {srd(rWS)}, 0 offen sc1
        """)
        e('s_branch L_A3\n;SEG A3\nL_A3:')
        e('s_barrier')
        self.stamp('A.land')
        for s in range(4):
            for T in range(2):
                for q in range(2): e(f'ds_read_b64_tr_b16 {a((s*2+T)*4+2*q,2)}, v{56+T} offset:{s*8192+q*1024}')
        e(f'buffer_load_dwordx4 v[236:239], v20, {srd(rWS)}, s68 offen sc1')
        vC0, vC1, vB1, vS1 = 192, 196, 200, 204
        for dst,src in [(vC0,16),(vC1,18)]:
            e(f'v_lshlrev_b32 v{dst}, 16, v{src}\nv_and_b32 v{dst+1}, 0xffff0000, v{src}\nv_lshlrev_b32 v{dst+2}, 16, v{src+1}\nv_and_b32 v{dst+3}, 0xffff0000, v{src+1}')
        e(f's_cmp_ge_u32 s{sG}, 27\ns_cbranch_scc1 L_A_NOF2')
        for s in range(6):
            for q in range(2): e(f'ds_read_b64_tr_b16 {a(32+s*4+2*q,2)}, v{52 if s < 4 else 42} offset:{s*1024+q*512}')
        e(f'v_lshlrev_b32 v{vB1}, 16, v58\nv_and_b32 v{vB1+1}, 0xffff0000, v58\nv_lshlrev_b32 v{vB1+2}, 16, v59\nv_and_b32 v{vB1+3}, 0xffff0000, v59')
        e(f's_cmp_lt_u32 s{sW}, 2\ns_cselect_b32 s{s0}, 0x3f803f80, 0')
        for r in range(4): e(f'v_mov_b32 v{208+r}, 0x3f803f80\nv_mov_b32 v{212+r}, s{s0}')
        e('s_waitcnt lgkmcnt(0)')
        for s in range(6):
            e(f'v_mfma_f32_16x16x32_bf16 {v(vS1,4)}, {a(32+s*4,4)}, {v(208 if s < 4 else 212,4)}, ' + ('0' if s == 0 else v(vS1,4)))
        e(f'ds_write_b128 v45, {v(vS1,4)}\ns_waitcnt lgkmcnt(0)\ns_barrier')
        for w in range(4): e(f'ds_read_b128 {v(208+4*w,4)}, v55 offset:{64*w}')
        e('s_waitcnt lgkmcnt(0)')
        for i in range(2): e(f'v_pk_add_f32 {v(208+2*i,2)}, {v(208+2*i,2)}, {v(212+2*i,2)}\nv_pk_add_f32 {v(216+2*i,2)}, {v(216+2*i,2)}, {v(220+2*i,2)}')
        for i in range(2): e(f'v_pk_add_f32 {v(vS1+2*i,2)}, {v(208+2*i,2)}, {v(216+2*i,2)}')
        e('L_A_NOF2:')
        e('s_waitcnt lgkmcnt(0)')
        self.stamp('A.w2rdy')
        def rl_(k): e(f'buffer_load_dwordx4 {v(236+4*k,4)}, v20, {srd(rWS)}, s68 offen sc1')
        def rc_(k):
            e(f'v_cmp_ne_u64 vcc, s[{sT0}:{sT1}], {v(238+4*k,2)}\nv_mov_b32 v64, v{236+4*k}\nv_mov_b32 v65, v{237+4*k}\ns_and_b64 vcc, vcc, s[70:71]')
        self.ppoll('L_A_REC', self.o.get('nrec',2), 1, rl_, rc_, vregs=(20,), pre_issued=1)
        vD = 128; vAF = 160
        if self.stamps and 'A.rec1' in self.o.get('want', []):
            k = len(self.slots['A']); e(f's_waitcnt lgkmcnt(0)\ns_cmp_lg_u32 s{sSTAMP+2*k}, 0\ns_cbranch_scc1 L_R1'); self.stamp('A.rec1'); e('L_R1:')
        if self.o.get('recbar'): e('s_barrier')
        dd = self.o.get('ddelay', [0,0])
        if dd[0]: e(f's_sleep {dd[0]}')
        if dd[1]: e(f's_cmp_lt_u32 s{sX8}, 4\ns_cbranch_scc1 L_A_NOD\ns_sleep {dd[1]}\nL_A_NOD:')
        def dloads():
            e(f's_mov_b32 s{sTMP}, s69')
            for i in range(8):
                e(f'buffer_load_dwordx4 {v(vD+4*i,4)}, v22, {srd(rWS)}, s{sTMP} offen sc1')
                if i < 7: e(f's_add_u32 s{sTMP}, s{sTMP}, 32768')
            e(f'buffer_load_dword v67, v26, {srd(rWS)}, s67 offen sc1')
        dloads()
        self.stamp('A.rec')
        e('v_mov_b32 v72, v64')
        self.allred('v_max_f32', 72, 74, 3)
        e('v_sub_f32 v64, v64, v72\nv_exp_f32 v64, v64\nv_cvt_pk_bf16_f32 v64, v64, v64\nv_and_b32 v73, 0xffff0000, v64\nv_mul_f32 v73, v73, v65')
        for i in range(8):
            for r in range(4): e(f'v_and_b32_dpp v{vAF+4*i+r}, v64, v{vMk+r} row_newbcast:{i} {DPP}')
        self.allred('v_add_f32', 73, 74, 3)
        e('ds_write2_b32 v21, v72, v73 offset0:0 offset1:4')
        e('L_A_DATA:')
        e('v_sub_u32 v66, 0, v25')
        for i in range(8):
            e(f's_waitcnt vmcnt({8-i})')
            e(f'v_mfma_f32_16x16x32_bf16 v[76:79], {v(vAF+4*i,4)}, {v(vD+4*i,4)}, ' + ('0' if i==0 else 'v[76:79]'))
            e(f'v_add3_u32 v66, v66, v{vD+4*i}, v{vD+4*i+1}\nv_add3_u32 v66, v66, v{vD+4*i+2}, v{vD+4*i+3}')
        e('s_waitcnt vmcnt(0)\nv_add_u32 v66, v66, v67')
        self.stamp('A.data')
        e(f'v_add_u32_dpp v66, v66, v66 quad_perm:[1,0,3,2] {DPP}')
        e(f'v_cvt_pk_bf16_f32 v74, v76, v77\nv_cvt_pk_bf16_f32 v75, v78, v79\nv_add_u32_dpp v66, v66, v66 quad_perm:[2,3,0,1] {DPP}\nds_write_b64 v23, v[74:75]')
        e(f'v_add_u32_dpp v66, v66, v66 row_half_mirror {DPP}\nv_add_u32_dpp v66, v66, v66 row_mirror {DPP}\nv_cmp_ne_u32 vcc, 0, v66\ns_cbranch_vccz L_A_DOK')
        self.timeout()
        if self.stamps: e('s_add_u32 s7, s7, 1')
        e('s_mov_b64 exec, vcc')
        dloads()
        e('s_mov_b64 exec, -1\ns_branch L_A_DATA\nL_A_DOK:')
        e('s_waitcnt lgkmcnt(0)\ns_barrier')
        self.stamp('A.clbar')
        e(f'ds_read_b128 v[80:83], v24\nds_read_b128 v[64:67], v27\nds_read_b128 v[84:87], v24 offset:64\nds_read_b128 v[68:71], v27 offset:16\nds_read_b128 v[88:91], v24 offset:128\nds_read_b128 v[92:95], v24 offset:192')
        fac = [[], ['s_waitcnt lgkmcnt(4)', 'v_max3_f32 v72, v64, v65, v66', 'v_max_f32 v72, v72, v67'], ['v_sub_f32 v64, v64, v72', 'v_sub_f32 v65, v65, v72'], ['v_sub_f32 v66, v66, v72', 'v_sub_f32 v67, v67, v72'],
               ['v_exp_f32 v64, v64'], ['v_exp_f32 v65, v65'], ['v_exp_f32 v66, v66'],
               ['v_exp_f32 v67, v67', 'v_mul_f32 v72, v64, v68', 'v_fmac_f32 v72, v65, v69', 'v_fmac_f32 v72, v66, v70', 'v_fmac_f32 v72, v67, v71', 'v_rcp_f32 v72, v72']]
        for s in range(4):
            e(f's_waitcnt lgkmcnt({[5,3,1,0][s]})')
            for T in range(2):
                e(f'v_mfma_f32_16x16x32_bf16 {v(104+4*T,4)}, {v(80+4*s,4)}, {a((s*2+T)*4,4)}, ' + ('0' if s==0 else v(104+4*T,4)))
                for x in fac[2*s+T]: e(x)
        e('v_pk_mul_f32 v[104:105], v[104:105], v[64:65]\nv_pk_mul_f32 v[108:109], v[108:109], v[64:65]')
        e('v_pk_fma_f32 v[104:105], v[106:107], v[66:67], v[104:105]\nv_pk_fma_f32 v[108:109], v[110:111], v[66:67], v[108:109]')
        e('v_add_f32 v104, v104, v105\nv_add_f32 v108, v108, v109\nv_mul_f32 v104, v104, v72\nv_mul_f32 v108, v108, v72')
        e('v_cvt_pk_bf16_f32 v98, v104, v108')
        self.publ('v[98:99]', 102); self.pubg('v[98:99]', 102)
        self.stamp('A.hc')
        e(f's_cmp_ge_u32 s{sG}, 27\ns_cbranch_scc1 L_FIN')
        def w2dma():
            for k in range(5):
                e(f's_add_u32 m0, s{s1}, {W2+k*4096}\ns_add_u32 s{s0}, s{s1}, {k*4096}')
                e(f'buffer_load_dwordx4 v{224+k}, {srd(rB)}, s{s0} offen nt lds')
        e(f's_lshl_b32 s{s1}, s{sW}, 10')
        w2dma()
        for P in range(5):
            e(f's_mov_b32 s{68+2*P}, {0x00010001<<P}\ns_mov_b32 s{69+2*P}, {0x00010001<<P}')
        self.lmask((46,47))
        def hl(k):
            b = 152+12*k
            e(f'buffer_load_dwordx4 {v(b,4)}, v46, {srd(rWS)}, s79 offen sc1')
            e(f'buffer_load_dwordx4 {v(b+4,4)}, v46, {srd(rWS)}, s79 offen offset:128 sc1')
            e(f'buffer_load_dwordx4 {v(b+8,4)}, v47, {srd(rWS)}, s79 offen offset:256 sc1')
        def hck(k):
            b = 152+12*k
            e(f'v_mfma_f32_16x16x32_bf16 v[76:79], {v(vI,4)}, {v(b,4)}, {v(vC0,4)}')
            e(f'v_mfma_f32_16x16x32_bf16 v[76:79], {v(vI+4,4)}, {v(b+4,4)}, v[76:79]')
            e(f'v_mfma_f32_16x16x32_bf16 v[80:83], {v(vI,4)}, {v(b+8,4)}, {v(vC1,4)}')
            self.maxchain(12, range(b, b+12))
            e('v_cmp_eq_u32 vcc, -1, v12')
        e('s_waitcnt vmcnt(0)')
        self.stamp('F.land')
        hl(0)
        e('s_barrier')
        for P in range(5):
            for hb in range(2): e(f'ds_read_b64_tr_b16 {a(56+P*4+2*hb,2)}, v{229+P} offset:{hb*8}')
        e('s_waitcnt lgkmcnt(0)')
        self.stamp('F.prep')
        self.ppoll('L_F_POLL', self.o.get('nh3',2), 3, hl, hck, vregs=(46,47), pre_issued=1)
        self.stamp('F.h3b')
        vB = 128
        for r in range(4): e(f'v_add_f32_dpp v{76+r}, v{76+r}, v{76+r} row_ror:8 {DPP}')
        e('v_cvt_pk_bf16_f32 v84, v76, v77\nv_cvt_pk_bf16_f32 v85, v78, v79\nds_write_b64 v48, v[84:85]')
        for s in range(4): e(f'ds_read_b128 {v(vB+4*s,4)}, v50 offset:{s*64}')
        for r in range(4): e(f'v_add_f32_dpp v{80+r}, v{80+r}, v{80+r} row_ror:8 {DPP}')
        e('v_cvt_pk_bf16_f32 v86, v80, v81\nv_cvt_pk_bf16_f32 v87, v82, v83\nds_write_b64 v49, v[86:87]')
        for s in range(4,6): e(f'ds_read_b128 {v(vB+4*s,4)}, v50 offset:{s*64}')
        e('v_pk_add_f32 v[88:89], v[76:77], v[78:79]\nv_pk_mul_f32 v[92:93], v[76:77], v[76:77]\nv_pk_add_f32 v[90:91], v[80:81], v[82:83]\nv_pk_fma_f32 v[92:93], v[78:79], v[78:79], v[92:93]')
        e('v_pk_add_f32 v[88:89], v[88:89], v[90:91]\nv_pk_fma_f32 v[92:93], v[80:81], v[80:81], v[92:93]\nv_pk_fma_f32 v[92:93], v[82:83], v[82:83], v[92:93]')
        st = [['v_add_f32 v88, v88, v89', 'v_add_f32 v92, v92, v93'], ['s_nop 0', 'v_permlane32_swap_b32 v88, v92', 'v_add_f32 v88, v88, v92'], ['v_mov_b32 v92, v88'],
              ['s_nop 0', 'v_permlane16_swap_b32 v88, v92', 'v_add_f32 v88, v88, v92'], ['s_nop 0', f'v_add_f32_dpp v88, v88, v88 quad_perm:[1,0,3,2] {DPP}'],
              [f'v_add_f32_dpp v88, v88, v88 quad_perm:[2,3,0,1] {DPP}', f'v_add_f32_dpp v88, v88, v88 row_half_mirror {DPP}', 'v_mul_f32 v88, 0x3acccccd, v88', 'ds_write_b32 v54, v88']]
        for s in range(6):
            e(f's_waitcnt lgkmcnt({[6,5,4,3,1,0][s]})')
            e(f'v_mfma_f32_16x16x32_bf16 v[96:99], {a(32+s*4,4)}, {v(vB+4*s,4)}, ' + ('0' if s == 0 else 'v[96:99]'))
            for x in st[s]: e(x)
        e('ds_write_b128 v45, v[96:99]\ns_waitcnt lgkmcnt(0)\ns_barrier')
        self.stamp('F.abar')
        e('ds_read_b128 v[100:103], v44\nds_read_b128 v[104:107], v44 offset:16')
        for w in range(4): e(f'ds_read_b128 {v(128+4*w,4)}, v55 offset:{64*w}')
        e(f"""
        s_waitcnt lgkmcnt(4)
        v_pk_add_f32 v[100:101], v[100:101], v[102:103]
        v_pk_add_f32 v[104:105], v[104:105], v[106:107]
        v_add_f32 v100, v100, v101
        v_add_f32 v104, v104, v105
        v_fma_f32 v104, -v100, v100, v104
        v_max_f32 v104, 0, v104
        v_add_f32 v104, 0x3727c5ac, v104
        v_rsq_f32 v104, v104
        s_waitcnt lgkmcnt(0)
        v_pk_fma_f32 v[128:129], {v(vS1,2)}, v[100:101], v[128:129] op_sel_hi:[1,0,1] neg_lo:[0,1,0] neg_hi:[0,1,0]
        v_pk_fma_f32 v[130:131], {v(vS1+2,2)}, v[100:101], v[130:131] op_sel_hi:[1,0,1] neg_lo:[0,1,0] neg_hi:[0,1,0]
        v_pk_add_f32 v[136:137], v[136:137], v[140:141]
        v_pk_add_f32 v[138:139], v[138:139], v[142:143]
        v_pk_add_f32 v[128:129], v[128:129], v[132:133]
        v_pk_add_f32 v[130:131], v[130:131], v[134:135]
        v_pk_add_f32 v[128:129], v[128:129], v[136:137]
        v_pk_add_f32 v[130:131], v[130:131], v[138:139]
        v_pk_fma_f32 v[128:129], v[128:129], v[104:105], {v(vB1,2)} op_sel_hi:[1,0,1]
        v_pk_fma_f32 v[130:131], v[130:131], v[104:105], {v(vB1+2,2)} op_sel_hi:[1,0,1]
        """)
        for r in range(4): e(f'v_max_f32 v{128+r}, 0, v{128+r}')
        e('v_pk_mul_f32 v[128:129], v[128:129], v[128:129]\nv_pk_mul_f32 v[130:131], v[130:131], v[130:131]')
        e('v_cvt_pk_bf16_f32 v108, v128, v129\nv_cvt_pk_bf16_f32 v109, v130, v131')
        self.stamp('F.f1')
        def cm(P): e(f'v_cndmask_b32 v{110+2*P}, 0, v108, s[{68+2*P}:{69+2*P}]\nv_cndmask_b32 v{111+2*P}, 0, v109, s[{68+2*P}:{69+2*P}]')
        cm(0); cm(1)
        for P in range(5):
            for hb in range(2):
                e(f'v_mfma_f32_16x16x16_bf16 {v(120+4*hb,4)}, {a(56+P*4+2*hb,2)}, {v(110+2*P,2)}, ' + ('0' if P == 0 else v(120+4*hb,4)))
                if hb == 0 and P+2 < 5: cm(P+2)
        for i in range(4): e(f'v_cvt_pk_bf16_f32 v{64+i}, v{120+2*i}, v{121+2*i}')
        for i in range(4): e(f'v_min_u32 v{64+i}, -2, v{64+i}')
        self.pubg('v[64:67]', 51)
        if self.o.get('hloc',1): self.publ('v[64:67]', 43)
        self.stamp('F.end')
        e('s_branch L_END')
        e(';SEG FIN\nL_FIN:')
        e(f's_cmp_ge_u32 s{sK}, 10\ns_cbranch_scc1 L_END')
        self.mk_srd(rA, pOUT, None, 1280)
        if self.o.get('vw', 0): e(f'buffer_load_dword v13, v53, {srd(rA)}, s{sB} offen')
        e(f's_cmp_eq_u32 s{sW}, 0\ns_cselect_b32 s{s1}, -1, 0')
        for r in range(4): e(f'v_and_b32 v{32+r}, s{s1}, v{vI+r}')
        e(f'v_pk_add_f32 {v(vC0,2)}, {v(vC0,2)}, {v(vC1,2)}\nv_pk_add_f32 {v(vC0+2,2)}, {v(vC0+2,2)}, {v(vC1+2,2)}\nv_mov_b32 v45, s{sT0}')
        self.lmask((46,))
        e('L_R_P1:')
        e(f'buffer_load_dwordx4 v[64:67], v46, {srd(rWS)}, s79 offen sc1\ns_waitcnt vmcnt(0)')
        self.maxchain(12, range(64,68))
        e('v_cmp_eq_u32 vcc, -1, v12')
        self.retry('L_R_P1', sleep=1, vregs=(46,))
        self.stamp('R.h3b')
        self.lmask((48,49,50,51))
        e(f'v_mfma_f32_16x16x32_bf16 {v(vC0,4)}, v[32:35], v[64:67], {v(vC0,4)}')
        if self.o.get('rdelay'): e(f's_sleep {self.o["rdelay"]}')
        def r4l(k):
            for i in range(4): e(f'buffer_load_dwordx4 {v(208+16*k+4*i,4)}, v{48+i}, {srd(rWS)}, s78 offen sc1')
        def r4c(k):
            for i in range(4): e(f'v_mfma_f32_16x16x32_bf16 v[104:107], {v(vI,4)}, {v(208+16*k+4*i,4)}, ' + (v(vC0,4) if i == 0 else 'v[104:107]'))
            self.maxchain(12, range(208+16*k,224+16*k))
            e('v_cmp_eq_u32 vcc, -1, v12')
        self.ppoll('L_R_P2', self.o.get('nh4',2), 4, r4l, r4c, vregs=(48,49,50,51))
        self.stamp('R.h4')
        for r in range(4): e(f'v_add_f32_dpp v{104+r}, v{104+r}, v{104+r} row_ror:8 {DPP}')
        e(f'ds_write_b128 v52, v[104:107]\ns_waitcnt lgkmcnt(0)\ns_barrier')
        e(f's_cmp_lg_u32 s{sW}, 0\ns_cbranch_scc1 L_END')
        self.red_final(RED, 128, 54, False)
        e(f'buffer_store_dwordx2 v[128:129], v53, {srd(rA)}, s{sB} offen {self.o.get("outflag","sc1")}')
        e(f's_cmp_lg_u32 s{sK}, 0\ns_cbranch_scc1 L_END2')
        e(f'buffer_store_dword v45, v55, {srd(rWS)}, 0 offen offset:{EPOCH} sc1')
        if self.o.get('ampskew'):
            a_, b_ = self.o['ampskew']
            e(f's_load_dwordx8 s[8:15], s[{pDBG}:{pDBG+1}], 128 glc\ns_waitcnt lgkmcnt(0)\ns_sub_u32 s60, s{8+a_}, s{8+b_}\ns_lshl_b32 s60, s60, 4\ns_add_u32 s60, s60, 4000\ns_add_u32 s60, s60, s{sSTAMP}')
            e('L_AMPS:\ns_memrealtime s[62:63]\ns_waitcnt lgkmcnt(0)\ns_sub_u32 s61, s62, s60\ns_cmp_lt_i32 s61, 0\ns_cbranch_scc1 L_AMPS')
        if 'amp' in self.o:
            self.stamp('R.end')
            k = self.idx[self.o['amp']]; ke = self.idx['R.end']
            e(f's_waitcnt lgkmcnt(0)\ns_sub_u32 s60, s{sSTAMP+2*k}, s{sSTAMP}\ns_lshl_b32 s60, s60, 2\ns_add_u32 s60, s60, s{sSTAMP+2*ke}')
            e('L_AMP:\ns_memrealtime s[62:63]\ns_waitcnt lgkmcnt(0)\ns_sub_u32 s61, s62, s60\ns_cmp_lt_i32 s61, 0\ns_cbranch_scc1 L_AMP')
        e('L_END2:')
        if 'amp' not in self.o: self.stamp('R.end')
        e('s_branch L_END')

    def role_T(self):
        e = self.e
        MX = QB; LX = QB+512; PB = QB+1024
        WO = 0; HB = 65536; EX = 11264
        sT, s0, s1, s2_ = 72, 63, 64, 65
        e(';SEG T1\nL_T:\ns_waitcnt vmcnt(5)')
        if self.o.get('noT'): e('s_branch L_END')
        e(f"""
        s_lshl_b32 s{sT}, s{sX8}, 4
        s_add_u32 s{sT}, s{sT}, s{sR}
        """)
        e(f"""
        s_lshl_b32 s{s0}, s{sT}, 9
        s_add_u32 s{s0}, s{s0}, {QP+LOC}
        s_and_b32 s{s1}, s{sT}, 0x60
        s_add_u32 s{s1}, s{s1}, s{sT}
        s_lshl_b32 s{s1}, s{s1}, 8
        s_add_u32 s{s1}, s{s1}, {QLB+LOC}
        s_cmp_eq_u32 s{sW}, 2
        s_cselect_b32 s{s0}, s{s1}, s{s0}
        s_lshl_b32 s{s1}, s{sX8}, 9
        s_add_u32 s{s1}, s{s1}, {QCS+LOC}
        s_cmp_eq_u32 s{sW}, 3
        s_cselect_b32 s{s0}, s{s1}, s{s0}
        s_cmp_eq_u32 s{sW}, 0
        s_cselect_b32 s66, {WSSZ}, s{s0}
        v_lshlrev_b32 v12, 7, v0
        v_cmp_gt_u32 vcc, 4, v0
        v_cndmask_b32 v12, v9, v12, vcc
        """)
        e(f's_lshl_b32 s62, s{sW}, 13\ns_add_u32 s62, s62, {QB}')
        self.ws_srd()
        e(f'buffer_load_dword v255, v12, {srd(rWS)}, s66 offen')
        e(f"""
        s_sub_u32 s24, s{sR}, 11
        s_cmp_eq_u32 s{sW}, 3
        s_cselect_b32 s24, s24, -1
        s_cmp_ge_u32 s24, 3
        s_cbranch_scc1 L_T_NOV1
        s_lshl3_add_u32 s27, s24, s{sX8}
        s_lshl_b32 s27, s27, 2
        s_lshl_b32 s25, s24, 21
        s_mul_i32 s26, s{sX8}, 896
        s_add_u32 s25, s25, s26
        s_add_u32 s25, s25, {PROBE}
        s_add_u32 s26, s25, 8192
        s_load_dword s28, s[{pWS}:{pWS+1}], s25 glc
        s_load_dword s28, s[{pWS}:{pWS+1}], s26 glc
        L_T_NOV1:
        """)
        nuk = self.o.get('t_wuk', 0)
        if nuk:
            self.wuk_setup(sR, rA)
            e(f's_mov_b32 s68, {(8-nuk)*32768}')
            for k in range(8-nuk, 8): self.wuk_dma(k, rA, QB)
        tsh, wsh, istr = self.kmap()
        self.kbase(s0, sT, tsh)
        self.mk_srd(rB, pCKV, s0, 16777216)
        e(f'v_lshl_add_u32 v52, v2, 10, v5\nv_xor_b32 v53, 0x80, v52\ns_lshl_b32 s68, s{sW}, {wsh}\ns_lshl_b32 s69, s{sW}, 13')
        stages = {0: [((0,1),(c,)) for c in range(4)], 1: [((0,),(0,1,2,3)), ((1,),(0,1,2,3))], 2: [((0,),(0,1,2,3)), ((1,),(0,1)), ((1,),(2,3))],
                  3: [((0,),(0,1)), ((0,),(2,3)), ((1,),(0,1)), ((1,),(2,3))], 4: [((0,1),(0,1)), ((0,),(2,3)), ((1,),(2,3))]}[self.o.get('sorder', 4)]
        seq = []; send = []
        brot = self.o.get('brot', 1)
        if brot == 1: e(f's_lshl1_add_u32 s{s0}, s{sW}, s{sR}\ns_and_b32 s{s0}, s{s0}, 7\ns_lshl_b32 s{s0}, s{s0}, 12\ns_or_b32 s68, s68, s{s0}')
        if brot == 2: e(f's_lshl_b32 s{s0}, s{sW}, 13\ns_or_b32 s68, s68, s{s0}')
        if brot == 3: e(f's_and_b32 s{s0}, s{sR}, 7\ns_lshl_b32 s{s0}, s{s0}, 12\ns_or_b32 s68, s68, s{s0}')
        for kts, cs_ in stages:
            seq += [(c, i) for kt in kts for i in range(4*kt, 4*kt+4) for c in cs_]; send.append(len(seq)-1)
        def dma(n):
            c, i = seq[n]
            e(f's_add_u32 m0, s69, {c*32768+i*1024}\ns_{"xor_b32" if brot else "add_u32"} s{sTMP}, s68, {self.ioff(i,istr)+c*256}')
            e(f'buffer_load_dwordx4 v{52+(i&1)}, {srd(rB)}, s{sTMP} offen nt lds')
        n0 = 0
        if self.o.get('ampskew'):
            e(f's_or_b32 s14, s{sR}, s{sW}\ns_cbranch_scc1 L_NOSK\ns_getreg_b32 s14, hwreg(HW_REG_XCC_ID, 0, 3)\ns_lshl_b32 s14, s14, 2\ns_add_u32 s14, s14, 128\ns_mov_b32 s16, s{sSTAMP}\ns_atomic_add s16, s[{pDBG}:{pDBG+1}], s14\nL_NOSK:')
        if self.o.get('cthr'): e('s_getreg_b32 s15, hwreg(HW_REG_XCC_ID, 0, 3)')
        thr = dict(self.o.get('t_throttle', []))
        vm = []
        vKa, vQa, vVa = 24, 28, 32
        vPS, vRS, vMW, vMR, vPW, vPR, vQC, vLR = 40, 41, 42, 43, 44, 45, 46, 47
        vQS = 120
        pre = []
        pre.append(f'v_and_b32 v12, 7, v1\nv_lshlrev_b32 v12, 5, v12\nv_lshlrev_b32 v13, 10, v1\nv_lshlrev_b32 v14, 8, v1\nv_add_u32 v14, s69, v14\nv_add_u32 v13, {QB}, v13')
        for s3 in range(4):
            pre.append(f'v_add_u32 v15, {s3*64}, v11\nv_xor_b32 v15, v15, v12\nv_add_u32 v{vKa+s3}, v14, v15\nv_add_u32 v{vQa+s3}, v13, v15\nv_add_u32 v{56+s3}, 0x10000, v{vKa+s3}')
        pre.append(f"""
        v_lshrrev_b32 v13, 2, v0
        v_and_b32 v15, 7, v13
        v_lshlrev_b32 v13, 8, v13
        v_and_b32 v12, 3, v1
        v_lshl_add_u32 v13, v12, 3, v13
        s_lshl_b32 s{s2_}, s{sW}, 1
        v_xor_b32 v15, s{s2_}, v15
        v_lshl_add_u32 v{vVa}, v15, 5, v13
        v_xor_b32 v15, 1, v15
        v_lshl_add_u32 v{vVa+1}, v15, 5, v13
        v_add_u32 v{vVa+2}, 0x10000, v{vVa}
        v_add_u32 v{vVa+3}, 0x10000, v{vVa+1}
        """)
        for i in range(8): pre.append(f'v_xor_b32 v{vQS+i}, {(i<<5) + (i&3)*1024}, v3')
        pre.append(f"""
        v_add_u32 v15, {EX}, v3
        s_lshl_b32 s{s0}, s{sW}, 2
        v_add_u32 v14, s{s0}, v15
        v_mov_b32 v10, v14
        v_mov_b32 v8, v15
        v_lshrrev_b32 v12, 5, v0
        v_and_b32 v13, 1, v0
        v_lshlrev_b32 v13, 1, v13
        v_lshl_add_u32 v12, v12, 2, v13
        v_bfe_u32 v13, v0, 1, 4
        v_and_b32 v14, 7, v13
        v_lshlrev_b32 v14, 3, v14
        v_lshl_add_u32 v13, v13, 6, v14
        v_lshlrev_b32 v14, 5, v12
        v_xor_b32 v13, v13, v14
        v_lshl_add_u32 v13, v12, 10, v13
        v_add_u32 v6, s62, v13
        v_xor_b32 v7, 32, v6
        s_lshl_b32 s{s2_}, s{sT}, 15
        s_lshr_b32 s{s0}, s{sW}, 1
        s_lshl_b32 s{s0}, s{s0}, 14
        s_add_u32 s{s2_}, s{s2_}, s{s0}
        s_and_b32 s{s0}, s{sW}, 1
        s_lshl_b32 s{s0}, s{s0}, 12
        s_add_u32 s{s2_}, s{s2_}, s{s0}
        s_add_u32 s{s2_}, s{s2_}, {PART}
        v_add_u32 v{vPS}, s{s2_}, v3
        s_and_b32 s75, s{sT}, 0x60
        s_add_u32 s75, s75, s{sT}
        s_lshl2_add_u32 s75, s75, s{sW}
        s_lshl_b32 s75, s75, 6
        s_add_u32 s75, s75, {CS}
        v_min_u32 v68, 92, v4
        s_lshr_b32 s{s2_}, s{sT}, 3
        s_lshl_b32 s{s2_}, s{s2_}, 3
        s_add_u32 s{s2_}, s{s2_}, s{sT}
        s_lshl2_add_u32 s{s2_}, s{s2_}, s{sW}
        s_lshl_b32 s{s2_}, s{s2_}, 8
        s_add_u32 s{s2_}, s{s2_}, {REC}
        v_and_b32 v13, 1, v1
        v_lshrrev_b32 v12, 2, v0
        v_lshl_add_u32 v12, v13, 4, v12
        v_lshlrev_b32 v12, 4, v12
        v_add_u32 v{vLR}, {MX}, v12
        v_and_b32 v12, 0xff, v12
        v_lshl_add_u32 v12, v13, 13, v12
        v_add_u32 v12, s{s2_}, v12
        v_and_b32 v13, 2, v1
        v_cmp_eq_u32 vcc, 0, v13
        v_cndmask_b32 v{vRS}, v9, v12, vcc
        v_bfe_u32 v13, v{vLR}, 6, 3
        v_cmp_eq_u32 vcc, s{sX8}, v13
        v_cndmask_b32 v4, v9, v{vRS}, vcc
        v_and_b32 v13, 3, v1
        v_cmp_eq_u32 vcc, 0, v13
        v_cndmask_b32 v5, v9, v0, vcc
        v_lshrrev_b32 v12, 1, v2
        v_lshl_add_u32 v12, v12, 4, v1
        v_lshlrev_b32 v12, 4, v12
        s_lshl_b32 s{s2_}, s{sW}, 2
        s_add_u32 s{s2_}, s{s2_}, {MX}
        v_add_u32 v{vMW}, s{s2_}, v12
        v_lshlrev_b32 v12, 4, v1
        v_add_u32 v{vMR}, {MX}, v12
        v_add_u32 v22, s{s2_}, v12
        v_mov_b32 v38, 0x3e0293ee
        s_lshl_b32 s{s2_}, s{sW}, 11
        s_add_u32 s{s2_}, s{s2_}, {PB}
        v_add_u32 v{vPW}, s{s2_}, v3
        v_add_u32 v{vPR}, {PB}, v3
        s_and_b32 s71, s{sX8}, 4
        s_add_u32 s71, s71, s{sX8}
        s_lshl_b32 s71, s71, 11
        s_add_u32 s71, s71, {H3B}
        v_mov_b32 v16, -1
        v_mov_b32 v17, -1
        v_mov_b32 v18, -1
        v_mov_b32 v19, -1
        s_and_b32 s{s0}, s{sW}, 1
        s_mul_i32 s{s0}, s{s0}, 640
        s_add_u32 s71, s71, s{s0}
        s_lshr_b32 s{s0}, s{sW}, 1
        s_lshl_b32 s{s0}, s{s0}, 13
        s_add_u32 s71, s71, s{s0}
        s_and_b32 s{s0}, s{sR}, 1
        s_lshl_b32 s{s0}, s{s0}, 20
        s_add_u32 s71, s71, s{s0}
        s_cmp_ge_u32 s{sR}, 14
        s_cselect_b32 s{s0}, 40, 0
        v_cmp_gt_u32 vcc, s{s0}, v0
        v_cndmask_b32 v20, v9, v3, vcc
        v_lshrrev_b32 v12, 3, v0
        v_lshrrev_b32 v13, 1, v12
        v_and_b32 v14, 1, v12
        v_lshl_add_u32 v13, v14, 4, v13
        v_mul_u32_u24 v13, 1280, v13
        v_and_b32 v14, 7, v0
        v_lshlrev_b32 v14, 4, v14
        v_and_b32 v12, 1, v2
        v_lshlrev_b32 v12, 5, v12
        v_xor_b32 v14, v14, v12
        v_add_u32 v36, v13, v14
        v_xor_b32 v14, 64, v14
        v_add_u32 v37, v13, v14
        s_lshl_b32 s73, s{sX8}, 2
        s_add_u32 s73, s73, s{sW}
        s_mul_i32 s73, s73, 163840
        v_mov_b32 v60, {EX+1024}
        s_mov_b32 s61, s{sR}
        s_lshl_b32 s74, s{sW}, 14
        """)
        def qloads():
            e(f'global_load_dword v69, v68, s[{pDBG}:{pDBG+1}] sc1')
            e(f'buffer_load_dwordx4 v[80:83], v{vQC}, {srd(rWS)}, 0 offen sc1')
            for i in range(8):
                e(f's_add_u32 m0, s62, {i*1024}')
                e(f'buffer_load_dwordx4 v{vQS+i}, {srd(rWS)}, s{76+(i>>2)} offen sc1 lds')
        kdone = set()
        def younger(item): return len(vm) - 1 - vm.index(item)
        def kv(st):
            e(f's_waitcnt vmcnt({younger(("d",send[st]))})')
            if st == len(stages)-1: self.stamp('T.ckv')
            kts, cs_ = stages[st]
            for c in cs_:
                for s3 in range(4):
                    for kt in kts:
                        e(f'ds_read_b128 {a(((4*c+s3)*2+kt)*4,4)}, v{(vKa if c < 2 else 56)+s3} offset:{(c&1)*32768+kt*4096}')
            kdone.add(st)
            if tk and st == len(stages)-1: e(f's_waitcnt lgkmcnt({4*len(kts)*len(cs_)})')
            e('s_barrier')
            if tk and st == len(stages)-2:
                assert tp
                e(f's_cmp_lg_u32 s{sW}, 0\ns_cbranch_scc1 L_T_NOTW\nv_mov_b32 v61, s61\nds_write_b32 v60, v61\nL_T_NOTW:')
            if tk and st == len(stages)-1: e('ds_read_b32 v61, v60')
            for c in cs_:
                for ks in range(4):
                    for T2 in range(2):
                        for q in kts:
                            e(f'ds_read_b64_tr_b16 {a(128+(ks*8+2*c+T2)*4+2*q,2)}, v{vVa+T2+2*(c>>1)} offset:{(c&1)*32768+ks*8192+q*4096}')
        tp = []
        tk = self.o.get('ticket', 0)
        def tprep():
            if tp: return
            tp.append(1)
            e('s_waitcnt lgkmcnt(0)')
            self.tags()
            e(f"""
            s_and_b32 s60, s69, 8192
            s_lshl_b32 s76, s{sW}, 14
            s_add_u32 s76, s76, {QLB}
            s_add_u32 s77, s76, 4096
            s_lshl_b32 s{s0}, s{sW}, 1
            s_cmp_eq_u32 s{s0}, s{sX8}
            s_cselect_b32 s{s1}, s{sLOC}, s60
            s_add_u32 s76, s76, s{s1}
            v_mov_b32 v12, s{s1}
            s_add_u32 s{s0}, s{s0}, 1
            s_cmp_eq_u32 s{s0}, s{sX8}
            s_cselect_b32 s{s1}, s{sLOC}, s60
            s_add_u32 s77, s77, s{s1}
            v_mov_b32 v13, s{s1}
            v_cmp_gt_u32 vcc, 32, v0
            v_cndmask_b32 v12, v13, v12, vcc
            """)
            e(f's_lshl_b32 s{s0}, s{sW}, 10\ns_add_u32 s{s0}, s{s0}, {QCS}\nv_add3_u32 v{vQC}, s{s0}, v3, v12')
            e(f's_lshl_b32 s79, s{sT}, 7\ns_add_u32 s79, s79, {GATE}\ns_cmp_eq_u32 s{sW}, 0\ns_cselect_b32 s79, s79, {OOB}\nv_mov_b32 v39, s79\nv_mov_b32 v21, s{sT1}')
        qpos = self.o.get('qpos', 32); npre = self.o.get('npre', 2)
        klag = self.o.get('klag', 12)
        for n in range(n0, 33):
            if n == npre:
                for x in pre: e(x)
            if n == npre: e(f's_load_dword s{sE}, s[{pWS}:{pWS+1}], {EPOCH}')
            if n == self.o.get('vpos', 6):
                e('s_cmp_ge_u32 s24, 3\ns_cbranch_scc1 L_T_NOV2\ns_mov_b32 s29, 0\ns_waitcnt lgkmcnt(0)\ns_memtime s[8:9]\ns_waitcnt lgkmcnt(0)')
                ns = self.o.get('nsamp', 1)
                for k in range(ns):
                    e(f's_load_dword s28, s[{pWS}:{pWS+1}], s25 glc\ns_waitcnt lgkmcnt(0)\ns_memtime s[12:13]\ns_waitcnt lgkmcnt(0)')
                    e(f's_load_dword s28, s[{pWS}:{pWS+1}], s26 glc\ns_waitcnt lgkmcnt(0)\ns_sub_u32 s30, s12, s8\ns_memtime s[8:9]\ns_waitcnt lgkmcnt(0)')
                    e(f's_sub_u32 s31, s8, s12\ns_sub_u32 s31, s31, s30\ns_max_i32 s31, s31, -{self.o.get("clip",300)}\ns_min_i32 s31, s31, {self.o.get("clip",300)}\ns_add_u32 s29, s29, s31')
                e(f's_getreg_b32 s31, hwreg(HW_REG_XCC_ID, 2, 1)\ns_sub_u32 s30, 0x1000000, s29\ns_cmp_eq_u32 s31, 0\ns_cselect_b32 s29, s29, s30\ns_add_u32 s29, s29, {BIAS}')
                e(f's_atomic_add s29, s[{pDBG}:{pDBG+1}], s27\nL_T_NOV2:')
            if tk and n == tk:
                e(f's_cmp_lg_u32 s{sW}, 0\ns_cbranch_scc1 L_T_NOTK\ns_lshl_b32 s14, s{sX8}, 4\ns_add_u32 s14, s14, 128\ns_mov_b32 s61, 1\ns_atomic_add s61, s[{pDBG}:{pDBG+1}], s14 glc\nL_T_NOTK:')
            if self.o.get('gate', 4) == 4 and n == self.o.get('gpos', 31):
                tprep(); e(f'buffer_store_dword v21, v39, {srd(rWS)}, 0 offen'); vm.append('gate')
            if n == qpos:
                tprep()
                self.stamp('T.qiss')
                if not self.o.get('noq'): qloads(); vm += [('q',i) for i in range(10)]
            if n < 32:
                dma(n); vm.append(('d',n))
                if n in thr: e(f's_waitcnt vmcnt({thr[n]})')
                for mask, lo, hi, d in self.o.get('cthr', []):
                    if lo <= n <= hi:
                        l = e.newlabel('Lc'); e(f's_bitcmp1_b32 {mask}, s15\ns_cbranch_scc0 {l}\ns_waitcnt vmcnt({d})\n{l}:')
            for c in range(len(stages)-1):
                if c not in kdone and n >= npre and ('d',send[c]) in vm and younger(('d',send[c])) >= klag and (c == 0 or c-1 in kdone): kv(c)
        self.stamp('T.issued')
        e('s_branch L_T2\n;SEG T2\nL_T2:')
        if self.o.get('gate') == 1:
            e(f'buffer_store_dword v21, v39, {srd(rWS)}, 0 offen'); vm.append('gate')
        if self.o.get('tonly'):
            e('s_waitcnt vmcnt(0)'); self.stamp('T.ckv0'); e('s_branch L_END')
        for c in range(len(stages)):
            if c not in kdone: kv(c)
        if self.o.get('gate') == 2:
            e(f'buffer_store_dword v21, v39, {srd(rWS)}, 0 offen'); vm.append('gate')
        if tk: e('s_waitcnt lgkmcnt(15)\nv_readfirstlane_b32 s12, v61\ns_min_u32 s61, s12, 15')
        e(f's_lshl_b32 s{s1}, s61, 7\ns_add_u32 s73, s73, s{s1}')
        self.mk_srd(rA, pWO, 73, 5242880)
        e(f's_cmp_lt_u32 s61, 10\ns_cselect_b32 s{rA+2}, s{rA+2}, 0')
        e('s_branch L_T_Q1')
        e(';SEG TQ\nL_T_Q0:')
        self.fb((vQC,), (76, 77))
        qloads()
        e('s_branch L_T_Q1')
        e('L_T_Q2:\ns_mov_b64 s[12:13], vcc')
        self.fb((vQC,), (76, 77))
        if self.o.get('qsleep'): e(f's_sleep {self.o["qsleep"]}')
        e(f'buffer_load_dwordx4 v[80:83], v{vQC}, {srd(rWS)}, 0 offen sc1')
        for hf in range(2):
            e(f's_cmp_eq_u32 s{12+hf}, 0\ns_cbranch_scc1 L_T_Q2{hf}')
            for i in range(4*hf, 4*hf+4):
                e(f's_add_u32 m0, s62, {i*1024}')
                e(f'buffer_load_dwordx4 v{vQS+i}, {srd(rWS)}, s{76+hf} offen sc1 lds')
            e(f'L_T_Q2{hf}:')
        e('s_branch L_T_Q3')
        e(';SEG T2b\nL_T_Q1:')
        e(f's_waitcnt vmcnt({9 if qpos == 32 else 0})')
        for x in self.pol_ops(69, 8): e(x)
        e(f"""
        s_cbranch_vccnz L_T_Q0
        v_bfe_u32 v12, s11, v2, 1
        v_lshlrev_b32 v12, 13, v12
        v_xor_b32 v13, s9, v12
        v_xor_b32 v26, v13, v5
        v_xor_b32 v27, 0x2000, v26
        s_cmp_lt_u32 s{sX8}, 4
        s_cselect_b32 s9, s9, s10
        v_xor_b32 v13, s9, v12
        v_xor_b32 v24, v13, v{vPS}
        v_xor_b32 v25, 0x2000, v24
        v_xor_b32 v12, s8, v12
        v_xor_b32 v15, v12, v{vRS}
        v_xor_b32 v32, v12, v4
        """)
        if self.o.get('qnear', 1):
            e(f"""
            s_getreg_b32 s12, hwreg(HW_REG_XCC_ID, 2, 1)
            s_lshl_b32 s12, s12, 13
            s_xor_b32 s12, s12, s8
            s_and_b32 s13, s76, s{sLOC}
            s_cselect_b32 s13, 0, s12
            s_andn2_b32 s76, s76, 0x2000
            s_or_b32 s76, s76, s13
            v_mov_b32 v12, s13
            s_and_b32 s13, s77, s{sLOC}
            s_cselect_b32 s13, 0, s12
            s_andn2_b32 s77, s77, 0x2000
            s_or_b32 s77, s77, s13
            v_mov_b32 v13, s13
            v_cmp_gt_u32 vcc, 32, v0
            v_cndmask_b32 v12, v13, v12, vcc
            v_and_b32 v{vQC}, 0xffffdfff, v{vQC}
            v_or_b32 v{vQC}, v{vQC}, v12
            """)
        e('L_T_Q3:')
        e(f's_waitcnt vmcnt(0)\nds_read_b32 v12, v6\nds_read_b32 v13, v7 offset:1024')
        e(f'v_add_u32 v14, v80, v82\nv_sub_u32 v14, 0, v14\nds_write_b32 v10, v14\nv_xor_b32 v81, s{sT0}, v81\nv_xor_b32 v83, s{sT0}, v83\ns_waitcnt lgkmcnt(0)')
        e('v_xor_b32 v12, v12, v81\nv_xor_b32 v13, v13, v83\nv_or_b32 v12, v12, v13\nv_cmp_ne_u32 vcc, 0, v12\ns_cbranch_vccnz L_T_Q2')
        self.stamp('T.qin')
        if self.o.get('gate') == 3:
            e(f'buffer_store_dword v21, v39, {srd(rWS)}, 0 offen'); vm.append('gate')
        e('s_barrier')
        self.stamp('T.Qbar')
        def wo_ops(i): return [f's_add_u32 m0, s74, {WO+i*1024}', f's_mov_b32 s{sTMP}, {(32*(i>>2)+4*(i&3))*1280}', f'buffer_load_dwordx4 v{36+(i&1)}, {srd(rA)}, s{sTMP} offen {self.o.get("woflag","nt")} lds']
        nwe = self.o.get('wo_early', 8)
        vS = 48; vP = 76; vPF = 88; vAcc = 128; vO = 192
        def qreg(s, ht): return 128 + ht*64 + s*4
        def qread(s, ht): return f'ds_read_b128 {v(qreg(s,ht),4)}, v{vQa+(s&3)} offset:{(s>>2)*256+ht*16384}'
        def qk(s, kt, ht):
            d = v(vS+(kt*2+ht)*4,4)
            return f'v_mfma_f32_16x16x32_bf16 {d}, {a((s*2+kt)*4,4)}, {v(qreg(s,ht),4)}, ' + ('0' if s == 0 else d)
        def pv(ks, T, ht):
            d = v(vAcc+(ht*8+T)*4,4)
            return f'v_mfma_f32_16x16x32_bf16 {d}, {v(vPF+(ks*2+ht)*4,4)}, {a(128+(ks*8+T)*4,4)}, ' + ('0' if ks == 0 else d)
        def ver(s, ht): return f'v_add3_u32 v23, v23, v{qreg(s,ht)}, v{qreg(s,ht)+2}'
        def cost(x): return 2 if x.startswith('v_exp') else (0 if x.startswith('s_') else 1)
        def stream(mf, toks, bg):
            skip = 0
            for m in mf:
                e(m)
                b = self.o.get('slots', 2)
                if skip: skip -= 1
                else:
                    while toks:
                        t = toks[0]
                        if isinstance(t, tuple): skip = t[1]; toks.pop(0); break
                        if cost(t) > b: break
                        e(t); b -= cost(t); toks.pop(0)
                while bg and cost(bg[0]) <= b:
                    b -= cost(bg[0]); e(bg.pop(0))
            return toks
        def flush(toks):
            for t in toks:
                if not isinstance(t, tuple): e(t)
        D = self.o.get('qD', 4)
        for s in range(D): e(qread(s,0))
        e(f'v_mov_b32 v23, 0\nbuffer_store_dwordx4 v[16:19], v20, {srd(rWS)}, s71 offen sc1')
        rd = [(s,0) for s in range(D,16)] + [(s,1) for s in range(16)]
        issued = D
        wo = [wo_ops(i) for i in range(nwe)]
        for s in range(16):
            e(f's_waitcnt lgkmcnt({min(15, issued-1-s)})')
            if s == 15: e('s_barrier')
            for kt in range(2):
                e(qk(s,kt,0))
                if rd: e(qread(*rd.pop(0))); issued += 1
                if kt == 0:
                    if not self.o.get('nover'): e(ver(s,0))
                elif wo: flush(wo.pop(0))
                if s == 14 and kt == 1: e('ds_read_b128 v[80:83], v8')
        self.stamp('T.QK0')
        def sm(ht):
            r0 = vS+ht*4; r1 = vS+8+ht*4; m = 64; t = 65; M = 66+ht; rb = 72
            a_ = [f'v_max3_f32 v{m}, v{r0}, v{r0+1}, v{r0+2}', f'v_max3_f32 v{t}, v{r1}, v{r1+1}, v{r1+2}', f'v_max3_f32 v{m}, v{m}, v{r0+3}, v{r1+3}', f'v_max_f32 v{m}, v{m}, v{t}',
                  f'v_mov_b32 v{t}, v{m}', ('gap',0), f'v_permlane32_swap_b32 v{m}, v{t}', f'v_max_f32 v{m}, v{m}, v{t}', f'v_mov_b32 v{t}, v{m}', ('gap',0),
                  f'v_permlane16_swap_b32 v{m}, v{t}', f'v_max_f32 v{m}, v{m}, v{t}', f'ds_write_b32 v22, v{m} offset:{ht*256}']
            b_ = ['s_waitcnt lgkmcnt(0)', 's_barrier', f'ds_read_b128 {v(rb,4)}, v{vMR} offset:{ht*256}']
            c_ = ['s_waitcnt lgkmcnt(0)', f'v_max3_f32 v{M}, v{rb}, v{rb+1}, v{rb+2}', f'v_max_f32 v{M}, v{M}, v{rb+3}', f'v_mul_f32 v{M}, v38, v{M}']
            for b in (r0, r1):
                for r in range(4): c_.append(f'v_fma_f32 v{b+r}, v{b+r}, v38, -v{M}')
            for b in (r0, r1):
                for r in range(4): c_.append(f'v_exp_f32 v{b+r}, v{b+r}')
            for k,b in enumerate((r0, r1)):
                c_ += [f'v_cvt_pk_bf16_f32 v{vP+ht*4+k*2}, v{b}, v{b+1}', f'v_cvt_pk_bf16_f32 v{vP+ht*4+k*2+1}, v{b+2}, v{b+3}']
            c_.append(f'ds_write_b128 v{vPW}, {v(vP+ht*4,4)} offset:{ht*1024}')
            d_ = ['s_waitcnt lgkmcnt(0)', 's_barrier'] + [f'ds_read_b128 {v(vPF+(ks*2+ht)*4,4)}, v{vPR} offset:{(ks*2+ht)*1024}' for ks in range(4)]
            return a_, b_, c_, d_
        g1 = self.o.get('g1', 2); g2 = self.o.get('g2', 2)
        a0,b0,c0,d0 = sm(0); a1_,b1,c1,d1 = sm(1)
        e('s_waitcnt lgkmcnt(0)')
        mf = [qk(s,kt,1) for s in range(16) for kt in range(2)]
        bg = [ver(s,1) for s in range(16)] + ['v_add3_u32 v23, v23, v80, v81', 'v_add3_u32 v23, v23, v82, v83']
        if self.o.get('nover'): bg = []
        left = stream(mf, [('gap',1)] + a0 + [('gap',g1)] + b0 + [('gap',g2)] + c0, bg)
        flush(left)
        self.stamp('T.QK')
        flush(bg)
        A = [x for x in a1_ if not isinstance(x, tuple)]
        R = [f'v_add_u32_dpp v23, v23, v23 {p} {DPP}' for p in ['quad_perm:[1,0,3,2]','quad_perm:[2,3,0,1]','row_half_mirror','row_mirror']]
        R += ['v_mov_b32 v69, v23', 'v_permlane16_swap_b32 v23, v69', 'v_add_u32 v23, v23, v69', 'v_mov_b32 v69, v23', 'v_permlane32_swap_b32 v23, v69', 'v_add_u32 v23, v23, v69', 'v_cmp_ne_u32 vcc, 0, v23']
        flush([R[0], R[1], A[0], A[1], R[2], A[2], A[3], R[3], A[4], R[4], 's_nop 0', A[5], R[5], A[6], R[6], A[7], R[7], 's_nop 0', A[8], A[9], A[10], R[8], R[9], R[10]])
        flush(d0[:2]); e('s_cbranch_vccnz L_T_Q0'); flush(d0[2:] + b1[2:])
        self.stamp('T.Pbar')
        def lsum(ht, dst):
            r0 = vS+ht*4; r1 = vS+8+ht*4
            return [f'v_add_f32 v{r0}, v{r0}, v{r0+1}', f'v_add_f32 v{r0+2}, v{r0+2}, v{r0+3}', f'v_add_f32 v{r1}, v{r1}, v{r1+1}', f'v_add_f32 v{r1+2}, v{r1+2}, v{r1+3}',
                    f'v_add_f32 v{r0}, v{r0}, v{r0+2}', f'v_add_f32 v{r1}, v{r1}, v{r1+2}', f'v_add_f32 v{dst}, v{r0}, v{r1}']
        n3 = self.o.get('wo3', 0); n4 = self.o.get('wo4', 0)
        flush(lsum(0, 70))
        e('s_waitcnt lgkmcnt(4)')
        mf = [pv(ks,T,0) for ks in range(4) for T in range(8)]
        lt = ['v_permlane32_swap_b32 v70, v71','v_add_f32 v70, v70, v71','v_mov_b32 v71, v70', f'ds_read_b128 v[76:79], v{vLR}', 'v_permlane16_swap_b32 v70, v71','v_add_f32 v70, v70, v71',
              f'ds_write_b32 v{vMW}, v70 offset:512']
        left = stream(mf, [('gap',0)] + c1 + lsum(1, 71) + [('gap',0)] + lt + [('gap',self.o.get('g3',1))] + d1 + [f'ds_read_b128 v[72:75], v{vLR} offset:512'] + sum([wo_ops(i) for i in range(nwe, nwe+n3)], []), [])
        flush(left)
        nwe += n3
        self.stamp('T.pv4')
        def outops(ht):
            ops = []
            for r in range(4):
                o = vO + (ht*4+r)*4
                for k in range(4):
                    ops.append(f'v_cvt_pk_bf16_f32 v{o+k}, v{vAcc+(ht*8+2*k)*4+r}, v{vAcc+(ht*8+2*k+1)*4+r}')
                ops.append(f'buffer_store_dwordx4 {v(o,4)}, v{24+ht}, {srd(rWS)}, 0 offen offset:{r*1024} sc1')
            return ops
        e('s_waitcnt lgkmcnt(0)')
        mf = [pv(ks,T,1) for ks in range(4) for T in range(8)]
        cs = self.o.get('cs', 1)
        def csum(ht):
            c = 48 + 4*ht; y = 56 + 2*ht; z = 60 + ht
            ops = []
            for r in range(4):
                o = vO + (ht*4+r)*4
                ops.append([f'v_add3_u32 v{c+r}, v{o}, v{o+1}, v{o+2}', f'v_add_u32 v{c+r}, v{c+r}, v{o+3}'])
            red = [f'v_add_u32_dpp v{y}, v{c}, v{c} row_ror:8 row_mask:0xf bank_mask:0x3', f'v_add_u32_dpp v{y+1}, v{c+1}, v{c+1} row_ror:8 row_mask:0xf bank_mask:0x3',
                   f'v_add_u32_dpp v{y}, v{c+2}, v{c+2} row_ror:8 row_mask:0xf bank_mask:0xc', f'v_add_u32_dpp v{y+1}, v{c+3}, v{c+3} row_ror:8 row_mask:0xf bank_mask:0xc',
                   f'v_add_u32_dpp v{z}, v{y}, v{y} row_shl:4 row_mask:0xf bank_mask:0x5', f'v_add_u32_dpp v{z}, v{y+1}, v{y+1} row_shr:4 row_mask:0xf bank_mask:0xa',
                   f'v_add_u32_dpp v{z}, v{z}, v{z} quad_perm:[1,0,3,2] {DPP}', f'v_add_u32_dpp v{z}, v{z}, v{z} quad_perm:[2,3,0,1] {DPP}']
            return ops, red
        def out_cs(ht):
            if not cs: return outops(ht)
            o = outops(ht); l, red = csum(ht); res = []
            for r in range(4): res += o[5*r:5*r+5] + l[r]
            return res + red + [f'v_sub_u32 v{60+ht}, s{sT0}, v{60+ht}', f'buffer_store_dword v{60+ht}, v{26+ht}, {srd(rWS)}, s75 offen sc1']
        recv = ['v_max3_f32 v84, v76, v77, v78', 'v_max_f32 v84, v84, v79', 'v_mul_f32 v84, v38, v84', f'v_mov_b32 v86, s{sT0}', f'v_mov_b32 v87, s{sT1}',
                'v_add_f32 v72, v72, v73', 'v_add_f32 v74, v74, v75', 'v_add_f32 v85, v72, v74']
        o0 = out_cs(0)
        rl = self.o.get('recloc', 2)
        rp = self.o.get('recpos', 4)
        def recst(nst): return self.stamptok('T.recw') + [f's_waitcnt vmcnt({nwe+nst})', f'buffer_store_dwordx4 v[84:87], v15, {srd(rWS)}, 0 offen sc1', ] + ([f'buffer_store_dwordx4 v[84:87], v32, {srd(rWS)}, s{sLOC} offen'] if rl and not self.o.get('loclate') else []) + self.stamptok('T.recst')
        assert rp <= 4
        o0 = recv[:4] + o0[:7*rp] + recv[4:] + recst(rp) + o0[7*rp:]
        left = stream(mf, o0 + sum([wo_ops(i) for i in range(nwe, nwe+n4)], []), [])
        flush(left)
        nwe += n4
        self.stamp('T.pv8')
        o1 = out_cs(1)
        flush(o1)
        if rl and self.o.get('loclate'): e(f'buffer_store_dwordx4 v[84:87], v32, {srd(rWS)}, s{sLOC} offen')
        self.stamp('T.PVst')
        self.stamp('T.rec')
        if self.o.get('wb') == 2: e(f's_lshl_b32 s{s0}, s{sW}, 4\ns_or_b32 s{s0}, s{s0}, s{sR}\ns_cmp_lg_u32 s{s0}, 15\ns_cbranch_scc1 L_NOWB\nbuffer_wbl2 sc1\nL_NOWB:')
        e('s_branch L_T3\n;SEG T3\nL_T3:')
        if self.o.get('thelp', 0):
            first = (nwe>>2)*32*1280
            e(f's_cmp_lt_u32 s61, 10\ns_cbranch_scc1 L_T_C2\ns_lshl2_add_u32 s{s0}, s{sX8}, s{sW}\ns_mul_i32 s{s0}, s{s0}, 163840\ns_add_u32 s{s0}, s{s0}, {first}')
            self.mk_srd(rA, pWO, s0, 5242880)
            e(f's_mov_b32 s{rA+2}, {163840-first}\ns_sub_u32 s{s0}, s61, 10\ns_lshl_b32 s{s0}, s{s0}, 10\ns_mov_b32 m0, s74')
            for k in range(((163840-first)//1024+5)//6):
                e(f'buffer_load_dwordx4 v3, {srd(rA)}, s{s0} offen lds\ns_add_u32 s{s0}, s{s0}, 6144')
            e('s_waitcnt vmcnt(0)\ns_branch L_END\nL_T_C2:')
        else: e(f's_cmp_ge_u32 s61, 10\ns_cbranch_scc1 L_END')
        if self.o.get('wowait'): e('s_waitcnt vmcnt(0)')
        for i in range(nwe, 16): flush(wo_ops(i))
        e(f"""
        v_lshrrev_b32 v12, 2, v1
        v_lshl_add_u32 v12, v2, 3, v12
        v_lshlrev_b32 v12, 7, v12
        v_and_b32 v13, 3, v1
        v_lshl_add_u32 v12, v13, 3, v12
        v_lshrrev_b32 v14, 3, v1
        v_and_b32 v15, 1, v2
        v_lshl_or_b32 v14, v15, 1, v14
        v_xor_b32 v14, s{sW}, v14
        v_lshl_add_u32 v24, v14, 5, v12
        v_mul_u32_u24 v13, 320, v13
        v_add_u32 v13, v13, v11
        v_add_u32 v25, {HB}, v13
        v_mul_u32_u24 v12, 320, v2
        v_lshl_add_u32 v12, v1, 3, v12
        s_mul_i32 s{s0}, s{sW}, 1280
        s_add_u32 s{s0}, s{s0}, {HB}
        v_add_u32 v26, s{s0}, v12
        v_lshlrev_b32 v12, 4, v1
        v_lshl_add_u32 v27, v2, 11, v12
        s_lshl4_add_u32 s75, s{sX8}, s{sW}
        s_lshl_b32 s75, s75, 9
        s_add_u32 s75, s75, {HCB+LOC}
        s_and_b32 s75, s75, s{sLM}
        s_and_b32 s{s0}, s{sX8}, 4
        s_add_u32 s{s0}, s{s0}, s{sX8}
        s_lshl_b32 s{s0}, s{s0}, 11
        s_lshl_b32 s{s1}, s61, 7
        s_add_u32 s{s0}, s{s0}, s{s1}
        s_lshl_b32 s{s1}, s{sW}, 5
        s_add_u32 s{s0}, s{s0}, s{s1}
        s_add_u32 s{s0}, s{s0}, {H3B}
        v_lshlrev_b32 v12, 1, v1
        v_lshl_add_u32 v12, v2, 13, v12
        v_add_u32 v12, s{s0}, v12
        v_cmp_gt_u32 vcc, 32, v0
        v_cndmask_b32 v28, v9, v12, vcc
        v_cmp_gt_u32 vcc, 16, v0
        v_cndmask_b32 v29, v9, v12, vcc
        s_waitcnt vmcnt(0)
        s_barrier
        """)
        self.stamp('C.land')
        def hcl(k):
            b = 64+8*k
            e(f'buffer_load_dwordx4 {v(b,4)}, v27, {srd(rWS)}, s75 offen sc1\nbuffer_load_dwordx4 {v(b+4,4)}, v27, {srd(rWS)}, s75 offen offset:256 sc1')
        def hcc(k):
            b = 64+8*k
            e(f'ds_write2_b32 v26, v{b}, v{b+2} offset0:0 offset1:1\nds_write2_b32 v26, v{b+4}, v{b+6} offset0:32 offset1:33')
            e(f'v_and_b32 v12, v{b+1}, v{b+3}\nv_or_b32 v13, v{b+1}, v{b+3}\nv_bitop3_b32 v12, v12, v{b+5}, v{b+7} bitop3:0x80\nv_or3_b32 v13, v13, v{b+5}, v{b+7}')
            e(f'v_cmp_ne_u64 vcc, s[76:77], v[12:13]')
        e(f's_mov_b32 s76, s{sT0}\ns_mov_b32 s77, s{sT0}')
        nhc = self.o.get('nhc',3)
        for st_ in range(16):
            if st_ % 5 == 0 and st_//5 < nhc: hcl(st_//5)
            for q in range(2): e(f'ds_read_b64_tr_b16 {a(st_*4+2*q,2)}, v24 offset:{WO+st_*4096+q*512}')
        self.ppoll('L_C_HC', nhc, 2, hcl, hcc, sregs=(75,), pre_issued=nhc)
        self.stamp('C.hcin')
        e('s_waitcnt lgkmcnt(0)\ns_barrier')
        self.stamp('C.bar')
        NP = 8
        def ar(st_): return f'ds_read_b128 {v(128+4*st_,4)}, v25 offset:{(st_>>2)*1280+(st_&3)*64}'
        for st_ in range(NP): e(ar(st_))
        for st_ in range(16):
            e(f's_waitcnt lgkmcnt({min(NP-1, 15-st_)})')
            e(f'v_mfma_f32_16x16x32_bf16 v[104:107], {v(128+4*st_,4)}, {a(st_*4,4)}, ' + ('0' if st_ == 0 else 'v[104:107]'))
            if st_+NP < 16: e(ar(st_+NP))
        e('v_pk_add_f32 v[104:105], v[104:105], v[106:107]\nv_add_f32 v104, v104, v105\nv_cvt_pk_bf16_f32 v104, v104, v104\nv_min_u32 v104, -2, v104')
        e(f'buffer_store_short v104, v28, {srd(rWS)}, 0 offen sc1')
        e(f'buffer_store_short v104, v29, {srd(rWS)}, s{sLOC} offen')
        self.stamp('C.h3')
        if self.o.get('wb') == 1: e(f's_or_b32 s{s0}, s{sR}, s{sW}\ns_cbranch_scc1 L_END\nbuffer_wbl2 sc1')

    def epilogue(self):
        e = self.e
        e('s_branch L_END\n;SEG END\nL_END:')
        if 'amp2' in self.o:
            k = self.idx[self.o['amp2']]
            e(f's_waitcnt lgkmcnt(0)\ns_cmp_eq_u32 s{sSTAMP+2*k}, 0\ns_cbranch_scc1 L_EXIT')
            if 'ampwg' in self.o: e(f's_cmp_lg_u32 s2, {self.o["ampwg"]}\ns_cbranch_scc1 L_EXIT')
            e(f's_sub_u32 s60, s{sSTAMP+2*k}, s{sSTAMP}\ns_lshl_b32 s60, s60, 3\ns_add_u32 s60, s60, s{sSTAMP}\ns_add_u32 s60, s60, 2000')
            e('L_AMP2:\ns_sleep 4\ns_memrealtime s[62:63]\ns_waitcnt lgkmcnt(0)\ns_sub_u32 s61, s62, s60\ns_cmp_lt_i32 s61, 0\ns_cbranch_scc1 L_AMP2')
        if self.stamps and 'amp' not in self.o and 'amp2' not in self.o and 'ampskew' not in self.o:
            self.mk_srd(rWS, pWS, None, WSSZ)
            e(f's_waitcnt lgkmcnt(0)\ns_lshl_b32 s60, s2, 2\ns_add_u32 s60, s60, s{sW}\ns_lshl_b32 s60, s60, 6\ns_add_u32 s60, s60, {STAMP}\nv_mov_b32 v4, 0')
            for k in range(11): e(f'v_mov_b32 v5, s{sSTAMP+2*k}\nbuffer_store_dword v5, v4, {srd(rWS)}, s60 offen offset:{4*k}')
            e(f'v_mov_b32 v5, s{sTO}\nbuffer_store_dword v5, v4, {srd(rWS)}, s60 offen offset:44\nv_mov_b32 v5, s7\nbuffer_store_dword v5, v4, {srd(rWS)}, s60 offen offset:48')
        e('L_EXIT:')

    def layout(self):
        segs = {}; cur = 'A1'; segs[cur] = []
        for l in self.e.lines:
            if l.strip().startswith(';SEG '): cur = l.split()[1]; segs[cur] = []
            else: segs[cur].append(l)
        segs['END'].append('s_endpgm')
        out = []
        for x in self.o.get('layout', ['A1','END','|','T1','TQ','A2','T3','|','A3','|','T2','T2b','|','FIN']):
            if x == '|':
                if self.o.get('align',1): out.append('.p2align 12')
            else: out += segs[x]
        out.append('L_CODE_END:')
        return '\n'.join(out)
    def build(self):
        if self.stamps:
            for k in range(1,11): self.e(f's_mov_b32 s{sSTAMP+2*k}, 0')
            self.e('s_mov_b32 s7, 0')
        self.prologue(); self.role_A(); self.role_T(); self.epilogue()
        hdr = open('header.txt').read()
        if self.o.get('noloc'):
            self.e.lines = [l.replace(f', s{sLOC} offen', ', 0 offen sc1') if 'buffer_store' in l else l.replace(f's_mov_b32 s{sLM}, -1', f's_mov_b32 s{sLM}, {(~LOC)&0xffffffff}') for l in self.e.lines]
        return f'''{hdr}; @launch grid=(256,1,1) block=(256,1,1) lds=163840
.amdgcn_target "amdgcn-amd-amdhsa--gfx950"
.text
.globl {KN}
{'.p2align 12' if self.o.get('align',1) else ''}
.p2align 8
.type {KN},@function
{KN}:
{self.layout()}
.section .rodata,"a"
.p2align 6
.amdhsa_kernel {KN}
  .amdhsa_next_free_vgpr 512
  .amdhsa_next_free_sgpr 102
  .amdhsa_accum_offset 256
  .amdhsa_group_segment_fixed_size 0
  .amdhsa_kernarg_size 112
  .amdhsa_user_sgpr_count 2
  .amdhsa_user_sgpr_kernarg_segment_ptr 1
  .amdhsa_system_sgpr_workgroup_id_x 1
.end_amdhsa_kernel
'''

if __name__ == '__main__':
    import json
    out = sys.argv[1]; stamps = len(sys.argv) > 2 and sys.argv[2] == '1'
    opt = json.loads(sys.argv[3]) if len(sys.argv) > 3 else {}
    open(out,'w').write(G(stamps, opt).build())
```

```python
import sys
sys.path.insert(0,'work')
from dsl import Asm
NAME = 'sequential_preLN__compressed_kv_cla__dense_activation_squared_relu__decode'
KN = NAME + '_kernel'

EPOCH=0; GATE=0x2000; QP=0x8000; HCB=0x18000; QLB=0x28000; QCS=0x38000; CS=0x600000; REC=0x40000; HS=0x80000; H3B=HS+27*16384
PROBE=0xf8000; LOC=0x100000; PART=0x200000; STAMP=0x680000; BIAS=0x10000
WSSZ=0x700000
OOB=0x7ffffff0
NLOC=96
sLM,sLC,sLOC,sTMP = 3,4,5,6
pX,pCKV,pWQ,pWUK,pWUV,pWO,pBX,pW1,pB1,pW2,pB2,pOUT,pDBG,pWS = [8+2*i for i in range(14)]
sW,sX8,sR,sE,sT0,sT1,sTO,sP = 36,37,38,39,40,41,42,43
rWS=44; rA=48; rB=52; rC=56
sSTAMP=80
def srd(r): return f's[{r}:{r+3}]'
def v(n,c=1): return f'v{n}' if c==1 else f'v[{n}:{n+c-1}]'
def a(n,c=1): return f'a{n}' if c==1 else f'a[{n}:{n+c-1}]'
DPP='row_mask:0xf bank_mask:0xf'
QB = 131072
WQ = 69632; XN = 110592

class G:
    def __init__(self, stamps=False, opt=None):
        self.e = Asm(); self.stamps = stamps; self.o = opt or {}
        self.slots = {'A':['start'],'T':['start'],'R':[]}; self.idx = {}; self.tbase = 1
    def stamp(self, name):
        if not self.stamps: return
        role = name.split('.')[0]
        lst = self.slots['A' if role in 'AFR' else 'T']
        want = self.o.get('want')
        if name == 'start': k = 0
        else:
            if want is not None and name not in want: return
            if role == 'R':
                k = self.tbase + len(self.slots['R']); self.slots['R'].append(name)
            else:
                k = len(lst); lst.append(name)
                if role == 'A': self.tbase = len(lst)
            if k > 10: raise Exception('too many stamps '+name)
        self.idx[name] = k
        op = 's_memtime' if self.o.get('cyc') else 's_memrealtime'
        self.e(f'{op} s[{sSTAMP+2*k}:{sSTAMP+2*k+1}]')
        if name in self.o.get('cut', []): self.e('s_branch L_END')
    def stamptok(self, name):
        n = len(self.e.lines); self.stamp(name)
        t = [x.strip() for x in self.e.lines[n:]]
        del self.e.lines[n:]
        if t: self.e.hist.pop()
        return t
    def mk_srd(self, r, ptr, off_sgpr, size):
        e = self.e
        if off_sgpr is None:
            e(f's_mov_b32 s{r}, s{ptr}\ns_and_b32 s{r+1}, s{ptr+1}, 0xffff\ns_mov_b32 s{r+2}, {size}')
        else:
            e(f's_add_u32 s{r}, s{ptr}, s{off_sgpr}\ns_addc_u32 s{r+1}, s{ptr+1}, 0\ns_and_b32 s{r+1}, s{r+1}, 0xffff\ns_sub_u32 s{r+2}, {size}, s{off_sgpr}')
        e(f's_mov_b32 s{r+3}, 0x20000')
    def allred(self, op, x, t, steps16=4):
        e = self.e
        pats = ['quad_perm:[1,0,3,2]','quad_perm:[2,3,0,1]','row_half_mirror','row_mirror'][:steps16]
        for p in pats: e(f'{op}_dpp v{x}, v{x}, v{x} {p} {DPP}')
        e(f'v_mov_b32 v{t}, v{x}\nv_permlane16_swap_b32 v{x}, v{t}\n{op} v{x}, v{x}, v{t}')
        e(f'v_mov_b32 v{t}, v{x}\nv_permlane32_swap_b32 v{x}, v{t}\n{op} v{x}, v{x}, v{t}')
    def timeout(self):
        self.e(f's_sub_u32 s{sTO}, s{sTO}, 1\ns_cmp_eq_u32 s{sTO}, 0\ns_cbranch_scc1 L_END')
    def fb(self, vregs=(), sregs=()):
        e = self.e
        self.timeout()
        e(f's_add_u32 s{sLC}, s{sLC}, 1\ns_cmp_ge_u32 s{sLC}, {NLOC}\ns_cselect_b32 s{sLM}, {(~LOC)&0xffffffff}, s{sLM}')
        self.lmask(vregs, sregs)
    def lmask(self, vregs=(), sregs=()):
        for r in vregs: self.e(f'v_and_b32 v{r}, s{sLM}, v{r}')
        for r in sregs: self.e(f's_and_b32 s{r}, s{r}, s{sLM}')
    def stop(self, data):
        if '[' not in data: return 'buffer_store_dword'
        lo, hi = data[2:-1].split(':'); return f'buffer_store_dwordx{int(hi)-int(lo)+1}'
    def publ(self, data, voff): self.e(f'{self.stop(data)} {data}, v{voff}, {srd(rWS)}, s{sLOC} offen')
    def pubg(self, data, voff): self.e(f'{self.stop(data)} {data}, v{voff}, {srd(rWS)}, 0 offen sc1')
    def pub(self, data, voff): self.pubg(data, voff); self.publ(data, voff)
    def late_pubg(self, data, voff):
        e = self.e; l = e.newlabel('Lnp')
        e(f's_cmp_eq_u32 s{sLM}, -1\ns_cbranch_scc1 {l}'); self.pubg(data, voff); e(f'{l}:')
    def retry(self, label, sleep=1, vregs=(), sregs=(), late=None):
        e = self.e
        ok = e.newlabel('Lok')
        e(f's_cbranch_vccz {ok}')
        self.fb(vregs, sregs)
        if late: self.late_pubg(*late)
        if sleep: e(f's_sleep {sleep}')
        e(f's_branch {label}')
        e(f'{ok}:')
    def ppoll(self, name, nsets, nld, loads, check, vregs=(), sregs=(), pre_issued=0):
        e = self.e
        for k in range(pre_issued, nsets): loads(k)
        e(f'{name}:')
        for k in range(nsets):
            e(f's_waitcnt vmcnt({nld*(nsets-1)})')
            check(k)
            e(f's_cbranch_vccz {name}_OK')
            if k == nsets-1: self.fb(vregs, sregs)
            loads(k)
        e(f's_branch {name}\n{name}_OK:')
    def maxchain(self, dst, regs):
        e = self.e
        regs = list(regs)
        e(f'v_max3_u32 v{dst}, v{regs[0]}, v{regs[1]}, v{regs[2]}'); regs = regs[3:]
        while len(regs) >= 2:
            e(f'v_max3_u32 v{dst}, v{dst}, v{regs[0]}, v{regs[1]}'); regs = regs[2:]
        if regs: e(f'v_max_u32 v{dst}, v{dst}, v{regs[0]}')
    def tagcheck(self, dst, pairs):
        e = self.e; rs = []
        for r in pairs:
            e(f'v_xor_b32 v{r}, s{sT0}, v{r}\nv_xor_b32 v{r+1}, s{sT1}, v{r+1}'); rs += [r, r+1]
        if len(rs) == 2: e(f'v_or_b32 v{dst}, v{rs[0]}, v{rs[1]}')
        else:
            e(f'v_or3_b32 v{dst}, v{rs[0]}, v{rs[1]}, v{rs[2]}'); rs = rs[3:]
            while len(rs) >= 2: e(f'v_or3_b32 v{dst}, v{dst}, v{rs[0]}, v{rs[1]}'); rs = rs[2:]
            if rs: e(f'v_or_b32 v{dst}, v{dst}, v{rs[0]}')
        e(f'v_cmp_ne_u32 vcc, 0, v{dst}')
    def ident_masks(self, dst, val_lo, val_hi, first, n, t):
        e = self.e
        e(f'v_and_b32 v{t}, 1, v1\nv_cmp_eq_u32 vcc, 1, v{t}\nv_mov_b32 v{t}, {val_lo}\nv_mov_b32 v{t+1}, {val_hi}\nv_cndmask_b32 v{t}, v{t}, v{t+1}, vcc')
        e(f'v_lshrrev_b32 v{t+1}, 1, v1')
        for r in range(n):
            e(f'v_cmp_eq_u32 vcc, {first+r}, v{t+1}\nv_cndmask_b32 v{dst+r}, 0, v{t}, vcc')
    def red_final(self, RED, t, va, clamp):
        e = self.e
        for w in range(4): e(f'ds_read_b128 {v(t+4+4*w,4)}, v{va} offset:{RED+256*w}')
        e('s_waitcnt lgkmcnt(2)')
        for i in range(2): e(f'v_pk_add_f32 {v(t+4+2*i,2)}, {v(t+4+2*i,2)}, {v(t+8+2*i,2)}')
        e('s_waitcnt lgkmcnt(0)')
        for i in range(2): e(f'v_pk_add_f32 {v(t+12+2*i,2)}, {v(t+12+2*i,2)}, {v(t+16+2*i,2)}')
        for i in range(2): e(f'v_pk_add_f32 {v(t+4+2*i,2)}, {v(t+4+2*i,2)}, {v(t+12+2*i,2)}')
        for i in range(2): e(f'v_cvt_pk_bf16_f32 v{t+i}, v{t+4+2*i}, v{t+5+2*i}')
        if clamp:
            for i in range(2): e(f'v_min_u32 v{t+i}, -2, v{t+i}')
    def code_prefetch(self):
        e = self.e
        npl = self.o.get('npl', 3)
        e(f's_getpc_b64 s[20:21]\nL_PC:\ns_sub_u32 s20, s20, L_PC-{KN}\ns_subb_u32 s21, s21, 0')
        e(f's_and_b32 s22, s{sR}, 15\ns_lshl_b32 s22, s22, 2\ns_add_u32 s22, s22, s{sW}\ns_lshl_b32 s22, s22, 7')
        for i in range(npl):
            e(f's_min_u32 s23, s22, L_CODE_END-4-{KN}\ns_load_dword s7, s[20:21], s23')
            if i < npl-1: e(f's_add_u32 s22, s22, 8192')
    def kmap(self):
        k = self.o.get('kil', 0)
        if k == 0: return 17, 15, 4096
        if k == 1: return 12, 22, 1 << 19
        if k == 2: return 12, 19, 1 << 21
        if k == 3: return 14, 12, 1 << 21
        if k == 4: return 15, 22, 4096
        if k == 5: return -12, 19, 1 << 16
        if k == 6: return -12, 16, 1 << 18
        if k == 7: return -14, 12, 1 << 18
        if k == 8: return -15, 19, 4096
        if k == 9: return None, 16, None
    def ioff(self, i, istr): return i*istr if istr else (i>>1)*16384 + (i&1)*4096
    def kbase(self, dst, sidx, tsh):
        if tsh is None:
            self.e(f's_and_b32 s{dst}, s{sidx}, 63\ns_lshl_b32 s{dst}, s{dst}, 18\ns_lshr_b32 s{sTMP}, s{sidx}, 3\ns_lshr_b32 s7, s{sidx}, 6\ns_xor_b32 s{sTMP}, s{sTMP}, s7\ns_xor_b32 s{sTMP}, s{sTMP}, {self.o.get("kpol",0)}\ns_and_b32 s{sTMP}, s{sTMP}, 1\ns_lshl_b32 s{sTMP}, s{sTMP}, 13\ns_add_u32 s{dst}, s{dst}, s{sTMP}\ns_mov_b32 s7, 0')
        elif tsh > 0: self.e(f's_lshl_b32 s{dst}, s{sidx}, {tsh}')
        else: self.e(f's_and_b32 s{dst}, s{sidx}, 15\ns_lshl_b32 s{dst}, s{dst}, {-tsh}\ns_lshl_b32 s{sTMP}, s{sX8}, 21\ns_add_u32 s{dst}, s{dst}, s{sTMP}')
    def pol_ops(self, r, sd):
        ops = [f'v_cmp_lt_u32 vcc, 0xffffff, v{r}', f'v_and_b32 v{r}, 0xffffff, v{r}', f's_and_b32 s{sd+3}, vcc_lo, 15', f'v_cmp_eq_u32 vcc, 0, v{r}']
        ops += [f'v_add_u32_dpp v{r}, v{r}, v{r} {p} {DPP}' for p in ['quad_perm:[1,0,3,2]','quad_perm:[2,3,0,1]','row_half_mirror']]
        ops += [f'v_readlane_b32 s{sd+g}, v{r}, {8*g}' for g in range(3)]
        ops += [f's_sub_u32 s{sd+4}, s{sd}, s{sd+1}', f's_add_u32 s{sd+4}, s{sd+4}, s{sd+2}', f's_lshl1_add_u32 s{sd}, s{sd}, s{sd+4}', f's_lshl1_add_u32 s{sd+2}, s{sd+2}, s{sd+4}',
                f's_lshl_b32 s{sd+1}, s{sd+1}, 1', f's_sub_u32 s{sd+1}, s{sd+1}, s{sd+4}']
        for g in range(3):
            ops += [f's_cmp_lt_u32 s{sd+g}, {(8 if g == 1 else 24)*BIAS}', f's_cselect_b32 s{sd+g}, 8192, 0']
            if 'force' in self.o: ops.append(f's_mov_b32 s{sd+g}, {8192*((self.o["force"]+g)&1)}')
        return ops
    def tags(self):
        self.e(f's_add_u32 s{sT0}, s{sE}, 0x9e3779b9\ns_xor_b32 s{sT1}, s{sT0}, 0x5bd1e995')

    def prologue(self):
        e = self.e
        self.stamp('start')
        e(f"""
        s_load_dwordx16 s[8:23], s[0:1], 0
        s_cmp_ge_u32 s2, 256
        s_cbranch_scc1 L_EXIT
        v_lshrrev_b32 v1, 6, v0
        v_and_b32 v0, 63, v0
        v_readfirstlane_b32 s{sW}, v1
        v_and_b32 v1, 15, v0
        v_lshrrev_b32 v2, 4, v0
        v_lshlrev_b32 v4, 2, v0
        {('s_add_u32 s%d, s2, %d' % (sX8, self.o['lrot'])) if self.o.get('lrot') else ''}
        s_and_b32 s{sX8}, s{sX8 if self.o.get('lrot') else 2}, 7
        s_lshr_b32 s{sR}, s2, 3
        v_lshlrev_b32 v5, 4, v1
        v_lshlrev_b32 v6, 5, v2
        v_xor_b32 v5, v5, v6
        v_lshl_add_u32 v6, v2, 13, v5
        s_lshr_b32 s67, s{sW}, 1
        s_lshl_b32 s67, s67, 7
        v_xor_b32 v8, s67, v6
        s_bfe_u32 s60, s{sR}, 0x20002
        s_mul_i32 s60, s60, {160*8192}
        s_and_b32 s63, s{sR}, 3
        s_lshl2_add_u32 s63, s{sX8}, s63
        s_lshl_b32 s63, s63, 8
        s_add_u32 s60, s60, s63
        s_lshl_b32 s61, s{sW}, 15
        s_lshl_b32 s62, s{sW}, 10
        s_mov_b32 s{rA+3}, 0x20000
        s_mov_b32 s{rC+3}, s{rA+3}
        s_sub_u32 s{rA+2}, 5242880, s60
        s_cmp_lt_u32 s{sR}, 16
        s_cselect_b32 s{rC+2}, {64 if self.o.get('ttouch',1) else 0}, 1280
        s_cselect_b32 s66, s{sR}, 0
        s_cselect_b32 s64, {5*4*32768}, 0
        s_cselect_b32 s65, {QB-WQ}, 0
        s_add_u32 s61, s61, s64
        s_add_u32 s62, s62, s65
        s_add_u32 s62, s62, {WQ}
        s_lshl_b32 s66, s66, 18
        s_cmp_lt_u32 s{sR}, 16
        s_waitcnt lgkmcnt(0)
        s_load_dwordx4 s[32:35], s[0:1], 96
        s_load_dwordx8 s[24:31], s[0:1], 64
        s_cselect_b64 s[{rC}:{rC+1}], s[{pWUK}:{pWUK+1}], s[{pX}:{pX+1}]
        s_and_b32 s{rC+1}, s{rC+1}, 0xffff
        s_add_u32 s{rC}, s{rC}, s66
        s_addc_u32 s{rC+1}, s{rC+1}, 0
        s_add_u32 s{rA}, s{pWQ}, s60
        s_addc_u32 s{rA+1}, s{pWQ+1}, 0
        s_and_b32 s{rA+1}, s{rA+1}, 0xffff
        """)
        self.x_issue()
        if self.o.get('t_wq', 0) == 0: e(f's_cmp_lt_u32 s{sR}, 16\ns_cbranch_scc1 L_SKIPQ')
        for k in range(5): self.wq_dma(k)
        e(f"""
        L_SKIPQ:
        v_lshlrev_b32 v3, 4, v0
        v_mov_b32 v9, {OOB}
        v_lshlrev_b32 v11, 4, v2
        s_mov_b32 s{sTO}, 400000
        s_mov_b32 s{sLM}, -1
        s_mov_b32 s{sLC}, 0
        s_mov_b32 s{sLOC}, {LOC}
        s_mov_b32 s{rWS+2}, {WSSZ}
        s_mov_b32 s{rWS+3}, 0x20000
        s_cmp_lt_u32 s{sR}, 16
        """)
        if self.o.get('t0first', 1): e('s_cbranch_scc0 L_A\n;SEG A1\nL_A:')
        else: e('s_cbranch_scc1 L_T\n;SEG A1\nL_A:')
    def ws_srd(self):
        self.e(f's_waitcnt lgkmcnt(0)\ns_mov_b32 s{rWS}, s{pWS}\ns_and_b32 s{rWS+1}, s{pWS+1}, 0xffff')
    def x_issue(self):
        for kk in range(5): self.e(f'buffer_load_dword v{240+kk}, v4, {srd(rC)}, 0 offen offset:{256*kk} {self.o.get("xflag","")}')
    def wq_dma(self, k):
        e = self.e
        e(f's_add_u32 m0, s62, {k*4096}')
        e(f'buffer_load_dwordx4 v8, {srd(rA)}, s61 offen nt lds')
        if k < 9: e(f's_add_u32 s61, s61, {4*32768}')
    def wuk_setup(self, sAi, srdreg):
        e = self.e
        e(f'''
        s_lshl_b32 s63, s{sX8}, 2
        s_add_u32 s64, s63, s{sW}
        s_lshl_b32 s64, s64, 8
        s_lshl_b32 s65, s{sAi}, 18
        s_add_u32 s64, s64, s65
        ''')
        self.mk_srd(srdreg, pWUK, 64, 4194304)
        e(f'v_xor_b32 v7, 0x80, v6\ns_mov_b32 s68, 0\ns_lshl_b32 s69, s{sW}, 13')
    def wuk_dma(self, k, srdreg, base):
        e = self.e
        e(f's_add_u32 m0, s69, {base+k*1024}')
        e(f'buffer_load_dwordx4 v{6 if ((k>>1)&1)==0 else 7}, {srd(srdreg)}, s68 offen {self.o.get("ukflag","nt")} lds')
        if k < 7: e(f's_add_u32 s68, s68, 32768')
    def a1(self, role, y_x, y_wq, mid):
        e = self.e
        s0, s1 = 63, 64
        e(f'''
        v_lshrrev_b32 v12, 2, v1
        v_lshl_add_u32 v13, v2, 3, v12
        v_lshlrev_b32 v13, 8, v13
        v_and_b32 v14, 3, v1
        v_lshl_add_u32 v13, v14, 3, v13
        v_and_b32 v15, 1, v2
        v_lshl_or_b32 v15, v15, 2, v12
        s_lshl_b32 s{s0}, s{sW}, 1
        v_xor_b32 v15, s{s0}, v15
        v_lshl_add_u32 v60, v15, 5, v13
        v_xor_b32 v15, 1, v15
        v_lshl_add_u32 v61, v15, 5, v13
        v_add_u32 v56, {WQ}, v60
        v_add_u32 v57, {WQ}, v61
        ''')
        e(f'''
        v_lshl_add_u32 v12, v1, 6, v11
        s_and_b32 s{s0}, s{sR}, 3
        s_lshl_b32 s{s1}, s{sX8}, 2
        s_add_u32 s{s0}, s{s0}, s{s1}
        s_lshl_b32 s{s0}, s{s0}, 2
        s_bfe_u32 s{s1}, s{sR}, 0x20002
        s_add_u32 s{s0}, s{s0}, s{s1}
        s_lshl_b32 s{s0}, s{s0}, 9
        s_lshl_b32 s{s1}, s{sW}, 7
        s_add_u32 s{s0}, s{s0}, s{s1}
        s_add_u32 s{s0}, s{s0}, {QP}
        v_add_u32 v12, s{s0}, v12
        v_cmp_gt_u32 vcc, 2, v1
        v_cndmask_b32 v62, v9, v12, vcc
        v_cmp_eq_u32 s[70:71], 1, v1
        s_mul_i32 s{s0}, s{sW}, 1280
        s_add_u32 s{s0}, s{s0}, {XN}
        v_add_u32 v10, s{s0}, v4
        s_bfe_u32 s{s1}, s{sR}, 0x20002
        s_mul_i32 s{s1}, s{s1}, 320
        s_add_u32 s{s0}, s{s0}, s{s1}
        v_add_u32 v12, s{s0}, v11
        s_waitcnt vmcnt({y_x})
        ''')
        self.stamp(role+'.x')
        for k in range(5): e(f'v_lshlrev_b32 v{26+2*k}, 16, v{240+k}\nv_and_b32 v{27+2*k}, 0xffff0000, v{240+k}')
        e('v_pk_add_f32 v[36:37], v[26:27], v[28:29]\nv_pk_add_f32 v[38:39], v[30:31], v[32:33]\nv_pk_add_f32 v[36:37], v[36:37], v[34:35]\nv_pk_add_f32 v[36:37], v[36:37], v[38:39]\nv_add_f32 v36, v36, v37')
        self.allred('v_add_f32', 36, 37)
        e('v_mul_f32 v36, 0xbacccccd, v36\nv_mov_b32 v37, v36')
        for k in range(26,36,2): e(f'v_pk_add_f32 {v(k,2)}, {v(k,2)}, v[36:37]')
        e('v_pk_mul_f32 v[36:37], v[26:27], v[26:27]')
        for k in range(28,36,2): e(f'v_pk_fma_f32 v[36:37], {v(k,2)}, {v(k,2)}, v[36:37]')
        e('v_add_f32 v36, v36, v37')
        self.allred('v_add_f32', 36, 37)
        e('v_mul_f32 v36, 0x3acccccd, v36\nv_add_f32 v36, 0x3727c5ac, v36\nv_rsq_f32 v36, v36\nv_mov_b32 v37, v36')
        for k in range(26,36,2): e(f'v_pk_mul_f32 {v(k,2)}, {v(k,2)}, v[36:37]')
        for k in range(5): e(f'v_cvt_pk_bf16_f32 v{20+k}, v{26+2*k}, v{27+2*k}\nds_write_b32 v10, v{20+k} offset:{256*k}')
        for s in range(5): e(f'ds_read_b128 {v(36+4*s,4)}, v12 offset:{s*64}')
        self.stamp(role+'.ln')
        mid()
        e(f's_waitcnt vmcnt({y_wq}) lgkmcnt(0)\ns_barrier')
        self.stamp(role+'.wq')
        vW = 128
        for s in range(5):
            for T in range(2):
                for q in range(2): e(f'ds_read_b64_tr_b16 {v(vW+(s*2+T)*4+2*q,2)}, v{56+T} offset:{s*8192+q*1024}')
        self.tags()
        e(f'v_mov_b32 v18, s{sT0}\nv_mov_b32 v19, s{sT1}')
        for s in range(5):
            for T in range(2):
                e(f's_waitcnt lgkmcnt({min(15,18-(s*2+T)*2)})')
                e(f'v_mfma_f32_16x16x32_bf16 {v(84+4*T,4)}, {v(vW+(s*2+T)*4,4)}, {v(36+4*s,4)}, ' + ('0' if s==0 else v(84+4*T,4)))
        for i in range(4): e(f'v_cvt_pk_bf16_f32 v{92+i}, v{84+2*i}, v{85+2*i}')
        e('v_cndmask_b32 v16, v92, v94, s[70:71]\nv_cndmask_b32 v17, v93, v95, s[70:71]')
        self.publ('v[16:19]', 62)
        self.stamp(role+'.qp')


    def role_A(self):
        e = self.e
        QV=0; CL=1024; ML=2304; RED=2560; DUM=3584; WUK=4096; WUV=36864
        W1=69632; W2=W1+20480; HB=4096; AP=HB+2048; ST=AP+256; HELP=135168
        sAi,sHd,sJ,s0,s1,s2_,sSL = 72,73,74,63,64,65,66
        sF,sG = 60,61
        if self.o.get('noA'): e('s_branch L_EXIT')
        order = self.o.get('a_order', 'qqqqq|uuuuuuuu')
        cnt = {'q':5,'u':0}
        def issue(ch):
            if ch == 'q': self.wq_dma(cnt['q'])
            else:
                if cnt['u'] == 0: self.wuk_setup(sAi, rB)
                self.wuk_dma(cnt['u'], rB, WUK)
            cnt[ch] += 1
        e(f's_sub_u32 s{sAi}, s{sR}, 16')
        order, o3 = (order.split('!') + [''])[:2]
        o1, o2 = order.split('|')
        for ch in o1: issue(ch)
        self.ws_srd()
        e(f's_load_dword s{sE}, s[{pWS}:{pWS+1}], {EPOCH}')
        e(f"""
        s_lshl_b32 s63, s{sX8}, 2
        s_and_b32 s{sHd}, s{sAi}, 3
        s_add_u32 s{sHd}, s{sHd}, s63
        s_lshr_b32 s{sJ}, s{sAi}, 2
        s_lshl_b32 s{sSL}, s{sX8}, 4
        s_add_u32 s{sSL}, s{sSL}, s{sAi}
        """)
        def mid():
            for ch in o2: issue(ch)
        full = o1 + o2
        self.a1('A', 5+len(o1), len(full)-1-full.rindex('q'), mid)
        for ch in o3: issue(ch)
        e(f"""
        s_and_b32 s{s0}, s{sX8}, 6
        s_add_u32 s{s0}, s{s0}, s{sX8}
        s_lshl2_add_u32 s{s0}, s{s0}, s{sW}
        s_lshl4_add_u32 s{s0}, s{s0}, s{sAi}
        s_lshl_b32 s{s0}, s{s0}, 6
        s_add_u32 s{s0}, s{s0}, {QLB}
        v_lshlrev_b32 v14, 13, v2
        v_lshl_add_u32 v12, v1, 2, v14
        v_add_u32 v12, s{s0}, v12
        s_lshl2_add_u32 s{s1}, s{sSL}, s{sW}
        s_lshl_b32 s{s0}, s{s1}, 7
        s_add_u32 s{s0}, s{s0}, {HCB}
        v_lshlrev_b32 v13, 3, v0
        v_add_u32 v13, s{s0}, v13
        s_lshl_b32 s{s0}, s{s1}, 3
        s_add_u32 s{s0}, s{s0}, {QCS}
        v_add_u32 v14, s{s0}, v14
        s_and_b32 s{s1}, s{sAi}, 7
        s_lshl_b32 s{s1}, s{s1}, 1
        v_cmp_eq_u32 vcc, s{s1}, v1
        v_cndmask_b32 v14, v9, v14, vcc
        v_cmp_gt_u32 vcc, 32, v0
        v_cndmask_b32 v101, v9, v12, vcc
        v_cndmask_b32 v103, v9, v14, vcc
        v_cmp_gt_u32 vcc, 16, v0
        v_cndmask_b32 v100, v9, v12, vcc
        v_cndmask_b32 v26, v9, v14, vcc
        v_cndmask_b32 v102, v9, v13, vcc
        v_mov_b32 v99, s{sT0}
        """)
        if self.o.get('clean'): e('v_mov_b32 v245, v62\nv_mov_b32 v246, v100\nv_mov_b32 v247, v26\nv_mov_b32 v248, v102')
        e(f"""
        v_lshlrev_b32 v27, 9, v2
        v_lshl_add_u32 v27, v1, 4, v27
        s_lshl_b32 s{s2_}, s{sX8}, 2
        s_add_u32 s{s2_}, s{s2_}, s{sW}
        s_lshl_b32 s{s2_}, s{s2_}, 11
        s_add_u32 s{s2_}, s{s2_}, {QP+LOC}
        v_lshlrev_b32 v12, 9, v1
        s_lshl_b32 s{s0}, s{sW}, 13
        s_add_u32 s{s0}, s{s0}, {WUK}
        v_add_u32 v12, s{s0}, v12
        v_and_b32 v13, 1, v1
        v_and_b32 v14, 4, v1
        v_lshl_or_b32 v13, v13, 1, v14
        v_lshlrev_b32 v13, 5, v13
        """)
        def h0loads():
            for i in range(2): e(f'buffer_load_dwordx4 {v(64+4*i,4)}, v27, {srd(rWS)}, s{s2_} offen offset:{i*256} sc1')
        for s in range(4):
            e(f'v_add_u32 v14, {s*64}, v11\nv_xor_b32 v14, v14, v13\nv_add_u32 v{40+2*s}, v14, v12\nv_xor_b32 v14, 32, v14\nv_add_u32 v{41+2*s}, v14, v12')
        vI = 28
        self.ident_masks(vI, 0x3f80, 0x3f800000, 0, 8, 12)
        e(f"""
        s_lshl_b32 s{s0}, s{sW}, 8
        v_lshlrev_b32 v12, 3, v0
        v_add_u32 v12, s{s0}, v12
        v_mov_b32 v13, {DUM}
        v_cmp_gt_u32 vcc, 32, v0
        v_cndmask_b32 v24, v13, v12, vcc
        v_add_u32 v25, s{s0}, v11
        """)
        e(f's_waitcnt vmcnt({(0 if o3 else 1)+self.o.get("h0lead",3)})')
        h0loads()
        e(f's_waitcnt vmcnt({2 if o3 else 3})')
        self.stamp('A.wuk')
        vU = 112
        for s in range(4):
            for T in range(2): e(f'ds_read_b128 {v(vU+(s*2+T)*4,4)}, v{40+2*s+T} offset:{T*256}')
        e('L_A_H0:')
        e('s_waitcnt vmcnt(0)')
        for i in range(2):
            e(f'v_mfma_f32_16x16x16_bf16 v[80:83], {v(vI+2*i,2)}, {v(64+4*i,2)}, ' + ('0' if i==0 else 'v[80:83]'))
        self.tagcheck(12, [66,70])
        e('s_cbranch_vccz L_A_H0OK')
        self.fb((), (s2_,)); self.late_pubg('v[16:19]', 62)
        h0loads()
        e('s_branch L_A_H0')
        e('L_A_H0OK:')
        self.stamp('A.h0')
        e(f'v_cvt_pk_bf16_f32 v84, v80, v81\nv_cvt_pk_bf16_f32 v85, v82, v83\nds_write_b64 v24, v[84:85] offset:{QV}')
        for s in range(4): e(f'ds_read_b128 {v(144+4*s,4)}, v25 offset:{QV+s*64}')
        for s in range(4):
            e(f's_waitcnt lgkmcnt({3-s})')
            for T in range(2):
                e(f'v_mfma_f32_16x16x32_bf16 {v(104+4*T,4)}, {v(144+4*s,4)}, {v(vU+(s*2+T)*4,4)}, ' + ('0' if s==0 else v(104+4*T,4)))
        e('v_cvt_pk_bf16_f32 v64, v104, v108')
        self.pubg('v64', 101); self.publ('v64', 100)
        e(f'v_add_u32_dpp v96, v64, v64 quad_perm:[2,3,0,1] {DPP}\nv_xor_b32 v97, s{sT0}, v64\nv_add_u32_dpp v96, v96, v96 row_ror:4 {DPP}\nv_add_u32_dpp v96, v96, v96 row_ror:8 {DPP}')
        self.pubg('v[96:97]', 103); self.publ('v[96:97]', 26)
        self.stamp('A.ql')
        self.pubg('v[16:19]', 62)
        e('s_branch L_A2\n;SEG A2\nL_A2:')
        if self.o.get('atouch', 0):
            e(f"""
            s_lshl2_add_u32 s{s0}, s{sAi}, s{sW}
            s_and_b32 s{s0}, s{s0}, 31
            s_cmp_lg_u32 s{s0}, 5
            s_cbranch_scc1 L_NOAT
            s_mov_b32 s{s0}, 0x200000
            s_mul_i32 s{s1}, s{sX8}, 655360
            s_add_u32 s{s2_}, s{s1}, 655296
            s_mov_b32 s{sTMP}, {CS}
            s_load_dword s8, s[{pWUV}:{pWUV+1}], 0
            s_load_dword s8, s[{pWUV}:{pWUV+1}], s{s0}
            s_load_dword s8, s[{pWO}:{pWO+1}], s{s1}
            s_load_dword s8, s[{pWO}:{pWO+1}], s{s2_}
            s_load_dword s8, s[{pW2}:{pW2+1}], 0
            s_load_dword s8, s[{pW2}:{pW2+1}], s{s0}
            s_load_dword s8, s[{pWS}:{pWS+1}], s{sTMP}
            s_load_dword s8, s[{pOUT}:{pOUT+1}], 0
            s_waitcnt lgkmcnt(0)
            L_NOAT:
            """)
        if self.o.get('pf', 3) == 3:
            e(f's_getpc_b64 s[20:21]\nL_PC:\ns_sub_u32 s20, s20, L_PC-{KN}\ns_subb_u32 s21, s21, 0')
            e(f's_lshl_b32 s{s0}, s{sW}, 13\nv_lshlrev_b32 v12, 7, v0\nv_add_u32 v12, s{s0}, v12\nv_min_u32 v12, L_CODE_END-4-{KN}, v12')
            e(f's_and_b32 s{s0}, s{sAi}, 3\ns_cmp_lg_u32 s{s0}, 0\ns_cbranch_scc1 L_NOPF\nglobal_load_dword v255, v12, s[20:21]\nL_NOPF:')
        e('s_barrier')
        nh = self.o.get('a_help', 0)
        if nh:
            tsh, wsh, istr = self.kmap()
            self.kbase(s0, sSL, tsh)
            self.mk_srd(rA, pCKV, s0, 16777216)
            e(f'v_lshlrev_b32 v12, 10, v2\nv_lshl_add_u32 v12, v1, 4, v12\ns_lshl_b32 s68, s{sW}, {wsh}\ns_lshl_b32 s69, s{sW}, 12\ns_add_u32 m0, s69, {HELP}')
            for n in range(32-nh, 32):
                c, i = n >> 3, n & 7
                e(f's_add_u32 s{sTMP}, s68, {self.ioff(i,istr)+c*256}')
                e(f'buffer_load_dwordx4 v12, {srd(rA)}, s{sTMP} offen {self.o.get("helpflag","nt")} lds')
        e(f"""
        v_lshrrev_b32 v12, 1, v2
        v_lshl_add_u32 v62, v12, 20, v5
        v_and_b32 v12, 1, v2
        v_lshl_add_u32 v62, v12, 17, v62
        v_xor_b32 v62, s67, v62
        s_lshl_b32 s{sG}, s{sJ}, 3
        s_add_u32 s{sG}, s{sG}, s{sX8}
        s_and_b32 s{sF}, s{sAi}, 3
        s_lshl_b32 s{s2_}, s{sG}, 2
        s_add_u32 s{sF}, s{sF}, s{s2_}
        """)
        sB = 62
        e(f"""
        v_and_b32 v5, 7, v1
        v_lshlrev_b32 v5, 4, v5
        v_and_b32 v6, 1, v2
        v_lshl_add_u32 v6, v6, 3, v5
        v_lshrrev_b32 v12, 3, v0
        v_and_b32 v13, 3, v12
        v_lshl_add_u32 v14, v13, 11, v5
        v_lshrrev_b32 v13, 5, v0
        v_lshl_add_u32 v14, v13, 14, v14
        v_cmp_eq_u32 vcc, s{sX8}, v12
        v_or_b32 v13, s{sLOC}, v14
        s_lshr_b32 s77, s{sX8}, 2
        s_lshl_b32 s77, s77, 13
        v_cndmask_b32 v46, v14, v13, vcc
        v_mov_b32 v15, 8192
        v_cndmask_b32 v40, v15, 0, vcc
        s_cmp_ge_u32 s{sG}, 27
        s_cbranch_scc1 L_A_NOF
        s_lshl_b32 s{s0}, s{sF}, 5
        """)
        self.mk_srd(rA, pW1, s0, 2211840)
        e(f's_mul_i32 s{s0}, s{sF}, 20480')
        self.mk_srd(rB, pW2, s0, 2211840)
        e(f"""
        v_and_b32 v7, 3, v12
        v_lshlrev_b32 v7, 3, v7
        v_lshrrev_b32 v8, 5, v0
        v_lshl_add_u32 v7, v8, 2, v7
        v_bfe_u32 v8, v0, 1, 2
        v_add_u32 v7, v7, v8
        v_mul_u32_u24 v7, 3456, v7
        v_and_b32 v8, 1, v0
        v_lshl_add_u32 v7, v8, 4, v7
        s_and_b32 s78, s{sF}, 3
        s_lshl_b32 s78, s78, 2
        s_add_u32 s78, s78, s{sW}
        """)
        w1f = self.o.get('w1flag', '')
        n1 = self.o.get('w1first', 2)
        def w1dma(k, r):
            if k == 1: e(f's_add_u32 s{sTMP}, s{sW}, 16')
            else:
                if k >= 2: e(f's_add_u32 s78, s78, 4\ns_and_b32 s78, s78, 15')
                e(f's_mov_b32 s{sTMP}, s78')
            e(f's_lshl_b32 s{s0}, s{sTMP}, 10\ns_add_u32 m0, s{s0}, {W1}\ns_mul_i32 s{s0}, s{sTMP}, 110592')
            e(f'buffer_load_dwordx4 v7, {srd(r)}, s{s0} offen {w1f} lds')
        for k in range(n1): w1dma(k, rA)
        e(f"""
        s_mul_i32 s{sB}, s{sW}, 3
        s_cmp_eq_u32 s{sW}, 3
        s_cselect_b32 s{sB}, 8, s{sB}
        s_lshl_b32 s{sB}, s{sB}, 7
        v_lshrrev_b32 v8, 1, v2
        v_lshl_add_u32 v8, v8, 7, v6
        s_cmp_lt_u32 s{sW}, 2
        s_cselect_b32 s{s0}, 32, 0
        v_cmp_gt_u32 vcc, s{s0}, v0
        v_cndmask_b32 v13, v9, v6, vcc
        v_cmp_gt_u32 vcc, 8, v1
        v_cndmask_b32 v12, v9, v8, vcc
        v_cndmask_b32 v13, v9, v13, vcc
        buffer_load_dwordx2 v[16:17], v12, {srd(rC)}, s{sB} offen
        buffer_load_dwordx2 v[18:19], v13, {srd(rC)}, s{sB} offen offset:256
        s_lshl_b32 s{s0}, s{sF}, 5
        """)
        self.mk_srd(rC, pB1, s0, 3456)
        e(f'v_lshlrev_b32 v12, 3, v2\nbuffer_load_dwordx2 v[58:59], v12, {srd(rC)}, 0 offen')
        e(f"""
        s_lshl_b32 s{s0}, s{sW}, 9
        s_add_u32 s{s0}, s{s0}, {HB}
        v_add_u32 v48, s{s0}, v8
        v_add_u32 v12, 256, v48
        v_mov_b32 v13, {DUM}
        v_cmp_gt_u32 vcc, 32, v0
        v_cndmask_b32 v49, v13, v12, vcc
        v_add_u32 v50, s{s0}, v11
        s_cmp_lt_u32 s{sW}, 2
        s_cselect_b32 s{s0}, 0, {OOB}
        v_max_u32 v47, s{s0}, v46
        s_add_u32 s79, s{sB}, {H3B}
        v_lshl_add_u32 v12, v1, 6, v11
        s_mul_i32 s{s0}, s{sW}, 320
        v_add_u32 v13, s{s0}, v12
        s_and_b32 s{s2_}, s{sF}, 3
        s_lshl3_add_u32 s{s2_}, s{sG}, s{s2_}
        s_lshl_b32 s{s2_}, s{s2_}, 11
        s_add_u32 s{s2_}, s{s2_}, {HS+8192}
        v_add_u32 v12, s{s2_}, v13
        v_cmp_gt_u32 vcc, 5, v1
        v_cndmask_b32 v51, v9, v12, vcc
        v_bfe_u32 v13, v13, 7, 2
        v_add_u32 v13, 4, v13
        v_cmp_eq_u32 vcc, s{sX8}, v13
        v_cndmask_b32 v43, v9, v51, vcc
        s_and_b32 s{s0}, s{sW}, 1
        s_mul_i32 s{s0}, s{s0}, 640
        s_add_u32 s{s2_}, s{s2_}, s{s0}
        s_lshr_b32 s{s0}, s{sW}, 1
        s_lshl_b32 s{s0}, s{s0}, 20
        s_add_u32 s{s2_}, s{s2_}, s{s0}
        v_add_u32 v12, s{s2_}, v3
        v_cmp_gt_u32 vcc, 40, v0
        v_cndmask_b32 v41, v9, v12, vcc
        s_lshl_b32 s{s2_}, s{sB}, 4
        s_add_u32 s{s2_}, s{s2_}, {W1}
        v_lshlrev_b32 v52, 3, v0
        v_add_u32 v52, s{s2_}, v52
        v_lshrrev_b32 v12, 2, v0
        v_mul_u32_u24 v12, 1280, v12
        v_and_b32 v13, 3, v1
        v_lshl_add_u32 v12, v13, 4, v12
        v_add_u32 v53, {W2}, v12
        s_lshl_b32 s{s0}, s{sW}, 2
        v_lshrrev_b32 v12, 5, v0
        v_lshlrev_b32 v12, 4, v12
        v_add_u32 v12, s{s0}, v12
        v_add_u32 v54, {ST}, v12
        s_lshl_b32 s{s0}, s{sW}, 6
        v_add_u32 v55, {AP}, v11
        v_add_u32 v45, s{s0}, v55
        v_mov_b32 v44, {ST}
        s_cmp_eq_u32 s{sW}, 3
        s_cselect_b32 s{s0}, 2048, 0
        v_subrev_u32 v42, s{s0}, v52
        """)
        e(f'v_lshrrev_b32 v12, 2, v1\nv_lshlrev_b32 v12, 6, v12\ns_mul_i32 s{s0}, s{sW}, 320')
        for P in range(5):
            e(f'v_xor_b32 v13, s{s0}, v12\nv_add_u32 v{229+P}, v13, v53')
            if P < 4: e(f's_add_u32 s{s0}, s{s0}, 64')
        e('s_branch L_A_FDONE\nL_A_NOF:')
        sK = sF
        e(f"""
        s_and_b32 s{s0}, s{sAi}, 3
        s_and_b32 s{sK}, s{sX8}, 3
        s_lshl2_add_u32 s{sK}, s{s0}, s{sK}
        s_cmp_lt_u32 s{sX8}, 4
        s_cselect_b32 s{sK}, 15, s{sK}
        s_lshl_b32 s{sB}, s{sK}, 7
        """)
        self.mk_srd(rB, pB2, None, 1280)
        e(f"""
        s_cmp_eq_u32 s{sW}, 0
        s_cselect_b32 s{s1}, 32, 0
        v_cmp_gt_u32 vcc, s{s1}, v0
        v_cndmask_b32 v6, v9, v6, vcc
        v_cmp_gt_u32 vcc, 8, v1
        v_cndmask_b32 v6, v9, v6, vcc
        buffer_load_dwordx2 v[16:17], v6, {srd(rC)}, s{sB} offen
        buffer_load_dwordx2 v[18:19], v6, {srd(rB)}, s{sB} offen
        s_mul_i32 s{s0}, s{sW}, 28
        v_add_u32 v15, s{s0}, v12
        """)
        for i in range(4):
            e(f'v_bfe_u32 v10, v15, 2, 3\nv_cmp_eq_u32 vcc, s{sX8}, v10\nv_cndmask_b32 v{48+i}, v14, v13, vcc')
            if i < 3: e('v_add_u32 v15, 8, v15')
            if i > 0: e(f'v_add_u32 v{48+i}, {32768*i}, v{48+i}')
        e(f"""
        s_cmp_lt_u32 s{sW}, 3
        s_cselect_b32 s{s1}, 4, 0
        v_cmp_gt_u32 vcc, s{s1}, v12
        v_cndmask_b32 v51, v9, v51, vcc
        s_add_u32 s79, s{sB}, {H3B}
        v_mov_b32 v47, v46
        v_mov_b32 v43, v9
        v_mov_b32 v41, v9
        s_lshl_b32 s{s0}, s{s0}, 12
        s_add_u32 s78, s{sB}, s{s0}
        s_add_u32 s78, s78, {HS+8192}
        v_lshlrev_b32 v52, 5, v1
        v_lshl_add_u32 v52, v2, 4, v52
        s_lshl_b32 s{s1}, s{sW}, 8
        s_add_u32 s{s1}, s{s1}, {RED}
        v_add_u32 v52, s{s1}, v52
        v_mov_b32 v13, {DUM}
        v_cmp_gt_u32 vcc, 32, v0
        v_cndmask_b32 v52, v13, v52, vcc
        v_cmp_gt_u32 vcc, 8, v1
        v_cndmask_b32 v52, v13, v52, vcc
        v_cmp_gt_u32 vcc, 16, v0
        v_lshlrev_b32 v12, 3, v0
        v_cndmask_b32 v53, v9, v12, vcc
        v_lshlrev_b32 v54, 4, v1
        v_cmp_eq_u32 vcc, 0, v0
        v_cndmask_b32 v55, v9, v0, vcc
        L_A_FDONE:
        """)
        e(f's_lshl_b32 s{s0}, s{sW}, 2\nv_add_u32 v12, s{s0}, v2')
        for k in range(5):
            e(f'v_add_u32 v13, {16*k}, v12\nv_mul_u32_u24 v13, 205, v13\nv_bfe_u32 v13, v13, 10, 2\nv_lshlrev_b32 v13, 6, v13\nv_xor_b32 v{224+k}, v13, v3')
        vMk = 36
        self.ident_masks(vMk, 0xffff, 0xffff0000, 0, 4, 12)
        e(f"""
        s_lshl_b32 s{s0}, s{sW}, 2
        v_add_u32 v12, s{s0}, v2
        v_lshlrev_b32 v20, 10, v1
        v_lshl_add_u32 v20, v12, 14, v20
        v_lshrrev_b32 v13, 1, v12
        v_cmp_eq_u32 vcc, s{sX8}, v13
        v_or_b32 v12, s{sLOC}, v20
        v_cndmask_b32 v20, v20, v12, vcc
        v_and_b32 v20, s{sLM}, v20
        v_lshl_add_u32 v12, v2, 3, v1
        v_lshlrev_b32 v12, 8, v12
        v_mov_b32 v13, s{sT0}
        v_cmp_gt_u32 vcc, 8, v1
        v_cndmask_b32 v20, v9, v20, vcc
        v_cndmask_b32 v26, v9, v12, vcc
        v_cndmask_b32 v25, 0, v13, vcc
        s_mov_b32 s70, 0x00ff00ff
        s_mov_b32 s71, 0x00ff00ff
        s_and_b32 s{s1}, s{sHd}, 15
        s_lshl4_add_u32 s68, s{sJ}, s{s1}
        s_lshl_b32 s67, s68, 2
        s_lshl_b32 s68, s68, 4
        s_add_u32 s68, s68, s77
        s_add_u32 s68, s68, {REC}
        s_add_u32 s67, s67, s77
        s_lshl_b32 s{s1}, s{sW}, 14
        s_add_u32 s67, s67, s{s1}
        s_add_u32 s67, s67, {CS}
        v_lshlrev_b32 v22, 18, v2
        v_lshl_add_u32 v22, v1, 4, v22
        s_lshl_b32 s{s0}, s{sW}, 20
        s_add_u32 s69, s77, s{s0}
        s_add_u32 s69, s69, {PART}
        s_lshr_b32 s{s0}, s{sJ}, 1
        s_lshl_b32 s{s0}, s{s0}, 14
        s_add_u32 s69, s69, s{s0}
        s_and_b32 s{s0}, s{sJ}, 1
        s_lshl_b32 s{s0}, s{s0}, 12
        s_add_u32 s69, s69, s{s0}
        s_and_b32 s{s0}, s{sHd}, 3
        s_lshl_b32 s{s0}, s{s0}, 10
        s_add_u32 s69, s69, s{s0}
        s_bfe_u32 s{s0}, s{sHd}, 0x20002
        s_lshl_b32 s{s0}, s{s0}, 8
        s_add_u32 s69, s69, s{s0}
        v_lshlrev_b32 v12, 4, v1
        v_lshl_add_u32 v12, v2, 3, v12
        s_mul_i32 s{s0}, s{sW}, 320
        s_add_u32 s{s0}, s{s0}, {CL}
        v_add_u32 v12, s{s0}, v12
        v_mov_b32 v13, {DUM}
        v_cmp_gt_u32 vcc, 32, v0
        v_cndmask_b32 v23, v13, v12, vcc
        v_and_b32 v12, 3, v1
        v_mul_u32_u24 v12, 320, v12
        v_add_u32 v12, v12, v11
        v_add_u32 v24, {CL}, v12
        s_lshl_b32 s{s0}, s{sW}, 2
        s_add_u32 s{s0}, s{s0}, {ML}
        v_mov_b32 v12, s{s0}
        v_cmp_gt_u32 vcc, 8, v1
        v_cndmask_b32 v21, v13, v12, vcc
        v_mov_b32 v27, {ML}
        v_add_u32 v56, {WUV}, v60
        v_add_u32 v57, {WUV}, v61
        """)
        e(f's_lshl_b32 s{s0}, s{sJ}, 18\ns_lshl_b32 s{s1}, s{sHd}, 8\ns_add_u32 s{s0}, s{s0}, s{s1}')
        self.mk_srd(rC, pWUV, s0, 4194304)
        e(f"""
        s_cmp_lt_u32 s{sG}, 27
        s_cselect_b32 s9, 1, 0
        s_lshl_b32 s75, s{sSL}, 7
        s_add_u32 s75, s75, {GATE}
        v_mov_b32 v12, 0
        s_mov_b32 s8, 40
        L_A_G:
        buffer_load_dword v13, v12, {srd(rWS)}, s75 offen sc1
        s_waitcnt vmcnt(0)
        v_readfirstlane_b32 s76, v13
        s_cmp_eq_u32 s76, s{sT1}
        s_cbranch_scc1 L_A_GOK
        """)
        if self.o.get('w1dyn', 1):
            e('s_cmp_eq_u32 s9, 0\ns_cbranch_scc1 L_A_G2\ns_mov_b32 s9, 0')
            for k in range(n1, 5): w1dma(k, rA)
            e('L_A_G2:')
        e('s_sub_u32 s8, s8, 1\ns_cbranch_scc0 L_A_G\nL_A_GOK:')
        self.stamp('A.gate')
        e(f"""
        s_and_b32 s{s0}, s{sW}, 1
        s_lshl_b32 s{s0}, s{s0}, 8
        s_lshr_b32 s{s1}, s{sW}, 1
        s_add_u32 s{s0}, s{s0}, s{s1}
        s_lshl_b32 s{s0}, s{s0}, 13
        s_lshl_b32 s{s1}, s{sW}, 10
        """)
        for k in range(8):
            e(f's_add_u32 m0, s{s1}, {WUV+k*4096}')
            e(f'buffer_load_dwordx4 v62, {srd(rC)}, s{s0} offen nt lds')
            if k < 7: e(f's_add_u32 s{s0}, s{s0}, 16384')
        e('s_cmp_eq_u32 s9, 0\ns_cbranch_scc1 L_A_NOW1')
        for k in range(n1, 5): w1dma(k, rA)
        e('L_A_NOW1:')
        e('v_min_u32 v14, 92, v4')
        if self.o.get('hcpre', 1): e(f'buffer_load_dword v255, v102, {srd(rWS)}, s{sLOC} offen')
        e(f'L_A_POL:\nglobal_load_dword v15, v14, s[{pDBG}:{pDBG+1}] sc1\ns_waitcnt vmcnt(0)')
        for x in self.pol_ops(15, 8): e(x)
        e('s_cbranch_vccz L_A_POLOK'); self.timeout(); e('s_branch L_A_POL\nL_A_POLOK:')
        e(f"""
        s_and_b32 s12, s{sX8}, 3
        s_lshr_b32 s12, s11, s12
        s_and_b32 s12, s12, 1
        s_lshl_b32 s12, s12, 13
        s_xor_b32 s67, s67, s9
        s_xor_b32 s67, s67, s12
        s_cmp_lt_u32 s{sW}, 2
        s_cselect_b32 s9, s9, s10
        s_xor_b32 s9, s9, s12
        s_xor_b32 s12, s12, s8
        s_xor_b32 s69, s69, s9
        s_xor_b32 s68, s68, s12
        s_xor_b32 s77, s77, s12
        v_and_b32 v40, s77, v40
        v_xor_b32 v46, v46, v40
        v_xor_b32 v47, v47, v40
        v_xor_b32 v43, s12, v43
        v_bfe_u32 v12, v41, 7, 2
        v_bfe_u32 v12, s11, v12, 1
        v_lshlrev_b32 v12, 13, v12
        v_xor_b32 v12, s8, v12
        v_xor_b32 v41, v12, v41
        v_bfe_u32 v12, v51, 7, 2
        v_bfe_u32 v12, s11, v12, 1
        v_lshlrev_b32 v12, 13, v12
        v_xor_b32 v12, s8, v12
        s_cmp_ge_u32 s{sG}, 27
        s_cselect_b32 s9, s12, 0
        s_cselect_b32 s10, 0, -1
        s_xor_b32 s78, s78, s9
        v_and_b32 v12, s10, v12
        v_xor_b32 v51, v12, v51
        v_mov_b32 v12, -1
        v_mov_b32 v13, -1
        v_mov_b32 v14, -1
        v_mov_b32 v15, -1
        buffer_store_dwordx4 v[12:15], v41, {srd(rWS)}, 0 offen sc1
        """)
        e('s_branch L_A3\n;SEG A3\nL_A3:')
        e('s_barrier')
        self.stamp('A.land')
        for s in range(4):
            for T in range(2):
                for q in range(2): e(f'ds_read_b64_tr_b16 {a((s*2+T)*4+2*q,2)}, v{56+T} offset:{s*8192+q*1024}')
        e(f'buffer_load_dwordx4 v[236:239], v20, {srd(rWS)}, s68 offen sc1')
        vC0, vC1, vB1, vS1 = 192, 196, 200, 204
        for dst,src in [(vC0,16),(vC1,18)]:
            e(f'v_lshlrev_b32 v{dst}, 16, v{src}\nv_and_b32 v{dst+1}, 0xffff0000, v{src}\nv_lshlrev_b32 v{dst+2}, 16, v{src+1}\nv_and_b32 v{dst+3}, 0xffff0000, v{src+1}')
        e(f's_cmp_ge_u32 s{sG}, 27\ns_cbranch_scc1 L_A_NOF2')
        for s in range(6):
            for q in range(2): e(f'ds_read_b64_tr_b16 {a(32+s*4+2*q,2)}, v{52 if s < 4 else 42} offset:{s*1024+q*512}')
        e(f'v_lshlrev_b32 v{vB1}, 16, v58\nv_and_b32 v{vB1+1}, 0xffff0000, v58\nv_lshlrev_b32 v{vB1+2}, 16, v59\nv_and_b32 v{vB1+3}, 0xffff0000, v59')
        e(f's_cmp_lt_u32 s{sW}, 2\ns_cselect_b32 s{s0}, 0x3f803f80, 0')
        for r in range(4): e(f'v_mov_b32 v{208+r}, 0x3f803f80\nv_mov_b32 v{212+r}, s{s0}')
        e('s_waitcnt lgkmcnt(0)')
        for s in range(6):
            e(f'v_mfma_f32_16x16x32_bf16 {v(vS1,4)}, {a(32+s*4,4)}, {v(208 if s < 4 else 212,4)}, ' + ('0' if s == 0 else v(vS1,4)))
        e(f'ds_write_b128 v45, {v(vS1,4)}\ns_waitcnt lgkmcnt(0)\ns_barrier')
        for w in range(4): e(f'ds_read_b128 {v(208+4*w,4)}, v55 offset:{64*w}')
        e('s_waitcnt lgkmcnt(0)')
        for i in range(2): e(f'v_pk_add_f32 {v(208+2*i,2)}, {v(208+2*i,2)}, {v(212+2*i,2)}\nv_pk_add_f32 {v(216+2*i,2)}, {v(216+2*i,2)}, {v(220+2*i,2)}')
        for i in range(2): e(f'v_pk_add_f32 {v(vS1+2*i,2)}, {v(208+2*i,2)}, {v(216+2*i,2)}')
        e('L_A_NOF2:')
        e('s_waitcnt lgkmcnt(0)')
        self.stamp('A.w2rdy')
        def rl_(k): e(f'buffer_load_dwordx4 {v(236+4*k,4)}, v20, {srd(rWS)}, s68 offen sc1')
        def rc_(k):
            e(f'v_cmp_ne_u64 vcc, s[{sT0}:{sT1}], {v(238+4*k,2)}\nv_mov_b32 v64, v{236+4*k}\nv_mov_b32 v65, v{237+4*k}\ns_and_b64 vcc, vcc, s[70:71]')
        self.ppoll('L_A_REC', self.o.get('nrec',2), 1, rl_, rc_, vregs=(20,), pre_issued=1)
        vD = 128; vAF = 160
        if self.stamps and 'A.rec1' in self.o.get('want', []):
            k = len(self.slots['A']); e(f's_waitcnt lgkmcnt(0)\ns_cmp_lg_u32 s{sSTAMP+2*k}, 0\ns_cbranch_scc1 L_R1'); self.stamp('A.rec1'); e('L_R1:')
        if self.o.get('recbar'): e('s_barrier')
        dd = self.o.get('ddelay', [0,0])
        if dd[0]: e(f's_sleep {dd[0]}')
        if dd[1]: e(f's_cmp_lt_u32 s{sX8}, 4\ns_cbranch_scc1 L_A_NOD\ns_sleep {dd[1]}\nL_A_NOD:')
        def dloads():
            e(f's_mov_b32 s{sTMP}, s69')
            for i in range(8):
                e(f'buffer_load_dwordx4 {v(vD+4*i,4)}, v22, {srd(rWS)}, s{sTMP} offen sc1')
                if i < 7: e(f's_add_u32 s{sTMP}, s{sTMP}, 32768')
            e(f'buffer_load_dword v67, v26, {srd(rWS)}, s67 offen sc1')
        dloads()
        self.stamp('A.rec')
        e('v_mov_b32 v72, v64')
        self.allred('v_max_f32', 72, 74, 3)
        e('v_sub_f32 v64, v64, v72\nv_exp_f32 v64, v64\nv_cvt_pk_bf16_f32 v64, v64, v64\nv_and_b32 v73, 0xffff0000, v64\nv_mul_f32 v73, v73, v65')
        for i in range(8):
            for r in range(4): e(f'v_and_b32_dpp v{vAF+4*i+r}, v64, v{vMk+r} row_newbcast:{i} {DPP}')
        self.allred('v_add_f32', 73, 74, 3)
        e('ds_write2_b32 v21, v72, v73 offset0:0 offset1:4')
        e('L_A_DATA:')
        e('v_sub_u32 v66, 0, v25')
        for i in range(8):
            e(f's_waitcnt vmcnt({8-i})')
            e(f'v_mfma_f32_16x16x32_bf16 v[76:79], {v(vAF+4*i,4)}, {v(vD+4*i,4)}, ' + ('0' if i==0 else 'v[76:79]'))
            e(f'v_add3_u32 v66, v66, v{vD+4*i}, v{vD+4*i+1}\nv_add3_u32 v66, v66, v{vD+4*i+2}, v{vD+4*i+3}')
        e('s_waitcnt vmcnt(0)\nv_add_u32 v66, v66, v67')
        self.stamp('A.data')
        e(f'v_add_u32_dpp v66, v66, v66 quad_perm:[1,0,3,2] {DPP}')
        e(f'v_cvt_pk_bf16_f32 v74, v76, v77\nv_cvt_pk_bf16_f32 v75, v78, v79\nv_add_u32_dpp v66, v66, v66 quad_perm:[2,3,0,1] {DPP}\nds_write_b64 v23, v[74:75]')
        e(f'v_add_u32_dpp v66, v66, v66 row_half_mirror {DPP}\nv_add_u32_dpp v66, v66, v66 row_mirror {DPP}\nv_cmp_ne_u32 vcc, 0, v66\ns_cbranch_vccz L_A_DOK')
        self.timeout()
        if self.stamps: e('s_add_u32 s7, s7, 1')
        e('s_mov_b64 exec, vcc')
        dloads()
        e('s_mov_b64 exec, -1\ns_branch L_A_DATA\nL_A_DOK:')
        e('s_waitcnt lgkmcnt(0)\ns_barrier')
        self.stamp('A.clbar')
        e(f'ds_read_b128 v[80:83], v24\nds_read_b128 v[64:67], v27\nds_read_b128 v[84:87], v24 offset:64\nds_read_b128 v[68:71], v27 offset:16\nds_read_b128 v[88:91], v24 offset:128\nds_read_b128 v[92:95], v24 offset:192')
        fac = [[], ['s_waitcnt lgkmcnt(4)', 'v_max3_f32 v72, v64, v65, v66', 'v_max_f32 v72, v72, v67'], ['v_sub_f32 v64, v64, v72', 'v_sub_f32 v65, v65, v72'], ['v_sub_f32 v66, v66, v72', 'v_sub_f32 v67, v67, v72'],
               ['v_exp_f32 v64, v64'], ['v_exp_f32 v65, v65'], ['v_exp_f32 v66, v66'],
               ['v_exp_f32 v67, v67', 'v_mul_f32 v72, v64, v68', 'v_fmac_f32 v72, v65, v69', 'v_fmac_f32 v72, v66, v70', 'v_fmac_f32 v72, v67, v71', 'v_rcp_f32 v72, v72']]
        for s in range(4):
            e(f's_waitcnt lgkmcnt({[5,3,1,0][s]})')
            for T in range(2):
                e(f'v_mfma_f32_16x16x32_bf16 {v(104+4*T,4)}, {v(80+4*s,4)}, {a((s*2+T)*4,4)}, ' + ('0' if s==0 else v(104+4*T,4)))
                for x in fac[2*s+T]: e(x)
        e('v_pk_mul_f32 v[104:105], v[104:105], v[64:65]\nv_pk_mul_f32 v[108:109], v[108:109], v[64:65]')
        e('v_pk_fma_f32 v[104:105], v[106:107], v[66:67], v[104:105]\nv_pk_fma_f32 v[108:109], v[110:111], v[66:67], v[108:109]')
        e('v_add_f32 v104, v104, v105\nv_add_f32 v108, v108, v109\nv_mul_f32 v104, v104, v72\nv_mul_f32 v108, v108, v72')
        e('v_cvt_pk_bf16_f32 v98, v104, v108')
        self.publ('v[98:99]', 102); self.pubg('v[98:99]', 102)
        self.stamp('A.hc')
        e(f's_cmp_ge_u32 s{sG}, 27\ns_cbranch_scc1 L_FIN')
        def w2dma():
            for k in range(5):
                e(f's_add_u32 m0, s{s1}, {W2+k*4096}\ns_add_u32 s{s0}, s{s1}, {k*4096}')
                e(f'buffer_load_dwordx4 v{224+k}, {srd(rB)}, s{s0} offen nt lds')
        e(f's_lshl_b32 s{s1}, s{sW}, 10')
        w2dma()
        cl_ = self.o.get('clean', 0)
        def clean1():
            e(f'buffer_store_dwordx4 v[104:107], v245, {srd(rWS)}, s{sLOC} offen sc1\nbuffer_store_dword v104, v246, {srd(rWS)}, s{sLOC} offen sc1\nbuffer_store_dwordx2 v[104:105], v247, {srd(rWS)}, s{sLOC} offen sc1')
        if cl_: e(f'v_and_b32 v12, s{sLOC}, v20\nv_cmp_ne_u32 vcc, 0, v12\nv_cndmask_b32 v249, v9, v20, vcc\ns_mov_b32 s78, s68')
        if cl_ & 1: clean1()
        for P in range(5):
            e(f's_mov_b32 s{68+2*P}, {0x00010001<<P}\ns_mov_b32 s{69+2*P}, {0x00010001<<P}')
        self.lmask((46,47))
        def hl(k):
            b = 152+12*k
            e(f'buffer_load_dwordx4 {v(b,4)}, v46, {srd(rWS)}, s79 offen sc1')
            e(f'buffer_load_dwordx4 {v(b+4,4)}, v46, {srd(rWS)}, s79 offen offset:128 sc1')
            e(f'buffer_load_dwordx4 {v(b+8,4)}, v47, {srd(rWS)}, s79 offen offset:256 sc1')
        def hck(k):
            b = 152+12*k
            e(f'v_mfma_f32_16x16x32_bf16 v[76:79], {v(vI,4)}, {v(b,4)}, {v(vC0,4)}')
            e(f'v_mfma_f32_16x16x32_bf16 v[76:79], {v(vI+4,4)}, {v(b+4,4)}, v[76:79]')
            e(f'v_mfma_f32_16x16x32_bf16 v[80:83], {v(vI,4)}, {v(b+8,4)}, {v(vC1,4)}')
            self.maxchain(12, range(b, b+12))
            e('v_cmp_eq_u32 vcc, -1, v12')
        e('s_waitcnt vmcnt(0)')
        self.stamp('F.land')
        hl(0)
        e('s_barrier')
        for P in range(5):
            for hb in range(2): e(f'ds_read_b64_tr_b16 {a(56+P*4+2*hb,2)}, v{229+P} offset:{hb*8}')
        e('s_waitcnt lgkmcnt(0)')
        self.stamp('F.prep')
        self.ppoll('L_F_POLL', self.o.get('nh3',2), 3, hl, hck, vregs=(46,47), pre_issued=1)
        self.stamp('F.h3b')
        vB = 128
        for r in range(4): e(f'v_add_f32_dpp v{76+r}, v{76+r}, v{76+r} row_ror:8 {DPP}')
        e('v_cvt_pk_bf16_f32 v84, v76, v77\nv_cvt_pk_bf16_f32 v85, v78, v79\nds_write_b64 v48, v[84:85]')
        for s in range(4): e(f'ds_read_b128 {v(vB+4*s,4)}, v50 offset:{s*64}')
        for r in range(4): e(f'v_add_f32_dpp v{80+r}, v{80+r}, v{80+r} row_ror:8 {DPP}')
        e('v_cvt_pk_bf16_f32 v86, v80, v81\nv_cvt_pk_bf16_f32 v87, v82, v83\nds_write_b64 v49, v[86:87]')
        for s in range(4,6): e(f'ds_read_b128 {v(vB+4*s,4)}, v50 offset:{s*64}')
        e('v_pk_add_f32 v[88:89], v[76:77], v[78:79]\nv_pk_mul_f32 v[92:93], v[76:77], v[76:77]\nv_pk_add_f32 v[90:91], v[80:81], v[82:83]\nv_pk_fma_f32 v[92:93], v[78:79], v[78:79], v[92:93]')
        e('v_pk_add_f32 v[88:89], v[88:89], v[90:91]\nv_pk_fma_f32 v[92:93], v[80:81], v[80:81], v[92:93]\nv_pk_fma_f32 v[92:93], v[82:83], v[82:83], v[92:93]')
        st = [['v_add_f32 v88, v88, v89', 'v_add_f32 v92, v92, v93'], ['s_nop 0', 'v_permlane32_swap_b32 v88, v92', 'v_add_f32 v88, v88, v92'], ['v_mov_b32 v92, v88'],
              ['s_nop 0', 'v_permlane16_swap_b32 v88, v92', 'v_add_f32 v88, v88, v92'], ['s_nop 0', f'v_add_f32_dpp v88, v88, v88 quad_perm:[1,0,3,2] {DPP}'],
              [f'v_add_f32_dpp v88, v88, v88 quad_perm:[2,3,0,1] {DPP}', f'v_add_f32_dpp v88, v88, v88 row_half_mirror {DPP}', 'v_mul_f32 v88, 0x3acccccd, v88', 'ds_write_b32 v54, v88']]
        for s in range(6):
            e(f's_waitcnt lgkmcnt({[6,5,4,3,1,0][s]})')
            e(f'v_mfma_f32_16x16x32_bf16 v[96:99], {a(32+s*4,4)}, {v(vB+4*s,4)}, ' + ('0' if s == 0 else 'v[96:99]'))
            for x in st[s]: e(x)
        e('ds_write_b128 v45, v[96:99]\ns_waitcnt lgkmcnt(0)\ns_barrier')
        self.stamp('F.abar')
        e('ds_read_b128 v[100:103], v44\nds_read_b128 v[104:107], v44 offset:16')
        for w in range(4): e(f'ds_read_b128 {v(128+4*w,4)}, v55 offset:{64*w}')
        e(f"""
        s_waitcnt lgkmcnt(4)
        v_pk_add_f32 v[100:101], v[100:101], v[102:103]
        v_pk_add_f32 v[104:105], v[104:105], v[106:107]
        v_add_f32 v100, v100, v101
        v_add_f32 v104, v104, v105
        v_fma_f32 v104, -v100, v100, v104
        v_max_f32 v104, 0, v104
        v_add_f32 v104, 0x3727c5ac, v104
        v_rsq_f32 v104, v104
        s_waitcnt lgkmcnt(0)
        v_pk_fma_f32 v[128:129], {v(vS1,2)}, v[100:101], v[128:129] op_sel_hi:[1,0,1] neg_lo:[0,1,0] neg_hi:[0,1,0]
        v_pk_fma_f32 v[130:131], {v(vS1+2,2)}, v[100:101], v[130:131] op_sel_hi:[1,0,1] neg_lo:[0,1,0] neg_hi:[0,1,0]
        v_pk_add_f32 v[136:137], v[136:137], v[140:141]
        v_pk_add_f32 v[138:139], v[138:139], v[142:143]
        v_pk_add_f32 v[128:129], v[128:129], v[132:133]
        v_pk_add_f32 v[130:131], v[130:131], v[134:135]
        v_pk_add_f32 v[128:129], v[128:129], v[136:137]
        v_pk_add_f32 v[130:131], v[130:131], v[138:139]
        v_pk_fma_f32 v[128:129], v[128:129], v[104:105], {v(vB1,2)} op_sel_hi:[1,0,1]
        v_pk_fma_f32 v[130:131], v[130:131], v[104:105], {v(vB1+2,2)} op_sel_hi:[1,0,1]
        """)
        for r in range(4): e(f'v_max_f32 v{128+r}, 0, v{128+r}')
        e('v_pk_mul_f32 v[128:129], v[128:129], v[128:129]\nv_pk_mul_f32 v[130:131], v[130:131], v[130:131]')
        e('v_cvt_pk_bf16_f32 v108, v128, v129\nv_cvt_pk_bf16_f32 v109, v130, v131')
        self.stamp('F.f1')
        def cm(P): e(f'v_cndmask_b32 v{110+2*P}, 0, v108, s[{68+2*P}:{69+2*P}]\nv_cndmask_b32 v{111+2*P}, 0, v109, s[{68+2*P}:{69+2*P}]')
        cm(0); cm(1)
        for P in range(5):
            for hb in range(2):
                e(f'v_mfma_f32_16x16x16_bf16 {v(120+4*hb,4)}, {a(56+P*4+2*hb,2)}, {v(110+2*P,2)}, ' + ('0' if P == 0 else v(120+4*hb,4)))
                if hb == 0 and P+2 < 5: cm(P+2)
        for i in range(4): e(f'v_cvt_pk_bf16_f32 v{64+i}, v{120+2*i}, v{121+2*i}')
        for i in range(4): e(f'v_min_u32 v{64+i}, -2, v{64+i}')
        self.pubg('v[64:67]', 51)
        if self.o.get('hloc',1): self.publ('v[64:67]', 43)
        self.stamp('F.end')
        if cl_ & 4: clean1()
        if cl_ & 2: e(f'buffer_store_dwordx2 v[104:105], v248, {srd(rWS)}, s{sLOC} offen sc1\nbuffer_store_dwordx4 v[104:107], v249, {srd(rWS)}, s78 offen sc1')
        e('s_branch L_END')
        e(';SEG FIN\nL_FIN:')
        e(f's_cmp_ge_u32 s{sK}, 10\ns_cbranch_scc1 L_END')
        self.mk_srd(rA, pOUT, None, 1280)
        if self.o.get('vw', 0): e(f'buffer_load_dword v255, v53, {srd(rA)}, s{sB} offen')
        e(f's_cmp_eq_u32 s{sW}, 0\ns_cselect_b32 s{s1}, -1, 0')
        for r in range(4): e(f'v_and_b32 v{32+r}, s{s1}, v{vI+r}')
        e(f'v_pk_add_f32 {v(vC0,2)}, {v(vC0,2)}, {v(vC1,2)}\nv_pk_add_f32 {v(vC0+2,2)}, {v(vC0+2,2)}, {v(vC1+2,2)}\nv_mov_b32 v45, s{sT0}')
        self.lmask((46,))
        e('L_R_P1:')
        e(f'buffer_load_dwordx4 v[64:67], v46, {srd(rWS)}, s79 offen sc1\ns_waitcnt vmcnt(0)')
        self.maxchain(12, range(64,68))
        e('v_cmp_eq_u32 vcc, -1, v12')
        self.retry('L_R_P1', sleep=1, vregs=(46,))
        self.stamp('R.h3b')
        self.lmask((48,49,50,51))
        e(f'v_mfma_f32_16x16x32_bf16 {v(vC0,4)}, v[32:35], v[64:67], {v(vC0,4)}')
        if self.o.get('rdelay'): e(f's_sleep {self.o["rdelay"]}')
        def r4l(k):
            for i in range(4): e(f'buffer_load_dwordx4 {v(208+16*k+4*i,4)}, v{48+i}, {srd(rWS)}, s78 offen sc1')
        def r4c(k):
            for i in range(4): e(f'v_mfma_f32_16x16x32_bf16 v[104:107], {v(vI,4)}, {v(208+16*k+4*i,4)}, ' + (v(vC0,4) if i == 0 else 'v[104:107]'))
            self.maxchain(12, range(208+16*k,224+16*k))
            e('v_cmp_eq_u32 vcc, -1, v12')
        self.ppoll('L_R_P2', self.o.get('nh4',2), 4, r4l, r4c, vregs=(48,49,50,51))
        self.stamp('R.h4')
        for r in range(4): e(f'v_add_f32_dpp v{104+r}, v{104+r}, v{104+r} row_ror:8 {DPP}')
        e(f'ds_write_b128 v52, v[104:107]\ns_waitcnt lgkmcnt(0)\ns_barrier')
        e(f's_cmp_lg_u32 s{sW}, 0\ns_cbranch_scc1 L_END')
        self.red_final(RED, 128, 54, False)
        e(f'buffer_store_dwordx2 v[128:129], v53, {srd(rA)}, s{sB} offen {self.o.get("outflag","sc1")}')
        e(f's_cmp_lg_u32 s{sK}, 0\ns_cbranch_scc1 L_END2')
        e(f'buffer_store_dword v45, v55, {srd(rWS)}, 0 offen offset:{EPOCH} sc1')
        if self.o.get('ampskew'):
            a_, b_ = self.o['ampskew']
            e(f's_load_dwordx8 s[8:15], s[{pDBG}:{pDBG+1}], 128 glc\ns_waitcnt lgkmcnt(0)\ns_sub_u32 s60, s{8+a_}, s{8+b_}\ns_lshl_b32 s60, s60, 4\ns_add_u32 s60, s60, 4000\ns_add_u32 s60, s60, s{sSTAMP}')
            e('L_AMPS:\ns_memrealtime s[62:63]\ns_waitcnt lgkmcnt(0)\ns_sub_u32 s61, s62, s60\ns_cmp_lt_i32 s61, 0\ns_cbranch_scc1 L_AMPS')
        if 'amp' in self.o:
            self.stamp('R.end')
            k = self.idx[self.o['amp']]; ke = self.idx['R.end']
            e(f's_waitcnt lgkmcnt(0)\ns_sub_u32 s60, s{sSTAMP+2*k}, s{sSTAMP}\ns_lshl_b32 s60, s60, 2\ns_add_u32 s60, s60, s{sSTAMP+2*ke}')
            e('L_AMP:\ns_memrealtime s[62:63]\ns_waitcnt lgkmcnt(0)\ns_sub_u32 s61, s62, s60\ns_cmp_lt_i32 s61, 0\ns_cbranch_scc1 L_AMP')
        e('L_END2:')
        if 'amp' not in self.o: self.stamp('R.end')
        e('s_branch L_END')

    def role_T(self):
        e = self.e
        MX = QB; LX = QB+512; PB = QB+1024
        WO = 0; HB = 65536; EX = 11264
        sT, s0, s1, s2_ = 72, 63, 64, 65
        e(';SEG T0\nL_T:')
        if self.o.get('noT'): e('s_branch L_END')
        e(f"""
        s_lshl_b32 s{sT}, s{sX8}, 4
        s_add_u32 s{sT}, s{sT}, s{sR}
        """)
        tsh, wsh, istr = self.kmap()
        self.kbase(s0, sT, tsh)
        self.mk_srd(rB, pCKV, s0, 16777216)
        e(f'v_lshl_add_u32 v52, v2, 10, v5\nv_xor_b32 v53, 0x80, v52\ns_lshl_b32 s68, s{sW}, {wsh}\ns_lshl_b32 s69, s{sW}, 13')
        stages = {0: [((0,1),(c,)) for c in range(4)], 1: [((0,),(0,1,2,3)), ((1,),(0,1,2,3))], 2: [((0,),(0,1,2,3)), ((1,),(0,1)), ((1,),(2,3))],
                  3: [((0,),(0,1)), ((0,),(2,3)), ((1,),(0,1)), ((1,),(2,3))], 4: [((0,1),(0,1)), ((0,),(2,3)), ((1,),(2,3))]}[self.o.get('sorder', 4)]
        seq = []; send = []
        brot = self.o.get('brot', 1)
        if brot == 1: e(f's_lshl1_add_u32 s{s0}, s{sW}, s{sR}\ns_and_b32 s{s0}, s{s0}, 7\ns_lshl_b32 s{s0}, s{s0}, 12\ns_or_b32 s68, s68, s{s0}')
        if brot == 2: e(f's_lshl_b32 s{s0}, s{sW}, 13\ns_or_b32 s68, s68, s{s0}')
        if brot == 3: e(f's_and_b32 s{s0}, s{sR}, 7\ns_lshl_b32 s{s0}, s{s0}, 12\ns_or_b32 s68, s68, s{s0}')
        for kts, cs_ in stages:
            seq += [(c, i) for kt in kts for i in range(4*kt, 4*kt+4) for c in cs_]; send.append(len(seq)-1)
        def dma(n):
            c, i = seq[n]
            e(f's_add_u32 m0, s69, {c*32768+i*1024}\ns_{"xor_b32" if brot else "add_u32"} s{sTMP}, s68, {self.ioff(i,istr)+c*256}')
            e(f'buffer_load_dwordx4 v{52+(i&1)}, {srd(rB)}, s{sTMP} offen nt lds')
        n0 = self.o.get('n0', 0)
        for n in range(n0): dma(n)
        e('s_branch L_T1\n;SEG T1\nL_T1:')
        e(f"""
        s_lshl_b32 s{s0}, s{sT}, 9
        s_add_u32 s{s0}, s{s0}, {QP+LOC}
        s_and_b32 s{s1}, s{sT}, 0x60
        s_add_u32 s{s1}, s{s1}, s{sT}
        s_lshl_b32 s{s1}, s{s1}, 8
        s_add_u32 s{s1}, s{s1}, {QLB+LOC}
        s_cmp_eq_u32 s{sW}, 2
        s_cselect_b32 s{s0}, s{s1}, s{s0}
        s_lshl_b32 s{s1}, s{sX8}, 9
        s_add_u32 s{s1}, s{s1}, {QCS+LOC}
        s_cmp_eq_u32 s{sW}, 3
        s_cselect_b32 s{s0}, s{s1}, s{s0}
        s_cmp_eq_u32 s{sW}, 0
        s_cselect_b32 s66, {WSSZ}, s{s0}
        v_lshlrev_b32 v12, 7, v0
        v_cmp_gt_u32 vcc, 4, v0
        v_cndmask_b32 v12, v9, v12, vcc
        """)
        e(f's_lshl_b32 s62, s{sW}, 13\ns_add_u32 s62, s62, {QB}')
        self.ws_srd()
        e(f'buffer_load_dword v255, v12, {srd(rWS)}, s66 offen')
        e(f"""
        s_sub_u32 s24, s{sR}, 11
        s_cmp_eq_u32 s{sW}, 3
        s_cselect_b32 s24, s24, -1
        s_cmp_ge_u32 s24, 3
        s_cbranch_scc1 L_T_NOV1
        s_lshl3_add_u32 s27, s24, s{sX8}
        s_lshl_b32 s27, s27, 2
        s_lshl_b32 s25, s24, 21
        s_mul_i32 s26, s{sX8}, 896
        s_add_u32 s25, s25, s26
        s_add_u32 s25, s25, {PROBE}
        s_add_u32 s26, s25, 8192
        s_load_dword s28, s[{pWS}:{pWS+1}], s25 glc
        s_load_dword s28, s[{pWS}:{pWS+1}], s26 glc
        L_T_NOV1:
        """)
        nuk = 0
        if nuk:
            self.wuk_setup(sR, rA)
            e(f's_mov_b32 s68, {(8-nuk)*32768}')
            for k in range(8-nuk, 8): self.wuk_dma(k, rA, QB)
        if self.o.get('ampskew'):
            e(f's_or_b32 s14, s{sR}, s{sW}\ns_cbranch_scc1 L_NOSK\ns_getreg_b32 s14, hwreg(HW_REG_XCC_ID, 0, 3)\ns_lshl_b32 s14, s14, 2\ns_add_u32 s14, s14, 128\ns_mov_b32 s16, s{sSTAMP}\ns_atomic_add s16, s[{pDBG}:{pDBG+1}], s14\nL_NOSK:')
        if self.o.get('cthr'): e('s_getreg_b32 s15, hwreg(HW_REG_XCC_ID, 0, 3)')
        thr = dict(self.o.get('t_throttle', []))
        vm = [('d',n) for n in range(n0)] + ['pt']
        vKa, vQa, vVa = 24, 28, 32
        vPS, vRS, vMW, vMR, vPW, vPR, vQC, vLR = 40, 41, 42, 43, 44, 45, 46, 47
        vQS = 120
        pre = []
        pre.append(f'v_and_b32 v12, 7, v1\nv_lshlrev_b32 v12, 5, v12\nv_lshlrev_b32 v13, 10, v1\nv_lshlrev_b32 v14, 8, v1\nv_add_u32 v14, s69, v14\nv_add_u32 v13, {QB}, v13')
        for s3 in range(4):
            pre.append(f'v_add_u32 v15, {s3*64}, v11\nv_xor_b32 v15, v15, v12\nv_add_u32 v{vKa+s3}, v14, v15\nv_add_u32 v{vQa+s3}, v13, v15\nv_add_u32 v{56+s3}, 0x10000, v{vKa+s3}')
        pre.append(f"""
        v_lshrrev_b32 v13, 2, v0
        v_and_b32 v15, 7, v13
        v_lshlrev_b32 v13, 8, v13
        v_and_b32 v12, 3, v1
        v_lshl_add_u32 v13, v12, 3, v13
        s_lshl_b32 s{s2_}, s{sW}, 1
        v_xor_b32 v15, s{s2_}, v15
        v_lshl_add_u32 v{vVa}, v15, 5, v13
        v_xor_b32 v15, 1, v15
        v_lshl_add_u32 v{vVa+1}, v15, 5, v13
        v_add_u32 v{vVa+2}, 0x10000, v{vVa}
        v_add_u32 v{vVa+3}, 0x10000, v{vVa+1}
        """)
        for i in range(8): pre.append(f'v_xor_b32 v{vQS+i}, {(i<<5) + (i&3)*1024}, v3')
        pre.append(f"""
        v_add_u32 v15, {EX}, v3
        s_lshl_b32 s{s0}, s{sW}, 2
        v_add_u32 v14, s{s0}, v15
        v_mov_b32 v10, v14
        v_mov_b32 v8, v15
        v_lshrrev_b32 v12, 5, v0
        v_and_b32 v13, 1, v0
        v_lshlrev_b32 v13, 1, v13
        v_lshl_add_u32 v12, v12, 2, v13
        v_bfe_u32 v13, v0, 1, 4
        v_and_b32 v14, 7, v13
        v_lshlrev_b32 v14, 3, v14
        v_lshl_add_u32 v13, v13, 6, v14
        v_lshlrev_b32 v14, 5, v12
        v_xor_b32 v13, v13, v14
        v_lshl_add_u32 v13, v12, 10, v13
        v_add_u32 v6, s62, v13
        v_xor_b32 v7, 32, v6
        s_lshl_b32 s{s2_}, s{sT}, 15
        s_lshr_b32 s{s0}, s{sW}, 1
        s_lshl_b32 s{s0}, s{s0}, 14
        s_add_u32 s{s2_}, s{s2_}, s{s0}
        s_and_b32 s{s0}, s{sW}, 1
        s_lshl_b32 s{s0}, s{s0}, 12
        s_add_u32 s{s2_}, s{s2_}, s{s0}
        s_add_u32 s{s2_}, s{s2_}, {PART}
        v_add_u32 v{vPS}, s{s2_}, v3
        s_and_b32 s75, s{sT}, 0x60
        s_add_u32 s75, s75, s{sT}
        s_lshl2_add_u32 s75, s75, s{sW}
        s_lshl_b32 s75, s75, 6
        s_add_u32 s75, s75, {CS}
        v_min_u32 v68, 92, v4
        s_lshr_b32 s{s2_}, s{sT}, 3
        s_lshl_b32 s{s2_}, s{s2_}, 3
        s_add_u32 s{s2_}, s{s2_}, s{sT}
        s_lshl2_add_u32 s{s2_}, s{s2_}, s{sW}
        s_lshl_b32 s{s2_}, s{s2_}, 8
        s_add_u32 s{s2_}, s{s2_}, {REC}
        v_and_b32 v13, 1, v1
        v_lshrrev_b32 v12, 2, v0
        v_lshl_add_u32 v12, v13, 4, v12
        v_lshlrev_b32 v12, 4, v12
        v_add_u32 v{vLR}, {MX}, v12
        v_and_b32 v12, 0xff, v12
        v_lshl_add_u32 v12, v13, 13, v12
        v_add_u32 v12, s{s2_}, v12
        v_and_b32 v13, 2, v1
        v_cmp_eq_u32 vcc, 0, v13
        v_cndmask_b32 v{vRS}, v9, v12, vcc
        v_bfe_u32 v13, v{vLR}, 6, 3
        v_cmp_eq_u32 vcc, s{sX8}, v13
        v_cndmask_b32 v4, v9, v{vRS}, vcc
        v_and_b32 v13, 3, v1
        v_cmp_eq_u32 vcc, 0, v13
        v_cndmask_b32 v5, v9, v0, vcc
        v_lshrrev_b32 v12, 1, v2
        v_lshl_add_u32 v12, v12, 4, v1
        v_lshlrev_b32 v12, 4, v12
        s_lshl_b32 s{s2_}, s{sW}, 2
        s_add_u32 s{s2_}, s{s2_}, {MX}
        v_add_u32 v{vMW}, s{s2_}, v12
        v_lshlrev_b32 v12, 4, v1
        v_add_u32 v{vMR}, {MX}, v12
        v_add_u32 v22, s{s2_}, v12
        v_mov_b32 v38, 0x3e0293ee
        s_lshl_b32 s{s2_}, s{sW}, 11
        s_add_u32 s{s2_}, s{s2_}, {PB}
        v_add_u32 v{vPW}, s{s2_}, v3
        v_add_u32 v{vPR}, {PB}, v3
        s_and_b32 s71, s{sX8}, 4
        s_add_u32 s71, s71, s{sX8}
        s_lshl_b32 s71, s71, 11
        s_add_u32 s71, s71, {H3B}
        v_mov_b32 v16, -1
        v_mov_b32 v17, -1
        v_mov_b32 v18, -1
        v_mov_b32 v19, -1
        s_and_b32 s{s0}, s{sW}, 1
        s_mul_i32 s{s0}, s{s0}, 640
        s_add_u32 s71, s71, s{s0}
        s_lshr_b32 s{s0}, s{sW}, 1
        s_lshl_b32 s{s0}, s{s0}, 13
        s_add_u32 s71, s71, s{s0}
        s_and_b32 s{s0}, s{sR}, 1
        s_lshl_b32 s{s0}, s{s0}, 20
        s_add_u32 s71, s71, s{s0}
        s_cmp_ge_u32 s{sR}, 14
        s_cselect_b32 s{s0}, 40, 0
        v_cmp_gt_u32 vcc, s{s0}, v0
        v_cndmask_b32 v20, v9, v3, vcc
        v_lshrrev_b32 v12, 3, v0
        v_lshrrev_b32 v13, 1, v12
        v_and_b32 v14, 1, v12
        v_lshl_add_u32 v13, v14, 4, v13
        v_mul_u32_u24 v13, 1280, v13
        v_and_b32 v14, 7, v0
        v_lshlrev_b32 v14, 4, v14
        v_and_b32 v12, 1, v2
        v_lshlrev_b32 v12, 5, v12
        v_xor_b32 v14, v14, v12
        v_add_u32 v36, v13, v14
        v_xor_b32 v14, 64, v14
        v_add_u32 v37, v13, v14
        s_lshl_b32 s73, s{sX8}, 2
        s_add_u32 s73, s73, s{sW}
        s_mul_i32 s73, s73, 163840
        v_mov_b32 v60, {EX+1024}
        s_mov_b32 s61, s{sR}
        s_lshl_b32 s74, s{sW}, 14
        """)
        def qloads():
            e(f'global_load_dword v69, v68, s[{pDBG}:{pDBG+1}] sc1')
            e(f'buffer_load_dwordx4 v[80:83], v{vQC}, {srd(rWS)}, 0 offen sc1')
            for i in range(8):
                e(f's_add_u32 m0, s62, {i*1024}')
                e(f'buffer_load_dwordx4 v{vQS+i}, {srd(rWS)}, s{76+(i>>2)} offen sc1 lds')
        kdone = set()
        def younger(item): return len(vm) - 1 - vm.index(item)
        def kv(st):
            e(f's_waitcnt vmcnt({younger(("d",send[st]))})')
            if st == len(stages)-1: self.stamp('T.ckv')
            kts, cs_ = stages[st]
            for c in cs_:
                for s3 in range(4):
                    for kt in kts:
                        e(f'ds_read_b128 {a(((4*c+s3)*2+kt)*4,4)}, v{(vKa if c < 2 else 56)+s3} offset:{(c&1)*32768+kt*4096}')
            kdone.add(st)
            if tk and st == len(stages)-1: e(f's_waitcnt lgkmcnt({4*len(kts)*len(cs_)})')
            e('s_barrier')
            if tk and st == len(stages)-2:
                assert tp
                e(f's_cmp_lg_u32 s{sW}, 0\ns_cbranch_scc1 L_T_NOTW\nv_mov_b32 v61, s61\nds_write_b32 v60, v61\nL_T_NOTW:')
            if tk and st == len(stages)-1: e('ds_read_b32 v61, v60')
            for c in cs_:
                for ks in range(4):
                    for T2 in range(2):
                        for q in kts:
                            e(f'ds_read_b64_tr_b16 {a(128+(ks*8+2*c+T2)*4+2*q,2)}, v{vVa+T2+2*(c>>1)} offset:{(c&1)*32768+ks*8192+q*4096}')
        tp = []
        tk = self.o.get('ticket', 0)
        def tprep():
            if tp: return
            tp.append(1)
            e('s_waitcnt lgkmcnt(0)')
            self.tags()
            e(f"""
            s_and_b32 s60, s69, 8192
            s_lshl_b32 s76, s{sW}, 14
            s_add_u32 s76, s76, {QLB}
            s_add_u32 s77, s76, 4096
            s_lshl_b32 s{s0}, s{sW}, 1
            s_cmp_eq_u32 s{s0}, s{sX8}
            s_cselect_b32 s{s1}, s{sLOC}, s60
            s_add_u32 s76, s76, s{s1}
            v_mov_b32 v12, s{s1}
            s_add_u32 s{s0}, s{s0}, 1
            s_cmp_eq_u32 s{s0}, s{sX8}
            s_cselect_b32 s{s1}, s{sLOC}, s60
            s_add_u32 s77, s77, s{s1}
            v_mov_b32 v13, s{s1}
            v_cmp_gt_u32 vcc, 32, v0
            v_cndmask_b32 v12, v13, v12, vcc
            """)
            e(f's_lshl_b32 s{s0}, s{sW}, 10\ns_add_u32 s{s0}, s{s0}, {QCS}\nv_add3_u32 v{vQC}, s{s0}, v3, v12')
            e(f's_lshl_b32 s79, s{sT}, 7\ns_add_u32 s79, s79, {GATE}\ns_cmp_eq_u32 s{sW}, 0\ns_cselect_b32 s79, s79, {OOB}\nv_mov_b32 v39, s79\nv_mov_b32 v21, s{sT1}')
        qpos = self.o.get('qpos', 32); npre = max(n0, self.o.get('npre', 2))
        klag = self.o.get('klag', 12)
        for n in range(n0, 33):
            if n == npre:
                for x in pre: e(x)
            if n == npre: e(f's_load_dword s{sE}, s[{pWS}:{pWS+1}], {EPOCH}')
            if n == max(n0, self.o.get('vpos', 6)):
                e('s_cmp_ge_u32 s24, 3\ns_cbranch_scc1 L_T_NOV2\ns_mov_b32 s29, 0\ns_waitcnt lgkmcnt(0)\ns_memtime s[8:9]\ns_waitcnt lgkmcnt(0)')
                ns = self.o.get('nsamp', 1)
                for k in range(ns):
                    e(f's_load_dword s28, s[{pWS}:{pWS+1}], s25 glc\ns_waitcnt lgkmcnt(0)\ns_memtime s[12:13]\ns_waitcnt lgkmcnt(0)')
                    e(f's_load_dword s28, s[{pWS}:{pWS+1}], s26 glc\ns_waitcnt lgkmcnt(0)\ns_sub_u32 s30, s12, s8\ns_memtime s[8:9]\ns_waitcnt lgkmcnt(0)')
                    e(f's_sub_u32 s31, s8, s12\ns_sub_u32 s31, s31, s30\ns_max_i32 s31, s31, -{self.o.get("clip",300)}\ns_min_i32 s31, s31, {self.o.get("clip",300)}\ns_add_u32 s29, s29, s31')
                e(f's_getreg_b32 s31, hwreg(HW_REG_XCC_ID, 2, 1)\ns_sub_u32 s30, 0x1000000, s29\ns_cmp_eq_u32 s31, 0\ns_cselect_b32 s29, s29, s30\ns_add_u32 s29, s29, {BIAS}')
                e(f's_atomic_add s29, s[{pDBG}:{pDBG+1}], s27\nL_T_NOV2:')
            if tk and n == tk:
                e(f's_cmp_lg_u32 s{sW}, 0\ns_cbranch_scc1 L_T_NOTK\ns_lshl_b32 s14, s{sX8}, 4\ns_add_u32 s14, s14, 128\ns_mov_b32 s61, 1\ns_atomic_add s61, s[{pDBG}:{pDBG+1}], s14 glc\nL_T_NOTK:')
            if self.o.get('gate', 4) == 4 and n == self.o.get('gpos', 31):
                tprep(); e(f'buffer_store_dword v21, v39, {srd(rWS)}, 0 offen'); vm.append('gate')
            if n == qpos:
                tprep()
                self.stamp('T.qiss')
                if not self.o.get('noq'): qloads(); vm += [('q',i) for i in range(10)]
            if n < 32:
                dma(n); vm.append(('d',n))
                if n in thr: e(f's_waitcnt vmcnt({thr[n]})')
                for mask, lo, hi, d in self.o.get('cthr', []):
                    if lo <= n <= hi:
                        l = e.newlabel('Lc'); e(f's_bitcmp1_b32 {mask}, s15\ns_cbranch_scc0 {l}\ns_waitcnt vmcnt({d})\n{l}:')
            for c in range(len(stages)-1):
                if c not in kdone and n >= npre and ('d',send[c]) in vm and younger(('d',send[c])) >= klag and (c == 0 or c-1 in kdone): kv(c)
        self.stamp('T.issued')
        e('s_branch L_T2\n;SEG T2\nL_T2:')
        if self.o.get('gate') == 1:
            e(f'buffer_store_dword v21, v39, {srd(rWS)}, 0 offen'); vm.append('gate')
        if self.o.get('tonly'):
            e('s_waitcnt vmcnt(0)'); self.stamp('T.ckv0'); e('s_branch L_END')
        for c in range(len(stages)):
            if c not in kdone: kv(c)
        if self.o.get('gate') == 2:
            e(f'buffer_store_dword v21, v39, {srd(rWS)}, 0 offen'); vm.append('gate')
        if tk: e('s_waitcnt lgkmcnt(15)\nv_readfirstlane_b32 s12, v61\ns_min_u32 s61, s12, 15')
        e(f's_lshl_b32 s{s1}, s61, 7\ns_add_u32 s73, s73, s{s1}')
        self.mk_srd(rA, pWO, 73, 5242880)
        e(f's_cmp_lt_u32 s61, 10\ns_cselect_b32 s{rA+2}, s{rA+2}, 0')
        e('s_branch L_T_Q1')
        e(';SEG TQ\nL_T_Q0:')
        self.fb((vQC,), (76, 77))
        qloads()
        e('s_branch L_T_Q1')
        e('L_T_Q2:\ns_mov_b64 s[12:13], vcc')
        self.fb((vQC,), (76, 77))
        if self.o.get('qsleep'): e(f's_sleep {self.o["qsleep"]}')
        e(f'buffer_load_dwordx4 v[80:83], v{vQC}, {srd(rWS)}, 0 offen sc1')
        for hf in range(2):
            e(f's_cmp_eq_u32 s{12+hf}, 0\ns_cbranch_scc1 L_T_Q2{hf}')
            for i in range(4*hf, 4*hf+4):
                e(f's_add_u32 m0, s62, {i*1024}')
                e(f'buffer_load_dwordx4 v{vQS+i}, {srd(rWS)}, s{76+hf} offen sc1 lds')
            e(f'L_T_Q2{hf}:')
        e('s_branch L_T_Q3')
        e(';SEG T2b\nL_T_Q1:')
        e(f's_waitcnt vmcnt({9 if qpos == 32 else 0})')
        for x in self.pol_ops(69, 8): e(x)
        e(f"""
        s_cbranch_vccnz L_T_Q0
        v_bfe_u32 v12, s11, v2, 1
        v_lshlrev_b32 v12, 13, v12
        v_xor_b32 v13, s9, v12
        v_xor_b32 v26, v13, v5
        v_xor_b32 v27, 0x2000, v26
        s_cmp_lt_u32 s{sX8}, 4
        s_cselect_b32 s9, s9, s10
        v_xor_b32 v13, s9, v12
        v_xor_b32 v24, v13, v{vPS}
        v_xor_b32 v25, 0x2000, v24
        v_xor_b32 v12, s8, v12
        v_xor_b32 v15, v12, v{vRS}
        v_xor_b32 v32, v12, v4
        """)
        if self.o.get('qnear', 1):
            e(f"""
            s_getreg_b32 s12, hwreg(HW_REG_XCC_ID, 2, 1)
            s_lshl_b32 s12, s12, 13
            s_xor_b32 s12, s12, s8
            s_and_b32 s13, s76, s{sLOC}
            s_cselect_b32 s13, 0, s12
            s_andn2_b32 s76, s76, 0x2000
            s_or_b32 s76, s76, s13
            v_mov_b32 v12, s13
            s_and_b32 s13, s77, s{sLOC}
            s_cselect_b32 s13, 0, s12
            s_andn2_b32 s77, s77, 0x2000
            s_or_b32 s77, s77, s13
            v_mov_b32 v13, s13
            v_cmp_gt_u32 vcc, 32, v0
            v_cndmask_b32 v12, v13, v12, vcc
            v_and_b32 v{vQC}, 0xffffdfff, v{vQC}
            v_or_b32 v{vQC}, v{vQC}, v12
            """)
        e('L_T_Q3:')
        e(f's_waitcnt vmcnt(0)\nds_read_b32 v12, v6\nds_read_b32 v13, v7 offset:1024')
        e(f'v_add_u32 v14, v80, v82\nv_sub_u32 v14, 0, v14\nds_write_b32 v10, v14\nv_xor_b32 v81, s{sT0}, v81\nv_xor_b32 v83, s{sT0}, v83\ns_waitcnt lgkmcnt(0)')
        e('v_xor_b32 v12, v12, v81\nv_xor_b32 v13, v13, v83\nv_or_b32 v12, v12, v13\nv_cmp_ne_u32 vcc, 0, v12\ns_cbranch_vccnz L_T_Q2')
        self.stamp('T.qin')
        if self.o.get('gate') == 3:
            e(f'buffer_store_dword v21, v39, {srd(rWS)}, 0 offen'); vm.append('gate')
        e('s_barrier')
        self.stamp('T.Qbar')
        def wo_ops(i): return [f's_add_u32 m0, s74, {WO+i*1024}', f's_mov_b32 s{sTMP}, {(32*(i>>2)+4*(i&3))*1280}', f'buffer_load_dwordx4 v{36+(i&1)}, {srd(rA)}, s{sTMP} offen {self.o.get("woflag","nt")} lds']
        nwe = self.o.get('wo_early', 8)
        vS = 48; vP = 76; vPF = 88; vAcc = 128; vO = 192
        def qreg(s, ht): return 128 + ht*64 + s*4
        def qread(s, ht): return f'ds_read_b128 {v(qreg(s,ht),4)}, v{vQa+(s&3)} offset:{(s>>2)*256+ht*16384}'
        def qk(s, kt, ht):
            d = v(vS+(kt*2+ht)*4,4)
            return f'v_mfma_f32_16x16x32_bf16 {d}, {a((s*2+kt)*4,4)}, {v(qreg(s,ht),4)}, ' + ('0' if s == 0 else d)
        def pv(ks, T, ht):
            d = v(vAcc+(ht*8+T)*4,4)
            return f'v_mfma_f32_16x16x32_bf16 {d}, {v(vPF+(ks*2+ht)*4,4)}, {a(128+(ks*8+T)*4,4)}, ' + ('0' if ks == 0 else d)
        def ver(s, ht): return f'v_add3_u32 v23, v23, v{qreg(s,ht)}, v{qreg(s,ht)+2}'
        def cost(x): return 2 if x.startswith('v_exp') else (0 if x.startswith('s_') else 1)
        def stream(mf, toks, bg):
            skip = 0
            for m in mf:
                e(m)
                b = self.o.get('slots', 2)
                if skip: skip -= 1
                else:
                    while toks:
                        t = toks[0]
                        if isinstance(t, tuple): skip = t[1]; toks.pop(0); break
                        if cost(t) > b: break
                        e(t); b -= cost(t); toks.pop(0)
                while bg and cost(bg[0]) <= b:
                    b -= cost(bg[0]); e(bg.pop(0))
            return toks
        def flush(toks):
            for t in toks:
                if not isinstance(t, tuple): e(t)
        D = self.o.get('qD', 4)
        for s in range(D): e(qread(s,0))
        e(f'v_mov_b32 v23, 0\nbuffer_store_dwordx4 v[16:19], v20, {srd(rWS)}, s71 offen sc1')
        rd = [(s,0) for s in range(D,16)] + [(s,1) for s in range(16)]
        issued = D
        wo = [wo_ops(i) for i in range(nwe)]
        for s in range(16):
            e(f's_waitcnt lgkmcnt({min(15, issued-1-s)})')
            if s == 15: e('s_barrier')
            for kt in range(2):
                e(qk(s,kt,0))
                if rd: e(qread(*rd.pop(0))); issued += 1
                if kt == 0:
                    if not self.o.get('nover'): e(ver(s,0))
                elif wo: flush(wo.pop(0))
                if s == 14 and kt == 1: e('ds_read_b128 v[80:83], v8')
        self.stamp('T.QK0')
        def sm(ht):
            r0 = vS+ht*4; r1 = vS+8+ht*4; m = 64; t = 65; M = 66+ht; rb = 72
            a_ = [f'v_max3_f32 v{m}, v{r0}, v{r0+1}, v{r0+2}', f'v_max3_f32 v{t}, v{r1}, v{r1+1}, v{r1+2}', f'v_max3_f32 v{m}, v{m}, v{r0+3}, v{r1+3}', f'v_max_f32 v{m}, v{m}, v{t}',
                  f'v_mov_b32 v{t}, v{m}', ('gap',0), f'v_permlane32_swap_b32 v{m}, v{t}', f'v_max_f32 v{m}, v{m}, v{t}', f'v_mov_b32 v{t}, v{m}', ('gap',0),
                  f'v_permlane16_swap_b32 v{m}, v{t}', f'v_max_f32 v{m}, v{m}, v{t}', f'ds_write_b32 v22, v{m} offset:{ht*256}']
            b_ = ['s_waitcnt lgkmcnt(0)', 's_barrier', f'ds_read_b128 {v(rb,4)}, v{vMR} offset:{ht*256}']
            c_ = ['s_waitcnt lgkmcnt(0)', f'v_max3_f32 v{M}, v{rb}, v{rb+1}, v{rb+2}', f'v_max_f32 v{M}, v{M}, v{rb+3}', f'v_mul_f32 v{M}, v38, v{M}']
            for b in (r0, r1):
                for r in range(4): c_.append(f'v_fma_f32 v{b+r}, v{b+r}, v38, -v{M}')
            for b in (r0, r1):
                for r in range(4): c_.append(f'v_exp_f32 v{b+r}, v{b+r}')
            for k,b in enumerate((r0, r1)):
                c_ += [f'v_cvt_pk_bf16_f32 v{vP+ht*4+k*2}, v{b}, v{b+1}', f'v_cvt_pk_bf16_f32 v{vP+ht*4+k*2+1}, v{b+2}, v{b+3}']
            c_.append(f'ds_write_b128 v{vPW}, {v(vP+ht*4,4)} offset:{ht*1024}')
            d_ = ['s_waitcnt lgkmcnt(0)', 's_barrier'] + [f'ds_read_b128 {v(vPF+(ks*2+ht)*4,4)}, v{vPR} offset:{(ks*2+ht)*1024}' for ks in range(4)]
            return a_, b_, c_, d_
        g1 = self.o.get('g1', 2); g2 = self.o.get('g2', 2)
        a0,b0,c0,d0 = sm(0); a1_,b1,c1,d1 = sm(1)
        e('s_waitcnt lgkmcnt(0)')
        mf = [qk(s,kt,1) for s in range(16) for kt in range(2)]
        bg = [ver(s,1) for s in range(16)] + ['v_add3_u32 v23, v23, v80, v81', 'v_add3_u32 v23, v23, v82, v83']
        if self.o.get('nover'): bg = []
        left = stream(mf, [('gap',1)] + a0 + [('gap',g1)] + b0 + [('gap',g2)] + c0, bg)
        flush(left)
        self.stamp('T.QK')
        flush(bg)
        A = [x for x in a1_ if not isinstance(x, tuple)]
        R = [f'v_add_u32_dpp v23, v23, v23 {p} {DPP}' for p in ['quad_perm:[1,0,3,2]','quad_perm:[2,3,0,1]','row_half_mirror','row_mirror']]
        R += ['v_mov_b32 v69, v23', 'v_permlane16_swap_b32 v23, v69', 'v_add_u32 v23, v23, v69', 'v_mov_b32 v69, v23', 'v_permlane32_swap_b32 v23, v69', 'v_add_u32 v23, v23, v69', 'v_cmp_ne_u32 vcc, 0, v23']
        flush([R[0], R[1], A[0], A[1], R[2], A[2], A[3], R[3], A[4], R[4], 's_nop 0', A[5], R[5], A[6], R[6], A[7], R[7], 's_nop 0', A[8], A[9], A[10], R[8], R[9], R[10]])
        flush(d0[:2]); e('s_cbranch_vccnz L_T_Q0'); flush(d0[2:] + b1[2:])
        self.stamp('T.Pbar')
        def lsum(ht, dst):
            r0 = vS+ht*4; r1 = vS+8+ht*4
            return [f'v_add_f32 v{r0}, v{r0}, v{r0+1}', f'v_add_f32 v{r0+2}, v{r0+2}, v{r0+3}', f'v_add_f32 v{r1}, v{r1}, v{r1+1}', f'v_add_f32 v{r1+2}, v{r1+2}, v{r1+3}',
                    f'v_add_f32 v{r0}, v{r0}, v{r0+2}', f'v_add_f32 v{r1}, v{r1}, v{r1+2}', f'v_add_f32 v{dst}, v{r0}, v{r1}']
        n3 = self.o.get('wo3', 0); n4 = self.o.get('wo4', 0)
        flush(lsum(0, 70))
        e('s_waitcnt lgkmcnt(4)')
        mf = [pv(ks,T,0) for ks in range(4) for T in range(8)]
        lt = ['v_permlane32_swap_b32 v70, v71','v_add_f32 v70, v70, v71','v_mov_b32 v71, v70', f'ds_read_b128 v[76:79], v{vLR}', 'v_permlane16_swap_b32 v70, v71','v_add_f32 v70, v70, v71',
              f'ds_write_b32 v{vMW}, v70 offset:512']
        left = stream(mf, [('gap',0)] + c1 + lsum(1, 71) + [('gap',0)] + lt + [('gap',self.o.get('g3',1))] + d1 + [f'ds_read_b128 v[72:75], v{vLR} offset:512'] + sum([wo_ops(i) for i in range(nwe, nwe+n3)], []), [])
        flush(left)
        nwe += n3
        self.stamp('T.pv4')
        def outops(ht):
            ops = []
            for r in range(4):
                o = vO + (ht*4+r)*4
                for k in range(4):
                    ops.append(f'v_cvt_pk_bf16_f32 v{o+k}, v{vAcc+(ht*8+2*k)*4+r}, v{vAcc+(ht*8+2*k+1)*4+r}')
                ops.append(f'buffer_store_dwordx4 {v(o,4)}, v{24+ht}, {srd(rWS)}, 0 offen offset:{r*1024} sc1')
            return ops
        e('s_waitcnt lgkmcnt(0)')
        mf = [pv(ks,T,1) for ks in range(4) for T in range(8)]
        cs = self.o.get('cs', 1)
        def csum(ht):
            c = 48 + 4*ht; y = 56 + 2*ht; z = 60 + ht
            ops = []
            for r in range(4):
                o = vO + (ht*4+r)*4
                ops.append([f'v_add3_u32 v{c+r}, v{o}, v{o+1}, v{o+2}', f'v_add_u32 v{c+r}, v{c+r}, v{o+3}'])
            red = [f'v_add_u32_dpp v{y}, v{c}, v{c} row_ror:8 row_mask:0xf bank_mask:0x3', f'v_add_u32_dpp v{y+1}, v{c+1}, v{c+1} row_ror:8 row_mask:0xf bank_mask:0x3',
                   f'v_add_u32_dpp v{y}, v{c+2}, v{c+2} row_ror:8 row_mask:0xf bank_mask:0xc', f'v_add_u32_dpp v{y+1}, v{c+3}, v{c+3} row_ror:8 row_mask:0xf bank_mask:0xc',
                   f'v_add_u32_dpp v{z}, v{y}, v{y} row_shl:4 row_mask:0xf bank_mask:0x5', f'v_add_u32_dpp v{z}, v{y+1}, v{y+1} row_shr:4 row_mask:0xf bank_mask:0xa',
                   f'v_add_u32_dpp v{z}, v{z}, v{z} quad_perm:[1,0,3,2] {DPP}', f'v_add_u32_dpp v{z}, v{z}, v{z} quad_perm:[2,3,0,1] {DPP}']
            return ops, red
        def out_cs(ht):
            if not cs: return outops(ht)
            o = outops(ht); l, red = csum(ht); res = []
            for r in range(4): res += o[5*r:5*r+5] + l[r]
            return res + red + [f'v_sub_u32 v{60+ht}, s{sT0}, v{60+ht}', f'buffer_store_dword v{60+ht}, v{26+ht}, {srd(rWS)}, s75 offen sc1']
        recv = ['v_max3_f32 v84, v76, v77, v78', 'v_max_f32 v84, v84, v79', 'v_mul_f32 v84, v38, v84', f'v_mov_b32 v86, s{sT0}', f'v_mov_b32 v87, s{sT1}',
                'v_add_f32 v72, v72, v73', 'v_add_f32 v74, v74, v75', 'v_add_f32 v85, v72, v74']
        o0 = out_cs(0)
        rl = self.o.get('recloc', 2)
        rp = self.o.get('recpos', 4)
        def recst(nst): return self.stamptok('T.recw') + [f's_waitcnt vmcnt({nwe+nst})', f'buffer_store_dwordx4 v[84:87], v15, {srd(rWS)}, 0 offen sc1', ] + ([f'buffer_store_dwordx4 v[84:87], v32, {srd(rWS)}, s{sLOC} offen'] if rl and not self.o.get('loclate') else []) + self.stamptok('T.recst')
        assert rp <= 4
        o0 = recv[:4] + o0[:7*rp] + recv[4:] + recst(rp) + o0[7*rp:]
        left = stream(mf, o0 + sum([wo_ops(i) for i in range(nwe, nwe+n4)], []), [])
        flush(left)
        nwe += n4
        self.stamp('T.pv8')
        o1 = out_cs(1)
        flush(o1)
        if rl and self.o.get('loclate'): e(f'buffer_store_dwordx4 v[84:87], v32, {srd(rWS)}, s{sLOC} offen')
        self.stamp('T.PVst')
        self.stamp('T.rec')
        if self.o.get('wb') == 2: e(f's_lshl_b32 s{s0}, s{sW}, 4\ns_or_b32 s{s0}, s{s0}, s{sR}\ns_cmp_lg_u32 s{s0}, 15\ns_cbranch_scc1 L_NOWB\nbuffer_wbl2 sc1\nL_NOWB:')
        e('s_branch L_T3\n;SEG T3\nL_T3:')
        if self.o.get('thelp', 0):
            first = (nwe>>2)*32*1280
            e(f's_cmp_lt_u32 s61, 10\ns_cbranch_scc1 L_T_C2\ns_lshl2_add_u32 s{s0}, s{sX8}, s{sW}\ns_mul_i32 s{s0}, s{s0}, 163840\ns_add_u32 s{s0}, s{s0}, {first}')
            self.mk_srd(rA, pWO, s0, 5242880)
            e(f's_mov_b32 s{rA+2}, {163840-first}\ns_sub_u32 s{s0}, s61, 10\ns_lshl_b32 s{s0}, s{s0}, 10\ns_mov_b32 m0, s74')
            for k in range(((163840-first)//1024+5)//6):
                e(f'buffer_load_dwordx4 v3, {srd(rA)}, s{s0} offen lds\ns_add_u32 s{s0}, s{s0}, 6144')
            e('s_waitcnt vmcnt(0)\ns_branch L_END\nL_T_C2:')
        else: e(f's_cmp_ge_u32 s61, 10\ns_cbranch_scc1 L_END')
        if self.o.get('wowait'): e('s_waitcnt vmcnt(0)')
        for i in range(nwe, 16): flush(wo_ops(i))
        e(f"""
        v_lshrrev_b32 v12, 2, v1
        v_lshl_add_u32 v12, v2, 3, v12
        v_lshlrev_b32 v12, 7, v12
        v_and_b32 v13, 3, v1
        v_lshl_add_u32 v12, v13, 3, v12
        v_lshrrev_b32 v14, 3, v1
        v_and_b32 v15, 1, v2
        v_lshl_or_b32 v14, v15, 1, v14
        v_xor_b32 v14, s{sW}, v14
        v_lshl_add_u32 v24, v14, 5, v12
        v_mul_u32_u24 v13, 320, v13
        v_add_u32 v13, v13, v11
        v_add_u32 v25, {HB}, v13
        v_mul_u32_u24 v12, 320, v2
        v_lshl_add_u32 v12, v1, 3, v12
        s_mul_i32 s{s0}, s{sW}, 1280
        s_add_u32 s{s0}, s{s0}, {HB}
        v_add_u32 v26, s{s0}, v12
        v_lshlrev_b32 v12, 4, v1
        v_lshl_add_u32 v27, v2, 11, v12
        s_lshl4_add_u32 s75, s{sX8}, s{sW}
        s_lshl_b32 s75, s75, 9
        s_add_u32 s75, s75, {HCB+LOC}
        s_and_b32 s75, s75, s{sLM}
        s_and_b32 s{s0}, s{sX8}, 4
        s_add_u32 s{s0}, s{s0}, s{sX8}
        s_lshl_b32 s{s0}, s{s0}, 11
        s_lshl_b32 s{s1}, s61, 7
        s_add_u32 s{s0}, s{s0}, s{s1}
        s_lshl_b32 s{s1}, s{sW}, 5
        s_add_u32 s{s0}, s{s0}, s{s1}
        s_add_u32 s{s0}, s{s0}, {H3B}
        v_lshlrev_b32 v12, 1, v1
        v_lshl_add_u32 v12, v2, 13, v12
        v_add_u32 v12, s{s0}, v12
        v_cmp_gt_u32 vcc, 32, v0
        v_cndmask_b32 v28, v9, v12, vcc
        v_cmp_gt_u32 vcc, 16, v0
        v_cndmask_b32 v29, v9, v12, vcc
        s_waitcnt vmcnt(0)
        s_barrier
        """)
        self.stamp('C.land')
        def hcl(k):
            b = 64+8*k
            e(f'buffer_load_dwordx4 {v(b,4)}, v27, {srd(rWS)}, s75 offen sc1\nbuffer_load_dwordx4 {v(b+4,4)}, v27, {srd(rWS)}, s75 offen offset:256 sc1')
        def hcc(k):
            b = 64+8*k
            e(f'ds_write2_b32 v26, v{b}, v{b+2} offset0:0 offset1:1\nds_write2_b32 v26, v{b+4}, v{b+6} offset0:32 offset1:33')
            e(f'v_and_b32 v12, v{b+1}, v{b+3}\nv_or_b32 v13, v{b+1}, v{b+3}\nv_bitop3_b32 v12, v12, v{b+5}, v{b+7} bitop3:0x80\nv_or3_b32 v13, v13, v{b+5}, v{b+7}')
            e(f'v_cmp_ne_u64 vcc, s[76:77], v[12:13]')
        e(f's_mov_b32 s76, s{sT0}\ns_mov_b32 s77, s{sT0}')
        nhc = self.o.get('nhc',3)
        for st_ in range(16):
            if st_ % 5 == 0 and st_//5 < nhc: hcl(st_//5)
            for q in range(2): e(f'ds_read_b64_tr_b16 {a(st_*4+2*q,2)}, v24 offset:{WO+st_*4096+q*512}')
        self.ppoll('L_C_HC', nhc, 2, hcl, hcc, sregs=(75,), pre_issued=nhc)
        self.stamp('C.hcin')
        e('s_waitcnt lgkmcnt(0)\ns_barrier')
        self.stamp('C.bar')
        NP = 8
        def ar(st_): return f'ds_read_b128 {v(128+4*st_,4)}, v25 offset:{(st_>>2)*1280+(st_&3)*64}'
        for st_ in range(NP): e(ar(st_))
        for st_ in range(16):
            e(f's_waitcnt lgkmcnt({min(NP-1, 15-st_)})')
            e(f'v_mfma_f32_16x16x32_bf16 v[104:107], {v(128+4*st_,4)}, {a(st_*4,4)}, ' + ('0' if st_ == 0 else 'v[104:107]'))
            if st_+NP < 16: e(ar(st_+NP))
        e('v_pk_add_f32 v[104:105], v[104:105], v[106:107]\nv_add_f32 v104, v104, v105\nv_cvt_pk_bf16_f32 v104, v104, v104\nv_min_u32 v104, -2, v104')
        e(f'buffer_store_short v104, v28, {srd(rWS)}, 0 offen sc1')
        e(f'buffer_store_short v104, v29, {srd(rWS)}, s{sLOC} offen')
        self.stamp('C.h3')
        if self.o.get('wb') == 1: e(f's_or_b32 s{s0}, s{sR}, s{sW}\ns_cbranch_scc1 L_END\nbuffer_wbl2 sc1')

    def epilogue(self):
        e = self.e
        e('s_branch L_END\n;SEG END\nL_END:')
        if 'amp2' in self.o:
            k = self.idx[self.o['amp2']]
            e(f's_waitcnt lgkmcnt(0)\ns_cmp_eq_u32 s{sSTAMP+2*k}, 0\ns_cbranch_scc1 L_EXIT')
            if 'ampwg' in self.o: e(f's_cmp_lg_u32 s2, {self.o["ampwg"]}\ns_cbranch_scc1 L_EXIT')
            e(f's_sub_u32 s60, s{sSTAMP+2*k}, s{sSTAMP}\ns_lshl_b32 s60, s60, 3\ns_add_u32 s60, s60, s{sSTAMP}\ns_add_u32 s60, s60, 2000')
            e('L_AMP2:\ns_sleep 4\ns_memrealtime s[62:63]\ns_waitcnt lgkmcnt(0)\ns_sub_u32 s61, s62, s60\ns_cmp_lt_i32 s61, 0\ns_cbranch_scc1 L_AMP2')
        if self.stamps and 'amp' not in self.o and 'amp2' not in self.o and 'ampskew' not in self.o:
            self.mk_srd(rWS, pWS, None, WSSZ)
            e(f's_waitcnt lgkmcnt(0)\ns_lshl_b32 s60, s2, 2\ns_add_u32 s60, s60, s{sW}\ns_lshl_b32 s60, s60, 6\ns_add_u32 s60, s60, {STAMP}\nv_mov_b32 v4, 0')
            for k in range(11): e(f'v_mov_b32 v5, s{sSTAMP+2*k}\nbuffer_store_dword v5, v4, {srd(rWS)}, s60 offen offset:{4*k}')
            e(f'v_mov_b32 v5, s{sTO}\nbuffer_store_dword v5, v4, {srd(rWS)}, s60 offen offset:44\nv_mov_b32 v5, s7\nbuffer_store_dword v5, v4, {srd(rWS)}, s60 offen offset:48')
        e('L_EXIT:')

    def layout(self):
        segs = {}; cur = 'P'; segs[cur] = []
        for l in self.e.lines:
            if l.strip().startswith(';SEG '): cur = l.split()[1]; segs[cur] = []
            else: segs[cur].append(l)
        segs['END'].append('s_endpgm')
        out = []
        for x in self.o.get('layout', (['P','T0','A1'] if self.o.get('t0first', 1) else ['P','A1','T0']) + ['|','T1','TQ','A2','T3','|','A3','|','T2','T2b','|','FIN','END']):
            if x == '|':
                if self.o.get('align',1): out.append('.p2align 12')
            else: out += segs[x]
        out.append('L_CODE_END:')
        return '\n'.join(out)
    def build(self):
        if self.stamps:
            for k in range(1,11): self.e(f's_mov_b32 s{sSTAMP+2*k}, 0')
            self.e('s_mov_b32 s7, 0')
        self.prologue(); self.role_A(); self.role_T(); self.epilogue()
        hdr = open('header.txt').read()
        if self.o.get('noloc'):
            self.e.lines = [l.replace(f', s{sLOC} offen', ', 0 offen sc1') if 'buffer_store' in l else l.replace(f's_mov_b32 s{sLM}, -1', f's_mov_b32 s{sLM}, {(~LOC)&0xffffffff}') for l in self.e.lines]
        return f'''{hdr}; @launch grid=(256,1,1) block=(256,1,1) lds=163840
.amdgcn_target "amdgcn-amd-amdhsa--gfx950"
.text
.globl {KN}
{'.p2align 12' if self.o.get('align',1) else ''}
.p2align 8
.type {KN},@function
{KN}:
{self.layout()}
.section .rodata,"a"
.p2align 6
.amdhsa_kernel {KN}
  .amdhsa_next_free_vgpr 512
  .amdhsa_next_free_sgpr 102
  .amdhsa_accum_offset 256
  .amdhsa_group_segment_fixed_size 0
  .amdhsa_kernarg_size 112
  .amdhsa_user_sgpr_count 2
  .amdhsa_user_sgpr_kernarg_segment_ptr 1
  .amdhsa_system_sgpr_workgroup_id_x 1
.end_amdhsa_kernel
'''

if __name__ == '__main__':
    import json
    out = sys.argv[1]; stamps = len(sys.argv) > 2 and sys.argv[2] == '1'
    opt = json.loads(sys.argv[3]) if len(sys.argv) > 3 else {}
    open(out,'w').write(G(stamps, opt).build())
```

```python
import sys
sys.path.insert(0,'work')
from dsl import Asm
NAME = 'sequential_preLN__compressed_kv_cla__dense_activation_squared_relu__decode'
KN = NAME + '_kernel'

EPOCH=0; GATE=0x2000; QP=0x8000; HCB=0x18000; QLB=0x28000; QCS=0x38000; CS=0x600000; REC=0x40000; HS=0x80000; H3B=HS+27*16384
PROBE=0xf8000; LOC=0x100000; PART=0x200000; STAMP=0x680000; BIAS=0x10000
WSSZ=0x700000
OOB=0x7ffffff0
NLOC=96
sLM,sLC,sLOC,sTMP = 3,4,5,6
pX,pCKV,pWQ,pWUK,pWUV,pWO,pBX,pW1,pB1,pW2,pB2,pOUT,pDBG,pWS = [8+2*i for i in range(14)]
sW,sX8,sR,sE,sT0,sT1,sTO,sP = 36,37,38,39,40,41,42,43
rWS=44; rA=48; rB=52; rC=56
sSTAMP=80
def srd(r): return f's[{r}:{r+3}]'
def v(n,c=1): return f'v{n}' if c==1 else f'v[{n}:{n+c-1}]'
def a(n,c=1): return f'a{n}' if c==1 else f'a[{n}:{n+c-1}]'
DPP='row_mask:0xf bank_mask:0xf'
QB = 131072
WQ = 69632; XN = 110592

class G:
    def __init__(self, stamps=False, opt=None):
        self.e = Asm(); self.stamps = stamps; self.o = opt or {}
        self.slots = {'A':['start'],'T':['start'],'R':[]}; self.idx = {}; self.tbase = 1
    def stamp(self, name):
        if not self.stamps: return
        role = name.split('.')[0]
        lst = self.slots['A' if role in 'AFR' else 'T']
        want = self.o.get('want')
        if name == 'start': k = 0
        else:
            if want is not None and name not in want: return
            if role == 'R':
                k = self.tbase + len(self.slots['R']); self.slots['R'].append(name)
            else:
                k = len(lst); lst.append(name)
                if role == 'A': self.tbase = len(lst)
            if k > 10: raise Exception('too many stamps '+name)
        self.idx[name] = k
        op = 's_memtime' if self.o.get('cyc') else 's_memrealtime'
        self.e(f'{op} s[{sSTAMP+2*k}:{sSTAMP+2*k+1}]')
        if name in self.o.get('cut', []): self.e('s_branch L_END')
    def stamptok(self, name):
        n = len(self.e.lines); self.stamp(name)
        t = [x.strip() for x in self.e.lines[n:]]
        del self.e.lines[n:]
        if t: self.e.hist.pop()
        return t
    def mk_srd(self, r, ptr, off_sgpr, size):
        e = self.e
        if off_sgpr is None:
            e(f's_mov_b32 s{r}, s{ptr}\ns_and_b32 s{r+1}, s{ptr+1}, 0xffff\ns_mov_b32 s{r+2}, {size}')
        else:
            e(f's_add_u32 s{r}, s{ptr}, s{off_sgpr}\ns_addc_u32 s{r+1}, s{ptr+1}, 0\ns_and_b32 s{r+1}, s{r+1}, 0xffff\ns_sub_u32 s{r+2}, {size}, s{off_sgpr}')
        e(f's_mov_b32 s{r+3}, 0x20000')
    def allred(self, op, x, t, steps16=4):
        e = self.e
        pats = ['quad_perm:[1,0,3,2]','quad_perm:[2,3,0,1]','row_half_mirror','row_mirror'][:steps16]
        for p in pats: e(f'{op}_dpp v{x}, v{x}, v{x} {p} {DPP}')
        e(f'v_mov_b32 v{t}, v{x}\nv_permlane16_swap_b32 v{x}, v{t}\n{op} v{x}, v{x}, v{t}')
        e(f'v_mov_b32 v{t}, v{x}\nv_permlane32_swap_b32 v{x}, v{t}\n{op} v{x}, v{x}, v{t}')
    def timeout(self):
        self.e(f's_sub_u32 s{sTO}, s{sTO}, 1\ns_cmp_eq_u32 s{sTO}, 0\ns_cbranch_scc1 L_END')
    def fb(self, vregs=(), sregs=()):
        e = self.e
        self.timeout()
        e(f's_add_u32 s{sLC}, s{sLC}, 1\ns_cmp_ge_u32 s{sLC}, {NLOC}\ns_cselect_b32 s{sLM}, {(~LOC)&0xffffffff}, s{sLM}')
        self.lmask(vregs, sregs)
    def lmask(self, vregs=(), sregs=()):
        for r in vregs: self.e(f'v_and_b32 v{r}, s{sLM}, v{r}')
        for r in sregs: self.e(f's_and_b32 s{r}, s{r}, s{sLM}')
    def stop(self, data):
        if '[' not in data: return 'buffer_store_dword'
        lo, hi = data[2:-1].split(':'); return f'buffer_store_dwordx{int(hi)-int(lo)+1}'
    def publ(self, data, voff): self.e(f'{self.stop(data)} {data}, v{voff}, {srd(rWS)}, s{sLOC} offen')
    def pubg(self, data, voff): self.e(f'{self.stop(data)} {data}, v{voff}, {srd(rWS)}, 0 offen sc1')
    def pub(self, data, voff): self.pubg(data, voff); self.publ(data, voff)
    def late_pubg(self, data, voff):
        e = self.e; l = e.newlabel('Lnp')
        e(f's_cmp_eq_u32 s{sLM}, -1\ns_cbranch_scc1 {l}'); self.pubg(data, voff); e(f'{l}:')
    def retry(self, label, sleep=1, vregs=(), sregs=(), late=None):
        e = self.e
        ok = e.newlabel('Lok')
        e(f's_cbranch_vccz {ok}')
        self.fb(vregs, sregs)
        if late: self.late_pubg(*late)
        if sleep: e(f's_sleep {sleep}')
        e(f's_branch {label}')
        e(f'{ok}:')
    def ppoll(self, name, nsets, nld, loads, check, vregs=(), sregs=(), pre_issued=0):
        e = self.e
        for k in range(pre_issued, nsets): loads(k)
        e(f'{name}:')
        for k in range(nsets):
            e(f's_waitcnt vmcnt({nld*(nsets-1)})')
            check(k)
            e(f's_cbranch_vccz {name}_OK')
            if k == nsets-1: self.fb(vregs, sregs)
            loads(k)
        e(f's_branch {name}\n{name}_OK:')
    def maxchain(self, dst, regs):
        e = self.e
        regs = list(regs)
        e(f'v_max3_u32 v{dst}, v{regs[0]}, v{regs[1]}, v{regs[2]}'); regs = regs[3:]
        while len(regs) >= 2:
            e(f'v_max3_u32 v{dst}, v{dst}, v{regs[0]}, v{regs[1]}'); regs = regs[2:]
        if regs: e(f'v_max_u32 v{dst}, v{dst}, v{regs[0]}')
    def tagcheck(self, dst, pairs):
        e = self.e; rs = []
        for r in pairs:
            e(f'v_xor_b32 v{r}, s{sT0}, v{r}\nv_xor_b32 v{r+1}, s{sT1}, v{r+1}'); rs += [r, r+1]
        if len(rs) == 2: e(f'v_or_b32 v{dst}, v{rs[0]}, v{rs[1]}')
        else:
            e(f'v_or3_b32 v{dst}, v{rs[0]}, v{rs[1]}, v{rs[2]}'); rs = rs[3:]
            while len(rs) >= 2: e(f'v_or3_b32 v{dst}, v{dst}, v{rs[0]}, v{rs[1]}'); rs = rs[2:]
            if rs: e(f'v_or_b32 v{dst}, v{dst}, v{rs[0]}')
        e(f'v_cmp_ne_u32 vcc, 0, v{dst}')
    def ident_masks(self, dst, val_lo, val_hi, first, n, t):
        e = self.e
        e(f'v_and_b32 v{t}, 1, v1\nv_cmp_eq_u32 vcc, 1, v{t}\nv_mov_b32 v{t}, {val_lo}\nv_mov_b32 v{t+1}, {val_hi}\nv_cndmask_b32 v{t}, v{t}, v{t+1}, vcc')
        e(f'v_lshrrev_b32 v{t+1}, 1, v1')
        for r in range(n):
            e(f'v_cmp_eq_u32 vcc, {first+r}, v{t+1}\nv_cndmask_b32 v{dst+r}, 0, v{t}, vcc')
    def red_final(self, RED, t, va, clamp):
        e = self.e
        for w in range(4): e(f'ds_read_b128 {v(t+4+4*w,4)}, v{va} offset:{RED+256*w}')
        e('s_waitcnt lgkmcnt(2)')
        for i in range(2): e(f'v_pk_add_f32 {v(t+4+2*i,2)}, {v(t+4+2*i,2)}, {v(t+8+2*i,2)}')
        e('s_waitcnt lgkmcnt(0)')
        for i in range(2): e(f'v_pk_add_f32 {v(t+12+2*i,2)}, {v(t+12+2*i,2)}, {v(t+16+2*i,2)}')
        for i in range(2): e(f'v_pk_add_f32 {v(t+4+2*i,2)}, {v(t+4+2*i,2)}, {v(t+12+2*i,2)}')
        for i in range(2): e(f'v_cvt_pk_bf16_f32 v{t+i}, v{t+4+2*i}, v{t+5+2*i}')
        if clamp:
            for i in range(2): e(f'v_min_u32 v{t+i}, -2, v{t+i}')
    def code_prefetch(self):
        e = self.e
        npl = self.o.get('npl', 3)
        e(f's_getpc_b64 s[20:21]\nL_PC:\ns_sub_u32 s20, s20, L_PC-{KN}\ns_subb_u32 s21, s21, 0')
        e(f's_and_b32 s22, s{sR}, 15\ns_lshl_b32 s22, s22, 2\ns_add_u32 s22, s22, s{sW}\ns_lshl_b32 s22, s22, 7')
        for i in range(npl):
            e(f's_min_u32 s23, s22, L_CODE_END-4-{KN}\ns_load_dword s7, s[20:21], s23')
            if i < npl-1: e(f's_add_u32 s22, s22, 8192')
    def kmap(self):
        k = self.o.get('kil', 0)
        if k == 0: return 17, 15, 4096
        if k == 1: return 12, 22, 1 << 19
        if k == 2: return 12, 19, 1 << 21
        if k == 3: return 14, 12, 1 << 21
        if k == 4: return 15, 22, 4096
        if k == 5: return -12, 19, 1 << 16
        if k == 6: return -12, 16, 1 << 18
        if k == 7: return -14, 12, 1 << 18
        if k == 8: return -15, 19, 4096
        if k == 10: return 'x', 19, 65536+4096
        if k == 11: return 'x', 16, (1<<18)+4096
        if k == 9: return None, 16, None
    def ioff(self, i, istr): return i*istr if istr else (i>>1)*16384 + (i&1)*4096
    def kbase(self, dst, sidx, tsh):
        if tsh == 'x': self.e(f's_lshl_b32 s{dst}, s{sX8}, 21')
        elif tsh is None:
            self.e(f's_and_b32 s{dst}, s{sidx}, 63\ns_lshl_b32 s{dst}, s{dst}, 18\ns_lshr_b32 s{sTMP}, s{sidx}, 3\ns_lshr_b32 s7, s{sidx}, 6\ns_xor_b32 s{sTMP}, s{sTMP}, s7\ns_xor_b32 s{sTMP}, s{sTMP}, {self.o.get("kpol",0)}\ns_and_b32 s{sTMP}, s{sTMP}, 1\ns_lshl_b32 s{sTMP}, s{sTMP}, 13\ns_add_u32 s{dst}, s{dst}, s{sTMP}\ns_mov_b32 s7, 0')
        elif tsh > 0: self.e(f's_lshl_b32 s{dst}, s{sidx}, {tsh}')
        else: self.e(f's_and_b32 s{dst}, s{sidx}, 15\ns_lshl_b32 s{dst}, s{dst}, {-tsh}\ns_lshl_b32 s{sTMP}, s{sX8}, 21\ns_add_u32 s{dst}, s{dst}, s{sTMP}')
    def pol_ops(self, r, sd):
        ops = [f'v_cmp_lt_u32 vcc, 0xffffff, v{r}', f'v_and_b32 v{r}, 0xffffff, v{r}', f's_and_b32 s{sd+3}, vcc_lo, 15', f'v_cmp_eq_u32 vcc, 0, v{r}']
        ops += [f'v_add_u32_dpp v{r}, v{r}, v{r} {p} {DPP}' for p in ['quad_perm:[1,0,3,2]','quad_perm:[2,3,0,1]','row_half_mirror']]
        ops += [f'v_readlane_b32 s{sd+g}, v{r}, {8*g}' for g in range(3)]
        ops += [f's_sub_u32 s{sd+4}, s{sd}, s{sd+1}', f's_add_u32 s{sd+4}, s{sd+4}, s{sd+2}', f's_lshl1_add_u32 s{sd}, s{sd}, s{sd+4}', f's_lshl1_add_u32 s{sd+2}, s{sd+2}, s{sd+4}',
                f's_lshl_b32 s{sd+1}, s{sd+1}, 1', f's_sub_u32 s{sd+1}, s{sd+1}, s{sd+4}']
        for g in range(3):
            ops += [f's_cmp_lt_u32 s{sd+g}, {(8 if g == 1 else 24)*BIAS}', f's_cselect_b32 s{sd+g}, 8192, 0']
            if 'force' in self.o: ops.append(f's_mov_b32 s{sd+g}, {8192*((self.o["force"]+g)&1)}')
        return ops
    def tags(self):
        self.e(f's_add_u32 s{sT0}, s{sE}, 0x9e3779b9\ns_xor_b32 s{sT1}, s{sT0}, 0x5bd1e995')

    def prologue(self):
        e = self.e
        self.stamp('start')
        e(f"""
        s_load_dwordx16 s[8:23], s[0:1], 0
        s_cmp_ge_u32 s2, 256
        s_cbranch_scc1 L_EXIT
        v_lshrrev_b32 v1, 6, v0
        v_and_b32 v0, 63, v0
        v_readfirstlane_b32 s{sW}, v1
        v_and_b32 v1, 15, v0
        v_lshrrev_b32 v2, 4, v0
        v_lshlrev_b32 v4, 2, v0
        {('s_add_u32 s%d, s2, %d' % (sX8, self.o['lrot'])) if self.o.get('lrot') else ''}
        s_and_b32 s{sX8}, s{sX8 if self.o.get('lrot') else 2}, 7
        s_lshr_b32 s{sR}, s2, 3
        v_lshlrev_b32 v5, 4, v1
        v_lshlrev_b32 v6, 5, v2
        v_xor_b32 v5, v5, v6
        v_lshl_add_u32 v6, v2, 13, v5
        s_lshr_b32 s67, s{sW}, 1
        s_lshl_b32 s67, s67, 7
        v_xor_b32 v8, s67, v6
        s_bfe_u32 s60, s{sR}, 0x20002
        s_mul_i32 s60, s60, {160*8192}
        s_and_b32 s63, s{sR}, 3
        s_lshl2_add_u32 s63, s{sX8}, s63
        s_lshl_b32 s63, s63, 8
        s_add_u32 s60, s60, s63
        s_lshl_b32 s61, s{sW}, 15
        s_lshl_b32 s62, s{sW}, 10
        s_mov_b32 s{rA+3}, 0x20000
        s_mov_b32 s{rC+3}, s{rA+3}
        s_sub_u32 s{rA+2}, 5242880, s60
        s_cmp_lt_u32 s{sR}, 16
        s_cselect_b32 s{rC+2}, {64 if self.o.get('ttouch',1) else 0}, 1280
        s_cselect_b32 s66, s{sR}, 0
        s_cselect_b32 s64, {5*4*32768}, 0
        s_cselect_b32 s65, {QB-WQ}, 0
        s_add_u32 s61, s61, s64
        s_add_u32 s62, s62, s65
        s_add_u32 s62, s62, {WQ}
        s_lshl_b32 s66, s66, 18
        s_cmp_lt_u32 s{sR}, 16
        s_waitcnt lgkmcnt(0)
        s_load_dwordx4 s[32:35], s[0:1], 96
        s_load_dwordx8 s[24:31], s[0:1], 64
        s_cselect_b64 s[{rC}:{rC+1}], s[{pWUK}:{pWUK+1}], s[{pX}:{pX+1}]
        s_and_b32 s{rC+1}, s{rC+1}, 0xffff
        s_add_u32 s{rC}, s{rC}, s66
        s_addc_u32 s{rC+1}, s{rC+1}, 0
        s_add_u32 s{rA}, s{pWQ}, s60
        s_addc_u32 s{rA+1}, s{pWQ+1}, 0
        s_and_b32 s{rA+1}, s{rA+1}, 0xffff
        """)
        self.x_issue()
        if self.o.get('t_wq', 0) == 0: e(f's_cmp_lt_u32 s{sR}, 16\ns_cbranch_scc1 L_SKIPQ')
        for k in range(5): self.wq_dma(k)
        e(f"""
        L_SKIPQ:
        v_lshlrev_b32 v3, 4, v0
        v_mov_b32 v9, {OOB}
        v_lshlrev_b32 v11, 4, v2
        s_mov_b32 s{sTO}, 400000
        s_mov_b32 s{sLM}, -1
        s_mov_b32 s{sLC}, 0
        s_mov_b32 s{sLOC}, {LOC}
        s_mov_b32 s{rWS+2}, {WSSZ}
        s_mov_b32 s{rWS+3}, 0x20000
        s_cmp_lt_u32 s{sR}, 16
        """)
        if self.o.get('t0first', 1): e('s_cbranch_scc0 L_A\n;SEG A1\nL_A:')
        else: e('s_cbranch_scc1 L_T\n;SEG A1\nL_A:')
    def ws_srd(self):
        self.e(f's_waitcnt lgkmcnt(0)\ns_mov_b32 s{rWS}, s{pWS}\ns_and_b32 s{rWS+1}, s{pWS+1}, 0xffff')
    def x_issue(self):
        for kk in range(5): self.e(f'buffer_load_dword v{240+kk}, v4, {srd(rC)}, 0 offen offset:{256*kk} {self.o.get("xflag","")}')
    def wq_dma(self, k):
        e = self.e
        e(f's_add_u32 m0, s62, {k*4096}')
        e(f'buffer_load_dwordx4 v8, {srd(rA)}, s61 offen nt lds')
        if k < 9: e(f's_add_u32 s61, s61, {4*32768}')
    def wuk_setup(self, sAi, srdreg):
        e = self.e
        e(f'''
        s_lshl_b32 s63, s{sX8}, 2
        s_add_u32 s64, s63, s{sW}
        s_lshl_b32 s64, s64, 8
        s_lshl_b32 s65, s{sAi}, 18
        s_add_u32 s64, s64, s65
        ''')
        self.mk_srd(srdreg, pWUK, 64, 4194304)
        e(f'v_xor_b32 v7, 0x80, v6\ns_mov_b32 s68, 0\ns_lshl_b32 s69, s{sW}, 13')
    def wuk_dma(self, k, srdreg, base):
        e = self.e
        e(f's_add_u32 m0, s69, {base+k*1024}')
        e(f'buffer_load_dwordx4 v{6 if ((k>>1)&1)==0 else 7}, {srd(srdreg)}, s68 offen {self.o.get("ukflag","nt")} lds')
        if k < 7: e(f's_add_u32 s68, s68, 32768')
    def a1(self, role, y_x, y_wq, mid):
        e = self.e
        s0, s1 = 63, 64
        e(f'''
        v_lshrrev_b32 v12, 2, v1
        v_lshl_add_u32 v13, v2, 3, v12
        v_lshlrev_b32 v13, 8, v13
        v_and_b32 v14, 3, v1
        v_lshl_add_u32 v13, v14, 3, v13
        v_and_b32 v15, 1, v2
        v_lshl_or_b32 v15, v15, 2, v12
        s_lshl_b32 s{s0}, s{sW}, 1
        v_xor_b32 v15, s{s0}, v15
        v_lshl_add_u32 v60, v15, 5, v13
        v_xor_b32 v15, 1, v15
        v_lshl_add_u32 v61, v15, 5, v13
        v_add_u32 v56, {WQ}, v60
        v_add_u32 v57, {WQ}, v61
        ''')
        e(f'''
        v_lshl_add_u32 v12, v1, 6, v11
        s_and_b32 s{s0}, s{sR}, 3
        s_lshl_b32 s{s1}, s{sX8}, 2
        s_add_u32 s{s0}, s{s0}, s{s1}
        s_lshl_b32 s{s0}, s{s0}, 2
        s_bfe_u32 s{s1}, s{sR}, 0x20002
        s_add_u32 s{s0}, s{s0}, s{s1}
        s_lshl_b32 s{s0}, s{s0}, 9
        s_lshl_b32 s{s1}, s{sW}, 7
        s_add_u32 s{s0}, s{s0}, s{s1}
        s_add_u32 s{s0}, s{s0}, {QP}
        v_add_u32 v12, s{s0}, v12
        v_cmp_gt_u32 vcc, 2, v1
        v_cndmask_b32 v62, v9, v12, vcc
        v_cmp_eq_u32 s[70:71], 1, v1
        s_mul_i32 s{s0}, s{sW}, 1280
        s_add_u32 s{s0}, s{s0}, {XN}
        v_add_u32 v10, s{s0}, v4
        s_bfe_u32 s{s1}, s{sR}, 0x20002
        s_mul_i32 s{s1}, s{s1}, 320
        s_add_u32 s{s0}, s{s0}, s{s1}
        v_add_u32 v12, s{s0}, v11
        s_waitcnt vmcnt({y_x})
        ''')
        self.stamp(role+'.x')
        for k in range(5): e(f'v_lshlrev_b32 v{26+2*k}, 16, v{240+k}\nv_and_b32 v{27+2*k}, 0xffff0000, v{240+k}')
        e('v_pk_add_f32 v[36:37], v[26:27], v[28:29]\nv_pk_add_f32 v[38:39], v[30:31], v[32:33]\nv_pk_add_f32 v[36:37], v[36:37], v[34:35]\nv_pk_add_f32 v[36:37], v[36:37], v[38:39]\nv_add_f32 v36, v36, v37')
        self.allred('v_add_f32', 36, 37)
        e('v_mul_f32 v36, 0xbacccccd, v36\nv_mov_b32 v37, v36')
        for k in range(26,36,2): e(f'v_pk_add_f32 {v(k,2)}, {v(k,2)}, v[36:37]')
        e('v_pk_mul_f32 v[36:37], v[26:27], v[26:27]')
        for k in range(28,36,2): e(f'v_pk_fma_f32 v[36:37], {v(k,2)}, {v(k,2)}, v[36:37]')
        e('v_add_f32 v36, v36, v37')
        self.allred('v_add_f32', 36, 37)
        e('v_mul_f32 v36, 0x3acccccd, v36\nv_add_f32 v36, 0x3727c5ac, v36\nv_rsq_f32 v36, v36\nv_mov_b32 v37, v36')
        for k in range(26,36,2): e(f'v_pk_mul_f32 {v(k,2)}, {v(k,2)}, v[36:37]')
        for k in range(5): e(f'v_cvt_pk_bf16_f32 v{20+k}, v{26+2*k}, v{27+2*k}\nds_write_b32 v10, v{20+k} offset:{256*k}')
        for s in range(5): e(f'ds_read_b128 {v(36+4*s,4)}, v12 offset:{s*64}')
        self.stamp(role+'.ln')
        mid()
        e(f's_waitcnt vmcnt({y_wq}) lgkmcnt(0)\ns_barrier')
        self.stamp(role+'.wq')
        vW = 128
        for s in range(5):
            for T in range(2):
                for q in range(2): e(f'ds_read_b64_tr_b16 {v(vW+(s*2+T)*4+2*q,2)}, v{56+T} offset:{s*8192+q*1024}')
        self.tags()
        e(f'v_mov_b32 v18, s{sT0}\nv_mov_b32 v19, s{sT1}')
        for s in range(5):
            for T in range(2):
                e(f's_waitcnt lgkmcnt({min(15,18-(s*2+T)*2)})')
                e(f'v_mfma_f32_16x16x32_bf16 {v(84+4*T,4)}, {v(vW+(s*2+T)*4,4)}, {v(36+4*s,4)}, ' + ('0' if s==0 else v(84+4*T,4)))
        for i in range(4): e(f'v_cvt_pk_bf16_f32 v{92+i}, v{84+2*i}, v{85+2*i}')
        e('v_cndmask_b32 v16, v92, v94, s[70:71]\nv_cndmask_b32 v17, v93, v95, s[70:71]')
        self.publ('v[16:19]', 62)
        self.stamp(role+'.qp')


    def role_A(self):
        e = self.e
        QV=0; CL=1024; ML=2304; RED=2560; DUM=3584; WUK=4096; WUV=36864
        W1=69632; W2=W1+20480; HB=4096; AP=HB+2048; ST=AP+256; HELP=135168
        sAi,sHd,sJ,s0,s1,s2_,sSL = 72,73,74,63,64,65,66
        sF,sG = 60,61
        if self.o.get('noA'): e('s_branch L_EXIT')
        order = self.o.get('a_order', 'qqqqq|uuuuuuuu')
        cnt = {'q':5,'u':0}
        def issue(ch):
            if ch == 'q': self.wq_dma(cnt['q'])
            else:
                if cnt['u'] == 0: self.wuk_setup(sAi, rB)
                self.wuk_dma(cnt['u'], rB, WUK)
            cnt[ch] += 1
        e(f's_sub_u32 s{sAi}, s{sR}, 16')
        order, o3 = (order.split('!') + [''])[:2]
        o1, o2 = order.split('|')
        for ch in o1: issue(ch)
        self.ws_srd()
        e(f's_load_dword s{sE}, s[{pWS}:{pWS+1}], {EPOCH}')
        e(f"""
        s_lshl_b32 s63, s{sX8}, 2
        s_and_b32 s{sHd}, s{sAi}, 3
        s_add_u32 s{sHd}, s{sHd}, s63
        s_lshr_b32 s{sJ}, s{sAi}, 2
        s_lshl_b32 s{sSL}, s{sX8}, 4
        s_add_u32 s{sSL}, s{sSL}, s{sAi}
        """)
        def mid():
            for ch in o2: issue(ch)
        full = o1 + o2
        self.a1('A', 5+len(o1), len(full)-1-full.rindex('q'), mid)
        for ch in o3: issue(ch)
        e(f"""
        s_and_b32 s{s0}, s{sX8}, 6
        s_add_u32 s{s0}, s{s0}, s{sX8}
        s_lshl2_add_u32 s{s0}, s{s0}, s{sW}
        s_lshl4_add_u32 s{s0}, s{s0}, s{sAi}
        s_lshl_b32 s{s0}, s{s0}, 6
        s_add_u32 s{s0}, s{s0}, {QLB}
        v_lshlrev_b32 v14, 13, v2
        v_lshl_add_u32 v12, v1, 2, v14
        v_add_u32 v12, s{s0}, v12
        s_lshl2_add_u32 s{s1}, s{sSL}, s{sW}
        s_lshl_b32 s{s0}, s{s1}, 7
        s_add_u32 s{s0}, s{s0}, {HCB}
        v_lshlrev_b32 v13, 3, v0
        v_add_u32 v13, s{s0}, v13
        s_lshl_b32 s{s0}, s{s1}, 3
        s_add_u32 s{s0}, s{s0}, {QCS}
        v_add_u32 v14, s{s0}, v14
        s_and_b32 s{s1}, s{sAi}, 7
        s_lshl_b32 s{s1}, s{s1}, 1
        v_cmp_eq_u32 vcc, s{s1}, v1
        v_cndmask_b32 v14, v9, v14, vcc
        v_cmp_gt_u32 vcc, 32, v0
        v_cndmask_b32 v101, v9, v12, vcc
        v_cndmask_b32 v103, v9, v14, vcc
        v_cmp_gt_u32 vcc, 16, v0
        v_cndmask_b32 v100, v9, v12, vcc
        v_cndmask_b32 v26, v9, v14, vcc
        v_cndmask_b32 v102, v9, v13, vcc
        v_mov_b32 v99, s{sT0}
        """)
        if self.o.get('clean'): e('v_mov_b32 v245, v62\nv_mov_b32 v246, v100\nv_mov_b32 v247, v26\nv_mov_b32 v248, v102')
        e(f"""
        v_lshlrev_b32 v27, 9, v2
        v_lshl_add_u32 v27, v1, 4, v27
        s_lshl_b32 s{s2_}, s{sX8}, 2
        s_add_u32 s{s2_}, s{s2_}, s{sW}
        s_lshl_b32 s{s2_}, s{s2_}, 11
        s_add_u32 s{s2_}, s{s2_}, {QP+LOC}
        v_lshlrev_b32 v12, 9, v1
        s_lshl_b32 s{s0}, s{sW}, 13
        s_add_u32 s{s0}, s{s0}, {WUK}
        v_add_u32 v12, s{s0}, v12
        v_and_b32 v13, 1, v1
        v_and_b32 v14, 4, v1
        v_lshl_or_b32 v13, v13, 1, v14
        v_lshlrev_b32 v13, 5, v13
        """)
        def h0loads():
            for i in range(2): e(f'buffer_load_dwordx4 {v(64+4*i,4)}, v27, {srd(rWS)}, s{s2_} offen offset:{i*256} sc1')
        for s in range(4):
            e(f'v_add_u32 v14, {s*64}, v11\nv_xor_b32 v14, v14, v13\nv_add_u32 v{40+2*s}, v14, v12\nv_xor_b32 v14, 32, v14\nv_add_u32 v{41+2*s}, v14, v12')
        vI = 28
        self.ident_masks(vI, 0x3f80, 0x3f800000, 0, 8, 12)
        e(f"""
        s_lshl_b32 s{s0}, s{sW}, 8
        v_lshlrev_b32 v12, 3, v0
        v_add_u32 v12, s{s0}, v12
        v_mov_b32 v13, {DUM}
        v_cmp_gt_u32 vcc, 32, v0
        v_cndmask_b32 v24, v13, v12, vcc
        v_add_u32 v25, s{s0}, v11
        """)
        e(f's_waitcnt vmcnt({(0 if o3 else 1)+self.o.get("h0lead",3)})')
        h0loads()
        e(f's_waitcnt vmcnt({2 if o3 else 3})')
        self.stamp('A.wuk')
        vU = 112
        for s in range(4):
            for T in range(2): e(f'ds_read_b128 {v(vU+(s*2+T)*4,4)}, v{40+2*s+T} offset:{T*256}')
        e('L_A_H0:')
        e('s_waitcnt vmcnt(0)')
        for i in range(2):
            e(f'v_mfma_f32_16x16x16_bf16 v[80:83], {v(vI+2*i,2)}, {v(64+4*i,2)}, ' + ('0' if i==0 else 'v[80:83]'))
        self.tagcheck(12, [66,70])
        e('s_cbranch_vccz L_A_H0OK')
        self.fb((), (s2_,)); self.late_pubg('v[16:19]', 62)
        h0loads()
        e('s_branch L_A_H0')
        e('L_A_H0OK:')
        self.stamp('A.h0')
        e(f'v_cvt_pk_bf16_f32 v84, v80, v81\nv_cvt_pk_bf16_f32 v85, v82, v83\nds_write_b64 v24, v[84:85] offset:{QV}')
        for s in range(4): e(f'ds_read_b128 {v(144+4*s,4)}, v25 offset:{QV+s*64}')
        for s in range(4):
            e(f's_waitcnt lgkmcnt({3-s})')
            for T in range(2):
                e(f'v_mfma_f32_16x16x32_bf16 {v(104+4*T,4)}, {v(144+4*s,4)}, {v(vU+(s*2+T)*4,4)}, ' + ('0' if s==0 else v(104+4*T,4)))
        e('v_cvt_pk_bf16_f32 v64, v104, v108')
        self.pubg('v64', 101); self.publ('v64', 100)
        e(f'v_add_u32_dpp v96, v64, v64 quad_perm:[2,3,0,1] {DPP}\nv_xor_b32 v97, s{sT0}, v64\nv_add_u32_dpp v96, v96, v96 row_ror:4 {DPP}\nv_add_u32_dpp v96, v96, v96 row_ror:8 {DPP}')
        self.pubg('v[96:97]', 103); self.publ('v[96:97]', 26)
        self.stamp('A.ql')
        self.pubg('v[16:19]', 62)
        e('s_branch L_A2\n;SEG A2\nL_A2:')
        if self.o.get('atouch', 0):
            e(f"""
            s_lshl2_add_u32 s{s0}, s{sAi}, s{sW}
            s_and_b32 s{s0}, s{s0}, 31
            s_cmp_lg_u32 s{s0}, 5
            s_cbranch_scc1 L_NOAT
            s_mov_b32 s{s0}, 0x200000
            s_mul_i32 s{s1}, s{sX8}, 655360
            s_add_u32 s{s2_}, s{s1}, 655296
            s_mov_b32 s{sTMP}, {CS}
            s_load_dword s8, s[{pWUV}:{pWUV+1}], 0
            s_load_dword s8, s[{pWUV}:{pWUV+1}], s{s0}
            s_load_dword s8, s[{pWO}:{pWO+1}], s{s1}
            s_load_dword s8, s[{pWO}:{pWO+1}], s{s2_}
            s_load_dword s8, s[{pW2}:{pW2+1}], 0
            s_load_dword s8, s[{pW2}:{pW2+1}], s{s0}
            s_load_dword s8, s[{pWS}:{pWS+1}], s{sTMP}
            s_load_dword s8, s[{pOUT}:{pOUT+1}], 0
            s_waitcnt lgkmcnt(0)
            L_NOAT:
            """)
        if self.o.get('pf', 3) == 3:
            e(f's_getpc_b64 s[20:21]\nL_PC:\ns_sub_u32 s20, s20, L_PC-{KN}\ns_subb_u32 s21, s21, 0')
            e(f's_lshl_b32 s{s0}, s{sW}, 13\nv_lshlrev_b32 v12, 7, v0\nv_add_u32 v12, s{s0}, v12\nv_min_u32 v12, L_CODE_END-4-{KN}, v12')
            e(f's_and_b32 s{s0}, s{sAi}, 3\ns_cmp_lg_u32 s{s0}, 0\ns_cbranch_scc1 L_NOPF\nglobal_load_dword v255, v12, s[20:21]\nL_NOPF:')
        e('s_barrier')
        nh = self.o.get('a_help', 0)
        if nh:
            tsh, wsh, istr = self.kmap()
            self.kbase(s0, sSL, tsh)
            self.mk_srd(rA, pCKV, s0, 16777216)
            e(f'v_lshlrev_b32 v12, 10, v2\nv_lshl_add_u32 v12, v1, 4, v12\ns_lshl_b32 s68, s{sW}, {wsh}\ns_lshl_b32 s69, s{sW}, 12\ns_add_u32 m0, s69, {HELP}')
            for n in range(32-nh, 32):
                c, i = n >> 3, n & 7
                e(f's_add_u32 s{sTMP}, s68, {self.ioff(i,istr)+c*256}')
                e(f'buffer_load_dwordx4 v12, {srd(rA)}, s{sTMP} offen {self.o.get("helpflag","nt")} lds')
        e(f"""
        v_lshrrev_b32 v12, 1, v2
        v_lshl_add_u32 v62, v12, 20, v5
        v_and_b32 v12, 1, v2
        v_lshl_add_u32 v62, v12, 17, v62
        v_xor_b32 v62, s67, v62
        s_lshl_b32 s{sG}, s{sJ}, 3
        s_add_u32 s{sG}, s{sG}, s{sX8}
        s_and_b32 s{sF}, s{sAi}, 3
        s_lshl_b32 s{s2_}, s{sG}, 2
        s_add_u32 s{sF}, s{sF}, s{s2_}
        """)
        sB = 62
        e(f"""
        v_and_b32 v5, 7, v1
        v_lshlrev_b32 v5, 4, v5
        v_and_b32 v6, 1, v2
        v_lshl_add_u32 v6, v6, 3, v5
        v_lshrrev_b32 v12, 3, v0
        v_and_b32 v13, 3, v12
        v_lshl_add_u32 v14, v13, 11, v5
        v_lshrrev_b32 v13, 5, v0
        v_lshl_add_u32 v14, v13, 14, v14
        v_cmp_eq_u32 vcc, s{sX8}, v12
        v_or_b32 v13, s{sLOC}, v14
        s_lshr_b32 s77, s{sX8}, 2
        s_lshl_b32 s77, s77, 13
        v_cndmask_b32 v46, v14, v13, vcc
        v_mov_b32 v15, 8192
        v_cndmask_b32 v40, v15, 0, vcc
        s_cmp_ge_u32 s{sG}, 27
        s_cbranch_scc1 L_A_NOF
        s_lshl_b32 s{s0}, s{sF}, 5
        """)
        self.mk_srd(rA, pW1, s0, 2211840)
        e(f's_mul_i32 s{s0}, s{sF}, 20480')
        self.mk_srd(rB, pW2, s0, 2211840)
        e(f"""
        v_and_b32 v7, 3, v12
        v_lshlrev_b32 v7, 3, v7
        v_lshrrev_b32 v8, 5, v0
        v_lshl_add_u32 v7, v8, 2, v7
        v_bfe_u32 v8, v0, 1, 2
        v_add_u32 v7, v7, v8
        v_mul_u32_u24 v7, 3456, v7
        v_and_b32 v8, 1, v0
        v_lshl_add_u32 v7, v8, 4, v7
        s_and_b32 s78, s{sF}, 3
        s_lshl_b32 s78, s78, 2
        s_add_u32 s78, s78, s{sW}
        """)
        w1f = self.o.get('w1flag', '')
        n1 = self.o.get('w1first', 2)
        def w1dma(k, r):
            if k == 1: e(f's_add_u32 s{sTMP}, s{sW}, 16')
            else:
                if k >= 2: e(f's_add_u32 s78, s78, 4\ns_and_b32 s78, s78, 15')
                e(f's_mov_b32 s{sTMP}, s78')
            e(f's_lshl_b32 s{s0}, s{sTMP}, 10\ns_add_u32 m0, s{s0}, {W1}\ns_mul_i32 s{s0}, s{sTMP}, 110592')
            e(f'buffer_load_dwordx4 v7, {srd(r)}, s{s0} offen {w1f} lds')
        for k in range(n1): w1dma(k, rA)
        e(f"""
        s_mul_i32 s{sB}, s{sW}, 3
        s_cmp_eq_u32 s{sW}, 3
        s_cselect_b32 s{sB}, 8, s{sB}
        s_lshl_b32 s{sB}, s{sB}, 7
        v_lshrrev_b32 v8, 1, v2
        v_lshl_add_u32 v8, v8, 7, v6
        s_cmp_lt_u32 s{sW}, 2
        s_cselect_b32 s{s0}, 32, 0
        v_cmp_gt_u32 vcc, s{s0}, v0
        v_cndmask_b32 v13, v9, v6, vcc
        v_cmp_gt_u32 vcc, 8, v1
        v_cndmask_b32 v12, v9, v8, vcc
        v_cndmask_b32 v13, v9, v13, vcc
        buffer_load_dwordx2 v[16:17], v12, {srd(rC)}, s{sB} offen
        buffer_load_dwordx2 v[18:19], v13, {srd(rC)}, s{sB} offen offset:256
        s_lshl_b32 s{s0}, s{sF}, 5
        """)
        self.mk_srd(rC, pB1, s0, 3456)
        e(f'v_lshlrev_b32 v12, 3, v2\nbuffer_load_dwordx2 v[58:59], v12, {srd(rC)}, 0 offen')
        e(f"""
        s_lshl_b32 s{s0}, s{sW}, 9
        s_add_u32 s{s0}, s{s0}, {HB}
        v_add_u32 v48, s{s0}, v8
        v_add_u32 v12, 256, v48
        v_mov_b32 v13, {DUM}
        v_cmp_gt_u32 vcc, 32, v0
        v_cndmask_b32 v49, v13, v12, vcc
        v_add_u32 v50, s{s0}, v11
        s_cmp_lt_u32 s{sW}, 2
        s_cselect_b32 s{s0}, 0, {OOB}
        v_max_u32 v47, s{s0}, v46
        s_add_u32 s79, s{sB}, {H3B}
        v_lshl_add_u32 v12, v1, 6, v11
        s_mul_i32 s{s0}, s{sW}, 320
        v_add_u32 v13, s{s0}, v12
        s_and_b32 s{s2_}, s{sF}, 3
        s_lshl3_add_u32 s{s2_}, s{sG}, s{s2_}
        s_lshl_b32 s{s2_}, s{s2_}, 11
        s_add_u32 s{s2_}, s{s2_}, {HS+8192}
        v_add_u32 v12, s{s2_}, v13
        v_cmp_gt_u32 vcc, 5, v1
        v_cndmask_b32 v51, v9, v12, vcc
        v_bfe_u32 v13, v13, 7, 2
        v_add_u32 v13, 4, v13
        v_cmp_eq_u32 vcc, s{sX8}, v13
        v_cndmask_b32 v43, v9, v51, vcc
        s_and_b32 s{s0}, s{sW}, 1
        s_mul_i32 s{s0}, s{s0}, 640
        s_add_u32 s{s2_}, s{s2_}, s{s0}
        s_lshr_b32 s{s0}, s{sW}, 1
        s_lshl_b32 s{s0}, s{s0}, 20
        s_add_u32 s{s2_}, s{s2_}, s{s0}
        v_add_u32 v12, s{s2_}, v3
        v_cmp_gt_u32 vcc, 40, v0
        v_cndmask_b32 v41, v9, v12, vcc
        s_lshl_b32 s{s2_}, s{sB}, 4
        s_add_u32 s{s2_}, s{s2_}, {W1}
        v_lshlrev_b32 v52, 3, v0
        v_add_u32 v52, s{s2_}, v52
        v_lshrrev_b32 v12, 2, v0
        v_mul_u32_u24 v12, 1280, v12
        v_and_b32 v13, 3, v1
        v_lshl_add_u32 v12, v13, 4, v12
        v_add_u32 v53, {W2}, v12
        s_lshl_b32 s{s0}, s{sW}, 2
        v_lshrrev_b32 v12, 5, v0
        v_lshlrev_b32 v12, 4, v12
        v_add_u32 v12, s{s0}, v12
        v_add_u32 v54, {ST}, v12
        s_lshl_b32 s{s0}, s{sW}, 6
        v_add_u32 v55, {AP}, v11
        v_add_u32 v45, s{s0}, v55
        v_mov_b32 v44, {ST}
        s_cmp_eq_u32 s{sW}, 3
        s_cselect_b32 s{s0}, 2048, 0
        v_subrev_u32 v42, s{s0}, v52
        """)
        e(f'v_lshrrev_b32 v12, 2, v1\nv_lshlrev_b32 v12, 6, v12\ns_mul_i32 s{s0}, s{sW}, 320')
        for P in range(5):
            e(f'v_xor_b32 v13, s{s0}, v12\nv_add_u32 v{229+P}, v13, v53')
            if P < 4: e(f's_add_u32 s{s0}, s{s0}, 64')
        e('s_branch L_A_FDONE\nL_A_NOF:')
        sK = sF
        e(f"""
        s_and_b32 s{s0}, s{sAi}, 3
        s_and_b32 s{sK}, s{sX8}, 3
        s_lshl2_add_u32 s{sK}, s{s0}, s{sK}
        s_cmp_lt_u32 s{sX8}, 4
        s_cselect_b32 s{sK}, 15, s{sK}
        s_lshl_b32 s{sB}, s{sK}, 7
        """)
        self.mk_srd(rB, pB2, None, 1280)
        e(f"""
        s_cmp_eq_u32 s{sW}, 0
        s_cselect_b32 s{s1}, 32, 0
        v_cmp_gt_u32 vcc, s{s1}, v0
        v_cndmask_b32 v6, v9, v6, vcc
        v_cmp_gt_u32 vcc, 8, v1
        v_cndmask_b32 v6, v9, v6, vcc
        buffer_load_dwordx2 v[16:17], v6, {srd(rC)}, s{sB} offen
        buffer_load_dwordx2 v[18:19], v6, {srd(rB)}, s{sB} offen
        s_mul_i32 s{s0}, s{sW}, 28
        v_add_u32 v15, s{s0}, v12
        """)
        for i in range(4):
            e(f'v_bfe_u32 v10, v15, 2, 3\nv_cmp_eq_u32 vcc, s{sX8}, v10\nv_cndmask_b32 v{48+i}, v14, v13, vcc')
            if i < 3: e('v_add_u32 v15, 8, v15')
            if i > 0: e(f'v_add_u32 v{48+i}, {32768*i}, v{48+i}')
        e(f"""
        s_cmp_lt_u32 s{sW}, 3
        s_cselect_b32 s{s1}, 4, 0
        v_cmp_gt_u32 vcc, s{s1}, v12
        v_cndmask_b32 v51, v9, v51, vcc
        s_add_u32 s79, s{sB}, {H3B}
        v_mov_b32 v47, v46
        v_mov_b32 v43, v9
        v_mov_b32 v41, v9
        s_lshl_b32 s{s0}, s{s0}, 12
        s_add_u32 s78, s{sB}, s{s0}
        s_add_u32 s78, s78, {HS+8192}
        v_lshlrev_b32 v52, 5, v1
        v_lshl_add_u32 v52, v2, 4, v52
        s_lshl_b32 s{s1}, s{sW}, 8
        s_add_u32 s{s1}, s{s1}, {RED}
        v_add_u32 v52, s{s1}, v52
        v_mov_b32 v13, {DUM}
        v_cmp_gt_u32 vcc, 32, v0
        v_cndmask_b32 v52, v13, v52, vcc
        v_cmp_gt_u32 vcc, 8, v1
        v_cndmask_b32 v52, v13, v52, vcc
        v_cmp_gt_u32 vcc, 16, v0
        v_lshlrev_b32 v12, 3, v0
        v_cndmask_b32 v53, v9, v12, vcc
        v_lshlrev_b32 v54, 4, v1
        v_cmp_eq_u32 vcc, 0, v0
        v_cndmask_b32 v55, v9, v0, vcc
        L_A_FDONE:
        """)
        e(f's_lshl_b32 s{s0}, s{sW}, 2\nv_add_u32 v12, s{s0}, v2')
        for k in range(5):
            e(f'v_add_u32 v13, {16*k}, v12\nv_mul_u32_u24 v13, 205, v13\nv_bfe_u32 v13, v13, 10, 2\nv_lshlrev_b32 v13, 6, v13\nv_xor_b32 v{224+k}, v13, v3')
        vMk = 36
        self.ident_masks(vMk, 0xffff, 0xffff0000, 0, 4, 12)
        e(f"""
        s_lshl_b32 s{s0}, s{sW}, 2
        v_add_u32 v12, s{s0}, v2
        v_lshlrev_b32 v20, 10, v1
        v_lshl_add_u32 v20, v12, 14, v20
        v_lshrrev_b32 v13, 1, v12
        v_cmp_eq_u32 vcc, s{sX8}, v13
        v_or_b32 v12, s{sLOC}, v20
        v_cndmask_b32 v20, v20, v12, vcc
        v_and_b32 v20, s{sLM}, v20
        v_lshl_add_u32 v12, v2, 3, v1
        v_lshlrev_b32 v12, 8, v12
        v_mov_b32 v13, s{sT0}
        v_cmp_gt_u32 vcc, 8, v1
        v_cndmask_b32 v20, v9, v20, vcc
        v_cndmask_b32 v26, v9, v12, vcc
        v_cndmask_b32 v25, 0, v13, vcc
        s_mov_b32 s70, 0x00ff00ff
        s_mov_b32 s71, 0x00ff00ff
        s_and_b32 s{s1}, s{sHd}, 15
        s_lshl4_add_u32 s68, s{sJ}, s{s1}
        s_lshl_b32 s67, s68, 2
        s_lshl_b32 s68, s68, 4
        s_add_u32 s68, s68, s77
        s_add_u32 s68, s68, {REC}
        s_add_u32 s67, s67, s77
        s_lshl_b32 s{s1}, s{sW}, 14
        s_add_u32 s67, s67, s{s1}
        s_add_u32 s67, s67, {CS}
        v_lshlrev_b32 v22, 18, v2
        v_lshl_add_u32 v22, v1, 4, v22
        s_lshl_b32 s{s0}, s{sW}, 20
        s_add_u32 s69, s77, s{s0}
        s_add_u32 s69, s69, {PART}
        s_lshr_b32 s{s0}, s{sJ}, 1
        s_lshl_b32 s{s0}, s{s0}, 14
        s_add_u32 s69, s69, s{s0}
        s_and_b32 s{s0}, s{sJ}, 1
        s_lshl_b32 s{s0}, s{s0}, 12
        s_add_u32 s69, s69, s{s0}
        s_and_b32 s{s0}, s{sHd}, 3
        s_lshl_b32 s{s0}, s{s0}, 10
        s_add_u32 s69, s69, s{s0}
        s_bfe_u32 s{s0}, s{sHd}, 0x20002
        s_lshl_b32 s{s0}, s{s0}, 8
        s_add_u32 s69, s69, s{s0}
        v_lshlrev_b32 v12, 4, v1
        v_lshl_add_u32 v12, v2, 3, v12
        s_mul_i32 s{s0}, s{sW}, 320
        s_add_u32 s{s0}, s{s0}, {CL}
        v_add_u32 v12, s{s0}, v12
        v_mov_b32 v13, {DUM}
        v_cmp_gt_u32 vcc, 32, v0
        v_cndmask_b32 v23, v13, v12, vcc
        v_and_b32 v12, 3, v1
        v_mul_u32_u24 v12, 320, v12
        v_add_u32 v12, v12, v11
        v_add_u32 v24, {CL}, v12
        s_lshl_b32 s{s0}, s{sW}, 2
        s_add_u32 s{s0}, s{s0}, {ML}
        v_mov_b32 v12, s{s0}
        v_cmp_gt_u32 vcc, 8, v1
        v_cndmask_b32 v21, v13, v12, vcc
        v_mov_b32 v27, {ML}
        v_add_u32 v56, {WUV}, v60
        v_add_u32 v57, {WUV}, v61
        """)
        e(f's_lshl_b32 s{s0}, s{sJ}, 18\ns_lshl_b32 s{s1}, s{sHd}, 8\ns_add_u32 s{s0}, s{s0}, s{s1}')
        self.mk_srd(rC, pWUV, s0, 4194304)
        e(f's_waitcnt vmcnt(0)\ns_cmp_ge_u32 s{sG}, 27\ns_cbranch_scc1 L_A_NOW1')
        for k in range(n1, 5): w1dma(k, rA)
        e('L_A_NOW1:')
        if self.o.get('uvwait'): e('s_waitcnt vmcnt(0)')
        self.stamp('A.gate')
        e(f"""
        s_and_b32 s{s0}, s{sW}, 1
        s_lshl_b32 s{s0}, s{s0}, 8
        s_lshr_b32 s{s1}, s{sW}, 1
        s_add_u32 s{s0}, s{s0}, s{s1}
        s_lshl_b32 s{s0}, s{s0}, 13
        s_lshl_b32 s{s1}, s{sW}, 10
        """)
        for k in range(8):
            e(f's_add_u32 m0, s{s1}, {WUV+k*4096}')
            e(f'buffer_load_dwordx4 v62, {srd(rC)}, s{s0} offen nt lds')
            if k < 7: e(f's_add_u32 s{s0}, s{s0}, 16384')
        e('v_min_u32 v14, 92, v4')
        if self.o.get('hcpre', 1): e(f'buffer_load_dword v255, v102, {srd(rWS)}, s{sLOC} offen')
        e(f'L_A_POL:\nglobal_load_dword v15, v14, s[{pDBG}:{pDBG+1}] sc1\ns_waitcnt vmcnt(0)')
        for x in self.pol_ops(15, 8): e(x)
        e('s_cbranch_vccz L_A_POLOK'); self.timeout(); e('s_branch L_A_POL\nL_A_POLOK:')
        e(f"""
        s_and_b32 s12, s{sX8}, 3
        s_lshr_b32 s12, s11, s12
        s_and_b32 s12, s12, 1
        s_lshl_b32 s12, s12, 13
        s_xor_b32 s67, s67, s9
        s_xor_b32 s67, s67, s12
        s_cmp_lt_u32 s{sW}, 2
        s_cselect_b32 s9, s9, s10
        s_xor_b32 s9, s9, s12
        s_xor_b32 s12, s12, s8
        s_xor_b32 s69, s69, s9
        s_xor_b32 s68, s68, s12
        s_xor_b32 s77, s77, s12
        v_and_b32 v40, s77, v40
        v_xor_b32 v46, v46, v40
        v_xor_b32 v47, v47, v40
        v_xor_b32 v43, s12, v43
        v_bfe_u32 v12, v41, 7, 2
        v_bfe_u32 v12, s11, v12, 1
        v_lshlrev_b32 v12, 13, v12
        v_xor_b32 v12, s8, v12
        v_xor_b32 v41, v12, v41
        v_bfe_u32 v12, v51, 7, 2
        v_bfe_u32 v12, s11, v12, 1
        v_lshlrev_b32 v12, 13, v12
        v_xor_b32 v12, s8, v12
        s_cmp_ge_u32 s{sG}, 27
        s_cselect_b32 s9, s12, 0
        s_cselect_b32 s10, 0, -1
        s_xor_b32 s78, s78, s9
        v_and_b32 v12, s10, v12
        v_xor_b32 v51, v12, v51
        v_mov_b32 v12, -1
        v_mov_b32 v13, -1
        v_mov_b32 v14, -1
        v_mov_b32 v15, -1
        buffer_store_dwordx4 v[12:15], v41, {srd(rWS)}, 0 offen sc1
        """)
        e('s_branch L_A3\n;SEG A3\nL_A3:')
        e('s_barrier')
        self.stamp('A.land')
        for s in range(4):
            for T in range(2):
                for q in range(2): e(f'ds_read_b64_tr_b16 {a((s*2+T)*4+2*q,2)}, v{56+T} offset:{s*8192+q*1024}')
        e(f'buffer_load_dwordx4 v[236:239], v20, {srd(rWS)}, s68 offen sc1')
        vC0, vC1, vB1, vS1 = 192, 196, 200, 204
        for dst,src in [(vC0,16),(vC1,18)]:
            e(f'v_lshlrev_b32 v{dst}, 16, v{src}\nv_and_b32 v{dst+1}, 0xffff0000, v{src}\nv_lshlrev_b32 v{dst+2}, 16, v{src+1}\nv_and_b32 v{dst+3}, 0xffff0000, v{src+1}')
        e('s_waitcnt lgkmcnt(0)')
        self.stamp('A.w2rdy')
        def rl_(k): e(f'buffer_load_dwordx4 {v(236+4*k,4)}, v20, {srd(rWS)}, s68 offen sc1')
        def rc_(k):
            e(f'v_cmp_ne_u64 vcc, s[{sT0}:{sT1}], {v(238+4*k,2)}\nv_mov_b32 v64, v{236+4*k}\nv_mov_b32 v65, v{237+4*k}\ns_and_b64 vcc, vcc, s[70:71]')
        self.ppoll('L_A_REC', self.o.get('nrec',2), 1, rl_, rc_, vregs=(20,), pre_issued=1)
        vD = 128; vAF = 160
        if self.stamps and 'A.rec1' in self.o.get('want', []):
            k = len(self.slots['A']); e(f's_waitcnt lgkmcnt(0)\ns_cmp_lg_u32 s{sSTAMP+2*k}, 0\ns_cbranch_scc1 L_R1'); self.stamp('A.rec1'); e('L_R1:')
        if self.o.get('recbar'): e('s_barrier')
        dd = self.o.get('ddelay', [0,0])
        if dd[0]: e(f's_sleep {dd[0]}')
        if dd[1]: e(f's_cmp_lt_u32 s{sX8}, 4\ns_cbranch_scc1 L_A_NOD\ns_sleep {dd[1]}\nL_A_NOD:')
        def dloads():
            e(f's_mov_b32 s{sTMP}, s69')
            for i in range(8):
                e(f'buffer_load_dwordx4 {v(vD+4*i,4)}, v22, {srd(rWS)}, s{sTMP} offen sc1')
                if i < 7: e(f's_add_u32 s{sTMP}, s{sTMP}, 32768')
            e(f'buffer_load_dword v67, v26, {srd(rWS)}, s67 offen sc1')
        dloads()
        self.stamp('A.rec')
        e('v_mov_b32 v72, v64')
        self.allred('v_max_f32', 72, 74, 3)
        e('v_sub_f32 v64, v64, v72\nv_exp_f32 v64, v64\nv_cvt_pk_bf16_f32 v64, v64, v64\nv_and_b32 v73, 0xffff0000, v64\nv_mul_f32 v73, v73, v65')
        for i in range(8):
            for r in range(4): e(f'v_and_b32_dpp v{vAF+4*i+r}, v64, v{vMk+r} row_newbcast:{i} {DPP}')
        self.allred('v_add_f32', 73, 74, 3)
        e('ds_write2_b32 v21, v72, v73 offset0:0 offset1:4')
        e('L_A_DATA:')
        e('v_sub_u32 v66, 0, v25')
        for i in range(8):
            e(f's_waitcnt vmcnt({8-i})')
            e(f'v_mfma_f32_16x16x32_bf16 v[76:79], {v(vAF+4*i,4)}, {v(vD+4*i,4)}, ' + ('0' if i==0 else 'v[76:79]'))
            e(f'v_add3_u32 v66, v66, v{vD+4*i}, v{vD+4*i+1}\nv_add3_u32 v66, v66, v{vD+4*i+2}, v{vD+4*i+3}')
        e('s_waitcnt vmcnt(0)\nv_add_u32 v66, v66, v67')
        self.stamp('A.data')
        e(f'v_add_u32_dpp v66, v66, v66 quad_perm:[1,0,3,2] {DPP}')
        e(f'v_cvt_pk_bf16_f32 v74, v76, v77\nv_cvt_pk_bf16_f32 v75, v78, v79\nv_add_u32_dpp v66, v66, v66 quad_perm:[2,3,0,1] {DPP}\nds_write_b64 v23, v[74:75]')
        e(f'v_add_u32_dpp v66, v66, v66 row_half_mirror {DPP}\nv_add_u32_dpp v66, v66, v66 row_mirror {DPP}\nv_cmp_ne_u32 vcc, 0, v66\ns_cbranch_vccz L_A_DOK')
        self.timeout()
        if self.stamps: e('s_add_u32 s7, s7, 1')
        e('s_mov_b64 exec, vcc')
        dloads()
        e('s_mov_b64 exec, -1\ns_branch L_A_DATA\nL_A_DOK:')
        e('s_waitcnt lgkmcnt(0)\ns_barrier')
        self.stamp('A.clbar')
        e(f'ds_read_b128 v[80:83], v24\nds_read_b128 v[64:67], v27\nds_read_b128 v[84:87], v24 offset:64\nds_read_b128 v[68:71], v27 offset:16\nds_read_b128 v[88:91], v24 offset:128\nds_read_b128 v[92:95], v24 offset:192')
        fac = [[], ['s_waitcnt lgkmcnt(4)', 'v_max3_f32 v72, v64, v65, v66', 'v_max_f32 v72, v72, v67'], ['v_sub_f32 v64, v64, v72', 'v_sub_f32 v65, v65, v72'], ['v_sub_f32 v66, v66, v72', 'v_sub_f32 v67, v67, v72'],
               ['v_exp_f32 v64, v64'], ['v_exp_f32 v65, v65'], ['v_exp_f32 v66, v66'],
               ['v_exp_f32 v67, v67', 'v_mul_f32 v72, v64, v68', 'v_fmac_f32 v72, v65, v69', 'v_fmac_f32 v72, v66, v70', 'v_fmac_f32 v72, v67, v71', 'v_rcp_f32 v72, v72']]
        for s in range(4):
            e(f's_waitcnt lgkmcnt({[5,3,1,0][s]})')
            for T in range(2):
                e(f'v_mfma_f32_16x16x32_bf16 {v(104+4*T,4)}, {v(80+4*s,4)}, {a((s*2+T)*4,4)}, ' + ('0' if s==0 else v(104+4*T,4)))
                for x in fac[2*s+T]: e(x)
        e('v_pk_mul_f32 v[104:105], v[104:105], v[64:65]\nv_pk_mul_f32 v[108:109], v[108:109], v[64:65]')
        e('v_pk_fma_f32 v[104:105], v[106:107], v[66:67], v[104:105]\nv_pk_fma_f32 v[108:109], v[110:111], v[66:67], v[108:109]')
        e('v_add_f32 v104, v104, v105\nv_add_f32 v108, v108, v109\nv_mul_f32 v104, v104, v72\nv_mul_f32 v108, v108, v72')
        e('v_cvt_pk_bf16_f32 v98, v104, v108')
        self.publ('v[98:99]', 102); self.pubg('v[98:99]', 102)
        self.stamp('A.hc')
        e(f's_cmp_ge_u32 s{sG}, 27\ns_cbranch_scc1 L_FIN')
        def w2dma():
            for k in range(5):
                e(f's_add_u32 m0, s{s1}, {W2+k*4096}\ns_add_u32 s{s0}, s{s1}, {k*4096}')
                e(f'buffer_load_dwordx4 v{224+k}, {srd(rB)}, s{s0} offen nt lds')
        e(f's_lshl_b32 s{s1}, s{sW}, 10')
        w2dma()
        for s in range(6):
            for q in range(2): e(f'ds_read_b64_tr_b16 {a(32+s*4+2*q,2)}, v{52 if s < 4 else 42} offset:{s*1024+q*512}')
        e(f'v_lshlrev_b32 v{vB1}, 16, v58\nv_and_b32 v{vB1+1}, 0xffff0000, v58\nv_lshlrev_b32 v{vB1+2}, 16, v59\nv_and_b32 v{vB1+3}, 0xffff0000, v59')
        e(f's_cmp_lt_u32 s{sW}, 2\ns_cselect_b32 s{s0}, 0x3f803f80, 0')
        for r in range(4): e(f'v_mov_b32 v{208+r}, 0x3f803f80\nv_mov_b32 v{212+r}, s{s0}')
        e('s_waitcnt lgkmcnt(0)')
        for s in range(6):
            e(f'v_mfma_f32_16x16x32_bf16 {v(vS1,4)}, {a(32+s*4,4)}, {v(208 if s < 4 else 212,4)}, ' + ('0' if s == 0 else v(vS1,4)))
        e(f'ds_write_b128 v45, {v(vS1,4)}\ns_waitcnt lgkmcnt(0)\ns_barrier')
        for w in range(4): e(f'ds_read_b128 {v(208+4*w,4)}, v55 offset:{64*w}')
        e('s_waitcnt lgkmcnt(0)')
        for i in range(2): e(f'v_pk_add_f32 {v(208+2*i,2)}, {v(208+2*i,2)}, {v(212+2*i,2)}\nv_pk_add_f32 {v(216+2*i,2)}, {v(216+2*i,2)}, {v(220+2*i,2)}')
        for i in range(2): e(f'v_pk_add_f32 {v(vS1+2*i,2)}, {v(208+2*i,2)}, {v(216+2*i,2)}')
        for P in range(5):
            e(f's_mov_b32 s{68+2*P}, {0x00010001<<P}\ns_mov_b32 s{69+2*P}, {0x00010001<<P}')
        self.lmask((46,47))
        def hl(k):
            b = 152+12*k
            e(f'buffer_load_dwordx4 {v(b,4)}, v46, {srd(rWS)}, s79 offen sc1')
            e(f'buffer_load_dwordx4 {v(b+4,4)}, v46, {srd(rWS)}, s79 offen offset:128 sc1')
            e(f'buffer_load_dwordx4 {v(b+8,4)}, v47, {srd(rWS)}, s79 offen offset:256 sc1')
        def hck(k):
            b = 152+12*k
            e(f'v_mfma_f32_16x16x32_bf16 v[76:79], {v(vI,4)}, {v(b,4)}, {v(vC0,4)}')
            e(f'v_mfma_f32_16x16x32_bf16 v[76:79], {v(vI+4,4)}, {v(b+4,4)}, v[76:79]')
            e(f'v_mfma_f32_16x16x32_bf16 v[80:83], {v(vI,4)}, {v(b+8,4)}, {v(vC1,4)}')
            self.maxchain(12, range(b, b+12))
            e('v_cmp_eq_u32 vcc, -1, v12')
        e('s_waitcnt vmcnt(0)')
        self.stamp('F.land')
        hl(0)
        e('s_barrier')
        for P in range(5):
            for hb in range(2): e(f'ds_read_b64_tr_b16 {a(56+P*4+2*hb,2)}, v{229+P} offset:{hb*8}')
        e('s_waitcnt lgkmcnt(0)')
        self.stamp('F.prep')
        self.ppoll('L_F_POLL', self.o.get('nh3',2), 3, hl, hck, vregs=(46,47), pre_issued=1)
        self.stamp('F.h3b')
        vB = 128
        for r in range(4): e(f'v_add_f32_dpp v{76+r}, v{76+r}, v{76+r} row_ror:8 {DPP}')
        e('v_cvt_pk_bf16_f32 v84, v76, v77\nv_cvt_pk_bf16_f32 v85, v78, v79\nds_write_b64 v48, v[84:85]')
        for s in range(4): e(f'ds_read_b128 {v(vB+4*s,4)}, v50 offset:{s*64}')
        for r in range(4): e(f'v_add_f32_dpp v{80+r}, v{80+r}, v{80+r} row_ror:8 {DPP}')
        e('v_cvt_pk_bf16_f32 v86, v80, v81\nv_cvt_pk_bf16_f32 v87, v82, v83\nds_write_b64 v49, v[86:87]')
        for s in range(4,6): e(f'ds_read_b128 {v(vB+4*s,4)}, v50 offset:{s*64}')
        e('v_pk_add_f32 v[88:89], v[76:77], v[78:79]\nv_pk_mul_f32 v[92:93], v[76:77], v[76:77]\nv_pk_add_f32 v[90:91], v[80:81], v[82:83]\nv_pk_fma_f32 v[92:93], v[78:79], v[78:79], v[92:93]')
        e('v_pk_add_f32 v[88:89], v[88:89], v[90:91]\nv_pk_fma_f32 v[92:93], v[80:81], v[80:81], v[92:93]\nv_pk_fma_f32 v[92:93], v[82:83], v[82:83], v[92:93]')
        st = [['v_add_f32 v88, v88, v89', 'v_add_f32 v92, v92, v93'], ['s_nop 0', 'v_permlane32_swap_b32 v88, v92', 'v_add_f32 v88, v88, v92'], ['v_mov_b32 v92, v88'],
              ['s_nop 0', 'v_permlane16_swap_b32 v88, v92', 'v_add_f32 v88, v88, v92'], ['s_nop 0', f'v_add_f32_dpp v88, v88, v88 quad_perm:[1,0,3,2] {DPP}'],
              [f'v_add_f32_dpp v88, v88, v88 quad_perm:[2,3,0,1] {DPP}', f'v_add_f32_dpp v88, v88, v88 row_half_mirror {DPP}', 'v_mul_f32 v88, 0x3acccccd, v88', 'ds_write_b32 v54, v88']]
        for s in range(6):
            e(f's_waitcnt lgkmcnt({[6,5,4,3,1,0][s]})')
            e(f'v_mfma_f32_16x16x32_bf16 v[96:99], {a(32+s*4,4)}, {v(vB+4*s,4)}, ' + ('0' if s == 0 else 'v[96:99]'))
            for x in st[s]: e(x)
        e('ds_write_b128 v45, v[96:99]\ns_waitcnt lgkmcnt(0)\ns_barrier')
        self.stamp('F.abar')
        e('ds_read_b128 v[100:103], v44\nds_read_b128 v[104:107], v44 offset:16')
        for w in range(4): e(f'ds_read_b128 {v(128+4*w,4)}, v55 offset:{64*w}')
        e(f"""
        s_waitcnt lgkmcnt(4)
        v_pk_add_f32 v[100:101], v[100:101], v[102:103]
        v_pk_add_f32 v[104:105], v[104:105], v[106:107]
        v_add_f32 v100, v100, v101
        v_add_f32 v104, v104, v105
        v_fma_f32 v104, -v100, v100, v104
        v_max_f32 v104, 0, v104
        v_add_f32 v104, 0x3727c5ac, v104
        v_rsq_f32 v104, v104
        s_waitcnt lgkmcnt(0)
        v_pk_fma_f32 v[128:129], {v(vS1,2)}, v[100:101], v[128:129] op_sel_hi:[1,0,1] neg_lo:[0,1,0] neg_hi:[0,1,0]
        v_pk_fma_f32 v[130:131], {v(vS1+2,2)}, v[100:101], v[130:131] op_sel_hi:[1,0,1] neg_lo:[0,1,0] neg_hi:[0,1,0]
        v_pk_add_f32 v[136:137], v[136:137], v[140:141]
        v_pk_add_f32 v[138:139], v[138:139], v[142:143]
        v_pk_add_f32 v[128:129], v[128:129], v[132:133]
        v_pk_add_f32 v[130:131], v[130:131], v[134:135]
        v_pk_add_f32 v[128:129], v[128:129], v[136:137]
        v_pk_add_f32 v[130:131], v[130:131], v[138:139]
        v_pk_fma_f32 v[128:129], v[128:129], v[104:105], {v(vB1,2)} op_sel_hi:[1,0,1]
        v_pk_fma_f32 v[130:131], v[130:131], v[104:105], {v(vB1+2,2)} op_sel_hi:[1,0,1]
        """)
        for r in range(4): e(f'v_max_f32 v{128+r}, 0, v{128+r}')
        e('v_pk_mul_f32 v[128:129], v[128:129], v[128:129]\nv_pk_mul_f32 v[130:131], v[130:131], v[130:131]')
        e('v_cvt_pk_bf16_f32 v108, v128, v129\nv_cvt_pk_bf16_f32 v109, v130, v131')
        self.stamp('F.f1')
        def cm(P): e(f'v_cndmask_b32 v{110+2*P}, 0, v108, s[{68+2*P}:{69+2*P}]\nv_cndmask_b32 v{111+2*P}, 0, v109, s[{68+2*P}:{69+2*P}]')
        cm(0); cm(1)
        for P in range(5):
            for hb in range(2):
                e(f'v_mfma_f32_16x16x16_bf16 {v(120+4*hb,4)}, {a(56+P*4+2*hb,2)}, {v(110+2*P,2)}, ' + ('0' if P == 0 else v(120+4*hb,4)))
                if hb == 0 and P+2 < 5: cm(P+2)
        for i in range(4): e(f'v_cvt_pk_bf16_f32 v{64+i}, v{120+2*i}, v{121+2*i}')
        for i in range(4): e(f'v_min_u32 v{64+i}, -2, v{64+i}')
        self.pubg('v[64:67]', 51)
        if self.o.get('hloc',1): self.publ('v[64:67]', 43)
        self.stamp('F.end')
        e('s_branch L_END')
        e(';SEG FIN\nL_FIN:')
        e(f's_cmp_ge_u32 s{sK}, 10\ns_cbranch_scc1 L_END')
        self.mk_srd(rA, pOUT, None, 1280)
        if self.o.get('vw', 0): e(f'buffer_load_dword v255, v53, {srd(rA)}, s{sB} offen')
        e(f's_cmp_eq_u32 s{sW}, 0\ns_cselect_b32 s{s1}, -1, 0')
        for r in range(4): e(f'v_and_b32 v{32+r}, s{s1}, v{vI+r}')
        e(f'v_pk_add_f32 {v(vC0,2)}, {v(vC0,2)}, {v(vC1,2)}\nv_pk_add_f32 {v(vC0+2,2)}, {v(vC0+2,2)}, {v(vC1+2,2)}\nv_mov_b32 v45, s{sT0}')
        self.lmask((46,))
        e('L_R_P1:')
        e(f'buffer_load_dwordx4 v[64:67], v46, {srd(rWS)}, s79 offen sc1\ns_waitcnt vmcnt(0)')
        self.maxchain(12, range(64,68))
        e('v_cmp_eq_u32 vcc, -1, v12')
        self.retry('L_R_P1', sleep=1, vregs=(46,))
        self.stamp('R.h3b')
        self.lmask((48,49,50,51))
        e(f'v_mfma_f32_16x16x32_bf16 {v(vC0,4)}, v[32:35], v[64:67], {v(vC0,4)}')
        if self.o.get('rdelay'): e(f's_sleep {self.o["rdelay"]}')
        def r4l(k):
            for i in range(4): e(f'buffer_load_dwordx4 {v(208+16*k+4*i,4)}, v{48+i}, {srd(rWS)}, s78 offen sc1')
        def r4c(k):
            for i in range(4): e(f'v_mfma_f32_16x16x32_bf16 v[104:107], {v(vI,4)}, {v(208+16*k+4*i,4)}, ' + (v(vC0,4) if i == 0 else 'v[104:107]'))
            self.maxchain(12, range(208+16*k,224+16*k))
            e('v_cmp_eq_u32 vcc, -1, v12')
        self.ppoll('L_R_P2', self.o.get('nh4',2), 4, r4l, r4c, vregs=(48,49,50,51))
        self.stamp('R.h4')
        for r in range(4): e(f'v_add_f32_dpp v{104+r}, v{104+r}, v{104+r} row_ror:8 {DPP}')
        e(f'ds_write_b128 v52, v[104:107]\ns_waitcnt lgkmcnt(0)\ns_barrier')
        e(f's_cmp_lg_u32 s{sW}, 0\ns_cbranch_scc1 L_END')
        self.red_final(RED, 128, 54, False)
        e(f'buffer_store_dwordx2 v[128:129], v53, {srd(rA)}, s{sB} offen {self.o.get("outflag","sc1")}')
        e(f's_cmp_lg_u32 s{sK}, 0\ns_cbranch_scc1 L_END2')
        e(f'buffer_store_dword v45, v55, {srd(rWS)}, 0 offen offset:{EPOCH} sc1')
        if self.o.get('ampskew'):
            a_, b_ = self.o['ampskew']
            e(f's_load_dwordx8 s[8:15], s[{pDBG}:{pDBG+1}], 128 glc\ns_waitcnt lgkmcnt(0)\ns_sub_u32 s60, s{8+a_}, s{8+b_}\ns_lshl_b32 s60, s60, 4\ns_add_u32 s60, s60, 4000\ns_add_u32 s60, s60, s{sSTAMP}')
            e('L_AMPS:\ns_memrealtime s[62:63]\ns_waitcnt lgkmcnt(0)\ns_sub_u32 s61, s62, s60\ns_cmp_lt_i32 s61, 0\ns_cbranch_scc1 L_AMPS')
        if 'amp' in self.o:
            self.stamp('R.end')
            k = self.idx[self.o['amp']]; ke = self.idx['R.end']
            e(f's_waitcnt lgkmcnt(0)\ns_sub_u32 s60, s{sSTAMP+2*k}, s{sSTAMP}\ns_lshl_b32 s60, s60, 2\ns_add_u32 s60, s60, s{sSTAMP+2*ke}')
            e('L_AMP:\ns_memrealtime s[62:63]\ns_waitcnt lgkmcnt(0)\ns_sub_u32 s61, s62, s60\ns_cmp_lt_i32 s61, 0\ns_cbranch_scc1 L_AMP')
        e('L_END2:')
        if 'amp' not in self.o: self.stamp('R.end')
        e('s_branch L_END')

    def role_T(self):
        e = self.e
        MX = QB; LX = QB+512; PB = QB+1024
        WO = 0; HB = 65536; EX = 11264
        sT, s0, s1, s2_ = 72, 63, 64, 65
        e(';SEG T0\nL_T:')
        if self.o.get('noT'): e('s_branch L_END')
        e(f"""
        s_lshl_b32 s{sT}, s{sX8}, 4
        s_add_u32 s{sT}, s{sT}, s{sR}
        """)
        tsh, wsh, istr = self.kmap()
        self.kbase(s0, sT, tsh)
        self.mk_srd(rB, pCKV, s0, 16777216)
        e(f'v_lshl_add_u32 v52, v2, 10, v5\nv_xor_b32 v53, 0x80, v52\ns_lshl_b32 s68, s{sW}, {wsh}\ns_lshl_b32 s69, s{sW}, 13')
        stages = {0: [((0,1),(c,)) for c in range(4)], 1: [((0,),(0,1,2,3)), ((1,),(0,1,2,3))], 2: [((0,),(0,1,2,3)), ((1,),(0,1)), ((1,),(2,3))],
                  3: [((0,),(0,1)), ((0,),(2,3)), ((1,),(0,1)), ((1,),(2,3))], 4: [((0,1),(0,1)), ((0,),(2,3)), ((1,),(2,3))]}[self.o.get('sorder', 4)]
        seq = []; send = []
        brot = self.o.get('brot', 1)
        if tsh == 'x':
            brot = 9; e(f's_lshl_b32 s{s0}, s{sW}, 1\ns_xor_b32 s{s0}, s{s0}, s{sR}\ns_lshl_b32 s{s0}, s{s0}, 12\ns_or_b32 s68, s68, s{s0}')
        if brot == 1: e(f's_lshl1_add_u32 s{s0}, s{sW}, s{sR}\ns_and_b32 s{s0}, s{s0}, 7\ns_lshl_b32 s{s0}, s{s0}, 12\ns_or_b32 s68, s68, s{s0}')
        if brot == 2: e(f's_lshl_b32 s{s0}, s{sW}, 13\ns_or_b32 s68, s68, s{s0}')
        if brot == 3: e(f's_and_b32 s{s0}, s{sR}, 7\ns_lshl_b32 s{s0}, s{s0}, 12\ns_or_b32 s68, s68, s{s0}')
        for kts, cs_ in stages:
            seq += [(c, i) for kt in kts for i in range(4*kt, 4*kt+4) for c in cs_]; send.append(len(seq)-1)
        def dma(n):
            c, i = seq[n]
            e(f's_add_u32 m0, s69, {c*32768+i*1024}\ns_{"xor_b32" if brot else "add_u32"} s{sTMP}, s68, {self.ioff(i,istr)+c*256}')
            e(f'buffer_load_dwordx4 v{52+(i&1)}, {srd(rB)}, s{sTMP} offen nt lds')
        n0 = self.o.get('n0', 0)
        for n in range(n0): dma(n)
        e('s_branch L_T1\n;SEG T1\nL_T1:')
        e(f"""
        s_lshl_b32 s{s0}, s{sT}, 9
        s_add_u32 s{s0}, s{s0}, {QP+LOC}
        s_and_b32 s{s1}, s{sT}, 0x60
        s_add_u32 s{s1}, s{s1}, s{sT}
        s_lshl_b32 s{s1}, s{s1}, 8
        s_add_u32 s{s1}, s{s1}, {QLB+LOC}
        s_cmp_eq_u32 s{sW}, 2
        s_cselect_b32 s{s0}, s{s1}, s{s0}
        s_lshl_b32 s{s1}, s{sX8}, 9
        s_add_u32 s{s1}, s{s1}, {QCS+LOC}
        s_cmp_eq_u32 s{sW}, 3
        s_cselect_b32 s{s0}, s{s1}, s{s0}
        s_cmp_eq_u32 s{sW}, 0
        s_cselect_b32 s66, {WSSZ}, s{s0}
        v_lshlrev_b32 v12, 7, v0
        v_cmp_gt_u32 vcc, 4, v0
        v_cndmask_b32 v12, v9, v12, vcc
        """)
        e(f's_lshl_b32 s62, s{sW}, 13\ns_add_u32 s62, s62, {QB}')
        self.ws_srd()
        e(f'buffer_load_dword v255, v12, {srd(rWS)}, s66 offen')
        e(f"""
        s_and_b32 s71, s{sX8}, 4
        s_add_u32 s71, s71, s{sX8}
        s_lshl_b32 s71, s71, 11
        s_add_u32 s71, s71, {H3B}
        v_mov_b32 v16, -1
        v_mov_b32 v17, -1
        v_mov_b32 v18, -1
        v_mov_b32 v19, -1
        s_and_b32 s{s0}, s{sW}, 1
        s_mul_i32 s{s0}, s{s0}, 640
        s_add_u32 s71, s71, s{s0}
        s_lshr_b32 s{s0}, s{sW}, 1
        s_lshl_b32 s{s0}, s{s0}, 13
        s_add_u32 s71, s71, s{s0}
        s_and_b32 s{s0}, s{sR}, 1
        s_lshl_b32 s{s0}, s{s0}, 20
        s_add_u32 s71, s71, s{s0}
        s_cmp_ge_u32 s{sR}, 14
        s_cselect_b32 s{s0}, 40, 0
        v_cmp_gt_u32 vcc, s{s0}, v0
        v_cndmask_b32 v20, v9, v3, vcc
        """)
        assert n0 == 0
        e(f"""
        s_sub_u32 s24, s{sR}, 11
        s_cmp_eq_u32 s{sW}, 3
        s_cselect_b32 s24, s24, -1
        s_cmp_ge_u32 s24, 3
        s_cbranch_scc1 L_T_NOV1
        s_lshl3_add_u32 s27, s24, s{sX8}
        s_lshl_b32 s27, s27, 2
        s_lshl_b32 s25, s24, 21
        s_mul_i32 s26, s{sX8}, 896
        s_add_u32 s25, s25, s26
        s_add_u32 s25, s25, {PROBE}
        s_add_u32 s26, s25, 8192
        s_load_dword s28, s[{pWS}:{pWS+1}], s25 glc
        s_load_dword s28, s[{pWS}:{pWS+1}], s26 glc
        L_T_NOV1:
        """)
        nuk = 0
        if nuk:
            self.wuk_setup(sR, rA)
            e(f's_mov_b32 s68, {(8-nuk)*32768}')
            for k in range(8-nuk, 8): self.wuk_dma(k, rA, QB)
        if self.o.get('ampskew'):
            e(f's_or_b32 s14, s{sR}, s{sW}\ns_cbranch_scc1 L_NOSK\ns_getreg_b32 s14, hwreg(HW_REG_XCC_ID, 0, 3)\ns_lshl_b32 s14, s14, 2\ns_add_u32 s14, s14, 128\ns_mov_b32 s16, s{sSTAMP}\ns_atomic_add s16, s[{pDBG}:{pDBG+1}], s14\nL_NOSK:')
        if self.o.get('cthr'): e('s_getreg_b32 s15, hwreg(HW_REG_XCC_ID, 0, 3)')
        thr = dict(self.o.get('t_throttle', []))
        vm = [('d',n) for n in range(n0)] + ['pt']
        vKa, vQa, vVa = 24, 28, 32
        vPS, vRS, vMW, vMR, vPW, vPR, vQC, vLR = 40, 41, 42, 43, 44, 45, 46, 47
        vQS = 120
        pre = []
        pre.append(f'v_and_b32 v12, 7, v1\nv_lshlrev_b32 v12, 5, v12\nv_lshlrev_b32 v13, 10, v1\nv_lshlrev_b32 v14, 8, v1\nv_add_u32 v14, s69, v14\nv_add_u32 v13, {QB}, v13')
        for s3 in range(4):
            pre.append(f'v_add_u32 v15, {s3*64}, v11\nv_xor_b32 v15, v15, v12\nv_add_u32 v{vKa+s3}, v14, v15\nv_add_u32 v{vQa+s3}, v13, v15\nv_add_u32 v{56+s3}, 0x10000, v{vKa+s3}')
        pre.append(f"""
        v_lshrrev_b32 v13, 2, v0
        v_and_b32 v15, 7, v13
        v_lshlrev_b32 v13, 8, v13
        v_and_b32 v12, 3, v1
        v_lshl_add_u32 v13, v12, 3, v13
        s_lshl_b32 s{s2_}, s{sW}, 1
        v_xor_b32 v15, s{s2_}, v15
        v_lshl_add_u32 v{vVa}, v15, 5, v13
        v_xor_b32 v15, 1, v15
        v_lshl_add_u32 v{vVa+1}, v15, 5, v13
        v_add_u32 v{vVa+2}, 0x10000, v{vVa}
        v_add_u32 v{vVa+3}, 0x10000, v{vVa+1}
        """)
        for i in range(8): pre.append(f'v_xor_b32 v{vQS+i}, {(i<<5) + (i&3)*1024}, v3')
        pre.append(f"""
        v_add_u32 v15, {EX}, v3
        s_lshl_b32 s{s0}, s{sW}, 2
        v_add_u32 v14, s{s0}, v15
        v_mov_b32 v10, v14
        v_mov_b32 v8, v15
        v_lshrrev_b32 v12, 5, v0
        v_and_b32 v13, 1, v0
        v_lshlrev_b32 v13, 1, v13
        v_lshl_add_u32 v12, v12, 2, v13
        v_bfe_u32 v13, v0, 1, 4
        v_and_b32 v14, 7, v13
        v_lshlrev_b32 v14, 3, v14
        v_lshl_add_u32 v13, v13, 6, v14
        v_lshlrev_b32 v14, 5, v12
        v_xor_b32 v13, v13, v14
        v_lshl_add_u32 v13, v12, 10, v13
        v_add_u32 v6, s62, v13
        s_getreg_b32 s{s0}, hwreg(HW_REG_XCC_ID, 0, 3)
        s_sub_u32 s{s1}, s{s0}, s{sX8}
        s_and_b32 s{s1}, s{s1}, 7
        s_lshr_b32 s17, 0xf0f, s{s1}
        s_bitcmp1_b32 s{s0}, 2
        s_cselect_b32 s{s1}, 15, 0
        s_xor_b32 s17, s17, s{s1}
        s_xor_b32 s17, s17, {15 if self.o.get('sig',1) == 2 else 0}
        s_and_b32 s17, s17, {15 if self.o.get('sig',1) else 0}
        s_and_b32 s{s0}, s{sW}, 1
        s_lshl_b32 s{s0}, s{s0}, 1
        s_lshr_b32 s{s0}, s17, s{s0}
        v_lshrrev_b32 v12, 5, v0
        v_bfe_u32 v12, s{s0}, v12, 1
        v_lshlrev_b32 v12, 14, v12
        v_xor_b32 v6, v6, v12
        v_xor_b32 v7, 32, v6
        s_and_b32 s{s1}, s{s0}, 2
        s_lshl_b32 s{s1}, s{s1}, 13
        s_xor_b32 s16, s62, s{s1}
        s_and_b32 s{s1}, s{s0}, 1
        s_lshl_b32 s{s1}, s{s1}, 14
        s_xor_b32 s62, s62, s{s1}
        s_lshl_b32 s{s2_}, s{sT}, 15
        s_lshr_b32 s{s0}, s{sW}, 1
        s_lshl_b32 s{s0}, s{s0}, 14
        s_add_u32 s{s2_}, s{s2_}, s{s0}
        s_and_b32 s{s0}, s{sW}, 1
        s_lshl_b32 s{s0}, s{s0}, 12
        s_add_u32 s{s2_}, s{s2_}, s{s0}
        s_add_u32 s{s2_}, s{s2_}, {PART}
        v_add_u32 v{vPS}, s{s2_}, v3
        s_and_b32 s75, s{sT}, 0x60
        s_add_u32 s75, s75, s{sT}
        s_lshl2_add_u32 s75, s75, s{sW}
        s_lshl_b32 s75, s75, 6
        s_add_u32 s75, s75, {CS}
        v_min_u32 v68, 92, v4
        s_lshr_b32 s{s2_}, s{sT}, 3
        s_lshl_b32 s{s2_}, s{s2_}, 3
        s_add_u32 s{s2_}, s{s2_}, s{sT}
        s_lshl2_add_u32 s{s2_}, s{s2_}, s{sW}
        s_lshl_b32 s{s2_}, s{s2_}, 8
        s_add_u32 s{s2_}, s{s2_}, {REC}
        v_and_b32 v13, 1, v1
        v_lshrrev_b32 v12, 2, v0
        v_lshl_add_u32 v12, v13, 4, v12
        v_lshlrev_b32 v12, 4, v12
        v_add_u32 v{vLR}, {MX}, v12
        v_and_b32 v12, 0xff, v12
        v_lshl_add_u32 v12, v13, 13, v12
        v_add_u32 v12, s{s2_}, v12
        v_and_b32 v13, 2, v1
        v_cmp_eq_u32 vcc, 0, v13
        v_cndmask_b32 v{vRS}, v9, v12, vcc
        v_bfe_u32 v13, v{vLR}, 6, 3
        v_bfe_u32 v12, s17, v2, 1
        v_lshlrev_b32 v12, 2, v12
        v_xor_b32 v13, v13, v12
        v_cmp_eq_u32 vcc, s{sX8}, v13
        v_cndmask_b32 v4, v9, v{vRS}, vcc
        v_and_b32 v13, 3, v1
        v_cmp_eq_u32 vcc, 0, v13
        v_cndmask_b32 v5, v9, v0, vcc
        v_lshrrev_b32 v12, 1, v2
        v_lshl_add_u32 v12, v12, 4, v1
        v_lshlrev_b32 v12, 4, v12
        s_lshl_b32 s{s2_}, s{sW}, 2
        s_add_u32 s{s2_}, s{s2_}, {MX}
        v_add_u32 v{vMW}, s{s2_}, v12
        v_lshlrev_b32 v12, 4, v1
        v_add_u32 v{vMR}, {MX}, v12
        v_add_u32 v22, s{s2_}, v12
        v_mov_b32 v38, 0x3e0293ee
        s_lshl_b32 s{s2_}, s{sW}, 11
        s_add_u32 s{s2_}, s{s2_}, {PB}
        v_add_u32 v{vPW}, s{s2_}, v3
        v_add_u32 v{vPR}, {PB}, v3
        v_lshrrev_b32 v12, 3, v0
        v_lshrrev_b32 v13, 1, v12
        v_and_b32 v14, 1, v12
        v_lshl_add_u32 v13, v14, 4, v13
        v_mul_u32_u24 v13, 1280, v13
        v_and_b32 v14, 7, v0
        v_lshlrev_b32 v14, 4, v14
        v_and_b32 v12, 1, v2
        v_lshlrev_b32 v12, 5, v12
        v_xor_b32 v14, v14, v12
        v_add_u32 v36, v13, v14
        v_xor_b32 v14, 64, v14
        v_add_u32 v37, v13, v14
        s_lshl_b32 s73, s{sX8}, 2
        s_add_u32 s73, s73, s{sW}
        s_mul_i32 s73, s73, 163840
        v_mov_b32 v60, {EX+1024}
        s_mov_b32 s61, s{sR}
        s_lshl_b32 s74, s{sW}, 14
        """)
        def qloads():
            e(f'buffer_load_dwordx4 v[80:83], v{vQC}, {srd(rWS)}, 0 offen sc1')
            for i in range(8):
                e(f's_add_u32 m0, s{62 if i < 4 else 16}, {i*1024}')
                e(f'buffer_load_dwordx4 v{vQS+i}, {srd(rWS)}, s{76+(i>>2)} offen sc1 lds')
        kdone = set()
        def younger(item): return len(vm) - 1 - vm.index(item)
        def kv(st):
            e(f's_waitcnt vmcnt({younger(("d",send[st]))})')
            if st == len(stages)-1: self.stamp('T.ckv')
            kts, cs_ = stages[st]
            for c in cs_:
                for s3 in range(4):
                    for kt in kts:
                        e(f'ds_read_b128 {a(((4*c+s3)*2+kt)*4,4)}, v{(vKa if c < 2 else 56)+s3} offset:{(c&1)*32768+kt*4096}')
            kdone.add(st)
            if tk and st == len(stages)-1: e(f's_waitcnt lgkmcnt({4*len(kts)*len(cs_)})')
            e('s_barrier')
            if tk and st == len(stages)-2:
                assert tp
                e(f's_cmp_lg_u32 s{sW}, 0\ns_cbranch_scc1 L_T_NOTW\nv_mov_b32 v61, s61\nds_write_b32 v60, v61\nL_T_NOTW:')
            if tk and st == len(stages)-1: e('ds_read_b32 v61, v60')
            for c in cs_:
                for ks in range(4):
                    for T2 in range(2):
                        for q in kts:
                            e(f'ds_read_b64_tr_b16 {a(128+(ks*8+2*c+T2)*4+2*q,2)}, v{vVa+T2+2*(c>>1)} offset:{(c&1)*32768+ks*8192+q*4096}')
        tp = []
        tk = self.o.get('ticket', 0)
        def tprep():
            if tp: return
            tp.append(1)
            e('s_waitcnt lgkmcnt(0)')
            self.tags()
            e(f"""
            s_and_b32 s60, s69, 8192
            s_lshl_b32 s76, s{sW}, 14
            s_add_u32 s76, s76, {QLB}
            s_add_u32 s77, s76, 4096
            s_lshl_b32 s{s0}, s{sW}, 1
            s_cmp_eq_u32 s{s0}, s{sX8}
            s_cselect_b32 s{s1}, s{sLOC}, s60
            s_add_u32 s76, s76, s{s1}
            v_mov_b32 v12, s{s1}
            s_add_u32 s{s0}, s{s0}, 1
            s_cmp_eq_u32 s{s0}, s{sX8}
            s_cselect_b32 s{s1}, s{sLOC}, s60
            s_add_u32 s77, s77, s{s1}
            v_mov_b32 v13, s{s1}
            v_cmp_gt_u32 vcc, 32, v0
            v_cndmask_b32 v12, v13, v12, vcc
            """)
            e(f's_lshl_b32 s{s0}, s{sW}, 10\ns_add_u32 s{s0}, s{s0}, {QCS}\nv_add3_u32 v{vQC}, s{s0}, v3, v12')
        qpos = self.o.get('qpos', 32); npre = max(n0, self.o.get('npre', 2))
        klag = self.o.get('klag', 12)
        for n in range(n0, 33):
            if n == npre:
                for x in pre: e(x)
            if n == npre: e(f's_load_dword s{sE}, s[{pWS}:{pWS+1}], {EPOCH}')
            if n == max(n0, self.o.get('vpos', 6)):
                e('s_cmp_ge_u32 s24, 3\ns_cbranch_scc1 L_T_NOV2\ns_mov_b32 s29, 0\ns_waitcnt lgkmcnt(0)\ns_memtime s[8:9]\ns_waitcnt lgkmcnt(0)')
                ns = self.o.get('nsamp', 1)
                for k in range(ns):
                    e(f's_load_dword s28, s[{pWS}:{pWS+1}], s25 glc\ns_waitcnt lgkmcnt(0)\ns_memtime s[12:13]\ns_waitcnt lgkmcnt(0)')
                    e(f's_load_dword s28, s[{pWS}:{pWS+1}], s26 glc\ns_waitcnt lgkmcnt(0)\ns_sub_u32 s30, s12, s8\ns_memtime s[8:9]\ns_waitcnt lgkmcnt(0)')
                    e(f's_sub_u32 s31, s8, s12\ns_sub_u32 s31, s31, s30\ns_max_i32 s31, s31, -{self.o.get("clip",300)}\ns_min_i32 s31, s31, {self.o.get("clip",300)}\ns_add_u32 s29, s29, s31')
                e(f's_getreg_b32 s31, hwreg(HW_REG_XCC_ID, 2, 1)\ns_sub_u32 s30, 0x1000000, s29\ns_cmp_eq_u32 s31, 0\ns_cselect_b32 s29, s29, s30\ns_add_u32 s29, s29, {BIAS}')
                e(f's_atomic_add s29, s[{pDBG}:{pDBG+1}], s27\nL_T_NOV2:')
            if n == self.o.get('pvpos', 32):
                e(f'global_load_dword v69, v68, s[{pDBG}:{pDBG+1}] sc1'); vm.append('vote')
            if n == qpos:
                tprep()
                self.stamp('T.qiss')
                qloads(); vm += [('q',i) for i in range(9)]
            if self.o.get('rlate', 12) > 1 and n == self.o.get('rlate', 12):
                e(f'buffer_store_dwordx4 v[16:19], v20, {srd(rWS)}, s71 offen sc1'); vm.append('rs')
            if n < 32:
                dma(n); vm.append(('d',n))
                if n in thr: e(f's_waitcnt vmcnt({thr[n]})')
                for mask, lo, hi, d in self.o.get('cthr', []):
                    if lo <= n <= hi:
                        l = e.newlabel('Lc'); e(f's_bitcmp1_b32 {mask}, s15\ns_cbranch_scc0 {l}\ns_waitcnt vmcnt({d})\n{l}:')
            for c in range(len(stages)-1):
                if c not in kdone and n >= npre and ('d',send[c]) in vm and younger(('d',send[c])) >= klag and (c == 0 or c-1 in kdone): kv(c)
        self.stamp('T.issued')
        late_pol = self.o.get('pvpos', 32) >= 30
        def polcode():
            e(f's_waitcnt vmcnt({younger("vote")})\nL_T_POL:')
            for x in self.pol_ops(69, 8): e(x)
            e('s_cbranch_vccnz L_T_POLR')
            e(f"""
            s_xor_b32 s11, s11, s17
            v_bfe_u32 v12, s11, v2, 1
            v_lshlrev_b32 v12, 13, v12
            v_xor_b32 v13, s9, v12
            v_xor_b32 v26, v13, v5
            v_xor_b32 v27, 0x2000, v26
            s_cmp_lt_u32 s{sX8}, 4
            s_cselect_b32 s9, s9, s10
            v_xor_b32 v13, s9, v12
            v_xor_b32 v24, v13, v{vPS}
            v_xor_b32 v25, 0x2000, v24
            v_xor_b32 v12, s8, v12
            v_xor_b32 v15, v12, v{vRS}
            v_xor_b32 v32, v12, v4
            """)
        assert self.o.get('sorder', 4) == 4 and qpos == 32
        for c in range(len(stages)-1):
            if c not in kdone: kv(c)
        e(f's_lshl_b32 s{s1}, s61, 7\ns_add_u32 s73, s73, s{s1}')
        self.mk_srd(rA, pWO, 73, 5242880)
        e(f's_cmp_lt_u32 s61, 10\ns_cselect_b32 s{rA+2}, s{rA+2}, 0')
        if not late_pol: polcode()
        e('s_branch L_T2\n;SEG TQ\nL_T_Q0:\ns_mov_b64 vcc, -1')
        e('L_T_Q2:\ns_mov_b64 s[12:13], vcc')
        if self.o.get('qnear', 1):
            e(f"""
            s_getreg_b32 s14, hwreg(HW_REG_XCC_ID, 2, 1)
            s_lshl_b32 s14, s14, 13
            s_xor_b32 s14, s14, s8
            s_and_b32 s15, s76, s{sLOC}
            s_cselect_b32 s15, 0, s14
            s_andn2_b32 s76, s76, 0x2000
            s_or_b32 s76, s76, s15
            v_mov_b32 v12, s15
            s_and_b32 s15, s77, s{sLOC}
            s_cselect_b32 s15, 0, s14
            s_andn2_b32 s77, s77, 0x2000
            s_or_b32 s77, s77, s15
            v_mov_b32 v13, s15
            v_cmp_gt_u32 vcc, 32, v0
            v_cndmask_b32 v12, v13, v12, vcc
            v_and_b32 v{vQC}, 0xffffdfff, v{vQC}
            v_or_b32 v{vQC}, v{vQC}, v12
            """)
        self.fb((vQC,), (76, 77))
        if self.o.get('qsleep'): e(f's_sleep {self.o["qsleep"]}')
        e(f'buffer_load_dwordx4 v[80:83], v{vQC}, {srd(rWS)}, 0 offen sc1')
        for hf in range(2):
            e(f's_cmp_eq_u32 s{12+hf}, 0\ns_cbranch_scc1 L_T_Q2{hf}')
            for i in range(4*hf, 4*hf+4):
                e(f's_add_u32 m0, s{62 if i < 4 else 16}, {i*1024}')
                e(f'buffer_load_dwordx4 v{vQS+i}, {srd(rWS)}, s{76+hf} offen sc1 lds')
            e(f'L_T_Q2{hf}:')
        e('s_branch L_T_Q3')
        e('L_T_POLR:')
        self.timeout()
        e(f'global_load_dword v69, v68, s[{pDBG}:{pDBG+1}] sc1\ns_waitcnt vmcnt(0)\ns_branch L_T_POL')
        e(';SEG T2\nL_T2:')
        e(f's_waitcnt vmcnt({younger(("d",31))})')
        self.stamp('T.ckv')
        for c in (2,3):
            for s3 in range(4): e(f'ds_read_b128 {a(((4*c+s3)*2+1)*4,4)}, v{56+s3} offset:{(c&1)*32768+4096}')
        if late_pol: polcode()
        e('L_T_Q3:')
        e(f's_waitcnt vmcnt(0)\nds_read_b32 v12, v6\nds_read_b32 v13, v7 offset:1024')
        e(f'v_add_u32 v14, v80, v82\nv_sub_u32 v14, 0, v14\nds_write_b32 v10, v14\nv_xor_b32 v81, s{sT0}, v81\nv_xor_b32 v83, s{sT0}, v83\ns_waitcnt lgkmcnt(0)')
        e('v_xor_b32 v12, v12, v81\nv_xor_b32 v13, v13, v83\nv_or_b32 v12, v12, v13\nv_cmp_ne_u32 vcc, 0, v12\ns_cbranch_vccnz L_T_Q2')
        self.stamp('T.qin')
        e('s_barrier')
        self.stamp('T.Qbar')
        vlast = [f'ds_read_b64_tr_b16 {a(128+(ks*8+2*c+T2)*4+2,2)}, v{vVa+T2+2} offset:{(c&1)*32768+ks*8192+4096}' for ks in range(4) for c in (2,3) for T2 in range(2)]
        def wo_ops(i): return [f's_add_u32 m0, s74, {WO+i*1024}', f's_mov_b32 s{sTMP}, {(32*(i>>2)+4*(i&3))*1280}', f'buffer_load_dwordx4 v{36+(i&1)}, {srd(rA)}, s{sTMP} offen {self.o.get("woflag","nt")} lds']
        nwe = self.o.get('wo_early', 8)
        vS = 48; vP = 76; vPF = 88; vAcc = 128; vO = 192
        def qreg(s, ht): return 128 + ht*64 + s*4
        def qread(s, ht): return f'ds_read_b128 {v(qreg(s,ht),4)}, v{vQa+(s&3)} offset:{(s>>2)*256+ht*16384}'
        def qk(s, kt, ht):
            d = v(vS+(kt*2+ht)*4,4)
            return f'v_mfma_f32_16x16x32_bf16 {d}, {a((s*2+kt)*4,4)}, {v(qreg(s,ht),4)}, ' + ('0' if s == 0 else d)
        def pv(ks, T, ht):
            d = v(vAcc+(ht*8+T)*4,4)
            return f'v_mfma_f32_16x16x32_bf16 {d}, {v(vPF+(ks*2+ht)*4,4)}, {a(128+(ks*8+T)*4,4)}, ' + ('0' if ks == 0 else d)
        def ver(s, ht): return f'v_add3_u32 v23, v23, v{qreg(s,ht)}, v{qreg(s,ht)+2}'
        def cost(x): return 2 if x.startswith('v_exp') else (0 if x.startswith('s_') else 1)
        def stream(mf, toks, bg):
            skip = 0
            for m in mf:
                e(m)
                b = self.o.get('slots', 2)
                if skip: skip -= 1
                else:
                    while toks:
                        t = toks[0]
                        if isinstance(t, tuple): skip = t[1]; toks.pop(0); break
                        if cost(t) > b: break
                        e(t); b -= cost(t); toks.pop(0)
                while bg and cost(bg[0]) <= b:
                    b -= cost(bg[0]); e(bg.pop(0))
            return toks
        def flush(toks):
            for t in toks:
                if not isinstance(t, tuple): e(t)
        D = self.o.get('qD', 5); nh = self.o.get('vhole', 4)
        lq = []
        ng = self.o.get('vgap', 0)
        vgap = vlast[16-ng:]; del vlast[16-ng:]
        def lds(tag, text): e(text); lq.append(tag)
        for s in range(D): lds(('q',s,0), qread(s,0))
        for _ in range(nh): lds('v', vlast.pop(0))
        e('v_mov_b32 v23, 0')
        rd = [(s,0) for s in range(D,16)] + [(s,1) for s in range(16)]
        wo = [wo_ops(i) for i in range(nwe)]
        ex = ['ds_read_b128 v[80:83], v8']
        for s in range(16):
            e(f's_waitcnt lgkmcnt({min(15, len(lq)-1-lq.index(("q",s,0)))})')
            if s == 15: e('s_barrier')
            for kt in range(2):
                e(qk(s,kt,0))
                if rd: x = rd.pop(0); lds(('q',)+x, qread(*x))
                elif ex: lds('e', ex.pop(0))
                elif vlast: lds('v', vlast.pop(0))
                if kt == 0: e(ver(s,0))
                elif wo: flush(wo.pop(0))
                elif vlast: lds('v', vlast.pop(0))
        assert not ex
        self.stamp('T.QK0')
        def sm(ht):
            r0 = vS+ht*4; r1 = vS+8+ht*4; m = 64; t = 65; M = 66+ht; rb = 72
            a_ = [f'v_max3_f32 v{m}, v{r0}, v{r0+1}, v{r0+2}', f'v_max3_f32 v{t}, v{r1}, v{r1+1}, v{r1+2}', f'v_max3_f32 v{m}, v{m}, v{r0+3}, v{r1+3}', f'v_max_f32 v{m}, v{m}, v{t}',
                  f'v_mov_b32 v{t}, v{m}', ('gap',0), f'v_permlane32_swap_b32 v{m}, v{t}', f'v_max_f32 v{m}, v{m}, v{t}', f'v_mov_b32 v{t}, v{m}', ('gap',0),
                  f'v_permlane16_swap_b32 v{m}, v{t}', f'v_max_f32 v{m}, v{m}, v{t}', f'ds_write_b32 v22, v{m} offset:{ht*256}']
            b_ = ['s_waitcnt lgkmcnt(0)', 's_barrier', f'ds_read_b128 {v(rb,4)}, v{vMR} offset:{ht*256}']
            c_ = ['s_waitcnt lgkmcnt(0)', f'v_max3_f32 v{M}, v{rb}, v{rb+1}, v{rb+2}', f'v_max_f32 v{M}, v{M}, v{rb+3}', f'v_mul_f32 v{M}, v38, v{M}']
            for b in (r0, r1):
                for r in range(4): c_.append(f'v_fma_f32 v{b+r}, v{b+r}, v38, -v{M}')
            for b in (r0, r1):
                for r in range(4): c_.append(f'v_exp_f32 v{b+r}, v{b+r}')
            for k,b in enumerate((r0, r1)):
                c_ += [f'v_cvt_pk_bf16_f32 v{vP+ht*4+k*2}, v{b}, v{b+1}', f'v_cvt_pk_bf16_f32 v{vP+ht*4+k*2+1}, v{b+2}, v{b+3}']
            c_.append(f'ds_write_b128 v{vPW}, {v(vP+ht*4,4)} offset:{ht*1024}')
            d_ = ['s_waitcnt lgkmcnt(0)', 's_barrier'] + [f'ds_read_b128 {v(vPF+(ks*2+ht)*4,4)}, v{vPR} offset:{(ks*2+ht)*1024}' for ks in range(4)]
            return a_, b_, c_, d_
        g1 = self.o.get('g1', 2); g2 = self.o.get('g2', 2)
        a0,b0,c0,d0 = sm(0); a1_,b1,c1,d1 = sm(1)
        e(f's_waitcnt lgkmcnt({len(lq)-1-lq.index(("q",15,1))})')
        mf = [qk(s,kt,1) for s in range(16) for kt in range(2)]
        bg = vlast + [ver(s,1) for s in range(16)] + ['v_add3_u32 v23, v23, v80, v81', 'v_add3_u32 v23, v23, v82, v83']
        left = stream(mf, [('gap',1)] + a0 + [('gap',g1)] + b0 + [('gap',g2)] + c0, bg)
        flush(left)
        self.stamp('T.QK')
        flush(bg)
        A = [x for x in a1_ if not isinstance(x, tuple)]
        R = [f'v_add_u32_dpp v23, v23, v23 {p} {DPP}' for p in ['quad_perm:[1,0,3,2]','quad_perm:[2,3,0,1]','row_half_mirror','row_mirror']]
        R += ['v_mov_b32 v69, v23', 'v_permlane16_swap_b32 v23, v69', 'v_add_u32 v23, v23, v69', 'v_mov_b32 v69, v23', 'v_permlane32_swap_b32 v23, v69', 'v_add_u32 v23, v23, v69', 'v_cmp_ne_u32 vcc, 0, v23']
        flush([R[0], R[1], A[0], A[1], R[2], A[2], A[3], R[3], A[4], R[4], 's_nop 0', A[5], R[5], A[6], R[6], A[7], R[7], 's_nop 0', A[8], A[9], A[10], R[8], R[9], R[10]])
        flush(d0[:2]); e('s_cbranch_vccnz L_T_Q0'); flush(d0[2:] + b1[2:])
        self.stamp('T.Pbar')
        def lsum(ht, dst):
            r0 = vS+ht*4; r1 = vS+8+ht*4
            return [f'v_add_f32 v{r0}, v{r0}, v{r0+1}', f'v_add_f32 v{r0+2}, v{r0+2}, v{r0+3}', f'v_add_f32 v{r1}, v{r1}, v{r1+1}', f'v_add_f32 v{r1+2}, v{r1+2}, v{r1+3}',
                    f'v_add_f32 v{r0}, v{r0}, v{r0+2}', f'v_add_f32 v{r1}, v{r1}, v{r1+2}', f'v_add_f32 v{dst}, v{r0}, v{r1}']
        n3 = self.o.get('wo3', 0); n4 = self.o.get('wo4', 0)
        l0 = lsum(0, 70)
        if ng: flush(vgap); c1[0] = f's_waitcnt lgkmcnt({ng})'
        else: flush(l0); l0 = []
        e(f's_waitcnt lgkmcnt({4+ng})')
        mf = [pv(ks,T,0) for ks in range(4) for T in range(8)]
        lt = ['v_permlane32_swap_b32 v70, v71','v_add_f32 v70, v70, v71','v_mov_b32 v71, v70', f'ds_read_b128 v[76:79], v{vLR}', 'v_permlane16_swap_b32 v70, v71','v_add_f32 v70, v70, v71',
              f'ds_write_b32 v{vMW}, v70 offset:512']
        if ng: mf[32-2*ng] = 's_waitcnt lgkmcnt(0)\n' + mf[32-2*ng]
        lx = f'ds_read_b128 v[72:75], v{vLR} offset:512'
        lsep = self.o.get('lsep', 1)
        ls = l0 + lsum(1, 71)
        if lsep: left = stream(mf, [('gap',0)] + c1 + ls[:7] + d1 + ls[7:] + [('gap',0)] + lt, [])
        else: left = stream(mf, [('gap',0)] + c1 + ls + [('gap',0)] + lt + [('gap',self.o.get('g3',1))] + d1 + [lx], [])
        flush(left)
        nwe += n3
        self.stamp('T.pv4')
        def outops(ht):
            ops = []
            for r in range(4):
                o = vO + (ht*4+r)*4
                for k in range(4):
                    ops.append(f'v_cvt_pk_bf16_f32 v{o+k}, v{vAcc+(ht*8+2*k)*4+r}, v{vAcc+(ht*8+2*k+1)*4+r}')
                ops.append(f'buffer_store_dwordx4 {v(o,4)}, v{24+ht}, {srd(rWS)}, 0 offen offset:{r*1024} sc1')
            return ops
        e(f's_waitcnt lgkmcnt({1 if lsep else 0})')
        mf = [pv(ks,T,1) for ks in range(4) for T in range(8)]
        cs = self.o.get('cs', 1)
        def csum(ht):
            c = 48 + 4*ht; y = 56 + 2*ht; z = 60 + ht
            ops = []
            for r in range(4):
                o = vO + (ht*4+r)*4
                ops.append([f'v_add3_u32 v{c+r}, v{o}, v{o+1}, v{o+2}', f'v_add_u32 v{c+r}, v{c+r}, v{o+3}'])
            red = [f'v_add_u32_dpp v{y}, v{c}, v{c} row_ror:8 row_mask:0xf bank_mask:0x3', f'v_add_u32_dpp v{y+1}, v{c+1}, v{c+1} row_ror:8 row_mask:0xf bank_mask:0x3',
                   f'v_add_u32_dpp v{y}, v{c+2}, v{c+2} row_ror:8 row_mask:0xf bank_mask:0xc', f'v_add_u32_dpp v{y+1}, v{c+3}, v{c+3} row_ror:8 row_mask:0xf bank_mask:0xc',
                   f'v_add_u32_dpp v{z}, v{y}, v{y} row_shl:4 row_mask:0xf bank_mask:0x5', f'v_add_u32_dpp v{z}, v{y+1}, v{y+1} row_shr:4 row_mask:0xf bank_mask:0xa',
                   f'v_add_u32_dpp v{z}, v{z}, v{z} quad_perm:[1,0,3,2] {DPP}', f'v_add_u32_dpp v{z}, v{z}, v{z} quad_perm:[2,3,0,1] {DPP}']
            return ops, red
        def out_cs(ht):
            if not cs: return outops(ht)
            o = outops(ht); l, red = csum(ht); res = []
            for r in range(4): res += o[5*r:5*r+5] + l[r]
            return res + red + [f'v_sub_u32 v{60+ht}, s{sT0}, v{60+ht}', f'buffer_store_dword v{60+ht}, v{26+ht}, {srd(rWS)}, s75 offen sc1']
        recv = ['v_max3_f32 v84, v76, v77, v78', 'v_max_f32 v84, v84, v79', 'v_mul_f32 v84, v38, v84', f'v_mov_b32 v86, s{sT0}', f'v_mov_b32 v87, s{sT1}',
                'v_add_f32 v72, v72, v73', 'v_add_f32 v74, v74, v75', 'v_add_f32 v85, v72, v74']
        o0 = out_cs(0)
        rl = self.o.get('recloc', 2)
        rp = self.o.get('recpos', 4)
        def recst(nst): return self.stamptok('T.recw') + [f'buffer_store_dwordx4 v[84:87], v15, {srd(rWS)}, 0 offen sc1', ] + ([f'buffer_store_dwordx4 v[84:87], v32, {srd(rWS)}, s{sLOC} offen'] if rl and not self.o.get('loclate') else []) + self.stamptok('T.recst')
        assert rp <= 4
        if lsep:
            assert rp >= 2
            o0 = recv[:4] + o0[:7] + ['s_waitcnt lgkmcnt(0)', 's_barrier', lx] + o0[7:7*rp] + ['s_waitcnt lgkmcnt(0)'] + recv[4:] + recst(rp) + o0[7*rp:]
        else: o0 = recv[:4] + o0[:7*rp] + recv[4:] + recst(rp) + o0[7*rp:]
        left = stream(mf, o0 + sum([wo_ops(i) for i in range(nwe, nwe+n4)], []), [])
        flush(left)
        nwe += n4
        self.stamp('T.pv8')
        o1 = out_cs(1)
        flush(o1)
        if rl and self.o.get('loclate'): e(f'buffer_store_dwordx4 v[84:87], v32, {srd(rWS)}, s{sLOC} offen')
        self.stamp('T.PVst')
        self.stamp('T.rec')
        if self.o.get('wb') == 2: e(f's_lshl_b32 s{s0}, s{sW}, 4\ns_or_b32 s{s0}, s{s0}, s{sR}\ns_cmp_lg_u32 s{s0}, 15\ns_cbranch_scc1 L_NOWB\nbuffer_wbl2 sc1\nL_NOWB:')
        e('s_branch L_T3\n;SEG T3\nL_T3:')
        if self.o.get('thelp', 0):
            first = (nwe>>2)*32*1280
            e(f's_cmp_lt_u32 s61, 10\ns_cbranch_scc1 L_T_C2\ns_lshl2_add_u32 s{s0}, s{sX8}, s{sW}\ns_mul_i32 s{s0}, s{s0}, 163840\ns_add_u32 s{s0}, s{s0}, {first}')
            self.mk_srd(rA, pWO, s0, 5242880)
            e(f's_mov_b32 s{rA+2}, {163840-first}\ns_sub_u32 s{s0}, s61, 10\ns_lshl_b32 s{s0}, s{s0}, 10\ns_mov_b32 m0, s74')
            for k in range(((163840-first)//1024+5)//6):
                e(f'buffer_load_dwordx4 v3, {srd(rA)}, s{s0} offen lds\ns_add_u32 s{s0}, s{s0}, 6144')
            e('s_waitcnt vmcnt(0)\ns_branch L_END\nL_T_C2:')
        else: e(f's_cmp_ge_u32 s61, 10\ns_cbranch_scc1 L_END')
        if self.o.get('wowait'): e('s_waitcnt vmcnt(0)')
        for i in range(nwe, 16): flush(wo_ops(i))
        e(f"""
        v_lshrrev_b32 v12, 2, v1
        v_lshl_add_u32 v12, v2, 3, v12
        v_lshlrev_b32 v12, 7, v12
        v_and_b32 v13, 3, v1
        v_lshl_add_u32 v12, v13, 3, v12
        v_lshrrev_b32 v14, 3, v1
        v_and_b32 v15, 1, v2
        v_lshl_or_b32 v14, v15, 1, v14
        v_xor_b32 v14, s{sW}, v14
        v_lshl_add_u32 v24, v14, 5, v12
        v_mul_u32_u24 v13, 320, v13
        v_add_u32 v13, v13, v11
        v_add_u32 v25, {HB}, v13
        v_mul_u32_u24 v12, 320, v2
        v_lshl_add_u32 v12, v1, 3, v12
        s_mul_i32 s{s0}, s{sW}, 1280
        s_add_u32 s{s0}, s{s0}, {HB}
        v_add_u32 v26, s{s0}, v12
        v_lshlrev_b32 v12, 4, v1
        v_lshl_add_u32 v27, v2, 11, v12
        s_lshl4_add_u32 s75, s{sX8}, s{sW}
        s_lshl_b32 s75, s75, 9
        s_add_u32 s75, s75, {HCB+LOC}
        s_and_b32 s75, s75, s{sLM}
        s_and_b32 s{s0}, s{sX8}, 4
        s_add_u32 s{s0}, s{s0}, s{sX8}
        s_lshl_b32 s{s0}, s{s0}, 11
        s_lshl_b32 s{s1}, s61, 7
        s_add_u32 s{s0}, s{s0}, s{s1}
        s_lshl_b32 s{s1}, s{sW}, 5
        s_add_u32 s{s0}, s{s0}, s{s1}
        s_add_u32 s{s0}, s{s0}, {H3B}
        v_lshlrev_b32 v12, 1, v1
        v_lshl_add_u32 v12, v2, 13, v12
        v_add_u32 v12, s{s0}, v12
        v_cmp_gt_u32 vcc, 32, v0
        v_cndmask_b32 v28, v9, v12, vcc
        v_cmp_gt_u32 vcc, 16, v0
        v_cndmask_b32 v29, v9, v12, vcc
        s_waitcnt vmcnt(0)
        s_barrier
        """)
        self.stamp('C.land')
        def hcl(k):
            b = 64+8*k
            e(f'buffer_load_dwordx4 {v(b,4)}, v27, {srd(rWS)}, s75 offen sc1\nbuffer_load_dwordx4 {v(b+4,4)}, v27, {srd(rWS)}, s75 offen offset:256 sc1')
        def hcc(k):
            b = 64+8*k
            e(f'ds_write2_b32 v26, v{b}, v{b+2} offset0:0 offset1:1\nds_write2_b32 v26, v{b+4}, v{b+6} offset0:32 offset1:33')
            e(f'v_and_b32 v12, v{b+1}, v{b+3}\nv_or_b32 v13, v{b+1}, v{b+3}\nv_bitop3_b32 v12, v12, v{b+5}, v{b+7} bitop3:0x80\nv_or3_b32 v13, v13, v{b+5}, v{b+7}')
            e(f'v_cmp_ne_u64 vcc, s[76:77], v[12:13]')
        e(f's_mov_b32 s76, s{sT0}\ns_mov_b32 s77, s{sT0}')
        nhc = self.o.get('nhc',3)
        for st_ in range(16):
            if st_ % 5 == 0 and st_//5 < nhc: hcl(st_//5)
            for q in range(2): e(f'ds_read_b64_tr_b16 {a(st_*4+2*q,2)}, v24 offset:{WO+st_*4096+q*512}')
        self.ppoll('L_C_HC', nhc, 2, hcl, hcc, sregs=(75,), pre_issued=nhc)
        self.stamp('C.hcin')
        e('s_waitcnt lgkmcnt(0)\ns_barrier')
        self.stamp('C.bar')
        NP = 8
        def ar(st_): return f'ds_read_b128 {v(128+4*st_,4)}, v25 offset:{(st_>>2)*1280+(st_&3)*64}'
        for st_ in range(NP): e(ar(st_))
        for st_ in range(16):
            e(f's_waitcnt lgkmcnt({min(NP-1, 15-st_)})')
            e(f'v_mfma_f32_16x16x32_bf16 v[104:107], {v(128+4*st_,4)}, {a(st_*4,4)}, ' + ('0' if st_ == 0 else 'v[104:107]'))
            if st_+NP < 16: e(ar(st_+NP))
        e('v_pk_add_f32 v[104:105], v[104:105], v[106:107]\nv_add_f32 v104, v104, v105\nv_cvt_pk_bf16_f32 v104, v104, v104\nv_min_u32 v104, -2, v104')
        e(f'buffer_store_short v104, v28, {srd(rWS)}, 0 offen sc1')
        e(f'buffer_store_short v104, v29, {srd(rWS)}, s{sLOC} offen')
        self.stamp('C.h3')
        if self.o.get('wb') == 1: e(f's_or_b32 s{s0}, s{sR}, s{sW}\ns_cbranch_scc1 L_END\nbuffer_wbl2 sc1')

    def epilogue(self):
        e = self.e
        e('s_branch L_END\n;SEG END\nL_END:')
        if 'amp2' in self.o:
            k = self.idx[self.o['amp2']]
            e(f's_waitcnt lgkmcnt(0)\ns_cmp_eq_u32 s{sSTAMP+2*k}, 0\ns_cbranch_scc1 L_EXIT')
            if 'ampwg' in self.o: e(f's_cmp_lg_u32 s2, {self.o["ampwg"]}\ns_cbranch_scc1 L_EXIT')
            e(f's_sub_u32 s60, s{sSTAMP+2*k}, s{sSTAMP}\ns_lshl_b32 s60, s60, 3\ns_add_u32 s60, s60, s{sSTAMP}\ns_add_u32 s60, s60, 2000')
            e('L_AMP2:\ns_sleep 4\ns_memrealtime s[62:63]\ns_waitcnt lgkmcnt(0)\ns_sub_u32 s61, s62, s60\ns_cmp_lt_i32 s61, 0\ns_cbranch_scc1 L_AMP2')
        if self.stamps and 'amp' not in self.o and 'amp2' not in self.o and 'ampskew' not in self.o:
            self.mk_srd(rWS, pWS, None, WSSZ)
            e(f's_waitcnt lgkmcnt(0)\ns_lshl_b32 s60, s2, 2\ns_add_u32 s60, s60, s{sW}\ns_lshl_b32 s60, s60, 6\ns_add_u32 s60, s60, {STAMP}\nv_mov_b32 v4, 0')
            for k in range(11): e(f'v_mov_b32 v5, s{sSTAMP+2*k}\nbuffer_store_dword v5, v4, {srd(rWS)}, s60 offen offset:{4*k}')
            e(f'v_mov_b32 v5, s{sTO}\nbuffer_store_dword v5, v4, {srd(rWS)}, s60 offen offset:44\nv_mov_b32 v5, s7\nbuffer_store_dword v5, v4, {srd(rWS)}, s60 offen offset:48')
        e('L_EXIT:')

    def layout(self):
        segs = {}; cur = 'P'; segs[cur] = []
        for l in self.e.lines:
            if l.strip().startswith(';SEG '): cur = l.split()[1]; segs[cur] = []
            else: segs[cur].append(l)
        segs['END'].append('s_endpgm')
        out = []
        for x in self.o.get('layout', (['P','T0','A1'] if self.o.get('t0first', 1) else ['P','A1','T0']) + ['|','T1','TQ','A2','T3','|','A3','|','T2','|','FIN','END']):
            if x == '|':
                if self.o.get('align',1): out.append('.p2align 12')
            else: out += segs[x]
        out.append('L_CODE_END:')
        return '\n'.join(out)
    def build(self):
        if self.stamps:
            for k in range(1,11): self.e(f's_mov_b32 s{sSTAMP+2*k}, 0')
            self.e('s_mov_b32 s7, 0')
        self.prologue(); self.role_A(); self.role_T(); self.epilogue()
        hdr = open('header.txt').read()
        if self.o.get('noloc'):
            self.e.lines = [l.replace(f', s{sLOC} offen', ', 0 offen sc1') if 'buffer_store' in l else l.replace(f's_mov_b32 s{sLM}, -1', f's_mov_b32 s{sLM}, {(~LOC)&0xffffffff}') for l in self.e.lines]
        return f'''{hdr}; @launch grid=(256,1,1) block=(256,1,1) lds=163840
.amdgcn_target "amdgcn-amd-amdhsa--gfx950"
.text
.globl {KN}
{'.p2align 12' if self.o.get('align',1) else ''}
.p2align 8
.type {KN},@function
{KN}:
{self.layout()}
.section .rodata,"a"
.p2align 6
.amdhsa_kernel {KN}
  .amdhsa_next_free_vgpr 512
  .amdhsa_next_free_sgpr 102
  .amdhsa_accum_offset 256
  .amdhsa_group_segment_fixed_size 0
  .amdhsa_kernarg_size 112
  .amdhsa_user_sgpr_count 2
  .amdhsa_user_sgpr_kernarg_segment_ptr 1
  .amdhsa_system_sgpr_workgroup_id_x 1
.end_amdhsa_kernel
'''

if __name__ == '__main__':
    import json
    out = sys.argv[1]; stamps = len(sys.argv) > 2 and sys.argv[2] == '1'
    opt = json.loads(sys.argv[3]) if len(sys.argv) > 3 else {}
    open(out,'w').write(G(stamps, opt).build())
```
